```python
import torch

def _softmax(x, axis=-1):
    return torch.softmax(x, dim=axis)
def _gelu(x):
    return torch.nn.functional.gelu(x, approximate="tanh")
def _silu(x):
    return torch.nn.functional.silu(x)
def _sigmoid(x):
    return torch.sigmoid(x)
def _layernorm(x, axis=-1, eps=1e-5):
    m = x.mean(dim=axis, keepdim=True)
    v = x.var(dim=axis, keepdim=True, unbiased=False)
    return (x - m) / torch.sqrt(v + eps)
def _scatter_add(tgt, idx, src, axis=0):
    return tgt.clone().index_add_(axis, idx, src)
def _segment_sum(src, seg, n):
    out = torch.zeros((n,) + src.shape[1:], dtype=src.dtype)
    return out.index_add_(0, seg, src)
def _pad(x, pw):
    flat = tuple(v for pair in reversed(pw) for v in pair)
    return torch.nn.functional.pad(x, flat)

kernel_name = 'recurrent_scan__softmax_full_mha__glu_gated_geglu__prompt'

def setup_inputs():

    _w = (lambda a: (lambda t: t.to(torch.bfloat16) if t.is_floating_point() else t)(torch.as_tensor(a)))
    def _A_setup():
        B, S, D = 1, 2048, 512
        return {
            "x": _w((lambda *s: torch.randn(*s, dtype=torch.bfloat16) * 0.05)(B, S, D)),
            "wqkv": _w((lambda *s: torch.randn(*s, dtype=torch.bfloat16) * 0.2)(D, 3 * D)),
            "wo": _w((lambda *s: torch.randn(*s, dtype=torch.bfloat16) * 0.2)(D, D)),
        }
    _A_in = _A_setup()

    def _B_setup():
        B, S, Dm, Df = 1, 2048, 512, 1376
        return {
            "x": _w((lambda *s: torch.randn(*s, dtype=torch.bfloat16) * 0.05)(B, S, Dm)),
            "w_gate": _w((lambda *s: torch.randn(*s, dtype=torch.bfloat16) * 0.1)(Dm, Df) * (Dm ** -0.5)),
            "w_up": _w((lambda *s: torch.randn(*s, dtype=torch.bfloat16) * 0.1)(Dm, Df) * (Dm ** -0.5)),
            "w_down": _w((lambda *s: torch.randn(*s, dtype=torch.bfloat16) * 0.1)(Df, Dm) * (Df ** -0.5)),
        }
    _B_in = _B_setup()

    return {
        "A_x": _A_in["x"],
        "A_wqkv": _A_in["wqkv"],
        "A_wo": _A_in["wo"],
        "B_x": _B_in["x"],
        "B_w_gate": _B_in["w_gate"],
        "B_w_up": _B_in["w_up"],
        "B_w_down": _B_in["w_down"],
    }

def reference(A_x, A_wqkv, A_wo, B_x, B_w_gate, B_w_up, B_w_down):
    def _A_ref(x, wqkv, wo):
        B, S, D = x.shape
        H = 32; Dh = D // H
        qkv = (lambda x, *d: x.permute(*d))((x @ wqkv).reshape(B, S, 3, H, Dh), 2, 0, 3, 1, 4)
        q, k, v = qkv[0], qkv[1], qkv[2]
        scale = Dh ** -0.5
        scores = torch.einsum("bhqd,bhkd->bhqk", q, k) * scale
        p = _softmax(scores, axis=-1)
        o = torch.einsum("bhqk,bhkd->bhqd", p, v)
        return (lambda x, *d: x.permute(*d))(o, 0, 2, 1, 3).reshape(B, S, D) @ wo

    def _B_ref(x, w_gate, w_up, w_down):
        g = torch.einsum("bsd,df->bsf", x, w_gate)
        u = torch.einsum("bsd,df->bsf", x, w_up)
        h = _gelu(g) * u
        return torch.einsum("bsf,fd->bsd", h, w_down)

    x = A_x
    xn = _layernorm(x, axis=-1)
    s = _A_ref(xn, A_wqkv, A_wo)
    g = _silu(_B_ref(xn, B_w_gate, B_w_up, B_w_down))
    return x + s * g
```

```python
import sys, struct, math

NAME = "recurrent_scan__softmax_full_mha__glu_gated_geglu__prompt"
MB = 1 << 20
QF, KF, VF, OF, GF, WOF, WDF, HF = 0, 2*MB, 4*MB, 6*MB, 8*MB, 10*MB, 11*MB, 13*MB
WS_BYTES = 20*MB
NFU = 86
WD_STEPS = 88

def f2u(x): return struct.unpack("<I", struct.pack("<f", x))[0]
LOG2E = 1.4426950408889634

class Asm:
    def __init__(self): self.l = []
    def __call__(self, s): self.l.append("    " + s)
    def lab(self, s): self.l.append(s + ":")
    def raw(self, s): self.l.append(s)
    def text(self): return "\n".join(self.l) + "\n"

def vr(a, n): return f"v[{a}:{a+n-1}]"
def sr(a, n): return f"s[{a}:{a+n-1}]"

def srd(A, d, base, nbytes):
    A(f"s_mov_b32 s{d}, s{base}")
    A(f"s_mov_b32 s{d+1}, s{base+1}")
    A(f"s_mov_b32 s{d+2}, {nbytes:#x}")
    A(f"s_mov_b32 s{d+3}, 0x00020000")

def csel(A, d, a, b):
    A(f"s_mov_b32 s{d}, {b:#x}")
    A(f"s_cselect_b32 s{d}, {a:#x}, s{d}")

def kernel_head(A, name):
    A.raw(".text")
    A.raw(f".globl {name}")
    A.raw(".p2align 8")
    A.raw(f".type {name},@function")
    A.lab(name)

def kernel_desc(name, vgpr, sgpr):
    return f""".section .rodata,"a"
.p2align 6
.amdhsa_kernel {name}
  .amdhsa_next_free_vgpr {vgpr}
  .amdhsa_next_free_sgpr {sgpr}
  .amdhsa_accum_offset {(vgpr+3)//4*4}
  .amdhsa_group_segment_fixed_size 0
  .amdhsa_kernarg_size 80
  .amdhsa_user_sgpr_count 2
  .amdhsa_user_sgpr_kernarg_segment_ptr 1
  .amdhsa_system_sgpr_workgroup_id_x 1
.end_amdhsa_kernel
"""

def interleave(A, mfmas, fillers_per_gap):
    for m, f in zip(mfmas, fillers_per_gap):
        A(m)
        for x in f: A(x)

K1_XR = 0
K1_WR = 49152
K1_WS = 18560
K1_UPOFF = 9344
K1_TNEG = K1_WR + 6*K1_WS
K1_TR = K1_TNEG + 512
K1_TCS = K1_TR + 512
K1_LDS = K1_TCS + 2048
assert K1_LDS <= 163840

S_X, S_QKV, S_G, S_U, S_WS, S_SJ = 24, 28, 32, 36, 40, 44
S_B, S_C, S_W = 20, 21, 22

def gen_k1(A):
    name = "k1_kernel"
    kernel_head(A, name)
    A("s_cmp_ge_u32 s2, 256")
    A("s_cbranch_scc1 K1_END")
    A("s_load_dwordx4 s[4:7], s[0:1], 0")
    A("s_load_dwordx2 s[8:9], s[0:1], 16")
    A("s_load_dwordx4 s[12:15], s[0:1], 32")
    A("s_load_dwordx2 s[16:17], s[0:1], 48")
    A("s_load_dwordx2 s[18:19], s[0:1], 72")
    A("v_lshrrev_b32 v250, 6, v0")
    A("v_and_b32 v251, 63, v0")
    A("s_and_b32 s3, s2, 7")
    A("v_readfirstlane_b32 s22, v250")
    A("s_lshr_b32 s23, s2, 3")
    A("s_and_b32 s20, s3, 1")
    A("s_lshl_b32 s20, s20, 3")
    A("s_and_b32 s48, s23, 7")
    A("s_add_u32 s20, s20, s48")
    A("s_lshr_b32 s21, s3, 1")
    A("s_lshl_b32 s21, s21, 2")
    A("s_lshr_b32 s48, s23, 3")
    A("s_add_u32 s21, s21, s48")
    A("s_waitcnt lgkmcnt(0)")
    srd(A, S_X, 4, 2048*512*2)
    srd(A, S_QKV, 6, 512*1536*2)
    srd(A, S_G, 12, 512*1376*2)
    srd(A, S_U, 14, 512*1376*2)
    srd(A, S_WS, 18, WS_BYTES)
    A("s_cmp_ge_u32 s22, 4")
    A("s_cbranch_scc1 K1_LOADER")
    A("s_cmp_ge_u32 s21, 6")
    A("s_cbranch_scc1 K1_F")
    A("s_cmp_ge_u32 s21, 4")
    A("s_cbranch_scc1 K1_V")
    gen_k1_compute(A, "QK")
    A.lab("K1_V")
    gen_k1_compute(A, "V")
    A.lab("K1_F")
    gen_k1_compute(A, "F")
    A.lab("K1_LOADER")
    gen_k1_loader(A)
    A.lab("K1_END")
    A("s_endpgm")
    return kernel_desc(name, 256, 80)

def gen_k1_compute(A, kind):
    F = kind == "F"
    NT = 9 if F else 8
    NW = 5 if F else 4
    XS = [144, 152]; WSET = [160, 180]
    XA = 200
    WA = 208
    S1, S2, S1b, S2b = 211, 212, 213, 214
    CS = 215
    L = 251
    T0 = 220
    KQ = 1152 if F else 2048
    US = 128 if F else 256
    P = "K1" + kind
    A("s_lshr_b32 s48, s22, 1")
    A("s_and_b32 s49, s22, 1")
    A("s_xor_b32 s50, s22, 1")
    A("s_lshl_b32 s51, s49, 2")
    A("s_lshl_b32 s52, s48, 1")
    A("s_add_u32 s51, s51, s52")
    A("s_xor_b32 s52, s51, 2")
    A("s_mov_b32 s53, 0x3f803f80")
    t, h, sw = T0, T0+1, T0+2
    A(f"v_and_b32 v{t}, 31, v{L}")
    A(f"v_lshrrev_b32 v{h}, 5, v{L}")
    A(f"v_bfe_u32 v{sw}, v{t}, 1, 3")
    A(f"v_xor_b32 v{sw}, v{sw}, v{h}")
    A(f"v_lshlrev_b32 v{T0+3}, 7, v{t}")
    A("s_lshl_b32 s54, s22, 12")
    A("s_lshl_b32 s55, s50, 12")
    for s in range(4):
        A(f"v_xor_b32 v{T0+4}, {2*s}, v{sw}")
        A(f"v_lshl_add_u32 v{T0+4}, v{T0+4}, 4, v{T0+3}")
        A(f"v_add_u32 v{XA+s}, s54, v{T0+4}")
        A(f"v_add_u32 v{XA+4+s}, s55, v{T0+4}")
    if F:
        A(f"v_and_b32 v{T0+3}, 15, v{L}")
        A(f"v_lshlrev_b32 v{T0+3}, 3, v{T0+3}")
        A(f"v_bfe_u32 v{T0+4}, v{L}, 4, 1")
        A(f"v_mul_u32_u24 v{T0+4}, {K1_UPOFF}, v{T0+4}")
        A(f"v_add_u32 v{T0+3}, v{T0+3}, v{T0+4}")
    else:
        A(f"v_lshlrev_b32 v{T0+3}, 3, v{t}")
    A(f"v_mul_u32_u24 v{T0+4}, {2*KQ}, v{h}")
    A(f"v_add_u32 v{T0+3}, v{T0+3}, v{T0+4}")
    A(f"v_add_u32 v{T0+3}, {K1_WR}, v{T0+3}")
    A(f"s_mul_i32 s54, s51, {US}")
    A(f"s_mul_i32 s55, s52, {US}")
    A(f"v_add_u32 v{WA}, s54, v{T0+3}")
    A(f"v_add_u32 v{WA+1}, s55, v{T0+3}")
    A(f"v_add_u32 v{WA+2}, {8*US}, v{T0+3}")
    for r in range(NT*16): A(f"v_mov_b32 v{r}, 0")
    for r in range(S1, CS+3): A(f"v_mov_b32 v{r}, 0")
    A("s_mov_b32 s56, 0")
    A("s_mov_b32 s57, 0")

    def reads(st, s):
        r = []
        hs, sp = s >> 1, s & 1
        def wread(lu):
            a = WA + (2 if lu == 4 else lu >> 1)
            base = hs*K1_WS + 4*sp*KQ + (0 if lu == 4 else (lu & 1)*US)
            d = WSET[st] + 4*lu
            return [f"ds_read_b64_tr_b16 {vr(d,2)}, v{a} offset:{base}",
                    f"ds_read_b64_tr_b16 {vr(d+2,2)}, v{a} offset:{base+KQ}"]
        r.append(f"ds_read_b128 {vr(XS[st],4)}, v{XA+s}")
        r += wread(0)
        r.append(f"ds_read_b128 {vr(XS[st]+4,4)}, v{XA+4+s}")
        for lu in range(1, NW): r += wread(lu)
        return r
    def mfma(tile, w, x):
        a, b = (x, w) if kind == "V" else (w, x)
        return f"v_mfma_f32_32x32x16_bf16 {vr(16*tile,16)}, {vr(a,4)}, {vr(b,4)}, {vr(16*tile,16)}"
    def mfmas(st):
        m = []
        for lu in range(4):
            for lt in range(2):
                m.append(mfma(lu*2+lt, WSET[st]+4*lu, XS[st]+4*lt))
        if F: m.append(mfma(8, WSET[st]+16, XS[st]))
        return m
    def dots(st):
        d = []
        x = XS[st]; w = WSET[st]
        for i in range(4):
            d.append(f"v_dot2c_f32_bf16 v{S2 if i&1 else S2b}, v{x+i}, v{x+i}")
            d.append(f"v_dot2c_f32_bf16 v{CS}, s53, v{w+i}")
            d.append(f"v_dot2c_f32_bf16 v{S1 if i&1 else S1b}, s53, v{x+i}")
            d.append(f"v_dot2c_f32_bf16 v{CS+1}, s53, v{w+4+i}")
            if F: d.append(f"v_dot2c_f32_bf16 v{CS+2}, s53, v{w+16+i}")
        return d

    A("s_barrier")
    for x in reads(0, 0): A(x)
    A.raw(".p2align 6")
    A.lab(P + "_LOOP")
    A("s_cmp_eq_u32 s57, 2")
    csel(A, 58, (-32768) & 0xffffffff, 16384)
    csel(A, 59, (-4*K1_WS) & 0xffffffff, 2*K1_WS)
    A("s_cselect_b32 s57, -1, s57")
    A("s_add_u32 s57, s57, 1")
    for s in range(4):
        st = s & 1
        nx = (s+1) & 3
        A("s_waitcnt lgkmcnt(0)")
        if s & 1: A("s_barrier")
        ms = mfmas(st); rd = reads(1-st, nx); dt = dots(st)
        upd = []
        if s < 3:
            upd += [f"v_add_u32 v{XA+nx}, s58, v{XA+nx}", f"v_add_u32 v{XA+4+nx}, s58, v{XA+4+nx}"]
        if s == 0:
            upd += [f"v_add_u32 v{XA}, s58, v{XA}", f"v_add_u32 v{XA+4}, s58, v{XA+4}"]
        if s == 2:
            upd += [f"v_add_u32 v{WA+i}, s59, v{WA+i}" for i in range(3 if F else 2)]
        gaps = [[] for _ in ms]
        gi = 0
        for i, r in enumerate(rd):
            gaps[i//2].append(r)
        nrg = (len(rd)+1)//2
        rest = dt + upd
        g = 0
        quota = [2 if i < nrg else 4 for i in range(len(ms))]
        for x in dt:
            while quota[g] == 0: g += 1
            gaps[g].append(x); quota[g] -= 1
        for x in upd: gaps[-1].append(x)
        interleave(A, ms, gaps)
    A("s_add_u32 s56, s56, 1")
    A("s_cmp_lt_u32 s56, 8")
    A(f"s_cbranch_scc1 {P}_LOOP")
    E = 144
    A("s_waitcnt lgkmcnt(0)")
    A("s_nop 2")
    A(f"v_add_f32 v{S1}, v{S1}, v{S1b}")
    A(f"v_add_f32 v{S2}, v{S2}, v{S2b}")
    A(f"v_mov_b32 v{S1b}, v{S1}")
    A(f"v_mov_b32 v{S2b}, v{S2}")
    A("s_nop 1")
    A(f"v_permlane32_swap_b32 v{S1}, v{S1b}")
    A(f"v_permlane32_swap_b32 v{S2}, v{S2b}")
    A("s_nop 1")
    A(f"v_add_f32 v{S1}, v{S1}, v{S1b}")
    A(f"v_add_f32 v{S2}, v{S2}, v{S2b}")
    A(f"v_mul_f32 v{S1}, {f2u(1/512):#x}, v{S1}")
    A(f"v_mul_f32 v{S2}, {f2u(1/512):#x}, v{S2}")
    A(f"v_fma_f32 v{S2}, -v{S1}, v{S1}, v{S2}")
    A(f"v_max_f32 v{S2}, 0, v{S2}")
    NEG0, NEG1 = E, E+2
    CSF = E+4
    R0, R1, SD0, SD1 = E+14, E+16, E+18, E+20
    A(f"v_cvt_pk_bf16_f32 v{NEG0}, -v{S1}, -v{S1}")
    A(f"v_cvt_pk_bf16_f32 v{S2}, v{S2}, v{S2}")
    A(f"v_and_b32 v{S2}, 0xffff0000, v{S2}")
    A(f"v_add_f32 v{S2}, {f2u(1e-5):#x}, v{S2}")
    A(f"v_cvt_pk_bf16_f32 v{S2}, v{S2}, v{S2}")
    A(f"v_and_b32 v{S2}, 0xffff0000, v{S2}")
    A(f"v_sqrt_f32 v{S2}, v{S2}")
    A("s_nop 0")
    A(f"v_cvt_pk_bf16_f32 v{S2}, v{S2}, v{S2}")
    A(f"v_and_b32 v{SD0}, 0xffff0000, v{S2}")
    A(f"v_lshlrev_b32 v{T0+3}, 2, v{t}")
    A("s_lshl_b32 s54, s22, 7")
    A("s_lshl_b32 s55, s50, 7")
    A(f"v_add_u32 v{T0+4}, s54, v{T0+3}")
    A(f"v_add_u32 v{T0+5}, s55, v{T0+3}")
    A(f"v_add_u32 v{T0+4}, {K1_TNEG}, v{T0+4}")
    A(f"v_add_u32 v{T0+5}, {K1_TNEG}, v{T0+5}")
    A(f"ds_write_b32 v{T0+4}, v{NEG0}")
    A(f"ds_write_b32 v{T0+4}, v{SD0} offset:512")
    for i, dst in ((0, CSF), (1, CSF+2), (2, CSF+8)):
        if i == 2 and not F: continue
        A(f"v_cvt_pk_bf16_f32 v{T0+6}, v{CS+i}, v{CS+i}")
        A(f"v_and_b32 v{T0+6}, 0xffff0000, v{T0+6}")
        A(f"v_sub_f32 v{T0+7}, v{CS+i}, v{T0+6}")
        A(f"v_cvt_pk_bf16_f32 v{dst}, v{T0+6}, v{T0+7}")
    A(f"v_lshlrev_b32 v{T0+6}, 2, v{L}")
    A(f"v_add_u32 v{T0+6}, {K1_TCS}, v{T0+6}")
    A("s_lshl_b32 s54, s51, 8")
    A("s_lshl_b32 s55, s52, 8")
    A(f"v_add_u32 v{T0+7}, s54, v{T0+6}")
    A(f"v_add_u32 v{T0+8}, s55, v{T0+6}")
    A(f"ds_write_b32 v{T0+7}, v{CSF}")
    A(f"ds_write_b32 v{T0+7}, v{CSF+2} offset:256")
    for r in (NEG0+1, NEG1+1, CSF+1, CSF+3, CSF+5, CSF+7, CSF+9): A(f"v_mov_b32 v{r}, 0")
    A("s_waitcnt lgkmcnt(0)")
    A("s_barrier")
    A(f"ds_read_b32 v{NEG1}, v{T0+5}")
    A(f"ds_read_b32 v{SD1}, v{T0+5} offset:512")
    A(f"ds_read_b32 v{CSF+4}, v{T0+8}")
    A(f"ds_read_b32 v{CSF+6}, v{T0+8} offset:256")
    RR = E+24
    if kind == "V":
        A(f"v_lshlrev_b32 v{T0+9}, 4, v{h}")
        A(f"v_add_u32 v{T0+9}, {K1_TR}, v{T0+9}")
        A("s_lshl_b32 s54, s22, 7")
        A("s_lshl_b32 s55, s50, 7")
        A(f"v_add_u32 v{T0+10}, s54, v{T0+9}")
        A(f"v_add_u32 v{T0+11}, s55, v{T0+9}")
        for lt in range(2):
            for i in range(4):
                A(f"ds_read_b128 {vr(RR+16*lt+4*i,4)}, v{T0+10+lt} offset:{32*i}")
    A("s_waitcnt lgkmcnt(0)")
    def corr(tile, lu, lt):
        cs = CSF + 2*lu; ng = NEG1 if lt else NEG0
        a, b = (ng, cs) if kind == "V" else (cs, ng)
        return f"v_mfma_f32_32x32x8_bf16 {vr(16*tile,16)}, {vr(a,2)}, {vr(b,2)}, {vr(16*tile,16)}"
    tiles = [(lu*2+lt, lu, lt) for lu in range(4) for lt in range(2)] + ([(8, 4, 0)] if F else [])
    for tl in tiles: A(corr(*tl))
    if kind == "V":
        for r in range(32): A(f"v_rcp_f32 v{RR+r}, v{RR+r}")
    else:
        A(f"v_rcp_f32 v{R0}, v{SD0}")
        A(f"v_rcp_f32 v{R1}, v{SD1}")
        A("s_nop 0")
        if kind == "QK":
            A("s_cmp_lt_u32 s21, 2")
            A(f"s_cselect_b32 s54, {f2u(0.25*LOG2E):#x}, 1.0")
            A(f"v_mul_f32 v{R0}, s54, v{R0}")
            A(f"v_mul_f32 v{R1}, s54, v{R1}")
        A(f"v_mov_b32 v{R0+1}, v{R0}")
        A(f"v_mov_b32 v{R1+1}, v{R1}")
        A(f"v_mov_b32 v{SD0+1}, v{SD0}")
        A(f"v_mov_b32 v{SD1+1}, v{SD1}")
    VO = T0+12
    if kind == "QK":
        A(f"v_and_b32 v{T0+13}, 0x33, v{L}")
        A(f"v_bfe_u32 v{T0+14}, v{L}, 2, 1")
        A(f"v_lshl_or_b32 v{T0+13}, v{T0+14}, 3, v{T0+13}")
        A(f"v_bfe_u32 v{T0+14}, v{L}, 3, 1")
        A(f"v_lshl_or_b32 v{T0+13}, v{T0+14}, 2, v{T0+13}")
        A("s_cmp_lt_u32 s21, 2")
        A("s_cselect_b64 vcc, -1, 0")
        A(f"v_cndmask_b32 v{VO}, v{T0+13}, v{L}, vcc")
        A(f"v_lshlrev_b32 v{VO}, 4, v{VO}")
    elif kind == "V":
        A(f"v_and_b32 v{VO}, 15, v{L}")
        A(f"v_lshlrev_b32 v{VO}, 4, v{VO}")
        A(f"v_lshl_or_b32 v{VO}, v{h}, 8, v{VO}")
        A(f"v_bfe_u32 v{T0+13}, v{L}, 4, 1")
        A(f"v_lshl_or_b32 v{VO}, v{T0+13}, 16, v{VO}")
    else:
        A(f"v_lshlrev_b32 v{VO}, 4, v{L}")
    A("s_lshl_b32 s60, s20, 2")
    A("s_add_u32 s61, s60, s50")
    A("s_add_u32 s60, s60, s22")
    if not F:
        A("s_lshl_b32 s62, s21, 20")
        A("s_lshl_b32 s60, s60, 10")
        A("s_lshl_b32 s61, s61, 10")
        A("s_add_u32 s60, s60, s62")
        A("s_add_u32 s61, s61, s62")
        A("s_lshl_b32 s63, s51, 17")
        A("s_lshl_b32 s64, s52, 17")
    else:
        A(f"s_mul_i32 s60, s60, {NFU*1024}")
        A(f"s_mul_i32 s61, s61, {NFU*1024}")
        A(f"s_add_u32 s60, s60, {HF:#x}")
        A(f"s_add_u32 s61, s61, {HF:#x}")
        A("s_sub_u32 s62, s21, 6")
        A("s_mul_i32 s62, s62, 9")
        C1, C3 = E+24, E+26
        c1 = -2*0.7978845608028654*LOG2E
        A(f"v_mov_b32 v{C1}, {f2u(c1):#x}")
        A(f"v_mov_b32 v{C1+1}, {f2u(c1):#x}")
        A(f"v_mov_b32 v{C3}, {f2u(c1*0.044715):#x}")
        A(f"v_mov_b32 v{C3+1}, {f2u(c1*0.044715):#x}")
    A("s_nop 7")
    A("s_nop 3")
    for (tile, lu, lt) in tiles:
        a = 16*tile
        if kind == "QK":
            R = R1 if lt else R0
            for i in range(8): A(f"v_pk_mul_f32 {vr(a+2*i,2)}, {vr(a+2*i,2)}, {vr(R,2)}")
        elif kind == "V":
            for i in range(8): A(f"v_pk_mul_f32 {vr(a+2*i,2)}, {vr(a+2*i,2)}, {vr(RR+16*lt+2*i,2)}")
        if not F:
            for i in range(8): A(f"v_cvt_pk_bf16_f32 v{a+i}, v{a+2*i}, v{a+2*i+1}")
            A(f"s_add_u32 s65, s{60+lt}, s{63 + (lu>>1)}")
            if lu & 1: A(f"s_add_u32 s65, s65, {2*65536}")
            if kind == "QK":
                A(f"s_add_u32 s66, s65, 65536")
                A(f"buffer_store_dwordx4 {vr(a,4)}, v{VO}, {sr(S_WS,4)}, s65 offen")
                A(f"buffer_store_dwordx4 {vr(a+4,4)}, v{VO}, {sr(S_WS,4)}, s66 offen")
            else:
                A(f"buffer_store_dwordx4 {vr(a,4)}, v{VO}, {sr(S_WS,4)}, s65 offen")
                A(f"buffer_store_dwordx4 {vr(a+4,4)}, v{VO}, {sr(S_WS,4)}, s65 offen offset:512")
        else:
            R = R1 if lt else R0; SD = SD1 if lt else SD0
            TT = E+28
            for i in range(4): A(f"v_pk_mul_f32 {vr(a+2*i,2)}, {vr(a+2*i,2)}, {vr(R,2)}")
            for i in range(4): A(f"v_pk_mul_f32 {vr(TT+2*i,2)}, {vr(a+2*i,2)}, {vr(a+2*i,2)}")
            for i in range(4): A(f"v_pk_fma_f32 {vr(TT+2*i,2)}, {vr(TT+2*i,2)}, {vr(C3,2)}, {vr(C1,2)}")
            for i in range(4): A(f"v_pk_mul_f32 {vr(TT+2*i,2)}, {vr(TT+2*i,2)}, {vr(a+2*i,2)}")
            for i in range(8): A(f"v_exp_f32 v{TT+i}, v{TT+i}")
            for i in range(4): A(f"v_pk_mul_f32 {vr(a+2*i,2)}, {vr(a+2*i,2)}, {vr(a+8+2*i,2)}")
            for i in range(4): A(f"v_pk_fma_f32 {vr(TT+2*i,2)}, {vr(TT+2*i,2)}, {vr(SD,2)}, {vr(SD,2)}")
            for i in range(8): A(f"v_rcp_f32 v{TT+i}, v{TT+i}")
            if lu == 4: A("s_add_u32 s65, s62, 8")
            else:
                A(f"s_add_u32 s65, s62, s{51 + (lu>>1)}")
                if lu & 1: A("s_add_u32 s65, s65, 1")
            for i in range(4): A(f"v_pk_mul_f32 {vr(a+2*i,2)}, {vr(a+2*i,2)}, {vr(TT+2*i,2)}")
            A(f"s_lshl_b32 s66, s65, 10")
            A(f"s_add_u32 s66, s66, s{60+lt}")
            A(f"s_cmp_lt_u32 s65, {NFU}")
            A(f"s_cselect_b32 s66, s66, 0x7fff0000")
            for i in range(4): A(f"v_cvt_pk_bf16_f32 v{a+i}, v{a+2*i}, v{a+2*i+1}")
            A(f"buffer_store_dwordx4 {vr(a,4)}, v{VO}, {sr(S_WS,4)}, s66 offen")
    A("s_endpgm")

def gen_k1_loader(A):
    L = 251
    A("s_sub_u32 s48, s22, 4")
    A("s_cmp_eq_u32 s48, 3")
    A("s_cbranch_scc1 K1_LX")
    A("s_cmp_lt_u32 s21, 6")
    A("s_cbranch_scc1 K1_LQ")
    A("s_sub_u32 s49, s21, 6")
    A(f"s_mul_i32 s49, s49, {9*32}")
    A("s_mul_i32 s50, s48, 192")
    A("s_mov_b32 s51, 2752")
    for i in range(3):
        A(f"v_add_u32 v10, s50, v{L}")
        if i: A(f"v_add_u32 v10, {64*i}, v10")
        A("v_mul_u32_u24 v11, 911, v10")
        A("v_lshrrev_b32 v11, 16, v11")
        A("v_mul_u32_u24 v12, 72, v11")
        A("v_sub_u32 v12, v10, v12")
        A("v_bfe_u32 v13, v12, 1, 2")
        A("v_lshl_add_u32 v13, v11, 2, v13")
        A("v_mul_lo_u32 v13, v13, s51")
        A("v_lshrrev_b32 v14, 3, v12")
        A("v_lshl_add_u32 v13, v14, 5, v13")
        A("v_and_b32 v14, 1, v12")
        A("v_lshl_add_u32 v13, v14, 4, v13")
        A(f"v_add_u32 v{1+i}, s49, v13")
    A("s_mul_i32 s52, s48, 3072")
    A(f"s_add_u32 s52, s52, {K1_WR}")
    def issueF():
        for fh, S in ((0, S_G), (1, S_U)):
            for i in range(3):
                A(f"s_add_u32 m0, s53, {fh*K1_UPOFF + i*1024}")
                A("s_nop 0")
                A(f"buffer_load_dwordx4 v{1+i}, {sr(S,4)}, s54 offen lds")
        A(f"s_add_u32 s54, s54, {32*2752}")
    gen_w_loader_loop(A, "K1LF", 6, issueF)
    A("s_branch K1_SIDE")
    A.lab("K1_LQ")
    A("s_cmp_eq_u32 s48, 2")
    A("s_cbranch_scc1 K1_LIDLE")
    A(f"v_bfe_u32 v10, v{L}, 1, 2")
    A("v_mul_u32_u24 v1, 3072, v10")
    A(f"v_lshrrev_b32 v10, 3, v{L}")
    A("v_lshl_add_u32 v1, v10, 5, v1")
    A(f"v_and_b32 v10, 1, v{L}")
    A("v_lshl_add_u32 v1, v10, 4, v1")
    A("s_lshl_b32 s49, s21, 9")
    A("s_lshl_b32 s50, s48, 8")
    A("s_add_u32 s49, s49, s50")
    A("v_add_u32 v1, s49, v1")
    A("s_lshl_b32 s52, s48, 10")
    A(f"s_add_u32 s52, s52, {K1_WR}")
    def issueQ():
        for kq in range(8):
            A(f"s_add_u32 m0, s53, {kq*2048}")
            A("s_nop 0")
            A(f"buffer_load_dwordx4 v1, {sr(S_QKV,4)}, s54 offen lds")
            A(f"s_add_u32 s54, s54, {4*3072}")
    gen_w_loader_loop(A, "K1LQ", 8, issueQ)
    A("s_branch K1_SIDE")
    A.lab("K1_LIDLE")
    for j in range(16): A("s_barrier")
    A("s_branch K1_SIDE")
    A.lab("K1_LX")
    A(f"v_lshrrev_b32 v10, 3, v{L}")
    A("v_lshlrev_b32 v10, 10, v10")
    A(f"v_and_b32 v11, 7, v{L}")
    A(f"v_lshrrev_b32 v12, 4, v{L}")
    A("v_xor_b32 v11, v11, v12")
    A("v_lshl_add_u32 v1, v11, 4, v10")
    A("v_xor_b32 v11, 4, v11")
    A("v_lshl_add_u32 v2, v11, 4, v10")
    A("s_lshl_b32 s54, s20, 17")
    A("s_mov_b32 s53, 0")
    def issueX():
        A("s_mov_b32 s55, s54")
        for i in range(16):
            A(f"s_add_u32 m0, s53, {i*1024}")
            A("s_nop 0")
            A(f"buffer_load_dwordx4 v{1+(i&1)}, {sr(S_X,4)}, s55 offen lds")
            if i < 15: A("s_add_u32 s55, s55, 8192")
        A("s_add_u32 s54, s54, 128")
        A("s_add_u32 s53, s53, 16384")
        A("s_cmp_eq_u32 s53, 49152")
        A("s_cselect_b32 s53, 0, s53")
    A("s_mov_b32 s56, 0")
    A.lab("K1LX_LOOP")
    issueX()
    A("s_add_u32 s56, s56, 1")
    A("s_cmp_lt_u32 s56, 3")
    A("s_cbranch_scc1 K1LX_LOOP")
    A("s_cmp_gt_u32 s56, 3")
    A("s_cbranch_scc1 K1LX_ODD")
    A("s_waitcnt vmcnt(32)")
    A("s_barrier")
    A.lab("K1LX_ODD")
    A("s_barrier")
    A("s_waitcnt vmcnt(16)")
    A("s_barrier")
    A("s_cmp_lt_u32 s56, 8")
    A("s_cbranch_scc1 K1LX_LOOP")
    A("s_barrier")
    A("s_waitcnt vmcnt(0)")
    A("s_barrier")
    A("s_barrier")
    A.lab("K1_SIDE")
    A("s_lshl_b32 s49, s2, 2")
    A("s_add_u32 s49, s49, s48")
    A("s_cmp_lt_u32 s49, 256")
    A(f"s_cselect_b32 s{S_SJ}, s8, s16")
    A(f"s_cselect_b32 s{S_SJ+1}, s9, s17")
    csel(A, S_SJ+2, 512*512*2, 1376*512*2)
    A(f"s_mov_b32 s{S_SJ+3}, 0x00020000")
    csel(A, 50, WOF, WDF)
    csel(A, 51, 32*1024, WD_STEPS*1024)
    A("s_cselect_b32 s52, 0, 256")
    A("s_sub_u32 s52, s49, s52")
    A("s_lshr_b32 s53, s52, 3")
    A("s_and_b32 s52, s52, 7")
    A("s_lshl_b32 s54, s53, 14")
    A("s_lshl_b32 s55, s52, 7")
    A("s_add_u32 s54, s54, s55")
    A(f"v_lshlrev_b32 v1, 1, v{L}")
    for rho in range(16):
        hh = (rho >> 2) & 1; j = (rho & 3) + 4*(rho >> 3)
        d = 16 + 8*(j & 1) + 4*hh + (j >> 1)
        A(f"buffer_load_ushort v{d}, v1, {sr(S_SJ,4)}, s54 offen offset:{(rho&3)*1024}")
        if (rho & 3) == 3: A("s_add_u32 s54, s54, 4096")
    A(f"v_lshrrev_b32 v2, 5, v{L}")
    A("v_mul_lo_u32 v2, v2, s51")
    A(f"v_and_b32 v3, 31, v{L}")
    A("v_lshl_add_u32 v2, v3, 4, v2")
    A("s_lshl_b32 s52, s52, 1")
    A("s_mul_i32 s52, s52, s51")
    A("s_lshl_b32 s53, s53, 10")
    A("s_add_u32 s52, s52, s53")
    A("s_add_u32 s52, s52, s50")
    A(f"s_cmp_lt_u32 s49, {256+8*WD_STEPS}")
    A("s_cselect_b32 s52, s52, 0x7fff0000")
    A("s_barrier")
    A("s_barrier")
    A("s_waitcnt vmcnt(0)")
    for i in range(8): A(f"v_lshl_or_b32 v{16+i}, v{24+i}, 16, v{16+i}")
    A(f"buffer_store_dwordx4 v[16:19], v2, {sr(S_WS,4)}, s52 offen")
    A(f"buffer_store_dwordx4 v[20:23], v2, {sr(S_WS,4)}, s52 offen offset:512")

def gen_w_loader_loop(A, P, n, issue):
    A("s_mov_b32 s53, s52")
    A(f"s_add_u32 s57, s52, {6*K1_WS}")
    A("s_mov_b32 s54, 0")
    A("s_mov_b32 s56, 0")
    A.lab(P + "_LOOP")
    issue()
    A(f"s_add_u32 s53, s53, {K1_WS}")
    A("s_cmp_eq_u32 s53, s57")
    A("s_cselect_b32 s53, s52, s53")
    A("s_add_u32 s56, s56, 1")
    A("s_cmp_lt_u32 s56, 6")
    A(f"s_cbranch_scc1 {P}_LOOP")
    A("s_cmp_gt_u32 s56, 6")
    A(f"s_cbranch_scc1 {P}_B")
    A(f"s_waitcnt vmcnt({5*n})")
    A("s_barrier")
    A.lab(P + "_B")
    A(f"s_waitcnt vmcnt({4*n})")
    A("s_barrier")
    A("s_cmp_lt_u32 s56, 16")
    A(f"s_cbranch_scc1 {P}_LOOP")
    for k in (3, 2, 1, 0):
        A(f"s_waitcnt vmcnt({k*n})")
        A("s_barrier")

K2_LDS = 131072 + 4096
BIAS = 48.0

def gen_k2(A):
    name = "k2_kernel"
    kernel_head(A, name)
    A("s_cmp_ge_u32 s2, 256")
    A("s_cbranch_scc1 K2_END")
    A("s_load_dwordx2 s[4:5], s[0:1], 72")
    A("v_lshrrev_b32 v96, 6, v0")
    A("v_and_b32 v97, 63, v0")
    A("v_lshlrev_b32 v95, 4, v97")
    A("v_readfirstlane_b32 s22, v96")
    A("s_waitcnt lgkmcnt(0)")
    srd(A, 8, 4, WS_BYTES)
    A("s_cmp_ge_u32 s22, 8")
    A("s_cbranch_scc1 K2_BG")
    S = [0, 16]; C = 32; O = 48; Q = 64; KB = [68, 72]; V0 = [76, 80]; V1 = [84, 88]
    IDX, KA, VA, L16 = 92, 93, 94, 95
    A("s_and_b32 s20, s2, 31")
    A("s_lshr_b32 s21, s2, 5")
    A("s_lshl_b32 s23, s21, 3")
    A("s_add_u32 s23, s23, s22")
    A("s_lshl_b32 s24, s20, 16")
    A("s_lshl_b32 s25, s23, 10")
    A("s_add_u32 s25, s25, s24")
    A(f"buffer_load_dwordx4 {vr(Q,4)}, v{L16}, s[8:11], s25 offen")
    A("s_lshl_b32 s26, s22, 10")
    A("s_add_u32 s27, s24, s26")
    A(f"s_add_u32 s28, s27, {VF:#x}")
    A(f"s_add_u32 s27, s27, {KF:#x}")
    for c in range(8):
        A(f"s_add_u32 m0, s26, {c*8192}")
        A("s_nop 0")
        A(f"buffer_load_dwordx4 v{L16}, s[8:11], s27 offen lds")
        A(f"s_add_u32 m0, s26, {65536 + c*8192}")
        A("s_add_u32 s27, s27, 8192")
        A(f"buffer_load_dwordx4 v{L16}, s[8:11], s28 offen lds")
        A("s_add_u32 s28, s28, 8192")
    for r in range(76, 92): A(f"v_mov_b32 v{r}, 0x3f803f80")
    A(f"v_mov_b32 v{IDX}, 0xdddd")
    A("s_mov_b32 s30, 0xffff")
    A("s_mov_b32 s31, 0xffff")
    A("s_mov_b32 s32, 1")
    A(f"s_mov_b32 s33, {f2u(BIAS):#x}")
    A("s_mov_b32 s34, 2")
    A("v_and_b32 v98, 15, v97")
    A("v_lshlrev_b32 v98, 4, v98")
    A("v_lshrrev_b32 v99, 5, v97")
    A("v_lshl_or_b32 v98, v99, 8, v98")
    A("v_add_u32 v98, 65536, v98")
    A("s_waitcnt vmcnt(14)")
    A("s_barrier")
    A.lab("K2_RUN")
    A(f"v_mov_b32 v{KA}, v{L16}")
    A("v_mov_b32 v100, 0xff800000")
    A.lab("K2_MAXLOOP")
    A(f"ds_read_b128 {vr(KB[0],4)}, v{KA}")
    A(f"ds_read_b128 {vr(KB[1],4)}, v{KA} offset:1024")
    A(f"v_add_u32 v{KA}, 2048, v{KA}")
    A("s_waitcnt lgkmcnt(1)")
    A(f"v_mfma_f32_32x32x16_bf16 {vr(S[0],16)}, {vr(KB[0],4)}, {vr(Q,4)}, 0")
    A("s_waitcnt lgkmcnt(0)")
    A(f"v_mfma_f32_32x32x16_bf16 {vr(S[1],16)}, {vr(KB[1],4)}, {vr(Q,4)}, 0")
    A("s_nop 10")
    for i in range(8): A(f"v_max3_f32 v100, v{2*i}, v{2*i+1}, v100")
    for i in range(8): A(f"v_max3_f32 v100, v{16+2*i}, v{17+2*i}, v100")
    A("s_sub_u32 s32, s32, 1")
    A("s_cmp_lg_u32 s32, 0")
    A("s_cbranch_scc1 K2_MAXLOOP")
    A(f"v_mov_b32 v{KA}, v{L16}")
    A(f"v_mov_b32 v{VA}, v98")
    A(f"ds_read_b128 {vr(KB[0],4)}, v{KA}")
    A(f"ds_read_b128 {vr(KB[1],4)}, v{KA} offset:1024")
    A("s_mov_b64 exec, s[30:31]")
    A(f"ds_read_b128 {vr(V0[0],4)}, v{VA}")
    A("s_mov_b64 exec, -1")
    A("v_mov_b32 v101, v100")
    A("s_nop 1")
    A("v_permlane32_swap_b32 v100, v101")
    A("s_nop 1")
    A("v_max_f32 v100, v100, v101")
    A("v_add_f32 v100, s33, v100")
    for r in range(16): A(f"v_sub_f32 v{C+r}, 0, v100")
    for r in range(16): A(f"v_mov_b32 v{O+r}, 0")
    for r in range(8, 16): A(f"v_mov_b32 v{S[1]+r}, 0")
    A("s_waitcnt lgkmcnt(2)")
    A(f"v_mfma_f32_32x32x16_bf16 {vr(S[0],16)}, {vr(KB[0],4)}, {vr(Q,4)}, {vr(C,16)}")
    A(f"ds_read_b128 {vr(KB[0],4)}, v{KA} offset:2048")
    A("s_mov_b64 exec, s[30:31]")
    A(f"ds_read_b128 {vr(V0[1],4)}, v{VA} offset:1024")
    A(f"ds_read_b128 {vr(V1[0],4)}, v{VA} offset:512")
    A("s_mov_b64 exec, -1")
    A("s_mov_b32 s35, 0")
    A("s_nop 6")
    A.raw(".p2align 6")
    A.lab("K2_LOOP")
    for t in range(8):
        p = t & 1
        cur, prv = S[p], S[1-p]
        ex = lambda a, b: [A(f"v_exp_f32 v{cur+i}, v{cur+i}") for i in range(a, b)]
        A("s_waitcnt lgkmcnt(3)")
        ex(0, 4)
        A(f"v_smfmac_f32_32x32x32_bf16 {vr(O,16)}, {vr(V1[1-p],4)}, {vr(prv+8,8)}, v{IDX}")
        ex(4, 8)
        A(f"v_mfma_f32_32x32x16_bf16 {vr(prv,16)}, {vr(KB[1-p],4)}, {vr(Q,4)}, {vr(C,16)}")
        A(f"ds_read_b128 {vr(KB[1-p],4)}, v{KA} offset:{(t+3)*1024}")
        ex(8, 12)
        A(f"v_smfmac_f32_32x32x32_bf16 {vr(O,16)}, {vr(V0[p],4)}, {vr(cur,8)}, v{IDX}")
        A("s_mov_b64 exec, s[30:31]")
        A(f"ds_read_b128 {vr(V0[p],4)}, v{VA} offset:{(t+2)*1024}")
        A(f"ds_read_b128 {vr(V1[1-p],4)}, v{VA} offset:{(t+1)*1024+512}")
        A("s_mov_b64 exec, -1")
        ex(12, 16)
        if t == 3:
            A("s_cmp_lt_u32 s35, s34")
            A("s_cbranch_scc1 K2_SYNC")
            A.lab("K2_SYNC_RET")
    A(f"v_add_u32 v{KA}, 8192, v{KA}")
    A(f"v_add_u32 v{VA}, 8192, v{VA}")
    A("s_add_u32 s35, s35, 1")
    A("s_cmp_lt_u32 s35, 8")
    A("s_cbranch_scc1 K2_LOOP")
    A("s_waitcnt lgkmcnt(0)")
    A(f"v_smfmac_f32_32x32x32_bf16 {vr(O,16)}, {vr(V1[1],4)}, {vr(S[1]+8,8)}, v{IDX}")
    A("s_lshl_b32 s25, s23, 15")
    A("s_lshl_b32 s26, s20, 10")
    A("s_add_u32 s25, s25, s26")
    A(f"s_add_u32 s25, s25, {OF:#x}")
    A("s_nop 9")
    A(f"v_rcp_f32 v101, v{O+8}")
    A(f"v_add_f32 v100, abs(v{O}), abs(v{O+1})")
    for r in range(2, 8): A(f"v_add_f32 v100, v100, abs(v{O+r})")
    A("s_cmp_eq_u32 s34, 0")
    A("s_cbranch_scc1 K2_FIN")
    A(f"v_mov_b32 v102, {f2u(2.0**120):#x}")
    A(f"v_cmp_nlt_f32 s[36:37], v{O+8}, v102")
    A("v_cmp_nlt_f32 s[38:39], v100, v102")
    A(f"v_mov_b32 v102, {f2u(2.0**-100):#x}")
    A("v_cmp_lt_f32 vcc, v100, v102")
    A("s_or_b64 s[36:37], s[36:37], s[38:39]")
    A("s_or_b64 s[36:37], s[36:37], vcc")
    A("s_cmp_eq_u64 s[36:37], 0")
    A("s_cbranch_scc1 K2_FIN")
    A("s_mov_b32 s32, 32")
    A("s_mov_b32 s33, 0")
    A("s_mov_b32 s34, 0")
    A("s_branch K2_RUN")
    A.lab("K2_FIN")
    for r in range(8): A(f"v_mul_f32 v{O+r}, v{O+r}, v101")
    for i in range(4): A(f"v_cvt_pk_bf16_f32 v{O+i}, v{O+2*i}, v{O+2*i+1}")
    A(f"buffer_store_dwordx4 {vr(O,4)}, v{L16}, s[8:11], s25 offen")
    A("s_endpgm")
    A.lab("K2_SYNC")
    A("s_cmp_eq_u32 s35, 0")
    A("s_cbranch_scc1 K2_SYNC0")
    A("s_waitcnt vmcnt(0)")
    A.lab("K2_SYNC0")
    A("s_waitcnt vmcnt(12)")
    A("s_barrier")
    A("s_branch K2_SYNC_RET")
    A.lab("K2_BG")
    A("s_and_b32 s20, s2, 7")
    A("s_lshr_b32 s21, s2, 3")
    A("s_and_b32 s23, s21, 3")
    A("s_lshl_b32 s20, s20, 2")
    A("s_add_u32 s20, s20, s23")
    A("s_lshr_b32 s21, s21, 2")
    A("s_and_b32 s23, s22, 1")
    A("s_lshl_b32 s20, s20, 1")
    A("s_add_u32 s20, s20, s23")
    A("s_bfe_u32 s23, s22, 0x10001")
    A("s_lshl_b32 s21, s21, 1")
    A("s_add_u32 s21, s21, s23")
    A(f"s_mul_i32 s24, s20, {NFU*1024}")
    A(f"s_add_u32 s24, s24, {HF:#x}")
    A("s_add_u32 s12, s4, s24")
    A("s_addc_u32 s13, s5, 0")
    A(f"s_mov_b32 s14, {NFU*1024}")
    A("s_mov_b32 s15, 0x00020000")
    A(f"s_mul_i32 s25, s21, {WD_STEPS*1024}")
    A(f"s_add_u32 s25, s25, {WDF:#x}")
    A("s_mov_b32 s26, 0")
    for r in range(16): A(f"v_mov_b32 v{r}, 0")
    A("s_barrier")
    A("s_barrier")
    A("s_barrier")
    def ld(s):
        A(f"buffer_load_dwordx4 {vr(16+8*s,4)}, v95, s[8:11], s25 offen offset:{(s&3)*1024}")
        A(f"buffer_load_dwordx4 {vr(20+8*s,4)}, v95, s[12:15], s26 offen offset:{(s&3)*1024}")
        if (s & 3) == 3:
            A("s_add_u32 s25, s25, 4096")
            A("s_add_u32 s26, s26, 4096")
    for s in range(8): ld(s)
    A("s_mov_b32 s27, 0")
    A.lab("K2_BGLOOP")
    for s in range(8):
        A("s_waitcnt vmcnt(14)")
        A(f"v_mfma_f32_32x32x16_bf16 v[0:15], {vr(16+8*s,4)}, {vr(20+8*s,4)}, v[0:15]")
        ld(s)
    A("s_add_u32 s27, s27, 1")
    A(f"s_cmp_lt_u32 s27, {WD_STEPS//8}")
    A("s_cbranch_scc1 K2_BGLOOP")
    A("s_lshl_b32 s24, s20, 4")
    A("s_add_u32 s24, s24, s21")
    A("s_lshl_b32 s24, s24, 11")
    A(f"s_add_u32 s24, s24, {GF:#x}")
    A("s_nop 7")
    T = 100
    for i in range(8): A(f"v_cvt_pk_bf16_f32 v{T+i}, v{2*i}, v{2*i+1}")
    for i in range(8):
        A(f"v_lshlrev_b32 v{2*i}, 16, v{T+i}")
        A(f"v_and_b32 v{2*i+1}, 0xffff0000, v{T+i}")
    for r in range(16): A(f"v_mul_f32 v{T+r}, {f2u(-LOG2E):#x}, v{r}")
    for r in range(16): A(f"v_exp_f32 v{T+r}, v{T+r}")
    for r in range(16): A(f"v_add_f32 v{T+r}, 1.0, v{T+r}")
    for r in range(16): A(f"v_rcp_f32 v{T+r}, v{T+r}")
    for r in range(16): A(f"v_mul_f32 v{r}, v{r}, v{T+r}")
    for i in range(8): A(f"v_cvt_pk_bf16_f32 v{i}, v{2*i}, v{2*i+1}")
    A("buffer_store_dwordx4 v[0:3], v95, s[8:11], s24 offen")
    A("buffer_store_dwordx4 v[4:7], v95, s[8:11], s24 offen offset:1024")
    A.lab("K2_END")
    A("s_endpgm")
    return kernel_desc(name, 120, 48)

K3_ST = 131072
K3_LDS = K3_ST + 64*144

def gen_k3(A):
    name = "k3_kernel"
    kernel_head(A, name)
    A("s_cmp_ge_u32 s2, 256")
    A("s_cbranch_scc1 K3_END")
    A("s_load_dwordx2 s[4:5], s[0:1], 72")
    A("s_load_dwordx2 s[6:7], s[0:1], 0")
    A("s_load_dwordx2 s[28:29], s[0:1], 56")
    A("v_lshrrev_b32 v60, 6, v0")
    A("v_and_b32 v61, 63, v0")
    A("v_lshlrev_b32 v62, 4, v61")
    A("v_readfirstlane_b32 s22, v60")
    A("s_and_b32 s20, s2, 7")
    A("s_lshr_b32 s21, s2, 3")
    A("s_and_b32 s23, s21, 3")
    A("s_lshl_b32 s20, s20, 2")
    A("s_add_u32 s20, s20, s23")
    A("s_lshr_b32 s21, s21, 2")
    A("s_waitcnt lgkmcnt(0)")
    srd(A, 8, 4, WS_BYTES)
    srd(A, 12, 6, 2048*512*2)
    srd(A, 16, 28, 2048*512*2)
    A("s_lshl_b32 s24, s20, 16")
    A("s_lshl_b32 s23, s22, 10")
    A("s_add_u32 s24, s24, s23")
    A(f"s_add_u32 s24, s24, {OF:#x}")
    A("s_lshl_b32 s25, s21, 16")
    A("s_add_u32 s25, s25, s23")
    A(f"s_add_u32 s25, s25, {WOF:#x}")
    A("s_lshl_b32 s26, s22, 12")
    for c in range(4):
        for f in range(4):
            A(f"s_add_u32 m0, s26, {c*32768 + f*1024}")
            A(f"s_add_u32 s27, s{24 + (f>>1)}, {c*8192 + (f&1)*32768}")
            A("buffer_load_dwordx4 v62, s[8:11], s27 offen lds")
    A("s_and_b32 s30, s22, 1")
    A("s_bfe_u32 s31, s22, 0x10001")
    A("s_lshl_b32 s32, s20, 1")
    A("s_add_u32 s32, s32, s30")
    A("s_lshl_b32 s32, s32, 4")
    A("s_lshl_b32 s33, s21, 1")
    A("s_add_u32 s33, s33, s31")
    A("s_add_u32 s32, s32, s33")
    A("s_lshl_b32 s32, s32, 11")
    A(f"s_add_u32 s32, s32, {GF:#x}")
    A("buffer_load_dwordx4 v[40:43], v62, s[8:11], s32 offen")
    A("buffer_load_dwordx4 v[44:47], v62, s[8:11], s32 offen offset:1024")
    A("v_lshrrev_b32 v63, 3, v61")
    A("v_and_b32 v64, 7, v61")
    A("v_lshlrev_b32 v65, 10, v63")
    A("v_lshl_add_u32 v65, v64, 4, v65")
    A("s_lshl_b32 s34, s20, 16")
    A("s_lshl_b32 s35, s22, 13")
    A("s_add_u32 s34, s34, s35")
    A("s_lshl_b32 s35, s21, 7")
    A("s_add_u32 s34, s34, s35")
    A("buffer_load_dwordx4 v[48:51], v65, s[12:15], s34 offen")
    A("v_mul_u32_u24 v66, 144, v63")
    A("v_lshl_add_u32 v66, v64, 4, v66")
    A("s_mul_i32 s35, s22, 1152")
    A(f"s_add_u32 s35, s35, {K3_ST}")
    A("v_add_u32 v66, s35, v66")
    A("s_cmp_ge_u32 s22, 4")
    A("s_cbranch_scc1 K3_IDLE")
    A("s_lshl_b32 s36, s30, 10")
    A("v_add_u32 v67, s36, v62")
    A("s_lshl_b32 s36, s31, 10")
    A("s_add_u32 s36, s36, 2048")
    A("v_add_u32 v68, s36, v62")
    for r in range(16): A(f"v_mov_b32 v{r}, 0")
    for c in range(4):
        A(f"s_waitcnt vmcnt({3 + 4*(3-c)})")
        A("s_barrier")
        if c == 2:
            A("v_add_u32 v67, 65536, v67")
            A("v_add_u32 v68, 65536, v68")
        off = lambda s: (c & 1)*32768 + s*4096
        B = [16, 24, 32]
        def rd(s):
            A(f"ds_read_b128 {vr(B[s%3],4)}, v68 offset:{off(s)}")
            A(f"ds_read_b128 {vr(B[s%3]+4,4)}, v67 offset:{off(s)}")
        rd(0); rd(1)
        for s in range(8):
            if s + 2 < 8: rd(s+2)
            A(f"s_waitcnt lgkmcnt({min(2, 7-s)*2})")
            A(f"v_mfma_f32_32x32x16_bf16 v[0:15], {vr(B[s%3],4)}, {vr(B[s%3]+4,4)}, v[0:15]")
    A("v_and_b32 v69, 31, v61")
    A("v_mul_u32_u24 v69, 144, v69")
    A("v_lshrrev_b32 v70, 5, v61")
    A("v_lshl_add_u32 v69, v70, 3, v69")
    A(f"s_mul_i32 s36, s30, {32*144}")
    A("s_lshl_b32 s37, s31, 6")
    A("s_add_u32 s36, s36, s37")
    A(f"s_add_u32 s36, s36, {K3_ST}")
    A("v_add_u32 v69, s36, v69")
    A("s_waitcnt vmcnt(1)")
    for i in range(8):
        A(f"v_lshlrev_b32 v{16+2*i}, 16, v{40+i}")
        A(f"v_and_b32 v{17+2*i}, 0xffff0000, v{40+i}")
    for i in range(8): A(f"v_cvt_pk_bf16_f32 v{32+i}, v{2*i}, v{2*i+1}")
    for i in range(8):
        A(f"v_lshlrev_b32 v{2*i}, 16, v{32+i}")
        A(f"v_and_b32 v{2*i+1}, 0xffff0000, v{32+i}")
    for r in range(16): A(f"v_mul_f32 v{r}, v{r}, v{16+r}")
    for i in range(8): A(f"v_cvt_pk_bf16_f32 v{32+i}, v{2*i}, v{2*i+1}")
    for i in range(4): A(f"ds_write_b64 v69, {vr(32+2*i,2)} offset:{16*i}")
    A("s_waitcnt lgkmcnt(0)")
    A("s_branch K3_JOIN")
    A.lab("K3_IDLE")
    for c in range(4):
        A(f"s_waitcnt vmcnt({3 + 4*(3-c)})")
        A("s_barrier")
    A.lab("K3_JOIN")
    A("s_barrier")
    A("ds_read_b128 v[52:55], v66")
    A("s_waitcnt vmcnt(0) lgkmcnt(0)")
    for i in range(4):
        A(f"v_lshlrev_b32 v0, 16, v{48+i}")
        A(f"v_and_b32 v1, 0xffff0000, v{48+i}")
        A(f"v_lshlrev_b32 v2, 16, v{52+i}")
        A(f"v_and_b32 v3, 0xffff0000, v{52+i}")
        A("v_add_f32 v0, v0, v2")
        A("v_add_f32 v1, v1, v3")
        A(f"v_cvt_pk_bf16_f32 v{56+i}, v0, v1")
    A("buffer_store_dwordx4 v[56:59], v65, s[16:19], s34 offen")
    A.lab("K3_END")
    A("s_endpgm")
    return kernel_desc(name, 72, 48)

def main(out):
    hdr = open(f"cdna_kernels/{NAME}.s.ref").read().split("\n")
    head = [l for l in hdr if l.startswith(";") and "@launch" not in l and "Override" not in l and "grid=ceil" not in l]
    head += [f"; @launch kernel=k1_kernel grid=(256,1,1) block=(512,1,1) lds={K1_LDS}",
             f"; @launch kernel=k2_kernel grid=(256,1,1) block=(768,1,1) lds={K2_LDS}",
             f"; @launch kernel=k3_kernel grid=(256,1,1) block=(512,1,1) lds={K3_LDS}"]
    A = Asm()
    d = [gen_k1(A), gen_k2(A), gen_k3(A)]
    s = "\n".join(head) + '\n.amdgcn_target "amdgcn-amd-amdhsa--gfx950"\n' + A.text() + "".join(d)
    open(out, "w").write(s)

if __name__ == "__main__":
    main(sys.argv[1] if len(sys.argv) > 1 else f"cdna_kernels/{NAME}.s")
```

```python
import sys, struct

NAME = "recurrent_scan__softmax_full_mha__glu_gated_geglu__prompt"
MB = 1 << 20
QF, KF, VF, OF, WOF, WDF, HF, OFLAG = 0, 2*MB, 4*MB, 6*MB, 8*MB, 9*MB, 11*MB, 17*MB
WS_BYTES = 18*MB
NFU = 86
LOG2E = 1.4426950408889634
def f2u(x): return struct.unpack("<I", struct.pack("<f", x))[0]

OPT = dict(prof=False, bias=48.0, force_fallback=False, sleep=4, map48=True, barpos=1, itstamp=False, rotk=False, lprio=0, dmaevery=8)
PROF_OFF = 24*MB
SPIN_MAX = 20000

class Asm:
    def __init__(self): self.l = []
    def __call__(self, s): self.l.append("    " + s)
    def lab(self, s): self.l.append(s + ":")
    def raw(self, s): self.l.append(s)
    def text(self): return "\n".join(self.l) + "\n"
def vr(a, n): return f"v[{a}:{a+n-1}]"
def sr(a, n): return f"s[{a}:{a+n-1}]"
def srd(A, d, base, nbytes):
    A(f"s_mov_b32 s{d}, s{base}")
    A(f"s_mov_b32 s{d+1}, s{base+1}")
    A(f"s_mov_b32 s{d+2}, {nbytes:#x}")
    A(f"s_mov_b32 s{d+3}, 0x00020000")
def csel(A, d, a, b):
    A(f"s_mov_b32 s{d}, {b:#x}")
    A(f"s_cselect_b32 s{d}, {a:#x}, s{d}")
def stamp(A, i):
    if not OPT["prof"]: return
    A("s_memtime s[96:97]")
    A("s_memrealtime s[98:99]")
    A("s_waitcnt lgkmcnt(0)")
    A(f"v_writelane_b32 v255, s96, {i}")
    A(f"v_writelane_b32 v255, s98, {32+i}")

XR = 0
WR = 32768
WSL = 18560
UPOFF = 9344
QOFF = 135168
SW = 163584
LDS_BYTES = 163840
QFLAG = OFLAG + 256*128
HFLAG = QFLAG + 768*128
NFLAG = 19*64
S_X, S_W, S_WS, S_DBG, S_OUT, S_T1, S_T2 = 24, 28, 32, 36, 40, 44, 48
L = 254

def spin_global(A, tag, voff, cmp_lines, srdn, soff="0", x2=False):
    A(f"s_mov_b32 s70, {SPIN_MAX}")
    A.lab(tag)
    if x2: A(f"buffer_load_dwordx2 v[102:103], v{voff}, {sr(srdn,4)}, {soff} offen sc1")
    else: A(f"buffer_load_dword v97, v{voff}, {sr(srdn,4)}, {soff} offen sc1")
    A("s_waitcnt vmcnt(0)")
    for x in cmp_lines: A(x)
    A(f"s_cbranch_scc1 {tag}_OK")
    A(f"s_sleep {OPT['sleep']}")
    A("s_sub_u32 s70, s70, 1")
    A("s_cmp_lg_u32 s70, 0")
    A(f"s_cbranch_scc1 {tag}")
    A.lab(tag + "_OK")

def own_flag_store(A, val, v0):
    A("s_mov_b64 exec, s[92:93]")
    A(f"v_mov_b32 v{v0}, {val}")
    A(f"v_mul_u32_u24 v{v0+1}, {96*128}, v{L}")
    A(f"buffer_store_dword v{v0}, v{v0+1}, {sr(S_WS,4)}, s91 offen sc1")
    A("s_mov_b64 exec, -1")

def gen(A):
    name = NAME + "_kernel"
    A.raw(".text"); A.raw(f".globl {name}"); A.raw(".p2align 8"); A.raw(f".type {name},@function")
    A.lab(name)
    A("s_cmp_ge_u32 s2, 256")
    A("s_cbranch_scc1 L_END")
    A("s_load_dwordx4 s[4:7], s[0:1], 0")
    A("s_load_dwordx2 s[8:9], s[0:1], 16")
    A("s_load_dwordx4 s[12:15], s[0:1], 32")
    A("s_load_dwordx4 s[52:55], s[0:1], 48")
    A("s_load_dwordx4 s[56:59], s[0:1], 64")
    if OPT["prof"]: A("v_mov_b32 v255, 0")
    A("v_lshrrev_b32 v253, 6, v0")
    A(f"v_and_b32 v{L}, 63, v0")
    A("s_and_b32 s3, s2, 7")
    A("v_readfirstlane_b32 s22, v253")
    A("s_lshr_b32 s23, s2, 3")
    if OPT["map48"]:
        A("s_lshr_b32 s20, s3, 1")
        A("s_lshl_b32 s20, s20, 2")
        A("s_and_b32 s60, s23, 3")
        A("s_add_u32 s20, s20, s60")
        A("s_lshr_b32 s21, s23, 2")
        A("s_lshl_b32 s21, s21, 1")
        A("s_and_b32 s60, s3, 1")
        A("s_add_u32 s21, s21, s60")
    else:
        A("s_and_b32 s20, s3, 1")
        A("s_lshl_b32 s20, s20, 3")
        A("s_and_b32 s60, s23, 7")
        A("s_add_u32 s20, s20, s60")
        A("s_lshr_b32 s21, s3, 1")
        A("s_lshl_b32 s21, s21, 2")
        A("s_lshr_b32 s60, s23, 3")
        A("s_add_u32 s21, s21, s60")
    A("s_waitcnt lgkmcnt(0)")
    stamp(A, 0)
    A("s_mov_b64 s[16:17], s[52:53]")
    A("s_mov_b64 s[18:19], s[58:59]")
    srd(A, S_X, 4, 2048*512*2)
    srd(A, S_WS, 58, WS_BYTES)
    srd(A, S_DBG, 56, 256)
    srd(A, S_OUT, 54, 2048*512*2)
    A("s_cmp_ge_u32 s22, 4")
    A("s_cbranch_scc1 L_LOADER")
    gen_side(A)
    A("s_cmp_ge_u32 s21, 6")
    A("s_cbranch_scc1 L_F")
    A("s_cmp_ge_u32 s21, 4")
    A("s_cbranch_scc1 L_V")
    gen_compute(A, "QK")
    A.lab("L_V")
    gen_compute(A, "V")
    A.lab("L_QKV_SIGNAL")
    A("s_waitcnt lgkmcnt(0)")
    gen_relayout_loads(A)
    A("s_waitcnt vmcnt(48)")
    A(f"v_mov_b32 v96, {SW}")
    A("v_mov_b32 v97, 1")
    A("s_mov_b64 exec, 1")
    A("ds_add_rtn_u32 v98, v96, v97")
    A("s_waitcnt lgkmcnt(0)")
    A("s_mov_b64 exec, -1")
    A("v_readfirstlane_b32 s60, v98")
    A("s_cmp_lg_u32 s60, 3")
    A("s_cbranch_scc1 L_QKV_S2")
    own_flag_store(A, 1, 96)
    A.lab("L_QKV_S2")
    stamp(A, 15)
    gen_relayout_stores(A)
    A("s_branch L_P2")
    A.lab("L_LOADER")
    gen_loader(A)
    A("s_branch L_P2")
    A.lab("L_F")
    gen_compute(A, "F")
    A.lab("L_P2")
    gen_attn(A)
    gen_final(A)
    A.lab("L_END")
    A("s_endpgm")
    gen_sync_blocks(A)
    return f""".section .rodata,"a"
.p2align 6
.amdhsa_kernel {name}
  .amdhsa_next_free_vgpr 256
  .amdhsa_next_free_sgpr 102
  .amdhsa_accum_offset 256
  .amdhsa_group_segment_fixed_size 0
  .amdhsa_kernarg_size 80
  .amdhsa_user_sgpr_count 2
  .amdhsa_user_sgpr_kernarg_segment_ptr 1
  .amdhsa_system_sgpr_workgroup_id_x 1
.end_amdhsa_kernel
"""

def gen_side(A):
    R = 144
    A("s_and_b32 s60, s21, 1")
    A("s_mul_i32 s60, s60, 48")
    A("s_lshr_b32 s61, s21, 1")
    A("s_lshl_b32 s61, s61, 4")
    A("s_add_u32 s61, s61, s20")
    A("s_add_u32 s60, s60, s61")
    A("s_lshl_b32 s60, s60, 7")
    A(f"s_add_u32 s60, s60, {QFLAG:#x}")
    A("s_mul_i32 s61, s20, 10")
    A("s_add_u32 s61, s61, s21")
    A("s_lshl_b32 s61, s61, 7")
    A(f"s_add_u32 s61, s61, {HFLAG-6*128:#x}")
    A("s_cmp_lt_u32 s21, 6")
    A("s_cselect_b32 s91, s60, s61")
    A("s_cselect_b32 s92, 0xff, 1")
    A("s_mov_b32 s93, 0")
    for r in range(R, R+4): A(f"v_mov_b32 v{r}, 0")
    A("s_cmp_lg_u32 s22, 0")
    A("s_cbranch_scc1 L_SIDE1")
    A(f"v_mov_b32 v{R+4}, {SW}")
    A(f"ds_write_b128 v{R+4}, {vr(R,4)}")
    A("s_sub_u32 s61, s2, 128")
    A(f"s_cmp_ge_u32 s61, {NFLAG//64}")
    A("s_cbranch_scc1 L_SIDE1")
    A(f"v_lshlrev_b32 v{R+4}, 7, v{L}")
    A("s_lshl_b32 s60, s61, 13")
    A(f"s_add_u32 s60, s60, {OFLAG:#x}")
    A(f"buffer_store_dword v{R}, v{R+4}, {sr(S_WS,4)}, s60 offen sc1")
    A(f"v_mov_b32 v{R+5}, 1")
    A("s_lshl_b32 s61, s61, 2")
    A("s_waitcnt vmcnt(0)")
    A("s_mov_b64 exec, 1")
    A(f"buffer_store_dword v{R+5}, v{R+4}, {sr(S_DBG,4)}, s61 offen sc1")
    A("s_mov_b64 exec, -1")
    A.lab("L_SIDE1")
    for r in range(144): A(f"v_mov_b32 v{r}, 0")

def gen_relayout_loads(A):
    R = 144
    A("s_mul_i32 s67, s20, 6")
    A("s_add_u32 s67, s67, s21")
    A("s_lshl_b32 s67, s67, 2")
    A("s_add_u32 s67, s67, s22")
    A(f"v_lshlrev_b32 v{R+6}, 1, v{L}")
    for jb in range(3):
        A(f"s_add_u32 s60, s67, {384*jb}")
        A("s_cmp_lt_u32 s60, 256")
        A(f"s_cselect_b32 s{S_T1}, s8, s16")
        A(f"s_cselect_b32 s{S_T1+1}, s9, s17")
        csel(A, S_T1+2, 512*512*2, 1376*512*2)
        A(f"s_mov_b32 s{S_T1+3}, 0x00020000")
        csel(A, 61, WOF, WDF)
        csel(A, 62, 32*2048, NFU*2048)
        A("s_cselect_b32 s63, 0, 256")
        A("s_sub_u32 s63, s60, s63")
        A("s_lshr_b32 s64, s63, 3")
        A("s_and_b32 s63, s63, 7")
        A("s_lshl_b32 s65, s64, 14")
        A("s_lshl_b32 s66, s63, 7")
        A("s_add_u32 s65, s65, s66")
        for rho in range(16):
            hh = (rho >> 2) & 1; j = (rho & 3) + 4*(rho >> 3)
            d = 160 + 16*jb + 8*(j & 1) + 4*hh + (j >> 1)
            A(f"buffer_load_ushort v{d}, v{R+6}, {sr(S_T1,4)}, s65 offen offset:{(rho&3)*1024}")
            if (rho & 3) == 3 and rho < 15: A("s_add_u32 s65, s65, 4096")
        A("s_mul_i32 s63, s63, s62")
        A("s_lshl_b32 s64, s64, 11")
        A("s_add_u32 s63, s63, s64")
        A("s_add_u32 s63, s63, s61")
        A(f"s_cmp_lt_u32 s60, {256+8*NFU}")
        A(f"s_cselect_b32 s{68+jb}, s63, 0x7fff0000")
    A(f"v_lshrrev_b32 v{R+7}, 5, v{L}")
    A(f"v_lshlrev_b32 v{R+7}, 10, v{R+7}")
    A(f"v_and_b32 v{R+8}, 31, v{L}")
    A(f"v_lshl_add_u32 v{R+7}, v{R+8}, 4, v{R+7}")

def gen_relayout_stores(A):
    R = 144
    for jb in range(3):
        d = 160 + 16*jb
        A(f"s_waitcnt vmcnt({32 - 14*jb})")
        for i in range(8): A(f"v_lshl_or_b32 v{d+i}, v{d+8+i}, 16, v{d+i}")
        A(f"buffer_store_dwordx4 {vr(d,4)}, v{R+7}, {sr(S_WS,4)}, s{68+jb} offen sc1")
        A(f"buffer_store_dwordx4 {vr(d+4,4)}, v{R+7}, {sr(S_WS,4)}, s{68+jb} offen offset:512 sc1")

def gen_compute(A, kind):
    F = kind == "F"
    NW = 5 if F else 4
    XS = [176, 184]; WSET = [192, 212]
    XA = 232
    XB = 236
    WA = 240
    T0 = 244
    KQ = 1152 if F else 1024
    US = 128
    P = "L1" + kind
    A("s_lshr_b32 s60, s22, 1")
    A("s_and_b32 s61, s22, 1")
    t, h, sw = T0, T0+1, T0+2
    A(f"v_and_b32 v{t}, 31, v{L}")
    A(f"v_lshrrev_b32 v{h}, 5, v{L}")
    A(f"v_bfe_u32 v{sw}, v{t}, 1, 3")
    A(f"v_xor_b32 v{sw}, v{sw}, v{h}")
    A(f"v_lshlrev_b32 v{T0+3}, 7, v{t}")
    A("s_lshl_b32 s62, s22, 12")
    for s in range(4):
        A(f"v_xor_b32 v{T0+4}, {2*s}, v{sw}")
        A(f"v_lshl_add_u32 v{T0+4}, v{T0+4}, 4, v{T0+3}")
        A(f"v_add_u32 v{XA+s}, s62, v{T0+4}")
        A(f"v_xor_b32 v{XB+s}, 0x1000, v{XA+s}")
    if F:
        A(f"v_and_b32 v{T0+3}, 15, v{L}")
        A(f"v_lshlrev_b32 v{T0+3}, 3, v{T0+3}")
        A(f"v_bfe_u32 v{T0+4}, v{L}, 4, 1")
        A(f"v_mul_u32_u24 v{T0+4}, {UPOFF}, v{T0+4}")
        A(f"v_add_u32 v{T0+3}, v{T0+3}, v{T0+4}")
    else:
        A(f"v_bfe_u32 v{T0+5}, v{L}, 2, 2")
        A(f"v_and_b32 v{T0+3}, 3, v{L}")
        A(f"v_lshlrev_b32 v{T0+3}, 3, v{T0+3}")
        A(f"v_lshl_add_u32 v{T0+3}, v{T0+5}, 8, v{T0+3}")
        A(f"v_bfe_u32 v{T0+4}, v{L}, 4, 1")
        A(f"v_lshl_add_u32 v{T0+3}, v{T0+4}, 5, v{T0+3}")
    A(f"v_mul_u32_u24 v{T0+4}, {2*KQ}, v{h}")
    A(f"v_add_u32 v{T0+3}, v{T0+3}, v{T0+4}")
    A(f"v_add_u32 v{T0+3}, {WR}, v{T0+3}")
    if F:
        A(f"s_mul_i32 s62, s61, {4*US}")
        A(f"v_add_u32 v{WA}, s62, v{T0+3}")
        A(f"v_add_u32 v{WA+1}, {8*US}, v{T0+3}")
    else:
        A(f"s_mul_i32 s62, s61, {UPOFF}")
        A(f"v_add_u32 v{T0+3}, s62, v{T0+3}")
        for lu in range(4):
            A(f"v_xor_b32 v{T0+4}, {lu}, v{T0+5}")
            A(f"v_lshl_add_u32 v{WA+lu}, v{T0+4}, 6, v{T0+3}")
    A("s_mov_b32 s64, 0")
    A("s_mov_b32 s65, 0")

    def reads(st, s):
        r = []
        hs, sp = s >> 1, s & 1
        def wread(lu):
            a = WA + ((1 if lu == 4 else 0) if F else lu)
            base = hs*WSL + 4*sp*KQ + (lu*US if F and lu < 4 else 0)
            d = WSET[st] + 4*lu
            return [f"ds_read_b64_tr_b16 {vr(d,2)}, v{a} offset:{base}",
                    f"ds_read_b64_tr_b16 {vr(d+2,2)}, v{a} offset:{base+KQ}"]
        r.append(f"ds_read_b128 {vr(XS[st],4)}, v{XA+s}")
        r += wread(0)
        r.append(f"ds_read_b128 {vr(XS[st]+4,4)}, v{XB+s}")
        for lu in range(1, NW): r += wread(lu)
        return r
    def mfma(tile, w, x):
        a, b = (x, w) if kind == "V" else (w, x)
        return f"v_mfma_f32_32x32x16_bf16 {vr(16*tile,16)}, {vr(a,4)}, {vr(b,4)}, {vr(16*tile,16)}"
    def mfmas(st):
        m = [mfma(lu*2+lt, WSET[st]+4*lu, XS[st]+4*lt) for lu in range(4) for lt in range(2)]
        if F: m.append(mfma(8, WSET[st]+16, XS[st]))
        return m
    A("s_waitcnt lgkmcnt(0)")
    stamp(A, 1)
    A("s_barrier")
    stamp(A, 2)
    for x in reads(0, 0): A(x)
    A.raw(".p2align 6")
    A.lab(P + "_LOOP")
    A("s_cmp_eq_u32 s65, 2")
    csel(A, 66, (-4*WSL) & 0xffffffff, 2*WSL)
    A("s_cselect_b32 s65, -1, s65")
    A("s_add_u32 s65, s65, 1")
    NR = 2*NW + 2
    need = [3, 4, 6, 6, 8, 8, 10, 10, 12]
    for s in range(4):
        st = s & 1; nx = (s+1) & 3
        ms = mfmas(st); rd = reads(1-st, nx)
        upd = []
        if s < 3: upd += [f"v_xor_b32 v{XA+nx}, 0x4000, v{XA+nx}", f"v_xor_b32 v{XB+nx}, 0x4000, v{XB+nx}"]
        if s == 0: upd += [f"v_xor_b32 v{XA}, 0x4000, v{XA}", f"v_xor_b32 v{XB}, 0x4000, v{XB}"]
        if s == 2: upd += [f"v_add_u32 v{WA+i}, s66, v{WA+i}" for i in range(2 if F else 4)]
        gaps = [[] for _ in ms]
        g0 = OPT["barpos"] if s == 3 else 0
        per = 2 if g0 + (NR+1)//2 <= len(ms) - 1 else 3
        for i, r in enumerate(rd): gaps[g0 + i//per].append(r)
        for u in upd: gaps[-1].append(u)
        issued = 0; done = 0
        for i, (m, g) in enumerate(zip(ms, gaps)):
            if need[i] > done:
                A(f"s_waitcnt lgkmcnt({min(15, NR - need[i] + issued)})"); done = need[i]
            A(m)
            if s == 3 and i == g0:
                A("s_waitcnt lgkmcnt(0)"); done = NR
                A("s_barrier")
            for x in g:
                A(x)
                if x.startswith("ds_"): issued += 1
    if OPT["prof"] and OPT["itstamp"]:
        A("s_memtime s[96:97]")
        A("s_add_u32 m0, s64, 20")
        A("s_waitcnt lgkmcnt(0)")
        A("v_writelane_b32 v255, s96, m0")
    A("s_add_u32 s64, s64, 1")
    A("s_cmp_lt_u32 s64, 8")
    A(f"s_cbranch_scc1 {P}_LOOP")
    stamp(A, 3)
    VO = T0+5
    if kind == "QK":
        A(f"v_and_b32 v{T0+6}, 0x33, v{L}")
        A(f"v_bfe_u32 v{T0+7}, v{L}, 2, 1")
        A(f"v_lshl_or_b32 v{T0+6}, v{T0+7}, 3, v{T0+6}")
        A(f"v_bfe_u32 v{T0+7}, v{L}, 3, 1")
        A(f"v_lshl_or_b32 v{T0+6}, v{T0+7}, 2, v{T0+6}")
        A("s_cmp_lt_u32 s21, 2")
        A("s_cselect_b64 vcc, -1, 0")
        A(f"v_cndmask_b32 v{VO}, v{T0+6}, v{L}, vcc")
        A(f"v_lshlrev_b32 v{VO}, 4, v{VO}")
    elif kind == "V":
        A(f"v_and_b32 v{VO}, 15, v{L}")
        A(f"v_lshlrev_b32 v{VO}, 4, v{VO}")
        A(f"v_lshl_or_b32 v{VO}, v{h}, 8, v{VO}")
        A(f"v_bfe_u32 v{T0+6}, v{L}, 4, 1")
        A(f"v_lshl_or_b32 v{VO}, v{T0+6}, 16, v{VO}")
    else:
        A(f"v_lshlrev_b32 v{VO}, 4, v{L}")
    A("s_lshl_b32 s62, s20, 2")
    A("s_add_u32 s62, s62, s22")
    A("s_xor_b32 s63, s62, 1")
    tiles = [(lu*2+lt, lu, lt) for lu in range(4) for lt in range(2)] + ([(8, 4, 0)] if F else [])
    if not F:
        A("s_lshl_b32 s64, s21, 20")
        A("s_lshl_b32 s65, s61, 19")
        A("s_add_u32 s64, s64, s65")
        A("s_lshl_b32 s62, s62, 10")
        A("s_lshl_b32 s63, s63, 10")
        A("s_add_u32 s62, s62, s64")
        A("s_add_u32 s63, s63, s64")
        A("s_nop 1")
        for (tile, lu, lt) in tiles:
            a = 16*tile
            for i in range(8): A(f"v_cvt_pk_bf16_f32 v{a+i}, v{a+2*i}, v{a+2*i+1}")
            A(f"s_add_u32 s65, s{62+lt}, {lu*131072}")
            A(f"buffer_store_dwordx4 {vr(a,4)}, v{VO}, {sr(S_WS,4)}, s65 offen sc1")
            if kind == "QK":
                A("s_add_u32 s65, s65, 65536")
                A(f"buffer_store_dwordx4 {vr(a+4,4)}, v{VO}, {sr(S_WS,4)}, s65 offen sc1")
            else:
                A(f"buffer_store_dwordx4 {vr(a+4,4)}, v{VO}, {sr(S_WS,4)}, s65 offen offset:512 sc1")
        stamp(A, 4)
        if kind == "QK": A("s_branch L_QKV_SIGNAL")
    else:
        A(f"s_mul_i32 s62, s62, {NFU*1024}")
        A(f"s_mul_i32 s63, s63, {NFU*1024}")
        A(f"s_add_u32 s62, s62, {HF:#x}")
        A(f"s_add_u32 s63, s63, {HF:#x}")
        A("s_sub_u32 s64, s21, 6")
        A("s_mul_i32 s64, s64, 9")
        A("s_lshl_b32 s65, s61, 2")
        A("s_add_u32 s65, s65, s64")
        C1, C3, ONE, TT = 144, 146, 148, 152
        c1 = -2*0.7978845608028654*LOG2E
        for r, v in ((C1, c1), (C3, c1*0.044715), (ONE, 1.0)):
            A(f"v_mov_b32 v{r}, {f2u(v):#x}")
            A(f"v_mov_b32 v{r+1}, {f2u(v):#x}")
        for (tile, lu, lt) in tiles:
            a = 16*tile
            for i in range(4): A(f"v_pk_mul_f32 {vr(TT+2*i,2)}, {vr(a+2*i,2)}, {vr(a+2*i,2)}")
            for i in range(4): A(f"v_pk_fma_f32 {vr(TT+2*i,2)}, {vr(TT+2*i,2)}, {vr(C3,2)}, {vr(C1,2)}")
            for i in range(4): A(f"v_pk_mul_f32 {vr(TT+2*i,2)}, {vr(TT+2*i,2)}, {vr(a+2*i,2)}")
            for i in range(8): A(f"v_exp_f32 v{TT+i}, v{TT+i}")
            for i in range(4): A(f"v_pk_mul_f32 {vr(a+2*i,2)}, {vr(a+2*i,2)}, {vr(a+8+2*i,2)}")
            for i in range(4): A(f"v_pk_add_f32 {vr(TT+2*i,2)}, {vr(TT+2*i,2)}, {vr(ONE,2)}")
            for i in range(8): A(f"v_rcp_f32 v{TT+i}, v{TT+i}")
            if lu == 4: A("s_add_u32 s66, s64, 8")
            else: A(f"s_add_u32 s66, s65, {lu}")
            for i in range(4): A(f"v_pk_mul_f32 {vr(a+2*i,2)}, {vr(a+2*i,2)}, {vr(TT+2*i,2)}")
            A("s_lshl_b32 s67, s66, 10")
            A(f"s_add_u32 s67, s67, s{62+lt}")
            A(f"s_cmp_lt_u32 s66, {NFU}")
            A("s_cselect_b32 s67, s67, 0x7fff0000")
            for i in range(4): A(f"v_cvt_pk_bf16_f32 v{a+i}, v{a+2*i}, v{a+2*i+1}")
            A(f"buffer_store_dwordx4 {vr(a,4)}, v{VO}, {sr(S_WS,4)}, s67 offen sc1")
        stamp(A, 4)

def gen_loader(A):
    VW = 128; VX = 137; DW = 164; S1 = 140; S2 = 144; RR = 148; MR = 152; T = 156
    xreg = lambda c, i: (i*8 + c)*4
    A("s_sub_u32 s60, s22, 4")
    if OPT["lprio"]: A(f"s_setprio {OPT['lprio']}")
    A(f"v_lshrrev_b32 v{T}, 3, v{L}")
    A(f"v_and_b32 v{T+1}, 7, v{L}")
    A(f"v_lshlrev_b32 v{VX}, 10, v{T}")
    A(f"v_lshl_add_u32 v{VX}, v{T+1}, 4, v{VX}")
    A("s_lshl_b32 s61, s20, 17")
    A("s_lshl_b32 s62, s60, 15")
    A("s_add_u32 s61, s61, s62")
    A("s_and_b32 s79, s20, 3" if OPT["rotk"] else "s_mov_b32 s79, 0")
    A("s_bfe_u32 s80, s21, 0x20001")
    for i in range(4):
        A(f"s_add_u32 s{81+i}, s79, {i}")
        A(f"s_and_b32 s{81+i}, s{81+i}, 3")
        A(f"s_lshl_b32 s{81+i}, s{81+i}, 8")
        A(f"s_add_u32 s{81+i}, s{81+i}, s61")
        A(f"s_add_u32 s{85+i}, s80, {i}")
        A(f"s_and_b32 s{85+i}, s{85+i}, 3")
    def xload(i):
        A(f"s_lshl_b32 s89, s{85+i}, 13")
        for c in range(8):
            if not c & 1: A(f"s_add_u32 s90, s89, s{81+(c>>1)}")
            A(f"buffer_load_dwordx4 {vr(xreg(c,i),4)}, v{VX}, {sr(S_X,4)}, s90 offen offset:{(c&1)*128}")
    xload(0); xload(1)
    A("s_lshr_b32 s62, s60, 1")
    A("s_and_b32 s63, s60, 1")
    A("s_cmp_lt_u32 s21, 6")
    A("s_cbranch_scc1 LL_Q")
    A("s_cmp_eq_u32 s63, 0")
    A(f"s_cselect_b32 s{S_W}, s12, s14")
    A(f"s_cselect_b32 s{S_W+1}, s13, s15")
    A(f"s_mov_b32 s{S_W+2}, {512*1376*2:#x}")
    A("s_sub_u32 s64, s21, 6")
    A(f"s_mul_i32 s64, s64, {9*32}")
    A("s_mov_b32 s65, 2752")
    for i in range(9):
        A(f"v_add_u32 v{T+2}, {64*i}, v{L}")
        A(f"v_mul_u32_u24 v{T+3}, 911, v{T+2}")
        A(f"v_lshrrev_b32 v{T+3}, 16, v{T+3}")
        A(f"v_mul_u32_u24 v{T+4}, 72, v{T+3}")
        A(f"v_sub_u32 v{T+4}, v{T+2}, v{T+4}")
        A(f"v_bfe_u32 v{T+5}, v{T+4}, 1, 2")
        A(f"v_lshl_add_u32 v{T+5}, v{T+3}, 2, v{T+5}")
        A(f"v_mul_u32_u24 v{T+5}, s65, v{T+5}")
        A(f"v_lshrrev_b32 v{T+6}, 3, v{T+4}")
        A(f"v_lshl_add_u32 v{T+5}, v{T+6}, 5, v{T+5}")
        A(f"v_and_b32 v{T+6}, 1, v{T+4}")
        A(f"v_lshl_add_u32 v{T+5}, v{T+6}, 4, v{T+5}")
        A(f"v_add_u32 v{VW+i}, s64, v{T+5}")
    A(f"s_mul_i32 s66, s63, {UPOFF}")
    A(f"s_mov_b32 s68, {32*2752}")
    A("s_mov_b32 s69, 1.0")
    A("s_branch LL_C")
    A.lab("LL_Q")
    A(f"s_mov_b32 s{S_W}, s6")
    A(f"s_mov_b32 s{S_W+1}, s7")
    A(f"s_mov_b32 s{S_W+2}, {512*1536*2:#x}")
    A(f"v_lshrrev_b32 v{T+3}, 4, v{L}")
    A(f"v_mul_u32_u24 v{T+2}, 3072, v{T+3}")
    A(f"v_bfe_u32 v{T+4}, v{L}, 2, 2")
    A(f"v_xor_b32 v{T+4}, v{T+4}, v{T+3}")
    A(f"v_lshl_add_u32 v{T+2}, v{T+4}, 6, v{T+2}")
    A(f"v_and_b32 v{T+3}, 3, v{L}")
    A(f"v_lshl_add_u32 v{T+2}, v{T+3}, 4, v{T+2}")
    A("s_lshl_b32 s64, s21, 9")
    A("s_lshl_b32 s65, s63, 8")
    A("s_add_u32 s64, s64, s65")
    A(f"v_add_u32 v{VW}, s64, v{T+2}")
    for i in range(1, 8): A(f"v_add_u32 v{VW+i}, {i*4*3072}, v{VW}")
    A(f"v_mov_b32 v{VW+8}, 0x7fff0000")
    A(f"s_mul_i32 s66, s63, {UPOFF}")
    A(f"s_mov_b32 s68, {32*3072}")
    A("s_cmp_lt_u32 s21, 2")
    A(f"s_cselect_b32 s69, {f2u(0.25*LOG2E):#x}, 1.0")
    A.lab("LL_C")
    A(f"s_mov_b32 s{S_W+3}, 0x00020000")
    A(f"s_mul_i32 s71, s62, {WSL}")
    A("s_add_u32 s71, s71, s66")
    A(f"s_add_u32 s71, s71, {WR}")
    A("s_mov_b32 s72, s71")
    A(f"s_add_u32 s73, s71, {6*WSL}")
    A("s_lshl_b32 s74, s79, 2")
    A("s_add_u32 s74, s74, s62")
    A("s_mul_i32 s74, s74, s68")
    A("s_lshl_b32 s68, s68, 1")
    A(f"v_lshrrev_b32 v{T+2}, 4, v{L}")
    A(f"v_xor_b32 v{T+2}, v{T+2}, v{T+1}")
    A(f"v_lshlrev_b32 v{T+3}, 7, v{T}")
    A("s_lshl_b32 s64, s60, 12")
    A(f"v_add_u32 v{T+3}, s64, v{T+3}")
    A(f"v_lshl_add_u32 v{T+3}, v{T+2}, 4, v{T+3}")
    for i in range(4):
        A(f"s_and_b32 s64, s{85+i}, 1")
        A("s_lshl_b32 s64, s64, 6")
        A(f"s_lshl_b32 s65, s{85+i}, 10")
        A("s_or_b32 s64, s64, s65")
        A(f"v_xor_b32 v{DW+i}, s64, v{T+3}")
    for r in range(S1, S2+4): A(f"v_mov_b32 v{r}, 0")
    A("s_mov_b32 s78, 0x3f803f80")
    def norm(c, i):
        x = xreg(c, i); r = []
        for d in range(4):
            r.append(f"v_lshlrev_b32 v{T+2*d}, 16, v{x+d}")
            r.append(f"v_and_b32 v{T+2*d+1}, 0xffff0000, v{x+d}")
        for d in range(8): r.append(f"v_fma_f32 v{T+d}, v{T+d}, v{RR+i}, -v{MR+i}")
        for d in range(4): r.append(f"v_cvt_pk_bf16_f32 v{x+d}, v{T+2*d}, v{T+2*d+1}")
        r.append(f"ds_write_b128 v{DW+i}, {vr(x,4)} offset:{(c&1)*16384}")
        return r
    def dma():
        g = []
        for i in range(9):
            g.append([f"s_add_u32 m0, s72, {i*1024}", "s_nop 0",
                      f"buffer_load_dwordx4 v{VW+i}, {sr(S_W,4)}, s74 offen lds"])
        g[-1] += ["s_add_u32 s74, s74, s68", f"s_add_u32 s72, s72, {2*WSL}", "s_cmp_eq_u32 s72, s73", "s_cselect_b32 s72, s71, s72"]
        return g
    def mix(work, groups, every):
        groups = list(groups)
        for n, w in enumerate(work):
            if groups and n % every == 0:
                for x in groups.pop(0): A(x)
            A(w)
        for g in groups:
            for x in g: A(x)
    def dots(i):
        r = []
        for k in range(32):
            r.append(f"v_dot2c_f32_bf16 v{S2+i}, v{xreg(0,i)+k}, v{xreg(0,i)+k}")
            r.append(f"v_dot2c_f32_bf16 v{S1+i}, s78, v{xreg(0,i)+k}")
        return r
    xload(2)
    A("s_waitcnt vmcnt(16)"); stamp(A, 16)
    for x in dots(0): A(x)
    xload(3)
    A("s_waitcnt vmcnt(16)"); stamp(A, 17)
    mix(dots(1), dma(), 7)
    A("s_waitcnt vmcnt(17)"); stamp(A, 18)
    for x in dots(2): A(x)
    A("s_waitcnt vmcnt(9)"); stamp(A, 19)
    mix(dots(3), dma(), 7)
    A("s_nop 2")
    for ctl in ("quad_perm:[1,0,3,2]", "quad_perm:[2,3,0,1]", "row_half_mirror"):
        for r in range(S1, S2+4):
            A(f"v_add_f32_dpp v{r}, v{r}, v{r} {ctl} row_mask:0xf bank_mask:0xf")
    seq = [
        lambda i: f"v_mul_f32 v{S1+i}, {f2u(1/512):#x}, v{S1+i}",
        lambda i: f"v_mul_f32 v{S2+i}, {f2u(1/512):#x}, v{S2+i}",
        lambda i: f"v_fma_f32 v{S2+i}, -v{S1+i}, v{S1+i}, v{S2+i}",
        lambda i: f"v_max_f32 v{S2+i}, 0, v{S2+i}",
        lambda i: f"v_cvt_pk_bf16_f32 v{S2+i}, v{S1+i}, v{S2+i}",
        lambda i: f"v_lshlrev_b32 v{S1+i}, 16, v{S2+i}",
        lambda i: f"v_and_b32 v{S2+i}, 0xffff0000, v{S2+i}",
        lambda i: f"v_add_f32 v{S2+i}, {f2u(1e-5):#x}, v{S2+i}",
        lambda i: f"v_cvt_pk_bf16_f32 v{S2+i}, v{S2+i}, v{S2+i}",
        lambda i: f"v_and_b32 v{S2+i}, 0xffff0000, v{S2+i}",
        lambda i: f"v_sqrt_f32 v{S2+i}, v{S2+i}",
        lambda i: f"v_cvt_pk_bf16_f32 v{S2+i}, v{S2+i}, v{S2+i}",
        lambda i: f"v_and_b32 v{S2+i}, 0xffff0000, v{S2+i}",
        lambda i: f"v_rcp_f32 v{RR+i}, v{S2+i}",
        lambda i: f"v_mul_f32 v{RR+i}, s69, v{RR+i}",
        lambda i: f"v_mul_f32 v{MR+i}, v{S1+i}, v{RR+i}",
    ]
    for f in seq:
        for i in range(4): A(f(i))
    stamp(A, 1)
    for i in range(4):
        for x in norm(0, i): A(x)
    stamp(A, 2)
    for m in range(8):
        if m == 4: stamp(A, 29)
        A(f"s_waitcnt vmcnt({9 if m < 7 else 0}) lgkmcnt(0)")
        if m == 4: stamp(A, 30)
        if m == 7:
            A("v_cmp_ne_u32 vcc, 1, v97")
            A("s_cmp_eq_u64 vcc, 0")
            A("s_cbranch_scc1 LL_POLL0_OK")
            spin_global(A, "LL_POLL0", 96, ["v_cmp_ne_u32 vcc, 1, v97", "s_cmp_eq_u64 vcc, 0"], S_DBG)
        A("s_barrier")
        if m == 3: stamp(A, 28)
        if m == 4: stamp(A, 31)
        if m == 7: break
        if m == 6:
            A(f"v_min_u32 v96, {NFLAG//64-1}, v{L}")
            A("v_lshlrev_b32 v96, 2, v96")
            A(f"buffer_load_dword v97, v96, {sr(S_DBG,4)}, 0 offen sc1")
        work = sum((norm(m+1, i) for i in range(4)), [])
        mix(work, dma() if m < 6 else [], OPT["dmaevery"])
    A("s_barrier")
    stamp(A, 3)
    A("s_cmp_lg_u32 s60, 0")
    A("s_cbranch_scc1 LL_WAITGO")
    A(f"v_min_u32 v96, 47, v{L}")
    A("v_lshlrev_b32 v96, 7, v96")
    A("s_bfe_u32 s64, s2, 0x10004")
    A("s_and_b32 s65, s2, 7")
    A("s_lshl_b32 s65, s65, 1")
    A("s_add_u32 s64, s64, s65")
    A(f"s_mul_i32 s64, s64, {48*128}")
    A(f"s_add_u32 s64, s64, {QFLAG:#x}")
    spin_global(A, "LL_POLL", 96, ["v_cmp_eq_u32 vcc, 0, v97", "s_cmp_eq_u64 vcc, 0"], S_WS, "s64")
    A(f"v_mov_b32 v96, {SW}")
    A("v_mov_b32 v97, 1")
    A("ds_write_b32 v96, v97 offset:4")
    A("s_branch LL_GO")
    A.lab("LL_WAITGO")
    A(f"v_mov_b32 v96, {SW}")
    A(f"s_mov_b32 s70, {SPIN_MAX*16}")
    A.lab("LL_WG1")
    A("ds_read_b32 v97, v96 offset:4")
    A("s_waitcnt lgkmcnt(0)")
    A("v_readfirstlane_b32 s65, v97")
    A("s_cmp_lg_u32 s65, 0")
    A("s_cbranch_scc1 LL_GO")
    A("s_sleep 1")
    A("s_sub_u32 s70, s70, 1")
    A("s_cmp_lg_u32 s70, 0")
    A("s_cbranch_scc1 LL_WG1")
    A.lab("LL_GO")
    stamp(A, 4)
    A(f"v_lshlrev_b32 v95, 4, v{L}")
    A("s_and_b32 s64, s2, 31")
    A("s_lshl_b32 s64, s64, 16")
    A("s_lshl_b32 s65, s60, 11")
    A("s_add_u32 s64, s64, s65")
    A("s_lshr_b32 s66, s2, 5")
    A("s_lshl_b32 s66, s66, 13")
    A("s_add_u32 s66, s66, s64")
    A(f"s_add_u32 m0, s65, {QOFF}")
    A(f"s_add_u32 s67, s64, {KF:#x}")
    A(f"buffer_load_dwordx4 v95, {sr(S_WS,4)}, s66 offen sc1 lds")
    A(f"buffer_load_dwordx4 v95, {sr(S_WS,4)}, s66 offen offset:1024 sc1 lds")
    A(f"s_add_u32 s68, s64, {VF:#x}")
    A("s_mov_b32 s69, 0")
    A.lab("LL_KV")
    A("s_mov_b32 m0, s65")
    A("s_add_u32 s69, s69, 1")
    A(f"buffer_load_dwordx4 v95, {sr(S_WS,4)}, s67 offen sc1 lds")
    A(f"buffer_load_dwordx4 v95, {sr(S_WS,4)}, s67 offen offset:1024 sc1 lds")
    A("s_add_u32 m0, s65, 65536")
    A("s_add_u32 s67, s67, 8192")
    A(f"buffer_load_dwordx4 v95, {sr(S_WS,4)}, s68 offen sc1 lds")
    A(f"buffer_load_dwordx4 v95, {sr(S_WS,4)}, s68 offen offset:1024 sc1 lds")
    A("s_add_u32 s68, s68, 8192")
    A("s_add_u32 s65, s65, 8192")
    A("s_cmp_lt_u32 s69, 2")
    A("s_cbranch_scc1 LL_KV")

S_ = [0, 16]; C_ = 32; O_ = 48; Q_ = 64; KB = [68, 72]; V0 = [76, 80]; V1 = [84, 88]
IDX, KA, VA, L16 = 92, 93, 94, 95
DACC = 104; DBUF = 136; WO = 184; XV = 248

def down_loads(A, slot):
    b = DBUF + 12*slot
    A(f"buffer_load_dwordx4 {vr(b,4)}, v{L16}, {sr(S_T1,4)}, s84 offen sc1")
    A(f"buffer_load_dwordx4 {vr(b+4,4)}, v{L16}, {sr(S_T2,4)}, s85 offen sc1")
    A(f"buffer_load_dwordx4 {vr(b+8,4)}, v{L16}, {sr(S_T2,4)}, s85 offen offset:1024 sc1")
    A("s_add_u32 s84, s84, 1024")
    A("s_add_u32 s85, s85, 2048")

def attn_body(A, mode):
    for t in range(8):
        p = t & 1
        down = mode == "B" or (mode == "C" and t < 4)
        cur, prv = S_[p], S_[1-p]
        ex = lambda a, b: [A(f"v_exp_f32 v{cur+i}, v{cur+i}") for i in range(a, b)]
        if p == 0: A(f"s_setprio {3 - (t >> 1)}")
        A("s_waitcnt lgkmcnt(3)")
        ex(0, 2)
        A(f"v_smfmac_f32_32x32x32_bf16 {vr(O_,16)}, {vr(V1[1-p],4)}, {vr(prv+8,8)}, v{IDX}")
        ex(2, 6 if down else 7)
        A(f"v_mfma_f32_32x32x16_bf16 {vr(prv,16)}, {vr(KB[1-p],4)}, {vr(Q_,4)}, {vr(C_,16)}")
        A(f"ds_read_b128 {vr(KB[1-p],4)}, v{KA} offset:{(t+3)*1024}")
        ex(6 if down else 7, 10 if down else 12)
        A(f"v_smfmac_f32_32x32x32_bf16 {vr(O_,16)}, {vr(V0[p],4)}, {vr(cur,8)}, v{IDX}")
        A("s_mov_b64 exec, s[80:81]")
        A(f"ds_read_b128 {vr(V0[p],4)}, v{VA} offset:{(t+2)*1024}")
        A(f"ds_read_b128 {vr(V1[1-p],4)}, v{VA} offset:{(t+1)*1024+512}")
        A("s_mov_b64 exec, -1")
        if down:
            ex(10, 14)
            b = DBUF + 12*(t >> 1)
            if p == 0: A(f"s_waitcnt vmcnt({14 if (mode == 'C' and t == 2) else 9})")
            A(f"v_mfma_f32_32x32x16_bf16 {vr(DACC+16*p,16)}, {vr(b+4+4*p,4)}, {vr(b,4)}, {vr(DACC+16*p,16)}")
            if mode == "B" and p == 1: down_loads(A, t >> 1)
            if mode == "C":
                for i in range(4):
                    A(f"buffer_load_dwordx4 {vr(WO+16*t+4*i,4)}, v{L16}, {sr(S_WS,4)}, s90 offen offset:{i*1024} sc1")
                A("s_add_u32 s90, s90, 4096")
                if t == 3: A(f"buffer_load_dwordx4 {vr(XV,4)}, v252, {sr(S_X,4)}, s88 offen")
            ex(14, 16)
        else:
            ex(12, 16)
            if mode == "A" and t in (1, 3, 5):
                A("s_cmp_lt_u32 s83, s82" if t != 1 else "s_cmp_le_u32 s83, s67")
                A(f"s_cbranch_scc0 L_HK{t}")
                A(f"s_call_b64 s[76:77], {'L_H1' if t == 1 else 'L_KV'}")
                A.lab(f"L_HK{t}")
            if mode == "A" and t == 4:
                A("s_cmp_eq_u32 s83, s89")
                A("s_cbranch_scc1 L_P23")
                A.lab("L_P23_RET")
    if mode != "C":
        A(f"v_add_u32 v{KA}, 8192, v{KA}")
        A(f"v_add_u32 v{VA}, 8192, v{VA}")
        A("s_add_u32 s83, s83, 1")

def gen_attn(A):
    A(f"v_lshlrev_b32 v{L16}, 4, v{L}")
    A("s_waitcnt lgkmcnt(0)")
    for r in range(76, 92): A(f"v_mov_b32 v{r}, 0")
    A("s_mov_b32 s80, 0x00110000")
    A("s_mov_b32 s81, 0x00110000")
    A("s_mov_b64 exec, s[80:81]")
    for r in range(76, 92): A(f"v_mov_b32 v{r}, 0x3f803f80")
    A("s_mov_b64 exec, -1")
    A(f"v_mov_b32 v{IDX}, 0xdddd")
    A("s_mov_b32 s80, 0xffff")
    A("s_mov_b32 s81, 0xffff")
    A("s_mov_b32 s78, 1")
    A(f"s_mov_b32 s79, {f2u(OPT['bias']):#x}")
    A("s_mov_b32 s82, 1")
    A("s_mov_b32 s67, 1")
    A("s_mov_b32 s89, 1")
    A("s_mov_b32 s86, 2")
    A(f"v_and_b32 v98, 15, v{L}")
    A("v_lshlrev_b32 v98, 4, v98")
    A(f"v_lshrrev_b32 v99, 5, v{L}")
    A("v_lshl_or_b32 v98, v99, 8, v98")
    A("v_add_u32 v98, 65536, v98")
    A("s_lshl_b32 s60, s22, 10")
    A(f"s_add_u32 s60, s60, {QOFF}")
    A(f"v_add_u32 v99, s60, v{L16}")
    for r in range(32): A(f"v_mov_b32 v{DACC+r}, 0")
    stamp(A, 5)
    A("s_and_b32 s94, s2, 31")
    A("s_lshl_b32 s94, s94, 16")
    A("s_lshl_b32 s95, s22, 10")
    A("s_add_u32 s95, s95, 16384")
    A("s_add_u32 s94, s94, s95")
    A(f"s_add_u32 s94, s94, {KF:#x}")
    A("s_cmp_lt_u32 s22, 4")
    A("s_cbranch_scc1 L_P0")
    A("s_waitcnt vmcnt(0)")
    A.lab("L_P0")
    A("s_barrier")
    stamp(A, 6)
    A(f"ds_read_b128 {vr(Q_,4)}, v99")
    A.lab("L_RUN")
    A(f"v_mov_b32 v{KA}, v{L16}")
    A("v_mov_b32 v100, 0xff800000")
    A.lab("L_MAXLOOP")
    A(f"ds_read_b128 {vr(KB[0],4)}, v{KA}")
    A(f"ds_read_b128 {vr(KB[1],4)}, v{KA} offset:1024")
    A(f"v_add_u32 v{KA}, 2048, v{KA}")
    A("s_waitcnt lgkmcnt(1)")
    A(f"v_mfma_f32_32x32x16_bf16 {vr(S_[0],16)}, {vr(KB[0],4)}, {vr(Q_,4)}, 0")
    A("s_waitcnt lgkmcnt(0)")
    A(f"v_mfma_f32_32x32x16_bf16 {vr(S_[1],16)}, {vr(KB[1],4)}, {vr(Q_,4)}, 0")
    A("s_nop 10")
    for i in range(16): A(f"v_max3_f32 v100, v{2*i}, v{2*i+1}, v100")
    A("s_sub_u32 s78, s78, 1")
    A("s_cmp_lg_u32 s78, 0")
    A("s_cbranch_scc1 L_MAXLOOP")
    A(f"v_mov_b32 v{KA}, v{L16}")
    A(f"v_mov_b32 v{VA}, v98")
    A(f"ds_read_b128 {vr(KB[0],4)}, v{KA}")
    A(f"ds_read_b128 {vr(KB[1],4)}, v{KA} offset:1024")
    A("s_mov_b64 exec, s[80:81]")
    A(f"ds_read_b128 {vr(V0[0],4)}, v{VA}")
    A("s_mov_b64 exec, -1")
    A("v_mov_b32 v101, v100")
    A("s_nop 1")
    A("v_permlane32_swap_b32 v100, v101")
    A("s_nop 1")
    A("v_max_f32 v100, v100, v101")
    A("v_add_f32 v100, s79, v100")
    for r in range(16): A(f"v_sub_f32 v{C_+r}, 0, v100")
    for r in range(16): A(f"v_mov_b32 v{O_+r}, 0")
    for r in range(8, 16): A(f"v_mov_b32 v{S_[1]+r}, 0")
    A("s_waitcnt lgkmcnt(2)")
    A(f"v_mfma_f32_32x32x16_bf16 {vr(S_[0],16)}, {vr(KB[0],4)}, {vr(Q_,4)}, {vr(C_,16)}")
    A(f"ds_read_b128 {vr(KB[0],4)}, v{KA} offset:2048")
    A("s_mov_b64 exec, s[80:81]")
    A(f"ds_read_b128 {vr(V0[1],4)}, v{VA} offset:1024")
    A(f"ds_read_b128 {vr(V1[0],4)}, v{VA} offset:512")
    A("s_mov_b64 exec, -1")
    A("s_mov_b32 s83, 0")
    stamp(A, 7)
    A("s_nop 6")
    A.raw(".p2align 6")
    A.lab("L_LOOPA")
    attn_body(A, "A")
    A("s_cmp_lt_u32 s83, s86")
    A("s_cbranch_scc1 L_LOOPA")
    A("s_cmp_eq_u32 s82, 0")
    A("s_cbranch_scc1 L_ATT_DONE")
    A.lab("L_LOOPB")
    attn_body(A, "B")
    A("s_cmp_lt_u32 s83, 7")
    A("s_cbranch_scc1 L_LOOPB")
    attn_body(A, "C")
    A.lab("L_ATT_DONE")
    A("s_waitcnt lgkmcnt(0)")
    stamp(A, 10)
    A(f"v_smfmac_f32_32x32x32_bf16 {vr(O_,16)}, {vr(V1[1],4)}, {vr(S_[1]+8,8)}, v{IDX}")
    A("s_lshr_b32 s60, s2, 5")
    A("s_lshl_b32 s60, s60, 3")
    A("s_add_u32 s60, s60, s22")
    A("s_lshl_b32 s60, s60, 15")
    A("s_and_b32 s61, s2, 31")
    A("s_lshl_b32 s61, s61, 10")
    A("s_add_u32 s60, s60, s61")
    A(f"s_add_u32 s60, s60, {OF:#x}")
    A("s_nop 5")
    A(f"v_rcp_f32 v101, v{O_+8}")
    A(f"v_add_f32 v100, abs(v{O_}), abs(v{O_+1})")
    for r in range(2, 8): A(f"v_add_f32 v100, v100, abs(v{O_+r})")
    A("s_cmp_eq_u32 s82, 0")
    A("s_cbranch_scc1 L_FIN")
    A(f"v_mov_b32 v102, {f2u(2.0**120):#x}")
    A(f"v_cmp_nlt_f32 s[62:63], v{O_+8}, v102")
    A("v_cmp_nlt_f32 s[64:65], v100, v102")
    A(f"v_mov_b32 v102, {f2u(2.0**-100):#x}")
    A("v_cmp_lt_f32 vcc, v100, v102")
    A("s_or_b64 s[62:63], s[62:63], s[64:65]")
    A("s_or_b64 s[62:63], s[62:63], vcc")
    A("s_cmp_eq_u64 s[62:63], 0")
    if not OPT["force_fallback"]: A("s_cbranch_scc1 L_FIN")
    A("s_mov_b32 s78, 32")
    A("s_mov_b32 s79, 0")
    A("s_mov_b32 s82, 0")
    A("s_mov_b32 s89, 99")
    A("s_mov_b32 s86, 8")
    A("s_branch L_RUN")
    A.lab("L_FIN")
    for r in range(8): A(f"v_mul_f32 v{O_+r}, v{O_+r}, v101")
    for i in range(4): A(f"v_cvt_pk_bf16_f32 v{O_+i}, v{O_+2*i}, v{O_+2*i+1}")
    A(f"buffer_store_dwordx4 {vr(O_,4)}, v{L16}, {sr(S_WS,4)}, s60 offen sc1")

def red_addr(A):
    A("s_and_b32 s60, s22, 1")
    A("s_lshr_b32 s61, s22, 1")
    A("s_lshl_b32 s60, s60, 15")
    A("s_lshl_b32 s62, s61, 11")
    A("s_add_u32 s62, s62, s60")
    A(f"v_add_u32 v102, s62, v{L16}")
    A("s_lshl_b32 s62, s61, 13")
    A("s_add_u32 s62, s62, s60")
    A(f"v_add_u32 v103, s62, v{L16}")
def red_write(A, acc):
    for q in range(4):
        for hf in range(2):
            A(f"ds_write_b128 v102, {vr(acc+8*q+4*hf,4)} offset:{q*8192 + hf*1024}")
def red_read(A, dst):
    for s in range(4):
        for hf in range(2):
            A(f"ds_read_b128 {vr(dst+8*s+4*hf,4)}, v103 offset:{s*2048 + hf*1024}")
def red_sum(A, dst):
    for r in range(8):
        A(f"v_add_f32 v{dst+r}, v{dst+r}, v{dst+8+r}")
        A(f"v_add_f32 v{dst+16+r}, v{dst+16+r}, v{dst+24+r}")
    for r in range(8): A(f"v_add_f32 v{dst+r}, v{dst+r}, v{dst+16+r}")
def round_bf16(A, regs, tmp):
    for i in range(4): A(f"v_cvt_pk_bf16_f32 v{tmp+i}, v{regs+2*i}, v{regs+2*i+1}")
    for i in range(4):
        A(f"v_lshlrev_b32 v{regs+2*i}, 16, v{tmp+i}")
        A(f"v_and_b32 v{regs+2*i+1}, 0xffff0000, v{tmp+i}")

def gen_final(A):
    red_addr(A)
    A("s_waitcnt vmcnt(0)")
    A("s_barrier")
    stamp(A, 11)
    A("s_cmp_lg_u32 s22, 0")
    A("s_cbranch_scc1 L_X1B")
    A("s_lshl_b32 s60, s2, 7")
    A(f"s_add_u32 s60, s60, {OFLAG:#x}")
    A("s_mov_b64 exec, 1")
    A("v_mov_b32 v96, 1")
    A("v_mov_b32 v97, 0")
    A(f"buffer_store_dword v96, v97, {sr(S_WS,4)}, s60 offen sc1")
    A("s_mov_b64 exec, -1")
    A.lab("L_X1B")
    red_write(A, DACC)
    A("s_cmp_lg_u32 s22, 0")
    A("s_cbranch_scc1 L_X2")
    A("s_and_b32 s60, s2, 7")
    A("s_lshl_b32 s60, s60, 12")
    A(f"s_add_u32 s60, s60, {OFLAG:#x}")
    A(f"v_and_b32 v96, 31, v{L}")
    A("v_lshlrev_b32 v96, 7, v96")
    spin_global(A, "L_OPOLL", 96, ["v_cmp_ne_u32 vcc, 1, v97", "s_cmp_eq_u64 vcc, 0"], S_WS, "s60")
    A.lab("L_X2")
    A("s_waitcnt lgkmcnt(0)")
    A("s_barrier")
    stamp(A, 12)
    for s in range(8):
        A(f"buffer_load_dwordx4 {vr(4*s,4)}, v{L16}, {sr(S_WS,4)}, s87 offen offset:{(s&3)*1024} sc1")
        if s == 3: A("s_add_u32 s87, s87, 4096")
    G = DACC
    red_read(A, G)
    A("v_add_u32 v102, 65536, v102")
    A("v_add_u32 v103, 65536, v103")
    A("s_waitcnt lgkmcnt(0)")
    red_sum(A, G)
    T = 64
    round_bf16(A, G, T)
    for r in range(8): A(f"v_mul_f32 v{T+r}, {f2u(-LOG2E):#x}, v{G+r}")
    for r in range(8): A(f"v_exp_f32 v{T+r}, v{T+r}")
    for r in range(8): A(f"v_add_f32 v{T+r}, 1.0, v{T+r}")
    for r in range(8): A(f"v_rcp_f32 v{T+r}, v{T+r}")
    for r in range(8): A(f"v_mul_f32 v{G+r}, v{G+r}, v{T+r}")
    round_bf16(A, G, T)
    ACC = 32
    for s in range(8):
        A(f"s_waitcnt vmcnt({7-s})")
        for nt in range(2):
            c = "0" if s == 0 else vr(ACC+16*nt,16)
            A(f"v_mfma_f32_32x32x16_bf16 {vr(ACC+16*nt,16)}, {vr(WO+8*s+4*nt,4)}, {vr(4*s,4)}, {c}")
    stamp(A, 13)
    A("s_nop 15")
    red_write(A, ACC)
    A("s_waitcnt lgkmcnt(0)")
    A("s_barrier")
    red_read(A, 0)
    for i in range(4):
        A(f"v_lshlrev_b32 v{72+2*i}, 16, v{XV+i}")
        A(f"v_and_b32 v{73+2*i}, 0xffff0000, v{XV+i}")
    A("s_waitcnt lgkmcnt(0)")
    red_sum(A, 0)
    round_bf16(A, 0, T)
    for r in range(8): A(f"v_mul_f32 v{r}, v{r}, v{G+r}")
    for i in range(4): A(f"v_cvt_pk_bf16_f32 v{T+i}, v{2*i}, v{2*i+1}")
    A("s_nop 1")
    A(f"v_permlane32_swap_b32 v{T}, v{T+2}")
    A(f"v_permlane32_swap_b32 v{T+1}, v{T+3}")
    A("s_nop 1")
    for i in range(4):
        A(f"v_lshlrev_b32 v{2*i}, 16, v{T+i}")
        A(f"v_and_b32 v{2*i+1}, 0xffff0000, v{T+i}")
    for r in range(8): A(f"v_add_f32 v{r}, v{r}, v{72+r}")
    for i in range(4): A(f"v_cvt_pk_bf16_f32 v{T+i}, v{2*i}, v{2*i+1}")
    A(f"buffer_store_dwordx4 {vr(T,4)}, v252, {sr(S_OUT,4)}, s88 offen")
    if OPT["prof"]:
        A("s_waitcnt vmcnt(0)")
        stamp(A, 14)
        A(f"s_add_u32 s{S_T1}, s18, {PROF_OFF:#x}")
        A(f"s_addc_u32 s{S_T1+1}, s19, 0")
        A(f"s_mov_b32 s{S_T1+2}, 0x100000")
        A(f"s_mov_b32 s{S_T1+3}, 0x00020000")
        A("s_lshl_b32 s60, s2, 3")
        A("s_add_u32 s60, s60, s22")
        A("s_lshl_b32 s60, s60, 8")
        A(f"v_lshlrev_b32 v0, 2, v{L}")
        A(f"buffer_store_dword v255, v0, {sr(S_T1,4)}, s60 offen")

def gen_sync_blocks(A):
    def poll_addr():
        A("s_and_b32 s60, s2, 7")
        A("s_bfe_u32 s61, s2, 0x10004")
        A("s_lshl_b32 s62, s60, 1")
        A("s_add_u32 s61, s61, s62")
        A(f"s_mul_i32 s61, s61, {10*128}")
        A(f"s_add_u32 s61, s61, {HFLAG-32*128:#x}")
        A(f"s_mul_i32 s60, s60, {96*128}")
        A(f"s_add_u32 s60, s60, {QFLAG:#x}")
        A(f"v_lshlrev_b32 v96, 7, v{L}")
        A("v_add_u32 v100, s60, v96")
        A(f"v_add_u32 v101, {64*128}, v100")
        A(f"v_min_u32 v96, {41*128}, v96")
        A("v_add_u32 v96, s61, v96")
        A(f"v_cmp_lt_u32 vcc, 31, v{L}")
        A("s_nop 1")
        A("v_cndmask_b32 v101, v101, v96, vcc")
    def poll_loads():
        A(f"buffer_load_dword v102, v100, {sr(S_WS,4)}, 0 offen sc1")
        A(f"buffer_load_dword v103, v101, {sr(S_WS,4)}, 0 offen sc1")
    A.lab("L_H1")
    A("s_cmp_eq_u32 s82, 0")
    A("s_cbranch_scc1 L_HRET")
    A("s_cmp_eq_u32 s83, 0")
    A("s_cbranch_scc1 L_H1A")
    A("s_cmp_lg_u32 s22, 0")
    A("s_cbranch_scc1 L_HRET")
    poll_addr()
    poll_loads()
    A.lab("L_HRET")
    A("s_setpc_b64 s[76:77]")
    A.lab("L_H1A")
    A("s_cmp_ge_u32 s22, 4")
    A("s_cbranch_scc1 L_KV")
    A("s_waitcnt vmcnt(0)")
    A(f"v_mov_b32 v96, {SW}")
    A("v_mov_b32 v97, 1")
    A("s_mov_b64 exec, 1")
    A("ds_add_rtn_u32 v100, v96, v97 offset:8")
    A("s_waitcnt lgkmcnt(0)")
    A("s_mov_b64 exec, -1")
    A("v_readfirstlane_b32 s60, v100")
    A("s_cmp_lg_u32 s60, 3")
    A("s_cbranch_scc1 L_KV")
    own_flag_store(A, 2, 96)
    A.lab("L_KV")
    for i in range(2):
        A("s_mov_b32 m0, s95")
        A(f"s_add_u32 s60, s94, {VF-KF:#x}")
        A(f"buffer_load_dwordx4 v{L16}, {sr(S_WS,4)}, s94 offen sc1 lds")
        A("s_add_u32 m0, s95, 65536")
        A("s_add_u32 s94, s94, 8192")
        A(f"buffer_load_dwordx4 v{L16}, {sr(S_WS,4)}, s60 offen sc1 lds")
        A("s_add_u32 s95, s95, 8192")
    A("s_setpc_b64 s[76:77]")
    A.lab("L_P23")
    stamp(A, 8)
    A("s_and_b32 s60, s2, 7")
    A("s_bfe_u32 s61, s2, 0x20003")
    A("s_lshl_b32 s60, s60, 2")
    A("s_add_u32 s60, s60, s61")
    A("s_cmp_lg_u32 s22, 0")
    A("s_cbranch_scc1 L_P3B")
    A(f"s_mov_b32 s70, {SPIN_MAX}")
    A.lab("L_HPOLL")
    A("s_waitcnt vmcnt(0)")
    A("v_and_b32 v102, v102, v103")
    A("v_cmp_ne_u32 vcc, 2, v102")
    A("s_cmp_eq_u64 vcc, 0")
    A("s_cbranch_scc1 L_P3B")
    A(f"s_sleep {OPT['sleep']}")
    poll_loads()
    A("s_sub_u32 s70, s70, 1")
    A("s_cmp_lg_u32 s70, 0")
    A("s_cbranch_scc1 L_HPOLL")
    A.lab("L_P3B")
    A("s_lshr_b32 s61, s2, 5")
    A("s_and_b32 s62, s22, 1")
    A("s_lshl_b32 s60, s60, 1")
    A("s_add_u32 s60, s60, s62")
    A("s_lshr_b32 s62, s22, 1")
    A("s_mul_i32 s63, s62, 22")
    A("s_cmp_eq_u32 s62, 3")
    A("s_cselect_b32 s63, 65, s63")
    A("s_cmp_lt_u32 s62, 2")
    A("s_cselect_b32 s64, 22, 21")
    A(f"s_mul_i32 s65, s60, {NFU}")
    A("s_add_u32 s65, s65, s63")
    A("s_lshl_b32 s65, s65, 10")
    A(f"s_add_u32 s65, s65, {HF:#x}")
    A(f"s_add_u32 s{S_T1}, s18, s65")
    A(f"s_addc_u32 s{S_T1+1}, s19, 0")
    A(f"s_lshl_b32 s{S_T1+2}, s64, 10")
    A(f"s_mov_b32 s{S_T1+3}, 0x00020000")
    A(f"s_mul_i32 s65, s61, {NFU}")
    A("s_add_u32 s65, s65, s63")
    A("s_lshl_b32 s65, s65, 11")
    A(f"s_add_u32 s65, s65, {WDF:#x}")
    A(f"s_add_u32 s{S_T2}, s18, s65")
    A(f"s_addc_u32 s{S_T2+1}, s19, 0")
    A(f"s_lshl_b32 s{S_T2+2}, s64, 11")
    A(f"s_mov_b32 s{S_T2+3}, 0x00020000")
    A("s_mov_b32 s84, 0")
    A("s_mov_b32 s85, 0")
    A("s_lshl_b32 s90, s61, 16")
    A("s_lshl_b32 s66, s62, 14")
    A("s_add_u32 s90, s90, s66")
    A(f"s_add_u32 s90, s90, {WOF:#x}")
    A("s_lshl_b32 s87, s60, 15")
    A("s_lshl_b32 s66, s62, 13")
    A("s_add_u32 s87, s87, s66")
    A(f"s_add_u32 s87, s87, {OF:#x}")
    A("s_lshl_b32 s88, s60, 15")
    A("s_lshl_b32 s66, s61, 7")
    A("s_add_u32 s88, s88, s66")
    A("s_lshl_b32 s66, s62, 5")
    A("s_add_u32 s88, s88, s66")
    A(f"v_and_b32 v252, 31, v{L}")
    A("v_lshlrev_b32 v252, 10, v252")
    A(f"v_lshrrev_b32 v96, 5, v{L}")
    A("v_lshl_add_u32 v252, v96, 4, v252")
    A("s_waitcnt vmcnt(0)")
    A("s_barrier")
    stamp(A, 9)
    for slot in range(4): down_loads(A, slot)
    A("s_branch L_P23_RET")

def main(out):
    hdr = open(f"cdna_kernels/{NAME}.s.ref").read().split("\n")
    head = [l for l in hdr if l.startswith(";") and "@launch" not in l]
    head += [f"; @launch grid=(256,1,1) block=(512,1,1) lds={LDS_BYTES}"]
    A = Asm()
    d = gen(A)
    open(out, "w").write("\n".join(head) + '\n.amdgcn_target "amdgcn-amd-amdhsa--gfx950"\n' + A.text() + d)

if __name__ == "__main__":
    for a in sys.argv[2:]:
        k, _, v = a.partition("=")
        OPT[k] = eval(v) if v else True
    main(sys.argv[1] if len(sys.argv) > 1 else f"cdna_kernels/{NAME}.s")
```

```python
import sys, struct

NAME = "recurrent_scan__softmax_full_mha__glu_gated_geglu__prompt"
MB = 1 << 20
QF, KF, VF, OF, WOF, WDF, HF, OFLAG = 0, 2*MB, 4*MB, 6*MB, 8*MB, 9*MB, 11*MB, 17*MB
WS_BYTES = 18*MB
NFU = 86
LOG2E = 1.4426950408889634
def f2u(x): return struct.unpack("<I", struct.pack("<f", x))[0]

OPT = dict(prof=False, bias=48.0, force_fallback=False, sleep=4, map48=True, barpos=1, itstamp=False, rotk=False, lprio=0, dmaevery=8)
PROF_OFF = 24*MB
SPIN_MAX = 20000

class Asm:
    def __init__(self): self.l = []
    def __call__(self, s): self.l.append("    " + s)
    def lab(self, s): self.l.append(s + ":")
    def raw(self, s): self.l.append(s)
    def text(self): return "\n".join(self.l) + "\n"
def vr(a, n): return f"v[{a}:{a+n-1}]"
def sr(a, n): return f"s[{a}:{a+n-1}]"
def srd(A, d, base, nbytes):
    A(f"s_mov_b32 s{d}, s{base}")
    A(f"s_mov_b32 s{d+1}, s{base+1}")
    A(f"s_mov_b32 s{d+2}, {nbytes:#x}")
    A(f"s_mov_b32 s{d+3}, 0x00020000")
def csel(A, d, a, b):
    A(f"s_mov_b32 s{d}, {b:#x}")
    A(f"s_cselect_b32 s{d}, {a:#x}, s{d}")
def stamp(A, i):
    if not OPT["prof"]: return
    A("s_memtime s[96:97]")
    A("s_memrealtime s[98:99]")
    A("s_waitcnt lgkmcnt(0)")
    A(f"v_writelane_b32 v255, s96, {i}")
    A(f"v_writelane_b32 v255, s98, {32+i}")

XR = 0
WR = 32768
WSL = 18560
UPOFF = 9344
QOFF = 135168
SW = 163584
LDS_BYTES = 163840
QFLAG = OFLAG + 256*128
HFLAG = QFLAG + 768*128
NFLAG = 19*64
S_X, S_W, S_WS, S_DBG, S_OUT, S_T1, S_T2 = 24, 28, 32, 36, 40, 44, 48
L = 254

def spin_global(A, tag, voff, cmp_lines, srdn, soff="0", x2=False):
    A(f"s_mov_b32 s70, {SPIN_MAX}")
    A.lab(tag)
    if x2: A(f"buffer_load_dwordx2 v[102:103], v{voff}, {sr(srdn,4)}, {soff} offen sc1")
    else: A(f"buffer_load_dword v97, v{voff}, {sr(srdn,4)}, {soff} offen sc1")
    A("s_waitcnt vmcnt(0)")
    for x in cmp_lines: A(x)
    A(f"s_cbranch_scc1 {tag}_OK")
    A(f"s_sleep {OPT['sleep']}")
    A("s_sub_u32 s70, s70, 1")
    A("s_cmp_lg_u32 s70, 0")
    A(f"s_cbranch_scc1 {tag}")
    A.lab(tag + "_OK")

def own_flag_store(A, val, v0):
    A("s_mov_b64 exec, s[92:93]")
    A(f"v_mov_b32 v{v0}, {val}")
    A(f"v_mul_u32_u24 v{v0+1}, {96*128}, v{L}")
    A(f"buffer_store_dword v{v0}, v{v0+1}, {sr(S_WS,4)}, s91 offen sc1")
    A("s_mov_b64 exec, -1")

def gen(A):
    name = NAME + "_kernel"
    A.raw(".text"); A.raw(f".globl {name}"); A.raw(".p2align 8"); A.raw(f".type {name},@function")
    A.lab(name)
    A("s_cmp_ge_u32 s2, 256")
    A("s_cbranch_scc1 L_END")
    A("s_load_dwordx4 s[4:7], s[0:1], 0")
    A("s_load_dwordx2 s[8:9], s[0:1], 16")
    A("s_load_dwordx4 s[12:15], s[0:1], 32")
    A("s_load_dwordx4 s[52:55], s[0:1], 48")
    A("s_load_dwordx4 s[56:59], s[0:1], 64")
    if OPT["prof"]: A("v_mov_b32 v255, 0")
    A("v_lshrrev_b32 v253, 6, v0")
    A(f"v_and_b32 v{L}, 63, v0")
    A("s_and_b32 s3, s2, 7")
    A("v_readfirstlane_b32 s22, v253")
    A("s_lshr_b32 s23, s2, 3")
    if OPT["map48"]:
        A("s_lshr_b32 s20, s3, 1")
        A("s_lshl_b32 s20, s20, 2")
        A("s_and_b32 s60, s23, 3")
        A("s_add_u32 s20, s20, s60")
        A("s_lshr_b32 s21, s23, 2")
        A("s_lshl_b32 s21, s21, 1")
        A("s_and_b32 s60, s3, 1")
        A("s_add_u32 s21, s21, s60")
    else:
        A("s_and_b32 s20, s3, 1")
        A("s_lshl_b32 s20, s20, 3")
        A("s_and_b32 s60, s23, 7")
        A("s_add_u32 s20, s20, s60")
        A("s_lshr_b32 s21, s3, 1")
        A("s_lshl_b32 s21, s21, 2")
        A("s_lshr_b32 s60, s23, 3")
        A("s_add_u32 s21, s21, s60")
    A("s_waitcnt lgkmcnt(0)")
    stamp(A, 0)
    A("s_mov_b64 s[16:17], s[52:53]")
    A("s_mov_b64 s[18:19], s[58:59]")
    srd(A, S_X, 4, 2048*512*2)
    srd(A, S_WS, 58, WS_BYTES)
    srd(A, S_DBG, 56, 256)
    srd(A, S_OUT, 54, 2048*512*2)
    A("s_cmp_ge_u32 s22, 4")
    A("s_cbranch_scc1 L_LOADER")
    gen_side(A)
    A("s_cmp_ge_u32 s21, 6")
    A("s_cbranch_scc1 L_F")
    A("s_cmp_ge_u32 s21, 4")
    A("s_cbranch_scc1 L_V")
    gen_compute(A, "QK")
    A.lab("L_V")
    gen_compute(A, "V")
    A.lab("L_QKV_SIGNAL")
    A("s_waitcnt lgkmcnt(0)")
    gen_relayout_loads(A)
    A("s_waitcnt vmcnt(48)")
    A(f"v_mov_b32 v96, {SW}")
    A("v_mov_b32 v97, 1")
    A("s_mov_b64 exec, 1")
    A("ds_add_rtn_u32 v98, v96, v97")
    A("s_waitcnt lgkmcnt(0)")
    A("s_mov_b64 exec, -1")
    A("v_readfirstlane_b32 s60, v98")
    A("s_cmp_lg_u32 s60, 3")
    A("s_cbranch_scc1 L_QKV_S2")
    own_flag_store(A, 1, 96)
    A.lab("L_QKV_S2")
    stamp(A, 15)
    gen_relayout_stores(A)
    A("s_branch L_P2")
    A.lab("L_LOADER")
    gen_loader(A)
    A("s_branch L_P2")
    A.lab("L_F")
    gen_compute(A, "F")
    A.lab("L_P2")
    gen_attn(A)
    gen_final(A)
    A.lab("L_END")
    A("s_endpgm")
    gen_sync_blocks(A)
    return f""".section .rodata,"a"
.p2align 6
.amdhsa_kernel {name}
  .amdhsa_next_free_vgpr 256
  .amdhsa_next_free_sgpr 102
  .amdhsa_accum_offset 256
  .amdhsa_group_segment_fixed_size 0
  .amdhsa_kernarg_size 80
  .amdhsa_user_sgpr_count 2
  .amdhsa_user_sgpr_kernarg_segment_ptr 1
  .amdhsa_system_sgpr_workgroup_id_x 1
.end_amdhsa_kernel
"""

def gen_side(A):
    R = 144
    A("s_and_b32 s60, s21, 1")
    A("s_mul_i32 s60, s60, 48")
    A("s_lshr_b32 s61, s21, 1")
    A("s_lshl_b32 s61, s61, 4")
    A("s_add_u32 s61, s61, s20")
    A("s_add_u32 s60, s60, s61")
    A("s_lshl_b32 s60, s60, 7")
    A(f"s_add_u32 s60, s60, {QFLAG:#x}")
    A("s_mul_i32 s61, s20, 10")
    A("s_add_u32 s61, s61, s21")
    A("s_lshl_b32 s61, s61, 7")
    A(f"s_add_u32 s61, s61, {HFLAG-6*128:#x}")
    A("s_cmp_lt_u32 s21, 6")
    A("s_cselect_b32 s91, s60, s61")
    A("s_cselect_b32 s92, 0xff, 1")
    A("s_mov_b32 s93, 0")
    for r in range(R, R+4): A(f"v_mov_b32 v{r}, 0")
    A("s_cmp_lg_u32 s22, 0")
    A("s_cbranch_scc1 L_SIDE1")
    A(f"v_mov_b32 v{R+4}, {SW}")
    A(f"ds_write_b128 v{R+4}, {vr(R,4)}")
    A("s_cmp_lg_u32 s2, 0")
    A("s_cbranch_scc1 L_SIDE1")
    A(f"v_lshlrev_b32 v{R+4}, 7, v{L}")
    A(f"s_mov_b32 s60, {OFLAG:#x}")
    A.lab("L_ZERO")
    A(f"buffer_store_dword v{R}, v{R+4}, {sr(S_WS,4)}, s60 offen sc1")
    A("s_add_u32 s60, s60, 8192")
    A(f"s_cmp_lt_u32 s60, {OFLAG + NFLAG*128:#x}")
    A("s_cbranch_scc1 L_ZERO")
    A(f"v_mov_b32 v{R+5}, 1")
    A("s_waitcnt vmcnt(0)")
    A("s_mov_b64 exec, 1")
    A(f"buffer_store_dword v{R+5}, v{R+4}, {sr(S_DBG,4)}, 0 offen sc1")
    A("s_mov_b64 exec, -1")
    A.lab("L_SIDE1")
    for r in range(144): A(f"v_mov_b32 v{r}, 0")

def gen_relayout_loads(A):
    R = 144
    A("s_mul_i32 s67, s20, 6")
    A("s_add_u32 s67, s67, s21")
    A("s_lshl_b32 s67, s67, 2")
    A("s_add_u32 s67, s67, s22")
    A(f"v_lshlrev_b32 v{R+6}, 1, v{L}")
    for jb in range(3):
        A(f"s_add_u32 s60, s67, {384*jb}")
        A("s_cmp_lt_u32 s60, 256")
        A(f"s_cselect_b32 s{S_T1}, s8, s16")
        A(f"s_cselect_b32 s{S_T1+1}, s9, s17")
        csel(A, S_T1+2, 512*512*2, 1376*512*2)
        A(f"s_mov_b32 s{S_T1+3}, 0x00020000")
        csel(A, 61, WOF, WDF)
        csel(A, 62, 32*2048, NFU*2048)
        A("s_cselect_b32 s63, 0, 256")
        A("s_sub_u32 s63, s60, s63")
        A("s_lshr_b32 s64, s63, 3")
        A("s_and_b32 s63, s63, 7")
        A("s_lshl_b32 s65, s64, 14")
        A("s_lshl_b32 s66, s63, 7")
        A("s_add_u32 s65, s65, s66")
        for rho in range(16):
            hh = (rho >> 2) & 1; j = (rho & 3) + 4*(rho >> 3)
            d = 160 + 16*jb + 8*(j & 1) + 4*hh + (j >> 1)
            A(f"buffer_load_ushort v{d}, v{R+6}, {sr(S_T1,4)}, s65 offen offset:{(rho&3)*1024}")
            if (rho & 3) == 3 and rho < 15: A("s_add_u32 s65, s65, 4096")
        A("s_mul_i32 s63, s63, s62")
        A("s_lshl_b32 s64, s64, 11")
        A("s_add_u32 s63, s63, s64")
        A("s_add_u32 s63, s63, s61")
        A(f"s_cmp_lt_u32 s60, {256+8*NFU}")
        A(f"s_cselect_b32 s{68+jb}, s63, 0x7fff0000")
    A(f"v_lshrrev_b32 v{R+7}, 5, v{L}")
    A(f"v_lshlrev_b32 v{R+7}, 10, v{R+7}")
    A(f"v_and_b32 v{R+8}, 31, v{L}")
    A(f"v_lshl_add_u32 v{R+7}, v{R+8}, 4, v{R+7}")

def gen_relayout_stores(A):
    R = 144
    for jb in range(3):
        d = 160 + 16*jb
        A(f"s_waitcnt vmcnt({32 - 14*jb})")
        for i in range(8): A(f"v_lshl_or_b32 v{d+i}, v{d+8+i}, 16, v{d+i}")
        A(f"buffer_store_dwordx4 {vr(d,4)}, v{R+7}, {sr(S_WS,4)}, s{68+jb} offen sc1")
        A(f"buffer_store_dwordx4 {vr(d+4,4)}, v{R+7}, {sr(S_WS,4)}, s{68+jb} offen offset:512 sc1")

def gen_compute(A, kind):
    F = kind == "F"
    NW = 5 if F else 4
    XS = [176, 184]; WSET = [192, 212]
    XA = 232
    XB = 236
    WA = 240
    T0 = 244
    KQ = 1152 if F else 1024
    US = 128
    P = "L1" + kind
    A("s_lshr_b32 s60, s22, 1")
    A("s_and_b32 s61, s22, 1")
    t, h, sw = T0, T0+1, T0+2
    A(f"v_and_b32 v{t}, 31, v{L}")
    A(f"v_lshrrev_b32 v{h}, 5, v{L}")
    A(f"v_bfe_u32 v{sw}, v{t}, 1, 3")
    A(f"v_xor_b32 v{sw}, v{sw}, v{h}")
    A(f"v_lshlrev_b32 v{T0+3}, 7, v{t}")
    A("s_lshl_b32 s62, s22, 12")
    for s in range(4):
        A(f"v_xor_b32 v{T0+4}, {2*s}, v{sw}")
        A(f"v_lshl_add_u32 v{T0+4}, v{T0+4}, 4, v{T0+3}")
        A(f"v_add_u32 v{XA+s}, s62, v{T0+4}")
        A(f"v_xor_b32 v{XB+s}, 0x1000, v{XA+s}")
    if F:
        A(f"v_and_b32 v{T0+3}, 15, v{L}")
        A(f"v_lshlrev_b32 v{T0+3}, 3, v{T0+3}")
        A(f"v_bfe_u32 v{T0+4}, v{L}, 4, 1")
        A(f"v_mul_u32_u24 v{T0+4}, {UPOFF}, v{T0+4}")
        A(f"v_add_u32 v{T0+3}, v{T0+3}, v{T0+4}")
    else:
        A(f"v_bfe_u32 v{T0+5}, v{L}, 2, 2")
        A(f"v_and_b32 v{T0+3}, 3, v{L}")
        A(f"v_lshlrev_b32 v{T0+3}, 3, v{T0+3}")
        A(f"v_lshl_add_u32 v{T0+3}, v{T0+5}, 8, v{T0+3}")
        A(f"v_bfe_u32 v{T0+4}, v{L}, 4, 1")
        A(f"v_lshl_add_u32 v{T0+3}, v{T0+4}, 5, v{T0+3}")
    A(f"v_mul_u32_u24 v{T0+4}, {2*KQ}, v{h}")
    A(f"v_add_u32 v{T0+3}, v{T0+3}, v{T0+4}")
    A(f"v_add_u32 v{T0+3}, {WR}, v{T0+3}")
    if F:
        A(f"s_mul_i32 s62, s61, {4*US}")
        A(f"v_add_u32 v{WA}, s62, v{T0+3}")
        A(f"v_add_u32 v{WA+1}, {8*US}, v{T0+3}")
    else:
        A(f"s_mul_i32 s62, s61, {UPOFF}")
        A(f"v_add_u32 v{T0+3}, s62, v{T0+3}")
        for lu in range(4):
            A(f"v_xor_b32 v{T0+4}, {lu}, v{T0+5}")
            A(f"v_lshl_add_u32 v{WA+lu}, v{T0+4}, 6, v{T0+3}")
    A("s_mov_b32 s64, 0")
    A("s_mov_b32 s65, 0")

    def reads(st, s):
        r = []
        hs, sp = s >> 1, s & 1
        def wread(lu):
            a = WA + ((1 if lu == 4 else 0) if F else lu)
            base = hs*WSL + 4*sp*KQ + (lu*US if F and lu < 4 else 0)
            d = WSET[st] + 4*lu
            return [f"ds_read_b64_tr_b16 {vr(d,2)}, v{a} offset:{base}",
                    f"ds_read_b64_tr_b16 {vr(d+2,2)}, v{a} offset:{base+KQ}"]
        r.append(f"ds_read_b128 {vr(XS[st],4)}, v{XA+s}")
        r += wread(0)
        r.append(f"ds_read_b128 {vr(XS[st]+4,4)}, v{XB+s}")
        for lu in range(1, NW): r += wread(lu)
        return r
    def mfma(tile, w, x):
        a, b = (x, w) if kind == "V" else (w, x)
        return f"v_mfma_f32_32x32x16_bf16 {vr(16*tile,16)}, {vr(a,4)}, {vr(b,4)}, {vr(16*tile,16)}"
    def mfmas(st):
        m = [mfma(lu*2+lt, WSET[st]+4*lu, XS[st]+4*lt) for lu in range(4) for lt in range(2)]
        if F: m.append(mfma(8, WSET[st]+16, XS[st]))
        return m
    A("s_waitcnt lgkmcnt(0)")
    stamp(A, 1)
    A("s_barrier")
    stamp(A, 2)
    for x in reads(0, 0): A(x)
    A.raw(".p2align 6")
    A.lab(P + "_LOOP")
    A("s_cmp_eq_u32 s65, 2")
    csel(A, 66, (-4*WSL) & 0xffffffff, 2*WSL)
    A("s_cselect_b32 s65, -1, s65")
    A("s_add_u32 s65, s65, 1")
    NR = 2*NW + 2
    need = [3, 4, 6, 6, 8, 8, 10, 10, 12]
    for s in range(4):
        st = s & 1; nx = (s+1) & 3
        ms = mfmas(st); rd = reads(1-st, nx)
        upd = []
        if s < 3: upd += [f"v_xor_b32 v{XA+nx}, 0x4000, v{XA+nx}", f"v_xor_b32 v{XB+nx}, 0x4000, v{XB+nx}"]
        if s == 0: upd += [f"v_xor_b32 v{XA}, 0x4000, v{XA}", f"v_xor_b32 v{XB}, 0x4000, v{XB}"]
        if s == 2: upd += [f"v_add_u32 v{WA+i}, s66, v{WA+i}" for i in range(2 if F else 4)]
        gaps = [[] for _ in ms]
        g0 = OPT["barpos"] if s == 3 else 0
        per = 2 if g0 + (NR+1)//2 <= len(ms) - 1 else 3
        for i, r in enumerate(rd): gaps[g0 + i//per].append(r)
        for u in upd: gaps[-1].append(u)
        issued = 0; done = 0
        for i, (m, g) in enumerate(zip(ms, gaps)):
            if need[i] > done:
                A(f"s_waitcnt lgkmcnt({min(15, NR - need[i] + issued)})"); done = need[i]
            A(m)
            if s == 3 and i == g0:
                A("s_waitcnt lgkmcnt(0)"); done = NR
                A("s_barrier")
            for x in g:
                A(x)
                if x.startswith("ds_"): issued += 1
    if OPT["prof"] and OPT["itstamp"]:
        A("s_memtime s[96:97]")
        A("s_add_u32 m0, s64, 20")
        A("s_waitcnt lgkmcnt(0)")
        A("v_writelane_b32 v255, s96, m0")
    A("s_add_u32 s64, s64, 1")
    A("s_cmp_lt_u32 s64, 8")
    A(f"s_cbranch_scc1 {P}_LOOP")
    stamp(A, 3)
    VO = T0+5
    if kind == "QK":
        A(f"v_and_b32 v{T0+6}, 0x33, v{L}")
        A(f"v_bfe_u32 v{T0+7}, v{L}, 2, 1")
        A(f"v_lshl_or_b32 v{T0+6}, v{T0+7}, 3, v{T0+6}")
        A(f"v_bfe_u32 v{T0+7}, v{L}, 3, 1")
        A(f"v_lshl_or_b32 v{T0+6}, v{T0+7}, 2, v{T0+6}")
        A("s_cmp_lt_u32 s21, 2")
        A("s_cselect_b64 vcc, -1, 0")
        A(f"v_cndmask_b32 v{VO}, v{T0+6}, v{L}, vcc")
        A(f"v_lshlrev_b32 v{VO}, 4, v{VO}")
    elif kind == "V":
        A(f"v_and_b32 v{VO}, 15, v{L}")
        A(f"v_lshlrev_b32 v{VO}, 4, v{VO}")
        A(f"v_lshl_or_b32 v{VO}, v{h}, 8, v{VO}")
        A(f"v_bfe_u32 v{T0+6}, v{L}, 4, 1")
        A(f"v_lshl_or_b32 v{VO}, v{T0+6}, 16, v{VO}")
    else:
        A(f"v_lshlrev_b32 v{VO}, 4, v{L}")
    A("s_lshl_b32 s62, s20, 2")
    A("s_add_u32 s62, s62, s22")
    A("s_xor_b32 s63, s62, 1")
    tiles = [(lu*2+lt, lu, lt) for lu in range(4) for lt in range(2)] + ([(8, 4, 0)] if F else [])
    if not F:
        A("s_lshl_b32 s64, s21, 20")
        A("s_lshl_b32 s65, s61, 19")
        A("s_add_u32 s64, s64, s65")
        A("s_lshl_b32 s62, s62, 10")
        A("s_lshl_b32 s63, s63, 10")
        A("s_add_u32 s62, s62, s64")
        A("s_add_u32 s63, s63, s64")
        A("s_nop 1")
        for (tile, lu, lt) in tiles:
            a = 16*tile
            for i in range(8): A(f"v_cvt_pk_bf16_f32 v{a+i}, v{a+2*i}, v{a+2*i+1}")
            A(f"s_add_u32 s65, s{62+lt}, {lu*131072}")
            A(f"buffer_store_dwordx4 {vr(a,4)}, v{VO}, {sr(S_WS,4)}, s65 offen sc1")
            if kind == "QK":
                A("s_add_u32 s65, s65, 65536")
                A(f"buffer_store_dwordx4 {vr(a+4,4)}, v{VO}, {sr(S_WS,4)}, s65 offen sc1")
            else:
                A(f"buffer_store_dwordx4 {vr(a+4,4)}, v{VO}, {sr(S_WS,4)}, s65 offen offset:512 sc1")
        stamp(A, 4)
        if kind == "QK": A("s_branch L_QKV_SIGNAL")
    else:
        A(f"s_mul_i32 s62, s62, {NFU*1024}")
        A(f"s_mul_i32 s63, s63, {NFU*1024}")
        A(f"s_add_u32 s62, s62, {HF:#x}")
        A(f"s_add_u32 s63, s63, {HF:#x}")
        A("s_sub_u32 s64, s21, 6")
        A("s_mul_i32 s64, s64, 9")
        A("s_lshl_b32 s65, s61, 2")
        A("s_add_u32 s65, s65, s64")
        C1, C3, ONE, TT = 144, 146, 148, 152
        c1 = -2*0.7978845608028654*LOG2E
        for r, v in ((C1, c1), (C3, c1*0.044715), (ONE, 1.0)):
            A(f"v_mov_b32 v{r}, {f2u(v):#x}")
            A(f"v_mov_b32 v{r+1}, {f2u(v):#x}")
        for (tile, lu, lt) in tiles:
            a = 16*tile
            for i in range(4): A(f"v_pk_mul_f32 {vr(TT+2*i,2)}, {vr(a+2*i,2)}, {vr(a+2*i,2)}")
            for i in range(4): A(f"v_pk_fma_f32 {vr(TT+2*i,2)}, {vr(TT+2*i,2)}, {vr(C3,2)}, {vr(C1,2)}")
            for i in range(4): A(f"v_pk_mul_f32 {vr(TT+2*i,2)}, {vr(TT+2*i,2)}, {vr(a+2*i,2)}")
            for i in range(8): A(f"v_exp_f32 v{TT+i}, v{TT+i}")
            for i in range(4): A(f"v_pk_mul_f32 {vr(a+2*i,2)}, {vr(a+2*i,2)}, {vr(a+8+2*i,2)}")
            for i in range(4): A(f"v_pk_add_f32 {vr(TT+2*i,2)}, {vr(TT+2*i,2)}, {vr(ONE,2)}")
            for i in range(8): A(f"v_rcp_f32 v{TT+i}, v{TT+i}")
            if lu == 4: A("s_add_u32 s66, s64, 8")
            else: A(f"s_add_u32 s66, s65, {lu}")
            for i in range(4): A(f"v_pk_mul_f32 {vr(a+2*i,2)}, {vr(a+2*i,2)}, {vr(TT+2*i,2)}")
            A("s_lshl_b32 s67, s66, 10")
            A(f"s_add_u32 s67, s67, s{62+lt}")
            A(f"s_cmp_lt_u32 s66, {NFU}")
            A("s_cselect_b32 s67, s67, 0x7fff0000")
            for i in range(4): A(f"v_cvt_pk_bf16_f32 v{a+i}, v{a+2*i}, v{a+2*i+1}")
            A(f"buffer_store_dwordx4 {vr(a,4)}, v{VO}, {sr(S_WS,4)}, s67 offen sc1")
        stamp(A, 4)

def gen_loader(A):
    VW = 128; VX = 137; DW = 164; S1 = 140; S2 = 144; RR = 148; MR = 152; T = 156
    xreg = lambda c, i: (i*8 + c)*4
    A("s_sub_u32 s60, s22, 4")
    if OPT["lprio"]: A(f"s_setprio {OPT['lprio']}")
    A(f"v_lshrrev_b32 v{T}, 3, v{L}")
    A(f"v_and_b32 v{T+1}, 7, v{L}")
    A(f"v_lshlrev_b32 v{VX}, 10, v{T}")
    A(f"v_lshl_add_u32 v{VX}, v{T+1}, 4, v{VX}")
    A("s_lshl_b32 s61, s20, 17")
    A("s_lshl_b32 s62, s60, 15")
    A("s_add_u32 s61, s61, s62")
    A("s_and_b32 s79, s20, 3" if OPT["rotk"] else "s_mov_b32 s79, 0")
    A("s_bfe_u32 s80, s21, 0x20001")
    for i in range(4):
        A(f"s_add_u32 s{81+i}, s79, {i}")
        A(f"s_and_b32 s{81+i}, s{81+i}, 3")
        A(f"s_lshl_b32 s{81+i}, s{81+i}, 8")
        A(f"s_add_u32 s{81+i}, s{81+i}, s61")
        A(f"s_add_u32 s{85+i}, s80, {i}")
        A(f"s_and_b32 s{85+i}, s{85+i}, 3")
    def xload(i):
        A(f"s_lshl_b32 s89, s{85+i}, 13")
        for c in range(8):
            if not c & 1: A(f"s_add_u32 s90, s89, s{81+(c>>1)}")
            A(f"buffer_load_dwordx4 {vr(xreg(c,i),4)}, v{VX}, {sr(S_X,4)}, s90 offen offset:{(c&1)*128}")
    xload(0); xload(1)
    A("s_lshr_b32 s62, s60, 1")
    A("s_and_b32 s63, s60, 1")
    A("s_cmp_lt_u32 s21, 6")
    A("s_cbranch_scc1 LL_Q")
    A("s_cmp_eq_u32 s63, 0")
    A(f"s_cselect_b32 s{S_W}, s12, s14")
    A(f"s_cselect_b32 s{S_W+1}, s13, s15")
    A(f"s_mov_b32 s{S_W+2}, {512*1376*2:#x}")
    A("s_sub_u32 s64, s21, 6")
    A(f"s_mul_i32 s64, s64, {9*32}")
    A("s_mov_b32 s65, 2752")
    for i in range(9):
        A(f"v_add_u32 v{T+2}, {64*i}, v{L}")
        A(f"v_mul_u32_u24 v{T+3}, 911, v{T+2}")
        A(f"v_lshrrev_b32 v{T+3}, 16, v{T+3}")
        A(f"v_mul_u32_u24 v{T+4}, 72, v{T+3}")
        A(f"v_sub_u32 v{T+4}, v{T+2}, v{T+4}")
        A(f"v_bfe_u32 v{T+5}, v{T+4}, 1, 2")
        A(f"v_lshl_add_u32 v{T+5}, v{T+3}, 2, v{T+5}")
        A(f"v_mul_u32_u24 v{T+5}, s65, v{T+5}")
        A(f"v_lshrrev_b32 v{T+6}, 3, v{T+4}")
        A(f"v_lshl_add_u32 v{T+5}, v{T+6}, 5, v{T+5}")
        A(f"v_and_b32 v{T+6}, 1, v{T+4}")
        A(f"v_lshl_add_u32 v{T+5}, v{T+6}, 4, v{T+5}")
        A(f"v_add_u32 v{VW+i}, s64, v{T+5}")
    A(f"s_mul_i32 s66, s63, {UPOFF}")
    A(f"s_mov_b32 s68, {32*2752}")
    A("s_mov_b32 s69, 1.0")
    A("s_branch LL_C")
    A.lab("LL_Q")
    A(f"s_mov_b32 s{S_W}, s6")
    A(f"s_mov_b32 s{S_W+1}, s7")
    A(f"s_mov_b32 s{S_W+2}, {512*1536*2:#x}")
    A(f"v_lshrrev_b32 v{T+3}, 4, v{L}")
    A(f"v_mul_u32_u24 v{T+2}, 3072, v{T+3}")
    A(f"v_bfe_u32 v{T+4}, v{L}, 2, 2")
    A(f"v_xor_b32 v{T+4}, v{T+4}, v{T+3}")
    A(f"v_lshl_add_u32 v{T+2}, v{T+4}, 6, v{T+2}")
    A(f"v_and_b32 v{T+3}, 3, v{L}")
    A(f"v_lshl_add_u32 v{T+2}, v{T+3}, 4, v{T+2}")
    A("s_lshl_b32 s64, s21, 9")
    A("s_lshl_b32 s65, s63, 8")
    A("s_add_u32 s64, s64, s65")
    A(f"v_add_u32 v{VW}, s64, v{T+2}")
    for i in range(1, 8): A(f"v_add_u32 v{VW+i}, {i*4*3072}, v{VW}")
    A(f"v_mov_b32 v{VW+8}, 0x7fff0000")
    A(f"s_mul_i32 s66, s63, {UPOFF}")
    A(f"s_mov_b32 s68, {32*3072}")
    A("s_cmp_lt_u32 s21, 2")
    A(f"s_cselect_b32 s69, {f2u(0.25*LOG2E):#x}, 1.0")
    A.lab("LL_C")
    A(f"s_mov_b32 s{S_W+3}, 0x00020000")
    A(f"s_mul_i32 s71, s62, {WSL}")
    A("s_add_u32 s71, s71, s66")
    A(f"s_add_u32 s71, s71, {WR}")
    A("s_mov_b32 s72, s71")
    A(f"s_add_u32 s73, s71, {6*WSL}")
    A("s_lshl_b32 s74, s79, 2")
    A("s_add_u32 s74, s74, s62")
    A("s_mul_i32 s74, s74, s68")
    A("s_lshl_b32 s68, s68, 1")
    A(f"v_lshrrev_b32 v{T+2}, 4, v{L}")
    A(f"v_xor_b32 v{T+2}, v{T+2}, v{T+1}")
    A(f"v_lshlrev_b32 v{T+3}, 7, v{T}")
    A("s_lshl_b32 s64, s60, 12")
    A(f"v_add_u32 v{T+3}, s64, v{T+3}")
    A(f"v_lshl_add_u32 v{T+3}, v{T+2}, 4, v{T+3}")
    for i in range(4):
        A(f"s_and_b32 s64, s{85+i}, 1")
        A("s_lshl_b32 s64, s64, 6")
        A(f"s_lshl_b32 s65, s{85+i}, 10")
        A("s_or_b32 s64, s64, s65")
        A(f"v_xor_b32 v{DW+i}, s64, v{T+3}")
    for r in range(S1, S2+4): A(f"v_mov_b32 v{r}, 0")
    A("s_mov_b32 s78, 0x3f803f80")
    def norm(c, i):
        x = xreg(c, i); r = []
        for d in range(4):
            r.append(f"v_lshlrev_b32 v{T+2*d}, 16, v{x+d}")
            r.append(f"v_and_b32 v{T+2*d+1}, 0xffff0000, v{x+d}")
        for d in range(8): r.append(f"v_fma_f32 v{T+d}, v{T+d}, v{RR+i}, -v{MR+i}")
        for d in range(4): r.append(f"v_cvt_pk_bf16_f32 v{x+d}, v{T+2*d}, v{T+2*d+1}")
        r.append(f"ds_write_b128 v{DW+i}, {vr(x,4)} offset:{(c&1)*16384}")
        return r
    def dma():
        g = []
        for i in range(9):
            g.append([f"s_add_u32 m0, s72, {i*1024}", "s_nop 0",
                      f"buffer_load_dwordx4 v{VW+i}, {sr(S_W,4)}, s74 offen lds"])
        g[-1] += ["s_add_u32 s74, s74, s68", f"s_add_u32 s72, s72, {2*WSL}", "s_cmp_eq_u32 s72, s73", "s_cselect_b32 s72, s71, s72"]
        return g
    def mix(work, groups, every):
        groups = list(groups)
        for n, w in enumerate(work):
            if groups and n % every == 0:
                for x in groups.pop(0): A(x)
            A(w)
        for g in groups:
            for x in g: A(x)
    def dots(i):
        r = []
        for k in range(32):
            r.append(f"v_dot2c_f32_bf16 v{S2+i}, v{xreg(0,i)+k}, v{xreg(0,i)+k}")
            r.append(f"v_dot2c_f32_bf16 v{S1+i}, s78, v{xreg(0,i)+k}")
        return r
    xload(2)
    A("s_waitcnt vmcnt(16)"); stamp(A, 16)
    for x in dots(0): A(x)
    xload(3)
    A("s_waitcnt vmcnt(16)"); stamp(A, 17)
    mix(dots(1), dma(), 7)
    A("s_waitcnt vmcnt(17)"); stamp(A, 18)
    for x in dots(2): A(x)
    A("s_waitcnt vmcnt(9)"); stamp(A, 19)
    mix(dots(3), dma(), 7)
    A("s_nop 2")
    for ctl in ("quad_perm:[1,0,3,2]", "quad_perm:[2,3,0,1]", "row_half_mirror"):
        for r in range(S1, S2+4):
            A(f"v_add_f32_dpp v{r}, v{r}, v{r} {ctl} row_mask:0xf bank_mask:0xf")
    seq = [
        lambda i: f"v_mul_f32 v{S1+i}, {f2u(1/512):#x}, v{S1+i}",
        lambda i: f"v_mul_f32 v{S2+i}, {f2u(1/512):#x}, v{S2+i}",
        lambda i: f"v_fma_f32 v{S2+i}, -v{S1+i}, v{S1+i}, v{S2+i}",
        lambda i: f"v_max_f32 v{S2+i}, 0, v{S2+i}",
        lambda i: f"v_cvt_pk_bf16_f32 v{S2+i}, v{S1+i}, v{S2+i}",
        lambda i: f"v_lshlrev_b32 v{S1+i}, 16, v{S2+i}",
        lambda i: f"v_and_b32 v{S2+i}, 0xffff0000, v{S2+i}",
        lambda i: f"v_add_f32 v{S2+i}, {f2u(1e-5):#x}, v{S2+i}",
        lambda i: f"v_cvt_pk_bf16_f32 v{S2+i}, v{S2+i}, v{S2+i}",
        lambda i: f"v_and_b32 v{S2+i}, 0xffff0000, v{S2+i}",
        lambda i: f"v_sqrt_f32 v{S2+i}, v{S2+i}",
        lambda i: f"v_cvt_pk_bf16_f32 v{S2+i}, v{S2+i}, v{S2+i}",
        lambda i: f"v_and_b32 v{S2+i}, 0xffff0000, v{S2+i}",
        lambda i: f"v_rcp_f32 v{RR+i}, v{S2+i}",
        lambda i: f"v_mul_f32 v{RR+i}, s69, v{RR+i}",
        lambda i: f"v_mul_f32 v{MR+i}, v{S1+i}, v{RR+i}",
    ]
    for f in seq:
        for i in range(4): A(f(i))
    stamp(A, 1)
    for i in range(4):
        for x in norm(0, i): A(x)
    stamp(A, 2)
    for m in range(8):
        A(f"s_waitcnt vmcnt({9 if m < 7 else 0}) lgkmcnt(0)")
        if m == 7:
            A("v_cmp_ne_u32 vcc, 1, v97")
            A("s_cmp_eq_u64 vcc, 0")
            A("s_cbranch_scc1 LL_POLL0_OK")
            spin_global(A, "LL_POLL0", 96, ["v_cmp_ne_u32 vcc, 1, v97", "s_cmp_eq_u64 vcc, 0"], S_DBG)
        A("s_barrier")
        if m == 7: break
        if m == 6:
            A("v_mov_b32 v96, 0")
            A(f"buffer_load_dword v97, v96, {sr(S_DBG,4)}, 0 offen sc1")
        work = sum((norm(m+1, i) for i in range(4)), [])
        mix(work, dma() if m < 6 else [], OPT["dmaevery"])
    A("s_barrier")
    stamp(A, 3)
    A("s_cmp_lg_u32 s60, 0")
    A("s_cbranch_scc1 LL_WAITGO")
    A(f"v_min_u32 v96, 47, v{L}")
    A("v_lshlrev_b32 v96, 7, v96")
    A("s_bfe_u32 s64, s2, 0x10004")
    A("s_and_b32 s65, s2, 7")
    A("s_lshl_b32 s65, s65, 1")
    A("s_add_u32 s64, s64, s65")
    A(f"s_mul_i32 s64, s64, {48*128}")
    A(f"s_add_u32 s64, s64, {QFLAG:#x}")
    spin_global(A, "LL_POLL", 96, ["v_cmp_eq_u32 vcc, 0, v97", "s_cmp_eq_u64 vcc, 0"], S_WS, "s64")
    A(f"v_mov_b32 v96, {SW}")
    A("v_mov_b32 v97, 1")
    A("ds_write_b32 v96, v97 offset:4")
    A("s_branch LL_GO")
    A.lab("LL_WAITGO")
    A(f"v_mov_b32 v96, {SW}")
    A(f"s_mov_b32 s70, {SPIN_MAX*16}")
    A.lab("LL_WG1")
    A("ds_read_b32 v97, v96 offset:4")
    A("s_waitcnt lgkmcnt(0)")
    A("v_readfirstlane_b32 s65, v97")
    A("s_cmp_lg_u32 s65, 0")
    A("s_cbranch_scc1 LL_GO")
    A("s_sleep 1")
    A("s_sub_u32 s70, s70, 1")
    A("s_cmp_lg_u32 s70, 0")
    A("s_cbranch_scc1 LL_WG1")
    A.lab("LL_GO")
    stamp(A, 4)
    A(f"v_lshlrev_b32 v95, 4, v{L}")
    A("s_and_b32 s64, s2, 31")
    A("s_lshl_b32 s64, s64, 16")
    A("s_lshl_b32 s65, s60, 11")
    A("s_add_u32 s64, s64, s65")
    A("s_lshr_b32 s66, s2, 5")
    A("s_lshl_b32 s66, s66, 13")
    A("s_add_u32 s66, s66, s64")
    A(f"s_add_u32 m0, s65, {QOFF}")
    A(f"s_add_u32 s67, s64, {KF:#x}")
    A(f"buffer_load_dwordx4 v95, {sr(S_WS,4)}, s66 offen sc1 lds")
    A(f"buffer_load_dwordx4 v95, {sr(S_WS,4)}, s66 offen offset:1024 sc1 lds")
    A(f"s_add_u32 s68, s64, {VF:#x}")
    A("s_mov_b32 s69, 0")
    A.lab("LL_KV")
    A("s_mov_b32 m0, s65")
    A("s_add_u32 s69, s69, 1")
    A(f"buffer_load_dwordx4 v95, {sr(S_WS,4)}, s67 offen sc1 lds")
    A(f"buffer_load_dwordx4 v95, {sr(S_WS,4)}, s67 offen offset:1024 sc1 lds")
    A("s_add_u32 m0, s65, 65536")
    A("s_add_u32 s67, s67, 8192")
    A(f"buffer_load_dwordx4 v95, {sr(S_WS,4)}, s68 offen sc1 lds")
    A(f"buffer_load_dwordx4 v95, {sr(S_WS,4)}, s68 offen offset:1024 sc1 lds")
    A("s_add_u32 s68, s68, 8192")
    A("s_add_u32 s65, s65, 8192")
    A("s_cmp_lt_u32 s69, 2")
    A("s_cbranch_scc1 LL_KV")

S_ = [0, 16]; C_ = 32; O_ = 48; Q_ = 64; KB = [68, 72]; V0 = [76, 80]; V1 = [84, 88]
IDX, KA, VA, L16 = 92, 93, 94, 95
DACC = 104; DBUF = 136; WO = 184; XV = 248

def down_loads(A, slot):
    b = DBUF + 12*slot
    A(f"buffer_load_dwordx4 {vr(b,4)}, v{L16}, {sr(S_T1,4)}, s84 offen sc1")
    A(f"buffer_load_dwordx4 {vr(b+4,4)}, v{L16}, {sr(S_T2,4)}, s85 offen sc1")
    A(f"buffer_load_dwordx4 {vr(b+8,4)}, v{L16}, {sr(S_T2,4)}, s85 offen offset:1024 sc1")
    A("s_add_u32 s84, s84, 1024")
    A("s_add_u32 s85, s85, 2048")

def attn_body(A, mode):
    for t in range(8):
        p = t & 1
        down = mode == "B" or (mode == "C" and t < 4)
        cur, prv = S_[p], S_[1-p]
        ex = lambda a, b: [A(f"v_exp_f32 v{cur+i}, v{cur+i}") for i in range(a, b)]
        if p == 0: A(f"s_setprio {3 - (t >> 1)}")
        A("s_waitcnt lgkmcnt(3)")
        ex(0, 2)
        A(f"v_smfmac_f32_32x32x32_bf16 {vr(O_,16)}, {vr(V1[1-p],4)}, {vr(prv+8,8)}, v{IDX}")
        ex(2, 6 if down else 7)
        A(f"v_mfma_f32_32x32x16_bf16 {vr(prv,16)}, {vr(KB[1-p],4)}, {vr(Q_,4)}, {vr(C_,16)}")
        A(f"ds_read_b128 {vr(KB[1-p],4)}, v{KA} offset:{(t+3)*1024}")
        ex(6 if down else 7, 10 if down else 12)
        A(f"v_smfmac_f32_32x32x32_bf16 {vr(O_,16)}, {vr(V0[p],4)}, {vr(cur,8)}, v{IDX}")
        A("s_mov_b64 exec, s[80:81]")
        A(f"ds_read_b128 {vr(V0[p],4)}, v{VA} offset:{(t+2)*1024}")
        A(f"ds_read_b128 {vr(V1[1-p],4)}, v{VA} offset:{(t+1)*1024+512}")
        A("s_mov_b64 exec, -1")
        if down:
            ex(10, 14)
            b = DBUF + 12*(t >> 1)
            if p == 0: A(f"s_waitcnt vmcnt({14 if (mode == 'C' and t == 2) else 9})")
            A(f"v_mfma_f32_32x32x16_bf16 {vr(DACC+16*p,16)}, {vr(b+4+4*p,4)}, {vr(b,4)}, {vr(DACC+16*p,16)}")
            if mode == "B" and p == 1: down_loads(A, t >> 1)
            if mode == "C":
                for i in range(4):
                    A(f"buffer_load_dwordx4 {vr(WO+16*t+4*i,4)}, v{L16}, {sr(S_WS,4)}, s90 offen offset:{i*1024} sc1")
                A("s_add_u32 s90, s90, 4096")
                if t == 3: A(f"buffer_load_dwordx4 {vr(XV,4)}, v252, {sr(S_X,4)}, s88 offen")
            ex(14, 16)
        else:
            ex(12, 16)
            if mode == "A" and t in (1, 3, 5):
                A("s_cmp_lt_u32 s83, s82" if t != 1 else "s_cmp_le_u32 s83, s67")
                A(f"s_cbranch_scc0 L_HK{t}")
                A(f"s_call_b64 s[76:77], {'L_H1' if t == 1 else 'L_KV'}")
                A.lab(f"L_HK{t}")
            if mode == "A" and t == 4:
                A("s_cmp_eq_u32 s83, s89")
                A("s_cbranch_scc1 L_P23")
                A.lab("L_P23_RET")
    if mode != "C":
        A(f"v_add_u32 v{KA}, 8192, v{KA}")
        A(f"v_add_u32 v{VA}, 8192, v{VA}")
        A("s_add_u32 s83, s83, 1")

def gen_attn(A):
    A(f"v_lshlrev_b32 v{L16}, 4, v{L}")
    A("s_waitcnt lgkmcnt(0)")
    for r in range(76, 92): A(f"v_mov_b32 v{r}, 0")
    A("s_mov_b32 s80, 0x00110000")
    A("s_mov_b32 s81, 0x00110000")
    A("s_mov_b64 exec, s[80:81]")
    for r in range(76, 92): A(f"v_mov_b32 v{r}, 0x3f803f80")
    A("s_mov_b64 exec, -1")
    A(f"v_mov_b32 v{IDX}, 0xdddd")
    A("s_mov_b32 s80, 0xffff")
    A("s_mov_b32 s81, 0xffff")
    A("s_mov_b32 s78, 1")
    A(f"s_mov_b32 s79, {f2u(OPT['bias']):#x}")
    A("s_mov_b32 s82, 1")
    A("s_mov_b32 s67, 1")
    A("s_mov_b32 s89, 1")
    A("s_mov_b32 s86, 2")
    A(f"v_and_b32 v98, 15, v{L}")
    A("v_lshlrev_b32 v98, 4, v98")
    A(f"v_lshrrev_b32 v99, 5, v{L}")
    A("v_lshl_or_b32 v98, v99, 8, v98")
    A("v_add_u32 v98, 65536, v98")
    A("s_lshl_b32 s60, s22, 10")
    A(f"s_add_u32 s60, s60, {QOFF}")
    A(f"v_add_u32 v99, s60, v{L16}")
    for r in range(32): A(f"v_mov_b32 v{DACC+r}, 0")
    stamp(A, 5)
    A("s_and_b32 s94, s2, 31")
    A("s_lshl_b32 s94, s94, 16")
    A("s_lshl_b32 s95, s22, 10")
    A("s_add_u32 s95, s95, 16384")
    A("s_add_u32 s94, s94, s95")
    A(f"s_add_u32 s94, s94, {KF:#x}")
    A("s_cmp_lt_u32 s22, 4")
    A("s_cbranch_scc1 L_P0")
    A("s_waitcnt vmcnt(0)")
    A.lab("L_P0")
    A("s_barrier")
    stamp(A, 6)
    A(f"ds_read_b128 {vr(Q_,4)}, v99")
    A.lab("L_RUN")
    A(f"v_mov_b32 v{KA}, v{L16}")
    A("v_mov_b32 v100, 0xff800000")
    A.lab("L_MAXLOOP")
    A(f"ds_read_b128 {vr(KB[0],4)}, v{KA}")
    A(f"ds_read_b128 {vr(KB[1],4)}, v{KA} offset:1024")
    A(f"v_add_u32 v{KA}, 2048, v{KA}")
    A("s_waitcnt lgkmcnt(1)")
    A(f"v_mfma_f32_32x32x16_bf16 {vr(S_[0],16)}, {vr(KB[0],4)}, {vr(Q_,4)}, 0")
    A("s_waitcnt lgkmcnt(0)")
    A(f"v_mfma_f32_32x32x16_bf16 {vr(S_[1],16)}, {vr(KB[1],4)}, {vr(Q_,4)}, 0")
    A("s_nop 10")
    for i in range(16): A(f"v_max3_f32 v100, v{2*i}, v{2*i+1}, v100")
    A("s_sub_u32 s78, s78, 1")
    A("s_cmp_lg_u32 s78, 0")
    A("s_cbranch_scc1 L_MAXLOOP")
    A(f"v_mov_b32 v{KA}, v{L16}")
    A(f"v_mov_b32 v{VA}, v98")
    A(f"ds_read_b128 {vr(KB[0],4)}, v{KA}")
    A(f"ds_read_b128 {vr(KB[1],4)}, v{KA} offset:1024")
    A("s_mov_b64 exec, s[80:81]")
    A(f"ds_read_b128 {vr(V0[0],4)}, v{VA}")
    A("s_mov_b64 exec, -1")
    A("v_mov_b32 v101, v100")
    A("s_nop 1")
    A("v_permlane32_swap_b32 v100, v101")
    A("s_nop 1")
    A("v_max_f32 v100, v100, v101")
    A("v_add_f32 v100, s79, v100")
    for r in range(16): A(f"v_sub_f32 v{C_+r}, 0, v100")
    for r in range(16): A(f"v_mov_b32 v{O_+r}, 0")
    for r in range(8, 16): A(f"v_mov_b32 v{S_[1]+r}, 0")
    A("s_waitcnt lgkmcnt(2)")
    A(f"v_mfma_f32_32x32x16_bf16 {vr(S_[0],16)}, {vr(KB[0],4)}, {vr(Q_,4)}, {vr(C_,16)}")
    A(f"ds_read_b128 {vr(KB[0],4)}, v{KA} offset:2048")
    A("s_mov_b64 exec, s[80:81]")
    A(f"ds_read_b128 {vr(V0[1],4)}, v{VA} offset:1024")
    A(f"ds_read_b128 {vr(V1[0],4)}, v{VA} offset:512")
    A("s_mov_b64 exec, -1")
    A("s_mov_b32 s83, 0")
    stamp(A, 7)
    A("s_nop 6")
    A.raw(".p2align 6")
    A.lab("L_LOOPA")
    attn_body(A, "A")
    A("s_cmp_lt_u32 s83, s86")
    A("s_cbranch_scc1 L_LOOPA")
    A("s_cmp_eq_u32 s82, 0")
    A("s_cbranch_scc1 L_ATT_DONE")
    A.lab("L_LOOPB")
    attn_body(A, "B")
    A("s_cmp_lt_u32 s83, 7")
    A("s_cbranch_scc1 L_LOOPB")
    attn_body(A, "C")
    A.lab("L_ATT_DONE")
    A("s_waitcnt lgkmcnt(0)")
    stamp(A, 10)
    A(f"v_smfmac_f32_32x32x32_bf16 {vr(O_,16)}, {vr(V1[1],4)}, {vr(S_[1]+8,8)}, v{IDX}")
    A("s_lshr_b32 s60, s2, 5")
    A("s_lshl_b32 s60, s60, 3")
    A("s_add_u32 s60, s60, s22")
    A("s_lshl_b32 s60, s60, 15")
    A("s_and_b32 s61, s2, 31")
    A("s_lshl_b32 s61, s61, 10")
    A("s_add_u32 s60, s60, s61")
    A(f"s_add_u32 s60, s60, {OF:#x}")
    A("s_nop 5")
    A(f"v_rcp_f32 v101, v{O_+8}")
    A(f"v_add_f32 v100, abs(v{O_}), abs(v{O_+1})")
    for r in range(2, 8): A(f"v_add_f32 v100, v100, abs(v{O_+r})")
    A("s_cmp_eq_u32 s82, 0")
    A("s_cbranch_scc1 L_FIN")
    A(f"v_mov_b32 v102, {f2u(2.0**120):#x}")
    A(f"v_cmp_nlt_f32 s[62:63], v{O_+8}, v102")
    A("v_cmp_nlt_f32 s[64:65], v100, v102")
    A(f"v_mov_b32 v102, {f2u(2.0**-100):#x}")
    A("v_cmp_lt_f32 vcc, v100, v102")
    A("s_or_b64 s[62:63], s[62:63], s[64:65]")
    A("s_or_b64 s[62:63], s[62:63], vcc")
    A("s_cmp_eq_u64 s[62:63], 0")
    if not OPT["force_fallback"]: A("s_cbranch_scc1 L_FIN")
    A("s_mov_b32 s78, 32")
    A("s_mov_b32 s79, 0")
    A("s_mov_b32 s82, 0")
    A("s_mov_b32 s89, 99")
    A("s_mov_b32 s86, 8")
    A("s_branch L_RUN")
    A.lab("L_FIN")
    for r in range(8): A(f"v_mul_f32 v{O_+r}, v{O_+r}, v101")
    for i in range(4): A(f"v_cvt_pk_bf16_f32 v{O_+i}, v{O_+2*i}, v{O_+2*i+1}")
    A(f"buffer_store_dwordx4 {vr(O_,4)}, v{L16}, {sr(S_WS,4)}, s60 offen sc1")

def red_addr(A):
    A("s_and_b32 s60, s22, 1")
    A("s_lshr_b32 s61, s22, 1")
    A("s_lshl_b32 s60, s60, 15")
    A("s_lshl_b32 s62, s61, 11")
    A("s_add_u32 s62, s62, s60")
    A(f"v_add_u32 v102, s62, v{L16}")
    A("s_lshl_b32 s62, s61, 13")
    A("s_add_u32 s62, s62, s60")
    A(f"v_add_u32 v103, s62, v{L16}")
def red_write(A, acc):
    for q in range(4):
        for hf in range(2):
            A(f"ds_write_b128 v102, {vr(acc+8*q+4*hf,4)} offset:{q*8192 + hf*1024}")
def red_read(A, dst):
    for s in range(4):
        for hf in range(2):
            A(f"ds_read_b128 {vr(dst+8*s+4*hf,4)}, v103 offset:{s*2048 + hf*1024}")
def red_sum(A, dst):
    for r in range(8):
        A(f"v_add_f32 v{dst+r}, v{dst+r}, v{dst+8+r}")
        A(f"v_add_f32 v{dst+16+r}, v{dst+16+r}, v{dst+24+r}")
    for r in range(8): A(f"v_add_f32 v{dst+r}, v{dst+r}, v{dst+16+r}")
def round_bf16(A, regs, tmp):
    for i in range(4): A(f"v_cvt_pk_bf16_f32 v{tmp+i}, v{regs+2*i}, v{regs+2*i+1}")
    for i in range(4):
        A(f"v_lshlrev_b32 v{regs+2*i}, 16, v{tmp+i}")
        A(f"v_and_b32 v{regs+2*i+1}, 0xffff0000, v{tmp+i}")

def gen_final(A):
    red_addr(A)
    A("s_waitcnt vmcnt(0)")
    A("s_barrier")
    stamp(A, 11)
    A("s_cmp_lg_u32 s22, 0")
    A("s_cbranch_scc1 L_X1B")
    A("s_lshl_b32 s60, s2, 7")
    A(f"s_add_u32 s60, s60, {OFLAG:#x}")
    A("s_mov_b64 exec, 1")
    A("v_mov_b32 v96, 1")
    A("v_mov_b32 v97, 0")
    A(f"buffer_store_dword v96, v97, {sr(S_WS,4)}, s60 offen sc1")
    A("s_mov_b64 exec, -1")
    A.lab("L_X1B")
    red_write(A, DACC)
    A("s_cmp_lg_u32 s22, 0")
    A("s_cbranch_scc1 L_X2")
    A("s_and_b32 s60, s2, 7")
    A("s_lshl_b32 s60, s60, 12")
    A(f"s_add_u32 s60, s60, {OFLAG:#x}")
    A(f"v_and_b32 v96, 31, v{L}")
    A("v_lshlrev_b32 v96, 7, v96")
    spin_global(A, "L_OPOLL", 96, ["v_cmp_ne_u32 vcc, 1, v97", "s_cmp_eq_u64 vcc, 0"], S_WS, "s60")
    A.lab("L_X2")
    A("s_waitcnt lgkmcnt(0)")
    A("s_barrier")
    stamp(A, 12)
    for s in range(8):
        A(f"buffer_load_dwordx4 {vr(4*s,4)}, v{L16}, {sr(S_WS,4)}, s87 offen offset:{(s&3)*1024} sc1")
        if s == 3: A("s_add_u32 s87, s87, 4096")
    G = DACC
    red_read(A, G)
    A("v_add_u32 v102, 65536, v102")
    A("v_add_u32 v103, 65536, v103")
    A("s_waitcnt lgkmcnt(0)")
    red_sum(A, G)
    T = 64
    round_bf16(A, G, T)
    for r in range(8): A(f"v_mul_f32 v{T+r}, {f2u(-LOG2E):#x}, v{G+r}")
    for r in range(8): A(f"v_exp_f32 v{T+r}, v{T+r}")
    for r in range(8): A(f"v_add_f32 v{T+r}, 1.0, v{T+r}")
    for r in range(8): A(f"v_rcp_f32 v{T+r}, v{T+r}")
    for r in range(8): A(f"v_mul_f32 v{G+r}, v{G+r}, v{T+r}")
    round_bf16(A, G, T)
    ACC = 32
    for s in range(8):
        A(f"s_waitcnt vmcnt({7-s})")
        for nt in range(2):
            c = "0" if s == 0 else vr(ACC+16*nt,16)
            A(f"v_mfma_f32_32x32x16_bf16 {vr(ACC+16*nt,16)}, {vr(WO+8*s+4*nt,4)}, {vr(4*s,4)}, {c}")
    stamp(A, 13)
    A("s_nop 15")
    red_write(A, ACC)
    A("s_waitcnt lgkmcnt(0)")
    A("s_barrier")
    red_read(A, 0)
    for i in range(4):
        A(f"v_lshlrev_b32 v{72+2*i}, 16, v{XV+i}")
        A(f"v_and_b32 v{73+2*i}, 0xffff0000, v{XV+i}")
    A("s_waitcnt lgkmcnt(0)")
    red_sum(A, 0)
    round_bf16(A, 0, T)
    for r in range(8): A(f"v_mul_f32 v{r}, v{r}, v{G+r}")
    for i in range(4): A(f"v_cvt_pk_bf16_f32 v{T+i}, v{2*i}, v{2*i+1}")
    A("s_nop 1")
    A(f"v_permlane32_swap_b32 v{T}, v{T+2}")
    A(f"v_permlane32_swap_b32 v{T+1}, v{T+3}")
    A("s_nop 1")
    for i in range(4):
        A(f"v_lshlrev_b32 v{2*i}, 16, v{T+i}")
        A(f"v_and_b32 v{2*i+1}, 0xffff0000, v{T+i}")
    for r in range(8): A(f"v_add_f32 v{r}, v{r}, v{72+r}")
    for i in range(4): A(f"v_cvt_pk_bf16_f32 v{T+i}, v{2*i}, v{2*i+1}")
    A(f"buffer_store_dwordx4 {vr(T,4)}, v252, {sr(S_OUT,4)}, s88 offen")
    if OPT["prof"]:
        A("s_waitcnt vmcnt(0)")
        stamp(A, 14)
        A(f"s_add_u32 s{S_T1}, s18, {PROF_OFF:#x}")
        A(f"s_addc_u32 s{S_T1+1}, s19, 0")
        A(f"s_mov_b32 s{S_T1+2}, 0x100000")
        A(f"s_mov_b32 s{S_T1+3}, 0x00020000")
        A("s_lshl_b32 s60, s2, 3")
        A("s_add_u32 s60, s60, s22")
        A("s_lshl_b32 s60, s60, 8")
        A(f"v_lshlrev_b32 v0, 2, v{L}")
        A(f"buffer_store_dword v255, v0, {sr(S_T1,4)}, s60 offen")

def gen_sync_blocks(A):
    def poll_addr():
        A("s_and_b32 s60, s2, 7")
        A("s_bfe_u32 s61, s2, 0x10004")
        A("s_lshl_b32 s62, s60, 1")
        A("s_add_u32 s61, s61, s62")
        A(f"s_mul_i32 s61, s61, {10*128}")
        A(f"s_add_u32 s61, s61, {HFLAG-32*128:#x}")
        A(f"s_mul_i32 s60, s60, {96*128}")
        A(f"s_add_u32 s60, s60, {QFLAG:#x}")
        A(f"v_lshlrev_b32 v96, 7, v{L}")
        A("v_add_u32 v100, s60, v96")
        A(f"v_add_u32 v101, {64*128}, v100")
        A(f"v_min_u32 v96, {41*128}, v96")
        A("v_add_u32 v96, s61, v96")
        A(f"v_cmp_lt_u32 vcc, 31, v{L}")
        A("s_nop 1")
        A("v_cndmask_b32 v101, v101, v96, vcc")
    def poll_loads():
        A(f"buffer_load_dword v102, v100, {sr(S_WS,4)}, 0 offen sc1")
        A(f"buffer_load_dword v103, v101, {sr(S_WS,4)}, 0 offen sc1")
    A.lab("L_H1")
    A("s_cmp_eq_u32 s82, 0")
    A("s_cbranch_scc1 L_HRET")
    A("s_cmp_eq_u32 s83, 0")
    A("s_cbranch_scc1 L_H1A")
    A("s_cmp_lg_u32 s22, 0")
    A("s_cbranch_scc1 L_HRET")
    poll_addr()
    poll_loads()
    A.lab("L_HRET")
    A("s_setpc_b64 s[76:77]")
    A.lab("L_H1A")
    A("s_cmp_ge_u32 s22, 4")
    A("s_cbranch_scc1 L_KV")
    A("s_waitcnt vmcnt(0)")
    A(f"v_mov_b32 v96, {SW}")
    A("v_mov_b32 v97, 1")
    A("s_mov_b64 exec, 1")
    A("ds_add_rtn_u32 v100, v96, v97 offset:8")
    A("s_waitcnt lgkmcnt(0)")
    A("s_mov_b64 exec, -1")
    A("v_readfirstlane_b32 s60, v100")
    A("s_cmp_lg_u32 s60, 3")
    A("s_cbranch_scc1 L_KV")
    own_flag_store(A, 2, 96)
    A.lab("L_KV")
    for i in range(2):
        A("s_mov_b32 m0, s95")
        A(f"s_add_u32 s60, s94, {VF-KF:#x}")
        A(f"buffer_load_dwordx4 v{L16}, {sr(S_WS,4)}, s94 offen sc1 lds")
        A("s_add_u32 m0, s95, 65536")
        A("s_add_u32 s94, s94, 8192")
        A(f"buffer_load_dwordx4 v{L16}, {sr(S_WS,4)}, s60 offen sc1 lds")
        A("s_add_u32 s95, s95, 8192")
    A("s_setpc_b64 s[76:77]")
    A.lab("L_P23")
    stamp(A, 8)
    A("s_and_b32 s60, s2, 7")
    A("s_bfe_u32 s61, s2, 0x20003")
    A("s_lshl_b32 s60, s60, 2")
    A("s_add_u32 s60, s60, s61")
    A("s_cmp_lg_u32 s22, 0")
    A("s_cbranch_scc1 L_P3B")
    A(f"s_mov_b32 s70, {SPIN_MAX}")
    A.lab("L_HPOLL")
    A("s_waitcnt vmcnt(0)")
    A("v_and_b32 v102, v102, v103")
    A("v_cmp_ne_u32 vcc, 2, v102")
    A("s_cmp_eq_u64 vcc, 0")
    A("s_cbranch_scc1 L_P3B")
    A(f"s_sleep {OPT['sleep']}")
    poll_loads()
    A("s_sub_u32 s70, s70, 1")
    A("s_cmp_lg_u32 s70, 0")
    A("s_cbranch_scc1 L_HPOLL")
    A.lab("L_P3B")
    A("s_lshr_b32 s61, s2, 5")
    A("s_and_b32 s62, s22, 1")
    A("s_lshl_b32 s60, s60, 1")
    A("s_add_u32 s60, s60, s62")
    A("s_lshr_b32 s62, s22, 1")
    A("s_mul_i32 s63, s62, 22")
    A("s_cmp_eq_u32 s62, 3")
    A("s_cselect_b32 s63, 65, s63")
    A("s_cmp_lt_u32 s62, 2")
    A("s_cselect_b32 s64, 22, 21")
    A(f"s_mul_i32 s65, s60, {NFU}")
    A("s_add_u32 s65, s65, s63")
    A("s_lshl_b32 s65, s65, 10")
    A(f"s_add_u32 s65, s65, {HF:#x}")
    A(f"s_add_u32 s{S_T1}, s18, s65")
    A(f"s_addc_u32 s{S_T1+1}, s19, 0")
    A(f"s_lshl_b32 s{S_T1+2}, s64, 10")
    A(f"s_mov_b32 s{S_T1+3}, 0x00020000")
    A(f"s_mul_i32 s65, s61, {NFU}")
    A("s_add_u32 s65, s65, s63")
    A("s_lshl_b32 s65, s65, 11")
    A(f"s_add_u32 s65, s65, {WDF:#x}")
    A(f"s_add_u32 s{S_T2}, s18, s65")
    A(f"s_addc_u32 s{S_T2+1}, s19, 0")
    A(f"s_lshl_b32 s{S_T2+2}, s64, 11")
    A(f"s_mov_b32 s{S_T2+3}, 0x00020000")
    A("s_mov_b32 s84, 0")
    A("s_mov_b32 s85, 0")
    A("s_lshl_b32 s90, s61, 16")
    A("s_lshl_b32 s66, s62, 14")
    A("s_add_u32 s90, s90, s66")
    A(f"s_add_u32 s90, s90, {WOF:#x}")
    A("s_lshl_b32 s87, s60, 15")
    A("s_lshl_b32 s66, s62, 13")
    A("s_add_u32 s87, s87, s66")
    A(f"s_add_u32 s87, s87, {OF:#x}")
    A("s_lshl_b32 s88, s60, 15")
    A("s_lshl_b32 s66, s61, 7")
    A("s_add_u32 s88, s88, s66")
    A("s_lshl_b32 s66, s62, 5")
    A("s_add_u32 s88, s88, s66")
    A(f"v_and_b32 v252, 31, v{L}")
    A("v_lshlrev_b32 v252, 10, v252")
    A(f"v_lshrrev_b32 v96, 5, v{L}")
    A("v_lshl_add_u32 v252, v96, 4, v252")
    A("s_waitcnt vmcnt(0)")
    A("s_barrier")
    stamp(A, 9)
    for slot in range(4): down_loads(A, slot)
    A("s_branch L_P23_RET")

def main(out):
    hdr = open(f"cdna_kernels/{NAME}.s.ref").read().split("\n")
    head = [l for l in hdr if l.startswith(";") and "@launch" not in l]
    head += [f"; @launch grid=(256,1,1) block=(512,1,1) lds={LDS_BYTES}"]
    A = Asm()
    d = gen(A)
    open(out, "w").write("\n".join(head) + '\n.amdgcn_target "amdgcn-amd-amdhsa--gfx950"\n' + A.text() + d)

if __name__ == "__main__":
    for a in sys.argv[2:]:
        k, _, v = a.partition("=")
        OPT[k] = eval(v) if v else True
    main(sys.argv[1] if len(sys.argv) > 1 else f"cdna_kernels/{NAME}.s")
```

```python
import sys, struct

NAME = "recurrent_scan__softmax_full_mha__glu_gated_geglu__prompt"
MB = 1 << 20
QF, KF, VF, OF, WOF, WDF, HF, FLAGS = 0, 2*MB, 4*MB, 6*MB, 8*MB, 9*MB, 11*MB, 17*MB
WS_BYTES = 18*MB
NFU = 86
LOG2E = 1.4426950408889634
def f2u(x): return struct.unpack("<I", struct.pack("<f", x))[0]

OPT = dict(prof=False, bias=98.0, force_fallback=False, sleep=2, barpos=1, itstamp=False, hplan=[1,1,1,1,1,1,2,1], sigt=1, spf=False, prefetch=False, dmaevery=12, dbgout=False, fixdur=0, codepf=True, noload=False, bstamp=False, pace=None, wpf=False, exp='', w64=False, lprio=0, enc=-1, cmap=True, prio='ramp2')
PROF_OFF = 24*MB
SPIN_MAX = 20000
VSH = 32

class Asm:
    def __init__(self): self.l = []
    def __call__(self, s): self.l.append(s if s.endswith(":") else "    " + s)
    def many(self, ss):
        for s in ss: self(s)
    def lab(self, s): self.l.append(s + ":")
    def raw(self, s): self.l.append(s)
    def text(self): return "\n".join(self.l) + "\n"
def vr(a, n): return f"v[{a}:{a+n-1}]"
def sr(a, n): return f"s[{a}:{a+n-1}]"
def srd(A, d, base, nbytes):
    A(f"s_mov_b32 s{d}, s{base}")
    A(f"s_mov_b32 s{d+1}, s{base+1}")
    A(f"s_mov_b32 s{d+2}, {nbytes:#x}")
    A(f"s_mov_b32 s{d+3}, 0x00020000")
def csel(A, d, a, b):
    A(f"s_mov_b32 s{d}, {b:#x}")
    A(f"s_cselect_b32 s{d}, {a:#x}, s{d}")
def stamp(A, i):
    if OPT["enc"] == i:
        A("s_memrealtime s[100:101]")
        A("s_waitcnt lgkmcnt(0)")
    if not OPT["prof"]: return
    A("s_memtime s[96:97]")
    A("s_memrealtime s[98:99]")
    A("s_waitcnt lgkmcnt(0)")
    A(f"v_writelane_b32 v255, s96, {i}")
    A(f"v_writelane_b32 v255, s98, {32+i}")

WR = 32768
WSL = 18560
UPOFF = 9344
QOFF = 135168
SCRATCH = 147456
SW = 163584
LDS_BYTES = 163840
OFLAG = FLAGS
QFLAG = OFLAG + 256*128
NZ = 5
S_X, S_W, S_WS, S_DBG, S_OUT, S_T1, S_T2 = 24, 28, 32, 36, 40, 44, 48
L = 254
S_ = [0, 16]; C_ = 32; DACC = 48; Q_ = 80; KB = [84, 88]; O_ = 144; V0 = [160, 164]; V1 = [168, 172]
IDX, KA, VA, L16 = 92, 93, 94, 95
DH = [104, 116, 128, 140]; DW_ = [108, 120, 132, 176]
WO = 184; XV = 248

def spin(A, tag, loads, cmp_lines, first_loaded=False):
    A(f"s_mov_b32 s70, {SPIN_MAX}")
    if not first_loaded: A.many(loads)
    A.lab(tag)
    A("s_waitcnt vmcnt(0)")
    A.many(cmp_lines)
    A(f"s_cbranch_scc1 {tag}_OK")
    A(f"s_sleep {OPT['sleep']}")
    A.many(loads)
    A("s_sub_u32 s70, s70, 1")
    A("s_cmp_lg_u32 s70, 0")
    A(f"s_cbranch_scc1 {tag}")
    A.lab(tag + "_OK")
def apoll(dst, voff, soff, mask):
    return [f"v_mov_b32 v{dst}, 0", f"s_mov_b64 exec, {mask}",
            f"buffer_atomic_add v{dst}, v{voff}, {sr(S_WS,4)}, {soff} offen sc0", "s_mov_b64 exec, -1"]
def acmp(v, n, mask):
    return [f"v_cmp_eq_u32 vcc, {n}, v{v}", f"s_cmp_eq_u64 vcc, {mask}"]
ALL1 = lambda v: [f"v_cmp_ne_u32 vcc, 1, v{v}", "s_cmp_eq_u64 vcc, 0"]

def last_wave_signals(A, tag, off, last):
    A(f"v_mov_b32 v96, {SW}")
    A("v_mov_b32 v97, 1")
    A("s_mov_b64 exec, 1")
    A(f"ds_add_rtn_u32 v100, v96, v97 offset:{off}")
    A("s_waitcnt lgkmcnt(0)")
    A("s_mov_b64 exec, -1")
    A("v_readfirstlane_b32 s60, v100")
    A(f"s_cmp_lg_u32 s60, {last}")
    A(f"s_cbranch_scc1 {tag}")
    A("s_mov_b64 exec, 0xff")
    A(f"v_lshlrev_b32 v96, 10, v{L}")
    A(f"buffer_atomic_add v97, v96, {sr(S_WS,4)}, s91 offen")
    A("s_mov_b64 exec, -1")
    A.lab(tag)

def gen(A):
    name = NAME + "_kernel"
    A.raw(".text"); A.raw(f".globl {name}"); A.raw(".p2align 8"); A.raw(f".type {name},@function")
    A.lab(name)
    A("s_cmp_ge_u32 s2, 256")
    A("s_cbranch_scc1 L_END")
    if OPT["fixdur"]: A("s_memrealtime s[100:101]")
    A("s_load_dwordx4 s[4:7], s[0:1], 0")
    A("s_load_dwordx2 s[8:9], s[0:1], 16")
    A("s_load_dwordx4 s[12:15], s[0:1], 32")
    A("s_load_dwordx4 s[52:55], s[0:1], 48")
    A("s_load_dwordx4 s[56:59], s[0:1], 64")
    if OPT["prof"]: A("v_mov_b32 v255, 0")
    stamp(A, 0)
    A("s_getpc_b64 s[60:61]")
    A.lab("L_PC")
    A("s_lshr_b32 s23, s2, 3")
    A("s_lshl_b32 s62, s23, 11")
    A("v_lshl_add_u32 v250, v0, 7, s62")
    A("v_cmp_gt_u32 s[62:63], 16, v0")
    A("v_cmp_gt_u32 vcc, L_CODE_END-L_PC-4, v250")
    A("v_lshrrev_b32 v252, 6, v0")
    A(f"v_and_b32 v{L}, 63, v0")
    A("s_and_b64 exec, vcc, s[62:63]")
    A("s_cbranch_execz L_NOPF")
    A("v_mov_b32 v251, s61")
    A("v_add_co_u32 v250, vcc, s60, v250")
    A("v_addc_co_u32 v251, vcc, 0, v251, vcc")
    A("global_load_dword v253, v[250:251], off")
    A.lab("L_NOPF")
    A("s_mov_b64 exec, -1")
    A("v_readfirstlane_b32 s22, v252")
    T = TL
    A(f"v_lshrrev_b32 v{T}, 3, v{L}")
    A(f"v_and_b32 v{T+1}, 7, v{L}")
    A(f"v_lshlrev_b32 v{VX}, 10, v{T}")
    A(f"v_lshl_add_u32 v{VX}, v{T+1}, 4, v{VX}")
    A("s_bfe_u32 s20, s2, 0x20001")
    A("s_lshl_b32 s20, s20, 2")
    A("s_and_b32 s60, s23, 3")
    A("s_add_u32 s20, s20, s60")
    A("s_cmp_lt_u32 s22, 4")
    A("s_cbranch_scc1 L_COMMON")
    loader_first(A)
    A.lab("L_COMMON")
    A("s_lshr_b32 s62, s23, 2")
    A("s_and_b32 s63, s2, 1")
    A("s_lshl_b32 s21, s62, 1")
    A("s_add_u32 s21, s21, s63")
    A("s_mul_i32 s63, s63, 5")
    A("s_add_u32 s63, s63, s62")
    A("s_add_u32 s63, s63, 3")
    A("s_cmp_ge_u32 s62, 3")
    A("s_cselect_b32 s21, s63, s21")
    A("s_waitcnt lgkmcnt(0)")
    srd(A, S_X, 4, 2048*512*2)
    A("s_mov_b64 s[16:17], s[52:53]")
    A("s_mov_b64 s[18:19], s[58:59]")
    srd(A, S_WS, 58, WS_BYTES)
    srd(A, S_DBG, 56, 256)
    srd(A, S_OUT, 54, 2048*512*2)
    srd(A, S_T1, 58, 0)
    srd(A, S_T2, 58, 0)
    for r in HOFF: A(f"s_mov_b32 s{r}, 0x7fff0000")
    A("s_cmp_lt_u32 s22, 4")
    A("s_cbranch_scc1 L_COMPUTE")
    gen_loader(A)
    A("s_branch L_P0")
    A.lab("L_COMPUTE")
    gen_init(A)
    A("s_cmp_ge_u32 s21, 6")
    A("s_cbranch_scc1 L_F")
    A("s_cmp_ge_u32 s21, 4")
    A("s_cbranch_scc1 L_V")
    gen_compute(A, "QK")
    A.lab("L_V")
    gen_compute(A, "V")
    A.lab("L_SIGNAL")
    A("s_and_b32 s91, s21, 1")
    A("s_lshl_b32 s91, s91, 7")
    A(f"s_add_u32 s91, s91, {QFLAG:#x}")
    A("s_waitcnt vmcnt(0)")
    last_wave_signals(A, "L_SIG2", 0, 3)
    stamp(A, 15)
    A("s_branch L_P2")
    A.lab("L_F")
    gen_compute(A, "F")
    A.lab("L_P2")
    gen_attn(A)
    gen_final(A)
    A.lab("L_END")
    A("s_endpgm")
    gen_hooks(A)
    return f""".section .rodata,"a"
.p2align 6
.amdhsa_kernel {name}
  .amdhsa_next_free_vgpr 256
  .amdhsa_next_free_sgpr 102
  .amdhsa_accum_offset 256
  .amdhsa_group_segment_fixed_size 0
  .amdhsa_kernarg_size 80
  .amdhsa_user_sgpr_count 2
  .amdhsa_user_sgpr_kernarg_segment_ptr 1
  .amdhsa_system_sgpr_workgroup_id_x 1
.end_amdhsa_kernel
"""

def gen_init(A):
    R = 160
    A("s_cmp_lg_u32 s22, 0")
    A("s_cbranch_scc1 L_INIT1")
    for r in range(R, R+4): A(f"v_mov_b32 v{r}, 0")
    A(f"v_mov_b32 v{R+4}, {SW}")
    A(f"ds_write_b128 v{R+4}, {vr(R,4)}")
    A("s_sub_u32 s61, s2, 128")
    A(f"s_cmp_ge_u32 s61, {NZ}")
    A("s_cbranch_scc1 L_INIT1")
    A(f"v_lshlrev_b32 v{R+4}, 7, v{L}")
    A("s_lshl_b32 s60, s61, 13")
    A(f"s_add_u32 s60, s60, {FLAGS:#x}")
    A(f"buffer_store_dword v{R}, v{R+4}, {sr(S_WS,4)}, s60 offen sc1")
    A("s_nop 1")
    A.lab("L_INIT1")
    for r in range(144): A(f"v_mov_b32 v{r}, 0")
    A("s_call_b64 s[76:77], L_ATTINIT")
    A("s_lshr_b32 s60, s22, 1")
    A("s_and_b32 s61, s22, 1")

VW = 144
def gen_wsetup(A):
    T = 158
    A("s_bfe_u32 s62, s22, 0x10001")
    A("s_and_b32 s63, s22, 1")
    A("s_cmp_lt_u32 s21, 6")
    A("s_cbranch_scc1 LL_Q")
    A("s_cmp_eq_u32 s63, 0")
    A(f"s_cselect_b32 s{S_W}, s12, s14")
    A(f"s_cselect_b32 s{S_W+1}, s13, s15")
    A(f"s_mov_b32 s{S_W+2}, {512*1376*2:#x}")
    A("s_sub_u32 s64, s21, 6")
    A(f"s_mul_i32 s64, s64, {9*32}")
    A("s_mov_b32 s65, 2752")
    for i in range(9):
        A(f"v_add_u32 v{T+2}, {64*i}, v{L}")
        A(f"v_mul_u32_u24 v{T+3}, 911, v{T+2}")
        A(f"v_lshrrev_b32 v{T+3}, 16, v{T+3}")
        A(f"v_mul_u32_u24 v{T+4}, 72, v{T+3}")
        A(f"v_sub_u32 v{T+4}, v{T+2}, v{T+4}")
        A(f"v_bfe_u32 v{T+5}, v{T+4}, 1, 2")
        A(f"v_lshl_add_u32 v{T+5}, v{T+3}, 2, v{T+5}")
        A(f"v_mul_u32_u24 v{T+5}, s65, v{T+5}")
        A(f"v_lshrrev_b32 v{T+6}, 3, v{T+4}")
        A(f"v_lshl_add_u32 v{T+5}, v{T+6}, 5, v{T+5}")
        A(f"v_and_b32 v{T+6}, 1, v{T+4}")
        A(f"v_lshl_add_u32 v{T+5}, v{T+6}, 4, v{T+5}")
        A(f"v_add_u32 v{VW+i}, s64, v{T+5}")
    A(f"v_and_b32 v{T+2}, 3, v{L}")
    A(f"v_min_u32 v{T+2}, 2, v{T+2}")
    A(f"s_mov_b32 s68, {32*2752}")
    A("s_branch LL_C")
    A.lab("LL_Q")
    A(f"s_mov_b32 s{S_W}, s6")
    A(f"s_mov_b32 s{S_W+1}, s7")
    A(f"s_mov_b32 s{S_W+2}, {512*1536*2:#x}")
    A(f"v_lshrrev_b32 v{T+3}, 4, v{L}")
    A(f"v_mul_u32_u24 v{T+2}, 3072, v{T+3}")
    A(f"v_bfe_u32 v{T+4}, v{L}, 2, 2")
    A(f"v_xor_b32 v{T+4}, v{T+4}, v{T+3}")
    A(f"v_lshl_add_u32 v{T+2}, v{T+4}, 6, v{T+2}")
    A(f"v_and_b32 v{T+3}, 3, v{L}")
    A(f"v_lshl_add_u32 v{T+2}, v{T+3}, 4, v{T+2}")
    A("s_lshl_b32 s64, s21, 9")
    A("s_lshl_b32 s65, s63, 8")
    A("s_add_u32 s64, s64, s65")
    A(f"v_add_u32 v{VW}, s64, v{T+2}")
    for i in range(1, 9): A(f"v_add_u32 v{VW+i}, {i*4*3072}, v{VW}")
    A(f"v_and_b32 v{T+2}, 1, v{L}")
    A("s_mov_b32 s65, 3072")
    A(f"s_mov_b32 s68, {32*3072}")
    A.lab("LL_C")
    A("s_and_b32 s66, s20, 3")
    A("s_lshl_b32 s66, s66, 3")
    A(f"v_lshrrev_b32 v{T+3}, 2, v{L}")
    A(f"v_add_u32 v{T+3}, s66, v{T+3}")
    A(f"v_mul_u32_u24 v{T+3}, s65, v{T+3}")
    A(f"v_lshl_add_u32 v{T+3}, v{T+2}, 7, v{T+3}")
    A(f"v_add_u32 v{VW+9}, s64, v{T+3}")
    A(f"s_mov_b32 s{S_W+3}, 0x00020000")
    A(f"s_mul_i32 s71, s62, {WSL}")
    A(f"s_mul_i32 s66, s63, {UPOFF}")
    A("s_add_u32 s71, s71, s66")
    A(f"s_add_u32 s71, s71, {WR}")
    A("s_mov_b32 s72, s71")
    A(f"s_add_u32 s73, s71, {6*WSL}")
    A("s_mul_i32 s74, s62, s68")
    A("s_lshl_b32 s68, s68, 1")

W_PREFETCH = ["s_add_u32 s67, s74, s68", "s_mov_b32 exec_hi, 0",
              f"buffer_load_dword v253, v{VW+9}, {sr(S_W,4)}, s67 offen", "s_mov_b64 exec, -1"]
_dma_n = [0]
def dma_piece(i): return [f"s_add_u32 m0, s72, {i*1024}", "s_nop 0", f"buffer_load_dwordx4 v{VW+i}, {sr(S_W,4)}, s74 offen lds"]
DMA_TAIL = ["s_add_u32 s74, s74, s68", f"s_add_u32 s72, s72, {2*WSL}", "s_cmp_eq_u32 s72, s73", "s_cselect_b32 s72, s71, s72"]
def dma_groups(first):
    g = [dma_piece(i) for i in range(first, 9)]
    _dma_n[0] += 1
    lab = f"LL_D{_dma_n[0]}"
    g[-1] = ["s_cmp_lt_u32 s21, 6", f"s_cbranch_scc1 {lab}"] + g[-1] + [lab + ":"] + DMA_TAIL
    return g
def mix(A, work, groups, every):
    groups = list(groups)
    for n, w in enumerate(work):
        if isinstance(every, (list, tuple)):
            for _ in range(every.count(n)):
                if groups: A.many(groups.pop(0))
        elif groups and n % every == 0: A.many(groups.pop(0))
        A(w)
    for g in groups: A.many(g)

HREG = 184
HOFF = [52, 53, 54, 55, 56, 57, 58, 59, 10]
def h_offsets(A):
    tiles = [(lu*2+lt, lu, lt) for lu in range(4) for lt in range(2)] + [(8, 4, 0)]
    for (tile, lu, lt) in tiles:
        A("s_add_u32 s66, s64, 8" if lu == 4 else f"s_add_u32 s66, s65, {lu}")
        A("s_lshl_b32 s67, s66, 10")
        A(f"s_add_u32 s67, s67, s{62+lt}")
        A(f"s_cmp_lt_u32 s66, {NFU}")
        A(f"s_cselect_b32 s{HOFF[tile]}, s67, 0x7fff0000")

SJ = 184
def side_setup(A):
    A("s_mul_i32 s75, s20, 10")
    A("s_add_u32 s75, s75, s21")
    A("s_sub_u32 s75, s75, 6")
    A("s_mul_i32 s75, s75, 3")
    A("s_add_u32 s75, s75, s60")
    A("s_sub_u32 s75, s75, 1")
    A(f"v_lshrrev_b32 v245, 5, v{L}")
    A("v_lshlrev_b32 v245, 10, v245")
    A(f"v_and_b32 v246, 31, v{L}")
    A("v_lshl_add_u32 v245, v246, 4, v245")
    for jb in range(2):
        S = 4 if jb else S_W
        A(f"s_add_u32 s90, s75, {480*jb}")
        A("s_cmp_lt_u32 s90, 256")
        A(f"s_cselect_b32 s{S}, s8, s16")
        A(f"s_cselect_b32 s{S+1}, s9, s17")
        csel(A, S+2, 512*512*2, 1376*512*2)
        A(f"s_mov_b32 s{S+3}, 0x00020000")
        csel(A, 91, WOF, WDF)
        csel(A, 67, 32*2048, NFU*2048)
        A("s_cselect_b32 s70, 0, 256")
        A("s_sub_u32 s70, s90, s70")
        A("s_lshr_b32 s94, s70, 3")
        A("s_and_b32 s70, s70, 7")
        A(f"s_lshl_b32 s{72+jb}, s94, 14")
        A("s_lshl_b32 s95, s70, 7")
        A(f"s_add_u32 s{72+jb}, s{72+jb}, s95")
        A("s_mul_i32 s70, s70, s67")
        A("s_lshl_b32 s94, s94, 11")
        A("s_add_u32 s70, s70, s94")
        A("s_add_u32 s70, s70, s91")
        A(f"s_cmp_lt_u32 s90, {256+8*NFU}")
        A(f"s_cselect_b32 s{92+jb}, s70, 0x7fff0000")
def side_prefetch(A):
    A("s_mov_b64 exec, 0xffff")
    A(f"buffer_load_dword v253, v245, {sr(S_T1,4)}, s81 offen")
    A(f"buffer_load_dword v253, v245, {sr(S_T2,4)}, s82 offen")
    A("s_mov_b64 exec, -1")
def side_loads(A, jb):
    S = 4 if jb else S_W
    for rho in range(16):
        hh = (rho >> 2) & 1; j = (rho & 3) + 4*(rho >> 3)
        d = SJ + 16*jb + 8*(j & 1) + 4*hh + (j >> 1)
        A(f"buffer_load_ushort v{d}, v244, {sr(S,4)}, s{72+jb} offen offset:{(rho&3)*1024}")
        if (rho & 3) == 3: A(f"s_add_u32 s{72+jb}, s{72+jb}, 4096")
def side_combine(A):
    for jb in range(2):
        d = SJ + 16*jb
        for i in range(8): A(f"v_lshl_or_b32 v{d+i}, v{d+8+i}, 16, v{d+i}")
        A(f"s_mov_b32 s{HOFF[4*jb]}, s{92+jb}")
        A(f"s_add_u32 s{HOFF[4*jb+1]}, s{92+jb}, 512")
    A("v_mov_b32 v249, v245")

def gen_compute(A, kind):
    F = kind == "F"
    NW = 5 if F else 4
    ND = 9 if F else 8
    XS = [176, 184]; WSET = [192, 212]
    XA = 232; XB = 236; WA = 240; T0 = 244
    KQ = 1152 if F else 1024
    US = 128
    P = "L1" + kind
    t, h, sw = T0, T0+1, T0+2
    A(f"v_and_b32 v{t}, 31, v{L}")
    A(f"v_lshrrev_b32 v{h}, 5, v{L}")
    A(f"v_bfe_u32 v{sw}, v{t}, 1, 3")
    A(f"v_xor_b32 v{sw}, v{sw}, v{h}")
    A(f"v_lshlrev_b32 v{T0+3}, 7, v{t}")
    A("s_lshl_b32 s62, s22, 12")
    for s in range(4):
        A(f"v_xor_b32 v{T0+4}, {2*s}, v{sw}")
        A(f"v_lshl_add_u32 v{T0+4}, v{T0+4}, 4, v{T0+3}")
        A(f"v_add_u32 v{XA+s}, s62, v{T0+4}")
        A(f"v_xor_b32 v{XB+s}, 0x1000, v{XA+s}")
    if F:
        A(f"v_and_b32 v{T0+3}, 15, v{L}")
        A(f"v_lshlrev_b32 v{T0+3}, 3, v{T0+3}")
        A(f"v_bfe_u32 v{T0+4}, v{L}, 4, 1")
        A(f"v_mul_u32_u24 v{T0+4}, {UPOFF}, v{T0+4}")
        A(f"v_add_u32 v{T0+3}, v{T0+3}, v{T0+4}")
    else:
        A(f"v_bfe_u32 v{T0+5}, v{L}, 2, 2")
        A(f"v_and_b32 v{T0+3}, 3, v{L}")
        A(f"v_lshlrev_b32 v{T0+3}, 3, v{T0+3}")
        A(f"v_lshl_add_u32 v{T0+3}, v{T0+5}, 8, v{T0+3}")
        A(f"v_bfe_u32 v{T0+4}, v{L}, 4, 1")
        A(f"v_lshl_add_u32 v{T0+3}, v{T0+4}, 5, v{T0+3}")
    A(f"v_mul_u32_u24 v{T0+4}, {2*KQ}, v{h}")
    A(f"v_add_u32 v{T0+3}, v{T0+3}, v{T0+4}")
    A(f"v_add_u32 v{T0+3}, {WR}, v{T0+3}")
    if F:
        A(f"s_mul_i32 s62, s61, {4*US}")
        A(f"v_add_u32 v{WA}, s62, v{T0+3}")
        A(f"v_add_u32 v{WA+1}, {8*US}, v{T0+3}")
    else:
        A(f"s_mul_i32 s62, s61, {UPOFF}")
        A(f"v_add_u32 v{T0+3}, s62, v{T0+3}")
        for lu in range(4):
            A(f"v_xor_b32 v{T0+4}, {lu}, v{T0+5}")
            A(f"v_lshl_add_u32 v{WA+lu}, v{T0+4}, 6, v{T0+3}")
    A("s_mov_b32 s64, 0")
    A("s_mov_b32 s65, 0")

    def reads(st, s):
        r = []
        hs, sp = s >> 1, s & 1
        def wread(lu):
            a = WA + ((1 if lu == 4 else 0) if F else lu)
            base = hs*WSL + 4*sp*KQ + (lu*US if F and lu < 4 else 0)
            d = WSET[st] + 4*lu
            return [f"ds_read_b64_tr_b16 {vr(d,2)}, v{a} offset:{base}",
                    f"ds_read_b64_tr_b16 {vr(d+2,2)}, v{a} offset:{base+KQ}"]
        r.append(f"ds_read_b128 {vr(XS[st],4)}, v{XA+s}")
        r += wread(0)
        r.append(f"ds_read_b128 {vr(XS[st]+4,4)}, v{XB+s}")
        for lu in range(1, NW): r += wread(lu)
        return r
    def mfma(tile, w, x):
        a, b = (x, w) if kind == "V" else (w, x)
        return f"v_mfma_f32_32x32x16_bf16 {vr(16*tile,16)}, {vr(a,4)}, {vr(b,4)}, {vr(16*tile,16)}"
    def mfmas(st):
        m = [mfma(lu*2+lt, WSET[st]+4*lu, XS[st]+4*lt) for lu in range(4) for lt in range(2)]
        if F: m.append(mfma(8, WSET[st]+16, XS[st]))
        return m
    stamp(A, 1)
    A("s_waitcnt vmcnt(0) lgkmcnt(0)" if F else "s_waitcnt lgkmcnt(0)")
    A("s_barrier")
    stamp(A, 2)
    A.many(reads(0, 0))
    if F:
        A("s_sub_u32 s66, s2, 128")
        A("s_lshl_b32 s67, s22, 8")
        A("s_add_u32 s66, s66, s67")
        A(f"s_cmp_ge_u32 s66, {NZ}")
        A(f"s_cbranch_scc1 {P}_LOOP")
        A("s_lshl_b32 s66, s66, 2")
        A("s_mov_b64 exec, 1")
        A("v_mov_b32 v250, 1")
        A("v_mov_b32 v251, 0")
        A(f"buffer_store_dword v250, v251, {sr(S_DBG,4)}, s66 offen sc1")
        A("s_mov_b64 exec, -1")
    A.raw(".p2align 6")
    A.lab(P + "_LOOP")
    NR = 2*NW + 2
    need = [3, 4, 6, 6, 8, 8, 10, 10, 12]
    for s in range(4):
        st = s & 1; nx = (s+1) & 3
        ms = mfmas(st); rd = reads(1-st, nx)
        n = len(ms)
        gaps = [[] for _ in ms]
        g0 = OPT["barpos"] if s == 3 else 0
        for i, r in enumerate(rd): gaps[g0 + i//2].append(r)
        xu = lambda k: [f"v_xor_b32 v{XA+k}, 0x4000, v{XA+k}", f"v_xor_b32 v{XB+k}, 0x4000, v{XB+k}"]
        if s < 3:
            gaps[n-2] += xu(nx)
        if s == 0: gaps[n-3] += xu(0)
        if s == 1:
            gaps[n-3] += ["s_cmp_eq_u32 s65, 2", f"s_mov_b32 s66, {2*WSL:#x}", f"s_cselect_b32 s66, {(-4*WSL) & 0xffffffff:#x}, s66"]
            gaps[n-1] += ["s_cselect_b32 s65, -1, s65", "s_add_u32 s65, s65, 1"]
        if s == 2:
            gaps[n-1] += [f"v_add_u32 v{WA+i}, s66, v{WA+i}" for i in range(2 if F else 4)]
        if s == 3:
            gaps[n-1] += ["s_add_u32 s64, s64, 1", "s_cmp_lt_u32 s64, 8"]
        issued = 0; done = 0
        for i, (m, g) in enumerate(zip(ms, gaps)):
            if need[i] > done:
                A(f"s_waitcnt lgkmcnt({min(15, NR - need[i] + issued)})"); done = need[i]
            A(m)
            if s == 3 and i == g0:
                A("s_waitcnt lgkmcnt(0)"); done = NR
                A("s_barrier")
            for x in g:
                A(x)
                if x.startswith("ds_"): issued += 1
    if OPT["prof"] and OPT["itstamp"]:
        A("s_memtime s[96:97]")
        A("s_add_u32 m0, s64, 19")
        A("s_waitcnt lgkmcnt(0)")
        A("v_writelane_b32 v255, s96, m0")
        A("s_cmp_lt_u32 s64, 8")
    A(f"s_cbranch_scc1 {P}_LOOP")
    stamp(A, 3)
    VO = 249
    if kind == "QK":
        A(f"v_and_b32 v{T0+6}, 0x33, v{L}")
        A(f"v_bfe_u32 v{T0+7}, v{L}, 2, 1")
        A(f"v_lshl_or_b32 v{T0+6}, v{T0+7}, 3, v{T0+6}")
        A(f"v_bfe_u32 v{T0+7}, v{L}, 3, 1")
        A(f"v_lshl_or_b32 v{T0+6}, v{T0+7}, 2, v{T0+6}")
        A("s_cmp_lt_u32 s21, 2")
        A("s_cselect_b64 vcc, -1, 0")
        A(f"v_cndmask_b32 v{VO}, v{T0+6}, v{L}, vcc")
        A(f"v_lshlrev_b32 v{VO}, 4, v{VO}")
    elif kind == "V":
        A(f"v_and_b32 v{VO}, 15, v{L}")
        A(f"v_lshlrev_b32 v{VO}, 4, v{VO}")
        A(f"v_lshl_or_b32 v{VO}, v{h}, 8, v{VO}")
        A(f"v_bfe_u32 v{T0+6}, v{L}, 4, 1")
        A(f"v_lshl_or_b32 v{VO}, v{T0+6}, 16, v{VO}")
    else:
        A(f"v_lshlrev_b32 v{VO}, 4, v{L}")
    A("s_lshl_b32 s62, s20, 2")
    A("s_add_u32 s62, s62, s22")
    A("s_xor_b32 s63, s62, 1")
    tiles = [(lu*2+lt, lu, lt) for lu in range(4) for lt in range(2)] + ([(8, 4, 0)] if F else [])
    if not F:
        A("s_lshl_b32 s64, s21, 20")
        A("s_lshl_b32 s65, s61, 19")
        A("s_add_u32 s64, s64, s65")
        A("s_lshl_b32 s62, s62, 10")
        A("s_lshl_b32 s63, s63, 10")
        A("s_add_u32 s62, s62, s64")
        A("s_add_u32 s63, s63, s64")
        for (tile, lu, lt) in tiles:
            a = 16*tile
            for i in range(4): A(f"v_cvt_pk_bf16_f32 v{a+i}, v{a+2*i}, v{a+2*i+1}")
            A(f"s_add_u32 s65, s{62+lt}, {lu*131072}")
            if OPT["pace"] is not None: A(f"s_waitcnt vmcnt({OPT['pace']})")
            A(f"buffer_store_dwordx4 {vr(a,4)}, v{VO}, {sr(S_WS,4)}, s65 offen sc1")
            for i in range(4): A(f"v_cvt_pk_bf16_f32 v{a+8+i}, v{a+8+2*i}, v{a+9+2*i}")
            if OPT["pace"] is not None: A(f"s_waitcnt vmcnt({OPT['pace']})")
            if kind == "QK":
                A("s_add_u32 s65, s65, 65536")
                A(f"buffer_store_dwordx4 {vr(a+8,4)}, v{VO}, {sr(S_WS,4)}, s65 offen sc1")
            else:
                A(f"buffer_store_dwordx4 {vr(a+8,4)}, v{VO}, {sr(S_WS,4)}, s65 offen offset:512 sc1")
        stamp(A, 4)
        if kind == "QK": A("s_branch L_SIGNAL")
    else:
        A(f"s_mul_i32 s62, s62, {NFU*1024}")
        A(f"s_mul_i32 s63, s63, {NFU*1024}")
        A(f"s_add_u32 s62, s62, {HF:#x}")
        A(f"s_add_u32 s63, s63, {HF:#x}")
        A("s_sub_u32 s64, s21, 6")
        A("s_mul_i32 s64, s64, 9")
        A("s_lshl_b32 s65, s61, 2")
        A("s_add_u32 s65, s65, s64")
        C1, C3, ONE, TT = 220, 222, 224, 176
        c1 = -2*0.7978845608028654*LOG2E
        A("s_waitcnt lgkmcnt(0)")
        for r, v in ((C1, c1), (C3, c1*0.044715), (ONE, 1.0)):
            A(f"v_mov_b32 v{r}, {f2u(v):#x}")
            A(f"v_mov_b32 v{r+1}, {f2u(v):#x}")
        dst = lambda tile: HREG + 4*tile
        h_offsets(A)
        for (tile, lu, lt) in tiles:
            a = 16*tile
            for i in range(4): A(f"v_pk_mul_f32 {vr(TT+2*i,2)}, {vr(a+2*i,2)}, {vr(a+2*i,2)}")
            for i in range(4): A(f"v_pk_fma_f32 {vr(TT+2*i,2)}, {vr(TT+2*i,2)}, {vr(C3,2)}, {vr(C1,2)}")
            for i in range(4): A(f"v_pk_mul_f32 {vr(TT+2*i,2)}, {vr(TT+2*i,2)}, {vr(a+2*i,2)}")
            for i in range(8): A(f"v_exp_f32 v{TT+i}, v{TT+i}")
            for i in range(4): A(f"v_pk_mul_f32 {vr(a+2*i,2)}, {vr(a+2*i,2)}, {vr(a+8+2*i,2)}")
            for i in range(4): A(f"v_pk_add_f32 {vr(TT+2*i,2)}, {vr(TT+2*i,2)}, {vr(ONE,2)}")
            for i in range(8): A(f"v_rcp_f32 v{TT+i}, v{TT+i}")
            A("s_nop 0")
            for i in range(4): A(f"v_pk_mul_f32 {vr(a+2*i,2)}, {vr(a+2*i,2)}, {vr(TT+2*i,2)}")
            for i in range(4): A(f"v_cvt_pk_bf16_f32 v{dst(tile)+i}, v{a+2*i}, v{a+2*i+1}")
        stamp(A, 4)

VX = 212; DW = 240; S1 = 216; S2 = 220; RR = 224; MR = 228; TL = 232
xreg = lambda c, i: (i*8 + c)*4
def xload_(A, i):
    A(f"s_add_u32 s{85+i}, s80, {i}")
    A(f"s_and_b32 s{85+i}, s{85+i}, 3")
    A(f"s_lshl_b32 s89, s{85+i}, 13")
    A("s_add_u32 s89, s89, s61")
    for c in range(8):
        A(f"buffer_load_dwordx4 {vr(xreg(c,i),4)}, v{VX}, {sr(S_X,4)}, s89 offen offset:{c*128}")
def loader_first(A):
    T = TL
    A("s_sub_u32 s60, s22, 4")
    A("s_lshl_b32 s61, s20, 17")
    A("s_lshl_b32 s62, s60, 15")
    A("s_add_u32 s61, s61, s62")
    A("s_lshr_b32 s80, s2, 5")
    A("s_waitcnt lgkmcnt(0)")
    srd(A, S_X, 4, 2048*512*2)
    xload_(A, 0); xload_(A, 1)

def gen_loader(A):
    T = TL
    xload = lambda i: xload_(A, i)
    gen_wsetup(A)
    xload(2)
    A("s_cmp_lt_u32 s21, 2")
    A(f"s_cselect_b32 s69, {f2u(0.25*LOG2E):#x}, 1.0")
    A("s_lshr_b32 s64, s21, 1")
    A("s_cmp_eq_u32 s64, 2")
    A(f"s_cselect_b32 s69, {f2u(2.0**VSH):#x}, s69")
    for r in range(S1, S2+4): A(f"v_mov_b32 v{r}, 0")
    A("s_mov_b32 s78, 0x3f803f80")
    A("v_mov_b32 v249, 0")
    A(f"v_lshlrev_b32 v244, 1, v{L}")
    A("s_cmp_ge_u32 s21, 6")
    A("s_cselect_b32 s79, s60, 0")
    def norm(c, i):
        x = xreg(c, i); r = []
        for d in range(4):
            r.append(f"v_lshlrev_b32 v{T+2*d}, 16, v{x+d}")
            r.append(f"v_and_b32 v{T+2*d+1}, 0xffff0000, v{x+d}")
        for d in range(8): r.append(f"v_fma_f32 v{T+d}, v{T+d}, v{RR+i}, -v{MR+i}")
        for d in range(4): r.append(f"v_cvt_pk_bf16_f32 v{x+d}, v{T+2*d}, v{T+2*d+1}")
        if OPT["w64"]:
            r.insert(-2, f"ds_write_b64 v{DW+i}, {vr(x,2)} offset:{(c&1)*16384}")
            r.append(f"ds_write_b64 v{DW+i}, {vr(x+2,2)} offset:{(c&1)*16384+8}")
        else: r.append(f"ds_write_b128 v{DW+i}, {vr(x,4)} offset:{(c&1)*16384}")
        return r
    def dots(i):
        r = []
        for k in range(32):
            r.append(f"v_dot2c_f32_bf16 v{S2+i}, v{xreg(0,i)+k}, v{xreg(0,i)+k}")
            r.append(f"v_dot2c_f32_bf16 v{S1+i}, s78, v{xreg(0,i)+k}")
        return r
    A("s_waitcnt vmcnt(16)"); stamp(A, 16)
    xload(3)
    A.many(dots(0))
    A(f"v_lshrrev_b32 v{T+2}, 4, v{L}")
    A(f"v_xor_b32 v{T+2}, v{T+2}, v{T+1}")
    A(f"v_lshlrev_b32 v{T+3}, 7, v{T}")
    A("s_lshl_b32 s64, s60, 12")
    A(f"v_add_u32 v{T+3}, s64, v{T+3}")
    A(f"v_lshl_add_u32 v{T+3}, v{T+2}, 4, v{T+3}")
    for i in range(4):
        A(f"s_and_b32 s64, s{85+i}, 1")
        A("s_lshl_b32 s64, s64, 6")
        A(f"s_lshl_b32 s65, s{85+i}, 10")
        A("s_or_b32 s64, s64, s65")
        A(f"v_xor_b32 v{DW+i}, s64, v{T+3}")
    A("s_waitcnt vmcnt(16)"); stamp(A, 17)
    A.many(dots(1))
    A("s_waitcnt vmcnt(8)"); stamp(A, 18)
    mix(A, dots(2), dma_groups(0), 7)
    A("s_waitcnt vmcnt(9)")
    A("s_cmp_ge_u32 s21, 6")
    A("s_cbranch_scc1 LL_G3")
    A("s_waitcnt vmcnt(8)")
    A.lab("LL_G3")
    stamp(A, 19)
    A.many(dots(3))
    A("s_nop 2")
    for ctl in ("quad_perm:[1,0,3,2]", "quad_perm:[2,3,0,1]", "row_half_mirror"):
        for r in range(S1, S2+4):
            A(f"v_add_f32_dpp v{r}, v{r}, v{r} {ctl} row_mask:0xf bank_mask:0xf")
    seq = [
        lambda i: f"v_mul_f32 v{S1+i}, {f2u(1/512):#x}, v{S1+i}",
        lambda i: f"v_mul_f32 v{S2+i}, {f2u(1/512):#x}, v{S2+i}",
        lambda i: f"v_fma_f32 v{S2+i}, -v{S1+i}, v{S1+i}, v{S2+i}",
        lambda i: f"v_max_f32 v{S2+i}, 0, v{S2+i}",
        lambda i: f"v_cvt_pk_bf16_f32 v{S2+i}, v{S1+i}, v{S2+i}",
        lambda i: f"v_lshlrev_b32 v{S1+i}, 16, v{S2+i}",
        lambda i: f"v_and_b32 v{S2+i}, 0xffff0000, v{S2+i}",
        lambda i: f"v_add_f32 v{S2+i}, {f2u(1e-5):#x}, v{S2+i}",
        lambda i: f"v_cvt_pk_bf16_f32 v{S2+i}, v{S2+i}, v{S2+i}",
        lambda i: f"v_and_b32 v{S2+i}, 0xffff0000, v{S2+i}",
        lambda i: f"v_sqrt_f32 v{S2+i}, v{S2+i}",
        lambda i: f"v_cvt_pk_bf16_f32 v{S2+i}, v{S2+i}, v{S2+i}",
        lambda i: f"v_and_b32 v{S2+i}, 0xffff0000, v{S2+i}",
        lambda i: f"v_rcp_f32 v{RR+i}, v{S2+i}",
        lambda i: f"v_mul_f32 v{RR+i}, s69, v{RR+i}",
        lambda i: f"v_mul_f32 v{MR+i}, v{S1+i}, v{RR+i}",
    ]
    for f in seq:
        for i in range(4): A(f(i))
    stamp(A, 1)
    if OPT["wpf"]: A.many(W_PREFETCH)
    mix(A, sum((norm(0, i) for i in range(4)), []), dma_groups(0), OPT["dmaevery"])
    stamp(A, 2)
    dbg_load = [f"buffer_load_dword v97, v96, {sr(S_DBG,4)}, 0 offen sc1"]
    for m in range(8):
        if m == 4: stamp(A, 29)
        A(f"s_waitcnt vmcnt({8 if m < 7 else 0}) lgkmcnt(0)")
        if m == 4: stamp(A, 30)
        if m == 5:
            A.many(ALL1(97))
            A("s_cbranch_scc1 LL_POLL0_OK")
            spin(A, "LL_POLL0", dbg_load, ALL1(97))
        A("s_barrier")
        if m == 3: stamp(A, 28)
        if m == 4: stamp(A, 31)
        if m == 7: break
        if OPT["wpf"] and m < 5: A.many(W_PREFETCH)
        work = sum((norm(m+1, i) for i in range(4)), [])
        isw = lambda w: w.startswith("ds_")
        if OPT["exp"] == "wlast": work = [w for w in work if not isw(w)] + [w for w in work if isw(w)]
        if OPT["exp"] == "wfirst":
            if m == 0: A.many(work)
            else: A.many([w for w in work if isw(w)])
            work = [w for w in sum((norm(m+2, i) for i in range(4)), []) if not isw(w)] if m < 6 else []
        if OPT["exp"].startswith("grp"):
            dg = dma_groups(0) if m < 6 else []
            split = {"grp": [3,2,2,2,0], "grp2": [0,3,3,3,0], "grp3": [2,3,2,2,0], "grp4": [4,3,2,0,0]}[OPT["exp"]]
            for _ in range(split[0]):
                if dg: A.many(dg.pop(0))
            for i in range(4):
                nn = norm(m+1, i)
                A.many(nn[:-1])
                for _ in range(split[i+1]):
                    if dg: A.many(dg.pop(0))
                A(nn[-1])
            work = None
        if OPT["exp"] == "nonorm": work = []
        if OPT["exp"] == "nowrite": work = [w for w in work if not w.startswith("ds_")]
        if OPT["exp"] == "dmalast":
            A.many(work); work = []
        if OPT["exp"] == "dmafirst":
            mix(A, [], dma_groups(0) if m < 6 else [], 1); A.many(work); continue
        if work is not None: mix(A, work, dma_groups(0) if m < 6 else [], OPT["dmaevery"])
        if m == 3:
            A(f"v_min_u32 v96, {NZ-1}, v{L}")
            A("v_lshlrev_b32 v96, 2, v96")
            A.many(dbg_load)
    A("s_mov_b32 s23, s79")
    side_setup(A)
    A("s_call_b64 s[76:77], L_ATTINIT")
    late_init(A)
    A("s_barrier")
    stamp(A, 3)
    A("s_cmp_eq_u32 s23, 0")
    A("s_cbranch_scc1 LL_S7")
    side_loads(A, 0)
    side_loads(A, 1)
    A.lab("LL_S7")
    A("s_cmp_lg_u32 s60, 0")
    A("s_cbranch_scc1 LL_WAITGO")
    A("v_mov_b32 v96, 0")
    A("s_bfe_u32 s64, s2, 0x10004")
    A("s_and_b32 s65, s2, 7")
    A("s_lshl_b32 s65, s65, 3")
    A("s_add_u32 s64, s64, s65")
    A("s_lshl_b32 s64, s64, 7")
    A(f"s_add_u32 s64, s64, {QFLAG:#x}")
    spin(A, "LL_POLL", apoll(97, 96, "s64", 1), acmp(97, 48, 1))
    A(f"v_mov_b32 v96, {SW}")
    A("v_mov_b32 v97, 1")
    A("ds_write_b32 v96, v97 offset:4")
    A("s_branch LL_GO")
    A.lab("LL_WAITGO")
    A(f"v_mov_b32 v96, {SW}")
    A(f"s_mov_b32 s70, {SPIN_MAX*16}")
    A.lab("LL_WG1")
    A("ds_read_b32 v97, v96 offset:4")
    A("s_waitcnt lgkmcnt(0)")
    A("v_readfirstlane_b32 s65, v97")
    A("s_cmp_lg_u32 s65, 0")
    A("s_cbranch_scc1 LL_GO")
    A("s_sleep 1")
    A("s_sub_u32 s70, s70, 1")
    A("s_cmp_lg_u32 s70, 0")
    A("s_cbranch_scc1 LL_WG1")
    A.lab("LL_GO")
    stamp(A, 4)
    A("s_and_b32 s64, s2, 31")
    A("s_lshl_b32 s64, s64, 16")
    A("s_lshl_b32 s65, s60, 11")
    A("s_add_u32 s64, s64, s65")
    A("s_lshr_b32 s66, s2, 5")
    A("s_lshl_b32 s66, s66, 13")
    A("s_add_u32 s66, s66, s64")
    A(f"s_add_u32 m0, s65, {QOFF}")
    A(f"s_add_u32 s67, s64, {KF:#x}")
    A(f"buffer_load_dwordx4 v95, {sr(S_WS,4)}, s66 offen sc1 lds")
    A(f"buffer_load_dwordx4 v95, {sr(S_WS,4)}, s66 offen offset:1024 sc1 lds")
    A(f"s_add_u32 s68, s64, {VF:#x}")
    for c in range(2):
        A(f"s_add_u32 m0, s65, {c*8192}")
        A("s_nop 0")
        A(f"buffer_load_dwordx4 v95, {sr(S_WS,4)}, s67 offen sc1 lds")
        A(f"buffer_load_dwordx4 v95, {sr(S_WS,4)}, s67 offen offset:1024 sc1 lds")
        A(f"s_add_u32 m0, s65, {65536 + c*8192}")
        A("s_add_u32 s67, s67, 8192")
        A(f"buffer_load_dwordx4 v95, {sr(S_WS,4)}, s68 offen sc1 lds")
        A(f"buffer_load_dwordx4 v95, {sr(S_WS,4)}, s68 offen offset:1024 sc1 lds")
        A("s_add_u32 s68, s68, 8192")
    A("s_cmp_eq_u32 s23, 0")
    A("s_cbranch_scc1 L_P0")
    A("s_waitcnt vmcnt(10)")
    side_combine(A)


def down_loads(A, slot):
    A(f"buffer_load_dwordx4 {vr(DH[slot],4)}, v{L16}, {sr(S_T1,4)}, s84 offen sc1")
    A(f"buffer_load_dwordx4 {vr(DW_[slot],4)}, v{L16}, {sr(S_T2,4)}, s85 offen sc1")
    A(f"buffer_load_dwordx4 {vr(DW_[slot]+4,4)}, v{L16}, {sr(S_T2,4)}, s85 offen offset:1024 sc1")
    A("s_add_u32 s84, s84, 1024")
    A("s_add_u32 s85, s85, 2048")

def kv_piece(k):
    if k & 1: return ["s_add_u32 m0, s95, 65536", "s_add_u32 s94, s94, 8192",
                      f"buffer_load_dwordx4 v{L16}, {sr(S_WS,4)}, s60 offen sc1 lds", "s_add_u32 s95, s95, 8192"]
    return ["s_mov_b32 m0, s95", f"s_add_u32 s60, s94, {VF-KF:#x}", f"buffer_load_dwordx4 v{L16}, {sr(S_WS,4)}, s94 offen sc1 lds"]
HPOLL = lambda: apoll(101, 100, "s75", 15)

def attn_body(A, mode):
    hs = 0
    for t in range(8):
        p = t & 1
        down = mode in "BC" or (mode == "2" and t >= 4)
        cur, prv = S_[p], S_[1-p]
        ex = lambda a, b: [A(f"v_exp_f32 v{cur+i}, v{cur+i}") for i in range(a, b)]
        if p == 0: A(f"s_setprio {3 - (t >> 1)}")
        A("s_waitcnt lgkmcnt(3)")
        ex(0, 2)
        if not (mode == "0" and t == 0):
            A(f"v_smfmac_f32_32x32x32_bf16 {vr(O_,16)}, {vr(V1[1-p],4)}, {vr(prv+8,8)}, v{IDX}")
        if mode == "0" and t < 6: A.many(kv_piece(2*t))
        ex(2, 6 if down else 7)
        A(f"v_mfma_f32_32x32x16_bf16 {vr(prv,16)}, {vr(KB[1-p],4)}, {vr(Q_,4)}, {vr(C_,16)}")
        A(f"ds_read_b128 {vr(KB[1-p],4)}, v{KA} offset:{(t+3)*1024}")
        if mode == "0" and t < 6: A.many(kv_piece(2*t+1))
        ex(6 if down else 7, 10 if down else 12)
        A(f"v_smfmac_f32_32x32x32_bf16 {vr(O_,16)}, {vr(V0[p],4)}, {vr(cur,8)}, v{IDX}")
        A("s_mov_b64 exec, s[80:81]")
        A(f"ds_read_b128 {vr(V0[p],4)}, v{VA} offset:{(t+2)*1024}")
        A(f"ds_read_b128 {vr(V1[1-p],4)}, v{VA} offset:{(t+1)*1024+512}")
        A("s_mov_b64 exec, -1")
        if mode == "0":
            for _ in range(OPT["hplan"][t]):
                A(f"buffer_store_dwordx4 {vr(HREG+4*hs,4)}, v249, {sr(S_WS,4)}, s{HOFF[hs]} offen sc1"); hs += 1
        if mode == "2" and t < 4: down_loads(A, (t + 2) & 3)
        if mode == "C":
            if t == 0: A(f"buffer_load_dwordx4 {vr(XV,4)}, v252, {sr(S_X,4)}, s88 offen")
            for i in range(2):
                A(f"buffer_load_dwordx4 {vr(WO+8*t+4*i,4)}, v{L16}, {sr(S_WS,4)}, s90 offen offset:{(2*p+i)*1024} sc1")
            if p: A("s_add_u32 s90, s90, 4096")
        if down:
            ex(10, 14)
            sl = t >> 1
            if p == 0: A(f"s_waitcnt vmcnt({12 + sl if mode == 'C' else 9})")
            cc = "0" if (mode == "2" and t < 6) else vr(DACC+16*p,16)
            A(f"v_mfma_f32_32x32x16_bf16 {vr(DACC+16*p,16)}, {vr(DW_[sl]+4*p,4)}, {vr(DH[sl],4)}, {cc}")
            if mode != "C" and p == 1: down_loads(A, sl)
            ex(14, 16)
        else:
            ex(12, 16)
        if mode == "1" and t == OPT["sigt"]:
            A("s_waitcnt vmcnt(0)")
            A("s_barrier")
            A("s_cmp_lg_u32 s14, 0")
            A("s_cbranch_scc1 L_NOSIG")
            A("s_mov_b64 exec, 0xff")
            A("v_mov_b32 v97, 1")
            A(f"v_lshlrev_b32 v96, 10, v{L}")
            A(f"buffer_atomic_add v97, v96, {sr(S_WS,4)}, s91 offen")
            A("s_mov_b64 exec, -1")
            A.lab("L_NOSIG")
        if mode == "1" and t == 6:
            A("s_cmp_lg_u32 s22, 0")
            A("s_cbranch_scc1 L_NOPQ")
            A(f"v_lshlrev_b32 v100, 7, v{L}")
            A.many(HPOLL())
            A.lab("L_NOPQ")
        if mode == "1" and t == 7:
            stamp(A, 8)
            A("s_cmp_lg_u32 s22, 0")
            A("s_cbranch_scc1 L_HPOLL_OK")
            spin(A, "L_HPOLL", HPOLL(), acmp(101, 40, 15), first_loaded=True)
            A("s_barrier")
            stamp(A, 9)
    if mode == "0": assert hs == 9
    if mode != "C":
        A(f"v_add_u32 v{KA}, 8192, v{KA}")
        A(f"v_add_u32 v{VA}, 8192, v{VA}")
        A("s_add_u32 s83, s83, 1")

def late_init(A):
    A(f"v_lshlrev_b32 v{L16}, 4, v{L}")
    A(f"v_mov_b32 v{IDX}, 0xdddd")
    A(f"v_and_b32 v98, 15, v{L}")
    A("v_lshlrev_b32 v98, 4, v98")
    A(f"v_lshrrev_b32 v99, 5, v{L}")
    A("v_lshl_or_b32 v98, v99, 8, v98")
    A("v_add_u32 v98, 65536, v98")
    A(f"v_add_u32 v99, s15, v{L16}")
    A(f"v_add_u32 v102, s16, v{L16}")
    A(f"v_add_u32 v103, s17, v{L16}")
    A(f"v_mov_b32 v{KA}, v{L16}")
    A(f"v_mov_b32 v{VA}, v98")
    A("v_mov_b32 v100, 0xff800000")
    A("v_mov_b32 v101, 0xff800000")

def gen_attinit(A):
    A.lab("L_ATTINIT")
    for r in range(O_, O_+32): A(f"v_mov_b32 v{r}, 0")
    A("s_mov_b32 s80, 0x00110000")
    A("s_mov_b32 s81, 0x00110000")
    A("s_mov_b64 exec, s[80:81]")
    for r in range(V0[0], V0[0]+16): A(f"v_mov_b32 v{r}, 0x3f803f80")
    A("s_mov_b64 exec, -1")
    A("s_mov_b32 s80, 0xffff")
    A("s_mov_b32 s81, 0xffff")
    A("s_mov_b32 s78, 1")
    A(f"s_mov_b32 s79, {f2u(-OPT['bias']):#x}")
    A("s_mov_b32 s82, 1")
    A(f"v_lshrrev_b32 v251, 5, v{L}")
    A(f"v_and_b32 v252, 31, v{L}")
    A("v_lshlrev_b32 v252, 10, v252")
    A("v_lshl_add_u32 v252, v251, 4, v252")
    A("s_lshl_b32 s15, s22, 10")
    A(f"s_add_u32 s15, s15, {QOFF}")
    A("s_and_b32 s91, s20, 3")
    A("s_lshl_b32 s91, s91, 7")
    A(f"s_add_u32 s91, s91, {QFLAG+4*128:#x}")
    A("s_cmp_lt_u32 s21, 6")
    A("s_cselect_b32 s14, 1, s22")
    A("s_and_b32 s75, s2, 7")
    A("s_lshl_b32 s75, s75, 10")
    A(f"s_add_u32 s75, s75, {QFLAG+4*128:#x}")
    A("s_lshr_b32 s61, s2, 5")
    A("s_lshl_b32 s61, s61, 3")
    A("s_add_u32 s61, s61, s22")
    A("s_lshl_b32 s61, s61, 5")
    A("s_and_b32 s62, s2, 31")
    A("s_add_u32 s61, s61, s62")
    A("s_lshr_b32 s12, s61, 3")
    A("s_lshl_b32 s12, s12, 7")
    A(f"s_add_u32 s12, s12, {OFLAG:#x}")
    A("s_lshl_b32 s11, s61, 10")
    A(f"s_add_u32 s11, s11, {OF:#x}")
    A("s_and_b32 s94, s2, 31")
    A("s_lshl_b32 s94, s94, 16")
    A("s_lshl_b32 s95, s22, 10")
    A("s_add_u32 s95, s95, 16384")
    A("s_add_u32 s94, s94, s95")
    A(f"s_add_u32 s94, s94, {KF:#x}")
    A("s_and_b32 s67, s2, 7")
    A("s_bfe_u32 s61, s2, 0x20003")
    A("s_lshl_b32 s67, s67, 2")
    A("s_add_u32 s67, s67, s61")
    A("s_lshr_b32 s61, s2, 5")
    A("s_and_b32 s62, s22, 1")
    A("s_lshl_b32 s67, s67, 1")
    A("s_add_u32 s67, s67, s62")
    A("s_lshr_b32 s62, s22, 1")
    A("s_mul_i32 s63, s62, 22")
    A("s_cmp_eq_u32 s62, 3")
    A("s_cselect_b32 s63, 65, s63")
    A("s_cmp_lt_u32 s62, 2")
    A("s_cselect_b32 s64, 22, 21")
    A(f"s_mul_i32 s65, s67, {NFU}")
    A("s_add_u32 s65, s65, s63")
    A("s_lshl_b32 s65, s65, 10")
    A(f"s_add_u32 s65, s65, {HF:#x}")
    A(f"s_add_u32 s{S_T1}, s18, s65")
    A(f"s_addc_u32 s{S_T1+1}, s19, 0")
    A(f"s_lshl_b32 s{S_T1+2}, s64, 10")
    A(f"s_mov_b32 s{S_T1+3}, 0x00020000")
    A(f"s_mul_i32 s65, s61, {NFU}")
    A("s_add_u32 s65, s65, s63")
    A("s_lshl_b32 s65, s65, 11")
    A(f"s_add_u32 s65, s65, {WDF:#x}")
    A(f"s_add_u32 s{S_T2}, s18, s65")
    A(f"s_addc_u32 s{S_T2+1}, s19, 0")
    A(f"s_lshl_b32 s{S_T2+2}, s64, 11")
    A(f"s_mov_b32 s{S_T2+3}, 0x00020000")
    A("s_mov_b32 s84, 0")
    A("s_mov_b32 s85, 0")
    A("s_lshl_b32 s90, s61, 16")
    A("s_lshl_b32 s66, s62, 14")
    A("s_add_u32 s90, s90, s66")
    A(f"s_add_u32 s90, s90, {WOF:#x}")
    A("s_lshl_b32 s87, s67, 15")
    A("s_lshl_b32 s66, s62, 13")
    A("s_add_u32 s87, s87, s66")
    A(f"s_add_u32 s87, s87, {OF:#x}")
    A("s_lshl_b32 s88, s67, 15")
    A("s_lshl_b32 s66, s61, 7")
    A("s_add_u32 s88, s88, s66")
    A("s_lshl_b32 s66, s62, 5")
    A("s_add_u32 s88, s88, s66")
    A(f"s_sub_u32 s13, s87, {OF:#x}")
    A("s_lshr_b32 s13, s13, 6")
    A(f"s_add_u32 s13, s13, {OFLAG:#x}")
    red_addr(A)
    A("s_setpc_b64 s[76:77]")

def gen_attn(A):
    A("s_waitcnt lgkmcnt(0)")
    late_init(A)
    A.lab("L_P0")
    stamp(A, 5)
    A("s_waitcnt vmcnt(0)")
    A("s_barrier")
    stamp(A, 6)
    A(f"ds_read_b128 {vr(Q_,4)}, v99")
    A.lab("L_MAXLOOP")
    A(f"ds_read_b128 {vr(KB[0],4)}, v{KA}")
    A(f"ds_read_b128 {vr(KB[1],4)}, v{KA} offset:1024")
    A("s_mov_b64 exec, s[80:81]")
    A(f"ds_read_b128 {vr(V0[0],4)}, v{VA}")
    A("s_mov_b64 exec, -1")
    A("s_waitcnt lgkmcnt(2)")
    A(f"v_mfma_f32_32x32x16_bf16 {vr(S_[0],16)}, {vr(KB[0],4)}, {vr(Q_,4)}, 0")
    A("s_waitcnt lgkmcnt(1)")
    A(f"v_mfma_f32_32x32x16_bf16 {vr(C_,16)}, {vr(KB[1],4)}, {vr(Q_,4)}, 0")
    A(f"v_subrev_u32 v{KA}, 2048, v{KA}")
    A("s_nop 9")
    for i in range(8): A(f"v_max3_f32 v100, v{2*i}, v{2*i+1}, v100")
    for i in range(8): A(f"v_max3_f32 v101, v{C_+2*i}, v{C_+2*i+1}, v101")
    A("s_sub_u32 s78, s78, 1")
    A("s_cmp_lg_u32 s78, 0")
    A("s_cbranch_scc1 L_MAXLOOP")
    A("v_max_f32 v100, v100, v101")
    A(f"v_mov_b32 v{KA}, v{L16}")
    A("v_mov_b32 v101, v100")
    A("s_nop 1")
    A("v_permlane32_swap_b32 v100, v101")
    A("s_nop 1")
    A("v_max_f32 v100, v100, v101")
    for r in range(16): A(f"v_sub_f32 v{C_+r}, s79, v100")
    A("s_nop 1")
    A(f"v_mfma_f32_32x32x16_bf16 {vr(S_[0],16)}, {vr(KB[0],4)}, {vr(Q_,4)}, {vr(C_,16)}")
    A(f"ds_read_b128 {vr(KB[0],4)}, v{KA} offset:2048")
    A("s_mov_b64 exec, s[80:81]")
    A(f"ds_read_b128 {vr(V0[1],4)}, v{VA} offset:1024")
    A(f"ds_read_b128 {vr(V1[0],4)}, v{VA} offset:512")
    A("s_mov_b64 exec, -1")
    A("s_mov_b32 s83, 0")
    stamp(A, 7)
    A("s_nop 4")
    A("s_cmp_eq_u32 s82, 0")
    A("s_cbranch_scc1 L_LOOPP")
    attn_body(A, "0")
    attn_body(A, "1")
    attn_body(A, "2")
    A.lab("L_LOOPB")
    attn_body(A, "B")
    if OPT["prof"] and OPT["bstamp"]:
        A("s_memtime s[96:97]")
        A("s_add_u32 m0, s83, 17")
        A("s_waitcnt lgkmcnt(0)")
        A("v_writelane_b32 v255, s96, m0")
    A("s_cmp_lt_u32 s83, 7")
    A("s_cbranch_scc1 L_LOOPB")
    attn_body(A, "C")
    A.lab("L_ATT_DONE")
    A("s_waitcnt lgkmcnt(0)")
    stamp(A, 10)
    A(f"v_smfmac_f32_32x32x32_bf16 {vr(O_,16)}, {vr(V1[1],4)}, {vr(S_[1]+8,8)}, v{IDX}")
    A("s_setprio 3")
    A(f"v_mov_b32 v96, {f2u(2.0**90):#x}")
    A(f"v_mov_b32 v97, {f2u(2.0**120):#x}")
    A(f"v_mov_b32 v99, {f2u(2.0**-100):#x}")
    A("s_nop 7")
    A(f"v_rcp_f32 v101, v{O_+8}")
    A("s_nop 0")
    A(f"v_mul_f32 v101, {f2u(2.0**-VSH):#x}, v101")
    for r in range(8): A(f"v_mul_f32 v{r}, v{O_+r}, v101")
    for i in range(4): A(f"v_cvt_pk_bf16_f32 v{8+i}, v{2*i}, v{2*i+1}")
    A(f"buffer_store_dwordx4 {vr(8,4)}, v{L16}, {sr(S_WS,4)}, s11 offen sc1")
    A("s_cmp_eq_u32 s82, 0")
    A("s_cbranch_scc1 L_FIN")
    A(f"v_add_f32 v100, abs(v{O_}), abs(v{O_+1})")
    for r in range(2, 8): A(f"v_add_f32 v100, v100, abs(v{O_+r})")
    A(f"v_cmp_nlt_f32 s[62:63], v{O_+8}, v96")
    A("v_cmp_nlt_f32 s[64:65], v100, v97")
    A("v_cmp_lt_f32 vcc, v100, v99")
    A("s_or_b64 s[62:63], s[62:63], s[64:65]")
    A("s_or_b64 s[62:63], s[62:63], vcc")
    A("s_cmp_eq_u64 s[62:63], 0")
    if not OPT["force_fallback"]: A("s_cbranch_scc1 L_FIN")
    A("s_mov_b32 s78, 32")
    A("s_mov_b32 s79, 0")
    A("s_mov_b32 s82, 0")
    A(f"v_mov_b32 v{VA}, v98")
    A("v_mov_b32 v100, 0xff800000")
    A("v_mov_b32 v101, 0xff800000")
    for r in range(16): A(f"v_mov_b32 v{O_+r}, 0")
    for r in range(8, 16): A(f"v_mov_b32 v{S_[1]+r}, 0")
    A(f"v_add_u32 v{KA}, {62*1024}, v{L16}")
    A("s_waitcnt vmcnt(0)")
    A("s_branch L_MAXLOOP")
    A.lab("L_FIN")

def red_addr(A):
    A("s_and_b32 s62, s22, 1")
    A("s_lshr_b32 s63, s22, 1")
    A("s_lshl_b32 s62, s62, 15")
    A("s_lshl_b32 s64, s63, 11")
    A("s_add_u32 s64, s64, s62")
    A("s_mov_b32 s16, s64")
    A("s_lshl_b32 s64, s63, 13")
    A("s_add_u32 s64, s64, s62")
    A("s_mov_b32 s17, s64")
def red_write(A, acc):
    for q in range(4):
        for hf in range(2):
            A(f"ds_write_b128 v102, {vr(acc+8*q+4*hf,4)} offset:{q*8192 + hf*1024}")
def red_read(A, dst):
    for s in range(4):
        for hf in range(2):
            A(f"ds_read_b128 {vr(dst+8*s+4*hf,4)}, v103 offset:{s*2048 + hf*1024}")
def red_sum(A, dst):
    for r in range(8):
        A(f"v_add_f32 v{dst+r}, v{dst+r}, v{dst+8+r}")
        A(f"v_add_f32 v{dst+16+r}, v{dst+16+r}, v{dst+24+r}")
    for r in range(8): A(f"v_add_f32 v{dst+r}, v{dst+r}, v{dst+16+r}")
def round_bf16(A, regs, tmp):
    for i in range(4): A(f"v_cvt_pk_bf16_f32 v{tmp+i}, v{regs+2*i}, v{regs+2*i+1}")
    for i in range(4):
        A(f"v_lshlrev_b32 v{regs+2*i}, 16, v{tmp+i}")
        A(f"v_and_b32 v{regs+2*i+1}, 0xffff0000, v{tmp+i}")

def gen_final(A):
    A("v_mov_b32 v96, 1")
    A("v_mov_b32 v97, 0")
    A("s_waitcnt vmcnt(0)")
    A("s_mov_b64 exec, 1")
    A(f"buffer_atomic_add v96, v97, {sr(S_WS,4)}, s12 offen")
    A("s_mov_b64 exec, -1")
    stamp(A, 11)
    A("s_barrier")
    red_write(A, DACC)
    A("s_waitcnt lgkmcnt(0)")
    A("s_barrier")
    G = DACC; T = 136
    red_read(A, G)
    pl = apoll(96, 97, "s13", 1)
    A.many(pl)
    A("v_add_u32 v102, 65536, v102")
    A("v_add_u32 v103, 65536, v103")
    A("s_waitcnt lgkmcnt(0)")
    red_sum(A, G)
    round_bf16(A, G, T)
    for r in range(8): A(f"v_mul_f32 v{T+r}, {f2u(-LOG2E):#x}, v{G+r}")
    for r in range(8): A(f"v_exp_f32 v{T+r}, v{T+r}")
    for r in range(8): A(f"v_add_f32 v{T+r}, 1.0, v{T+r}")
    for r in range(8): A(f"v_rcp_f32 v{T+r}, v{T+r}")
    for r in range(8): A(f"v_mul_f32 v{G+r}, v{G+r}, v{T+r}")
    round_bf16(A, G, T)
    for i in range(4):
        A(f"v_lshlrev_b32 v{144+2*i}, 16, v{XV+i}")
        A(f"v_and_b32 v{145+2*i}, 0xffff0000, v{XV+i}")
    spin(A, "L_OPOLL", pl, acmp(96, 8, 1), first_loaded=True)
    stamp(A, 12)
    for s in range(8):
        A(f"buffer_load_dwordx4 {vr(4*s,4)}, v{L16}, {sr(S_WS,4)}, s87 offen offset:{(s&3)*1024} sc1")
        if s == 3: A("s_add_u32 s87, s87, 4096")
    ACC = 104
    for s in range(8):
        A(f"s_waitcnt vmcnt({7-s})")
        for nt in range(2):
            c = "0" if s == 0 else vr(ACC+16*nt,16)
            A(f"v_mfma_f32_32x32x16_bf16 {vr(ACC+16*nt,16)}, {vr(WO+8*s+4*nt,4)}, {vr(4*s,4)}, {c}")
    stamp(A, 13)
    A("s_nop 11")
    red_write(A, ACC)
    A("s_waitcnt lgkmcnt(0)")
    A("s_barrier")
    red_read(A, 0)
    A("s_waitcnt lgkmcnt(0)")
    red_sum(A, 0)
    round_bf16(A, 0, T)
    for r in range(8): A(f"v_mul_f32 v{r}, v{r}, v{G+r}")
    for i in range(4): A(f"v_cvt_pk_bf16_f32 v{T+i}, v{2*i}, v{2*i+1}")
    A("s_nop 1")
    A(f"v_permlane32_swap_b32 v{T}, v{T+2}")
    A(f"v_permlane32_swap_b32 v{T+1}, v{T+3}")
    A("s_nop 1")
    for i in range(4):
        A(f"v_lshlrev_b32 v{2*i}, 16, v{T+i}")
        A(f"v_and_b32 v{2*i+1}, 0xffff0000, v{T+i}")
    for r in range(8): A(f"v_add_f32 v{r}, v{r}, v{144+r}")
    for i in range(4): A(f"v_cvt_pk_bf16_f32 v{T+i}, v{2*i}, v{2*i+1}")
    A(f"buffer_store_dwordx4 {vr(T,4)}, v252, {sr(S_OUT,4)}, s88 offen")
    if OPT["fixdur"]:
        A.lab("L_FIXDUR")
        A("s_memrealtime s[96:97]")
        A("s_waitcnt lgkmcnt(0)")
        A("s_sub_u32 s96, s96, s100")
        A(f"s_cmp_lt_u32 s96, {OPT['fixdur']}")
        A("s_cbranch_scc1 L_FIXDUR")
    if OPT["prof"]:
        stamp(A, 14)
        A(f"s_add_u32 s{S_T1}, s18, {PROF_OFF:#x}")
        A(f"s_addc_u32 s{S_T1+1}, s19, 0")
        A(f"s_mov_b32 s{S_T1+2}, 0x100000")
        A(f"s_mov_b32 s{S_T1+3}, 0x00020000")
        A("s_lshl_b32 s60, s2, 3")
        A("s_add_u32 s60, s60, s22")
        A("s_lshl_b32 s60, s60, 8")
        A(f"v_lshlrev_b32 v0, 2, v{L}")
        A(f"buffer_store_dword v255, v0, {sr(S_T1,4)}, s60 offen")
        if OPT["dbgout"]:
            A("s_cmp_lg_u32 s2, 200")
            A("s_cbranch_scc1 L_END")
            A("s_cmp_lg_u32 s22, 0")
            A("s_cbranch_scc1 L_END")
            A("v_readlane_b32 s61, v255, 32")
            A("v_readlane_b32 s63, v255, 0")
            A("v_mov_b32 v1, 0")
            A("s_mov_b64 exec, 1")
            for n, i in enumerate((2, 3, 4, 6, 9, 10, 12, 14)):
                A(f"v_readlane_b32 s62, v255, {32+i}")
                A("s_sub_u32 s62, s62, s61")
                A("v_mov_b32 v2, s62")
                A(f"buffer_store_dword v2, v1, {sr(S_DBG,4)}, 0 offen offset:{32+4*n}")
                A("s_nop 1")
            A("v_readlane_b32 s62, v255, 14")
            A("s_sub_u32 s62, s62, s63")
            A("v_mov_b32 v2, s62")
            A(f"buffer_store_dword v2, v1, {sr(S_DBG,4)}, 0 offen offset:28")

def gen_hooks(A):
    gen_attinit(A)
    A.lab("L_LOOPP")
    attn_body(A, "P")
    A("s_cmp_lt_u32 s83, 8")
    A("s_cbranch_scc1 L_LOOPP")
    A("s_branch L_ATT_DONE")
    A.lab("L_CODE_END")

def main(out):
    hdr = open(f"cdna_kernels/{NAME}.s.ref").read().split("\n")
    head = [l for l in hdr if l.startswith(";") and "@launch" not in l]
    head += [f"; @launch grid=(256,1,1) block=(512,1,1) lds={LDS_BYTES}"]
    A = Asm()
    d = gen(A)
    open(out, "w").write("\n".join(head) + '\n.amdgcn_target "amdgcn-amd-amdhsa--gfx950"\n' + A.text() + d)

if __name__ == "__main__":
    for a in sys.argv[2:]:
        k, _, v = a.partition("=")
        OPT[k] = eval(v) if v else True
    main(sys.argv[1] if len(sys.argv) > 1 else f"cdna_kernels/{NAME}.s")
```

```python
import sys, struct

NAME = "recurrent_scan__softmax_full_mha__glu_gated_geglu__prompt"
MB = 1 << 20
QF, KF, VF, OF, WOF, WDF, HF, FLAGS = 0, 2*MB, 4*MB, 6*MB, 8*MB, 9*MB, 11*MB, 17*MB
WS_BYTES = 18*MB
NFU = 86
LOG2E = 1.4426950408889634
def f2u(x): return struct.unpack("<I", struct.pack("<f", x))[0]

OPT = dict(prof=False, bias=98.0, force_fallback=False, sleep=2, barpos=1, itstamp=False, hplan=[1,1,1,1,1,1,2,1], sigt=1, psleep=3, gpre=24, wearly=True, spf=False, prefetch=False, dmaevery=12, dbgout=False, fixdur=0, codepf=True, noload=False, bstamp=False, pace=None, wpf=False, exp='', w64=False, lprio=0, enc=-1, cmap=True, prio='ramp2')
PROF_OFF = 24*MB
SPIN_MAX = 20000
VSH = 32

class Asm:
    def __init__(self): self.l = []
    def __call__(self, s): self.l.append(s if s.endswith(":") else "    " + s)
    def many(self, ss):
        for s in ss: self(s)
    def lab(self, s): self.l.append(s + ":")
    def raw(self, s): self.l.append(s)
    def text(self): return "\n".join(self.l) + "\n"
def vr(a, n): return f"v[{a}:{a+n-1}]"
def sr(a, n): return f"s[{a}:{a+n-1}]"
def srd(A, d, base, nbytes):
    A(f"s_mov_b32 s{d}, s{base}")
    A(f"s_mov_b32 s{d+1}, s{base+1}")
    A(f"s_mov_b32 s{d+2}, {nbytes:#x}")
    A(f"s_mov_b32 s{d+3}, 0x00020000")
def csel(A, d, a, b):
    A(f"s_mov_b32 s{d}, {b:#x}")
    A(f"s_cselect_b32 s{d}, {a:#x}, s{d}")
def stamp(A, i):
    if OPT["enc"] == i:
        A("s_memrealtime s[100:101]")
        A("s_waitcnt lgkmcnt(0)")
    if not OPT["prof"]: return
    A("s_memtime s[96:97]")
    A("s_memrealtime s[98:99]")
    A("s_waitcnt lgkmcnt(0)")
    A(f"v_writelane_b32 v255, s96, {i}")
    A(f"v_writelane_b32 v255, s98, {32+i}")

WR = 32768
WSL = 18560
UPOFF = 9344
QOFF = 135168
SCRATCH = 147456
SW = 163584
LDS_BYTES = 163840
OFLAG = FLAGS
QFLAG = OFLAG + 256*128
QCNT = QFLAG + 64*128
NZ = 6
S_X, S_W, S_WS, S_DBG, S_OUT, S_T1, S_T2 = 24, 28, 32, 36, 40, 44, 48
L = 254
S_ = [0, 16]; C_ = 32; DACC = 48; Q_ = 80; KB = [84, 88]; O_ = 144; V0 = [160, 164]; V1 = [168, 172]
IDX, KA, VA, L16 = 92, 93, 94, 95
DH = [104, 116, 128, 140]; DW_ = [108, 120, 132, 176]
WO = 184; XV = 248

def spin(A, tag, loads, cmp_lines, first_loaded=False):
    A(f"s_mov_b32 s70, {SPIN_MAX}")
    if not first_loaded: A.many(loads)
    A.lab(tag)
    A("s_waitcnt vmcnt(0)")
    A.many(cmp_lines)
    A(f"s_cbranch_scc1 {tag}_OK")
    A(f"s_sleep {OPT['sleep']}")
    A.many(loads)
    A("s_sub_u32 s70, s70, 1")
    A("s_cmp_lg_u32 s70, 0")
    A(f"s_cbranch_scc1 {tag}")
    A.lab(tag + "_OK")
def spin3(A, tag, regs, voff, soff, n, primed=0):
    A(f"s_mov_b32 s70, {SPIN_MAX}")
    for r in regs[primed:2]:
        A.many(apoll(r, voff, soff, 1))
        A(f"s_sleep {OPT['psleep']}")
    A.lab(tag)
    for k in range(3):
        A.many(apoll(regs[(k+2) % 3], voff, soff, 1))
        A("s_waitcnt vmcnt(2)")
        A.many(acmp(regs[k], n, 1))
        A(f"s_cbranch_scc1 {tag}_OK")
        A(f"s_sleep {OPT['psleep']}")
    A("s_sub_u32 s70, s70, 1")
    A("s_cmp_lg_u32 s70, 0")
    A(f"s_cbranch_scc1 {tag}")
    A.lab(tag + "_OK")
def apoll(dst, voff, soff, mask):
    return [f"v_mov_b32 v{dst}, 0", f"s_mov_b64 exec, {mask}",
            f"buffer_atomic_add v{dst}, v{voff}, {sr(S_WS,4)}, {soff} offen sc0", "s_mov_b64 exec, -1"]
def acmp(v, n, mask):
    return [f"v_cmp_eq_u32 vcc, {n}, v{v}", f"s_cmp_eq_u64 vcc, {mask}"]
ALL1 = lambda v: [f"v_cmp_ne_u32 vcc, 1, v{v}", "s_cmp_eq_u64 vcc, 0"]

def last_wave_signals(A, tag, off, last):
    A(f"v_mov_b32 v96, {SW}")
    A("v_mov_b32 v97, 1")
    A("s_mov_b64 exec, 1")
    A(f"ds_add_rtn_u32 v100, v96, v97 offset:{off}")
    A("s_waitcnt lgkmcnt(0)")
    A("s_mov_b64 exec, -1")
    A("v_readfirstlane_b32 s60, v100")
    A(f"s_cmp_lg_u32 s60, {last}")
    A(f"s_cbranch_scc1 {tag}")
    A("s_mov_b32 exec_hi, 0")
    A(f"v_lshlrev_b32 v96, 7, v{L}")
    A(f"buffer_atomic_add v97, v96, {sr(S_WS,4)}, s91 offen")
    A("s_mov_b64 exec, -1")
    A.lab(tag)

def gen(A):
    name = NAME + "_kernel"
    A.raw(".text"); A.raw(f".globl {name}"); A.raw(".p2align 8"); A.raw(f".type {name},@function")
    A.lab(name)
    A("s_cmp_ge_u32 s2, 256")
    A("s_cbranch_scc1 L_END")
    if OPT["fixdur"]: A("s_memrealtime s[100:101]")
    A("s_load_dwordx4 s[4:7], s[0:1], 0")
    A("s_load_dwordx2 s[8:9], s[0:1], 16")
    A("s_load_dwordx4 s[12:15], s[0:1], 32")
    A("s_load_dwordx4 s[52:55], s[0:1], 48")
    A("s_load_dwordx4 s[56:59], s[0:1], 64")
    if OPT["prof"]: A("v_mov_b32 v255, 0")
    stamp(A, 0)
    A("s_getpc_b64 s[60:61]")
    A.lab("L_PC")
    A("s_lshr_b32 s23, s2, 3")
    A("s_lshl_b32 s62, s23, 11")
    A("v_lshl_add_u32 v250, v0, 7, s62")
    A("v_cmp_gt_u32 s[62:63], 16, v0")
    A("v_cmp_gt_u32 vcc, L_CODE_END-L_PC-4, v250")
    A("v_lshrrev_b32 v252, 6, v0")
    A(f"v_and_b32 v{L}, 63, v0")
    A("s_and_b64 exec, vcc, s[62:63]")
    A("s_cbranch_execz L_NOPF")
    A("v_mov_b32 v251, s61")
    A("v_add_co_u32 v250, vcc, s60, v250")
    A("v_addc_co_u32 v251, vcc, 0, v251, vcc")
    A("global_load_dword v253, v[250:251], off")
    A.lab("L_NOPF")
    A("s_mov_b64 exec, -1")
    A("v_readfirstlane_b32 s22, v252")
    T = TL
    A(f"v_lshrrev_b32 v{T}, 3, v{L}")
    A(f"v_and_b32 v{T+1}, 7, v{L}")
    A(f"v_lshlrev_b32 v{VX}, 10, v{T}")
    A(f"v_lshl_add_u32 v{VX}, v{T+1}, 4, v{VX}")
    A("s_bfe_u32 s20, s2, 0x20001")
    A("s_lshl_b32 s20, s20, 2")
    A("s_and_b32 s60, s23, 3")
    A("s_add_u32 s20, s20, s60")
    A("s_cmp_lt_u32 s22, 4")
    A("s_cbranch_scc1 L_COMMON")
    loader_first(A)
    A.lab("L_COMMON")
    A("s_lshr_b32 s62, s23, 2")
    A("s_and_b32 s63, s2, 1")
    A("s_lshl_b32 s21, s62, 1")
    A("s_add_u32 s21, s21, s63")
    A("s_mul_i32 s63, s63, 5")
    A("s_add_u32 s63, s63, s62")
    A("s_add_u32 s63, s63, 3")
    A("s_cmp_ge_u32 s62, 3")
    A("s_cselect_b32 s21, s63, s21")
    A("s_waitcnt lgkmcnt(0)")
    srd(A, S_X, 4, 2048*512*2)
    A("s_mov_b64 s[16:17], s[52:53]")
    A("s_mov_b64 s[18:19], s[58:59]")
    srd(A, S_WS, 58, WS_BYTES)
    srd(A, S_DBG, 56, 256)
    srd(A, S_OUT, 54, 2048*512*2)
    srd(A, S_T1, 58, 0)
    srd(A, S_T2, 58, 0)
    for r in HOFF: A(f"s_mov_b32 s{r}, 0x7fff0000")
    A("s_cmp_lt_u32 s22, 4")
    A("s_cbranch_scc1 L_COMPUTE")
    gen_loader(A)
    A("s_branch L_P0")
    A.lab("L_COMPUTE")
    gen_init(A)
    A("s_cmp_ge_u32 s21, 6")
    A("s_cbranch_scc1 L_F")
    A("s_cmp_ge_u32 s21, 4")
    A("s_cbranch_scc1 L_V")
    gen_compute(A, "QK")
    A.lab("L_V")
    gen_compute(A, "V")
    A.lab("L_SIGNAL")
    A("s_and_b32 s91, s21, 1")
    A("s_lshl_b32 s91, s91, 12")
    A(f"s_add_u32 s91, s91, {QCNT:#x}")
    A("s_waitcnt vmcnt(0)")
    last_wave_signals(A, "L_SIG2", 0, 3)
    stamp(A, 15)
    A("s_branch L_P2")
    A.lab("L_F")
    gen_compute(A, "F")
    A.lab("L_P2")
    gen_attn(A)
    gen_final(A)
    A.lab("L_END")
    A("s_endpgm")
    gen_hooks(A)
    return f""".section .rodata,"a"
.p2align 6
.amdhsa_kernel {name}
  .amdhsa_next_free_vgpr 256
  .amdhsa_next_free_sgpr 102
  .amdhsa_accum_offset 256
  .amdhsa_group_segment_fixed_size 0
  .amdhsa_kernarg_size 80
  .amdhsa_user_sgpr_count 2
  .amdhsa_user_sgpr_kernarg_segment_ptr 1
  .amdhsa_system_sgpr_workgroup_id_x 1
.end_amdhsa_kernel
"""

def gen_init(A):
    R = 160
    A("s_cmp_lg_u32 s22, 0")
    A("s_cbranch_scc1 L_INIT1")
    for r in range(R, R+4): A(f"v_mov_b32 v{r}, 0")
    A(f"v_mov_b32 v{R+4}, {SW}")
    A(f"ds_write_b128 v{R+4}, {vr(R,4)}")
    A("s_sub_u32 s61, s2, 128")
    A(f"s_cmp_ge_u32 s61, {NZ}")
    A("s_cbranch_scc1 L_INIT1")
    A(f"v_lshlrev_b32 v{R+4}, 7, v{L}")
    A("s_lshl_b32 s60, s61, 13")
    A(f"s_add_u32 s60, s60, {FLAGS:#x}")
    A(f"buffer_store_dword v{R}, v{R+4}, {sr(S_WS,4)}, s60 offen sc1")
    A("s_nop 1")
    A.lab("L_INIT1")
    for r in range(144): A(f"v_mov_b32 v{r}, 0")
    A("s_call_b64 s[76:77], L_ATTINIT")
    A("s_lshr_b32 s60, s22, 1")
    A("s_and_b32 s61, s22, 1")

VW = 144
def gen_wsetup(A):
    T = 158
    A("s_bfe_u32 s62, s22, 0x10001")
    A("s_and_b32 s63, s22, 1")
    A("s_cmp_lt_u32 s21, 6")
    A("s_cbranch_scc1 LL_Q")
    A("s_cmp_eq_u32 s63, 0")
    A(f"s_cselect_b32 s{S_W}, s12, s14")
    A(f"s_cselect_b32 s{S_W+1}, s13, s15")
    A(f"s_mov_b32 s{S_W+2}, {512*1376*2:#x}")
    A("s_sub_u32 s64, s21, 6")
    A(f"s_mul_i32 s64, s64, {9*32}")
    A(f"s_mov_b32 s65, {2752-288}")
    A(f"v_mul_u32_u24 v{T+2}, 3641, v{L}")
    A(f"v_lshl_add_u32 v{T+3}, v{L}, 4, s64")
    for i in range(9):
        A(f"v_add_u32 v{T+4}, {64*i*3641}, v{T+2}")
        A(f"v_lshrrev_b32 v{T+4}, 16, v{T+4}")
        A(f"v_add_u32 v{T+5}, {1024*i}, v{T+3}")
        A(f"v_mad_u32_u24 v{VW+i}, v{T+4}, s65, v{T+5}")
    A(f"s_mov_b32 s68, {32*2752}")
    A("s_branch LL_C")
    A.lab("LL_Q")
    A(f"s_mov_b32 s{S_W}, s6")
    A(f"s_mov_b32 s{S_W+1}, s7")
    A(f"s_mov_b32 s{S_W+2}, {512*1536*2:#x}")
    A(f"v_lshrrev_b32 v{T+3}, 4, v{L}")
    A(f"v_mul_u32_u24 v{T+2}, 3072, v{T+3}")
    A(f"v_bfe_u32 v{T+4}, v{L}, 2, 2")
    A(f"v_xor_b32 v{T+4}, v{T+4}, v{T+3}")
    A(f"v_lshl_add_u32 v{T+2}, v{T+4}, 6, v{T+2}")
    A(f"v_and_b32 v{T+3}, 3, v{L}")
    A(f"v_lshl_add_u32 v{T+2}, v{T+3}, 4, v{T+2}")
    A("s_lshl_b32 s64, s21, 9")
    A("s_lshl_b32 s65, s63, 8")
    A("s_add_u32 s64, s64, s65")
    A(f"v_add_u32 v{VW}, s64, v{T+2}")
    for i in range(1, 9): A(f"v_add_u32 v{VW+i}, {i*4*3072}, v{VW}")
    A(f"s_mov_b32 s68, {32*3072}")
    A.lab("LL_C")
    A(f"s_mov_b32 s{S_W+3}, 0x00020000")
    A(f"s_mul_i32 s71, s62, {WSL}")
    A(f"s_mul_i32 s66, s63, {UPOFF}")
    A("s_add_u32 s71, s71, s66")
    A(f"s_add_u32 s71, s71, {WR}")
    A("s_mov_b32 s72, s71")
    A(f"s_add_u32 s73, s71, {6*WSL}")
    A("s_mul_i32 s74, s62, s68")
    A("s_lshl_b32 s68, s68, 1")

W_PREFETCH = ["s_add_u32 s67, s74, s68", "s_mov_b32 exec_hi, 0",
              f"buffer_load_dword v253, v{VW+9}, {sr(S_W,4)}, s67 offen", "s_mov_b64 exec, -1"]
_dma_n = [0]
def dma_piece(i): return [f"s_add_u32 m0, s72, {i*1024}", "s_nop 0", f"buffer_load_dwordx4 v{VW+i}, {sr(S_W,4)}, s74 offen lds"]
DMA_TAIL = ["s_add_u32 s74, s74, s68", f"s_add_u32 s72, s72, {2*WSL}", "s_cmp_eq_u32 s72, s73", "s_cselect_b32 s72, s71, s72"]
def dma_groups(first):
    g = [dma_piece(i) for i in range(first, 9)]
    _dma_n[0] += 1
    lab = f"LL_D{_dma_n[0]}"
    g[-1] = ["s_cmp_lt_u32 s21, 6", f"s_cbranch_scc1 {lab}"] + g[-1] + [lab + ":"] + DMA_TAIL
    return g
def mix(A, work, groups, every):
    groups = list(groups)
    for n, w in enumerate(work):
        if isinstance(every, (list, tuple)):
            for _ in range(every.count(n)):
                if groups: A.many(groups.pop(0))
        elif groups and n % every == 0: A.many(groups.pop(0))
        A(w)
    for g in groups: A.many(g)

HREG = 184
HOFF = [52, 53, 54, 55, 56, 57, 58, 59, 10]
def h_offsets(A):
    tiles = [(lu*2+lt, lu, lt) for lu in range(4) for lt in range(2)] + [(8, 4, 0)]
    for (tile, lu, lt) in tiles:
        A("s_add_u32 s66, s64, 8" if lu == 4 else f"s_add_u32 s66, s65, {lu}")
        A("s_lshl_b32 s67, s66, 10")
        A(f"s_add_u32 s67, s67, s{62+lt}")
        A(f"s_cmp_lt_u32 s66, {NFU}")
        A(f"s_cselect_b32 s{HOFF[tile]}, s67, 0x7fff0000")

SJ = 184
def side_setup(A):
    A("s_mul_i32 s75, s20, 10")
    A("s_add_u32 s75, s75, s21")
    A("s_sub_u32 s75, s75, 6")
    A("s_mul_i32 s75, s75, 3")
    A("s_add_u32 s75, s75, s60")
    A("s_sub_u32 s75, s75, 1")
    A(f"v_lshrrev_b32 v245, 5, v{L}")
    A("v_lshlrev_b32 v245, 10, v245")
    A(f"v_and_b32 v246, 31, v{L}")
    A("v_lshl_add_u32 v245, v246, 4, v245")
    for jb in range(2):
        S = 4 if jb else S_W
        A(f"s_add_u32 s90, s75, {480*jb}")
        A("s_cmp_lt_u32 s90, 256")
        A(f"s_cselect_b32 s{S}, s8, s16")
        A(f"s_cselect_b32 s{S+1}, s9, s17")
        csel(A, S+2, 512*512*2, 1376*512*2)
        A(f"s_mov_b32 s{S+3}, 0x00020000")
        csel(A, 91, WOF, WDF)
        csel(A, 67, 32*2048, NFU*2048)
        A("s_cselect_b32 s70, 0, 256")
        A("s_sub_u32 s70, s90, s70")
        A("s_lshr_b32 s94, s70, 3")
        A("s_and_b32 s70, s70, 7")
        A(f"s_lshl_b32 s{72+jb}, s94, 14")
        A("s_lshl_b32 s95, s70, 7")
        A(f"s_add_u32 s{72+jb}, s{72+jb}, s95")
        A("s_mul_i32 s70, s70, s67")
        A("s_lshl_b32 s94, s94, 11")
        A("s_add_u32 s70, s70, s94")
        A("s_add_u32 s70, s70, s91")
        A(f"s_cmp_lt_u32 s90, {256+8*NFU}")
        A(f"s_cselect_b32 s{92+jb}, s70, 0x7fff0000")
def side_prefetch(A):
    A("s_mov_b64 exec, 0xffff")
    A(f"buffer_load_dword v253, v245, {sr(S_T1,4)}, s81 offen")
    A(f"buffer_load_dword v253, v245, {sr(S_T2,4)}, s82 offen")
    A("s_mov_b64 exec, -1")
def side_loads(A, jb):
    S = 4 if jb else S_W
    for rho in range(16):
        hh = (rho >> 2) & 1; j = (rho & 3) + 4*(rho >> 3)
        d = SJ + 16*jb + 8*(j & 1) + 4*hh + (j >> 1)
        A(f"buffer_load_ushort v{d}, v244, {sr(S,4)}, s{72+jb} offen offset:{(rho&3)*1024}")
        if (rho & 3) == 3: A(f"s_add_u32 s{72+jb}, s{72+jb}, 4096")
def side_combine(A):
    for jb in range(2):
        d = SJ + 16*jb
        for i in range(8): A(f"v_lshl_or_b32 v{d+i}, v{d+8+i}, 16, v{d+i}")
        A(f"s_mov_b32 s{HOFF[4*jb]}, s{92+jb}")
        A(f"s_add_u32 s{HOFF[4*jb+1]}, s{92+jb}, 512")
    A("v_mov_b32 v249, v245")

def gen_compute(A, kind):
    F = kind == "F"
    NW = 5 if F else 4
    ND = 9 if F else 8
    XS = [176, 184]; WSET = [192, 212]
    XA = 232; XB = 236; WA = 240; T0 = 244
    KQ = 1152 if F else 1024
    US = 32
    P = "L1" + kind
    t, h, sw = T0, T0+1, T0+2
    A(f"v_and_b32 v{t}, 31, v{L}")
    A(f"v_lshrrev_b32 v{h}, 5, v{L}")
    A(f"v_bfe_u32 v{sw}, v{t}, 1, 3")
    A(f"v_xor_b32 v{sw}, v{sw}, v{h}")
    A(f"v_lshlrev_b32 v{T0+3}, 7, v{t}")
    A("s_lshl_b32 s62, s22, 12")
    for s in range(4):
        A(f"v_xor_b32 v{T0+4}, {2*s}, v{sw}")
        A(f"v_lshl_add_u32 v{T0+4}, v{T0+4}, 4, v{T0+3}")
        A(f"v_add_u32 v{XA+s}, s62, v{T0+4}")
        A(f"v_xor_b32 v{XB+s}, 0x1000, v{XA+s}")
    if F:
        A(f"v_bfe_u32 v{T0+5}, v{L}, 2, 2")
        A(f"v_mul_u32_u24 v{T0+5}, 288, v{T0+5}")
        A(f"v_and_b32 v{T0+3}, 3, v{L}")
        A(f"v_lshl_add_u32 v{T0+3}, v{T0+3}, 3, v{T0+5}")
        A(f"v_bfe_u32 v{T0+4}, v{L}, 4, 1")
        A(f"v_mul_u32_u24 v{T0+4}, {UPOFF}, v{T0+4}")
        A(f"v_add_u32 v{T0+3}, v{T0+3}, v{T0+4}")
    else:
        A(f"v_bfe_u32 v{T0+5}, v{L}, 2, 2")
        A(f"v_and_b32 v{T0+3}, 3, v{L}")
        A(f"v_lshlrev_b32 v{T0+3}, 3, v{T0+3}")
        A(f"v_lshl_add_u32 v{T0+3}, v{T0+5}, 8, v{T0+3}")
        A(f"v_bfe_u32 v{T0+4}, v{L}, 4, 1")
        A(f"v_lshl_add_u32 v{T0+3}, v{T0+4}, 5, v{T0+3}")
    A(f"v_mul_u32_u24 v{T0+4}, {2*KQ}, v{h}")
    A(f"v_add_u32 v{T0+3}, v{T0+3}, v{T0+4}")
    A(f"v_add_u32 v{T0+3}, {WR}, v{T0+3}")
    if F:
        A(f"s_mul_i32 s62, s61, {4*US}")
        A(f"v_add_u32 v{WA}, s62, v{T0+3}")
        A(f"v_add_u32 v{WA+1}, {8*US}, v{T0+3}")
    else:
        A(f"s_mul_i32 s62, s61, {UPOFF}")
        A(f"v_add_u32 v{T0+3}, s62, v{T0+3}")
        for lu in range(4):
            A(f"v_xor_b32 v{T0+4}, {lu}, v{T0+5}")
            A(f"v_lshl_add_u32 v{WA+lu}, v{T0+4}, 6, v{T0+3}")
    A("s_mov_b32 s64, 0")
    A("s_mov_b32 s65, 0")

    def reads(st, s):
        r = []
        hs, sp = s >> 1, s & 1
        def wread(lu):
            a = WA + ((1 if lu == 4 else 0) if F else lu)
            base = hs*WSL + 4*sp*KQ + (lu*US if F and lu < 4 else 0)
            d = WSET[st] + 4*lu
            return [f"ds_read_b64_tr_b16 {vr(d,2)}, v{a} offset:{base}",
                    f"ds_read_b64_tr_b16 {vr(d+2,2)}, v{a} offset:{base+KQ}"]
        r.append(f"ds_read_b128 {vr(XS[st],4)}, v{XA+s}")
        r += wread(0)
        r.append(f"ds_read_b128 {vr(XS[st]+4,4)}, v{XB+s}")
        for lu in range(1, NW): r += wread(lu)
        return r
    def mfma(tile, w, x):
        a, b = (x, w) if kind == "V" else (w, x)
        return f"v_mfma_f32_32x32x16_bf16 {vr(16*tile,16)}, {vr(a,4)}, {vr(b,4)}, {vr(16*tile,16)}"
    def mfmas(st):
        m = [mfma(lu*2+lt, WSET[st]+4*lu, XS[st]+4*lt) for lu in range(4) for lt in range(2)]
        if F: m.append(mfma(8, WSET[st]+16, XS[st]))
        return m
    stamp(A, 1)
    A("s_waitcnt vmcnt(0) lgkmcnt(0)" if F else "s_waitcnt lgkmcnt(0)")
    A("s_barrier")
    stamp(A, 2)
    A.many(reads(0, 0))
    if F:
        A("s_sub_u32 s66, s2, 128")
        A("s_lshl_b32 s67, s22, 8")
        A("s_add_u32 s66, s66, s67")
        A(f"s_cmp_ge_u32 s66, {NZ}")
        A(f"s_cbranch_scc1 {P}_LOOP")
        A("s_lshl_b32 s66, s66, 2")
        A("s_mov_b64 exec, 1")
        A("v_mov_b32 v250, 1")
        A("v_mov_b32 v251, 0")
        A(f"buffer_store_dword v250, v251, {sr(S_DBG,4)}, s66 offen sc1")
        A("s_mov_b64 exec, -1")
    A.raw(".p2align 6")
    A.lab(P + "_LOOP")
    NR = 2*NW + 2
    need = [3, 4, 6, 6, 8, 8, 10, 10, 12]
    for s in range(4):
        st = s & 1; nx = (s+1) & 3
        ms = mfmas(st); rd = reads(1-st, nx)
        n = len(ms)
        gaps = [[] for _ in ms]
        g0 = OPT["barpos"] if s == 3 else 0
        for i, r in enumerate(rd): gaps[g0 + i//2].append(r)
        xu = lambda k: [f"v_xor_b32 v{XA+k}, 0x4000, v{XA+k}", f"v_xor_b32 v{XB+k}, 0x4000, v{XB+k}"]
        if s < 3:
            gaps[n-2] += xu(nx)
        if s == 0: gaps[n-3] += xu(0)
        if s == 1:
            gaps[n-3] += ["s_cmp_eq_u32 s65, 2", f"s_mov_b32 s66, {2*WSL:#x}", f"s_cselect_b32 s66, {(-4*WSL) & 0xffffffff:#x}, s66"]
            gaps[n-1] += ["s_cselect_b32 s65, -1, s65", "s_add_u32 s65, s65, 1"]
        if s == 2:
            gaps[n-1] += [f"v_add_u32 v{WA+i}, s66, v{WA+i}" for i in range(2 if F else 4)]
        if s == 3:
            gaps[n-1] += ["s_add_u32 s64, s64, 1", "s_cmp_lt_u32 s64, 8"]
        issued = 0; done = 0
        for i, (m, g) in enumerate(zip(ms, gaps)):
            if need[i] > done:
                A(f"s_waitcnt lgkmcnt({min(15, NR - need[i] + issued)})"); done = need[i]
            A(m)
            if s == 3 and i == g0:
                A("s_waitcnt lgkmcnt(0)"); done = NR
                A("s_barrier")
            for x in g:
                A(x)
                if x.startswith("ds_"): issued += 1
    if OPT["prof"] and OPT["itstamp"]:
        A("s_memtime s[96:97]")
        A("s_add_u32 m0, s64, 19")
        A("s_waitcnt lgkmcnt(0)")
        A("v_writelane_b32 v255, s96, m0")
        A("s_cmp_lt_u32 s64, 8")
    A(f"s_cbranch_scc1 {P}_LOOP")
    stamp(A, 3)
    VO = 249
    if kind == "QK":
        A(f"v_and_b32 v{T0+6}, 0x33, v{L}")
        A(f"v_bfe_u32 v{T0+7}, v{L}, 2, 1")
        A(f"v_lshl_or_b32 v{T0+6}, v{T0+7}, 3, v{T0+6}")
        A(f"v_bfe_u32 v{T0+7}, v{L}, 3, 1")
        A(f"v_lshl_or_b32 v{T0+6}, v{T0+7}, 2, v{T0+6}")
        A("s_cmp_lt_u32 s21, 2")
        A("s_cselect_b64 vcc, -1, 0")
        A(f"v_cndmask_b32 v{VO}, v{T0+6}, v{L}, vcc")
        A(f"v_lshlrev_b32 v{VO}, 4, v{VO}")
    elif kind == "V":
        A(f"v_and_b32 v{VO}, 15, v{L}")
        A(f"v_lshlrev_b32 v{VO}, 4, v{VO}")
        A(f"v_lshl_or_b32 v{VO}, v{h}, 8, v{VO}")
        A(f"v_bfe_u32 v{T0+6}, v{L}, 4, 1")
        A(f"v_lshl_or_b32 v{VO}, v{T0+6}, 16, v{VO}")
    else:
        A(f"v_lshlrev_b32 v{VO}, 4, v{L}")
    A("s_lshl_b32 s62, s20, 2")
    A("s_add_u32 s62, s62, s22")
    A("s_xor_b32 s63, s62, 1")
    tiles = [(lu*2+lt, lu, lt) for lu in range(4) for lt in range(2)] + ([(8, 4, 0)] if F else [])
    if not F:
        A("s_lshl_b32 s64, s21, 20")
        A("s_lshl_b32 s65, s61, 19")
        A("s_add_u32 s64, s64, s65")
        A("s_lshl_b32 s62, s62, 10")
        A("s_lshl_b32 s63, s63, 10")
        A("s_add_u32 s62, s62, s64")
        A("s_add_u32 s63, s63, s64")
        for (tile, lu, lt) in tiles:
            a = 16*tile
            for i in range(4): A(f"v_cvt_pk_bf16_f32 v{a+i}, v{a+2*i}, v{a+2*i+1}")
            A(f"s_add_u32 s65, s{62+lt}, {lu*131072}")
            if OPT["pace"] is not None: A(f"s_waitcnt vmcnt({OPT['pace']})")
            A(f"buffer_store_dwordx4 {vr(a,4)}, v{VO}, {sr(S_WS,4)}, s65 offen sc1")
            for i in range(4): A(f"v_cvt_pk_bf16_f32 v{a+8+i}, v{a+8+2*i}, v{a+9+2*i}")
            if OPT["pace"] is not None: A(f"s_waitcnt vmcnt({OPT['pace']})")
            if kind == "QK":
                A("s_add_u32 s65, s65, 65536")
                A(f"buffer_store_dwordx4 {vr(a+8,4)}, v{VO}, {sr(S_WS,4)}, s65 offen sc1")
            else:
                A(f"buffer_store_dwordx4 {vr(a+8,4)}, v{VO}, {sr(S_WS,4)}, s65 offen offset:512 sc1")
        stamp(A, 4)
        if kind == "QK": A("s_branch L_SIGNAL")
    else:
        A(f"s_mul_i32 s62, s62, {NFU*1024}")
        A(f"s_mul_i32 s63, s63, {NFU*1024}")
        A(f"s_add_u32 s62, s62, {HF:#x}")
        A(f"s_add_u32 s63, s63, {HF:#x}")
        A("s_sub_u32 s64, s21, 6")
        A("s_mul_i32 s64, s64, 9")
        A("s_lshl_b32 s65, s61, 2")
        A("s_add_u32 s65, s65, s64")
        C1, C3, ONE, TT = 220, 222, 224, 176
        c1 = -2*0.7978845608028654*LOG2E
        A("s_waitcnt lgkmcnt(0)")
        for r, v in ((C1, c1), (C3, c1*0.044715), (ONE, 1.0)):
            A(f"v_mov_b32 v{r}, {f2u(v):#x}")
            A(f"v_mov_b32 v{r+1}, {f2u(v):#x}")
        dst = lambda tile: HREG + 4*tile
        h_offsets(A)
        for (tile, lu, lt) in tiles:
            a = 16*tile
            for i in range(4): A(f"v_pk_mul_f32 {vr(TT+2*i,2)}, {vr(a+2*i,2)}, {vr(a+2*i,2)}")
            for i in range(4): A(f"v_pk_fma_f32 {vr(TT+2*i,2)}, {vr(TT+2*i,2)}, {vr(C3,2)}, {vr(C1,2)}")
            for i in range(4): A(f"v_pk_mul_f32 {vr(TT+2*i,2)}, {vr(TT+2*i,2)}, {vr(a+2*i,2)}")
            for i in range(8): A(f"v_exp_f32 v{TT+i}, v{TT+i}")
            for i in range(4): A(f"v_pk_mul_f32 {vr(a+2*i,2)}, {vr(a+2*i,2)}, {vr(a+8+2*i,2)}")
            for i in range(4): A(f"v_pk_add_f32 {vr(TT+2*i,2)}, {vr(TT+2*i,2)}, {vr(ONE,2)}")
            for i in range(8): A(f"v_rcp_f32 v{TT+i}, v{TT+i}")
            A("s_nop 0")
            for i in range(4): A(f"v_pk_mul_f32 {vr(a+2*i,2)}, {vr(a+2*i,2)}, {vr(TT+2*i,2)}")
            for i in range(4): A(f"v_cvt_pk_bf16_f32 v{dst(tile)+i}, v{a+2*i}, v{a+2*i+1}")
        stamp(A, 4)

VX = 212; DW = 240; S1 = 216; S2 = 220; RR = 224; MR = 228; TL = 232
xreg = lambda c, i: (i*8 + c)*4
def xload_(A, i):
    A(f"s_add_u32 s{85+i}, s80, {i}")
    A(f"s_and_b32 s{85+i}, s{85+i}, 3")
    A(f"s_lshl_b32 s89, s{85+i}, 13")
    A("s_add_u32 s89, s89, s61")
    for c in range(8):
        A(f"buffer_load_dwordx4 {vr(xreg(c,i),4)}, v{VX}, {sr(S_X,4)}, s89 offen offset:{c*128}")
def loader_first(A):
    T = TL
    A("s_sub_u32 s60, s22, 4")
    A("s_lshl_b32 s61, s20, 17")
    A("s_lshl_b32 s62, s60, 15")
    A("s_add_u32 s61, s61, s62")
    A("s_lshr_b32 s80, s2, 5")
    A("s_waitcnt lgkmcnt(0)")
    srd(A, S_X, 4, 2048*512*2)
    xload_(A, 0); xload_(A, 1)

def gen_loader(A):
    T = TL
    xload = lambda i: xload_(A, i)
    gen_wsetup(A)
    xload(2)
    A("s_cmp_lt_u32 s21, 2")
    A(f"s_cselect_b32 s69, {f2u(0.25*LOG2E):#x}, 1.0")
    A("s_lshr_b32 s64, s21, 1")
    A("s_cmp_eq_u32 s64, 2")
    A(f"s_cselect_b32 s69, {f2u(2.0**VSH):#x}, s69")
    for r in range(S1, S2+4): A(f"v_mov_b32 v{r}, 0")
    A("s_mov_b32 s78, 0x3f803f80")
    A("v_mov_b32 v249, 0")
    A(f"v_lshlrev_b32 v244, 1, v{L}")
    A("s_cmp_ge_u32 s21, 6")
    A("s_cselect_b32 s79, s60, 0")
    def norm(c, i):
        x = xreg(c, i); r = []
        for d in range(4):
            r.append(f"v_lshlrev_b32 v{T+2*d}, 16, v{x+d}")
            r.append(f"v_and_b32 v{T+2*d+1}, 0xffff0000, v{x+d}")
        for d in range(8): r.append(f"v_fma_f32 v{T+d}, v{T+d}, v{RR+i}, -v{MR+i}")
        for d in range(4): r.append(f"v_cvt_pk_bf16_f32 v{x+d}, v{T+2*d}, v{T+2*d+1}")
        if OPT["w64"]:
            r.insert(-2, f"ds_write_b64 v{DW+i}, {vr(x,2)} offset:{(c&1)*16384}")
            r.append(f"ds_write_b64 v{DW+i}, {vr(x+2,2)} offset:{(c&1)*16384+8}")
        else: r.append(f"ds_write_b128 v{DW+i}, {vr(x,4)} offset:{(c&1)*16384}")
        return r
    def dots(i):
        r = []
        for k in range(32):
            r.append(f"v_dot2c_f32_bf16 v{S2+i}, v{xreg(0,i)+k}, v{xreg(0,i)+k}")
            r.append(f"v_dot2c_f32_bf16 v{S1+i}, s78, v{xreg(0,i)+k}")
        return r
    A("s_waitcnt vmcnt(16)"); stamp(A, 16)
    xload(3)
    A.many(dots(0))
    A(f"v_lshrrev_b32 v{T+2}, 4, v{L}")
    A(f"v_xor_b32 v{T+2}, v{T+2}, v{T+1}")
    A(f"v_lshlrev_b32 v{T+3}, 7, v{T}")
    A("s_lshl_b32 s64, s60, 12")
    A(f"v_add_u32 v{T+3}, s64, v{T+3}")
    A(f"v_lshl_add_u32 v{T+3}, v{T+2}, 4, v{T+3}")
    for i in range(4):
        A(f"s_and_b32 s64, s{85+i}, 1")
        A("s_lshl_b32 s64, s64, 6")
        A(f"s_lshl_b32 s65, s{85+i}, 10")
        A("s_or_b32 s64, s64, s65")
        A(f"v_xor_b32 v{DW+i}, s64, v{T+3}")
    def vmw(base, tag):
        A(f"s_waitcnt vmcnt({base+9})")
        A("s_cmp_ge_u32 s21, 6")
        A(f"s_cbranch_scc1 {tag}")
        A(f"s_waitcnt vmcnt({base+8})")
        A.lab(tag)
    A("s_waitcnt vmcnt(16)"); stamp(A, 17)
    if OPT["wearly"]:
        mix(A, dots(1), dma_groups(0), 7)
        vmw(8, "LL_G2"); stamp(A, 18)
        A.many(dots(2))
    else:
        A.many(dots(1))
        A("s_waitcnt vmcnt(8)"); stamp(A, 18)
        mix(A, dots(2), dma_groups(0), 7)
    vmw(0, "LL_G3")
    stamp(A, 19)
    A.many(dots(3))
    A("s_nop 2")
    for ctl in ("quad_perm:[1,0,3,2]", "quad_perm:[2,3,0,1]", "row_half_mirror"):
        for r in range(S1, S2+4):
            A(f"v_add_f32_dpp v{r}, v{r}, v{r} {ctl} row_mask:0xf bank_mask:0xf")
    seq = [
        lambda i: f"v_mul_f32 v{S1+i}, {f2u(1/512):#x}, v{S1+i}",
        lambda i: f"v_mul_f32 v{S2+i}, {f2u(1/512):#x}, v{S2+i}",
        lambda i: f"v_fma_f32 v{S2+i}, -v{S1+i}, v{S1+i}, v{S2+i}",
        lambda i: f"v_max_f32 v{S2+i}, 0, v{S2+i}",
        lambda i: f"v_cvt_pk_bf16_f32 v{S2+i}, v{S1+i}, v{S2+i}",
        lambda i: f"v_lshlrev_b32 v{S1+i}, 16, v{S2+i}",
        lambda i: f"v_and_b32 v{S2+i}, 0xffff0000, v{S2+i}",
        lambda i: f"v_add_f32 v{S2+i}, {f2u(1e-5):#x}, v{S2+i}",
        lambda i: f"v_cvt_pk_bf16_f32 v{S2+i}, v{S2+i}, v{S2+i}",
        lambda i: f"v_and_b32 v{S2+i}, 0xffff0000, v{S2+i}",
        lambda i: f"v_sqrt_f32 v{S2+i}, v{S2+i}",
        lambda i: f"v_cvt_pk_bf16_f32 v{S2+i}, v{S2+i}, v{S2+i}",
        lambda i: f"v_and_b32 v{S2+i}, 0xffff0000, v{S2+i}",
        lambda i: f"v_rcp_f32 v{RR+i}, v{S2+i}",
        lambda i: f"v_mul_f32 v{RR+i}, s69, v{RR+i}",
        lambda i: f"v_mul_f32 v{MR+i}, v{S1+i}, v{RR+i}",
    ]
    for f in seq:
        for i in range(4): A(f(i))
    stamp(A, 1)
    mix(A, sum((norm(0, i) for i in range(4)), []), dma_groups(0), OPT["dmaevery"])
    stamp(A, 2)
    dbg_load = [f"buffer_load_dword v97, v96, {sr(S_DBG,4)}, 0 offen sc1"]
    for m in range(8):
        if m == 4: stamp(A, 29)
        A(f"s_waitcnt vmcnt({8 if m < 7 else 0}) lgkmcnt(0)")
        if m == 4: stamp(A, 30)
        if m == 5:
            A.many(ALL1(97))
            A("s_cbranch_scc1 LL_POLL0_OK")
            spin(A, "LL_POLL0", dbg_load, ALL1(97))
        A("s_barrier")
        if m == 3: stamp(A, 28)
        if m == 4: stamp(A, 31)
        if m == 7: break
        work = sum((norm(m+1, i) for i in range(4)), [])
        isw = lambda w: w.startswith("ds_")
        if OPT["exp"] == "wlast": work = [w for w in work if not isw(w)] + [w for w in work if isw(w)]
        if OPT["exp"] == "wfirst":
            if m == 0: A.many(work)
            else: A.many([w for w in work if isw(w)])
            work = [w for w in sum((norm(m+2, i) for i in range(4)), []) if not isw(w)] if m < 6 else []
        if OPT["exp"].startswith("grp"):
            dg = dma_groups(0) if m < 6 else []
            split = {"grp": [3,2,2,2,0], "grp2": [0,3,3,3,0], "grp3": [2,3,2,2,0], "grp4": [4,3,2,0,0]}[OPT["exp"]]
            for _ in range(split[0]):
                if dg: A.many(dg.pop(0))
            for i in range(4):
                nn = norm(m+1, i)
                A.many(nn[:-1])
                for _ in range(split[i+1]):
                    if dg: A.many(dg.pop(0))
                A(nn[-1])
            work = None
        if OPT["exp"] == "nonorm": work = []
        if OPT["exp"] == "nowrite": work = [w for w in work if not w.startswith("ds_")]
        if OPT["exp"] == "dmalast":
            A.many(work); work = []
        if OPT["exp"] == "dmafirst":
            mix(A, [], dma_groups(0) if m < 6 else [], 1); A.many(work); continue
        if work is not None: mix(A, work, dma_groups(0) if m < 6 else [], OPT["dmaevery"])
        if m == 3:
            A(f"v_min_u32 v96, {NZ-1}, v{L}")
            A("v_lshlrev_b32 v96, 2, v96")
            A.many(dbg_load)
    A("s_mov_b32 s23, s79")
    side_setup(A)
    A("s_call_b64 s[76:77], L_ATTINIT")
    late_init(A)
    A("s_barrier")
    stamp(A, 3)
    A("s_cmp_eq_u32 s23, 0")
    A("s_cbranch_scc1 LL_S7")
    side_loads(A, 0)
    side_loads(A, 1)
    A.lab("LL_S7")
    A("s_cmp_lg_u32 s60, 0")
    A("s_cbranch_scc1 LL_WAITGO")
    A("v_mov_b32 v96, 0")
    A("s_bfe_u32 s64, s2, 0x10004")
    A("s_lshl_b32 s64, s64, 5")
    A("s_and_b32 s65, s2, 15")
    A("s_add_u32 s64, s64, s65")
    A("s_bfe_u32 s65, s2, 0x10005")
    A("s_lshl_b32 s65, s65, 4")
    A("s_add_u32 s64, s64, s65")
    A("s_lshl_b32 s64, s64, 7")
    A(f"s_add_u32 s64, s64, {QCNT:#x}")
    spin3(A, "LL_POLL", [0, 1, 2], 96, "s64", 48)
    A(f"v_mov_b32 v96, {SW}")
    A("v_mov_b32 v97, 1")
    A("ds_write_b32 v96, v97 offset:4")
    A("s_branch LL_GO")
    A.lab("LL_WAITGO")
    A(f"v_mov_b32 v96, {SW}")
    A(f"s_mov_b32 s70, {SPIN_MAX*16}")
    A.lab("LL_WG1")
    A("ds_read_b32 v97, v96 offset:4")
    A("s_waitcnt lgkmcnt(0)")
    A("v_readfirstlane_b32 s65, v97")
    A("s_cmp_lg_u32 s65, 0")
    A("s_cbranch_scc1 LL_GO")
    A("s_sleep 1")
    A("s_sub_u32 s70, s70, 1")
    A("s_cmp_lg_u32 s70, 0")
    A("s_cbranch_scc1 LL_WG1")
    A.lab("LL_GO")
    stamp(A, 4)
    A("s_and_b32 s64, s2, 31")
    A("s_lshl_b32 s64, s64, 16")
    A("s_lshl_b32 s65, s60, 11")
    A("s_add_u32 s64, s64, s65")
    A("s_lshr_b32 s66, s2, 5")
    A("s_lshl_b32 s66, s66, 13")
    A("s_add_u32 s66, s66, s64")
    A(f"s_add_u32 m0, s65, {QOFF}")
    A(f"s_add_u32 s67, s64, {KF:#x}")
    A(f"buffer_load_dwordx4 v95, {sr(S_WS,4)}, s66 offen sc1 lds")
    A(f"buffer_load_dwordx4 v95, {sr(S_WS,4)}, s66 offen offset:1024 sc1 lds")
    A(f"s_add_u32 s68, s64, {VF:#x}")
    for c in range(2):
        A(f"s_add_u32 m0, s65, {c*8192}")
        A("s_nop 0")
        A(f"buffer_load_dwordx4 v95, {sr(S_WS,4)}, s67 offen sc1 lds")
        A(f"buffer_load_dwordx4 v95, {sr(S_WS,4)}, s67 offen offset:1024 sc1 lds")
        A(f"s_add_u32 m0, s65, {65536 + c*8192}")
        A("s_add_u32 s67, s67, 8192")
        A(f"buffer_load_dwordx4 v95, {sr(S_WS,4)}, s68 offen sc1 lds")
        A(f"buffer_load_dwordx4 v95, {sr(S_WS,4)}, s68 offen offset:1024 sc1 lds")
        A("s_add_u32 s68, s68, 8192")
    A("s_cmp_eq_u32 s23, 0")
    A("s_cbranch_scc1 L_P0")
    A("s_waitcnt vmcnt(10)")
    side_combine(A)


def down_loads(A, slot):
    A(f"buffer_load_dwordx4 {vr(DH[slot],4)}, v{L16}, {sr(S_T1,4)}, s84 offen sc1")
    A(f"buffer_load_dwordx4 {vr(DW_[slot],4)}, v{L16}, {sr(S_T2,4)}, s85 offen sc1")
    A(f"buffer_load_dwordx4 {vr(DW_[slot]+4,4)}, v{L16}, {sr(S_T2,4)}, s85 offen offset:1024 sc1")
    A("s_add_u32 s84, s84, 1024")
    A("s_add_u32 s85, s85, 2048")

def kv_piece(k):
    if k & 1: return ["s_add_u32 m0, s95, 65536", "s_add_u32 s94, s94, 8192",
                      f"buffer_load_dwordx4 v{L16}, {sr(S_WS,4)}, s60 offen sc1 lds", "s_add_u32 s95, s95, 8192"]
    return ["s_mov_b32 m0, s95", f"s_add_u32 s60, s94, {VF-KF:#x}", f"buffer_load_dwordx4 v{L16}, {sr(S_WS,4)}, s94 offen sc1 lds"]
HPOLL = lambda: apoll(101, 100, "s75", 15)

def attn_body(A, mode):
    hs = 0
    for t in range(8):
        p = t & 1
        down = mode in "BC" or (mode == "2" and t >= 4)
        cur, prv = S_[p], S_[1-p]
        ex = lambda a, b: [A(f"v_exp_f32 v{cur+i}, v{cur+i}") for i in range(a, b)]
        if p == 0: A(f"s_setprio {3 - (t >> 1)}")
        A("s_waitcnt lgkmcnt(3)")
        ex(0, 2)
        if not (mode == "0" and t == 0):
            A(f"v_smfmac_f32_32x32x32_bf16 {vr(O_,16)}, {vr(V1[1-p],4)}, {vr(prv+8,8)}, v{IDX}")
        if mode == "0" and t < 6: A.many(kv_piece(2*t))
        ex(2, 6 if down else 7)
        A(f"v_mfma_f32_32x32x16_bf16 {vr(prv,16)}, {vr(KB[1-p],4)}, {vr(Q_,4)}, {vr(C_,16)}")
        A(f"ds_read_b128 {vr(KB[1-p],4)}, v{KA} offset:{(t+3)*1024}")
        if mode == "0" and t < 6: A.many(kv_piece(2*t+1))
        ex(6 if down else 7, 10 if down else 12)
        A(f"v_smfmac_f32_32x32x32_bf16 {vr(O_,16)}, {vr(V0[p],4)}, {vr(cur,8)}, v{IDX}")
        A("s_mov_b64 exec, s[80:81]")
        A(f"ds_read_b128 {vr(V0[p],4)}, v{VA} offset:{(t+2)*1024}")
        A(f"ds_read_b128 {vr(V1[1-p],4)}, v{VA} offset:{(t+1)*1024+512}")
        A("s_mov_b64 exec, -1")
        if mode == "0":
            for _ in range(OPT["hplan"][t]):
                A(f"buffer_store_dwordx4 {vr(HREG+4*hs,4)}, v249, {sr(S_WS,4)}, s{HOFF[hs]} offen sc1"); hs += 1
        if mode == "2" and t < 4: down_loads(A, (t + 2) & 3)
        if mode == "C":
            if t == 0: A(f"buffer_load_dwordx4 {vr(XV,4)}, v252, {sr(S_X,4)}, s88 offen")
            for i in range(2):
                A(f"buffer_load_dwordx4 {vr(WO+8*t+4*i,4)}, v{L16}, {sr(S_WS,4)}, s90 offen offset:{(2*p+i)*1024} sc1")
            if p: A("s_add_u32 s90, s90, 4096")
        if down:
            ex(10, 14)
            sl = t >> 1
            if p == 0: A(f"s_waitcnt vmcnt({12 + sl if mode == 'C' else 9})")
            cc = "0" if (mode == "2" and t < 6) else vr(DACC+16*p,16)
            A(f"v_mfma_f32_32x32x16_bf16 {vr(DACC+16*p,16)}, {vr(DW_[sl]+4*p,4)}, {vr(DH[sl],4)}, {cc}")
            if mode != "C" and p == 1: down_loads(A, sl)
            ex(14, 16)
        else:
            ex(12, 16)
        if mode == "1" and t == OPT["sigt"]:
            A("s_waitcnt vmcnt(0)")
            A("s_barrier")
            A("s_cmp_lg_u32 s14, 0")
            A("s_cbranch_scc1 L_NOSIG")
            A("s_mov_b64 exec, 0xff")
            A("v_mov_b32 v97, 1")
            A(f"v_lshlrev_b32 v96, 10, v{L}")
            A(f"buffer_atomic_add v97, v96, {sr(S_WS,4)}, s91 offen")
            A("s_mov_b64 exec, -1")
            A.lab("L_NOSIG")
        if mode == "1" and t == 6:
            A("s_cmp_lg_u32 s22, 0")
            A("s_cbranch_scc1 L_NOPQ")
            A(f"v_lshlrev_b32 v100, 7, v{L}")
            A.many(HPOLL())
            A.lab("L_NOPQ")
        if mode == "1" and t == 7:
            stamp(A, 8)
            A("s_cmp_lg_u32 s22, 0")
            A("s_cbranch_scc1 L_HPOLL_OK")
            spin(A, "L_HPOLL", HPOLL(), acmp(101, 40, 15), first_loaded=True)
            A("s_barrier")
            stamp(A, 9)
    if mode == "0": assert hs == 9
    if mode != "C":
        A(f"v_add_u32 v{KA}, 8192, v{KA}")
        A(f"v_add_u32 v{VA}, 8192, v{VA}")
        A("s_add_u32 s83, s83, 1")

def late_init(A):
    A(f"v_lshlrev_b32 v{L16}, 4, v{L}")
    A(f"v_mov_b32 v{IDX}, 0xdddd")
    A(f"v_and_b32 v98, 15, v{L}")
    A("v_lshlrev_b32 v98, 4, v98")
    A(f"v_lshrrev_b32 v99, 5, v{L}")
    A("v_lshl_or_b32 v98, v99, 8, v98")
    A("v_add_u32 v98, 65536, v98")
    A(f"v_add_u32 v99, s15, v{L16}")
    A(f"v_add_u32 v102, s16, v{L16}")
    A(f"v_add_u32 v103, s17, v{L16}")
    A(f"v_mov_b32 v{KA}, v{L16}")
    A(f"v_mov_b32 v{VA}, v98")
    A("v_mov_b32 v100, 0xff800000")
    A("v_mov_b32 v101, 0xff800000")

def gen_attinit(A):
    A.lab("L_ATTINIT")
    for r in range(O_, O_+32): A(f"v_mov_b32 v{r}, 0")
    A("s_mov_b32 s80, 0x00110000")
    A("s_mov_b32 s81, 0x00110000")
    A("s_mov_b64 exec, s[80:81]")
    for r in range(V0[0], V0[0]+16): A(f"v_mov_b32 v{r}, 0x3f803f80")
    A("s_mov_b64 exec, -1")
    A("s_mov_b32 s80, 0xffff")
    A("s_mov_b32 s81, 0xffff")
    A("s_mov_b32 s78, 1")
    A(f"s_mov_b32 s79, {f2u(-OPT['bias']):#x}")
    A("s_mov_b32 s82, 1")
    A(f"v_lshrrev_b32 v251, 5, v{L}")
    A(f"v_and_b32 v252, 31, v{L}")
    A("v_lshlrev_b32 v252, 10, v252")
    A("v_lshl_add_u32 v252, v251, 4, v252")
    A("s_lshl_b32 s15, s22, 10")
    A(f"s_add_u32 s15, s15, {QOFF}")
    A("s_and_b32 s91, s20, 3")
    A("s_lshl_b32 s91, s91, 7")
    A(f"s_add_u32 s91, s91, {QFLAG+4*128:#x}")
    A("s_cmp_lt_u32 s21, 6")
    A("s_cselect_b32 s14, 1, s22")
    A("s_and_b32 s75, s2, 7")
    A("s_lshl_b32 s75, s75, 10")
    A(f"s_add_u32 s75, s75, {QFLAG+4*128:#x}")
    A("s_lshr_b32 s61, s2, 5")
    A("s_lshl_b32 s61, s61, 3")
    A("s_add_u32 s61, s61, s22")
    A("s_lshl_b32 s61, s61, 5")
    A("s_and_b32 s62, s2, 31")
    A("s_add_u32 s61, s61, s62")
    A("s_lshr_b32 s12, s61, 3")
    A("s_lshl_b32 s12, s12, 7")
    A(f"s_add_u32 s12, s12, {OFLAG:#x}")
    A("s_lshl_b32 s11, s61, 10")
    A(f"s_add_u32 s11, s11, {OF:#x}")
    A("s_and_b32 s94, s2, 31")
    A("s_lshl_b32 s94, s94, 16")
    A("s_lshl_b32 s95, s22, 10")
    A("s_add_u32 s95, s95, 16384")
    A("s_add_u32 s94, s94, s95")
    A(f"s_add_u32 s94, s94, {KF:#x}")
    A("s_and_b32 s67, s2, 7")
    A("s_bfe_u32 s61, s2, 0x20003")
    A("s_lshl_b32 s67, s67, 2")
    A("s_add_u32 s67, s67, s61")
    A("s_lshr_b32 s61, s2, 5")
    A("s_and_b32 s62, s22, 1")
    A("s_lshl_b32 s67, s67, 1")
    A("s_add_u32 s67, s67, s62")
    A("s_lshr_b32 s62, s22, 1")
    A("s_mul_i32 s63, s62, 22")
    A("s_cmp_eq_u32 s62, 3")
    A("s_cselect_b32 s63, 65, s63")
    A("s_cmp_lt_u32 s62, 2")
    A("s_cselect_b32 s64, 22, 21")
    A(f"s_mul_i32 s65, s67, {NFU}")
    A("s_add_u32 s65, s65, s63")
    A("s_lshl_b32 s65, s65, 10")
    A(f"s_add_u32 s65, s65, {HF:#x}")
    A(f"s_add_u32 s{S_T1}, s18, s65")
    A(f"s_addc_u32 s{S_T1+1}, s19, 0")
    A(f"s_lshl_b32 s{S_T1+2}, s64, 10")
    A(f"s_mov_b32 s{S_T1+3}, 0x00020000")
    A(f"s_mul_i32 s65, s61, {NFU}")
    A("s_add_u32 s65, s65, s63")
    A("s_lshl_b32 s65, s65, 11")
    A(f"s_add_u32 s65, s65, {WDF:#x}")
    A(f"s_add_u32 s{S_T2}, s18, s65")
    A(f"s_addc_u32 s{S_T2+1}, s19, 0")
    A(f"s_lshl_b32 s{S_T2+2}, s64, 11")
    A(f"s_mov_b32 s{S_T2+3}, 0x00020000")
    A("s_mov_b32 s84, 0")
    A("s_mov_b32 s85, 0")
    A("s_lshl_b32 s90, s61, 16")
    A("s_lshl_b32 s66, s62, 14")
    A("s_add_u32 s90, s90, s66")
    A(f"s_add_u32 s90, s90, {WOF:#x}")
    A("s_lshl_b32 s87, s67, 15")
    A("s_lshl_b32 s66, s62, 13")
    A("s_add_u32 s87, s87, s66")
    A(f"s_add_u32 s87, s87, {OF:#x}")
    A("s_lshl_b32 s88, s67, 15")
    A("s_lshl_b32 s66, s61, 7")
    A("s_add_u32 s88, s88, s66")
    A("s_lshl_b32 s66, s62, 5")
    A("s_add_u32 s88, s88, s66")
    A(f"s_sub_u32 s13, s87, {OF:#x}")
    A("s_lshr_b32 s13, s13, 6")
    A(f"s_add_u32 s13, s13, {OFLAG:#x}")
    red_addr(A)
    A("s_setpc_b64 s[76:77]")

def gen_attn(A):
    A("s_waitcnt lgkmcnt(0)")
    late_init(A)
    A.lab("L_P0")
    stamp(A, 5)
    A("s_waitcnt vmcnt(0)")
    A("s_barrier")
    stamp(A, 6)
    A(f"ds_read_b128 {vr(Q_,4)}, v99")
    A.lab("L_MAXLOOP")
    A(f"ds_read_b128 {vr(KB[0],4)}, v{KA}")
    A(f"ds_read_b128 {vr(KB[1],4)}, v{KA} offset:1024")
    A("s_mov_b64 exec, s[80:81]")
    A(f"ds_read_b128 {vr(V0[0],4)}, v{VA}")
    A("s_mov_b64 exec, -1")
    A("s_waitcnt lgkmcnt(2)")
    A(f"v_mfma_f32_32x32x16_bf16 {vr(S_[0],16)}, {vr(KB[0],4)}, {vr(Q_,4)}, 0")
    A("s_waitcnt lgkmcnt(1)")
    A(f"v_mfma_f32_32x32x16_bf16 {vr(C_,16)}, {vr(KB[1],4)}, {vr(Q_,4)}, 0")
    A(f"v_subrev_u32 v{KA}, 2048, v{KA}")
    A("s_nop 9")
    for i in range(8): A(f"v_max3_f32 v100, v{2*i}, v{2*i+1}, v100")
    for i in range(8): A(f"v_max3_f32 v101, v{C_+2*i}, v{C_+2*i+1}, v101")
    A("s_sub_u32 s78, s78, 1")
    A("s_cmp_lg_u32 s78, 0")
    A("s_cbranch_scc1 L_MAXLOOP")
    A("v_max_f32 v100, v100, v101")
    A(f"v_mov_b32 v{KA}, v{L16}")
    A("v_mov_b32 v101, v100")
    A("s_nop 1")
    A("v_permlane32_swap_b32 v100, v101")
    A("s_nop 1")
    A("v_max_f32 v100, v100, v101")
    for r in range(16): A(f"v_sub_f32 v{C_+r}, s79, v100")
    A("s_nop 1")
    A(f"v_mfma_f32_32x32x16_bf16 {vr(S_[0],16)}, {vr(KB[0],4)}, {vr(Q_,4)}, {vr(C_,16)}")
    A(f"ds_read_b128 {vr(KB[0],4)}, v{KA} offset:2048")
    A("s_mov_b64 exec, s[80:81]")
    A(f"ds_read_b128 {vr(V0[1],4)}, v{VA} offset:1024")
    A(f"ds_read_b128 {vr(V1[0],4)}, v{VA} offset:512")
    A("s_mov_b64 exec, -1")
    A("s_mov_b32 s83, 0")
    stamp(A, 7)
    A("s_nop 4")
    A("s_cmp_eq_u32 s82, 0")
    A("s_cbranch_scc1 L_LOOPP")
    attn_body(A, "0")
    attn_body(A, "1")
    attn_body(A, "2")
    A.lab("L_LOOPB")
    attn_body(A, "B")
    if OPT["prof"] and OPT["bstamp"]:
        A("s_memtime s[96:97]")
        A("s_add_u32 m0, s83, 17")
        A("s_waitcnt lgkmcnt(0)")
        A("v_writelane_b32 v255, s96, m0")
    A("s_cmp_lt_u32 s83, 7")
    A("s_cbranch_scc1 L_LOOPB")
    attn_body(A, "C")
    A.lab("L_ATT_DONE")
    A("s_waitcnt lgkmcnt(0)")
    stamp(A, 10)
    A(f"v_smfmac_f32_32x32x32_bf16 {vr(O_,16)}, {vr(V1[1],4)}, {vr(S_[1]+8,8)}, v{IDX}")
    A("s_setprio 3")
    A(f"v_mov_b32 v96, {f2u(2.0**90):#x}")
    A(f"v_mov_b32 v97, {f2u(2.0**120):#x}")
    A(f"v_mov_b32 v99, {f2u(2.0**-100):#x}")
    A("s_nop 7")
    A(f"v_rcp_f32 v101, v{O_+8}")
    A("s_nop 0")
    A(f"v_mul_f32 v101, {f2u(2.0**-VSH):#x}, v101")
    for r in range(8): A(f"v_mul_f32 v{r}, v{O_+r}, v101")
    for i in range(4): A(f"v_cvt_pk_bf16_f32 v{8+i}, v{2*i}, v{2*i+1}")
    A(f"buffer_store_dwordx4 {vr(8,4)}, v{L16}, {sr(S_WS,4)}, s11 offen sc1")
    A("s_cmp_eq_u32 s82, 0")
    A("s_cbranch_scc1 L_FIN")
    A(f"v_add_f32 v100, abs(v{O_}), abs(v{O_+1})")
    for r in range(2, 8): A(f"v_add_f32 v100, v100, abs(v{O_+r})")
    A(f"v_cmp_nlt_f32 s[62:63], v{O_+8}, v96")
    A("v_cmp_nlt_f32 s[64:65], v100, v97")
    A("v_cmp_lt_f32 vcc, v100, v99")
    A("s_or_b64 s[62:63], s[62:63], s[64:65]")
    A("s_or_b64 s[62:63], s[62:63], vcc")
    A("s_cmp_eq_u64 s[62:63], 0")
    if not OPT["force_fallback"]: A("s_cbranch_scc1 L_FIN")
    A("s_mov_b32 s78, 32")
    A("s_mov_b32 s79, 0")
    A("s_mov_b32 s82, 0")
    A(f"v_mov_b32 v{VA}, v98")
    A("v_mov_b32 v100, 0xff800000")
    A("v_mov_b32 v101, 0xff800000")
    for r in range(16): A(f"v_mov_b32 v{O_+r}, 0")
    for r in range(8, 16): A(f"v_mov_b32 v{S_[1]+r}, 0")
    A(f"v_add_u32 v{KA}, {62*1024}, v{L16}")
    A("s_waitcnt vmcnt(0)")
    A("s_branch L_MAXLOOP")
    A.lab("L_FIN")

def red_addr(A):
    A("s_and_b32 s62, s22, 1")
    A("s_lshr_b32 s63, s22, 1")
    A("s_lshl_b32 s62, s62, 15")
    A("s_lshl_b32 s64, s63, 11")
    A("s_add_u32 s64, s64, s62")
    A("s_mov_b32 s16, s64")
    A("s_lshl_b32 s64, s63, 13")
    A("s_add_u32 s64, s64, s62")
    A("s_mov_b32 s17, s64")
def red_write(A, acc):
    for q in range(4):
        for hf in range(2):
            A(f"ds_write_b128 v102, {vr(acc+8*q+4*hf,4)} offset:{q*8192 + hf*1024}")
def red_read(A, dst):
    for s in range(4):
        for hf in range(2):
            A(f"ds_read_b128 {vr(dst+8*s+4*hf,4)}, v103 offset:{s*2048 + hf*1024}")
def red_sum(A, dst):
    for r in range(8):
        A(f"v_add_f32 v{dst+r}, v{dst+r}, v{dst+8+r}")
        A(f"v_add_f32 v{dst+16+r}, v{dst+16+r}, v{dst+24+r}")
    for r in range(8): A(f"v_add_f32 v{dst+r}, v{dst+r}, v{dst+16+r}")
def round_bf16(A, regs, tmp):
    for i in range(4): A(f"v_cvt_pk_bf16_f32 v{tmp+i}, v{regs+2*i}, v{regs+2*i+1}")
    for i in range(4):
        A(f"v_lshlrev_b32 v{regs+2*i}, 16, v{tmp+i}")
        A(f"v_and_b32 v{regs+2*i+1}, 0xffff0000, v{tmp+i}")

def gen_final(A):
    A("v_mov_b32 v96, 1")
    A("v_mov_b32 v97, 0")
    A("s_waitcnt vmcnt(0)")
    A("s_mov_b64 exec, 1")
    A(f"buffer_atomic_add v96, v97, {sr(S_WS,4)}, s12 offen")
    A("s_mov_b64 exec, -1")
    stamp(A, 11)
    A.many(apoll(32, 97, "s13", 1))
    A("s_barrier")
    red_write(A, DACC)
    spin3(A, "L_OPOLL", [32, 33, 34], 97, "s13", 8, primed=1)
    stamp(A, 12)
    for s in range(8):
        A(f"buffer_load_dwordx4 {vr(4*s,4)}, v{L16}, {sr(S_WS,4)}, s87 offen offset:{(s&3)*1024} sc1")
        if s == 3: A("s_add_u32 s87, s87, 4096")
    A("s_waitcnt lgkmcnt(0)")
    A("s_barrier")
    G = DACC; T = 136
    red_read(A, G)
    A("v_add_u32 v102, 65536, v102")
    A("v_add_u32 v103, 65536, v103")
    for i in range(4):
        A(f"v_lshlrev_b32 v{144+2*i}, 16, v{XV+i}")
        A(f"v_and_b32 v{145+2*i}, 0xffff0000, v{XV+i}")
    A("s_waitcnt lgkmcnt(0)")
    B = Asm()
    red_sum(B, G)
    round_bf16(B, G, T)
    for r in range(8): B(f"v_mul_f32 v{T+r}, {f2u(-LOG2E):#x}, v{G+r}")
    for r in range(8): B(f"v_exp_f32 v{T+r}, v{T+r}")
    for r in range(8): B(f"v_add_f32 v{T+r}, 1.0, v{T+r}")
    for r in range(8): B(f"v_rcp_f32 v{T+r}, v{T+r}")
    for r in range(8): B(f"v_mul_f32 v{G+r}, v{G+r}, v{T+r}")
    round_bf16(B, G, T)
    gw = [x.strip() for x in B.l]
    A.many(gw[:OPT["gpre"]]); gw = gw[OPT["gpre"]:]
    ACC = 104
    for s in range(8):
        A(f"s_waitcnt vmcnt({7-s})")
        for nt in range(2):
            c = "0" if s == 0 else vr(ACC+16*nt,16)
            A(f"v_mfma_f32_32x32x16_bf16 {vr(ACC+16*nt,16)}, {vr(WO+8*s+4*nt,4)}, {vr(4*s,4)}, {c}")
            A.many(gw[:4]); gw = gw[4:]
    A.many(gw)
    stamp(A, 13)
    A("s_nop 11")
    red_write(A, ACC)
    A("s_waitcnt lgkmcnt(0)")
    A("s_barrier")
    red_read(A, 0)
    A("s_waitcnt lgkmcnt(0)")
    red_sum(A, 0)
    round_bf16(A, 0, T)
    for r in range(8): A(f"v_mul_f32 v{r}, v{r}, v{G+r}")
    for i in range(4): A(f"v_cvt_pk_bf16_f32 v{T+i}, v{2*i}, v{2*i+1}")
    A("s_nop 1")
    A(f"v_permlane32_swap_b32 v{T}, v{T+2}")
    A(f"v_permlane32_swap_b32 v{T+1}, v{T+3}")
    A("s_nop 1")
    for i in range(4):
        A(f"v_lshlrev_b32 v{2*i}, 16, v{T+i}")
        A(f"v_and_b32 v{2*i+1}, 0xffff0000, v{T+i}")
    for r in range(8): A(f"v_add_f32 v{r}, v{r}, v{144+r}")
    for i in range(4): A(f"v_cvt_pk_bf16_f32 v{T+i}, v{2*i}, v{2*i+1}")
    A(f"buffer_store_dwordx4 {vr(T,4)}, v252, {sr(S_OUT,4)}, s88 offen")
    if OPT["fixdur"]:
        A.lab("L_FIXDUR")
        A("s_memrealtime s[96:97]")
        A("s_waitcnt lgkmcnt(0)")
        A("s_sub_u32 s96, s96, s100")
        A(f"s_cmp_lt_u32 s96, {OPT['fixdur']}")
        A("s_cbranch_scc1 L_FIXDUR")
    if OPT["prof"]:
        stamp(A, 14)
        A(f"s_add_u32 s{S_T1}, s18, {PROF_OFF:#x}")
        A(f"s_addc_u32 s{S_T1+1}, s19, 0")
        A(f"s_mov_b32 s{S_T1+2}, 0x100000")
        A(f"s_mov_b32 s{S_T1+3}, 0x00020000")
        A("s_lshl_b32 s60, s2, 3")
        A("s_add_u32 s60, s60, s22")
        A("s_lshl_b32 s60, s60, 8")
        A(f"v_lshlrev_b32 v0, 2, v{L}")
        A(f"buffer_store_dword v255, v0, {sr(S_T1,4)}, s60 offen")
        if OPT["dbgout"]:
            A("s_cmp_lg_u32 s2, 200")
            A("s_cbranch_scc1 L_END")
            A("s_cmp_lg_u32 s22, 0")
            A("s_cbranch_scc1 L_END")
            A("v_readlane_b32 s61, v255, 32")
            A("v_readlane_b32 s63, v255, 0")
            A("v_mov_b32 v1, 0")
            A("s_mov_b64 exec, 1")
            for n, i in enumerate((2, 3, 4, 6, 9, 10, 12, 14)):
                A(f"v_readlane_b32 s62, v255, {32+i}")
                A("s_sub_u32 s62, s62, s61")
                A("v_mov_b32 v2, s62")
                A(f"buffer_store_dword v2, v1, {sr(S_DBG,4)}, 0 offen offset:{32+4*n}")
                A("s_nop 1")
            A("v_readlane_b32 s62, v255, 14")
            A("s_sub_u32 s62, s62, s63")
            A("v_mov_b32 v2, s62")
            A(f"buffer_store_dword v2, v1, {sr(S_DBG,4)}, 0 offen offset:28")

def gen_hooks(A):
    gen_attinit(A)
    A.lab("L_LOOPP")
    attn_body(A, "P")
    A("s_cmp_lt_u32 s83, 8")
    A("s_cbranch_scc1 L_LOOPP")
    A("s_branch L_ATT_DONE")
    A.lab("L_CODE_END")

def main(out):
    hdr = open(f"cdna_kernels/{NAME}.s.ref").read().split("\n")
    head = [l for l in hdr if l.startswith(";") and "@launch" not in l]
    head += [f"; @launch grid=(256,1,1) block=(512,1,1) lds={LDS_BYTES}"]
    A = Asm()
    d = gen(A)
    open(out, "w").write("\n".join(head) + '\n.amdgcn_target "amdgcn-amd-amdhsa--gfx950"\n' + A.text() + d)

if __name__ == "__main__":
    for a in sys.argv[2:]:
        k, _, v = a.partition("=")
        OPT[k] = eval(v) if v else True
    main(sys.argv[1] if len(sys.argv) > 1 else f"cdna_kernels/{NAME}.s")
```

```python
import sys, struct

NAME = "recurrent_scan__softmax_full_mha__glu_gated_geglu__prompt"
MB = 1 << 20
QF, KF, VF, OF, WOF, WDF, HF, FLAGS = 0, 2*MB, 4*MB, 6*MB, 8*MB, 9*MB, 11*MB, 17*MB
WS_BYTES = 18*MB
NFU = 86
LOG2E = 1.4426950408889634
def f2u(x): return struct.unpack("<I", struct.pack("<f", x))[0]

OPT = dict(prof=False, bias=98.0, force_fallback=False, sleep=2, barpos=1, itstamp=False, hplan=[1,1,1,1,1,1,2,1], sigt=1, psleep=3, gpre=24, wearly=False, peel=True, spf=False, prefetch=False, dmaevery=12, dbgout=False, fixdur=0, codepf=True, noload=False, bstamp=False, pace=None, wpf=False, exp='', w64=False, lprio=0, enc=-1, cmap=True, prio='ramp2')
PROF_OFF = 24*MB
SPIN_MAX = 20000
VSH = 32

class Asm:
    def __init__(self): self.l = []
    def __call__(self, s): self.l.append(s if s.endswith(":") else "    " + s)
    def many(self, ss):
        for s in ss: self(s)
    def lab(self, s): self.l.append(s + ":")
    def raw(self, s): self.l.append(s)
    def text(self): return "\n".join(self.l) + "\n"
def vr(a, n): return f"v[{a}:{a+n-1}]"
def sr(a, n): return f"s[{a}:{a+n-1}]"
def srd(A, d, base, nbytes):
    A(f"s_mov_b32 s{d}, s{base}")
    A(f"s_mov_b32 s{d+1}, s{base+1}")
    A(f"s_mov_b32 s{d+2}, {nbytes:#x}")
    A(f"s_mov_b32 s{d+3}, 0x00020000")
def csel(A, d, a, b):
    A(f"s_mov_b32 s{d}, {b:#x}")
    A(f"s_cselect_b32 s{d}, {a:#x}, s{d}")
def stamp(A, i):
    if OPT["enc"] == i:
        A("s_memrealtime s[100:101]")
        A("s_waitcnt lgkmcnt(0)")
    if not OPT["prof"]: return
    A("s_memtime s[96:97]")
    A("s_memrealtime s[98:99]")
    A("s_waitcnt lgkmcnt(0)")
    A(f"v_writelane_b32 v255, s96, {i}")
    A(f"v_writelane_b32 v255, s98, {32+i}")

WR = 32768
WSL = 18560
UPOFF = 9344
QOFF = 135168
SCRATCH = 147456
SW = 163584
LDS_BYTES = 163840
OFLAG = FLAGS
QFLAG = OFLAG + 256*128
QCNT = QFLAG + 64*128
NZ = 6
S_X, S_W, S_WS, S_DBG, S_OUT, S_T1, S_T2 = 24, 28, 32, 36, 40, 44, 48
L = 254
S_ = [0, 16]; C_ = 32; DACC = 48; Q_ = 80; KB = [84, 88]; O_ = 144; V0 = [160, 164]; V1 = [168, 172]
IDX, KA, VA, L16 = 92, 93, 94, 95
DH = [104, 116, 128, 140]; DW_ = [108, 120, 132, 176]
WO = 184; XV = 248

def spin(A, tag, loads, cmp_lines, first_loaded=False):
    A(f"s_mov_b32 s70, {SPIN_MAX}")
    if not first_loaded: A.many(loads)
    A.lab(tag)
    A("s_waitcnt vmcnt(0)")
    A.many(cmp_lines)
    A(f"s_cbranch_scc1 {tag}_OK")
    A(f"s_sleep {OPT['sleep']}")
    A.many(loads)
    A("s_sub_u32 s70, s70, 1")
    A("s_cmp_lg_u32 s70, 0")
    A(f"s_cbranch_scc1 {tag}")
    A.lab(tag + "_OK")
def spin3(A, tag, regs, voff, soff, n, primed=0):
    A(f"s_mov_b32 s70, {SPIN_MAX}")
    for r in regs[primed:2]:
        A.many(apoll(r, voff, soff, 1))
        A(f"s_sleep {OPT['psleep']}")
    A.lab(tag)
    for k in range(3):
        A.many(apoll(regs[(k+2) % 3], voff, soff, 1))
        A("s_waitcnt vmcnt(2)")
        A.many(acmp(regs[k], n, 1))
        A(f"s_cbranch_scc1 {tag}_OK")
        A(f"s_sleep {OPT['psleep']}")
    A("s_sub_u32 s70, s70, 1")
    A("s_cmp_lg_u32 s70, 0")
    A(f"s_cbranch_scc1 {tag}")
    A.lab(tag + "_OK")
def apoll(dst, voff, soff, mask):
    return [f"v_mov_b32 v{dst}, 0", f"s_mov_b64 exec, {mask}",
            f"buffer_atomic_add v{dst}, v{voff}, {sr(S_WS,4)}, {soff} offen sc0", "s_mov_b64 exec, -1"]
def acmp(v, n, mask):
    return [f"v_cmp_eq_u32 vcc, {n}, v{v}", f"s_cmp_eq_u64 vcc, {mask}"]
ALL1 = lambda v: [f"v_cmp_ne_u32 vcc, 1, v{v}", "s_cmp_eq_u64 vcc, 0"]

def last_wave_signals(A, tag, off, last):
    A(f"v_mov_b32 v96, {SW}")
    A("v_mov_b32 v97, 1")
    A("s_mov_b64 exec, 1")
    A(f"ds_add_rtn_u32 v100, v96, v97 offset:{off}")
    A("s_waitcnt lgkmcnt(0)")
    A("s_mov_b64 exec, -1")
    A("v_readfirstlane_b32 s60, v100")
    A(f"s_cmp_lg_u32 s60, {last}")
    A(f"s_cbranch_scc1 {tag}")
    A("s_mov_b32 exec_hi, 0")
    A(f"v_lshlrev_b32 v96, 7, v{L}")
    A(f"buffer_atomic_add v97, v96, {sr(S_WS,4)}, s91 offen")
    A("s_mov_b64 exec, -1")
    A.lab(tag)

def gen(A):
    name = NAME + "_kernel"
    A.raw(".text"); A.raw(f".globl {name}"); A.raw(".p2align 8"); A.raw(f".type {name},@function")
    A.lab(name)
    A("s_cmp_ge_u32 s2, 256")
    A("s_cbranch_scc1 L_END")
    if OPT["fixdur"]: A("s_memrealtime s[100:101]")
    A("s_load_dwordx4 s[4:7], s[0:1], 0")
    A("s_load_dwordx2 s[8:9], s[0:1], 16")
    A("s_load_dwordx4 s[12:15], s[0:1], 32")
    A("s_load_dwordx4 s[52:55], s[0:1], 48")
    A("s_load_dwordx4 s[56:59], s[0:1], 64")
    if OPT["prof"]: A("v_mov_b32 v255, 0")
    stamp(A, 0)
    A("s_getpc_b64 s[60:61]")
    A.lab("L_PC")
    A("s_lshr_b32 s23, s2, 3")
    A("s_lshl_b32 s62, s23, 11")
    A("v_lshl_add_u32 v250, v0, 7, s62")
    A("v_cmp_gt_u32 s[62:63], 16, v0")
    A("v_cmp_gt_u32 vcc, L_CODE_END-L_PC-4, v250")
    A("v_lshrrev_b32 v252, 6, v0")
    A(f"v_and_b32 v{L}, 63, v0")
    A("s_and_b64 exec, vcc, s[62:63]")
    A("s_cbranch_execz L_NOPF")
    A("v_mov_b32 v251, s61")
    A("v_add_co_u32 v250, vcc, s60, v250")
    A("v_addc_co_u32 v251, vcc, 0, v251, vcc")
    A("global_load_dword v253, v[250:251], off")
    A.lab("L_NOPF")
    A("s_mov_b64 exec, -1")
    A("v_readfirstlane_b32 s22, v252")
    T = TL
    A(f"v_lshrrev_b32 v{T}, 3, v{L}")
    A(f"v_and_b32 v{T+1}, 7, v{L}")
    A(f"v_lshlrev_b32 v{VX}, 10, v{T}")
    A(f"v_lshl_add_u32 v{VX}, v{T+1}, 4, v{VX}")
    A("s_bfe_u32 s20, s2, 0x20001")
    A("s_lshl_b32 s20, s20, 2")
    A("s_and_b32 s60, s23, 3")
    A("s_add_u32 s20, s20, s60")
    A("s_cmp_lt_u32 s22, 4")
    A("s_cbranch_scc1 L_COMMON")
    loader_first(A)
    A.lab("L_COMMON")
    A("s_lshr_b32 s62, s23, 2")
    A("s_and_b32 s63, s2, 1")
    A("s_lshl_b32 s21, s62, 1")
    A("s_add_u32 s21, s21, s63")
    A("s_mul_i32 s63, s63, 5")
    A("s_add_u32 s63, s63, s62")
    A("s_add_u32 s63, s63, 3")
    A("s_cmp_ge_u32 s62, 3")
    A("s_cselect_b32 s21, s63, s21")
    A("s_waitcnt lgkmcnt(0)")
    srd(A, S_X, 4, 2048*512*2)
    A("s_mov_b64 s[16:17], s[52:53]")
    A("s_mov_b64 s[18:19], s[58:59]")
    srd(A, S_WS, 58, WS_BYTES)
    srd(A, S_DBG, 56, 256)
    srd(A, S_OUT, 54, 2048*512*2)
    srd(A, S_T1, 58, 0)
    srd(A, S_T2, 58, 0)
    for r in HOFF: A(f"s_mov_b32 s{r}, 0x7fff0000")
    A("s_cmp_lt_u32 s22, 4")
    A("s_cbranch_scc1 L_COMPUTE")
    gen_loader(A)
    A("s_branch L_P0")
    A.lab("L_COMPUTE")
    gen_init(A)
    A("s_cmp_ge_u32 s21, 6")
    A("s_cbranch_scc1 L_F")
    A("s_cmp_ge_u32 s21, 4")
    A("s_cbranch_scc1 L_V")
    gen_compute(A, "QK")
    A.lab("L_V")
    gen_compute(A, "V")
    A.lab("L_SIGNAL")
    A("s_and_b32 s91, s21, 1")
    A("s_lshl_b32 s91, s91, 12")
    A(f"s_add_u32 s91, s91, {QCNT:#x}")
    A("s_waitcnt vmcnt(0)")
    last_wave_signals(A, "L_SIG2", 0, 3)
    stamp(A, 15)
    A("s_branch L_P2")
    A.lab("L_F")
    gen_compute(A, "F")
    A.lab("L_P2")
    gen_attn(A)
    gen_final(A)
    A.lab("L_END")
    A("s_endpgm")
    gen_hooks(A)
    return f""".section .rodata,"a"
.p2align 6
.amdhsa_kernel {name}
  .amdhsa_next_free_vgpr 256
  .amdhsa_next_free_sgpr 102
  .amdhsa_accum_offset 256
  .amdhsa_group_segment_fixed_size 0
  .amdhsa_kernarg_size 80
  .amdhsa_user_sgpr_count 2
  .amdhsa_user_sgpr_kernarg_segment_ptr 1
  .amdhsa_system_sgpr_workgroup_id_x 1
.end_amdhsa_kernel
"""

def gen_init(A):
    R = 160
    A("s_cmp_lg_u32 s22, 0")
    A("s_cbranch_scc1 L_INIT1")
    for r in range(R, R+4): A(f"v_mov_b32 v{r}, 0")
    A(f"v_mov_b32 v{R+4}, {SW}")
    A(f"ds_write_b128 v{R+4}, {vr(R,4)}")
    A("s_sub_u32 s61, s2, 128")
    A(f"s_cmp_ge_u32 s61, {NZ}")
    A("s_cbranch_scc1 L_INIT1")
    A(f"v_lshlrev_b32 v{R+4}, 7, v{L}")
    A("s_lshl_b32 s60, s61, 13")
    A(f"s_add_u32 s60, s60, {FLAGS:#x}")
    A(f"buffer_store_dword v{R}, v{R+4}, {sr(S_WS,4)}, s60 offen sc1")
    A("s_nop 1")
    A.lab("L_INIT1")
    for r in range(144): A(f"v_mov_b32 v{r}, 0")
    A("s_call_b64 s[76:77], L_ATTINIT")
    A("s_lshr_b32 s60, s22, 1")
    A("s_and_b32 s61, s22, 1")

VW = 144
def gen_wsetup(A):
    T = 158
    A("s_bfe_u32 s62, s22, 0x10001")
    A("s_and_b32 s63, s22, 1")
    A("s_cmp_lt_u32 s21, 6")
    A("s_cbranch_scc1 LL_Q")
    A("s_cmp_eq_u32 s63, 0")
    A(f"s_cselect_b32 s{S_W}, s12, s14")
    A(f"s_cselect_b32 s{S_W+1}, s13, s15")
    A(f"s_mov_b32 s{S_W+2}, {512*1376*2:#x}")
    A("s_sub_u32 s64, s21, 6")
    A(f"s_mul_i32 s64, s64, {9*32}")
    A(f"s_mov_b32 s65, {2752-288}")
    A(f"v_mul_u32_u24 v{T+2}, 3641, v{L}")
    A(f"v_lshl_add_u32 v{T+3}, v{L}, 4, s64")
    for i in range(9):
        A(f"v_add_u32 v{T+4}, {64*i*3641}, v{T+2}")
        A(f"v_lshrrev_b32 v{T+4}, 16, v{T+4}")
        A(f"v_add_u32 v{T+5}, {1024*i}, v{T+3}")
        A(f"v_mad_u32_u24 v{VW+i}, v{T+4}, s65, v{T+5}")
    A(f"s_mov_b32 s68, {32*2752}")
    A("s_branch LL_C")
    A.lab("LL_Q")
    A(f"s_mov_b32 s{S_W}, s6")
    A(f"s_mov_b32 s{S_W+1}, s7")
    A(f"s_mov_b32 s{S_W+2}, {512*1536*2:#x}")
    A(f"v_lshrrev_b32 v{T+3}, 4, v{L}")
    A(f"v_mul_u32_u24 v{T+2}, 3072, v{T+3}")
    A(f"v_bfe_u32 v{T+4}, v{L}, 2, 2")
    A(f"v_xor_b32 v{T+4}, v{T+4}, v{T+3}")
    A(f"v_lshl_add_u32 v{T+2}, v{T+4}, 6, v{T+2}")
    A(f"v_and_b32 v{T+3}, 3, v{L}")
    A(f"v_lshl_add_u32 v{T+2}, v{T+3}, 4, v{T+2}")
    A("s_lshl_b32 s64, s21, 9")
    A("s_lshl_b32 s65, s63, 8")
    A("s_add_u32 s64, s64, s65")
    A(f"v_add_u32 v{VW}, s64, v{T+2}")
    for i in range(1, 9): A(f"v_add_u32 v{VW+i}, {i*4*3072}, v{VW}")
    A(f"s_mov_b32 s68, {32*3072}")
    A.lab("LL_C")
    A(f"s_mov_b32 s{S_W+3}, 0x00020000")
    A(f"s_mul_i32 s71, s62, {WSL}")
    A(f"s_mul_i32 s66, s63, {UPOFF}")
    A("s_add_u32 s71, s71, s66")
    A(f"s_add_u32 s71, s71, {WR}")
    A("s_mov_b32 s72, s71")
    A(f"s_add_u32 s73, s71, {6*WSL}")
    A("s_mul_i32 s74, s62, s68")
    A("s_lshl_b32 s68, s68, 1")

W_PREFETCH = ["s_add_u32 s67, s74, s68", "s_mov_b32 exec_hi, 0",
              f"buffer_load_dword v253, v{VW+9}, {sr(S_W,4)}, s67 offen", "s_mov_b64 exec, -1"]
_dma_n = [0]
def dma_piece(i): return [f"s_add_u32 m0, s72, {i*1024}", "s_nop 0", f"buffer_load_dwordx4 v{VW+i}, {sr(S_W,4)}, s74 offen lds"]
DMA_TAIL = ["s_add_u32 s74, s74, s68", f"s_add_u32 s72, s72, {2*WSL}", "s_cmp_eq_u32 s72, s73", "s_cselect_b32 s72, s71, s72"]
def dma_groups(first):
    g = [dma_piece(i) for i in range(first, 9)]
    _dma_n[0] += 1
    lab = f"LL_D{_dma_n[0]}"
    g[-1] = ["s_cmp_lt_u32 s21, 6", f"s_cbranch_scc1 {lab}"] + g[-1] + [lab + ":"] + DMA_TAIL
    return g
def mix(A, work, groups, every):
    groups = list(groups)
    for n, w in enumerate(work):
        if isinstance(every, (list, tuple)):
            for _ in range(every.count(n)):
                if groups: A.many(groups.pop(0))
        elif groups and n % every == 0: A.many(groups.pop(0))
        A(w)
    for g in groups: A.many(g)

HREG = 184
HOFF = [52, 53, 54, 55, 56, 57, 58, 59, 10]
def h_offsets(A):
    tiles = [(lu*2+lt, lu, lt) for lu in range(4) for lt in range(2)] + [(8, 4, 0)]
    for (tile, lu, lt) in tiles:
        A("s_add_u32 s66, s64, 8" if lu == 4 else f"s_add_u32 s66, s65, {lu}")
        A("s_lshl_b32 s67, s66, 10")
        A(f"s_add_u32 s67, s67, s{62+lt}")
        A(f"s_cmp_lt_u32 s66, {NFU}")
        A(f"s_cselect_b32 s{HOFF[tile]}, s67, 0x7fff0000")

SJ = 184
def side_setup(A):
    A("s_mul_i32 s75, s20, 10")
    A("s_add_u32 s75, s75, s21")
    A("s_sub_u32 s75, s75, 6")
    A("s_mul_i32 s75, s75, 3")
    A("s_add_u32 s75, s75, s60")
    A("s_sub_u32 s75, s75, 1")
    A(f"v_lshrrev_b32 v245, 5, v{L}")
    A("v_lshlrev_b32 v245, 10, v245")
    A(f"v_and_b32 v246, 31, v{L}")
    A("v_lshl_add_u32 v245, v246, 4, v245")
    for jb in range(2):
        S = 4 if jb else S_W
        A(f"s_add_u32 s90, s75, {480*jb}")
        A("s_cmp_lt_u32 s90, 256")
        A(f"s_cselect_b32 s{S}, s8, s16")
        A(f"s_cselect_b32 s{S+1}, s9, s17")
        csel(A, S+2, 512*512*2, 1376*512*2)
        A(f"s_mov_b32 s{S+3}, 0x00020000")
        csel(A, 91, WOF, WDF)
        csel(A, 67, 32*2048, NFU*2048)
        A("s_cselect_b32 s70, 0, 256")
        A("s_sub_u32 s70, s90, s70")
        A("s_lshr_b32 s94, s70, 3")
        A("s_and_b32 s70, s70, 7")
        A(f"s_lshl_b32 s{72+jb}, s94, 14")
        A("s_lshl_b32 s95, s70, 7")
        A(f"s_add_u32 s{72+jb}, s{72+jb}, s95")
        A("s_mul_i32 s70, s70, s67")
        A("s_lshl_b32 s94, s94, 11")
        A("s_add_u32 s70, s70, s94")
        A("s_add_u32 s70, s70, s91")
        A(f"s_cmp_lt_u32 s90, {256+8*NFU}")
        A(f"s_cselect_b32 s{92+jb}, s70, 0x7fff0000")
def side_prefetch(A):
    A("s_mov_b64 exec, 0xffff")
    A(f"buffer_load_dword v253, v245, {sr(S_T1,4)}, s81 offen")
    A(f"buffer_load_dword v253, v245, {sr(S_T2,4)}, s82 offen")
    A("s_mov_b64 exec, -1")
def side_loads(A, jb):
    S = 4 if jb else S_W
    for rho in range(16):
        hh = (rho >> 2) & 1; j = (rho & 3) + 4*(rho >> 3)
        d = SJ + 16*jb + 8*(j & 1) + 4*hh + (j >> 1)
        A(f"buffer_load_ushort v{d}, v244, {sr(S,4)}, s{72+jb} offen offset:{(rho&3)*1024}")
        if (rho & 3) == 3: A(f"s_add_u32 s{72+jb}, s{72+jb}, 4096")
def side_combine(A):
    for jb in range(2):
        d = SJ + 16*jb
        for i in range(8): A(f"v_lshl_or_b32 v{d+i}, v{d+8+i}, 16, v{d+i}")
        A(f"s_mov_b32 s{HOFF[4*jb]}, s{92+jb}")
        A(f"s_add_u32 s{HOFF[4*jb+1]}, s{92+jb}, 512")
    A("v_mov_b32 v249, v245")

def gen_compute(A, kind):
    F = kind == "F"
    NW = 5 if F else 4
    ND = 9 if F else 8
    XS = [176, 184]; WSET = [192, 212]
    XA = 232; XB = 236; WA = 240; T0 = 244
    KQ = 1152 if F else 1024
    US = 32
    P = "L1" + kind
    t, h, sw = T0, T0+1, T0+2
    A(f"v_and_b32 v{t}, 31, v{L}")
    A(f"v_lshrrev_b32 v{h}, 5, v{L}")
    A(f"v_bfe_u32 v{sw}, v{t}, 1, 3")
    A(f"v_xor_b32 v{sw}, v{sw}, v{h}")
    A(f"v_lshlrev_b32 v{T0+3}, 7, v{t}")
    A("s_lshl_b32 s62, s22, 12")
    for s in range(4):
        A(f"v_xor_b32 v{T0+4}, {2*s}, v{sw}")
        A(f"v_lshl_add_u32 v{T0+4}, v{T0+4}, 4, v{T0+3}")
        A(f"v_add_u32 v{XA+s}, s62, v{T0+4}")
        A(f"v_xor_b32 v{XB+s}, 0x1000, v{XA+s}")
    if F:
        A(f"v_bfe_u32 v{T0+5}, v{L}, 2, 2")
        A(f"v_mul_u32_u24 v{T0+5}, 288, v{T0+5}")
        A(f"v_and_b32 v{T0+3}, 3, v{L}")
        A(f"v_lshl_add_u32 v{T0+3}, v{T0+3}, 3, v{T0+5}")
        A(f"v_bfe_u32 v{T0+4}, v{L}, 4, 1")
        A(f"v_mul_u32_u24 v{T0+4}, {UPOFF}, v{T0+4}")
        A(f"v_add_u32 v{T0+3}, v{T0+3}, v{T0+4}")
    else:
        A(f"v_bfe_u32 v{T0+5}, v{L}, 2, 2")
        A(f"v_and_b32 v{T0+3}, 3, v{L}")
        A(f"v_lshlrev_b32 v{T0+3}, 3, v{T0+3}")
        A(f"v_lshl_add_u32 v{T0+3}, v{T0+5}, 8, v{T0+3}")
        A(f"v_bfe_u32 v{T0+4}, v{L}, 4, 1")
        A(f"v_lshl_add_u32 v{T0+3}, v{T0+4}, 5, v{T0+3}")
    A(f"v_mul_u32_u24 v{T0+4}, {2*KQ}, v{h}")
    A(f"v_add_u32 v{T0+3}, v{T0+3}, v{T0+4}")
    A(f"v_add_u32 v{T0+3}, {WR}, v{T0+3}")
    if F:
        A(f"s_mul_i32 s62, s61, {4*US}")
        A(f"v_add_u32 v{WA}, s62, v{T0+3}")
        A(f"v_add_u32 v{WA+1}, {8*US}, v{T0+3}")
    else:
        A(f"s_mul_i32 s62, s61, {UPOFF}")
        A(f"v_add_u32 v{T0+3}, s62, v{T0+3}")
        for lu in range(4):
            A(f"v_xor_b32 v{T0+4}, {lu}, v{T0+5}")
            A(f"v_lshl_add_u32 v{WA+lu}, v{T0+4}, 6, v{T0+3}")
    VO = 249
    if kind == "QK":
        A(f"v_and_b32 v{T0+6}, 0x33, v{L}")
        A(f"v_bfe_u32 v{T0+7}, v{L}, 2, 1")
        A(f"v_lshl_or_b32 v{T0+6}, v{T0+7}, 3, v{T0+6}")
        A(f"v_bfe_u32 v{T0+7}, v{L}, 3, 1")
        A(f"v_lshl_or_b32 v{T0+6}, v{T0+7}, 2, v{T0+6}")
        A("s_cmp_lt_u32 s21, 2")
        A("s_cselect_b64 vcc, -1, 0")
        A(f"v_cndmask_b32 v{VO}, v{T0+6}, v{L}, vcc")
        A(f"v_lshlrev_b32 v{VO}, 4, v{VO}")
    elif kind == "V":
        A(f"v_and_b32 v{VO}, 15, v{L}")
        A(f"v_lshlrev_b32 v{VO}, 4, v{VO}")
        A(f"v_lshl_or_b32 v{VO}, v{h}, 8, v{VO}")
        A(f"v_bfe_u32 v{T0+6}, v{L}, 4, 1")
        A(f"v_lshl_or_b32 v{VO}, v{T0+6}, 16, v{VO}")
    else:
        A(f"v_lshlrev_b32 v{VO}, 4, v{L}")
    A("s_lshl_b32 s68, s20, 2")
    A("s_add_u32 s68, s68, s22")
    A("s_xor_b32 s69, s68, 1")
    if not F:
        A("s_lshl_b32 s70, s21, 20")
        A("s_lshl_b32 s71, s61, 19")
        A("s_add_u32 s70, s70, s71")
        A("s_lshl_b32 s68, s68, 10")
        A("s_lshl_b32 s69, s69, 10")
        A("s_add_u32 s68, s68, s70")
        A("s_add_u32 s69, s69, s70")
    A("s_mov_b32 s64, 0")
    A("s_mov_b32 s65, 0")

    def reads(st, s):
        r = []
        hs, sp = s >> 1, s & 1
        def wread(lu):
            a = WA + ((1 if lu == 4 else 0) if F else lu)
            base = hs*WSL + 4*sp*KQ + (lu*US if F and lu < 4 else 0)
            d = WSET[st] + 4*lu
            return [f"ds_read_b64_tr_b16 {vr(d,2)}, v{a} offset:{base}",
                    f"ds_read_b64_tr_b16 {vr(d+2,2)}, v{a} offset:{base+KQ}"]
        r.append(f"ds_read_b128 {vr(XS[st],4)}, v{XA+s}")
        r += wread(0)
        r.append(f"ds_read_b128 {vr(XS[st]+4,4)}, v{XB+s}")
        for lu in range(1, NW): r += wread(lu)
        return r
    def mfma(tile, w, x):
        a, b = (x, w) if kind == "V" else (w, x)
        return f"v_mfma_f32_32x32x16_bf16 {vr(16*tile,16)}, {vr(a,4)}, {vr(b,4)}, {vr(16*tile,16)}"
    def mfmas(st):
        m = [mfma(lu*2+lt, WSET[st]+4*lu, XS[st]+4*lt) for lu in range(4) for lt in range(2)]
        if F: m.append(mfma(8, WSET[st]+16, XS[st]))
        return m
    stamp(A, 1)
    A("s_waitcnt vmcnt(0) lgkmcnt(0)" if F else "s_waitcnt lgkmcnt(0)")
    A("s_barrier")
    stamp(A, 2)
    A.many(reads(0, 0))
    if F:
        A("s_sub_u32 s66, s2, 128")
        A("s_lshl_b32 s67, s22, 8")
        A("s_add_u32 s66, s66, s67")
        A(f"s_cmp_ge_u32 s66, {NZ}")
        A(f"s_cbranch_scc1 {P}_LOOP")
        A("s_lshl_b32 s66, s66, 2")
        A("s_mov_b64 exec, 1")
        A("v_mov_b32 v250, 1")
        A("v_mov_b32 v251, 0")
        A(f"buffer_store_dword v250, v251, {sr(S_DBG,4)}, s66 offen sc1")
        A("s_mov_b64 exec, -1")
    A.raw(".p2align 6")
    A.lab(P + "_LOOP")
    NR = 2*NW + 2
    PEEL = OPT["peel"] and not F
    NIT = 7 if PEEL else 8
    need = [3, 4, 6, 6, 8, 8, 10, 10, 12]
    for s in range(4):
        st = s & 1; nx = (s+1) & 3
        ms = mfmas(st); rd = reads(1-st, nx)
        n = len(ms)
        gaps = [[] for _ in ms]
        g0 = OPT["barpos"] if s == 3 else 0
        for i, r in enumerate(rd): gaps[g0 + i//2].append(r)
        xu = lambda k: [f"v_xor_b32 v{XA+k}, 0x4000, v{XA+k}", f"v_xor_b32 v{XB+k}, 0x4000, v{XB+k}"]
        if s < 3:
            gaps[n-2] += xu(nx)
        if s == 0: gaps[n-3] += xu(0)
        if s == 1:
            gaps[n-3] += ["s_cmp_eq_u32 s65, 2", f"s_mov_b32 s66, {2*WSL:#x}", f"s_cselect_b32 s66, {(-4*WSL) & 0xffffffff:#x}, s66"]
            gaps[n-1] += ["s_cselect_b32 s65, -1, s65", "s_add_u32 s65, s65, 1"]
        if s == 2:
            gaps[n-1] += [f"v_add_u32 v{WA+i}, s66, v{WA+i}" for i in range(2 if F else 4)]
        if s == 3:
            gaps[n-1] += ["s_add_u32 s64, s64, 1", f"s_cmp_lt_u32 s64, {NIT}"]
        issued = 0; done = 0
        for i, (m, g) in enumerate(zip(ms, gaps)):
            if need[i] > done:
                A(f"s_waitcnt lgkmcnt({min(15, NR - need[i] + issued)})"); done = need[i]
            A(m)
            if s == 3 and i == g0:
                A("s_waitcnt lgkmcnt(0)"); done = NR
                A("s_barrier")
            for x in g:
                A(x)
                if x.startswith("ds_"): issued += 1
    if OPT["prof"] and OPT["itstamp"]:
        A("s_memtime s[96:97]")
        A("s_add_u32 m0, s64, 19")
        A("s_waitcnt lgkmcnt(0)")
        A("v_writelane_b32 v255, s96, m0")
        A(f"s_cmp_lt_u32 s64, {NIT}")
    A(f"s_cbranch_scc1 {P}_LOOP")
    stamp(A, 3)
    tiles = [(lu*2+lt, lu, lt) for lu in range(4) for lt in range(2)] + ([(8, 4, 0)] if F else [])
    if not F:
        def fin(tile, lu, lt):
            a = 16*tile
            g = [[f"v_cvt_pk_bf16_f32 v{a+i}, v{a+2*i}, v{a+2*i+1}" for i in range(4)],
                 [f"s_add_u32 s65, s{68+lt}, {lu*131072}", f"buffer_store_dwordx4 {vr(a,4)}, v{VO}, {sr(S_WS,4)}, s65 offen sc1"],
                 [f"v_cvt_pk_bf16_f32 v{a+8+i}, v{a+8+2*i}, v{a+9+2*i}" for i in range(4)]]
            if kind == "QK": g.append(["s_add_u32 s65, s65, 65536", f"buffer_store_dwordx4 {vr(a+8,4)}, v{VO}, {sr(S_WS,4)}, s65 offen sc1"])
            else: g.append([f"buffer_store_dwordx4 {vr(a+8,4)}, v{VO}, {sr(S_WS,4)}, s65 offen offset:512 sc1"])
            return g
        rest = tiles
        if PEEL:
            steps = [(lu, s) for lu in range(4) for s in range(4)]
            def rd(i):
                lu, s = steps[i]; st = i & 1
                r = reads(st, s)
                return [r[0], r[3]] + ([] if s == 0 else [x for x in r if f"v{WA+lu} " in x])
            pend = []
            for i, (lu, s) in enumerate(steps):
                st = i & 1
                A("s_waitcnt lgkmcnt(0)")
                nxt = rd(i+1) if i+1 < len(steps) else []
                if i == len(steps)-1: A("s_barrier")
                if s == 2 and lu > 0:
                    for tl in tiles[2*(lu-1):2*lu]: pend += fin(*tl)
                for lt in range(2):
                    A(mfma(lu*2+lt, WSET[st]+4*lu, XS[st]+4*lt))
                    A.many(nxt[2*lt:2*lt+2] if lt == 0 else nxt[2:])
                    if pend: A.many(pend.pop(0))
            for g in pend: A.many(g)
            A("s_nop 7")
            rest = tiles[6:]
        for tl in rest:
            for g in fin(*tl): A.many(g)
        stamp(A, 4)
        if kind == "QK": A("s_branch L_SIGNAL")
    else:
        A(f"s_mul_i32 s62, s68, {NFU*1024}")
        A(f"s_mul_i32 s63, s69, {NFU*1024}")
        A(f"s_add_u32 s62, s62, {HF:#x}")
        A(f"s_add_u32 s63, s63, {HF:#x}")
        A("s_sub_u32 s64, s21, 6")
        A("s_mul_i32 s64, s64, 9")
        A("s_lshl_b32 s65, s61, 2")
        A("s_add_u32 s65, s65, s64")
        C1, C3, ONE, TT = 220, 222, 224, 176
        c1 = -2*0.7978845608028654*LOG2E
        A("s_waitcnt lgkmcnt(0)")
        for r, v in ((C1, c1), (C3, c1*0.044715), (ONE, 1.0)):
            A(f"v_mov_b32 v{r}, {f2u(v):#x}")
            A(f"v_mov_b32 v{r+1}, {f2u(v):#x}")
        dst = lambda tile: HREG + 4*tile
        h_offsets(A)
        for (tile, lu, lt) in tiles:
            a = 16*tile
            for i in range(4): A(f"v_pk_mul_f32 {vr(TT+2*i,2)}, {vr(a+2*i,2)}, {vr(a+2*i,2)}")
            for i in range(4): A(f"v_pk_fma_f32 {vr(TT+2*i,2)}, {vr(TT+2*i,2)}, {vr(C3,2)}, {vr(C1,2)}")
            for i in range(4): A(f"v_pk_mul_f32 {vr(TT+2*i,2)}, {vr(TT+2*i,2)}, {vr(a+2*i,2)}")
            for i in range(8): A(f"v_exp_f32 v{TT+i}, v{TT+i}")
            for i in range(4): A(f"v_pk_mul_f32 {vr(a+2*i,2)}, {vr(a+2*i,2)}, {vr(a+8+2*i,2)}")
            for i in range(4): A(f"v_pk_add_f32 {vr(TT+2*i,2)}, {vr(TT+2*i,2)}, {vr(ONE,2)}")
            for i in range(8): A(f"v_rcp_f32 v{TT+i}, v{TT+i}")
            A("s_nop 0")
            for i in range(4): A(f"v_pk_mul_f32 {vr(a+2*i,2)}, {vr(a+2*i,2)}, {vr(TT+2*i,2)}")
            for i in range(4): A(f"v_cvt_pk_bf16_f32 v{dst(tile)+i}, v{a+2*i}, v{a+2*i+1}")
        stamp(A, 4)

VX = 212; DW = 240; S1 = 216; S2 = 220; RR = 224; MR = 228; TL = 232
xreg = lambda c, i: (i*8 + c)*4
def xload_(A, i):
    A(f"s_add_u32 s{85+i}, s80, {i}")
    A(f"s_and_b32 s{85+i}, s{85+i}, 3")
    A(f"s_lshl_b32 s89, s{85+i}, 13")
    A("s_add_u32 s89, s89, s61")
    for c in range(8):
        A(f"buffer_load_dwordx4 {vr(xreg(c,i),4)}, v{VX}, {sr(S_X,4)}, s89 offen offset:{c*128}")
def loader_first(A):
    T = TL
    A("s_sub_u32 s60, s22, 4")
    A("s_lshl_b32 s61, s20, 17")
    A("s_lshl_b32 s62, s60, 15")
    A("s_add_u32 s61, s61, s62")
    A("s_lshr_b32 s80, s2, 5")
    A("s_waitcnt lgkmcnt(0)")
    srd(A, S_X, 4, 2048*512*2)
    xload_(A, 0); xload_(A, 1)

def gen_loader(A):
    T = TL
    xload = lambda i: xload_(A, i)
    gen_wsetup(A)
    xload(2)
    A("s_cmp_lt_u32 s21, 2")
    A(f"s_cselect_b32 s69, {f2u(0.25*LOG2E):#x}, 1.0")
    A("s_lshr_b32 s64, s21, 1")
    A("s_cmp_eq_u32 s64, 2")
    A(f"s_cselect_b32 s69, {f2u(2.0**VSH):#x}, s69")
    for r in range(S1, S2+4): A(f"v_mov_b32 v{r}, 0")
    A("s_mov_b32 s78, 0x3f803f80")
    A("v_mov_b32 v249, 0")
    A(f"v_lshlrev_b32 v244, 1, v{L}")
    A("s_cmp_ge_u32 s21, 6")
    A("s_cselect_b32 s79, s60, 0")
    def norm(c, i):
        x = xreg(c, i); r = []
        for d in range(4):
            r.append(f"v_lshlrev_b32 v{T+2*d}, 16, v{x+d}")
            r.append(f"v_and_b32 v{T+2*d+1}, 0xffff0000, v{x+d}")
        for d in range(8): r.append(f"v_fma_f32 v{T+d}, v{T+d}, v{RR+i}, -v{MR+i}")
        for d in range(4): r.append(f"v_cvt_pk_bf16_f32 v{x+d}, v{T+2*d}, v{T+2*d+1}")
        if OPT["w64"]:
            r.insert(-2, f"ds_write_b64 v{DW+i}, {vr(x,2)} offset:{(c&1)*16384}")
            r.append(f"ds_write_b64 v{DW+i}, {vr(x+2,2)} offset:{(c&1)*16384+8}")
        else: r.append(f"ds_write_b128 v{DW+i}, {vr(x,4)} offset:{(c&1)*16384}")
        return r
    def dots(i):
        r = []
        for k in range(32):
            r.append(f"v_dot2c_f32_bf16 v{S2+i}, v{xreg(0,i)+k}, v{xreg(0,i)+k}")
            r.append(f"v_dot2c_f32_bf16 v{S1+i}, s78, v{xreg(0,i)+k}")
        return r
    A("s_waitcnt vmcnt(16)"); stamp(A, 16)
    xload(3)
    A.many(dots(0))
    A(f"v_lshrrev_b32 v{T+2}, 4, v{L}")
    A(f"v_xor_b32 v{T+2}, v{T+2}, v{T+1}")
    A(f"v_lshlrev_b32 v{T+3}, 7, v{T}")
    A("s_lshl_b32 s64, s60, 12")
    A(f"v_add_u32 v{T+3}, s64, v{T+3}")
    A(f"v_lshl_add_u32 v{T+3}, v{T+2}, 4, v{T+3}")
    for i in range(4):
        A(f"s_and_b32 s64, s{85+i}, 1")
        A("s_lshl_b32 s64, s64, 6")
        A(f"s_lshl_b32 s65, s{85+i}, 10")
        A("s_or_b32 s64, s64, s65")
        A(f"v_xor_b32 v{DW+i}, s64, v{T+3}")
    def vmw(base, tag):
        A(f"s_waitcnt vmcnt({base+9})")
        A("s_cmp_ge_u32 s21, 6")
        A(f"s_cbranch_scc1 {tag}")
        A(f"s_waitcnt vmcnt({base+8})")
        A.lab(tag)
    A("s_waitcnt vmcnt(16)"); stamp(A, 17)
    if OPT["wearly"]:
        mix(A, dots(1), dma_groups(0), 7)
        vmw(8, "LL_G2"); stamp(A, 18)
        A.many(dots(2))
    else:
        A.many(dots(1))
        A("s_waitcnt vmcnt(8)"); stamp(A, 18)
        mix(A, dots(2), dma_groups(0), 7)
    vmw(0, "LL_G3")
    stamp(A, 19)
    A.many(dots(3))
    A("s_nop 2")
    for ctl in ("quad_perm:[1,0,3,2]", "quad_perm:[2,3,0,1]", "row_half_mirror"):
        for r in range(S1, S2+4):
            A(f"v_add_f32_dpp v{r}, v{r}, v{r} {ctl} row_mask:0xf bank_mask:0xf")
    seq = [
        lambda i: f"v_mul_f32 v{S1+i}, {f2u(1/512):#x}, v{S1+i}",
        lambda i: f"v_mul_f32 v{S2+i}, {f2u(1/512):#x}, v{S2+i}",
        lambda i: f"v_fma_f32 v{S2+i}, -v{S1+i}, v{S1+i}, v{S2+i}",
        lambda i: f"v_max_f32 v{S2+i}, 0, v{S2+i}",
        lambda i: f"v_cvt_pk_bf16_f32 v{S2+i}, v{S1+i}, v{S2+i}",
        lambda i: f"v_lshlrev_b32 v{S1+i}, 16, v{S2+i}",
        lambda i: f"v_and_b32 v{S2+i}, 0xffff0000, v{S2+i}",
        lambda i: f"v_add_f32 v{S2+i}, {f2u(1e-5):#x}, v{S2+i}",
        lambda i: f"v_cvt_pk_bf16_f32 v{S2+i}, v{S2+i}, v{S2+i}",
        lambda i: f"v_and_b32 v{S2+i}, 0xffff0000, v{S2+i}",
        lambda i: f"v_sqrt_f32 v{S2+i}, v{S2+i}",
        lambda i: f"v_cvt_pk_bf16_f32 v{S2+i}, v{S2+i}, v{S2+i}",
        lambda i: f"v_and_b32 v{S2+i}, 0xffff0000, v{S2+i}",
        lambda i: f"v_rcp_f32 v{RR+i}, v{S2+i}",
        lambda i: f"v_mul_f32 v{RR+i}, s69, v{RR+i}",
        lambda i: f"v_mul_f32 v{MR+i}, v{S1+i}, v{RR+i}",
    ]
    for f in seq:
        for i in range(4): A(f(i))
    stamp(A, 1)
    mix(A, sum((norm(0, i) for i in range(4)), []), dma_groups(0), OPT["dmaevery"])
    stamp(A, 2)
    dbg_load = [f"buffer_load_dword v97, v96, {sr(S_DBG,4)}, 0 offen sc1"]
    for m in range(8):
        if m == 4: stamp(A, 29)
        A(f"s_waitcnt vmcnt({8 if m < 7 else 0}) lgkmcnt(0)")
        if m == 4: stamp(A, 30)
        if m == 5:
            A.many(ALL1(97))
            A("s_cbranch_scc1 LL_POLL0_OK")
            spin(A, "LL_POLL0", dbg_load, ALL1(97))
        A("s_barrier")
        if m == 3: stamp(A, 28)
        if m == 4: stamp(A, 31)
        if m == 7: break
        work = sum((norm(m+1, i) for i in range(4)), [])
        isw = lambda w: w.startswith("ds_")
        if OPT["exp"] == "wlast": work = [w for w in work if not isw(w)] + [w for w in work if isw(w)]
        if OPT["exp"] == "wfirst":
            if m == 0: A.many(work)
            else: A.many([w for w in work if isw(w)])
            work = [w for w in sum((norm(m+2, i) for i in range(4)), []) if not isw(w)] if m < 6 else []
        if OPT["exp"].startswith("grp"):
            dg = dma_groups(0) if m < 6 else []
            split = {"grp": [3,2,2,2,0], "grp2": [0,3,3,3,0], "grp3": [2,3,2,2,0], "grp4": [4,3,2,0,0]}[OPT["exp"]]
            for _ in range(split[0]):
                if dg: A.many(dg.pop(0))
            for i in range(4):
                nn = norm(m+1, i)
                A.many(nn[:-1])
                for _ in range(split[i+1]):
                    if dg: A.many(dg.pop(0))
                A(nn[-1])
            work = None
        if OPT["exp"] == "nonorm": work = []
        if OPT["exp"] == "nowrite": work = [w for w in work if not w.startswith("ds_")]
        if OPT["exp"] == "dmalast":
            A.many(work); work = []
        if OPT["exp"] == "dmafirst":
            mix(A, [], dma_groups(0) if m < 6 else [], 1); A.many(work); continue
        if work is not None: mix(A, work, dma_groups(0) if m < 6 else [], OPT["dmaevery"])
        if m == 3:
            A(f"v_min_u32 v96, {NZ-1}, v{L}")
            A("v_lshlrev_b32 v96, 2, v96")
            A.many(dbg_load)
    A("s_mov_b32 s23, s79")
    side_setup(A)
    A("s_call_b64 s[76:77], L_ATTINIT")
    late_init(A)
    A("s_barrier")
    stamp(A, 3)
    A("s_cmp_eq_u32 s23, 0")
    A("s_cbranch_scc1 LL_S7")
    side_loads(A, 0)
    side_loads(A, 1)
    A.lab("LL_S7")
    A("s_cmp_lg_u32 s60, 0")
    A("s_cbranch_scc1 LL_WAITGO")
    A("v_mov_b32 v96, 0")
    A("s_bfe_u32 s64, s2, 0x10004")
    A("s_lshl_b32 s64, s64, 5")
    A("s_and_b32 s65, s2, 15")
    A("s_add_u32 s64, s64, s65")
    A("s_bfe_u32 s65, s2, 0x10005")
    A("s_lshl_b32 s65, s65, 4")
    A("s_add_u32 s64, s64, s65")
    A("s_lshl_b32 s64, s64, 7")
    A(f"s_add_u32 s64, s64, {QCNT:#x}")
    spin3(A, "LL_POLL", [0, 1, 2], 96, "s64", 48)
    A(f"v_mov_b32 v96, {SW}")
    A("v_mov_b32 v97, 1")
    A("ds_write_b32 v96, v97 offset:4")
    A("s_branch LL_GO")
    A.lab("LL_WAITGO")
    A(f"v_mov_b32 v96, {SW}")
    A(f"s_mov_b32 s70, {SPIN_MAX*16}")
    A.lab("LL_WG1")
    A("ds_read_b32 v97, v96 offset:4")
    A("s_waitcnt lgkmcnt(0)")
    A("v_readfirstlane_b32 s65, v97")
    A("s_cmp_lg_u32 s65, 0")
    A("s_cbranch_scc1 LL_GO")
    A("s_sleep 1")
    A("s_sub_u32 s70, s70, 1")
    A("s_cmp_lg_u32 s70, 0")
    A("s_cbranch_scc1 LL_WG1")
    A.lab("LL_GO")
    stamp(A, 4)
    A("s_and_b32 s64, s2, 31")
    A("s_lshl_b32 s64, s64, 16")
    A("s_lshl_b32 s65, s60, 11")
    A("s_add_u32 s64, s64, s65")
    A("s_lshr_b32 s66, s2, 5")
    A("s_lshl_b32 s66, s66, 13")
    A("s_add_u32 s66, s66, s64")
    A(f"s_add_u32 m0, s65, {QOFF}")
    A(f"s_add_u32 s67, s64, {KF:#x}")
    A(f"buffer_load_dwordx4 v95, {sr(S_WS,4)}, s66 offen sc1 lds")
    A(f"buffer_load_dwordx4 v95, {sr(S_WS,4)}, s66 offen offset:1024 sc1 lds")
    A(f"s_add_u32 s68, s64, {VF:#x}")
    for c in range(2):
        A(f"s_add_u32 m0, s65, {c*8192}")
        A("s_nop 0")
        A(f"buffer_load_dwordx4 v95, {sr(S_WS,4)}, s67 offen sc1 lds")
        A(f"buffer_load_dwordx4 v95, {sr(S_WS,4)}, s67 offen offset:1024 sc1 lds")
        A(f"s_add_u32 m0, s65, {65536 + c*8192}")
        A("s_add_u32 s67, s67, 8192")
        A(f"buffer_load_dwordx4 v95, {sr(S_WS,4)}, s68 offen sc1 lds")
        A(f"buffer_load_dwordx4 v95, {sr(S_WS,4)}, s68 offen offset:1024 sc1 lds")
        A("s_add_u32 s68, s68, 8192")
    A("s_cmp_eq_u32 s23, 0")
    A("s_cbranch_scc1 L_P0")
    A("s_waitcnt vmcnt(10)")
    side_combine(A)


def down_loads(A, slot):
    A(f"buffer_load_dwordx4 {vr(DH[slot],4)}, v{L16}, {sr(S_T1,4)}, s84 offen sc1")
    A(f"buffer_load_dwordx4 {vr(DW_[slot],4)}, v{L16}, {sr(S_T2,4)}, s85 offen sc1")
    A(f"buffer_load_dwordx4 {vr(DW_[slot]+4,4)}, v{L16}, {sr(S_T2,4)}, s85 offen offset:1024 sc1")
    A("s_add_u32 s84, s84, 1024")
    A("s_add_u32 s85, s85, 2048")

def kv_piece(k):
    if k & 1: return ["s_add_u32 m0, s95, 65536", "s_add_u32 s94, s94, 8192",
                      f"buffer_load_dwordx4 v{L16}, {sr(S_WS,4)}, s60 offen sc1 lds", "s_add_u32 s95, s95, 8192"]
    return ["s_mov_b32 m0, s95", f"s_add_u32 s60, s94, {VF-KF:#x}", f"buffer_load_dwordx4 v{L16}, {sr(S_WS,4)}, s94 offen sc1 lds"]
HPOLL = lambda: apoll(101, 100, "s75", 15)

def attn_body(A, mode):
    hs = 0
    for t in range(8):
        p = t & 1
        down = mode in "BC" or (mode == "2" and t >= 4)
        cur, prv = S_[p], S_[1-p]
        ex = lambda a, b: [A(f"v_exp_f32 v{cur+i}, v{cur+i}") for i in range(a, b)]
        if p == 0: A(f"s_setprio {3 - (t >> 1)}")
        A("s_waitcnt lgkmcnt(3)")
        ex(0, 2)
        if not (mode == "0" and t == 0):
            A(f"v_smfmac_f32_32x32x32_bf16 {vr(O_,16)}, {vr(V1[1-p],4)}, {vr(prv+8,8)}, v{IDX}")
        if mode == "0" and t < 6: A.many(kv_piece(2*t))
        ex(2, 6 if down else 7)
        A(f"v_mfma_f32_32x32x16_bf16 {vr(prv,16)}, {vr(KB[1-p],4)}, {vr(Q_,4)}, {vr(C_,16)}")
        A(f"ds_read_b128 {vr(KB[1-p],4)}, v{KA} offset:{(t+3)*1024}")
        if mode == "0" and t < 6: A.many(kv_piece(2*t+1))
        ex(6 if down else 7, 10 if down else 12)
        A(f"v_smfmac_f32_32x32x32_bf16 {vr(O_,16)}, {vr(V0[p],4)}, {vr(cur,8)}, v{IDX}")
        A("s_mov_b64 exec, s[80:81]")
        A(f"ds_read_b128 {vr(V0[p],4)}, v{VA} offset:{(t+2)*1024}")
        A(f"ds_read_b128 {vr(V1[1-p],4)}, v{VA} offset:{(t+1)*1024+512}")
        A("s_mov_b64 exec, -1")
        if mode == "0":
            for _ in range(OPT["hplan"][t]):
                A(f"buffer_store_dwordx4 {vr(HREG+4*hs,4)}, v249, {sr(S_WS,4)}, s{HOFF[hs]} offen sc1"); hs += 1
        if mode == "2" and t < 4: down_loads(A, (t + 2) & 3)
        if mode == "C":
            if t == 0: A(f"buffer_load_dwordx4 {vr(XV,4)}, v252, {sr(S_X,4)}, s88 offen")
            for i in range(2):
                A(f"buffer_load_dwordx4 {vr(WO+8*t+4*i,4)}, v{L16}, {sr(S_WS,4)}, s90 offen offset:{(2*p+i)*1024} sc1")
            if p: A("s_add_u32 s90, s90, 4096")
        if down:
            ex(10, 14)
            sl = t >> 1
            if p == 0: A(f"s_waitcnt vmcnt({12 + sl if mode == 'C' else 9})")
            cc = "0" if (mode == "2" and t < 6) else vr(DACC+16*p,16)
            A(f"v_mfma_f32_32x32x16_bf16 {vr(DACC+16*p,16)}, {vr(DW_[sl]+4*p,4)}, {vr(DH[sl],4)}, {cc}")
            if mode != "C" and p == 1: down_loads(A, sl)
            ex(14, 16)
        else:
            ex(12, 16)
        if mode == "1" and t == OPT["sigt"]:
            A("s_waitcnt vmcnt(0)")
            A("s_barrier")
            A("s_cmp_lg_u32 s14, 0")
            A("s_cbranch_scc1 L_NOSIG")
            A("s_mov_b64 exec, 0xff")
            A("v_mov_b32 v97, 1")
            A(f"v_lshlrev_b32 v96, 10, v{L}")
            A(f"buffer_atomic_add v97, v96, {sr(S_WS,4)}, s91 offen")
            A("s_mov_b64 exec, -1")
            A.lab("L_NOSIG")
        if mode == "1" and t == 6:
            A("s_cmp_lg_u32 s22, 0")
            A("s_cbranch_scc1 L_NOPQ")
            A(f"v_lshlrev_b32 v100, 7, v{L}")
            A.many(HPOLL())
            A.lab("L_NOPQ")
        if mode == "1" and t == 7:
            stamp(A, 8)
            A("s_cmp_lg_u32 s22, 0")
            A("s_cbranch_scc1 L_HPOLL_OK")
            spin(A, "L_HPOLL", HPOLL(), acmp(101, 40, 15), first_loaded=True)
            A("s_barrier")
            stamp(A, 9)
    if mode == "0": assert hs == 9
    if mode != "C":
        A(f"v_add_u32 v{KA}, 8192, v{KA}")
        A(f"v_add_u32 v{VA}, 8192, v{VA}")
        A("s_add_u32 s83, s83, 1")

def late_init(A):
    A(f"v_lshlrev_b32 v{L16}, 4, v{L}")
    A(f"v_mov_b32 v{IDX}, 0xdddd")
    A(f"v_and_b32 v98, 15, v{L}")
    A("v_lshlrev_b32 v98, 4, v98")
    A(f"v_lshrrev_b32 v99, 5, v{L}")
    A("v_lshl_or_b32 v98, v99, 8, v98")
    A("v_add_u32 v98, 65536, v98")
    A(f"v_add_u32 v99, s15, v{L16}")
    A(f"v_add_u32 v102, s16, v{L16}")
    A(f"v_add_u32 v103, s17, v{L16}")
    A(f"v_mov_b32 v{KA}, v{L16}")
    A(f"v_mov_b32 v{VA}, v98")
    A("v_mov_b32 v100, 0xff800000")
    A("v_mov_b32 v101, 0xff800000")

def gen_attinit(A):
    A.lab("L_ATTINIT")
    for r in range(O_, O_+32): A(f"v_mov_b32 v{r}, 0")
    A("s_mov_b32 s80, 0x00110000")
    A("s_mov_b32 s81, 0x00110000")
    A("s_mov_b64 exec, s[80:81]")
    for r in range(V0[0], V0[0]+16): A(f"v_mov_b32 v{r}, 0x3f803f80")
    A("s_mov_b64 exec, -1")
    A("s_mov_b32 s80, 0xffff")
    A("s_mov_b32 s81, 0xffff")
    A("s_mov_b32 s78, 1")
    A(f"s_mov_b32 s79, {f2u(-OPT['bias']):#x}")
    A("s_mov_b32 s82, 1")
    A(f"v_lshrrev_b32 v251, 5, v{L}")
    A(f"v_and_b32 v252, 31, v{L}")
    A("v_lshlrev_b32 v252, 10, v252")
    A("v_lshl_add_u32 v252, v251, 4, v252")
    A("s_lshl_b32 s15, s22, 10")
    A(f"s_add_u32 s15, s15, {QOFF}")
    A("s_and_b32 s91, s20, 3")
    A("s_lshl_b32 s91, s91, 7")
    A(f"s_add_u32 s91, s91, {QFLAG+4*128:#x}")
    A("s_cmp_lt_u32 s21, 6")
    A("s_cselect_b32 s14, 1, s22")
    A("s_and_b32 s75, s2, 7")
    A("s_lshl_b32 s75, s75, 10")
    A(f"s_add_u32 s75, s75, {QFLAG+4*128:#x}")
    A("s_lshr_b32 s61, s2, 5")
    A("s_lshl_b32 s61, s61, 3")
    A("s_add_u32 s61, s61, s22")
    A("s_lshl_b32 s61, s61, 5")
    A("s_and_b32 s62, s2, 31")
    A("s_add_u32 s61, s61, s62")
    A("s_lshr_b32 s12, s61, 3")
    A("s_lshl_b32 s12, s12, 7")
    A(f"s_add_u32 s12, s12, {OFLAG:#x}")
    A("s_lshl_b32 s11, s61, 10")
    A(f"s_add_u32 s11, s11, {OF:#x}")
    A("s_and_b32 s94, s2, 31")
    A("s_lshl_b32 s94, s94, 16")
    A("s_lshl_b32 s95, s22, 10")
    A("s_add_u32 s95, s95, 16384")
    A("s_add_u32 s94, s94, s95")
    A(f"s_add_u32 s94, s94, {KF:#x}")
    A("s_and_b32 s67, s2, 7")
    A("s_bfe_u32 s61, s2, 0x20003")
    A("s_lshl_b32 s67, s67, 2")
    A("s_add_u32 s67, s67, s61")
    A("s_lshr_b32 s61, s2, 5")
    A("s_and_b32 s62, s22, 1")
    A("s_lshl_b32 s67, s67, 1")
    A("s_add_u32 s67, s67, s62")
    A("s_lshr_b32 s62, s22, 1")
    A("s_mul_i32 s63, s62, 22")
    A("s_cmp_eq_u32 s62, 3")
    A("s_cselect_b32 s63, 65, s63")
    A("s_cmp_lt_u32 s62, 2")
    A("s_cselect_b32 s64, 22, 21")
    A(f"s_mul_i32 s65, s67, {NFU}")
    A("s_add_u32 s65, s65, s63")
    A("s_lshl_b32 s65, s65, 10")
    A(f"s_add_u32 s65, s65, {HF:#x}")
    A(f"s_add_u32 s{S_T1}, s18, s65")
    A(f"s_addc_u32 s{S_T1+1}, s19, 0")
    A(f"s_lshl_b32 s{S_T1+2}, s64, 10")
    A(f"s_mov_b32 s{S_T1+3}, 0x00020000")
    A(f"s_mul_i32 s65, s61, {NFU}")
    A("s_add_u32 s65, s65, s63")
    A("s_lshl_b32 s65, s65, 11")
    A(f"s_add_u32 s65, s65, {WDF:#x}")
    A(f"s_add_u32 s{S_T2}, s18, s65")
    A(f"s_addc_u32 s{S_T2+1}, s19, 0")
    A(f"s_lshl_b32 s{S_T2+2}, s64, 11")
    A(f"s_mov_b32 s{S_T2+3}, 0x00020000")
    A("s_mov_b32 s84, 0")
    A("s_mov_b32 s85, 0")
    A("s_lshl_b32 s90, s61, 16")
    A("s_lshl_b32 s66, s62, 14")
    A("s_add_u32 s90, s90, s66")
    A(f"s_add_u32 s90, s90, {WOF:#x}")
    A("s_lshl_b32 s87, s67, 15")
    A("s_lshl_b32 s66, s62, 13")
    A("s_add_u32 s87, s87, s66")
    A(f"s_add_u32 s87, s87, {OF:#x}")
    A("s_lshl_b32 s88, s67, 15")
    A("s_lshl_b32 s66, s61, 7")
    A("s_add_u32 s88, s88, s66")
    A("s_lshl_b32 s66, s62, 5")
    A("s_add_u32 s88, s88, s66")
    A(f"s_sub_u32 s13, s87, {OF:#x}")
    A("s_lshr_b32 s13, s13, 6")
    A(f"s_add_u32 s13, s13, {OFLAG:#x}")
    red_addr(A)
    A("s_setpc_b64 s[76:77]")

def gen_attn(A):
    A("s_waitcnt lgkmcnt(0)")
    late_init(A)
    A.lab("L_P0")
    stamp(A, 5)
    A("s_waitcnt vmcnt(0)")
    A("s_barrier")
    stamp(A, 6)
    A(f"ds_read_b128 {vr(Q_,4)}, v99")
    A.lab("L_MAXLOOP")
    A(f"ds_read_b128 {vr(KB[0],4)}, v{KA}")
    A(f"ds_read_b128 {vr(KB[1],4)}, v{KA} offset:1024")
    A("s_mov_b64 exec, s[80:81]")
    A(f"ds_read_b128 {vr(V0[0],4)}, v{VA}")
    A("s_mov_b64 exec, -1")
    A("s_waitcnt lgkmcnt(2)")
    A(f"v_mfma_f32_32x32x16_bf16 {vr(S_[0],16)}, {vr(KB[0],4)}, {vr(Q_,4)}, 0")
    A("s_waitcnt lgkmcnt(1)")
    A(f"v_mfma_f32_32x32x16_bf16 {vr(C_,16)}, {vr(KB[1],4)}, {vr(Q_,4)}, 0")
    A(f"v_subrev_u32 v{KA}, 2048, v{KA}")
    A("s_nop 9")
    for i in range(8): A(f"v_max3_f32 v100, v{2*i}, v{2*i+1}, v100")
    for i in range(8): A(f"v_max3_f32 v101, v{C_+2*i}, v{C_+2*i+1}, v101")
    A("s_sub_u32 s78, s78, 1")
    A("s_cmp_lg_u32 s78, 0")
    A("s_cbranch_scc1 L_MAXLOOP")
    A("v_max_f32 v100, v100, v101")
    A(f"v_mov_b32 v{KA}, v{L16}")
    A("v_mov_b32 v101, v100")
    A("s_nop 1")
    A("v_permlane32_swap_b32 v100, v101")
    A("s_nop 1")
    A("v_max_f32 v100, v100, v101")
    for r in range(16): A(f"v_sub_f32 v{C_+r}, s79, v100")
    A("s_nop 1")
    A(f"v_mfma_f32_32x32x16_bf16 {vr(S_[0],16)}, {vr(KB[0],4)}, {vr(Q_,4)}, {vr(C_,16)}")
    A(f"ds_read_b128 {vr(KB[0],4)}, v{KA} offset:2048")
    A("s_mov_b64 exec, s[80:81]")
    A(f"ds_read_b128 {vr(V0[1],4)}, v{VA} offset:1024")
    A(f"ds_read_b128 {vr(V1[0],4)}, v{VA} offset:512")
    A("s_mov_b64 exec, -1")
    A("s_mov_b32 s83, 0")
    stamp(A, 7)
    A("s_nop 4")
    A("s_cmp_eq_u32 s82, 0")
    A("s_cbranch_scc1 L_LOOPP")
    attn_body(A, "0")
    attn_body(A, "1")
    attn_body(A, "2")
    A.lab("L_LOOPB")
    attn_body(A, "B")
    if OPT["prof"] and OPT["bstamp"]:
        A("s_memtime s[96:97]")
        A("s_add_u32 m0, s83, 17")
        A("s_waitcnt lgkmcnt(0)")
        A("v_writelane_b32 v255, s96, m0")
    A("s_cmp_lt_u32 s83, 7")
    A("s_cbranch_scc1 L_LOOPB")
    attn_body(A, "C")
    A.lab("L_ATT_DONE")
    A("s_waitcnt lgkmcnt(0)")
    stamp(A, 10)
    A(f"v_smfmac_f32_32x32x32_bf16 {vr(O_,16)}, {vr(V1[1],4)}, {vr(S_[1]+8,8)}, v{IDX}")
    A("s_setprio 3")
    A(f"v_mov_b32 v96, {f2u(2.0**90):#x}")
    A(f"v_mov_b32 v97, {f2u(2.0**120):#x}")
    A(f"v_mov_b32 v99, {f2u(2.0**-100):#x}")
    A("s_nop 7")
    A(f"v_rcp_f32 v101, v{O_+8}")
    A("s_nop 0")
    A(f"v_mul_f32 v101, {f2u(2.0**-VSH):#x}, v101")
    for r in range(8): A(f"v_mul_f32 v{r}, v{O_+r}, v101")
    for i in range(4): A(f"v_cvt_pk_bf16_f32 v{8+i}, v{2*i}, v{2*i+1}")
    A(f"buffer_store_dwordx4 {vr(8,4)}, v{L16}, {sr(S_WS,4)}, s11 offen sc1")
    A("s_cmp_eq_u32 s82, 0")
    A("s_cbranch_scc1 L_FIN")
    A(f"v_add_f32 v100, abs(v{O_}), abs(v{O_+1})")
    for r in range(2, 8): A(f"v_add_f32 v100, v100, abs(v{O_+r})")
    A(f"v_cmp_nlt_f32 s[62:63], v{O_+8}, v96")
    A("v_cmp_nlt_f32 s[64:65], v100, v97")
    A("v_cmp_lt_f32 vcc, v100, v99")
    A("s_or_b64 s[62:63], s[62:63], s[64:65]")
    A("s_or_b64 s[62:63], s[62:63], vcc")
    A("s_cmp_eq_u64 s[62:63], 0")
    if not OPT["force_fallback"]: A("s_cbranch_scc1 L_FIN")
    A("s_mov_b32 s78, 32")
    A("s_mov_b32 s79, 0")
    A("s_mov_b32 s82, 0")
    A(f"v_mov_b32 v{VA}, v98")
    A("v_mov_b32 v100, 0xff800000")
    A("v_mov_b32 v101, 0xff800000")
    for r in range(16): A(f"v_mov_b32 v{O_+r}, 0")
    for r in range(8, 16): A(f"v_mov_b32 v{S_[1]+r}, 0")
    A(f"v_add_u32 v{KA}, {62*1024}, v{L16}")
    A("s_waitcnt vmcnt(0)")
    A("s_branch L_MAXLOOP")
    A.lab("L_FIN")

def red_addr(A):
    A("s_and_b32 s62, s22, 1")
    A("s_lshr_b32 s63, s22, 1")
    A("s_lshl_b32 s62, s62, 15")
    A("s_lshl_b32 s64, s63, 11")
    A("s_add_u32 s64, s64, s62")
    A("s_mov_b32 s16, s64")
    A("s_lshl_b32 s64, s63, 13")
    A("s_add_u32 s64, s64, s62")
    A("s_mov_b32 s17, s64")
def red_write(A, acc):
    for q in range(4):
        for hf in range(2):
            A(f"ds_write_b128 v102, {vr(acc+8*q+4*hf,4)} offset:{q*8192 + hf*1024}")
def red_read(A, dst):
    for s in range(4):
        for hf in range(2):
            A(f"ds_read_b128 {vr(dst+8*s+4*hf,4)}, v103 offset:{s*2048 + hf*1024}")
def red_sum(A, dst):
    for r in range(8):
        A(f"v_add_f32 v{dst+r}, v{dst+r}, v{dst+8+r}")
        A(f"v_add_f32 v{dst+16+r}, v{dst+16+r}, v{dst+24+r}")
    for r in range(8): A(f"v_add_f32 v{dst+r}, v{dst+r}, v{dst+16+r}")
def round_bf16(A, regs, tmp):
    for i in range(4): A(f"v_cvt_pk_bf16_f32 v{tmp+i}, v{regs+2*i}, v{regs+2*i+1}")
    for i in range(4):
        A(f"v_lshlrev_b32 v{regs+2*i}, 16, v{tmp+i}")
        A(f"v_and_b32 v{regs+2*i+1}, 0xffff0000, v{tmp+i}")

def gen_final(A):
    A("v_mov_b32 v96, 1")
    A("v_mov_b32 v97, 0")
    A("s_waitcnt vmcnt(0)")
    A("s_mov_b64 exec, 1")
    A(f"buffer_atomic_add v96, v97, {sr(S_WS,4)}, s12 offen")
    A("s_mov_b64 exec, -1")
    stamp(A, 11)
    A.many(apoll(32, 97, "s13", 1))
    A("s_barrier")
    red_write(A, DACC)
    A("s_waitcnt lgkmcnt(0)")
    A("s_barrier")
    G = DACC; T = 136
    red_read(A, G)
    spin3(A, "L_OPOLL", [32, 33, 34], 97, "s13", 8, primed=1)
    stamp(A, 12)
    for s in range(8):
        A(f"buffer_load_dwordx4 {vr(4*s,4)}, v{L16}, {sr(S_WS,4)}, s87 offen offset:{(s&3)*1024} sc1")
        if s == 3: A("s_add_u32 s87, s87, 4096")
    A("v_add_u32 v102, 65536, v102")
    A("v_add_u32 v103, 65536, v103")
    for i in range(4):
        A(f"v_lshlrev_b32 v{144+2*i}, 16, v{XV+i}")
        A(f"v_and_b32 v{145+2*i}, 0xffff0000, v{XV+i}")
    A("s_waitcnt lgkmcnt(0)")
    B = Asm()
    red_sum(B, G)
    round_bf16(B, G, T)
    for r in range(8): B(f"v_mul_f32 v{T+r}, {f2u(-LOG2E):#x}, v{G+r}")
    for r in range(8): B(f"v_exp_f32 v{T+r}, v{T+r}")
    for r in range(8): B(f"v_add_f32 v{T+r}, 1.0, v{T+r}")
    for r in range(8): B(f"v_rcp_f32 v{T+r}, v{T+r}")
    for r in range(8): B(f"v_mul_f32 v{G+r}, v{G+r}, v{T+r}")
    round_bf16(B, G, T)
    gw = [x.strip() for x in B.l]
    A.many(gw[:OPT["gpre"]]); gw = gw[OPT["gpre"]:]
    ACC = 104
    for s in range(8):
        A(f"s_waitcnt vmcnt({7-s})")
        for nt in range(2):
            c = "0" if s == 0 else vr(ACC+16*nt,16)
            A(f"v_mfma_f32_32x32x16_bf16 {vr(ACC+16*nt,16)}, {vr(WO+8*s+4*nt,4)}, {vr(4*s,4)}, {c}")
            A.many(gw[:4]); gw = gw[4:]
    A.many(gw)
    stamp(A, 13)
    A("s_nop 11")
    red_write(A, ACC)
    A("s_waitcnt lgkmcnt(0)")
    A("s_barrier")
    red_read(A, 0)
    A("s_waitcnt lgkmcnt(0)")
    red_sum(A, 0)
    round_bf16(A, 0, T)
    for r in range(8): A(f"v_mul_f32 v{r}, v{r}, v{G+r}")
    for i in range(4): A(f"v_cvt_pk_bf16_f32 v{T+i}, v{2*i}, v{2*i+1}")
    A("s_nop 1")
    A(f"v_permlane32_swap_b32 v{T}, v{T+2}")
    A(f"v_permlane32_swap_b32 v{T+1}, v{T+3}")
    A("s_nop 1")
    for i in range(4):
        A(f"v_lshlrev_b32 v{2*i}, 16, v{T+i}")
        A(f"v_and_b32 v{2*i+1}, 0xffff0000, v{T+i}")
    for r in range(8): A(f"v_add_f32 v{r}, v{r}, v{144+r}")
    for i in range(4): A(f"v_cvt_pk_bf16_f32 v{T+i}, v{2*i}, v{2*i+1}")
    A(f"buffer_store_dwordx4 {vr(T,4)}, v252, {sr(S_OUT,4)}, s88 offen")
    if OPT["fixdur"]:
        A.lab("L_FIXDUR")
        A("s_memrealtime s[96:97]")
        A("s_waitcnt lgkmcnt(0)")
        A("s_sub_u32 s96, s96, s100")
        A(f"s_cmp_lt_u32 s96, {OPT['fixdur']}")
        A("s_cbranch_scc1 L_FIXDUR")
    if OPT["prof"]:
        stamp(A, 14)
        A(f"s_add_u32 s{S_T1}, s18, {PROF_OFF:#x}")
        A(f"s_addc_u32 s{S_T1+1}, s19, 0")
        A(f"s_mov_b32 s{S_T1+2}, 0x100000")
        A(f"s_mov_b32 s{S_T1+3}, 0x00020000")
        A("s_lshl_b32 s60, s2, 3")
        A("s_add_u32 s60, s60, s22")
        A("s_lshl_b32 s60, s60, 8")
        A(f"v_lshlrev_b32 v0, 2, v{L}")
        A(f"buffer_store_dword v255, v0, {sr(S_T1,4)}, s60 offen")
        if OPT["dbgout"]:
            A("s_cmp_lg_u32 s2, 200")
            A("s_cbranch_scc1 L_END")
            A("s_cmp_lg_u32 s22, 0")
            A("s_cbranch_scc1 L_END")
            A("v_readlane_b32 s61, v255, 32")
            A("v_readlane_b32 s63, v255, 0")
            A("v_mov_b32 v1, 0")
            A("s_mov_b64 exec, 1")
            for n, i in enumerate((2, 3, 4, 6, 9, 10, 12, 14)):
                A(f"v_readlane_b32 s62, v255, {32+i}")
                A("s_sub_u32 s62, s62, s61")
                A("v_mov_b32 v2, s62")
                A(f"buffer_store_dword v2, v1, {sr(S_DBG,4)}, 0 offen offset:{32+4*n}")
                A("s_nop 1")
            A("v_readlane_b32 s62, v255, 14")
            A("s_sub_u32 s62, s62, s63")
            A("v_mov_b32 v2, s62")
            A(f"buffer_store_dword v2, v1, {sr(S_DBG,4)}, 0 offen offset:28")

def gen_hooks(A):
    gen_attinit(A)
    A.lab("L_LOOPP")
    attn_body(A, "P")
    A("s_cmp_lt_u32 s83, 8")
    A("s_cbranch_scc1 L_LOOPP")
    A("s_branch L_ATT_DONE")
    A.lab("L_CODE_END")

def main(out):
    hdr = open(f"cdna_kernels/{NAME}.s.ref").read().split("\n")
    head = [l for l in hdr if l.startswith(";") and "@launch" not in l]
    head += [f"; @launch grid=(256,1,1) block=(512,1,1) lds={LDS_BYTES}"]
    A = Asm()
    d = gen(A)
    open(out, "w").write("\n".join(head) + '\n.amdgcn_target "amdgcn-amd-amdhsa--gfx950"\n' + A.text() + d)

if __name__ == "__main__":
    for a in sys.argv[2:]:
        k, _, v = a.partition("=")
        OPT[k] = eval(v) if v else True
    main(sys.argv[1] if len(sys.argv) > 1 else f"cdna_kernels/{NAME}.s")
```

```python
import sys, struct

NAME = "recurrent_scan__softmax_full_mha__glu_gated_geglu__prompt"
MB = 1 << 20
QF, KF, VF, OF, WOF, WDF, HF, FLAGS = 0, 2*MB, 4*MB, 6*MB, 8*MB, 9*MB, 11*MB, 17*MB
WS_BYTES = 18*MB
NFU = 86
LOG2E = 1.4426950408889634
def f2u(x): return struct.unpack("<I", struct.pack("<f", x))[0]

OPT = dict(prof=False, bias=98.0, force_fallback=False, sleep=2, barpos=1, itstamp=False, hplan=[1,1,1,1,1,1,2,1], sigt=1, psleep=3, gpre=24, wearly=False, peel=True, spf=False, prefetch=False, dmaevery=12, dbgout=False, fixdur=0, codepf=True, noload=False, bstamp=False, pace=None, wpf=[-1,0,1,2,3], exp='', w64=False, lprio=0, enc=-1, cmap=True, prio='ramp2')
PROF_OFF = 24*MB
SPIN_MAX = 20000
VSH = 32

class Asm:
    def __init__(self): self.l = []
    def __call__(self, s): self.l.append(s if s.endswith(":") else "    " + s)
    def many(self, ss):
        for s in ss: self(s)
    def lab(self, s): self.l.append(s + ":")
    def raw(self, s): self.l.append(s)
    def text(self): return "\n".join(self.l) + "\n"
def vr(a, n): return f"v[{a}:{a+n-1}]"
def sr(a, n): return f"s[{a}:{a+n-1}]"
def srd(A, d, base, nbytes):
    A(f"s_mov_b32 s{d}, s{base}")
    A(f"s_mov_b32 s{d+1}, s{base+1}")
    A(f"s_mov_b32 s{d+2}, {nbytes:#x}")
    A(f"s_mov_b32 s{d+3}, 0x00020000")
def csel(A, d, a, b):
    A(f"s_mov_b32 s{d}, {b:#x}")
    A(f"s_cselect_b32 s{d}, {a:#x}, s{d}")
def stamp(A, i):
    if OPT["enc"] == i:
        A("s_memrealtime s[100:101]")
        A("s_waitcnt lgkmcnt(0)")
    if not OPT["prof"]: return
    A("s_memtime s[96:97]")
    A("s_memrealtime s[98:99]")
    A("s_waitcnt lgkmcnt(0)")
    A(f"v_writelane_b32 v255, s96, {i}")
    A(f"v_writelane_b32 v255, s98, {32+i}")

WR = 32768
WSL = 18560
UPOFF = 9344
QOFF = 135168
SCRATCH = 147456
SW = 163584
LDS_BYTES = 163840
OFLAG = FLAGS
QFLAG = OFLAG + 256*128
QCNT = QFLAG + 64*128
NZ = 6
S_X, S_W, S_WS, S_DBG, S_OUT, S_T1, S_T2 = 24, 28, 32, 36, 40, 44, 48
L = 254
S_ = [0, 16]; C_ = 32; DACC = 48; Q_ = 80; KB = [84, 88]; O_ = 144; V0 = [160, 164]; V1 = [168, 172]
IDX, KA, VA, L16 = 92, 93, 94, 95
DH = [104, 116, 128, 140]; DW_ = [108, 120, 132, 176]
WO = 184; XV = 248

def spin(A, tag, loads, cmp_lines, first_loaded=False):
    A(f"s_mov_b32 s70, {SPIN_MAX}")
    if not first_loaded: A.many(loads)
    A.lab(tag)
    A("s_waitcnt vmcnt(0)")
    A.many(cmp_lines)
    A(f"s_cbranch_scc1 {tag}_OK")
    A(f"s_sleep {OPT['sleep']}")
    A.many(loads)
    A("s_sub_u32 s70, s70, 1")
    A("s_cmp_lg_u32 s70, 0")
    A(f"s_cbranch_scc1 {tag}")
    A.lab(tag + "_OK")
def spin3(A, tag, regs, voff, soff, n, primed=0):
    A(f"s_mov_b32 s70, {SPIN_MAX}")
    for r in regs[primed:2]:
        A.many(apoll(r, voff, soff, 1))
        A(f"s_sleep {OPT['psleep']}")
    A.lab(tag)
    for k in range(3):
        A.many(apoll(regs[(k+2) % 3], voff, soff, 1))
        A("s_waitcnt vmcnt(2)")
        A.many(acmp(regs[k], n, 1))
        A(f"s_cbranch_scc1 {tag}_OK")
        A(f"s_sleep {OPT['psleep']}")
    A("s_sub_u32 s70, s70, 1")
    A("s_cmp_lg_u32 s70, 0")
    A(f"s_cbranch_scc1 {tag}")
    A.lab(tag + "_OK")
def apoll(dst, voff, soff, mask):
    return [f"v_mov_b32 v{dst}, 0", f"s_mov_b64 exec, {mask}",
            f"buffer_atomic_add v{dst}, v{voff}, {sr(S_WS,4)}, {soff} offen sc0", "s_mov_b64 exec, -1"]
def acmp(v, n, mask):
    return [f"v_cmp_eq_u32 vcc, {n}, v{v}", f"s_cmp_eq_u64 vcc, {mask}"]
ALL1 = lambda v: [f"v_cmp_ne_u32 vcc, 1, v{v}", "s_cmp_eq_u64 vcc, 0"]

def last_wave_signals(A, tag, off, last):
    A(f"v_mov_b32 v96, {SW}")
    A("v_mov_b32 v97, 1")
    A("s_mov_b64 exec, 1")
    A(f"ds_add_rtn_u32 v100, v96, v97 offset:{off}")
    A("s_waitcnt lgkmcnt(0)")
    A("s_mov_b64 exec, -1")
    A("v_readfirstlane_b32 s60, v100")
    A(f"s_cmp_lg_u32 s60, {last}")
    A(f"s_cbranch_scc1 {tag}")
    A("s_mov_b32 exec_hi, 0")
    A(f"v_lshlrev_b32 v96, 7, v{L}")
    A(f"buffer_atomic_add v97, v96, {sr(S_WS,4)}, s91 offen")
    A("s_mov_b64 exec, -1")
    A.lab(tag)

def gen(A):
    name = NAME + "_kernel"
    A.raw(".text"); A.raw(f".globl {name}"); A.raw(".p2align 8"); A.raw(f".type {name},@function")
    A.lab(name)
    A("s_cmp_ge_u32 s2, 256")
    A("s_cbranch_scc1 L_END")
    if OPT["fixdur"]: A("s_memrealtime s[100:101]")
    A("s_load_dwordx4 s[4:7], s[0:1], 0")
    A("s_load_dwordx2 s[8:9], s[0:1], 16")
    A("s_load_dwordx4 s[12:15], s[0:1], 32")
    A("s_load_dwordx4 s[52:55], s[0:1], 48")
    A("s_load_dwordx4 s[56:59], s[0:1], 64")
    if OPT["prof"]: A("v_mov_b32 v255, 0")
    stamp(A, 0)
    A("s_getpc_b64 s[60:61]")
    A.lab("L_PC")
    A("s_lshr_b32 s23, s2, 3")
    A("s_lshl_b32 s62, s23, 11")
    A("v_lshl_add_u32 v250, v0, 7, s62")
    A("v_cmp_gt_u32 s[62:63], 16, v0")
    A("v_cmp_gt_u32 vcc, L_CODE_END-L_PC-4, v250")
    A("v_lshrrev_b32 v252, 6, v0")
    A(f"v_and_b32 v{L}, 63, v0")
    A("s_and_b64 exec, vcc, s[62:63]")
    A("s_cbranch_execz L_NOPF")
    A("v_mov_b32 v251, s61")
    A("v_add_co_u32 v250, vcc, s60, v250")
    A("v_addc_co_u32 v251, vcc, 0, v251, vcc")
    A("global_load_dword v253, v[250:251], off")
    A.lab("L_NOPF")
    A("s_mov_b64 exec, -1")
    A("v_readfirstlane_b32 s22, v252")
    T = TL
    A(f"v_lshrrev_b32 v{T}, 3, v{L}")
    A(f"v_and_b32 v{T+1}, 7, v{L}")
    A(f"v_lshlrev_b32 v{VX}, 10, v{T}")
    A(f"v_lshl_add_u32 v{VX}, v{T+1}, 4, v{VX}")
    A("s_bfe_u32 s20, s2, 0x20001")
    A("s_lshl_b32 s20, s20, 2")
    A("s_and_b32 s60, s23, 3")
    A("s_add_u32 s20, s20, s60")
    A("s_cmp_lt_u32 s22, 4")
    A("s_cbranch_scc1 L_COMMON")
    loader_first(A)
    A.lab("L_COMMON")
    A("s_lshr_b32 s62, s23, 2")
    A("s_and_b32 s63, s2, 1")
    A("s_lshl_b32 s21, s62, 1")
    A("s_add_u32 s21, s21, s63")
    A("s_mul_i32 s63, s63, 5")
    A("s_add_u32 s63, s63, s62")
    A("s_add_u32 s63, s63, 3")
    A("s_cmp_ge_u32 s62, 3")
    A("s_cselect_b32 s21, s63, s21")
    A("s_waitcnt lgkmcnt(0)")
    srd(A, S_X, 4, 2048*512*2)
    A("s_mov_b64 s[16:17], s[52:53]")
    A("s_mov_b64 s[18:19], s[58:59]")
    srd(A, S_WS, 58, WS_BYTES)
    srd(A, S_DBG, 56, 256)
    srd(A, S_OUT, 54, 2048*512*2)
    srd(A, S_T1, 58, 0)
    srd(A, S_T2, 58, 0)
    for r in HOFF: A(f"s_mov_b32 s{r}, 0x7fff0000")
    A("s_cmp_lt_u32 s22, 4")
    A("s_cbranch_scc1 L_COMPUTE")
    gen_loader(A)
    A("s_branch L_P0")
    A.lab("L_COMPUTE")
    gen_init(A)
    A("s_cmp_ge_u32 s21, 6")
    A("s_cbranch_scc1 L_F")
    A("s_cmp_ge_u32 s21, 4")
    A("s_cbranch_scc1 L_V")
    gen_compute(A, "QK")
    A.lab("L_V")
    gen_compute(A, "V")
    A.lab("L_SIGNAL")
    A("s_and_b32 s91, s21, 1")
    A("s_lshl_b32 s91, s91, 12")
    A(f"s_add_u32 s91, s91, {QCNT:#x}")
    A("s_waitcnt vmcnt(0)")
    last_wave_signals(A, "L_SIG2", 0, 3)
    stamp(A, 15)
    A("s_branch L_P2")
    A.lab("L_F")
    gen_compute(A, "F")
    A.lab("L_P2")
    gen_attn(A)
    gen_final(A)
    A.lab("L_END")
    A("s_endpgm")
    gen_hooks(A)
    return f""".section .rodata,"a"
.p2align 6
.amdhsa_kernel {name}
  .amdhsa_next_free_vgpr 256
  .amdhsa_next_free_sgpr 102
  .amdhsa_accum_offset 256
  .amdhsa_group_segment_fixed_size 0
  .amdhsa_kernarg_size 80
  .amdhsa_user_sgpr_count 2
  .amdhsa_user_sgpr_kernarg_segment_ptr 1
  .amdhsa_system_sgpr_workgroup_id_x 1
.end_amdhsa_kernel
"""

def gen_init(A):
    R = 160
    A("s_cmp_lg_u32 s22, 0")
    A("s_cbranch_scc1 L_INIT1")
    for r in range(R, R+4): A(f"v_mov_b32 v{r}, 0")
    A(f"v_mov_b32 v{R+4}, {SW}")
    A(f"ds_write_b128 v{R+4}, {vr(R,4)}")
    A("s_sub_u32 s61, s2, 128")
    A(f"s_cmp_ge_u32 s61, {NZ}")
    A("s_cbranch_scc1 L_INIT1")
    A(f"v_lshlrev_b32 v{R+4}, 7, v{L}")
    A("s_lshl_b32 s60, s61, 13")
    A(f"s_add_u32 s60, s60, {FLAGS:#x}")
    A(f"buffer_store_dword v{R}, v{R+4}, {sr(S_WS,4)}, s60 offen sc1")
    A("s_nop 1")
    A.lab("L_INIT1")
    for r in range(144): A(f"v_mov_b32 v{r}, 0")
    A("s_call_b64 s[76:77], L_ATTINIT")
    A("s_lshr_b32 s60, s22, 1")
    A("s_and_b32 s61, s22, 1")

VW = 144
def gen_wsetup(A):
    T = 158
    A("s_bfe_u32 s62, s22, 0x10001")
    A("s_and_b32 s63, s22, 1")
    A("s_cmp_lt_u32 s21, 6")
    A("s_cbranch_scc1 LL_Q")
    A("s_cmp_eq_u32 s63, 0")
    A(f"s_cselect_b32 s{S_W}, s12, s14")
    A(f"s_cselect_b32 s{S_W+1}, s13, s15")
    A(f"s_mov_b32 s{S_W+2}, {512*1376*2:#x}")
    A("s_sub_u32 s64, s21, 6")
    A(f"s_mul_i32 s64, s64, {9*32}")
    A(f"s_mov_b32 s65, {2752-288}")
    A(f"v_mul_u32_u24 v{T+2}, 3641, v{L}")
    A(f"v_lshl_add_u32 v{T+3}, v{L}, 4, s64")
    for i in range(9):
        A(f"v_add_u32 v{T+4}, {64*i*3641}, v{T+2}")
        A(f"v_lshrrev_b32 v{T+4}, 16, v{T+4}")
        A(f"v_add_u32 v{T+5}, {1024*i}, v{T+3}")
        A(f"v_mad_u32_u24 v{VW+i}, v{T+4}, s65, v{T+5}")
    A(f"v_and_b32 v{T+2}, 3, v{L}")
    A(f"v_min_u32 v{T+2}, 2, v{T+2}")
    A("s_mov_b32 s65, 2752")
    A(f"s_mov_b32 s68, {32*2752}")
    A("s_branch LL_C")
    A.lab("LL_Q")
    A(f"s_mov_b32 s{S_W}, s6")
    A(f"s_mov_b32 s{S_W+1}, s7")
    A(f"s_mov_b32 s{S_W+2}, {512*1536*2:#x}")
    A(f"v_lshrrev_b32 v{T+3}, 4, v{L}")
    A(f"v_mul_u32_u24 v{T+2}, 3072, v{T+3}")
    A(f"v_bfe_u32 v{T+4}, v{L}, 2, 2")
    A(f"v_xor_b32 v{T+4}, v{T+4}, v{T+3}")
    A(f"v_lshl_add_u32 v{T+2}, v{T+4}, 6, v{T+2}")
    A(f"v_and_b32 v{T+3}, 3, v{L}")
    A(f"v_lshl_add_u32 v{T+2}, v{T+3}, 4, v{T+2}")
    A("s_lshl_b32 s64, s21, 9")
    A("s_lshl_b32 s65, s63, 8")
    A("s_add_u32 s64, s64, s65")
    A(f"v_add_u32 v{VW}, s64, v{T+2}")
    for i in range(1, 9): A(f"v_add_u32 v{VW+i}, {i*4*3072}, v{VW}")
    A(f"v_and_b32 v{T+2}, 1, v{L}")
    A("s_mov_b32 s65, 3072")
    A(f"s_mov_b32 s68, {32*3072}")
    A.lab("LL_C")
    A("s_and_b32 s66, s20, 3")
    A("s_lshl_b32 s66, s66, 3")
    A(f"v_lshrrev_b32 v{T+3}, 2, v{L}")
    A(f"v_add_u32 v{T+3}, s66, v{T+3}")
    A(f"v_mul_u32_u24 v{T+3}, s65, v{T+3}")
    A(f"v_lshl_add_u32 v{T+3}, v{T+2}, 7, v{T+3}")
    A(f"v_add_u32 v{VW+9}, s64, v{T+3}")
    A(f"s_mov_b32 s{S_W+3}, 0x00020000")
    A(f"s_mul_i32 s71, s62, {WSL}")
    A(f"s_mul_i32 s66, s63, {UPOFF}")
    A("s_add_u32 s71, s71, s66")
    A(f"s_add_u32 s71, s71, {WR}")
    A("s_mov_b32 s72, s71")
    A(f"s_add_u32 s73, s71, {6*WSL}")
    A("s_mul_i32 s74, s62, s68")
    A("s_lshl_b32 s68, s68, 1")

W_PREFETCH = ["s_add_u32 s67, s74, s68", "s_mov_b32 exec_hi, 0",
              f"buffer_load_dword v253, v{VW+9}, {sr(S_W,4)}, s67 offen", "s_mov_b64 exec, -1"]
_dma_n = [0]
def dma_piece(i): return [f"s_add_u32 m0, s72, {i*1024}", "s_nop 0", f"buffer_load_dwordx4 v{VW+i}, {sr(S_W,4)}, s74 offen lds"]
DMA_TAIL = ["s_add_u32 s74, s74, s68", f"s_add_u32 s72, s72, {2*WSL}", "s_cmp_eq_u32 s72, s73", "s_cselect_b32 s72, s71, s72"]
def dma_groups(first):
    g = [dma_piece(i) for i in range(first, 9)]
    _dma_n[0] += 1
    lab = f"LL_D{_dma_n[0]}"
    g[-1] = ["s_cmp_lt_u32 s21, 6", f"s_cbranch_scc1 {lab}"] + g[-1] + [lab + ":"] + DMA_TAIL
    return g
def mix(A, work, groups, every):
    groups = list(groups)
    for n, w in enumerate(work):
        if isinstance(every, (list, tuple)):
            for _ in range(every.count(n)):
                if groups: A.many(groups.pop(0))
        elif groups and n % every == 0: A.many(groups.pop(0))
        A(w)
    for g in groups: A.many(g)

HREG = 184
HOFF = [52, 53, 54, 55, 56, 57, 58, 59, 10]
def h_offsets(A):
    tiles = [(lu*2+lt, lu, lt) for lu in range(4) for lt in range(2)] + [(8, 4, 0)]
    for (tile, lu, lt) in tiles:
        A("s_add_u32 s66, s64, 8" if lu == 4 else f"s_add_u32 s66, s65, {lu}")
        A("s_lshl_b32 s67, s66, 10")
        A(f"s_add_u32 s67, s67, s{62+lt}")
        A(f"s_cmp_lt_u32 s66, {NFU}")
        A(f"s_cselect_b32 s{HOFF[tile]}, s67, 0x7fff0000")

SJ = 184
def side_setup(A):
    A("s_mul_i32 s75, s20, 10")
    A("s_add_u32 s75, s75, s21")
    A("s_sub_u32 s75, s75, 6")
    A("s_mul_i32 s75, s75, 3")
    A("s_add_u32 s75, s75, s60")
    A("s_sub_u32 s75, s75, 1")
    A(f"v_lshrrev_b32 v245, 5, v{L}")
    A("v_lshlrev_b32 v245, 10, v245")
    A(f"v_and_b32 v246, 31, v{L}")
    A("v_lshl_add_u32 v245, v246, 4, v245")
    for jb in range(2):
        S = 4 if jb else S_W
        A(f"s_add_u32 s90, s75, {480*jb}")
        A("s_cmp_lt_u32 s90, 256")
        A(f"s_cselect_b32 s{S}, s8, s16")
        A(f"s_cselect_b32 s{S+1}, s9, s17")
        csel(A, S+2, 512*512*2, 1376*512*2)
        A(f"s_mov_b32 s{S+3}, 0x00020000")
        csel(A, 91, WOF, WDF)
        csel(A, 67, 32*2048, NFU*2048)
        A("s_cselect_b32 s70, 0, 256")
        A("s_sub_u32 s70, s90, s70")
        A("s_lshr_b32 s94, s70, 3")
        A("s_and_b32 s70, s70, 7")
        A(f"s_lshl_b32 s{72+jb}, s94, 14")
        A("s_lshl_b32 s95, s70, 7")
        A(f"s_add_u32 s{72+jb}, s{72+jb}, s95")
        A("s_mul_i32 s70, s70, s67")
        A("s_lshl_b32 s94, s94, 11")
        A("s_add_u32 s70, s70, s94")
        A("s_add_u32 s70, s70, s91")
        A(f"s_cmp_lt_u32 s90, {256+8*NFU}")
        A(f"s_cselect_b32 s{92+jb}, s70, 0x7fff0000")
def side_prefetch(A):
    A("s_mov_b64 exec, 0xffff")
    A(f"buffer_load_dword v253, v245, {sr(S_T1,4)}, s81 offen")
    A(f"buffer_load_dword v253, v245, {sr(S_T2,4)}, s82 offen")
    A("s_mov_b64 exec, -1")
def side_loads(A, jb):
    S = 4 if jb else S_W
    for rho in range(16):
        hh = (rho >> 2) & 1; j = (rho & 3) + 4*(rho >> 3)
        d = SJ + 16*jb + 8*(j & 1) + 4*hh + (j >> 1)
        A(f"buffer_load_ushort v{d}, v244, {sr(S,4)}, s{72+jb} offen offset:{(rho&3)*1024}")
        if (rho & 3) == 3: A(f"s_add_u32 s{72+jb}, s{72+jb}, 4096")
def side_combine(A):
    for jb in range(2):
        d = SJ + 16*jb
        for i in range(8): A(f"v_lshl_or_b32 v{d+i}, v{d+8+i}, 16, v{d+i}")
        A(f"s_mov_b32 s{HOFF[4*jb]}, s{92+jb}")
        A(f"s_add_u32 s{HOFF[4*jb+1]}, s{92+jb}, 512")
    A("v_mov_b32 v249, v245")

def gen_compute(A, kind):
    F = kind == "F"
    NW = 5 if F else 4
    ND = 9 if F else 8
    XS = [176, 184]; WSET = [192, 212]
    XA = 232; XB = 236; WA = 240; T0 = 244
    KQ = 1152 if F else 1024
    US = 32
    P = "L1" + kind
    t, h, sw = T0, T0+1, T0+2
    A(f"v_and_b32 v{t}, 31, v{L}")
    A(f"v_lshrrev_b32 v{h}, 5, v{L}")
    A(f"v_bfe_u32 v{sw}, v{t}, 1, 3")
    A(f"v_xor_b32 v{sw}, v{sw}, v{h}")
    A(f"v_lshlrev_b32 v{T0+3}, 7, v{t}")
    A("s_lshl_b32 s62, s22, 12")
    for s in range(4):
        A(f"v_xor_b32 v{T0+4}, {2*s}, v{sw}")
        A(f"v_lshl_add_u32 v{T0+4}, v{T0+4}, 4, v{T0+3}")
        A(f"v_add_u32 v{XA+s}, s62, v{T0+4}")
        A(f"v_xor_b32 v{XB+s}, 0x1000, v{XA+s}")
    if F:
        A(f"v_bfe_u32 v{T0+5}, v{L}, 2, 2")
        A(f"v_mul_u32_u24 v{T0+5}, 288, v{T0+5}")
        A(f"v_and_b32 v{T0+3}, 3, v{L}")
        A(f"v_lshl_add_u32 v{T0+3}, v{T0+3}, 3, v{T0+5}")
        A(f"v_bfe_u32 v{T0+4}, v{L}, 4, 1")
        A(f"v_mul_u32_u24 v{T0+4}, {UPOFF}, v{T0+4}")
        A(f"v_add_u32 v{T0+3}, v{T0+3}, v{T0+4}")
    else:
        A(f"v_bfe_u32 v{T0+5}, v{L}, 2, 2")
        A(f"v_and_b32 v{T0+3}, 3, v{L}")
        A(f"v_lshlrev_b32 v{T0+3}, 3, v{T0+3}")
        A(f"v_lshl_add_u32 v{T0+3}, v{T0+5}, 8, v{T0+3}")
        A(f"v_bfe_u32 v{T0+4}, v{L}, 4, 1")
        A(f"v_lshl_add_u32 v{T0+3}, v{T0+4}, 5, v{T0+3}")
    A(f"v_mul_u32_u24 v{T0+4}, {2*KQ}, v{h}")
    A(f"v_add_u32 v{T0+3}, v{T0+3}, v{T0+4}")
    A(f"v_add_u32 v{T0+3}, {WR}, v{T0+3}")
    if F:
        A(f"s_mul_i32 s62, s61, {4*US}")
        A(f"v_add_u32 v{WA}, s62, v{T0+3}")
        A(f"v_add_u32 v{WA+1}, {8*US}, v{T0+3}")
    else:
        A(f"s_mul_i32 s62, s61, {UPOFF}")
        A(f"v_add_u32 v{T0+3}, s62, v{T0+3}")
        for lu in range(4):
            A(f"v_xor_b32 v{T0+4}, {lu}, v{T0+5}")
            A(f"v_lshl_add_u32 v{WA+lu}, v{T0+4}, 6, v{T0+3}")
    VO = 249
    if kind == "QK":
        A(f"v_and_b32 v{T0+6}, 0x33, v{L}")
        A(f"v_bfe_u32 v{T0+7}, v{L}, 2, 1")
        A(f"v_lshl_or_b32 v{T0+6}, v{T0+7}, 3, v{T0+6}")
        A(f"v_bfe_u32 v{T0+7}, v{L}, 3, 1")
        A(f"v_lshl_or_b32 v{T0+6}, v{T0+7}, 2, v{T0+6}")
        A("s_cmp_lt_u32 s21, 2")
        A("s_cselect_b64 vcc, -1, 0")
        A(f"v_cndmask_b32 v{VO}, v{T0+6}, v{L}, vcc")
        A(f"v_lshlrev_b32 v{VO}, 4, v{VO}")
    elif kind == "V":
        A(f"v_and_b32 v{VO}, 15, v{L}")
        A(f"v_lshlrev_b32 v{VO}, 4, v{VO}")
        A(f"v_lshl_or_b32 v{VO}, v{h}, 8, v{VO}")
        A(f"v_bfe_u32 v{T0+6}, v{L}, 4, 1")
        A(f"v_lshl_or_b32 v{VO}, v{T0+6}, 16, v{VO}")
    else:
        A(f"v_lshlrev_b32 v{VO}, 4, v{L}")
    A("s_lshl_b32 s68, s20, 2")
    A("s_add_u32 s68, s68, s22")
    A("s_xor_b32 s69, s68, 1")
    if not F:
        A("s_lshl_b32 s70, s21, 20")
        A("s_lshl_b32 s71, s61, 19")
        A("s_add_u32 s70, s70, s71")
        A("s_lshl_b32 s68, s68, 10")
        A("s_lshl_b32 s69, s69, 10")
        A("s_add_u32 s68, s68, s70")
        A("s_add_u32 s69, s69, s70")
    A("s_mov_b32 s64, 0")
    A("s_mov_b32 s65, 0")

    def reads(st, s):
        r = []
        hs, sp = s >> 1, s & 1
        def wread(lu):
            a = WA + ((1 if lu == 4 else 0) if F else lu)
            base = hs*WSL + 4*sp*KQ + (lu*US if F and lu < 4 else 0)
            d = WSET[st] + 4*lu
            return [f"ds_read_b64_tr_b16 {vr(d,2)}, v{a} offset:{base}",
                    f"ds_read_b64_tr_b16 {vr(d+2,2)}, v{a} offset:{base+KQ}"]
        r.append(f"ds_read_b128 {vr(XS[st],4)}, v{XA+s}")
        r += wread(0)
        r.append(f"ds_read_b128 {vr(XS[st]+4,4)}, v{XB+s}")
        for lu in range(1, NW): r += wread(lu)
        return r
    def mfma(tile, w, x):
        a, b = (x, w) if kind == "V" else (w, x)
        return f"v_mfma_f32_32x32x16_bf16 {vr(16*tile,16)}, {vr(a,4)}, {vr(b,4)}, {vr(16*tile,16)}"
    def mfmas(st):
        m = [mfma(lu*2+lt, WSET[st]+4*lu, XS[st]+4*lt) for lu in range(4) for lt in range(2)]
        if F: m.append(mfma(8, WSET[st]+16, XS[st]))
        return m
    stamp(A, 1)
    A("s_waitcnt vmcnt(0) lgkmcnt(0)" if F else "s_waitcnt lgkmcnt(0)")
    A("s_barrier")
    stamp(A, 2)
    A.many(reads(0, 0))
    if F:
        A("s_sub_u32 s66, s2, 128")
        A("s_lshl_b32 s67, s22, 8")
        A("s_add_u32 s66, s66, s67")
        A(f"s_cmp_ge_u32 s66, {NZ}")
        A(f"s_cbranch_scc1 {P}_LOOP")
        A("s_lshl_b32 s66, s66, 2")
        A("s_mov_b64 exec, 1")
        A("v_mov_b32 v250, 1")
        A("v_mov_b32 v251, 0")
        A(f"buffer_store_dword v250, v251, {sr(S_DBG,4)}, s66 offen sc1")
        A("s_mov_b64 exec, -1")
    A.raw(".p2align 6")
    A.lab(P + "_LOOP")
    NR = 2*NW + 2
    PEEL = OPT["peel"] and not F
    NIT = 7 if PEEL else 8
    need = [3, 4, 6, 6, 8, 8, 10, 10, 12]
    for s in range(4):
        st = s & 1; nx = (s+1) & 3
        ms = mfmas(st); rd = reads(1-st, nx)
        n = len(ms)
        gaps = [[] for _ in ms]
        g0 = OPT["barpos"] if s == 3 else 0
        for i, r in enumerate(rd): gaps[g0 + i//2].append(r)
        xu = lambda k: [f"v_xor_b32 v{XA+k}, 0x4000, v{XA+k}", f"v_xor_b32 v{XB+k}, 0x4000, v{XB+k}"]
        if s < 3:
            gaps[n-2] += xu(nx)
        if s == 0: gaps[n-3] += xu(0)
        if s == 1:
            gaps[n-3] += ["s_cmp_eq_u32 s65, 2", f"s_mov_b32 s66, {2*WSL:#x}", f"s_cselect_b32 s66, {(-4*WSL) & 0xffffffff:#x}, s66"]
            gaps[n-1] += ["s_cselect_b32 s65, -1, s65", "s_add_u32 s65, s65, 1"]
        if s == 2:
            gaps[n-1] += [f"v_add_u32 v{WA+i}, s66, v{WA+i}" for i in range(2 if F else 4)]
        if s == 3:
            gaps[n-1] += ["s_add_u32 s64, s64, 1", f"s_cmp_lt_u32 s64, {NIT}"]
        issued = 0; done = 0
        for i, (m, g) in enumerate(zip(ms, gaps)):
            if need[i] > done:
                A(f"s_waitcnt lgkmcnt({min(15, NR - need[i] + issued)})"); done = need[i]
            A(m)
            if s == 3 and i == g0:
                A("s_waitcnt lgkmcnt(0)"); done = NR
                A("s_barrier")
            for x in g:
                A(x)
                if x.startswith("ds_"): issued += 1
    if OPT["prof"] and OPT["itstamp"]:
        A("s_memtime s[96:97]")
        A("s_add_u32 m0, s64, 19")
        A("s_waitcnt lgkmcnt(0)")
        A("v_writelane_b32 v255, s96, m0")
        A(f"s_cmp_lt_u32 s64, {NIT}")
    A(f"s_cbranch_scc1 {P}_LOOP")
    stamp(A, 3)
    tiles = [(lu*2+lt, lu, lt) for lu in range(4) for lt in range(2)] + ([(8, 4, 0)] if F else [])
    if not F:
        def fin(tile, lu, lt):
            a = 16*tile
            g = [[f"v_cvt_pk_bf16_f32 v{a+i}, v{a+2*i}, v{a+2*i+1}" for i in range(4)],
                 [f"s_add_u32 s65, s{68+lt}, {lu*131072}", f"buffer_store_dwordx4 {vr(a,4)}, v{VO}, {sr(S_WS,4)}, s65 offen sc1"],
                 [f"v_cvt_pk_bf16_f32 v{a+8+i}, v{a+8+2*i}, v{a+9+2*i}" for i in range(4)]]
            if kind == "QK": g.append(["s_add_u32 s65, s65, 65536", f"buffer_store_dwordx4 {vr(a+8,4)}, v{VO}, {sr(S_WS,4)}, s65 offen sc1"])
            else: g.append([f"buffer_store_dwordx4 {vr(a+8,4)}, v{VO}, {sr(S_WS,4)}, s65 offen offset:512 sc1"])
            return g
        rest = tiles
        if PEEL:
            XR = {1: XS[1], 2: 128, 3: 136}
            WG = [[212, 216, 220], [224, 228, 208]]
            def wrd(lu):
                r = []
                for s in (1, 2, 3):
                    base = (s >> 1)*WSL + 4*(s & 1)*KQ; d = WG[lu & 1][s-1]
                    r += [f"ds_read_b64_tr_b16 {vr(d,2)}, v{WA+lu} offset:{base}", f"ds_read_b64_tr_b16 {vr(d+2,2)}, v{WA+lu} offset:{base+KQ}"]
                return r
            w0 = wrd(0); rd = []
            for s in (1, 2, 3):
                rd += [f"ds_read_b128 {vr(XR[s],4)}, v{XA+s}", f"ds_read_b128 {vr(XR[s]+4,4)}, v{XB+s}"] + w0[2*s-2:2*s]
            issued = 0; done = 0
            for i, m in enumerate(mfmas(0)):
                if need[i] > done:
                    A(f"s_waitcnt lgkmcnt({min(15, NR - need[i] + issued)})"); done = need[i]
                A(m)
                A.many(rd[2*i:2*i+2]); issued += len(rd[2*i:2*i+2])
            pend = []
            for lu in range(4):
                A("s_waitcnt lgkmcnt(0)")
                if lu == 3: A("s_barrier")
                nxt = wrd(lu+1) if lu < 3 else []
                for i, (s, lt) in enumerate((s, lt) for s in (1, 2, 3) for lt in range(2)):
                    A(mfma(lu*2+lt, WG[lu & 1][s-1], XR[s]+4*lt))
                    A.many(nxt[2*i:2*i+2])
                    if i == 2 and lu > 0:
                        A("s_nop 3")
                        for tl in tiles[2*(lu-1):2*lu]: pend += fin(*tl)
                    for _ in range(2 if i >= 3 else 1):
                        if pend: A.many(pend.pop(0))
            for g in pend: A.many(g)
            A("s_nop 7")
            rest = tiles[6:]
        for tl in rest:
            for g in fin(*tl): A.many(g)
        stamp(A, 4)
        if kind == "QK": A("s_branch L_SIGNAL")
    else:
        A(f"s_mul_i32 s62, s68, {NFU*1024}")
        A(f"s_mul_i32 s63, s69, {NFU*1024}")
        A(f"s_add_u32 s62, s62, {HF:#x}")
        A(f"s_add_u32 s63, s63, {HF:#x}")
        A("s_sub_u32 s64, s21, 6")
        A("s_mul_i32 s64, s64, 9")
        A("s_lshl_b32 s65, s61, 2")
        A("s_add_u32 s65, s65, s64")
        C1, C3, ONE, TT = 220, 222, 224, 176
        c1 = -2*0.7978845608028654*LOG2E
        A("s_waitcnt lgkmcnt(0)")
        for r, v in ((C1, c1), (C3, c1*0.044715), (ONE, 1.0)):
            A(f"v_mov_b32 v{r}, {f2u(v):#x}")
            A(f"v_mov_b32 v{r+1}, {f2u(v):#x}")
        dst = lambda tile: HREG + 4*tile
        h_offsets(A)
        for (tile, lu, lt) in tiles:
            a = 16*tile
            for i in range(4): A(f"v_pk_mul_f32 {vr(TT+2*i,2)}, {vr(a+2*i,2)}, {vr(a+2*i,2)}")
            for i in range(4): A(f"v_pk_fma_f32 {vr(TT+2*i,2)}, {vr(TT+2*i,2)}, {vr(C3,2)}, {vr(C1,2)}")
            for i in range(4): A(f"v_pk_mul_f32 {vr(TT+2*i,2)}, {vr(TT+2*i,2)}, {vr(a+2*i,2)}")
            for i in range(8): A(f"v_exp_f32 v{TT+i}, v{TT+i}")
            for i in range(4): A(f"v_pk_mul_f32 {vr(a+2*i,2)}, {vr(a+2*i,2)}, {vr(a+8+2*i,2)}")
            for i in range(4): A(f"v_pk_add_f32 {vr(TT+2*i,2)}, {vr(TT+2*i,2)}, {vr(ONE,2)}")
            for i in range(8): A(f"v_rcp_f32 v{TT+i}, v{TT+i}")
            A("s_nop 0")
            for i in range(4): A(f"v_pk_mul_f32 {vr(a+2*i,2)}, {vr(a+2*i,2)}, {vr(TT+2*i,2)}")
            for i in range(4): A(f"v_cvt_pk_bf16_f32 v{dst(tile)+i}, v{a+2*i}, v{a+2*i+1}")
        stamp(A, 4)

VX = 212; DW = 240; S1 = 216; S2 = 220; RR = 224; MR = 228; TL = 232
xreg = lambda c, i: (i*8 + c)*4
def xload_(A, i):
    A(f"s_add_u32 s{85+i}, s80, {i}")
    A(f"s_and_b32 s{85+i}, s{85+i}, 3")
    A(f"s_lshl_b32 s89, s{85+i}, 13")
    A("s_add_u32 s89, s89, s61")
    for c in range(8):
        A(f"buffer_load_dwordx4 {vr(xreg(c,i),4)}, v{VX}, {sr(S_X,4)}, s89 offen offset:{c*128}")
def loader_first(A):
    T = TL
    A("s_sub_u32 s60, s22, 4")
    A("s_lshl_b32 s61, s20, 17")
    A("s_lshl_b32 s62, s60, 15")
    A("s_add_u32 s61, s61, s62")
    A("s_lshr_b32 s80, s2, 5")
    A("s_waitcnt lgkmcnt(0)")
    srd(A, S_X, 4, 2048*512*2)
    xload_(A, 0); xload_(A, 1)

def gen_loader(A):
    T = TL
    xload = lambda i: xload_(A, i)
    gen_wsetup(A)
    xload(2)
    A("s_cmp_lt_u32 s21, 2")
    A(f"s_cselect_b32 s69, {f2u(0.25*LOG2E):#x}, 1.0")
    A("s_lshr_b32 s64, s21, 1")
    A("s_cmp_eq_u32 s64, 2")
    A(f"s_cselect_b32 s69, {f2u(2.0**VSH):#x}, s69")
    for r in range(S1, S2+4): A(f"v_mov_b32 v{r}, 0")
    A("s_mov_b32 s78, 0x3f803f80")
    A("v_mov_b32 v249, 0")
    A(f"v_lshlrev_b32 v244, 1, v{L}")
    A("s_cmp_ge_u32 s21, 6")
    A("s_cselect_b32 s79, s60, 0")
    def norm(c, i):
        x = xreg(c, i); r = []
        for d in range(4):
            r.append(f"v_lshlrev_b32 v{T+2*d}, 16, v{x+d}")
            r.append(f"v_and_b32 v{T+2*d+1}, 0xffff0000, v{x+d}")
        for d in range(8): r.append(f"v_fma_f32 v{T+d}, v{T+d}, v{RR+i}, -v{MR+i}")
        for d in range(4): r.append(f"v_cvt_pk_bf16_f32 v{x+d}, v{T+2*d}, v{T+2*d+1}")
        if OPT["w64"]:
            r.insert(-2, f"ds_write_b64 v{DW+i}, {vr(x,2)} offset:{(c&1)*16384}")
            r.append(f"ds_write_b64 v{DW+i}, {vr(x+2,2)} offset:{(c&1)*16384+8}")
        else: r.append(f"ds_write_b128 v{DW+i}, {vr(x,4)} offset:{(c&1)*16384}")
        return r
    def dots(i):
        r = []
        for k in range(32):
            r.append(f"v_dot2c_f32_bf16 v{S2+i}, v{xreg(0,i)+k}, v{xreg(0,i)+k}")
            r.append(f"v_dot2c_f32_bf16 v{S1+i}, s78, v{xreg(0,i)+k}")
        return r
    A("s_waitcnt vmcnt(16)"); stamp(A, 16)
    xload(3)
    A.many(dots(0))
    A(f"v_lshrrev_b32 v{T+2}, 4, v{L}")
    A(f"v_xor_b32 v{T+2}, v{T+2}, v{T+1}")
    A(f"v_lshlrev_b32 v{T+3}, 7, v{T}")
    A("s_lshl_b32 s64, s60, 12")
    A(f"v_add_u32 v{T+3}, s64, v{T+3}")
    A(f"v_lshl_add_u32 v{T+3}, v{T+2}, 4, v{T+3}")
    for i in range(4):
        A(f"s_and_b32 s64, s{85+i}, 1")
        A("s_lshl_b32 s64, s64, 6")
        A(f"s_lshl_b32 s65, s{85+i}, 10")
        A("s_or_b32 s64, s64, s65")
        A(f"v_xor_b32 v{DW+i}, s64, v{T+3}")
    def vmw(base, tag):
        A(f"s_waitcnt vmcnt({base+9})")
        A("s_cmp_ge_u32 s21, 6")
        A(f"s_cbranch_scc1 {tag}")
        A(f"s_waitcnt vmcnt({base+8})")
        A.lab(tag)
    A("s_waitcnt vmcnt(16)"); stamp(A, 17)
    if OPT["wearly"]:
        mix(A, dots(1), dma_groups(0), 7)
        vmw(8, "LL_G2"); stamp(A, 18)
        A.many(dots(2))
    else:
        A.many(dots(1))
        A("s_waitcnt vmcnt(8)"); stamp(A, 18)
        mix(A, dots(2), dma_groups(0), 7)
    vmw(0, "LL_G3")
    stamp(A, 19)
    A.many(dots(3))
    A("s_nop 2")
    for ctl in ("quad_perm:[1,0,3,2]", "quad_perm:[2,3,0,1]", "row_half_mirror"):
        for r in range(S1, S2+4):
            A(f"v_add_f32_dpp v{r}, v{r}, v{r} {ctl} row_mask:0xf bank_mask:0xf")
    seq = [
        lambda i: f"v_mul_f32 v{S1+i}, {f2u(1/512):#x}, v{S1+i}",
        lambda i: f"v_mul_f32 v{S2+i}, {f2u(1/512):#x}, v{S2+i}",
        lambda i: f"v_fma_f32 v{S2+i}, -v{S1+i}, v{S1+i}, v{S2+i}",
        lambda i: f"v_max_f32 v{S2+i}, 0, v{S2+i}",
        lambda i: f"v_cvt_pk_bf16_f32 v{S2+i}, v{S1+i}, v{S2+i}",
        lambda i: f"v_lshlrev_b32 v{S1+i}, 16, v{S2+i}",
        lambda i: f"v_and_b32 v{S2+i}, 0xffff0000, v{S2+i}",
        lambda i: f"v_add_f32 v{S2+i}, {f2u(1e-5):#x}, v{S2+i}",
        lambda i: f"v_cvt_pk_bf16_f32 v{S2+i}, v{S2+i}, v{S2+i}",
        lambda i: f"v_and_b32 v{S2+i}, 0xffff0000, v{S2+i}",
        lambda i: f"v_sqrt_f32 v{S2+i}, v{S2+i}",
        lambda i: f"v_cvt_pk_bf16_f32 v{S2+i}, v{S2+i}, v{S2+i}",
        lambda i: f"v_and_b32 v{S2+i}, 0xffff0000, v{S2+i}",
        lambda i: f"v_rcp_f32 v{RR+i}, v{S2+i}",
        lambda i: f"v_mul_f32 v{RR+i}, s69, v{RR+i}",
        lambda i: f"v_mul_f32 v{MR+i}, v{S1+i}, v{RR+i}",
    ]
    for f in seq:
        for i in range(4): A(f(i))
    stamp(A, 1)
    mix(A, sum((norm(0, i) for i in range(4)), []), dma_groups(0), OPT["dmaevery"])
    if -1 in OPT["wpf"]: A.many(W_PREFETCH)
    stamp(A, 2)
    dbg_load = [f"buffer_load_dword v97, v96, {sr(S_DBG,4)}, 0 offen sc1"]
    for m in range(8):
        if m == 4: stamp(A, 29)
        A(f"s_waitcnt vmcnt({8 if m < 7 else 0}) lgkmcnt(0)")
        if m == 4: stamp(A, 30)
        if m == 5:
            A.many(ALL1(97))
            A("s_cbranch_scc1 LL_POLL0_OK")
            spin(A, "LL_POLL0", dbg_load, ALL1(97))
        A("s_barrier")
        if m == 3: stamp(A, 28)
        if m == 4: stamp(A, 31)
        if m == 7: break
        work = sum((norm(m+1, i) for i in range(4)), [])
        isw = lambda w: w.startswith("ds_")
        if OPT["exp"] == "wlast": work = [w for w in work if not isw(w)] + [w for w in work if isw(w)]
        if OPT["exp"] == "wfirst":
            if m == 0: A.many(work)
            else: A.many([w for w in work if isw(w)])
            work = [w for w in sum((norm(m+2, i) for i in range(4)), []) if not isw(w)] if m < 6 else []
        if OPT["exp"].startswith("grp"):
            dg = dma_groups(0) if m < 6 else []
            split = {"grp": [3,2,2,2,0], "grp2": [0,3,3,3,0], "grp3": [2,3,2,2,0], "grp4": [4,3,2,0,0]}[OPT["exp"]]
            for _ in range(split[0]):
                if dg: A.many(dg.pop(0))
            for i in range(4):
                nn = norm(m+1, i)
                A.many(nn[:-1])
                for _ in range(split[i+1]):
                    if dg: A.many(dg.pop(0))
                A(nn[-1])
            work = None
        if OPT["exp"] == "nonorm": work = []
        if OPT["exp"] == "nowrite": work = [w for w in work if not w.startswith("ds_")]
        if OPT["exp"] == "dmalast":
            A.many(work); work = []
        if OPT["exp"] == "dmafirst":
            mix(A, [], dma_groups(0) if m < 6 else [], 1); A.many(work); continue
        if work is not None: mix(A, work, dma_groups(0) if m < 6 else [], OPT["dmaevery"])
        if m in OPT["wpf"]: A.many(W_PREFETCH)
        if m == 3:
            A(f"v_min_u32 v96, {NZ-1}, v{L}")
            A("v_lshlrev_b32 v96, 2, v96")
            A.many(dbg_load)
    A("s_mov_b32 s23, s79")
    side_setup(A)
    A("s_call_b64 s[76:77], L_ATTINIT")
    late_init(A)
    A("s_barrier")
    stamp(A, 3)
    A("s_cmp_eq_u32 s23, 0")
    A("s_cbranch_scc1 LL_S7")
    side_loads(A, 0)
    side_loads(A, 1)
    A.lab("LL_S7")
    A("s_cmp_lg_u32 s60, 0")
    A("s_cbranch_scc1 LL_WAITGO")
    A("v_mov_b32 v96, 0")
    A("s_bfe_u32 s64, s2, 0x10004")
    A("s_lshl_b32 s64, s64, 5")
    A("s_and_b32 s65, s2, 15")
    A("s_add_u32 s64, s64, s65")
    A("s_bfe_u32 s65, s2, 0x10005")
    A("s_lshl_b32 s65, s65, 4")
    A("s_add_u32 s64, s64, s65")
    A("s_lshl_b32 s64, s64, 7")
    A(f"s_add_u32 s64, s64, {QCNT:#x}")
    spin3(A, "LL_POLL", [0, 1, 2], 96, "s64", 48)
    A(f"v_mov_b32 v96, {SW}")
    A("v_mov_b32 v97, 1")
    A("ds_write_b32 v96, v97 offset:4")
    A("s_branch LL_GO")
    A.lab("LL_WAITGO")
    A(f"v_mov_b32 v96, {SW}")
    A(f"s_mov_b32 s70, {SPIN_MAX*16}")
    A.lab("LL_WG1")
    A("ds_read_b32 v97, v96 offset:4")
    A("s_waitcnt lgkmcnt(0)")
    A("v_readfirstlane_b32 s65, v97")
    A("s_cmp_lg_u32 s65, 0")
    A("s_cbranch_scc1 LL_GO")
    A("s_sleep 1")
    A("s_sub_u32 s70, s70, 1")
    A("s_cmp_lg_u32 s70, 0")
    A("s_cbranch_scc1 LL_WG1")
    A.lab("LL_GO")
    stamp(A, 4)
    A("s_and_b32 s64, s2, 31")
    A("s_lshl_b32 s64, s64, 16")
    A("s_lshl_b32 s65, s60, 11")
    A("s_add_u32 s64, s64, s65")
    A("s_lshr_b32 s66, s2, 5")
    A("s_lshl_b32 s66, s66, 13")
    A("s_add_u32 s66, s66, s64")
    A(f"s_add_u32 m0, s65, {QOFF}")
    A(f"s_add_u32 s67, s64, {KF:#x}")
    A(f"buffer_load_dwordx4 v95, {sr(S_WS,4)}, s66 offen sc1 lds")
    A(f"buffer_load_dwordx4 v95, {sr(S_WS,4)}, s66 offen offset:1024 sc1 lds")
    A(f"s_add_u32 s68, s64, {VF:#x}")
    for c in range(2):
        A(f"s_add_u32 m0, s65, {c*8192}")
        A("s_nop 0")
        A(f"buffer_load_dwordx4 v95, {sr(S_WS,4)}, s67 offen sc1 lds")
        A(f"buffer_load_dwordx4 v95, {sr(S_WS,4)}, s67 offen offset:1024 sc1 lds")
        A(f"s_add_u32 m0, s65, {65536 + c*8192}")
        A("s_add_u32 s67, s67, 8192")
        A(f"buffer_load_dwordx4 v95, {sr(S_WS,4)}, s68 offen sc1 lds")
        A(f"buffer_load_dwordx4 v95, {sr(S_WS,4)}, s68 offen offset:1024 sc1 lds")
        A("s_add_u32 s68, s68, 8192")
    A("s_cmp_eq_u32 s23, 0")
    A("s_cbranch_scc1 L_P0")
    A("s_waitcnt vmcnt(10)")
    side_combine(A)


def down_loads(A, slot):
    A(f"buffer_load_dwordx4 {vr(DH[slot],4)}, v{L16}, {sr(S_T1,4)}, s84 offen sc1")
    A(f"buffer_load_dwordx4 {vr(DW_[slot],4)}, v{L16}, {sr(S_T2,4)}, s85 offen sc1")
    A(f"buffer_load_dwordx4 {vr(DW_[slot]+4,4)}, v{L16}, {sr(S_T2,4)}, s85 offen offset:1024 sc1")
    A("s_add_u32 s84, s84, 1024")
    A("s_add_u32 s85, s85, 2048")

def kv_piece(k):
    if k & 1: return ["s_add_u32 m0, s95, 65536", "s_add_u32 s94, s94, 8192",
                      f"buffer_load_dwordx4 v{L16}, {sr(S_WS,4)}, s60 offen sc1 lds", "s_add_u32 s95, s95, 8192"]
    return ["s_mov_b32 m0, s95", f"s_add_u32 s60, s94, {VF-KF:#x}", f"buffer_load_dwordx4 v{L16}, {sr(S_WS,4)}, s94 offen sc1 lds"]
HPOLL = lambda: apoll(101, 100, "s75", 15)

def attn_body(A, mode):
    hs = 0
    for t in range(8):
        p = t & 1
        down = mode in "BC" or (mode == "2" and t >= 4)
        cur, prv = S_[p], S_[1-p]
        ex = lambda a, b: [A(f"v_exp_f32 v{cur+i}, v{cur+i}") for i in range(a, b)]
        if p == 0: A(f"s_setprio {3 - (t >> 1)}")
        A("s_waitcnt lgkmcnt(3)")
        ex(0, 2)
        if not (mode == "0" and t == 0):
            A(f"v_smfmac_f32_32x32x32_bf16 {vr(O_,16)}, {vr(V1[1-p],4)}, {vr(prv+8,8)}, v{IDX}")
        if mode == "0" and t < 6: A.many(kv_piece(2*t))
        ex(2, 6 if down else 7)
        A(f"v_mfma_f32_32x32x16_bf16 {vr(prv,16)}, {vr(KB[1-p],4)}, {vr(Q_,4)}, {vr(C_,16)}")
        A(f"ds_read_b128 {vr(KB[1-p],4)}, v{KA} offset:{(t+3)*1024}")
        if mode == "0" and t < 6: A.many(kv_piece(2*t+1))
        ex(6 if down else 7, 10 if down else 12)
        A(f"v_smfmac_f32_32x32x32_bf16 {vr(O_,16)}, {vr(V0[p],4)}, {vr(cur,8)}, v{IDX}")
        A("s_mov_b64 exec, s[80:81]")
        A(f"ds_read_b128 {vr(V0[p],4)}, v{VA} offset:{(t+2)*1024}")
        A(f"ds_read_b128 {vr(V1[1-p],4)}, v{VA} offset:{(t+1)*1024+512}")
        A("s_mov_b64 exec, -1")
        if mode == "0":
            for _ in range(OPT["hplan"][t]):
                A(f"buffer_store_dwordx4 {vr(HREG+4*hs,4)}, v249, {sr(S_WS,4)}, s{HOFF[hs]} offen sc1"); hs += 1
        if mode == "2" and t < 4: down_loads(A, (t + 2) & 3)
        if mode == "C":
            if t == 0: A(f"buffer_load_dwordx4 {vr(XV,4)}, v252, {sr(S_X,4)}, s88 offen")
            for i in range(2):
                A(f"buffer_load_dwordx4 {vr(WO+8*t+4*i,4)}, v{L16}, {sr(S_WS,4)}, s90 offen offset:{(2*p+i)*1024} sc1")
            if p: A("s_add_u32 s90, s90, 4096")
        if down:
            ex(10, 14)
            sl = t >> 1
            if p == 0: A(f"s_waitcnt vmcnt({12 + sl if mode == 'C' else 9})")
            cc = "0" if (mode == "2" and t < 6) else vr(DACC+16*p,16)
            A(f"v_mfma_f32_32x32x16_bf16 {vr(DACC+16*p,16)}, {vr(DW_[sl]+4*p,4)}, {vr(DH[sl],4)}, {cc}")
            if mode != "C" and p == 1: down_loads(A, sl)
            ex(14, 16)
        else:
            ex(12, 16)
        if mode == "1" and t == OPT["sigt"]:
            A("s_waitcnt vmcnt(0)")
            A("s_barrier")
            A("s_cmp_lg_u32 s14, 0")
            A("s_cbranch_scc1 L_NOSIG")
            A("s_mov_b64 exec, 0xff")
            A("v_mov_b32 v97, 1")
            A(f"v_lshlrev_b32 v96, 10, v{L}")
            A(f"buffer_atomic_add v97, v96, {sr(S_WS,4)}, s91 offen")
            A("s_mov_b64 exec, -1")
            A.lab("L_NOSIG")
        if mode == "1" and t == 6:
            A("s_cmp_lg_u32 s22, 0")
            A("s_cbranch_scc1 L_NOPQ")
            A(f"v_lshlrev_b32 v100, 7, v{L}")
            A.many(HPOLL())
            A.lab("L_NOPQ")
        if mode == "1" and t == 7:
            stamp(A, 8)
            A("s_cmp_lg_u32 s22, 0")
            A("s_cbranch_scc1 L_HPOLL_OK")
            spin(A, "L_HPOLL", HPOLL(), acmp(101, 40, 15), first_loaded=True)
            A("s_barrier")
            stamp(A, 9)
    if mode == "0": assert hs == 9
    if mode != "C":
        A(f"v_add_u32 v{KA}, 8192, v{KA}")
        A(f"v_add_u32 v{VA}, 8192, v{VA}")
        A("s_add_u32 s83, s83, 1")

def late_init(A):
    A(f"v_lshlrev_b32 v{L16}, 4, v{L}")
    A(f"v_mov_b32 v{IDX}, 0xdddd")
    A(f"v_and_b32 v98, 15, v{L}")
    A("v_lshlrev_b32 v98, 4, v98")
    A(f"v_lshrrev_b32 v99, 5, v{L}")
    A("v_lshl_or_b32 v98, v99, 8, v98")
    A("v_add_u32 v98, 65536, v98")
    A(f"v_add_u32 v99, s15, v{L16}")
    A(f"v_add_u32 v102, s16, v{L16}")
    A(f"v_add_u32 v103, s17, v{L16}")
    A(f"v_mov_b32 v{KA}, v{L16}")
    A(f"v_mov_b32 v{VA}, v98")
    A("v_mov_b32 v100, 0xff800000")
    A("v_mov_b32 v101, 0xff800000")

def gen_attinit(A):
    A.lab("L_ATTINIT")
    for r in range(O_, O_+32): A(f"v_mov_b32 v{r}, 0")
    A("s_mov_b32 s80, 0x00110000")
    A("s_mov_b32 s81, 0x00110000")
    A("s_mov_b64 exec, s[80:81]")
    for r in range(V0[0], V0[0]+16): A(f"v_mov_b32 v{r}, 0x3f803f80")
    A("s_mov_b64 exec, -1")
    A("s_mov_b32 s80, 0xffff")
    A("s_mov_b32 s81, 0xffff")
    A("s_mov_b32 s78, 1")
    A(f"s_mov_b32 s79, {f2u(-OPT['bias']):#x}")
    A("s_mov_b32 s82, 1")
    A(f"v_lshrrev_b32 v251, 5, v{L}")
    A(f"v_and_b32 v252, 31, v{L}")
    A("v_lshlrev_b32 v252, 10, v252")
    A("v_lshl_add_u32 v252, v251, 4, v252")
    A("s_lshl_b32 s15, s22, 10")
    A(f"s_add_u32 s15, s15, {QOFF}")
    A("s_and_b32 s91, s20, 3")
    A("s_lshl_b32 s91, s91, 7")
    A(f"s_add_u32 s91, s91, {QFLAG+4*128:#x}")
    A("s_cmp_lt_u32 s21, 6")
    A("s_cselect_b32 s14, 1, s22")
    A("s_and_b32 s75, s2, 7")
    A("s_lshl_b32 s75, s75, 10")
    A(f"s_add_u32 s75, s75, {QFLAG+4*128:#x}")
    A("s_lshr_b32 s61, s2, 5")
    A("s_lshl_b32 s61, s61, 3")
    A("s_add_u32 s61, s61, s22")
    A("s_lshl_b32 s61, s61, 5")
    A("s_and_b32 s62, s2, 31")
    A("s_add_u32 s61, s61, s62")
    A("s_lshr_b32 s12, s61, 3")
    A("s_lshl_b32 s12, s12, 7")
    A(f"s_add_u32 s12, s12, {OFLAG:#x}")
    A("s_lshl_b32 s11, s61, 10")
    A(f"s_add_u32 s11, s11, {OF:#x}")
    A("s_and_b32 s94, s2, 31")
    A("s_lshl_b32 s94, s94, 16")
    A("s_lshl_b32 s95, s22, 10")
    A("s_add_u32 s95, s95, 16384")
    A("s_add_u32 s94, s94, s95")
    A(f"s_add_u32 s94, s94, {KF:#x}")
    A("s_and_b32 s67, s2, 7")
    A("s_bfe_u32 s61, s2, 0x20003")
    A("s_lshl_b32 s67, s67, 2")
    A("s_add_u32 s67, s67, s61")
    A("s_lshr_b32 s61, s2, 5")
    A("s_and_b32 s62, s22, 1")
    A("s_lshl_b32 s67, s67, 1")
    A("s_add_u32 s67, s67, s62")
    A("s_lshr_b32 s62, s22, 1")
    A("s_mul_i32 s63, s62, 22")
    A("s_cmp_eq_u32 s62, 3")
    A("s_cselect_b32 s63, 65, s63")
    A("s_cmp_lt_u32 s62, 2")
    A("s_cselect_b32 s64, 22, 21")
    A(f"s_mul_i32 s65, s67, {NFU}")
    A("s_add_u32 s65, s65, s63")
    A("s_lshl_b32 s65, s65, 10")
    A(f"s_add_u32 s65, s65, {HF:#x}")
    A(f"s_add_u32 s{S_T1}, s18, s65")
    A(f"s_addc_u32 s{S_T1+1}, s19, 0")
    A(f"s_lshl_b32 s{S_T1+2}, s64, 10")
    A(f"s_mov_b32 s{S_T1+3}, 0x00020000")
    A(f"s_mul_i32 s65, s61, {NFU}")
    A("s_add_u32 s65, s65, s63")
    A("s_lshl_b32 s65, s65, 11")
    A(f"s_add_u32 s65, s65, {WDF:#x}")
    A(f"s_add_u32 s{S_T2}, s18, s65")
    A(f"s_addc_u32 s{S_T2+1}, s19, 0")
    A(f"s_lshl_b32 s{S_T2+2}, s64, 11")
    A(f"s_mov_b32 s{S_T2+3}, 0x00020000")
    A("s_mov_b32 s84, 0")
    A("s_mov_b32 s85, 0")
    A("s_lshl_b32 s90, s61, 16")
    A("s_lshl_b32 s66, s62, 14")
    A("s_add_u32 s90, s90, s66")
    A(f"s_add_u32 s90, s90, {WOF:#x}")
    A("s_lshl_b32 s87, s67, 15")
    A("s_lshl_b32 s66, s62, 13")
    A("s_add_u32 s87, s87, s66")
    A(f"s_add_u32 s87, s87, {OF:#x}")
    A("s_lshl_b32 s88, s67, 15")
    A("s_lshl_b32 s66, s61, 7")
    A("s_add_u32 s88, s88, s66")
    A("s_lshl_b32 s66, s62, 5")
    A("s_add_u32 s88, s88, s66")
    A(f"s_sub_u32 s13, s87, {OF:#x}")
    A("s_lshr_b32 s13, s13, 6")
    A(f"s_add_u32 s13, s13, {OFLAG:#x}")
    red_addr(A)
    A("s_setpc_b64 s[76:77]")

def gen_attn(A):
    A("s_waitcnt lgkmcnt(0)")
    late_init(A)
    A.lab("L_P0")
    stamp(A, 5)
    A("s_waitcnt vmcnt(0)")
    A("s_barrier")
    stamp(A, 6)
    A(f"ds_read_b128 {vr(Q_,4)}, v99")
    A.lab("L_MAXLOOP")
    A(f"ds_read_b128 {vr(KB[0],4)}, v{KA}")
    A(f"ds_read_b128 {vr(KB[1],4)}, v{KA} offset:1024")
    A("s_mov_b64 exec, s[80:81]")
    A(f"ds_read_b128 {vr(V0[0],4)}, v{VA}")
    A("s_mov_b64 exec, -1")
    A("s_waitcnt lgkmcnt(2)")
    A(f"v_mfma_f32_32x32x16_bf16 {vr(S_[0],16)}, {vr(KB[0],4)}, {vr(Q_,4)}, 0")
    A("s_waitcnt lgkmcnt(1)")
    A(f"v_mfma_f32_32x32x16_bf16 {vr(C_,16)}, {vr(KB[1],4)}, {vr(Q_,4)}, 0")
    A(f"v_subrev_u32 v{KA}, 2048, v{KA}")
    A("s_nop 9")
    for i in range(8): A(f"v_max3_f32 v100, v{2*i}, v{2*i+1}, v100")
    for i in range(8): A(f"v_max3_f32 v101, v{C_+2*i}, v{C_+2*i+1}, v101")
    A("s_sub_u32 s78, s78, 1")
    A("s_cmp_lg_u32 s78, 0")
    A("s_cbranch_scc1 L_MAXLOOP")
    A("v_max_f32 v100, v100, v101")
    A(f"v_mov_b32 v{KA}, v{L16}")
    A("v_mov_b32 v101, v100")
    A("s_nop 1")
    A("v_permlane32_swap_b32 v100, v101")
    A("s_nop 1")
    A("v_max_f32 v100, v100, v101")
    for r in range(16): A(f"v_sub_f32 v{C_+r}, s79, v100")
    A("s_nop 1")
    A(f"v_mfma_f32_32x32x16_bf16 {vr(S_[0],16)}, {vr(KB[0],4)}, {vr(Q_,4)}, {vr(C_,16)}")
    A(f"ds_read_b128 {vr(KB[0],4)}, v{KA} offset:2048")
    A("s_mov_b64 exec, s[80:81]")
    A(f"ds_read_b128 {vr(V0[1],4)}, v{VA} offset:1024")
    A(f"ds_read_b128 {vr(V1[0],4)}, v{VA} offset:512")
    A("s_mov_b64 exec, -1")
    A("s_mov_b32 s83, 0")
    stamp(A, 7)
    A("s_nop 4")
    A("s_cmp_eq_u32 s82, 0")
    A("s_cbranch_scc1 L_LOOPP")
    attn_body(A, "0")
    attn_body(A, "1")
    attn_body(A, "2")
    A.lab("L_LOOPB")
    attn_body(A, "B")
    if OPT["prof"] and OPT["bstamp"]:
        A("s_memtime s[96:97]")
        A("s_add_u32 m0, s83, 17")
        A("s_waitcnt lgkmcnt(0)")
        A("v_writelane_b32 v255, s96, m0")
    A("s_cmp_lt_u32 s83, 7")
    A("s_cbranch_scc1 L_LOOPB")
    attn_body(A, "C")
    A.lab("L_ATT_DONE")
    A("s_waitcnt lgkmcnt(0)")
    stamp(A, 10)
    A(f"v_smfmac_f32_32x32x32_bf16 {vr(O_,16)}, {vr(V1[1],4)}, {vr(S_[1]+8,8)}, v{IDX}")
    A("s_setprio 3")
    A(f"v_mov_b32 v96, {f2u(2.0**90):#x}")
    A(f"v_mov_b32 v97, {f2u(2.0**120):#x}")
    A(f"v_mov_b32 v99, {f2u(2.0**-100):#x}")
    A("s_nop 7")
    A(f"v_rcp_f32 v101, v{O_+8}")
    A("s_nop 0")
    A(f"v_mul_f32 v101, {f2u(2.0**-VSH):#x}, v101")
    for r in range(8): A(f"v_mul_f32 v{r}, v{O_+r}, v101")
    for i in range(4): A(f"v_cvt_pk_bf16_f32 v{8+i}, v{2*i}, v{2*i+1}")
    A(f"buffer_store_dwordx4 {vr(8,4)}, v{L16}, {sr(S_WS,4)}, s11 offen sc1")
    A("s_cmp_eq_u32 s82, 0")
    A("s_cbranch_scc1 L_FIN")
    A(f"v_add_f32 v100, abs(v{O_}), abs(v{O_+1})")
    for r in range(2, 8): A(f"v_add_f32 v100, v100, abs(v{O_+r})")
    A(f"v_cmp_nlt_f32 s[62:63], v{O_+8}, v96")
    A("v_cmp_nlt_f32 s[64:65], v100, v97")
    A("v_cmp_lt_f32 vcc, v100, v99")
    A("s_or_b64 s[62:63], s[62:63], s[64:65]")
    A("s_or_b64 s[62:63], s[62:63], vcc")
    A("s_cmp_eq_u64 s[62:63], 0")
    if not OPT["force_fallback"]: A("s_cbranch_scc1 L_FIN")
    A("s_mov_b32 s78, 32")
    A("s_mov_b32 s79, 0")
    A("s_mov_b32 s82, 0")
    A(f"v_mov_b32 v{VA}, v98")
    A("v_mov_b32 v100, 0xff800000")
    A("v_mov_b32 v101, 0xff800000")
    for r in range(16): A(f"v_mov_b32 v{O_+r}, 0")
    for r in range(8, 16): A(f"v_mov_b32 v{S_[1]+r}, 0")
    A(f"v_add_u32 v{KA}, {62*1024}, v{L16}")
    A("s_waitcnt vmcnt(0)")
    A("s_branch L_MAXLOOP")
    A.lab("L_FIN")

def red_addr(A):
    A("s_and_b32 s62, s22, 1")
    A("s_lshr_b32 s63, s22, 1")
    A("s_lshl_b32 s62, s62, 15")
    A("s_lshl_b32 s64, s63, 11")
    A("s_add_u32 s64, s64, s62")
    A("s_mov_b32 s16, s64")
    A("s_lshl_b32 s64, s63, 13")
    A("s_add_u32 s64, s64, s62")
    A("s_mov_b32 s17, s64")
def red_write(A, acc):
    for q in range(4):
        for hf in range(2):
            A(f"ds_write_b128 v102, {vr(acc+8*q+4*hf,4)} offset:{q*8192 + hf*1024}")
def red_read(A, dst):
    for s in range(4):
        for hf in range(2):
            A(f"ds_read_b128 {vr(dst+8*s+4*hf,4)}, v103 offset:{s*2048 + hf*1024}")
def red_sum(A, dst):
    for r in range(8):
        A(f"v_add_f32 v{dst+r}, v{dst+r}, v{dst+8+r}")
        A(f"v_add_f32 v{dst+16+r}, v{dst+16+r}, v{dst+24+r}")
    for r in range(8): A(f"v_add_f32 v{dst+r}, v{dst+r}, v{dst+16+r}")
def round_bf16(A, regs, tmp):
    for i in range(4): A(f"v_cvt_pk_bf16_f32 v{tmp+i}, v{regs+2*i}, v{regs+2*i+1}")
    for i in range(4):
        A(f"v_lshlrev_b32 v{regs+2*i}, 16, v{tmp+i}")
        A(f"v_and_b32 v{regs+2*i+1}, 0xffff0000, v{tmp+i}")

def gen_final(A):
    A("v_mov_b32 v96, 1")
    A("v_mov_b32 v97, 0")
    A("s_waitcnt vmcnt(0)")
    A("s_mov_b64 exec, 1")
    A(f"buffer_atomic_add v96, v97, {sr(S_WS,4)}, s12 offen")
    A("s_mov_b64 exec, -1")
    stamp(A, 11)
    A.many(apoll(32, 97, "s13", 1))
    A("s_barrier")
    red_write(A, DACC)
    A("s_waitcnt lgkmcnt(0)")
    A("s_barrier")
    G = DACC; T = 136
    red_read(A, G)
    spin3(A, "L_OPOLL", [32, 33, 34], 97, "s13", 8, primed=1)
    stamp(A, 12)
    for s in range(8):
        A(f"buffer_load_dwordx4 {vr(4*s,4)}, v{L16}, {sr(S_WS,4)}, s87 offen offset:{(s&3)*1024} sc1")
        if s == 3: A("s_add_u32 s87, s87, 4096")
    A("v_add_u32 v102, 65536, v102")
    A("v_add_u32 v103, 65536, v103")
    for i in range(4):
        A(f"v_lshlrev_b32 v{144+2*i}, 16, v{XV+i}")
        A(f"v_and_b32 v{145+2*i}, 0xffff0000, v{XV+i}")
    A("s_waitcnt lgkmcnt(0)")
    B = Asm()
    red_sum(B, G)
    round_bf16(B, G, T)
    for r in range(8): B(f"v_mul_f32 v{T+r}, {f2u(-LOG2E):#x}, v{G+r}")
    for r in range(8): B(f"v_exp_f32 v{T+r}, v{T+r}")
    for r in range(8): B(f"v_add_f32 v{T+r}, 1.0, v{T+r}")
    for r in range(8): B(f"v_rcp_f32 v{T+r}, v{T+r}")
    for r in range(8): B(f"v_mul_f32 v{G+r}, v{G+r}, v{T+r}")
    round_bf16(B, G, T)
    gw = [x.strip() for x in B.l]
    A.many(gw[:OPT["gpre"]]); gw = gw[OPT["gpre"]:]
    ACC = 104
    for s in range(8):
        A(f"s_waitcnt vmcnt({7-s})")
        for nt in range(2):
            c = "0" if s == 0 else vr(ACC+16*nt,16)
            A(f"v_mfma_f32_32x32x16_bf16 {vr(ACC+16*nt,16)}, {vr(WO+8*s+4*nt,4)}, {vr(4*s,4)}, {c}")
            A.many(gw[:4]); gw = gw[4:]
    A.many(gw)
    stamp(A, 13)
    A("s_nop 11")
    red_write(A, ACC)
    A("s_waitcnt lgkmcnt(0)")
    A("s_barrier")
    red_read(A, 0)
    A("s_waitcnt lgkmcnt(0)")
    red_sum(A, 0)
    round_bf16(A, 0, T)
    for r in range(8): A(f"v_mul_f32 v{r}, v{r}, v{G+r}")
    for i in range(4): A(f"v_cvt_pk_bf16_f32 v{T+i}, v{2*i}, v{2*i+1}")
    A("s_nop 1")
    A(f"v_permlane32_swap_b32 v{T}, v{T+2}")
    A(f"v_permlane32_swap_b32 v{T+1}, v{T+3}")
    A("s_nop 1")
    for i in range(4):
        A(f"v_lshlrev_b32 v{2*i}, 16, v{T+i}")
        A(f"v_and_b32 v{2*i+1}, 0xffff0000, v{T+i}")
    for r in range(8): A(f"v_add_f32 v{r}, v{r}, v{144+r}")
    for i in range(4): A(f"v_cvt_pk_bf16_f32 v{T+i}, v{2*i}, v{2*i+1}")
    A(f"buffer_store_dwordx4 {vr(T,4)}, v252, {sr(S_OUT,4)}, s88 offen")
    if OPT["fixdur"]:
        A.lab("L_FIXDUR")
        A("s_memrealtime s[96:97]")
        A("s_waitcnt lgkmcnt(0)")
        A("s_sub_u32 s96, s96, s100")
        A(f"s_cmp_lt_u32 s96, {OPT['fixdur']}")
        A("s_cbranch_scc1 L_FIXDUR")
    if OPT["prof"]:
        stamp(A, 14)
        A(f"s_add_u32 s{S_T1}, s18, {PROF_OFF:#x}")
        A(f"s_addc_u32 s{S_T1+1}, s19, 0")
        A(f"s_mov_b32 s{S_T1+2}, 0x100000")
        A(f"s_mov_b32 s{S_T1+3}, 0x00020000")
        A("s_lshl_b32 s60, s2, 3")
        A("s_add_u32 s60, s60, s22")
        A("s_lshl_b32 s60, s60, 8")
        A(f"v_lshlrev_b32 v0, 2, v{L}")
        A(f"buffer_store_dword v255, v0, {sr(S_T1,4)}, s60 offen")
        if OPT["dbgout"]:
            A("s_cmp_lg_u32 s2, 200")
            A("s_cbranch_scc1 L_END")
            A("s_cmp_lg_u32 s22, 0")
            A("s_cbranch_scc1 L_END")
            A("v_readlane_b32 s61, v255, 32")
            A("v_readlane_b32 s63, v255, 0")
            A("v_mov_b32 v1, 0")
            A("s_mov_b64 exec, 1")
            for n, i in enumerate((2, 3, 4, 6, 9, 10, 12, 14)):
                A(f"v_readlane_b32 s62, v255, {32+i}")
                A("s_sub_u32 s62, s62, s61")
                A("v_mov_b32 v2, s62")
                A(f"buffer_store_dword v2, v1, {sr(S_DBG,4)}, 0 offen offset:{32+4*n}")
                A("s_nop 1")
            A("v_readlane_b32 s62, v255, 14")
            A("s_sub_u32 s62, s62, s63")
            A("v_mov_b32 v2, s62")
            A(f"buffer_store_dword v2, v1, {sr(S_DBG,4)}, 0 offen offset:28")

def gen_hooks(A):
    gen_attinit(A)
    A.lab("L_LOOPP")
    attn_body(A, "P")
    A("s_cmp_lt_u32 s83, 8")
    A("s_cbranch_scc1 L_LOOPP")
    A("s_branch L_ATT_DONE")
    A.lab("L_CODE_END")

def main(out):
    hdr = open(f"cdna_kernels/{NAME}.s.ref").read().split("\n")
    head = [l for l in hdr if l.startswith(";") and "@launch" not in l]
    head += [f"; @launch grid=(256,1,1) block=(512,1,1) lds={LDS_BYTES}"]
    A = Asm()
    d = gen(A)
    open(out, "w").write("\n".join(head) + '\n.amdgcn_target "amdgcn-amd-amdhsa--gfx950"\n' + A.text() + d)

if __name__ == "__main__":
    for a in sys.argv[2:]:
        k, _, v = a.partition("=")
        OPT[k] = eval(v) if v else True
    main(sys.argv[1] if len(sys.argv) > 1 else f"cdna_kernels/{NAME}.s")
```

```python
import sys, struct

NAME = "recurrent_scan__softmax_full_mha__glu_gated_geglu__prompt"
MB = 1 << 20
QF, KF, VF, OF, WOF, WDF, HF, FLAGS = 0, 2*MB, 4*MB, 6*MB, 8*MB, 9*MB, 11*MB, 17*MB
WS_BYTES = 18*MB
NFU = 86
LOG2E = 1.4426950408889634
def f2u(x): return struct.unpack("<I", struct.pack("<f", x))[0]

OPT = dict(prof=False, bias=98.0, force_fallback=False, sleep=2, barpos=1, itstamp=False, hplan=[1,1,1,1,1,1,2,1], sigt=1, psleep=3, gpre=24, wearly=False, peel=False, spf=False, prefetch=False, dmaevery=12, dbgout=False, fixdur=0, codepf=True, noload=False, bstamp=False, pace=None, wpf=[], exp='', w64=False, lprio=0, enc=-1, encrole='', cmap=True, prio='ramp2')
PROF_OFF = 24*MB
SPIN_MAX = 20000
VSH = 32

class Asm:
    def __init__(self): self.l = []
    def __call__(self, s): self.l.append(s if s.endswith(":") else "    " + s)
    def many(self, ss):
        for s in ss: self(s)
    def lab(self, s): self.l.append(s + ":")
    def raw(self, s): self.l.append(s)
    def text(self): return "\n".join(self.l) + "\n"
def vr(a, n): return f"v[{a}:{a+n-1}]"
def sr(a, n): return f"s[{a}:{a+n-1}]"
def srd(A, d, base, nbytes):
    A(f"s_mov_b32 s{d}, s{base}")
    A(f"s_mov_b32 s{d+1}, s{base+1}")
    A(f"s_mov_b32 s{d+2}, {nbytes:#x}")
    A(f"s_mov_b32 s{d+3}, 0x00020000")
def csel(A, d, a, b):
    A(f"s_mov_b32 s{d}, {b:#x}")
    A(f"s_cselect_b32 s{d}, {a:#x}, s{d}")
ROLE = [""]
def stamp(A, i):
    if OPT["enc"] == i and (not OPT["encrole"] or ROLE[0] in OPT["encrole"]):
        A("s_memrealtime s[100:101]")
        A("s_waitcnt lgkmcnt(0)")
    if not OPT["prof"]: return
    A("s_memtime s[96:97]")
    A("s_memrealtime s[98:99]")
    A("s_waitcnt lgkmcnt(0)")
    A(f"v_writelane_b32 v255, s96, {i}")
    A(f"v_writelane_b32 v255, s98, {32+i}")

WR = 32768
WSL = 18560
UPOFF = 9344
QOFF = 135168
SCRATCH = 147456
SW = 163584
LDS_BYTES = 163840
OFLAG = FLAGS
QFLAG = OFLAG + 256*128
QCNT = QFLAG + 64*128
NZ = 6
S_X, S_W, S_WS, S_DBG, S_OUT, S_T1, S_T2 = 24, 28, 32, 36, 40, 44, 48
L = 254
S_ = [0, 16]; C_ = 32; DACC = 48; Q_ = 80; KB = [84, 88]; O_ = 144; V0 = [160, 164]; V1 = [168, 172]
IDX, KA, VA, L16 = 92, 93, 94, 95
DH = [104, 116, 128, 140]; DW_ = [108, 120, 132, 176]
WO = 184; XV = 248

def spin(A, tag, loads, cmp_lines, first_loaded=False):
    A(f"s_mov_b32 s70, {SPIN_MAX}")
    if not first_loaded: A.many(loads)
    A.lab(tag)
    A("s_waitcnt vmcnt(0)")
    A.many(cmp_lines)
    A(f"s_cbranch_scc1 {tag}_OK")
    A(f"s_sleep {OPT['sleep']}")
    A.many(loads)
    A("s_sub_u32 s70, s70, 1")
    A("s_cmp_lg_u32 s70, 0")
    A(f"s_cbranch_scc1 {tag}")
    A.lab(tag + "_OK")
def spin3(A, tag, regs, voff, soff, n, primed=0):
    A(f"s_mov_b32 s70, {SPIN_MAX}")
    for r in regs[primed:2]:
        A.many(apoll(r, voff, soff, 1))
        A(f"s_sleep {OPT['psleep']}")
    A.lab(tag)
    for k in range(3):
        A.many(apoll(regs[(k+2) % 3], voff, soff, 1))
        A("s_waitcnt vmcnt(2)")
        A.many(acmp(regs[k], n, 1))
        A(f"s_cbranch_scc1 {tag}_OK")
        A(f"s_sleep {OPT['psleep']}")
    A("s_sub_u32 s70, s70, 1")
    A("s_cmp_lg_u32 s70, 0")
    A(f"s_cbranch_scc1 {tag}")
    A.lab(tag + "_OK")
def apoll(dst, voff, soff, mask):
    return [f"v_mov_b32 v{dst}, 0", f"s_mov_b64 exec, {mask}",
            f"buffer_atomic_add v{dst}, v{voff}, {sr(S_WS,4)}, {soff} offen sc0", "s_mov_b64 exec, -1"]
def acmp(v, n, mask):
    return [f"v_cmp_eq_u32 vcc, {n}, v{v}", f"s_cmp_eq_u64 vcc, {mask}"]
ALL1 = lambda v: [f"v_cmp_ne_u32 vcc, 1, v{v}", "s_cmp_eq_u64 vcc, 0"]

def last_wave_signals(A, tag, off, last):
    A(f"v_mov_b32 v96, {SW}")
    A("v_mov_b32 v97, 1")
    A("s_mov_b64 exec, 1")
    A(f"ds_add_rtn_u32 v100, v96, v97 offset:{off}")
    A("s_waitcnt lgkmcnt(0)")
    A("s_mov_b64 exec, -1")
    A("v_readfirstlane_b32 s60, v100")
    A(f"s_cmp_lg_u32 s60, {last}")
    A(f"s_cbranch_scc1 {tag}")
    A("s_mov_b32 exec_hi, 0")
    A(f"v_lshlrev_b32 v96, 7, v{L}")
    A(f"buffer_atomic_add v97, v96, {sr(S_WS,4)}, s91 offen")
    A("s_mov_b64 exec, -1")
    A.lab(tag)

def gen(A):
    name = NAME + "_kernel"
    A.raw(".text"); A.raw(f".globl {name}"); A.raw(".p2align 8"); A.raw(f".type {name},@function")
    A.lab(name)
    A("s_cmp_ge_u32 s2, 256")
    A("s_cbranch_scc1 L_END")
    if OPT["fixdur"]: A("s_memrealtime s[100:101]")
    A("s_load_dwordx4 s[4:7], s[0:1], 0")
    A("s_load_dwordx2 s[8:9], s[0:1], 16")
    A("s_load_dwordx4 s[12:15], s[0:1], 32")
    A("s_load_dwordx4 s[52:55], s[0:1], 48")
    A("s_load_dwordx4 s[56:59], s[0:1], 64")
    if OPT["prof"]: A("v_mov_b32 v255, 0")
    stamp(A, 0)
    A("s_getpc_b64 s[60:61]")
    A.lab("L_PC")
    A("s_lshr_b32 s23, s2, 3")
    A("s_lshl_b32 s62, s23, 11")
    A("v_lshl_add_u32 v250, v0, 7, s62")
    A("v_cmp_gt_u32 s[62:63], 16, v0")
    A("v_cmp_gt_u32 vcc, L_CODE_END-L_PC-4, v250")
    A("v_lshrrev_b32 v252, 6, v0")
    A(f"v_and_b32 v{L}, 63, v0")
    A("s_and_b64 exec, vcc, s[62:63]")
    A("s_cbranch_execz L_NOPF")
    A("v_mov_b32 v251, s61")
    A("v_add_co_u32 v250, vcc, s60, v250")
    A("v_addc_co_u32 v251, vcc, 0, v251, vcc")
    A("global_load_dword v253, v[250:251], off")
    A.lab("L_NOPF")
    A("s_mov_b64 exec, -1")
    A("v_readfirstlane_b32 s22, v252")
    T = TL
    A(f"v_lshrrev_b32 v{T}, 3, v{L}")
    A(f"v_and_b32 v{T+1}, 7, v{L}")
    A(f"v_lshlrev_b32 v{VX}, 10, v{T}")
    A(f"v_lshl_add_u32 v{VX}, v{T+1}, 4, v{VX}")
    A("s_bfe_u32 s20, s2, 0x20001")
    A("s_lshl_b32 s20, s20, 2")
    A("s_and_b32 s60, s23, 3")
    A("s_add_u32 s20, s20, s60")
    A("s_cmp_lt_u32 s22, 4")
    A("s_cbranch_scc1 L_COMMON")
    loader_first(A)
    A.lab("L_COMMON")
    A("s_lshr_b32 s62, s23, 2")
    A("s_and_b32 s63, s2, 1")
    A("s_lshl_b32 s21, s62, 1")
    A("s_add_u32 s21, s21, s63")
    A("s_mul_i32 s63, s63, 5")
    A("s_add_u32 s63, s63, s62")
    A("s_add_u32 s63, s63, 3")
    A("s_cmp_ge_u32 s62, 3")
    A("s_cselect_b32 s21, s63, s21")
    A("s_waitcnt lgkmcnt(0)")
    srd(A, S_X, 4, 2048*512*2)
    A("s_mov_b64 s[16:17], s[52:53]")
    A("s_mov_b64 s[18:19], s[58:59]")
    srd(A, S_WS, 58, WS_BYTES)
    srd(A, S_DBG, 56, 256)
    srd(A, S_OUT, 54, 2048*512*2)
    srd(A, S_T1, 58, 0)
    srd(A, S_T2, 58, 0)
    for r in HOFF: A(f"s_mov_b32 s{r}, 0x7fff0000")
    A("s_cmp_lt_u32 s22, 4")
    A("s_cbranch_scc1 L_COMPUTE")
    gen_loader(A)
    A("s_branch L_P0")
    A.lab("L_COMPUTE")
    gen_init(A)
    A("s_cmp_ge_u32 s21, 6")
    A("s_cbranch_scc1 L_F")
    A("s_cmp_ge_u32 s21, 4")
    A("s_cbranch_scc1 L_V")
    gen_compute(A, "QK")
    A.lab("L_V")
    gen_compute(A, "V")
    A.lab("L_SIGNAL")
    A("s_and_b32 s91, s21, 1")
    A("s_lshl_b32 s91, s91, 12")
    A(f"s_add_u32 s91, s91, {QCNT:#x}")
    A("s_waitcnt vmcnt(0)")
    last_wave_signals(A, "L_SIG2", 0, 3)
    stamp(A, 15)
    A("s_branch L_P2")
    A.lab("L_F")
    gen_compute(A, "F")
    A.lab("L_P2")
    gen_attn(A)
    gen_final(A)
    A.lab("L_END")
    A("s_endpgm")
    gen_hooks(A)
    return f""".section .rodata,"a"
.p2align 6
.amdhsa_kernel {name}
  .amdhsa_next_free_vgpr 256
  .amdhsa_next_free_sgpr 102
  .amdhsa_accum_offset 256
  .amdhsa_group_segment_fixed_size 0
  .amdhsa_kernarg_size 80
  .amdhsa_user_sgpr_count 2
  .amdhsa_user_sgpr_kernarg_segment_ptr 1
  .amdhsa_system_sgpr_workgroup_id_x 1
.end_amdhsa_kernel
"""

def gen_init(A):
    R = 160
    A("s_cmp_lg_u32 s22, 0")
    A("s_cbranch_scc1 L_INIT1")
    for r in range(R, R+4): A(f"v_mov_b32 v{r}, 0")
    A(f"v_mov_b32 v{R+4}, {SW}")
    A(f"ds_write_b128 v{R+4}, {vr(R,4)}")
    A("s_sub_u32 s61, s2, 128")
    A(f"s_cmp_ge_u32 s61, {NZ}")
    A("s_cbranch_scc1 L_INIT1")
    A(f"v_lshlrev_b32 v{R+4}, 7, v{L}")
    A("s_lshl_b32 s60, s61, 13")
    A(f"s_add_u32 s60, s60, {FLAGS:#x}")
    A(f"buffer_store_dword v{R}, v{R+4}, {sr(S_WS,4)}, s60 offen sc1")
    A("s_nop 1")
    A.lab("L_INIT1")
    for r in range(144): A(f"v_mov_b32 v{r}, 0")
    A("s_call_b64 s[76:77], L_ATTINIT")
    A("s_lshr_b32 s60, s22, 1")
    A("s_and_b32 s61, s22, 1")

VW = 144
def gen_wsetup(A):
    T = 158
    A("s_bfe_u32 s62, s22, 0x10001")
    A("s_and_b32 s63, s22, 1")
    A("s_cmp_lt_u32 s21, 6")
    A("s_cbranch_scc1 LL_Q")
    A("s_cmp_eq_u32 s63, 0")
    A(f"s_cselect_b32 s{S_W}, s12, s14")
    A(f"s_cselect_b32 s{S_W+1}, s13, s15")
    A(f"s_mov_b32 s{S_W+2}, {512*1376*2:#x}")
    A("s_sub_u32 s64, s21, 6")
    A(f"s_mul_i32 s64, s64, {9*32}")
    A(f"s_mov_b32 s65, {2752-288}")
    A(f"v_mul_u32_u24 v{T+2}, 3641, v{L}")
    A(f"v_lshl_add_u32 v{T+3}, v{L}, 4, s64")
    for i in range(9):
        A(f"v_add_u32 v{T+4}, {64*i*3641}, v{T+2}")
        A(f"v_lshrrev_b32 v{T+4}, 16, v{T+4}")
        A(f"v_add_u32 v{T+5}, {1024*i}, v{T+3}")
        A(f"v_mad_u32_u24 v{VW+i}, v{T+4}, s65, v{T+5}")
    A(f"v_and_b32 v{T+2}, 3, v{L}")
    A(f"v_min_u32 v{T+2}, 2, v{T+2}")
    A("s_mov_b32 s65, 2752")
    A(f"s_mov_b32 s68, {32*2752}")
    A("s_branch LL_C")
    A.lab("LL_Q")
    A(f"s_mov_b32 s{S_W}, s6")
    A(f"s_mov_b32 s{S_W+1}, s7")
    A(f"s_mov_b32 s{S_W+2}, {512*1536*2:#x}")
    A(f"v_lshrrev_b32 v{T+3}, 4, v{L}")
    A(f"v_mul_u32_u24 v{T+2}, 3072, v{T+3}")
    A(f"v_bfe_u32 v{T+4}, v{L}, 2, 2")
    A(f"v_xor_b32 v{T+4}, v{T+4}, v{T+3}")
    A(f"v_lshl_add_u32 v{T+2}, v{T+4}, 6, v{T+2}")
    A(f"v_and_b32 v{T+3}, 3, v{L}")
    A(f"v_lshl_add_u32 v{T+2}, v{T+3}, 4, v{T+2}")
    A("s_lshl_b32 s64, s21, 9")
    A("s_lshl_b32 s65, s63, 8")
    A("s_add_u32 s64, s64, s65")
    A(f"v_add_u32 v{VW}, s64, v{T+2}")
    for i in range(1, 9): A(f"v_add_u32 v{VW+i}, {i*4*3072}, v{VW}")
    A(f"v_and_b32 v{T+2}, 1, v{L}")
    A("s_mov_b32 s65, 3072")
    A(f"s_mov_b32 s68, {32*3072}")
    A.lab("LL_C")
    A("s_and_b32 s66, s20, 3")
    A("s_lshl_b32 s66, s66, 3")
    A(f"v_lshrrev_b32 v{T+3}, 2, v{L}")
    A(f"v_add_u32 v{T+3}, s66, v{T+3}")
    A(f"v_mul_u32_u24 v{T+3}, s65, v{T+3}")
    A(f"v_lshl_add_u32 v{T+3}, v{T+2}, 7, v{T+3}")
    A(f"v_add_u32 v{VW+9}, s64, v{T+3}")
    A(f"s_mov_b32 s{S_W+3}, 0x00020000")
    A(f"s_mul_i32 s71, s62, {WSL}")
    A(f"s_mul_i32 s66, s63, {UPOFF}")
    A("s_add_u32 s71, s71, s66")
    A(f"s_add_u32 s71, s71, {WR}")
    A("s_mov_b32 s72, s71")
    A(f"s_add_u32 s73, s71, {6*WSL}")
    A("s_mul_i32 s74, s62, s68")
    A("s_lshl_b32 s68, s68, 1")

W_PREFETCH = ["s_add_u32 s67, s74, s68", "s_mov_b32 exec_hi, 0",
              f"buffer_load_dword v253, v{VW+9}, {sr(S_W,4)}, s67 offen", "s_mov_b64 exec, -1"]
_dma_n = [0]
def dma_piece(i): return [f"s_add_u32 m0, s72, {i*1024}", "s_nop 0", f"buffer_load_dwordx4 v{VW+i}, {sr(S_W,4)}, s74 offen lds"]
DMA_TAIL = ["s_add_u32 s74, s74, s68", f"s_add_u32 s72, s72, {2*WSL}", "s_cmp_eq_u32 s72, s73", "s_cselect_b32 s72, s71, s72"]
def dma_groups(first):
    g = [dma_piece(i) for i in range(first, 9)]
    _dma_n[0] += 1
    lab = f"LL_D{_dma_n[0]}"
    g[-1] = ["s_cmp_lt_u32 s21, 6", f"s_cbranch_scc1 {lab}"] + g[-1] + [lab + ":"] + DMA_TAIL
    return g
def mix(A, work, groups, every):
    groups = list(groups)
    for n, w in enumerate(work):
        if isinstance(every, (list, tuple)):
            for _ in range(every.count(n)):
                if groups: A.many(groups.pop(0))
        elif groups and n % every == 0: A.many(groups.pop(0))
        A(w)
    for g in groups: A.many(g)

HREG = 184
HOFF = [52, 53, 54, 55, 56, 57, 58, 59, 10]
def h_offsets(A):
    tiles = [(lu*2+lt, lu, lt) for lu in range(4) for lt in range(2)] + [(8, 4, 0)]
    for (tile, lu, lt) in tiles:
        A("s_add_u32 s66, s64, 8" if lu == 4 else f"s_add_u32 s66, s65, {lu}")
        A("s_lshl_b32 s67, s66, 10")
        A(f"s_add_u32 s67, s67, s{62+lt}")
        A(f"s_cmp_lt_u32 s66, {NFU}")
        A(f"s_cselect_b32 s{HOFF[tile]}, s67, 0x7fff0000")

SJ = 184
def side_setup(A):
    A("s_mul_i32 s75, s20, 10")
    A("s_add_u32 s75, s75, s21")
    A("s_sub_u32 s75, s75, 6")
    A("s_mul_i32 s75, s75, 3")
    A("s_add_u32 s75, s75, s60")
    A("s_sub_u32 s75, s75, 1")
    A(f"v_lshrrev_b32 v245, 5, v{L}")
    A("v_lshlrev_b32 v245, 10, v245")
    A(f"v_and_b32 v246, 31, v{L}")
    A("v_lshl_add_u32 v245, v246, 4, v245")
    for jb in range(2):
        S = 4 if jb else S_W
        A(f"s_add_u32 s90, s75, {480*jb}")
        A("s_cmp_lt_u32 s90, 256")
        A(f"s_cselect_b32 s{S}, s8, s16")
        A(f"s_cselect_b32 s{S+1}, s9, s17")
        csel(A, S+2, 512*512*2, 1376*512*2)
        A(f"s_mov_b32 s{S+3}, 0x00020000")
        csel(A, 91, WOF, WDF)
        csel(A, 67, 32*2048, NFU*2048)
        A("s_cselect_b32 s70, 0, 256")
        A("s_sub_u32 s70, s90, s70")
        A("s_lshr_b32 s94, s70, 3")
        A("s_and_b32 s70, s70, 7")
        A(f"s_lshl_b32 s{72+jb}, s94, 14")
        A("s_lshl_b32 s95, s70, 7")
        A(f"s_add_u32 s{72+jb}, s{72+jb}, s95")
        A("s_mul_i32 s70, s70, s67")
        A("s_lshl_b32 s94, s94, 11")
        A("s_add_u32 s70, s70, s94")
        A("s_add_u32 s70, s70, s91")
        A(f"s_cmp_lt_u32 s90, {256+8*NFU}")
        A(f"s_cselect_b32 s{92+jb}, s70, 0x7fff0000")
def side_prefetch(A):
    A("s_mov_b64 exec, 0xffff")
    A(f"buffer_load_dword v253, v245, {sr(S_T1,4)}, s81 offen")
    A(f"buffer_load_dword v253, v245, {sr(S_T2,4)}, s82 offen")
    A("s_mov_b64 exec, -1")
def side_loads(A, jb):
    S = 4 if jb else S_W
    for rho in range(16):
        hh = (rho >> 2) & 1; j = (rho & 3) + 4*(rho >> 3)
        d = SJ + 16*jb + 8*(j & 1) + 4*hh + (j >> 1)
        A(f"buffer_load_ushort v{d}, v244, {sr(S,4)}, s{72+jb} offen offset:{(rho&3)*1024}")
        if (rho & 3) == 3: A(f"s_add_u32 s{72+jb}, s{72+jb}, 4096")
def side_combine(A):
    for jb in range(2):
        d = SJ + 16*jb
        for i in range(8): A(f"v_lshl_or_b32 v{d+i}, v{d+8+i}, 16, v{d+i}")
        A(f"s_mov_b32 s{HOFF[4*jb]}, s{92+jb}")
        A(f"s_add_u32 s{HOFF[4*jb+1]}, s{92+jb}, 512")
    A("v_mov_b32 v249, v245")

def gen_compute(A, kind):
    F = kind == "F"
    ROLE[0] = kind[0]
    NW = 5 if F else 4
    ND = 9 if F else 8
    XS = [176, 184]; WSET = [192, 212]
    XA = 232; XB = 236; WA = 240; T0 = 244
    KQ = 1152 if F else 1024
    US = 32
    P = "L1" + kind
    t, h, sw = T0, T0+1, T0+2
    A(f"v_and_b32 v{t}, 31, v{L}")
    A(f"v_lshrrev_b32 v{h}, 5, v{L}")
    A(f"v_bfe_u32 v{sw}, v{t}, 1, 3")
    A(f"v_xor_b32 v{sw}, v{sw}, v{h}")
    A(f"v_lshlrev_b32 v{T0+3}, 7, v{t}")
    A("s_lshl_b32 s62, s22, 12")
    for s in range(4):
        A(f"v_xor_b32 v{T0+4}, {2*s}, v{sw}")
        A(f"v_lshl_add_u32 v{T0+4}, v{T0+4}, 4, v{T0+3}")
        A(f"v_add_u32 v{XA+s}, s62, v{T0+4}")
        A(f"v_xor_b32 v{XB+s}, 0x1000, v{XA+s}")
    if F:
        A(f"v_bfe_u32 v{T0+5}, v{L}, 2, 2")
        A(f"v_mul_u32_u24 v{T0+5}, 288, v{T0+5}")
        A(f"v_and_b32 v{T0+3}, 3, v{L}")
        A(f"v_lshl_add_u32 v{T0+3}, v{T0+3}, 3, v{T0+5}")
        A(f"v_bfe_u32 v{T0+4}, v{L}, 4, 1")
        A(f"v_mul_u32_u24 v{T0+4}, {UPOFF}, v{T0+4}")
        A(f"v_add_u32 v{T0+3}, v{T0+3}, v{T0+4}")
    else:
        A(f"v_bfe_u32 v{T0+5}, v{L}, 2, 2")
        A(f"v_and_b32 v{T0+3}, 3, v{L}")
        A(f"v_lshlrev_b32 v{T0+3}, 3, v{T0+3}")
        A(f"v_lshl_add_u32 v{T0+3}, v{T0+5}, 8, v{T0+3}")
        A(f"v_bfe_u32 v{T0+4}, v{L}, 4, 1")
        A(f"v_lshl_add_u32 v{T0+3}, v{T0+4}, 5, v{T0+3}")
    A(f"v_mul_u32_u24 v{T0+4}, {2*KQ}, v{h}")
    A(f"v_add_u32 v{T0+3}, v{T0+3}, v{T0+4}")
    A(f"v_add_u32 v{T0+3}, {WR}, v{T0+3}")
    if F:
        A(f"s_mul_i32 s62, s61, {4*US}")
        A(f"v_add_u32 v{WA}, s62, v{T0+3}")
        A(f"v_add_u32 v{WA+1}, {8*US}, v{T0+3}")
    else:
        A(f"s_mul_i32 s62, s61, {UPOFF}")
        A(f"v_add_u32 v{T0+3}, s62, v{T0+3}")
        for lu in range(4):
            A(f"v_xor_b32 v{T0+4}, {lu}, v{T0+5}")
            A(f"v_lshl_add_u32 v{WA+lu}, v{T0+4}, 6, v{T0+3}")
    VO = 249
    if kind == "QK":
        A(f"v_and_b32 v{T0+6}, 0x33, v{L}")
        A(f"v_bfe_u32 v{T0+7}, v{L}, 2, 1")
        A(f"v_lshl_or_b32 v{T0+6}, v{T0+7}, 3, v{T0+6}")
        A(f"v_bfe_u32 v{T0+7}, v{L}, 3, 1")
        A(f"v_lshl_or_b32 v{T0+6}, v{T0+7}, 2, v{T0+6}")
        A("s_cmp_lt_u32 s21, 2")
        A("s_cselect_b64 vcc, -1, 0")
        A(f"v_cndmask_b32 v{VO}, v{T0+6}, v{L}, vcc")
        A(f"v_lshlrev_b32 v{VO}, 4, v{VO}")
    elif kind == "V":
        A(f"v_and_b32 v{VO}, 15, v{L}")
        A(f"v_lshlrev_b32 v{VO}, 4, v{VO}")
        A(f"v_lshl_or_b32 v{VO}, v{h}, 8, v{VO}")
        A(f"v_bfe_u32 v{T0+6}, v{L}, 4, 1")
        A(f"v_lshl_or_b32 v{VO}, v{T0+6}, 16, v{VO}")
    else:
        A(f"v_lshlrev_b32 v{VO}, 4, v{L}")
    A("s_lshl_b32 s68, s20, 2")
    A("s_add_u32 s68, s68, s22")
    A("s_xor_b32 s69, s68, 1")
    if not F:
        A("s_lshl_b32 s70, s21, 20")
        A("s_lshl_b32 s71, s61, 19")
        A("s_add_u32 s70, s70, s71")
        A("s_lshl_b32 s68, s68, 10")
        A("s_lshl_b32 s69, s69, 10")
        A("s_add_u32 s68, s68, s70")
        A("s_add_u32 s69, s69, s70")
    A("s_mov_b32 s64, 0")
    A("s_mov_b32 s65, 0")

    def reads(st, s):
        r = []
        hs, sp = s >> 1, s & 1
        def wread(lu):
            a = WA + ((1 if lu == 4 else 0) if F else lu)
            base = hs*WSL + 4*sp*KQ + (lu*US if F and lu < 4 else 0)
            d = WSET[st] + 4*lu
            return [f"ds_read_b64_tr_b16 {vr(d,2)}, v{a} offset:{base}",
                    f"ds_read_b64_tr_b16 {vr(d+2,2)}, v{a} offset:{base+KQ}"]
        r.append(f"ds_read_b128 {vr(XS[st],4)}, v{XA+s}")
        r += wread(0)
        r.append(f"ds_read_b128 {vr(XS[st]+4,4)}, v{XB+s}")
        for lu in range(1, NW): r += wread(lu)
        return r
    def mfma(tile, w, x):
        a, b = (x, w) if kind == "V" else (w, x)
        return f"v_mfma_f32_32x32x16_bf16 {vr(16*tile,16)}, {vr(a,4)}, {vr(b,4)}, {vr(16*tile,16)}"
    def mfmas(st):
        m = [mfma(lu*2+lt, WSET[st]+4*lu, XS[st]+4*lt) for lu in range(4) for lt in range(2)]
        if F: m.append(mfma(8, WSET[st]+16, XS[st]))
        return m
    stamp(A, 1)
    A("s_waitcnt vmcnt(0) lgkmcnt(0)" if F else "s_waitcnt lgkmcnt(0)")
    A("s_barrier")
    stamp(A, 2)
    A.many(reads(0, 0))
    if F:
        A("s_sub_u32 s66, s2, 128")
        A("s_lshl_b32 s67, s22, 8")
        A("s_add_u32 s66, s66, s67")
        A(f"s_cmp_ge_u32 s66, {NZ}")
        A(f"s_cbranch_scc1 {P}_LOOP")
        A("s_lshl_b32 s66, s66, 2")
        A("s_mov_b64 exec, 1")
        A("v_mov_b32 v250, 1")
        A("v_mov_b32 v251, 0")
        A(f"buffer_store_dword v250, v251, {sr(S_DBG,4)}, s66 offen sc1")
        A("s_mov_b64 exec, -1")
    A.raw(".p2align 6")
    A.lab(P + "_LOOP")
    NR = 2*NW + 2
    PEEL = OPT["peel"] and not F
    NIT = 7 if PEEL else 8
    need = [3, 4, 6, 6, 8, 8, 10, 10, 12]
    for s in range(4):
        st = s & 1; nx = (s+1) & 3
        ms = mfmas(st); rd = reads(1-st, nx)
        n = len(ms)
        gaps = [[] for _ in ms]
        g0 = OPT["barpos"] if s == 3 else 0
        for i, r in enumerate(rd): gaps[g0 + i//2].append(r)
        xu = lambda k: [f"v_xor_b32 v{XA+k}, 0x4000, v{XA+k}", f"v_xor_b32 v{XB+k}, 0x4000, v{XB+k}"]
        if s < 3:
            gaps[n-2] += xu(nx)
        if s == 0: gaps[n-3] += xu(0)
        if s == 1:
            gaps[n-3] += ["s_cmp_eq_u32 s65, 2", f"s_mov_b32 s66, {2*WSL:#x}", f"s_cselect_b32 s66, {(-4*WSL) & 0xffffffff:#x}, s66"]
            gaps[n-1] += ["s_cselect_b32 s65, -1, s65", "s_add_u32 s65, s65, 1"]
        if s == 2:
            gaps[n-1] += [f"v_add_u32 v{WA+i}, s66, v{WA+i}" for i in range(2 if F else 4)]
        if s == 3:
            gaps[n-1] += ["s_add_u32 s64, s64, 1", f"s_cmp_lt_u32 s64, {NIT}"]
        issued = 0; done = 0
        for i, (m, g) in enumerate(zip(ms, gaps)):
            if need[i] > done:
                A(f"s_waitcnt lgkmcnt({min(15, NR - need[i] + issued)})"); done = need[i]
            A(m)
            if s == 3 and i == g0:
                A("s_waitcnt lgkmcnt(0)"); done = NR
                A("s_barrier")
            for x in g:
                A(x)
                if x.startswith("ds_"): issued += 1
    if OPT["prof"] and OPT["itstamp"]:
        A("s_memtime s[96:97]")
        A("s_add_u32 m0, s64, 19")
        A("s_waitcnt lgkmcnt(0)")
        A("v_writelane_b32 v255, s96, m0")
        A(f"s_cmp_lt_u32 s64, {NIT}")
    A(f"s_cbranch_scc1 {P}_LOOP")
    stamp(A, 3)
    tiles = [(lu*2+lt, lu, lt) for lu in range(4) for lt in range(2)] + ([(8, 4, 0)] if F else [])
    if not F:
        def fin(tile, lu, lt):
            a = 16*tile
            g = [[f"v_cvt_pk_bf16_f32 v{a+i}, v{a+2*i}, v{a+2*i+1}" for i in range(4)],
                 [f"s_add_u32 s65, s{68+lt}, {lu*131072}", f"buffer_store_dwordx4 {vr(a,4)}, v{VO}, {sr(S_WS,4)}, s65 offen sc1"],
                 [f"v_cvt_pk_bf16_f32 v{a+8+i}, v{a+8+2*i}, v{a+9+2*i}" for i in range(4)]]
            if kind == "QK": g.append(["s_add_u32 s65, s65, 65536", f"buffer_store_dwordx4 {vr(a+8,4)}, v{VO}, {sr(S_WS,4)}, s65 offen sc1"])
            else: g.append([f"buffer_store_dwordx4 {vr(a+8,4)}, v{VO}, {sr(S_WS,4)}, s65 offen offset:512 sc1"])
            return g
        rest = tiles
        if PEEL:
            XR = {1: XS[1], 2: 128, 3: 136}
            WG = [[212, 216, 220], [224, 228, 208]]
            def wrd(lu):
                r = []
                for s in (1, 2, 3):
                    base = (s >> 1)*WSL + 4*(s & 1)*KQ; d = WG[lu & 1][s-1]
                    r += [f"ds_read_b64_tr_b16 {vr(d,2)}, v{WA+lu} offset:{base}", f"ds_read_b64_tr_b16 {vr(d+2,2)}, v{WA+lu} offset:{base+KQ}"]
                return r
            w0 = wrd(0); rd = []
            for s in (1, 2, 3):
                rd += [f"ds_read_b128 {vr(XR[s],4)}, v{XA+s}", f"ds_read_b128 {vr(XR[s]+4,4)}, v{XB+s}"] + w0[2*s-2:2*s]
            issued = 0; done = 0
            for i, m in enumerate(mfmas(0)):
                if need[i] > done:
                    A(f"s_waitcnt lgkmcnt({min(15, NR - need[i] + issued)})"); done = need[i]
                A(m)
                A.many(rd[2*i:2*i+2]); issued += len(rd[2*i:2*i+2])
            pend = []
            for lu in range(4):
                A("s_waitcnt lgkmcnt(0)")
                if lu == 3: A("s_barrier")
                nxt = wrd(lu+1) if lu < 3 else []
                for i, (s, lt) in enumerate((s, lt) for s in (1, 2, 3) for lt in range(2)):
                    A(mfma(lu*2+lt, WG[lu & 1][s-1], XR[s]+4*lt))
                    A.many(nxt[2*i:2*i+2])
                    if i == 2 and lu > 0:
                        A("s_nop 3")
                        for tl in tiles[2*(lu-1):2*lu]: pend += fin(*tl)
                    for _ in range(2 if i >= 3 else 1):
                        if pend: A.many(pend.pop(0))
            for g in pend: A.many(g)
            A("s_nop 7")
            rest = tiles[6:]
        for tl in rest:
            for g in fin(*tl): A.many(g)
        stamp(A, 4)
        if kind == "QK": A("s_branch L_SIGNAL")
    else:
        A(f"s_mul_i32 s62, s68, {NFU*1024}")
        A(f"s_mul_i32 s63, s69, {NFU*1024}")
        A(f"s_add_u32 s62, s62, {HF:#x}")
        A(f"s_add_u32 s63, s63, {HF:#x}")
        A("s_sub_u32 s64, s21, 6")
        A("s_mul_i32 s64, s64, 9")
        A("s_lshl_b32 s65, s61, 2")
        A("s_add_u32 s65, s65, s64")
        C1, C3, ONE, TT = 220, 222, 224, 176
        c1 = -2*0.7978845608028654*LOG2E
        A("s_waitcnt lgkmcnt(0)")
        for r, v in ((C1, c1), (C3, c1*0.044715), (ONE, 1.0)):
            A(f"v_mov_b32 v{r}, {f2u(v):#x}")
            A(f"v_mov_b32 v{r+1}, {f2u(v):#x}")
        dst = lambda tile: HREG + 4*tile
        h_offsets(A)
        for (tile, lu, lt) in tiles:
            a = 16*tile
            for i in range(4): A(f"v_pk_mul_f32 {vr(TT+2*i,2)}, {vr(a+2*i,2)}, {vr(a+2*i,2)}")
            for i in range(4): A(f"v_pk_fma_f32 {vr(TT+2*i,2)}, {vr(TT+2*i,2)}, {vr(C3,2)}, {vr(C1,2)}")
            for i in range(4): A(f"v_pk_mul_f32 {vr(TT+2*i,2)}, {vr(TT+2*i,2)}, {vr(a+2*i,2)}")
            for i in range(8): A(f"v_exp_f32 v{TT+i}, v{TT+i}")
            for i in range(4): A(f"v_pk_mul_f32 {vr(a+2*i,2)}, {vr(a+2*i,2)}, {vr(a+8+2*i,2)}")
            for i in range(4): A(f"v_pk_add_f32 {vr(TT+2*i,2)}, {vr(TT+2*i,2)}, {vr(ONE,2)}")
            for i in range(8): A(f"v_rcp_f32 v{TT+i}, v{TT+i}")
            A("s_nop 0")
            for i in range(4): A(f"v_pk_mul_f32 {vr(a+2*i,2)}, {vr(a+2*i,2)}, {vr(TT+2*i,2)}")
            for i in range(4): A(f"v_cvt_pk_bf16_f32 v{dst(tile)+i}, v{a+2*i}, v{a+2*i+1}")
        stamp(A, 4)

VX = 212; DW = 240; S1 = 216; S2 = 220; RR = 224; MR = 228; TL = 232
xreg = lambda c, i: (i*8 + c)*4
def xload_(A, i):
    A(f"s_add_u32 s{85+i}, s80, {i}")
    A(f"s_and_b32 s{85+i}, s{85+i}, 3")
    A(f"s_lshl_b32 s89, s{85+i}, 13")
    A("s_add_u32 s89, s89, s61")
    for c in range(8):
        A(f"buffer_load_dwordx4 {vr(xreg(c,i),4)}, v{VX}, {sr(S_X,4)}, s89 offen offset:{c*128}")
def loader_first(A):
    T = TL
    A("s_sub_u32 s60, s22, 4")
    A("s_lshl_b32 s61, s20, 17")
    A("s_lshl_b32 s62, s60, 15")
    A("s_add_u32 s61, s61, s62")
    A("s_lshr_b32 s80, s2, 5")
    A("s_waitcnt lgkmcnt(0)")
    srd(A, S_X, 4, 2048*512*2)
    xload_(A, 0); xload_(A, 1)

def gen_loader(A):
    ROLE[0] = "L"
    T = TL
    xload = lambda i: xload_(A, i)
    gen_wsetup(A)
    xload(2)
    A("s_cmp_lt_u32 s21, 2")
    A(f"s_cselect_b32 s69, {f2u(0.25*LOG2E):#x}, 1.0")
    A("s_lshr_b32 s64, s21, 1")
    A("s_cmp_eq_u32 s64, 2")
    A(f"s_cselect_b32 s69, {f2u(2.0**VSH):#x}, s69")
    for r in range(S1, S2+4): A(f"v_mov_b32 v{r}, 0")
    A("s_mov_b32 s78, 0x3f803f80")
    A("v_mov_b32 v249, 0")
    A(f"v_lshlrev_b32 v244, 1, v{L}")
    A("s_cmp_ge_u32 s21, 6")
    A("s_cselect_b32 s79, s60, 0")
    def norm(c, i):
        x = xreg(c, i); r = []
        for d in range(4):
            r.append(f"v_lshlrev_b32 v{T+2*d}, 16, v{x+d}")
            r.append(f"v_and_b32 v{T+2*d+1}, 0xffff0000, v{x+d}")
        for d in range(8): r.append(f"v_fma_f32 v{T+d}, v{T+d}, v{RR+i}, -v{MR+i}")
        for d in range(4): r.append(f"v_cvt_pk_bf16_f32 v{x+d}, v{T+2*d}, v{T+2*d+1}")
        if OPT["w64"]:
            r.insert(-2, f"ds_write_b64 v{DW+i}, {vr(x,2)} offset:{(c&1)*16384}")
            r.append(f"ds_write_b64 v{DW+i}, {vr(x+2,2)} offset:{(c&1)*16384+8}")
        else: r.append(f"ds_write_b128 v{DW+i}, {vr(x,4)} offset:{(c&1)*16384}")
        return r
    def dots(i):
        r = []
        for k in range(32):
            r.append(f"v_dot2c_f32_bf16 v{S2+i}, v{xreg(0,i)+k}, v{xreg(0,i)+k}")
            r.append(f"v_dot2c_f32_bf16 v{S1+i}, s78, v{xreg(0,i)+k}")
        return r
    A("s_waitcnt vmcnt(16)"); stamp(A, 16)
    xload(3)
    A.many(dots(0))
    A(f"v_lshrrev_b32 v{T+2}, 4, v{L}")
    A(f"v_xor_b32 v{T+2}, v{T+2}, v{T+1}")
    A(f"v_lshlrev_b32 v{T+3}, 7, v{T}")
    A("s_lshl_b32 s64, s60, 12")
    A(f"v_add_u32 v{T+3}, s64, v{T+3}")
    A(f"v_lshl_add_u32 v{T+3}, v{T+2}, 4, v{T+3}")
    for i in range(4):
        A(f"s_and_b32 s64, s{85+i}, 1")
        A("s_lshl_b32 s64, s64, 6")
        A(f"s_lshl_b32 s65, s{85+i}, 10")
        A("s_or_b32 s64, s64, s65")
        A(f"v_xor_b32 v{DW+i}, s64, v{T+3}")
    def vmw(base, tag):
        A(f"s_waitcnt vmcnt({base+9})")
        A("s_cmp_ge_u32 s21, 6")
        A(f"s_cbranch_scc1 {tag}")
        A(f"s_waitcnt vmcnt({base+8})")
        A.lab(tag)
    A("s_waitcnt vmcnt(16)"); stamp(A, 17)
    if OPT["wearly"]:
        mix(A, dots(1), dma_groups(0), 7)
        vmw(8, "LL_G2"); stamp(A, 18)
        A.many(dots(2))
    else:
        A.many(dots(1))
        A("s_waitcnt vmcnt(8)"); stamp(A, 18)
        mix(A, dots(2), dma_groups(0), 7)
    vmw(0, "LL_G3")
    stamp(A, 19)
    A.many(dots(3))
    A("s_nop 2")
    for ctl in ("quad_perm:[1,0,3,2]", "quad_perm:[2,3,0,1]", "row_half_mirror"):
        for r in range(S1, S2+4):
            A(f"v_add_f32_dpp v{r}, v{r}, v{r} {ctl} row_mask:0xf bank_mask:0xf")
    seq = [
        lambda i: f"v_mul_f32 v{S1+i}, {f2u(1/512):#x}, v{S1+i}",
        lambda i: f"v_mul_f32 v{S2+i}, {f2u(1/512):#x}, v{S2+i}",
        lambda i: f"v_fma_f32 v{S2+i}, -v{S1+i}, v{S1+i}, v{S2+i}",
        lambda i: f"v_max_f32 v{S2+i}, 0, v{S2+i}",
        lambda i: f"v_cvt_pk_bf16_f32 v{S2+i}, v{S1+i}, v{S2+i}",
        lambda i: f"v_lshlrev_b32 v{S1+i}, 16, v{S2+i}",
        lambda i: f"v_and_b32 v{S2+i}, 0xffff0000, v{S2+i}",
        lambda i: f"v_add_f32 v{S2+i}, {f2u(1e-5):#x}, v{S2+i}",
        lambda i: f"v_cvt_pk_bf16_f32 v{S2+i}, v{S2+i}, v{S2+i}",
        lambda i: f"v_and_b32 v{S2+i}, 0xffff0000, v{S2+i}",
        lambda i: f"v_sqrt_f32 v{S2+i}, v{S2+i}",
        lambda i: f"v_cvt_pk_bf16_f32 v{S2+i}, v{S2+i}, v{S2+i}",
        lambda i: f"v_and_b32 v{S2+i}, 0xffff0000, v{S2+i}",
        lambda i: f"v_rcp_f32 v{RR+i}, v{S2+i}",
        lambda i: f"v_mul_f32 v{RR+i}, s69, v{RR+i}",
        lambda i: f"v_mul_f32 v{MR+i}, v{S1+i}, v{RR+i}",
    ]
    for f in seq:
        for i in range(4): A(f(i))
    stamp(A, 1)
    mix(A, sum((norm(0, i) for i in range(4)), []), dma_groups(0), OPT["dmaevery"])
    if -1 in OPT["wpf"]: A.many(W_PREFETCH)
    stamp(A, 2)
    dbg_load = [f"buffer_load_dword v97, v96, {sr(S_DBG,4)}, 0 offen sc1"]
    for m in range(8):
        if m == 4: stamp(A, 29)
        A(f"s_waitcnt vmcnt({8 if m < 7 else 0}) lgkmcnt(0)")
        if m == 4: stamp(A, 30)
        if m == 5:
            A.many(ALL1(97))
            A("s_cbranch_scc1 LL_POLL0_OK")
            spin(A, "LL_POLL0", dbg_load, ALL1(97))
        A("s_barrier")
        if m == 3: stamp(A, 28)
        if m == 4: stamp(A, 31)
        if m == 7: break
        work = sum((norm(m+1, i) for i in range(4)), [])
        isw = lambda w: w.startswith("ds_")
        if OPT["exp"] == "wlast": work = [w for w in work if not isw(w)] + [w for w in work if isw(w)]
        if OPT["exp"] == "wfirst":
            if m == 0: A.many(work)
            else: A.many([w for w in work if isw(w)])
            work = [w for w in sum((norm(m+2, i) for i in range(4)), []) if not isw(w)] if m < 6 else []
        if OPT["exp"].startswith("grp"):
            dg = dma_groups(0) if m < 6 else []
            split = {"grp": [3,2,2,2,0], "grp2": [0,3,3,3,0], "grp3": [2,3,2,2,0], "grp4": [4,3,2,0,0]}[OPT["exp"]]
            for _ in range(split[0]):
                if dg: A.many(dg.pop(0))
            for i in range(4):
                nn = norm(m+1, i)
                A.many(nn[:-1])
                for _ in range(split[i+1]):
                    if dg: A.many(dg.pop(0))
                A(nn[-1])
            work = None
        if OPT["exp"] == "nonorm": work = []
        if OPT["exp"] == "nowrite": work = [w for w in work if not w.startswith("ds_")]
        if OPT["exp"] == "dmalast":
            A.many(work); work = []
        if OPT["exp"] == "dmafirst":
            mix(A, [], dma_groups(0) if m < 6 else [], 1); A.many(work); continue
        if work is not None: mix(A, work, dma_groups(0) if m < 6 else [], OPT["dmaevery"])
        if m in OPT["wpf"]: A.many(W_PREFETCH)
        if m == 3:
            A(f"v_min_u32 v96, {NZ-1}, v{L}")
            A("v_lshlrev_b32 v96, 2, v96")
            A.many(dbg_load)
    A("s_mov_b32 s23, s79")
    side_setup(A)
    A("s_call_b64 s[76:77], L_ATTINIT")
    late_init(A)
    A("s_barrier")
    stamp(A, 3)
    A("s_cmp_eq_u32 s23, 0")
    A("s_cbranch_scc1 LL_S7")
    side_loads(A, 0)
    side_loads(A, 1)
    A.lab("LL_S7")
    A("s_cmp_lg_u32 s60, 0")
    A("s_cbranch_scc1 LL_WAITGO")
    A("v_mov_b32 v96, 0")
    A("s_bfe_u32 s64, s2, 0x10004")
    A("s_lshl_b32 s64, s64, 5")
    A("s_and_b32 s65, s2, 15")
    A("s_add_u32 s64, s64, s65")
    A("s_bfe_u32 s65, s2, 0x10005")
    A("s_lshl_b32 s65, s65, 4")
    A("s_add_u32 s64, s64, s65")
    A("s_lshl_b32 s64, s64, 7")
    A(f"s_add_u32 s64, s64, {QCNT:#x}")
    spin3(A, "LL_POLL", [0, 1, 2], 96, "s64", 48)
    A(f"v_mov_b32 v96, {SW}")
    A("v_mov_b32 v97, 1")
    A("ds_write_b32 v96, v97 offset:4")
    A("s_branch LL_GO")
    A.lab("LL_WAITGO")
    A(f"v_mov_b32 v96, {SW}")
    A(f"s_mov_b32 s70, {SPIN_MAX*16}")
    A.lab("LL_WG1")
    A("ds_read_b32 v97, v96 offset:4")
    A("s_waitcnt lgkmcnt(0)")
    A("v_readfirstlane_b32 s65, v97")
    A("s_cmp_lg_u32 s65, 0")
    A("s_cbranch_scc1 LL_GO")
    A("s_sleep 1")
    A("s_sub_u32 s70, s70, 1")
    A("s_cmp_lg_u32 s70, 0")
    A("s_cbranch_scc1 LL_WG1")
    A.lab("LL_GO")
    stamp(A, 4)
    A("s_and_b32 s64, s2, 31")
    A("s_lshl_b32 s64, s64, 16")
    A("s_lshl_b32 s65, s60, 11")
    A("s_add_u32 s64, s64, s65")
    A("s_lshr_b32 s66, s2, 5")
    A("s_lshl_b32 s66, s66, 13")
    A("s_add_u32 s66, s66, s64")
    A(f"s_add_u32 m0, s65, {QOFF}")
    A(f"s_add_u32 s67, s64, {KF:#x}")
    A(f"buffer_load_dwordx4 v95, {sr(S_WS,4)}, s66 offen sc1 lds")
    A(f"buffer_load_dwordx4 v95, {sr(S_WS,4)}, s66 offen offset:1024 sc1 lds")
    A(f"s_add_u32 s68, s64, {VF:#x}")
    for c in range(2):
        A(f"s_add_u32 m0, s65, {c*8192}")
        A("s_nop 0")
        A(f"buffer_load_dwordx4 v95, {sr(S_WS,4)}, s67 offen sc1 lds")
        A(f"buffer_load_dwordx4 v95, {sr(S_WS,4)}, s67 offen offset:1024 sc1 lds")
        A(f"s_add_u32 m0, s65, {65536 + c*8192}")
        A("s_add_u32 s67, s67, 8192")
        A(f"buffer_load_dwordx4 v95, {sr(S_WS,4)}, s68 offen sc1 lds")
        A(f"buffer_load_dwordx4 v95, {sr(S_WS,4)}, s68 offen offset:1024 sc1 lds")
        A("s_add_u32 s68, s68, 8192")
    A("s_cmp_eq_u32 s23, 0")
    A("s_cbranch_scc1 L_P0")
    A("s_waitcnt vmcnt(10)")
    side_combine(A)


def down_loads(A, slot):
    A(f"buffer_load_dwordx4 {vr(DH[slot],4)}, v{L16}, {sr(S_T1,4)}, s84 offen sc1")
    A(f"buffer_load_dwordx4 {vr(DW_[slot],4)}, v{L16}, {sr(S_T2,4)}, s85 offen sc1")
    A(f"buffer_load_dwordx4 {vr(DW_[slot]+4,4)}, v{L16}, {sr(S_T2,4)}, s85 offen offset:1024 sc1")
    A("s_add_u32 s84, s84, 1024")
    A("s_add_u32 s85, s85, 2048")

def kv_piece(k):
    if k & 1: return ["s_add_u32 m0, s95, 65536", "s_add_u32 s94, s94, 8192",
                      f"buffer_load_dwordx4 v{L16}, {sr(S_WS,4)}, s60 offen sc1 lds", "s_add_u32 s95, s95, 8192"]
    return ["s_mov_b32 m0, s95", f"s_add_u32 s60, s94, {VF-KF:#x}", f"buffer_load_dwordx4 v{L16}, {sr(S_WS,4)}, s94 offen sc1 lds"]
HPOLL = lambda: apoll(101, 100, "s75", 15)

def attn_body(A, mode):
    hs = 0
    for t in range(8):
        p = t & 1
        down = mode in "BC" or (mode == "2" and t >= 4)
        cur, prv = S_[p], S_[1-p]
        ex = lambda a, b: [A(f"v_exp_f32 v{cur+i}, v{cur+i}") for i in range(a, b)]
        if p == 0: A(f"s_setprio {3 - (t >> 1)}")
        A("s_waitcnt lgkmcnt(3)")
        ex(0, 2)
        if not (mode == "0" and t == 0):
            A(f"v_smfmac_f32_32x32x32_bf16 {vr(O_,16)}, {vr(V1[1-p],4)}, {vr(prv+8,8)}, v{IDX}")
        if mode == "0" and t < 6: A.many(kv_piece(2*t))
        ex(2, 6 if down else 7)
        A(f"v_mfma_f32_32x32x16_bf16 {vr(prv,16)}, {vr(KB[1-p],4)}, {vr(Q_,4)}, {vr(C_,16)}")
        A(f"ds_read_b128 {vr(KB[1-p],4)}, v{KA} offset:{(t+3)*1024}")
        if mode == "0" and t < 6: A.many(kv_piece(2*t+1))
        ex(6 if down else 7, 10 if down else 12)
        A(f"v_smfmac_f32_32x32x32_bf16 {vr(O_,16)}, {vr(V0[p],4)}, {vr(cur,8)}, v{IDX}")
        A("s_mov_b64 exec, s[80:81]")
        A(f"ds_read_b128 {vr(V0[p],4)}, v{VA} offset:{(t+2)*1024}")
        A(f"ds_read_b128 {vr(V1[1-p],4)}, v{VA} offset:{(t+1)*1024+512}")
        A("s_mov_b64 exec, -1")
        if mode == "0":
            for _ in range(OPT["hplan"][t]):
                A(f"buffer_store_dwordx4 {vr(HREG+4*hs,4)}, v249, {sr(S_WS,4)}, s{HOFF[hs]} offen sc1"); hs += 1
        if mode == "2" and t < 4: down_loads(A, (t + 2) & 3)
        if mode == "C":
            if t == 0: A(f"buffer_load_dwordx4 {vr(XV,4)}, v252, {sr(S_X,4)}, s88 offen")
            for i in range(2):
                A(f"buffer_load_dwordx4 {vr(WO+8*t+4*i,4)}, v{L16}, {sr(S_WS,4)}, s90 offen offset:{(2*p+i)*1024} sc1")
            if p: A("s_add_u32 s90, s90, 4096")
        if down:
            ex(10, 14)
            sl = t >> 1
            if p == 0: A(f"s_waitcnt vmcnt({12 + sl if mode == 'C' else 9})")
            cc = "0" if (mode == "2" and t < 6) else vr(DACC+16*p,16)
            A(f"v_mfma_f32_32x32x16_bf16 {vr(DACC+16*p,16)}, {vr(DW_[sl]+4*p,4)}, {vr(DH[sl],4)}, {cc}")
            if mode != "C" and p == 1: down_loads(A, sl)
            ex(14, 16)
        else:
            ex(12, 16)
        if mode == "1" and t == OPT["sigt"]:
            A("s_waitcnt vmcnt(0)")
            A("s_barrier")
            A("s_cmp_lg_u32 s14, 0")
            A("s_cbranch_scc1 L_NOSIG")
            A("s_mov_b64 exec, 0xff")
            A("v_mov_b32 v97, 1")
            A(f"v_lshlrev_b32 v96, 10, v{L}")
            A(f"buffer_atomic_add v97, v96, {sr(S_WS,4)}, s91 offen")
            A("s_mov_b64 exec, -1")
            A.lab("L_NOSIG")
        if mode == "1" and t == 6:
            A("s_cmp_lg_u32 s22, 0")
            A("s_cbranch_scc1 L_NOPQ")
            A(f"v_lshlrev_b32 v100, 7, v{L}")
            A.many(HPOLL())
            A.lab("L_NOPQ")
        if mode == "1" and t == 7:
            stamp(A, 8)
            A("s_cmp_lg_u32 s22, 0")
            A("s_cbranch_scc1 L_HPOLL_OK")
            spin(A, "L_HPOLL", HPOLL(), acmp(101, 40, 15), first_loaded=True)
            A("s_barrier")
            stamp(A, 9)
    if mode == "0": assert hs == 9
    if mode != "C":
        A(f"v_add_u32 v{KA}, 8192, v{KA}")
        A(f"v_add_u32 v{VA}, 8192, v{VA}")
        A("s_add_u32 s83, s83, 1")

def late_init(A):
    A(f"v_lshlrev_b32 v{L16}, 4, v{L}")
    A(f"v_mov_b32 v{IDX}, 0xdddd")
    A(f"v_and_b32 v98, 15, v{L}")
    A("v_lshlrev_b32 v98, 4, v98")
    A(f"v_lshrrev_b32 v99, 5, v{L}")
    A("v_lshl_or_b32 v98, v99, 8, v98")
    A("v_add_u32 v98, 65536, v98")
    A(f"v_add_u32 v99, s15, v{L16}")
    A(f"v_add_u32 v102, s16, v{L16}")
    A(f"v_add_u32 v103, s17, v{L16}")
    A(f"v_mov_b32 v{KA}, v{L16}")
    A(f"v_mov_b32 v{VA}, v98")
    A("v_mov_b32 v100, 0xff800000")
    A("v_mov_b32 v101, 0xff800000")

def gen_attinit(A):
    A.lab("L_ATTINIT")
    for r in range(O_, O_+32): A(f"v_mov_b32 v{r}, 0")
    A("s_mov_b32 s80, 0x00110000")
    A("s_mov_b32 s81, 0x00110000")
    A("s_mov_b64 exec, s[80:81]")
    for r in range(V0[0], V0[0]+16): A(f"v_mov_b32 v{r}, 0x3f803f80")
    A("s_mov_b64 exec, -1")
    A("s_mov_b32 s80, 0xffff")
    A("s_mov_b32 s81, 0xffff")
    A("s_mov_b32 s78, 1")
    A(f"s_mov_b32 s79, {f2u(-OPT['bias']):#x}")
    A("s_mov_b32 s82, 1")
    A(f"v_lshrrev_b32 v251, 5, v{L}")
    A(f"v_and_b32 v252, 31, v{L}")
    A("v_lshlrev_b32 v252, 10, v252")
    A("v_lshl_add_u32 v252, v251, 4, v252")
    A("s_lshl_b32 s15, s22, 10")
    A(f"s_add_u32 s15, s15, {QOFF}")
    A("s_and_b32 s91, s20, 3")
    A("s_lshl_b32 s91, s91, 7")
    A(f"s_add_u32 s91, s91, {QFLAG+4*128:#x}")
    A("s_cmp_lt_u32 s21, 6")
    A("s_cselect_b32 s14, 1, s22")
    A("s_and_b32 s75, s2, 7")
    A("s_lshl_b32 s75, s75, 10")
    A(f"s_add_u32 s75, s75, {QFLAG+4*128:#x}")
    A("s_lshr_b32 s61, s2, 5")
    A("s_lshl_b32 s61, s61, 3")
    A("s_add_u32 s61, s61, s22")
    A("s_lshl_b32 s61, s61, 5")
    A("s_and_b32 s62, s2, 31")
    A("s_add_u32 s61, s61, s62")
    A("s_lshr_b32 s12, s61, 3")
    A("s_lshl_b32 s12, s12, 7")
    A(f"s_add_u32 s12, s12, {OFLAG:#x}")
    A("s_lshl_b32 s11, s61, 10")
    A(f"s_add_u32 s11, s11, {OF:#x}")
    A("s_and_b32 s94, s2, 31")
    A("s_lshl_b32 s94, s94, 16")
    A("s_lshl_b32 s95, s22, 10")
    A("s_add_u32 s95, s95, 16384")
    A("s_add_u32 s94, s94, s95")
    A(f"s_add_u32 s94, s94, {KF:#x}")
    A("s_and_b32 s67, s2, 7")
    A("s_bfe_u32 s61, s2, 0x20003")
    A("s_lshl_b32 s67, s67, 2")
    A("s_add_u32 s67, s67, s61")
    A("s_lshr_b32 s61, s2, 5")
    A("s_and_b32 s62, s22, 1")
    A("s_lshl_b32 s67, s67, 1")
    A("s_add_u32 s67, s67, s62")
    A("s_lshr_b32 s62, s22, 1")
    A("s_mul_i32 s63, s62, 22")
    A("s_cmp_eq_u32 s62, 3")
    A("s_cselect_b32 s63, 65, s63")
    A("s_cmp_lt_u32 s62, 2")
    A("s_cselect_b32 s64, 22, 21")
    A(f"s_mul_i32 s65, s67, {NFU}")
    A("s_add_u32 s65, s65, s63")
    A("s_lshl_b32 s65, s65, 10")
    A(f"s_add_u32 s65, s65, {HF:#x}")
    A(f"s_add_u32 s{S_T1}, s18, s65")
    A(f"s_addc_u32 s{S_T1+1}, s19, 0")
    A(f"s_lshl_b32 s{S_T1+2}, s64, 10")
    A(f"s_mov_b32 s{S_T1+3}, 0x00020000")
    A(f"s_mul_i32 s65, s61, {NFU}")
    A("s_add_u32 s65, s65, s63")
    A("s_lshl_b32 s65, s65, 11")
    A(f"s_add_u32 s65, s65, {WDF:#x}")
    A(f"s_add_u32 s{S_T2}, s18, s65")
    A(f"s_addc_u32 s{S_T2+1}, s19, 0")
    A(f"s_lshl_b32 s{S_T2+2}, s64, 11")
    A(f"s_mov_b32 s{S_T2+3}, 0x00020000")
    A("s_mov_b32 s84, 0")
    A("s_mov_b32 s85, 0")
    A("s_lshl_b32 s90, s61, 16")
    A("s_lshl_b32 s66, s62, 14")
    A("s_add_u32 s90, s90, s66")
    A(f"s_add_u32 s90, s90, {WOF:#x}")
    A("s_lshl_b32 s87, s67, 15")
    A("s_lshl_b32 s66, s62, 13")
    A("s_add_u32 s87, s87, s66")
    A(f"s_add_u32 s87, s87, {OF:#x}")
    A("s_lshl_b32 s88, s67, 15")
    A("s_lshl_b32 s66, s61, 7")
    A("s_add_u32 s88, s88, s66")
    A("s_lshl_b32 s66, s62, 5")
    A("s_add_u32 s88, s88, s66")
    A(f"s_sub_u32 s13, s87, {OF:#x}")
    A("s_lshr_b32 s13, s13, 6")
    A(f"s_add_u32 s13, s13, {OFLAG:#x}")
    red_addr(A)
    A("s_setpc_b64 s[76:77]")

def gen_attn(A):
    A("s_waitcnt lgkmcnt(0)")
    late_init(A)
    A.lab("L_P0")
    stamp(A, 5)
    A("s_waitcnt vmcnt(0)")
    A("s_barrier")
    stamp(A, 6)
    A(f"ds_read_b128 {vr(Q_,4)}, v99")
    A.lab("L_MAXLOOP")
    A(f"ds_read_b128 {vr(KB[0],4)}, v{KA}")
    A(f"ds_read_b128 {vr(KB[1],4)}, v{KA} offset:1024")
    A("s_mov_b64 exec, s[80:81]")
    A(f"ds_read_b128 {vr(V0[0],4)}, v{VA}")
    A("s_mov_b64 exec, -1")
    A("s_waitcnt lgkmcnt(2)")
    A(f"v_mfma_f32_32x32x16_bf16 {vr(S_[0],16)}, {vr(KB[0],4)}, {vr(Q_,4)}, 0")
    A("s_waitcnt lgkmcnt(1)")
    A(f"v_mfma_f32_32x32x16_bf16 {vr(C_,16)}, {vr(KB[1],4)}, {vr(Q_,4)}, 0")
    A(f"v_subrev_u32 v{KA}, 2048, v{KA}")
    A("s_nop 9")
    for i in range(8): A(f"v_max3_f32 v100, v{2*i}, v{2*i+1}, v100")
    for i in range(8): A(f"v_max3_f32 v101, v{C_+2*i}, v{C_+2*i+1}, v101")
    A("s_sub_u32 s78, s78, 1")
    A("s_cmp_lg_u32 s78, 0")
    A("s_cbranch_scc1 L_MAXLOOP")
    A("v_max_f32 v100, v100, v101")
    A(f"v_mov_b32 v{KA}, v{L16}")
    A("v_mov_b32 v101, v100")
    A("s_nop 1")
    A("v_permlane32_swap_b32 v100, v101")
    A("s_nop 1")
    A("v_max_f32 v100, v100, v101")
    for r in range(16): A(f"v_sub_f32 v{C_+r}, s79, v100")
    A("s_nop 1")
    A(f"v_mfma_f32_32x32x16_bf16 {vr(S_[0],16)}, {vr(KB[0],4)}, {vr(Q_,4)}, {vr(C_,16)}")
    A(f"ds_read_b128 {vr(KB[0],4)}, v{KA} offset:2048")
    A("s_mov_b64 exec, s[80:81]")
    A(f"ds_read_b128 {vr(V0[1],4)}, v{VA} offset:1024")
    A(f"ds_read_b128 {vr(V1[0],4)}, v{VA} offset:512")
    A("s_mov_b64 exec, -1")
    A("s_mov_b32 s83, 0")
    stamp(A, 7)
    A("s_nop 4")
    A("s_cmp_eq_u32 s82, 0")
    A("s_cbranch_scc1 L_LOOPP")
    attn_body(A, "0")
    attn_body(A, "1")
    attn_body(A, "2")
    A.lab("L_LOOPB")
    attn_body(A, "B")
    if OPT["prof"] and OPT["bstamp"]:
        A("s_memtime s[96:97]")
        A("s_add_u32 m0, s83, 17")
        A("s_waitcnt lgkmcnt(0)")
        A("v_writelane_b32 v255, s96, m0")
    A("s_cmp_lt_u32 s83, 7")
    A("s_cbranch_scc1 L_LOOPB")
    attn_body(A, "C")
    A.lab("L_ATT_DONE")
    A("s_waitcnt lgkmcnt(0)")
    stamp(A, 10)
    A(f"v_smfmac_f32_32x32x32_bf16 {vr(O_,16)}, {vr(V1[1],4)}, {vr(S_[1]+8,8)}, v{IDX}")
    A("s_setprio 3")
    A(f"v_mov_b32 v96, {f2u(2.0**90):#x}")
    A(f"v_mov_b32 v97, {f2u(2.0**120):#x}")
    A(f"v_mov_b32 v99, {f2u(2.0**-100):#x}")
    A("s_nop 7")
    A(f"v_rcp_f32 v101, v{O_+8}")
    A("s_nop 0")
    A(f"v_mul_f32 v101, {f2u(2.0**-VSH):#x}, v101")
    for r in range(8): A(f"v_mul_f32 v{r}, v{O_+r}, v101")
    for i in range(4): A(f"v_cvt_pk_bf16_f32 v{8+i}, v{2*i}, v{2*i+1}")
    A(f"buffer_store_dwordx4 {vr(8,4)}, v{L16}, {sr(S_WS,4)}, s11 offen sc1")
    A("s_cmp_eq_u32 s82, 0")
    A("s_cbranch_scc1 L_FIN")
    A(f"v_add_f32 v100, abs(v{O_}), abs(v{O_+1})")
    for r in range(2, 8): A(f"v_add_f32 v100, v100, abs(v{O_+r})")
    A(f"v_cmp_nlt_f32 s[62:63], v{O_+8}, v96")
    A("v_cmp_nlt_f32 s[64:65], v100, v97")
    A("v_cmp_lt_f32 vcc, v100, v99")
    A("s_or_b64 s[62:63], s[62:63], s[64:65]")
    A("s_or_b64 s[62:63], s[62:63], vcc")
    A("s_cmp_eq_u64 s[62:63], 0")
    if not OPT["force_fallback"]: A("s_cbranch_scc1 L_FIN")
    A("s_mov_b32 s78, 32")
    A("s_mov_b32 s79, 0")
    A("s_mov_b32 s82, 0")
    A(f"v_mov_b32 v{VA}, v98")
    A("v_mov_b32 v100, 0xff800000")
    A("v_mov_b32 v101, 0xff800000")
    for r in range(16): A(f"v_mov_b32 v{O_+r}, 0")
    for r in range(8, 16): A(f"v_mov_b32 v{S_[1]+r}, 0")
    A(f"v_add_u32 v{KA}, {62*1024}, v{L16}")
    A("s_waitcnt vmcnt(0)")
    A("s_branch L_MAXLOOP")
    A.lab("L_FIN")

def red_addr(A):
    A("s_and_b32 s62, s22, 1")
    A("s_lshr_b32 s63, s22, 1")
    A("s_lshl_b32 s62, s62, 15")
    A("s_lshl_b32 s64, s63, 11")
    A("s_add_u32 s64, s64, s62")
    A("s_mov_b32 s16, s64")
    A("s_lshl_b32 s64, s63, 13")
    A("s_add_u32 s64, s64, s62")
    A("s_mov_b32 s17, s64")
def red_write(A, acc):
    for q in range(4):
        for hf in range(2):
            A(f"ds_write_b128 v102, {vr(acc+8*q+4*hf,4)} offset:{q*8192 + hf*1024}")
def red_read(A, dst):
    for s in range(4):
        for hf in range(2):
            A(f"ds_read_b128 {vr(dst+8*s+4*hf,4)}, v103 offset:{s*2048 + hf*1024}")
def red_sum(A, dst):
    for r in range(8):
        A(f"v_add_f32 v{dst+r}, v{dst+r}, v{dst+8+r}")
        A(f"v_add_f32 v{dst+16+r}, v{dst+16+r}, v{dst+24+r}")
    for r in range(8): A(f"v_add_f32 v{dst+r}, v{dst+r}, v{dst+16+r}")
def round_bf16(A, regs, tmp):
    for i in range(4): A(f"v_cvt_pk_bf16_f32 v{tmp+i}, v{regs+2*i}, v{regs+2*i+1}")
    for i in range(4):
        A(f"v_lshlrev_b32 v{regs+2*i}, 16, v{tmp+i}")
        A(f"v_and_b32 v{regs+2*i+1}, 0xffff0000, v{tmp+i}")

def gen_final(A):
    A("v_mov_b32 v96, 1")
    A("v_mov_b32 v97, 0")
    A("s_waitcnt vmcnt(0)")
    A("s_mov_b64 exec, 1")
    A(f"buffer_atomic_add v96, v97, {sr(S_WS,4)}, s12 offen")
    A("s_mov_b64 exec, -1")
    stamp(A, 11)
    A.many(apoll(32, 97, "s13", 1))
    A("s_barrier")
    red_write(A, DACC)
    A("s_waitcnt lgkmcnt(0)")
    A("s_barrier")
    G = DACC; T = 136
    red_read(A, G)
    spin3(A, "L_OPOLL", [32, 33, 34], 97, "s13", 8, primed=1)
    stamp(A, 12)
    for s in range(8):
        A(f"buffer_load_dwordx4 {vr(4*s,4)}, v{L16}, {sr(S_WS,4)}, s87 offen offset:{(s&3)*1024} sc1")
        if s == 3: A("s_add_u32 s87, s87, 4096")
    A("v_add_u32 v102, 65536, v102")
    A("v_add_u32 v103, 65536, v103")
    for i in range(4):
        A(f"v_lshlrev_b32 v{144+2*i}, 16, v{XV+i}")
        A(f"v_and_b32 v{145+2*i}, 0xffff0000, v{XV+i}")
    A("s_waitcnt lgkmcnt(0)")
    B = Asm()
    red_sum(B, G)
    round_bf16(B, G, T)
    for r in range(8): B(f"v_mul_f32 v{T+r}, {f2u(-LOG2E):#x}, v{G+r}")
    for r in range(8): B(f"v_exp_f32 v{T+r}, v{T+r}")
    for r in range(8): B(f"v_add_f32 v{T+r}, 1.0, v{T+r}")
    for r in range(8): B(f"v_rcp_f32 v{T+r}, v{T+r}")
    for r in range(8): B(f"v_mul_f32 v{G+r}, v{G+r}, v{T+r}")
    round_bf16(B, G, T)
    gw = [x.strip() for x in B.l]
    A.many(gw[:OPT["gpre"]]); gw = gw[OPT["gpre"]:]
    ACC = 104
    for s in range(8):
        A(f"s_waitcnt vmcnt({7-s})")
        for nt in range(2):
            c = "0" if s == 0 else vr(ACC+16*nt,16)
            A(f"v_mfma_f32_32x32x16_bf16 {vr(ACC+16*nt,16)}, {vr(WO+8*s+4*nt,4)}, {vr(4*s,4)}, {c}")
            A.many(gw[:4]); gw = gw[4:]
    A.many(gw)
    stamp(A, 13)
    A("s_nop 11")
    red_write(A, ACC)
    A("s_waitcnt lgkmcnt(0)")
    A("s_barrier")
    red_read(A, 0)
    A("s_waitcnt lgkmcnt(0)")
    red_sum(A, 0)
    round_bf16(A, 0, T)
    for r in range(8): A(f"v_mul_f32 v{r}, v{r}, v{G+r}")
    for i in range(4): A(f"v_cvt_pk_bf16_f32 v{T+i}, v{2*i}, v{2*i+1}")
    A("s_nop 1")
    A(f"v_permlane32_swap_b32 v{T}, v{T+2}")
    A(f"v_permlane32_swap_b32 v{T+1}, v{T+3}")
    A("s_nop 1")
    for i in range(4):
        A(f"v_lshlrev_b32 v{2*i}, 16, v{T+i}")
        A(f"v_and_b32 v{2*i+1}, 0xffff0000, v{T+i}")
    for r in range(8): A(f"v_add_f32 v{r}, v{r}, v{144+r}")
    for i in range(4): A(f"v_cvt_pk_bf16_f32 v{T+i}, v{2*i}, v{2*i+1}")
    A(f"buffer_store_dwordx4 {vr(T,4)}, v252, {sr(S_OUT,4)}, s88 offen")
    if OPT["fixdur"]:
        A.lab("L_FIXDUR")
        A("s_memrealtime s[96:97]")
        A("s_waitcnt lgkmcnt(0)")
        A("s_sub_u32 s96, s96, s100")
        A(f"s_cmp_lt_u32 s96, {OPT['fixdur']}")
        A("s_cbranch_scc1 L_FIXDUR")
    if OPT["prof"]:
        stamp(A, 14)
        A(f"s_add_u32 s{S_T1}, s18, {PROF_OFF:#x}")
        A(f"s_addc_u32 s{S_T1+1}, s19, 0")
        A(f"s_mov_b32 s{S_T1+2}, 0x100000")
        A(f"s_mov_b32 s{S_T1+3}, 0x00020000")
        A("s_lshl_b32 s60, s2, 3")
        A("s_add_u32 s60, s60, s22")
        A("s_lshl_b32 s60, s60, 8")
        A(f"v_lshlrev_b32 v0, 2, v{L}")
        A(f"buffer_store_dword v255, v0, {sr(S_T1,4)}, s60 offen")
        if OPT["dbgout"]:
            A("s_cmp_lg_u32 s2, 200")
            A("s_cbranch_scc1 L_END")
            A("s_cmp_lg_u32 s22, 0")
            A("s_cbranch_scc1 L_END")
            A("v_readlane_b32 s61, v255, 32")
            A("v_readlane_b32 s63, v255, 0")
            A("v_mov_b32 v1, 0")
            A("s_mov_b64 exec, 1")
            for n, i in enumerate((2, 3, 4, 6, 9, 10, 12, 14)):
                A(f"v_readlane_b32 s62, v255, {32+i}")
                A("s_sub_u32 s62, s62, s61")
                A("v_mov_b32 v2, s62")
                A(f"buffer_store_dword v2, v1, {sr(S_DBG,4)}, 0 offen offset:{32+4*n}")
                A("s_nop 1")
            A("v_readlane_b32 s62, v255, 14")
            A("s_sub_u32 s62, s62, s63")
            A("v_mov_b32 v2, s62")
            A(f"buffer_store_dword v2, v1, {sr(S_DBG,4)}, 0 offen offset:28")

def gen_hooks(A):
    gen_attinit(A)
    A.lab("L_LOOPP")
    attn_body(A, "P")
    A("s_cmp_lt_u32 s83, 8")
    A("s_cbranch_scc1 L_LOOPP")
    A("s_branch L_ATT_DONE")
    A.lab("L_CODE_END")

def main(out):
    hdr = open(f"cdna_kernels/{NAME}.s.ref").read().split("\n")
    head = [l for l in hdr if l.startswith(";") and "@launch" not in l]
    head += [f"; @launch grid=(256,1,1) block=(512,1,1) lds={LDS_BYTES}"]
    A = Asm()
    d = gen(A)
    open(out, "w").write("\n".join(head) + '\n.amdgcn_target "amdgcn-amd-amdhsa--gfx950"\n' + A.text() + d)

if __name__ == "__main__":
    for a in sys.argv[2:]:
        k, _, v = a.partition("=")
        OPT[k] = eval(v) if v else True
    main(sys.argv[1] if len(sys.argv) > 1 else f"cdna_kernels/{NAME}.s")
```

```python
import sys, struct

NAME = "recurrent_scan__softmax_full_mha__glu_gated_geglu__prompt"
MB = 1 << 20
QF, KF, VF, OF, WOF, WDF, HF, FLAGS = 0, 2*MB, 4*MB, 6*MB, 8*MB, 9*MB, 11*MB, 17*MB
WS_BYTES = 18*MB
NFU = 86
LOG2E = 1.4426950408889634
def f2u(x): return struct.unpack("<I", struct.pack("<f", x))[0]

OPT = dict(prof=False, bias=98.0, force_fallback=False, sleep=2, barpos=1, itstamp=False, hplan=[1,1,1,1,1,1,2,1], sigt=1, psleep=3, gpre=24, wearly=False, peel=False, wl1=0, spf=False, prefetch=False, dmaevery=12, dbgout=False, fixdur=0, codepf=True, noload=False, bstamp=False, pace=None, wpf=[], exp='', w64=False, lprio=0, enc=-1, encrole='', cmap=True, prio='ramp2')
PROF_OFF = 24*MB
SPIN_MAX = 20000
VSH = 32

class Asm:
    def __init__(self): self.l = []
    def __call__(self, s): self.l.append(s if s.endswith(":") else "    " + s)
    def many(self, ss):
        for s in ss: self(s)
    def lab(self, s): self.l.append(s + ":")
    def raw(self, s): self.l.append(s)
    def text(self): return "\n".join(self.l) + "\n"
def vr(a, n): return f"v[{a}:{a+n-1}]"
def sr(a, n): return f"s[{a}:{a+n-1}]"
def srd(A, d, base, nbytes):
    A(f"s_mov_b32 s{d}, s{base}")
    A(f"s_mov_b32 s{d+1}, s{base+1}")
    A(f"s_mov_b32 s{d+2}, {nbytes:#x}")
    A(f"s_mov_b32 s{d+3}, 0x00020000")
def csel(A, d, a, b):
    A(f"s_mov_b32 s{d}, {b:#x}")
    A(f"s_cselect_b32 s{d}, {a:#x}, s{d}")
ROLE = [""]
def stamp(A, i):
    if OPT["enc"] == i and (not OPT["encrole"] or ROLE[0] in OPT["encrole"]):
        A("s_memrealtime s[100:101]")
        A("s_waitcnt lgkmcnt(0)")
    if not OPT["prof"]: return
    A("s_memtime s[96:97]")
    A("s_memrealtime s[98:99]")
    A("s_waitcnt lgkmcnt(0)")
    A(f"v_writelane_b32 v255, s96, {i}")
    A(f"v_writelane_b32 v255, s98, {32+i}")

WR = 32768
WSL = 18560
UPOFF = 9344
QOFF = 135168
SCRATCH = 147456
SW = 163584
LDS_BYTES = 163840
OFLAG = FLAGS
QFLAG = OFLAG + 256*128
QCNT = QFLAG + 64*128
NZ = 6
S_X, S_W, S_WS, S_DBG, S_OUT, S_T1, S_T2 = 24, 28, 32, 36, 40, 44, 48
L = 254
S_ = [0, 16]; C_ = 32; DACC = 48; Q_ = 80; KB = [84, 88]; O_ = 144; V0 = [160, 164]; V1 = [168, 172]
IDX, KA, VA, L16 = 92, 93, 94, 95
DH = [104, 116, 128, 140]; DW_ = [108, 120, 132, 176]
WO = 184; XV = 248

def spin(A, tag, loads, cmp_lines, first_loaded=False):
    A(f"s_mov_b32 s70, {SPIN_MAX}")
    if not first_loaded: A.many(loads)
    A.lab(tag)
    A("s_waitcnt vmcnt(0)")
    A.many(cmp_lines)
    A(f"s_cbranch_scc1 {tag}_OK")
    A(f"s_sleep {OPT['sleep']}")
    A.many(loads)
    A("s_sub_u32 s70, s70, 1")
    A("s_cmp_lg_u32 s70, 0")
    A(f"s_cbranch_scc1 {tag}")
    A.lab(tag + "_OK")
def spin3(A, tag, regs, voff, soff, n, primed=0):
    A(f"s_mov_b32 s70, {SPIN_MAX}")
    for r in regs[primed:2]:
        A.many(apoll(r, voff, soff, 1))
        A(f"s_sleep {OPT['psleep']}")
    A.lab(tag)
    for k in range(3):
        A.many(apoll(regs[(k+2) % 3], voff, soff, 1))
        A("s_waitcnt vmcnt(2)")
        A.many(acmp(regs[k], n, 1))
        A(f"s_cbranch_scc1 {tag}_OK")
        A(f"s_sleep {OPT['psleep']}")
    A("s_sub_u32 s70, s70, 1")
    A("s_cmp_lg_u32 s70, 0")
    A(f"s_cbranch_scc1 {tag}")
    A.lab(tag + "_OK")
def apoll(dst, voff, soff, mask):
    return [f"v_mov_b32 v{dst}, 0", f"s_mov_b64 exec, {mask}",
            f"buffer_atomic_add v{dst}, v{voff}, {sr(S_WS,4)}, {soff} offen sc0", "s_mov_b64 exec, -1"]
def acmp(v, n, mask):
    return [f"v_cmp_eq_u32 vcc, {n}, v{v}", f"s_cmp_eq_u64 vcc, {mask}"]
ALL1 = lambda v: [f"v_cmp_ne_u32 vcc, 1, v{v}", "s_cmp_eq_u64 vcc, 0"]

def last_wave_signals(A, tag, off, last):
    A(f"v_mov_b32 v96, {SW}")
    A("v_mov_b32 v97, 1")
    A("s_mov_b64 exec, 1")
    A(f"ds_add_rtn_u32 v100, v96, v97 offset:{off}")
    A("s_waitcnt lgkmcnt(0)")
    A("s_mov_b64 exec, -1")
    A("v_readfirstlane_b32 s60, v100")
    A(f"s_cmp_lg_u32 s60, {last}")
    A(f"s_cbranch_scc1 {tag}")
    A("s_mov_b32 exec_hi, 0")
    A(f"v_lshlrev_b32 v96, 7, v{L}")
    A(f"buffer_atomic_add v97, v96, {sr(S_WS,4)}, s91 offen")
    A("s_mov_b64 exec, -1")
    A.lab(tag)

def gen(A):
    name = NAME + "_kernel"
    A.raw(".text"); A.raw(f".globl {name}"); A.raw(".p2align 8"); A.raw(f".type {name},@function")
    A.lab(name)
    A("s_cmp_ge_u32 s2, 256")
    A("s_cbranch_scc1 L_END")
    if OPT["fixdur"]: A("s_memrealtime s[100:101]")
    A("s_load_dwordx4 s[4:7], s[0:1], 0")
    A("s_load_dwordx2 s[8:9], s[0:1], 16")
    A("s_load_dwordx4 s[12:15], s[0:1], 32")
    A("s_load_dwordx4 s[52:55], s[0:1], 48")
    A("s_load_dwordx4 s[56:59], s[0:1], 64")
    if OPT["prof"]: A("v_mov_b32 v255, 0")
    stamp(A, 0)
    A("s_getpc_b64 s[60:61]")
    A.lab("L_PC")
    A("s_lshr_b32 s23, s2, 3")
    A("s_lshl_b32 s62, s23, 11")
    A("v_lshl_add_u32 v250, v0, 7, s62")
    A("v_cmp_gt_u32 s[62:63], 16, v0")
    A("v_cmp_gt_u32 vcc, L_CODE_END-L_PC-4, v250")
    A("v_lshrrev_b32 v252, 6, v0")
    A(f"v_and_b32 v{L}, 63, v0")
    A("s_and_b64 exec, vcc, s[62:63]")
    A("s_cbranch_execz L_NOPF")
    A("v_mov_b32 v251, s61")
    A("v_add_co_u32 v250, vcc, s60, v250")
    A("v_addc_co_u32 v251, vcc, 0, v251, vcc")
    A("global_load_dword v253, v[250:251], off")
    A.lab("L_NOPF")
    A("s_mov_b64 exec, -1")
    A("v_readfirstlane_b32 s22, v252")
    T = TL
    A(f"v_lshrrev_b32 v{T}, 3, v{L}")
    A(f"v_and_b32 v{T+1}, 7, v{L}")
    A(f"v_lshlrev_b32 v{VX}, 10, v{T}")
    A(f"v_lshl_add_u32 v{VX}, v{T+1}, 4, v{VX}")
    A("s_bfe_u32 s20, s2, 0x20001")
    A("s_lshl_b32 s20, s20, 2")
    A("s_and_b32 s60, s23, 3")
    A("s_add_u32 s20, s20, s60")
    A("s_cmp_lt_u32 s22, 4")
    A("s_cbranch_scc1 L_COMMON")
    loader_first(A)
    A.lab("L_COMMON")
    A("s_lshr_b32 s62, s23, 2")
    A("s_and_b32 s63, s2, 1")
    A("s_lshl_b32 s21, s62, 1")
    A("s_add_u32 s21, s21, s63")
    A("s_mul_i32 s63, s63, 5")
    A("s_add_u32 s63, s63, s62")
    A("s_add_u32 s63, s63, 3")
    A("s_cmp_ge_u32 s62, 3")
    A("s_cselect_b32 s21, s63, s21")
    A("s_waitcnt lgkmcnt(0)")
    srd(A, S_X, 4, 2048*512*2)
    A("s_mov_b64 s[16:17], s[52:53]")
    A("s_mov_b64 s[18:19], s[58:59]")
    srd(A, S_WS, 58, WS_BYTES)
    srd(A, S_DBG, 56, 256)
    srd(A, S_OUT, 54, 2048*512*2)
    srd(A, S_T1, 58, 0)
    srd(A, S_T2, 58, 0)
    for r in HOFF: A(f"s_mov_b32 s{r}, 0x7fff0000")
    A("s_cmp_lt_u32 s22, 4")
    A("s_cbranch_scc1 L_COMPUTE")
    gen_loader(A)
    A("s_branch L_P0")
    A.lab("L_COMPUTE")
    gen_init(A)
    A("s_cmp_ge_u32 s21, 6")
    A("s_cbranch_scc1 L_F")
    A("s_cmp_ge_u32 s21, 4")
    A("s_cbranch_scc1 L_V")
    gen_compute(A, "QK")
    A.lab("L_V")
    gen_compute(A, "V")
    A.lab("L_SIGNAL")
    A("s_and_b32 s91, s21, 1")
    A("s_lshl_b32 s91, s91, 12")
    A(f"s_add_u32 s91, s91, {QCNT:#x}")
    A("s_waitcnt vmcnt(0)")
    last_wave_signals(A, "L_SIG2", 0, 3)
    stamp(A, 15)
    A("s_branch L_P2")
    A.lab("L_F")
    gen_compute(A, "F")
    A.lab("L_P2")
    gen_attn(A)
    gen_final(A)
    A.lab("L_END")
    A("s_endpgm")
    gen_hooks(A)
    return f""".section .rodata,"a"
.p2align 6
.amdhsa_kernel {name}
  .amdhsa_next_free_vgpr 256
  .amdhsa_next_free_sgpr 102
  .amdhsa_accum_offset 256
  .amdhsa_group_segment_fixed_size 0
  .amdhsa_kernarg_size 80
  .amdhsa_user_sgpr_count 2
  .amdhsa_user_sgpr_kernarg_segment_ptr 1
  .amdhsa_system_sgpr_workgroup_id_x 1
.end_amdhsa_kernel
"""

def gen_init(A):
    R = 160
    A("s_cmp_lg_u32 s22, 0")
    A("s_cbranch_scc1 L_INIT1")
    for r in range(R, R+4): A(f"v_mov_b32 v{r}, 0")
    A(f"v_mov_b32 v{R+4}, {SW}")
    A(f"ds_write_b128 v{R+4}, {vr(R,4)}")
    A("s_sub_u32 s61, s2, 128")
    A(f"s_cmp_ge_u32 s61, {NZ}")
    A("s_cbranch_scc1 L_INIT1")
    A(f"v_lshlrev_b32 v{R+4}, 7, v{L}")
    A("s_lshl_b32 s60, s61, 13")
    A(f"s_add_u32 s60, s60, {FLAGS:#x}")
    A(f"buffer_store_dword v{R}, v{R+4}, {sr(S_WS,4)}, s60 offen sc1")
    A("s_nop 1")
    A.lab("L_INIT1")
    for r in range(144): A(f"v_mov_b32 v{r}, 0")
    A("s_call_b64 s[76:77], L_ATTINIT")
    A("s_lshr_b32 s60, s22, 1")
    A("s_and_b32 s61, s22, 1")

VW = 144
def gen_wsetup(A):
    T = 158
    A("s_bfe_u32 s62, s22, 0x10001")
    A("s_and_b32 s63, s22, 1")
    A("s_cmp_lt_u32 s21, 6")
    A("s_cbranch_scc1 LL_Q")
    A("s_cmp_eq_u32 s63, 0")
    A(f"s_cselect_b32 s{S_W}, s12, s14")
    A(f"s_cselect_b32 s{S_W+1}, s13, s15")
    A(f"s_mov_b32 s{S_W+2}, {512*1376*2:#x}")
    A("s_sub_u32 s64, s21, 6")
    A(f"s_mul_i32 s64, s64, {9*32}")
    A(f"s_mov_b32 s65, {2752-288}")
    A(f"v_mul_u32_u24 v{T+2}, 3641, v{L}")
    A(f"v_lshl_add_u32 v{T+3}, v{L}, 4, s64")
    for i in range(9):
        A(f"v_add_u32 v{T+4}, {64*i*3641}, v{T+2}")
        A(f"v_lshrrev_b32 v{T+4}, 16, v{T+4}")
        A(f"v_add_u32 v{T+5}, {1024*i}, v{T+3}")
        A(f"v_mad_u32_u24 v{VW+i}, v{T+4}, s65, v{T+5}")
    A(f"v_and_b32 v{T+2}, 3, v{L}")
    A(f"v_min_u32 v{T+2}, 2, v{T+2}")
    A("s_mov_b32 s65, 2752")
    A(f"s_mov_b32 s68, {32*2752}")
    A("s_branch LL_C")
    A.lab("LL_Q")
    A(f"s_mov_b32 s{S_W}, s6")
    A(f"s_mov_b32 s{S_W+1}, s7")
    A(f"s_mov_b32 s{S_W+2}, {512*1536*2:#x}")
    A(f"v_lshrrev_b32 v{T+3}, 4, v{L}")
    A(f"v_mul_u32_u24 v{T+2}, 3072, v{T+3}")
    A(f"v_bfe_u32 v{T+4}, v{L}, 2, 2")
    A(f"v_xor_b32 v{T+4}, v{T+4}, v{T+3}")
    A(f"v_lshl_add_u32 v{T+2}, v{T+4}, 6, v{T+2}")
    A(f"v_and_b32 v{T+3}, 3, v{L}")
    A(f"v_lshl_add_u32 v{T+2}, v{T+3}, 4, v{T+2}")
    A("s_lshl_b32 s64, s21, 9")
    A("s_lshl_b32 s65, s63, 8")
    A("s_add_u32 s64, s64, s65")
    A(f"v_add_u32 v{VW}, s64, v{T+2}")
    for i in range(1, 9): A(f"v_add_u32 v{VW+i}, {i*4*3072}, v{VW}")
    A(f"v_and_b32 v{T+2}, 1, v{L}")
    A("s_mov_b32 s65, 3072")
    A(f"s_mov_b32 s68, {32*3072}")
    A.lab("LL_C")
    A("s_and_b32 s66, s20, 3")
    A("s_lshl_b32 s66, s66, 3")
    A(f"v_lshrrev_b32 v{T+3}, 2, v{L}")
    A(f"v_add_u32 v{T+3}, s66, v{T+3}")
    A(f"v_mul_u32_u24 v{T+3}, s65, v{T+3}")
    A(f"v_lshl_add_u32 v{T+3}, v{T+2}, 7, v{T+3}")
    A(f"v_add_u32 v{VW+9}, s64, v{T+3}")
    A(f"s_mov_b32 s{S_W+3}, 0x00020000")
    A(f"s_mul_i32 s71, s62, {WSL}")
    A(f"s_mul_i32 s66, s63, {UPOFF}")
    A("s_add_u32 s71, s71, s66")
    A(f"s_add_u32 s71, s71, {WR}")
    A("s_mov_b32 s72, s71")
    A(f"s_add_u32 s73, s71, {6*WSL}")
    A("s_mul_i32 s74, s62, s68")
    A("s_lshl_b32 s68, s68, 1")

W_PREFETCH = ["s_add_u32 s67, s74, s68", "s_mov_b32 exec_hi, 0",
              f"buffer_load_dword v253, v{VW+9}, {sr(S_W,4)}, s67 offen", "s_mov_b64 exec, -1"]
_dma_n = [0]
def dma_piece(i): return [f"s_add_u32 m0, s72, {i*1024}", "s_nop 0", f"buffer_load_dwordx4 v{VW+i}, {sr(S_W,4)}, s74 offen lds"]
DMA_TAIL = ["s_add_u32 s74, s74, s68", f"s_add_u32 s72, s72, {2*WSL}", "s_cmp_eq_u32 s72, s73", "s_cselect_b32 s72, s71, s72"]
def dma_groups(first):
    g = [dma_piece(i) for i in range(first, 9)]
    _dma_n[0] += 1
    lab = f"LL_D{_dma_n[0]}"
    g[-1] = ["s_cmp_lt_u32 s21, 6", f"s_cbranch_scc1 {lab}"] + g[-1] + [lab + ":"] + DMA_TAIL
    return g
def mix(A, work, groups, every):
    groups = list(groups)
    for n, w in enumerate(work):
        if isinstance(every, (list, tuple)):
            for _ in range(every.count(n)):
                if groups: A.many(groups.pop(0))
        elif groups and n % every == 0: A.many(groups.pop(0))
        A(w)
    for g in groups: A.many(g)

HREG = 184
HOFF = [52, 53, 54, 55, 56, 57, 58, 59, 10]
def h_offsets(A):
    tiles = [(lu*2+lt, lu, lt) for lu in range(4) for lt in range(2)] + [(8, 4, 0)]
    for (tile, lu, lt) in tiles:
        A("s_add_u32 s66, s64, 8" if lu == 4 else f"s_add_u32 s66, s65, {lu}")
        A("s_lshl_b32 s67, s66, 10")
        A(f"s_add_u32 s67, s67, s{62+lt}")
        A(f"s_cmp_lt_u32 s66, {NFU}")
        A(f"s_cselect_b32 s{HOFF[tile]}, s67, 0x7fff0000")

SJ = 184
def side_setup(A):
    A("s_mul_i32 s75, s20, 10")
    A("s_add_u32 s75, s75, s21")
    A("s_sub_u32 s75, s75, 6")
    A("s_mul_i32 s75, s75, 3")
    A("s_add_u32 s75, s75, s60")
    A("s_sub_u32 s75, s75, 1")
    A(f"v_lshrrev_b32 v245, 5, v{L}")
    A("v_lshlrev_b32 v245, 10, v245")
    A(f"v_and_b32 v246, 31, v{L}")
    A("v_lshl_add_u32 v245, v246, 4, v245")
    for jb in range(2):
        S = 4 if jb else S_W
        A(f"s_add_u32 s90, s75, {480*jb}")
        A("s_cmp_lt_u32 s90, 256")
        A(f"s_cselect_b32 s{S}, s8, s16")
        A(f"s_cselect_b32 s{S+1}, s9, s17")
        csel(A, S+2, 512*512*2, 1376*512*2)
        A(f"s_mov_b32 s{S+3}, 0x00020000")
        csel(A, 91, WOF, WDF)
        csel(A, 67, 32*2048, NFU*2048)
        A("s_cselect_b32 s70, 0, 256")
        A("s_sub_u32 s70, s90, s70")
        A("s_lshr_b32 s94, s70, 3")
        A("s_and_b32 s70, s70, 7")
        A(f"s_lshl_b32 s{72+jb}, s94, 14")
        A("s_lshl_b32 s95, s70, 7")
        A(f"s_add_u32 s{72+jb}, s{72+jb}, s95")
        A("s_mul_i32 s70, s70, s67")
        A("s_lshl_b32 s94, s94, 11")
        A("s_add_u32 s70, s70, s94")
        A("s_add_u32 s70, s70, s91")
        A(f"s_cmp_lt_u32 s90, {256+8*NFU}")
        A(f"s_cselect_b32 s{92+jb}, s70, 0x7fff0000")
def side_prefetch(A):
    A("s_mov_b64 exec, 0xffff")
    A(f"buffer_load_dword v253, v245, {sr(S_T1,4)}, s81 offen")
    A(f"buffer_load_dword v253, v245, {sr(S_T2,4)}, s82 offen")
    A("s_mov_b64 exec, -1")
def side_loads(A, jb):
    S = 4 if jb else S_W
    for rho in range(16):
        hh = (rho >> 2) & 1; j = (rho & 3) + 4*(rho >> 3)
        d = SJ + 16*jb + 8*(j & 1) + 4*hh + (j >> 1)
        A(f"buffer_load_ushort v{d}, v244, {sr(S,4)}, s{72+jb} offen offset:{(rho&3)*1024}")
        if (rho & 3) == 3: A(f"s_add_u32 s{72+jb}, s{72+jb}, 4096")
def side_combine(A):
    for jb in range(2):
        d = SJ + 16*jb
        for i in range(8): A(f"v_lshl_or_b32 v{d+i}, v{d+8+i}, 16, v{d+i}")
        A(f"s_mov_b32 s{HOFF[4*jb]}, s{92+jb}")
        A(f"s_add_u32 s{HOFF[4*jb+1]}, s{92+jb}, 512")
    A("v_mov_b32 v249, v245")

def gen_compute(A, kind):
    F = kind == "F"
    ROLE[0] = kind[0]
    NW = 5 if F else 4
    ND = 9 if F else 8
    XS = [176, 184]; WSET = [192, 212]
    XA = 232; XB = 236; WA = 240; T0 = 244
    KQ = 1152 if F else 1024
    US = 32
    P = "L1" + kind
    t, h, sw = T0, T0+1, T0+2
    A(f"v_and_b32 v{t}, 31, v{L}")
    A(f"v_lshrrev_b32 v{h}, 5, v{L}")
    A(f"v_bfe_u32 v{sw}, v{t}, 1, 3")
    A(f"v_xor_b32 v{sw}, v{sw}, v{h}")
    A(f"v_lshlrev_b32 v{T0+3}, 7, v{t}")
    A("s_lshl_b32 s62, s22, 12")
    for s in range(4):
        A(f"v_xor_b32 v{T0+4}, {2*s}, v{sw}")
        A(f"v_lshl_add_u32 v{T0+4}, v{T0+4}, 4, v{T0+3}")
        A(f"v_add_u32 v{XA+s}, s62, v{T0+4}")
        A(f"v_xor_b32 v{XB+s}, 0x1000, v{XA+s}")
    if F:
        A(f"v_bfe_u32 v{T0+5}, v{L}, 2, 2")
        A(f"v_mul_u32_u24 v{T0+5}, 288, v{T0+5}")
        A(f"v_and_b32 v{T0+3}, 3, v{L}")
        A(f"v_lshl_add_u32 v{T0+3}, v{T0+3}, 3, v{T0+5}")
        A(f"v_bfe_u32 v{T0+4}, v{L}, 4, 1")
        A(f"v_mul_u32_u24 v{T0+4}, {UPOFF}, v{T0+4}")
        A(f"v_add_u32 v{T0+3}, v{T0+3}, v{T0+4}")
    else:
        A(f"v_bfe_u32 v{T0+5}, v{L}, 2, 2")
        A(f"v_and_b32 v{T0+3}, 3, v{L}")
        A(f"v_lshlrev_b32 v{T0+3}, 3, v{T0+3}")
        A(f"v_lshl_add_u32 v{T0+3}, v{T0+5}, 8, v{T0+3}")
        A(f"v_bfe_u32 v{T0+4}, v{L}, 4, 1")
        A(f"v_lshl_add_u32 v{T0+3}, v{T0+4}, 5, v{T0+3}")
    A(f"v_mul_u32_u24 v{T0+4}, {2*KQ}, v{h}")
    A(f"v_add_u32 v{T0+3}, v{T0+3}, v{T0+4}")
    A(f"v_add_u32 v{T0+3}, {WR}, v{T0+3}")
    if F:
        A(f"s_mul_i32 s62, s61, {4*US}")
        A(f"v_add_u32 v{WA}, s62, v{T0+3}")
        A(f"v_add_u32 v{WA+1}, {8*US}, v{T0+3}")
    else:
        A(f"s_mul_i32 s62, s61, {UPOFF}")
        A(f"v_add_u32 v{T0+3}, s62, v{T0+3}")
        for lu in range(4):
            A(f"v_xor_b32 v{T0+4}, {lu}, v{T0+5}")
            A(f"v_lshl_add_u32 v{WA+lu}, v{T0+4}, 6, v{T0+3}")
    VO = 249
    if kind == "QK":
        A(f"v_and_b32 v{T0+6}, 0x33, v{L}")
        A(f"v_bfe_u32 v{T0+7}, v{L}, 2, 1")
        A(f"v_lshl_or_b32 v{T0+6}, v{T0+7}, 3, v{T0+6}")
        A(f"v_bfe_u32 v{T0+7}, v{L}, 3, 1")
        A(f"v_lshl_or_b32 v{T0+6}, v{T0+7}, 2, v{T0+6}")
        A("s_cmp_lt_u32 s21, 2")
        A("s_cselect_b64 vcc, -1, 0")
        A(f"v_cndmask_b32 v{VO}, v{T0+6}, v{L}, vcc")
        A(f"v_lshlrev_b32 v{VO}, 4, v{VO}")
    elif kind == "V":
        A(f"v_and_b32 v{VO}, 15, v{L}")
        A(f"v_lshlrev_b32 v{VO}, 4, v{VO}")
        A(f"v_lshl_or_b32 v{VO}, v{h}, 8, v{VO}")
        A(f"v_bfe_u32 v{T0+6}, v{L}, 4, 1")
        A(f"v_lshl_or_b32 v{VO}, v{T0+6}, 16, v{VO}")
    else:
        A(f"v_lshlrev_b32 v{VO}, 4, v{L}")
    A("s_lshl_b32 s68, s20, 2")
    A("s_add_u32 s68, s68, s22")
    A("s_xor_b32 s69, s68, 1")
    if not F:
        A("s_lshl_b32 s70, s21, 20")
        A("s_lshl_b32 s71, s61, 19")
        A("s_add_u32 s70, s70, s71")
        A("s_lshl_b32 s68, s68, 10")
        A("s_lshl_b32 s69, s69, 10")
        A("s_add_u32 s68, s68, s70")
        A("s_add_u32 s69, s69, s70")
    A("s_mov_b32 s64, 0")
    A("s_mov_b32 s65, 0")

    def reads(st, s):
        r = []
        hs, sp = s >> 1, s & 1
        def wread(lu):
            a = WA + ((1 if lu == 4 else 0) if F else lu)
            base = hs*WSL + 4*sp*KQ + (lu*US if F and lu < 4 else 0)
            d = WSET[st] + 4*lu
            return [f"ds_read_b64_tr_b16 {vr(d,2)}, v{a} offset:{base}",
                    f"ds_read_b64_tr_b16 {vr(d+2,2)}, v{a} offset:{base+KQ}"]
        r.append(f"ds_read_b128 {vr(XS[st],4)}, v{XA+s}")
        r += wread(0)
        r.append(f"ds_read_b128 {vr(XS[st]+4,4)}, v{XB+s}")
        for lu in range(1, NW): r += wread(lu)
        return r
    def mfma(tile, w, x):
        a, b = (x, w) if kind == "V" else (w, x)
        return f"v_mfma_f32_32x32x16_bf16 {vr(16*tile,16)}, {vr(a,4)}, {vr(b,4)}, {vr(16*tile,16)}"
    def mfmas(st):
        m = [mfma(lu*2+lt, WSET[st]+4*lu, XS[st]+4*lt) for lu in range(4) for lt in range(2)]
        if F: m.append(mfma(8, WSET[st]+16, XS[st]))
        return m
    stamp(A, 1)
    A("s_waitcnt vmcnt(0) lgkmcnt(0)" if F else "s_waitcnt lgkmcnt(0)")
    A("s_barrier")
    stamp(A, 2)
    A.many(reads(0, 0))
    if F:
        A("s_sub_u32 s66, s2, 128")
        A("s_lshl_b32 s67, s22, 8")
        A("s_add_u32 s66, s66, s67")
        A(f"s_cmp_ge_u32 s66, {NZ}")
        A(f"s_cbranch_scc1 {P}_LOOP")
        A("s_lshl_b32 s66, s66, 2")
        A("s_mov_b64 exec, 1")
        A("v_mov_b32 v250, 1")
        A("v_mov_b32 v251, 0")
        A(f"buffer_store_dword v250, v251, {sr(S_DBG,4)}, s66 offen sc1")
        A("s_mov_b64 exec, -1")
    A.raw(".p2align 6")
    A.lab(P + "_LOOP")
    NR = 2*NW + 2
    PEEL = OPT["peel"] and not F
    NIT = 7 if PEEL else 8
    need = [3, 4, 6, 6, 8, 8, 10, 10, 12]
    for s in range(4):
        st = s & 1; nx = (s+1) & 3
        ms = mfmas(st); rd = reads(1-st, nx)
        n = len(ms)
        gaps = [[] for _ in ms]
        g0 = OPT["barpos"] if s == 3 else 0
        for i, r in enumerate(rd): gaps[g0 + i//2].append(r)
        xu = lambda k: [f"v_xor_b32 v{XA+k}, 0x4000, v{XA+k}", f"v_xor_b32 v{XB+k}, 0x4000, v{XB+k}"]
        if s < 3:
            gaps[n-2] += xu(nx)
        if s == 0: gaps[n-3] += xu(0)
        if s == 1:
            gaps[n-3] += ["s_cmp_eq_u32 s65, 2", f"s_mov_b32 s66, {2*WSL:#x}", f"s_cselect_b32 s66, {(-4*WSL) & 0xffffffff:#x}, s66"]
            gaps[n-1] += ["s_cselect_b32 s65, -1, s65", "s_add_u32 s65, s65, 1"]
        if s == 2:
            gaps[n-1] += [f"v_add_u32 v{WA+i}, s66, v{WA+i}" for i in range(2 if F else 4)]
        if s == 3:
            gaps[n-1] += ["s_add_u32 s64, s64, 1", f"s_cmp_lt_u32 s64, {NIT}"]
        issued = 0; done = 0
        for i, (m, g) in enumerate(zip(ms, gaps)):
            if need[i] > done:
                A(f"s_waitcnt lgkmcnt({min(15, NR - need[i] + issued)})"); done = need[i]
            A(m)
            if s == 3 and i == g0:
                A("s_waitcnt lgkmcnt(0)"); done = NR
                A("s_barrier")
            for x in g:
                A(x)
                if x.startswith("ds_"): issued += 1
    if OPT["prof"] and OPT["itstamp"]:
        A("s_memtime s[96:97]")
        A("s_memrealtime s[98:99]")
        A("s_add_u32 m0, s64, 19")
        A("s_waitcnt lgkmcnt(0)")
        A("v_writelane_b32 v255, s96, m0")
        A("s_add_u32 m0, s64, 51")
        A("s_nop 0")
        A("v_writelane_b32 v255, s98, m0")
        A(f"s_cmp_lt_u32 s64, {NIT}")
    A(f"s_cbranch_scc1 {P}_LOOP")
    stamp(A, 3)
    tiles = [(lu*2+lt, lu, lt) for lu in range(4) for lt in range(2)] + ([(8, 4, 0)] if F else [])
    if not F:
        def fin(tile, lu, lt):
            a = 16*tile
            g = [[f"v_cvt_pk_bf16_f32 v{a+i}, v{a+2*i}, v{a+2*i+1}" for i in range(4)],
                 [f"s_add_u32 s65, s{68+lt}, {lu*131072}", f"buffer_store_dwordx4 {vr(a,4)}, v{VO}, {sr(S_WS,4)}, s65 offen sc1"],
                 [f"v_cvt_pk_bf16_f32 v{a+8+i}, v{a+8+2*i}, v{a+9+2*i}" for i in range(4)]]
            if kind == "QK": g.append(["s_add_u32 s65, s65, 65536", f"buffer_store_dwordx4 {vr(a+8,4)}, v{VO}, {sr(S_WS,4)}, s65 offen sc1"])
            else: g.append([f"buffer_store_dwordx4 {vr(a+8,4)}, v{VO}, {sr(S_WS,4)}, s65 offen offset:512 sc1"])
            return g
        rest = tiles
        if PEEL:
            XR = {1: XS[1], 2: 128, 3: 136}
            WG = [[212, 216, 220], [224, 228, 208]]
            def wrd(lu):
                r = []
                for s in (1, 2, 3):
                    base = (s >> 1)*WSL + 4*(s & 1)*KQ; d = WG[lu & 1][s-1]
                    r += [f"ds_read_b64_tr_b16 {vr(d,2)}, v{WA+lu} offset:{base}", f"ds_read_b64_tr_b16 {vr(d+2,2)}, v{WA+lu} offset:{base+KQ}"]
                return r
            w0 = wrd(0); rd = []
            for s in (1, 2, 3):
                rd += [f"ds_read_b128 {vr(XR[s],4)}, v{XA+s}", f"ds_read_b128 {vr(XR[s]+4,4)}, v{XB+s}"] + w0[2*s-2:2*s]
            issued = 0; done = 0
            for i, m in enumerate(mfmas(0)):
                if need[i] > done:
                    A(f"s_waitcnt lgkmcnt({min(15, NR - need[i] + issued)})"); done = need[i]
                A(m)
                A.many(rd[2*i:2*i+2]); issued += len(rd[2*i:2*i+2])
            pend = []
            for lu in range(4):
                A("s_waitcnt lgkmcnt(0)")
                if lu == 3: A("s_barrier")
                nxt = wrd(lu+1) if lu < 3 else []
                for i, (s, lt) in enumerate((s, lt) for s in (1, 2, 3) for lt in range(2)):
                    A(mfma(lu*2+lt, WG[lu & 1][s-1], XR[s]+4*lt))
                    A.many(nxt[2*i:2*i+2])
                    if i == 2 and lu > 0:
                        A("s_nop 3")
                        for tl in tiles[2*(lu-1):2*lu]: pend += fin(*tl)
                    for _ in range(2 if i >= 3 else 1):
                        if pend: A.many(pend.pop(0))
            for g in pend: A.many(g)
            A("s_nop 7")
            rest = tiles[6:]
        for tl in rest:
            for g in fin(*tl): A.many(g)
        stamp(A, 4)
        if kind == "QK": A("s_branch L_SIGNAL")
    else:
        A(f"s_mul_i32 s62, s68, {NFU*1024}")
        A(f"s_mul_i32 s63, s69, {NFU*1024}")
        A(f"s_add_u32 s62, s62, {HF:#x}")
        A(f"s_add_u32 s63, s63, {HF:#x}")
        A("s_sub_u32 s64, s21, 6")
        A("s_mul_i32 s64, s64, 9")
        A("s_lshl_b32 s65, s61, 2")
        A("s_add_u32 s65, s65, s64")
        C1, C3, ONE, TT = 220, 222, 224, 176
        c1 = -2*0.7978845608028654*LOG2E
        A("s_waitcnt lgkmcnt(0)")
        for r, v in ((C1, c1), (C3, c1*0.044715), (ONE, 1.0)):
            A(f"v_mov_b32 v{r}, {f2u(v):#x}")
            A(f"v_mov_b32 v{r+1}, {f2u(v):#x}")
        dst = lambda tile: HREG + 4*tile
        h_offsets(A)
        for (tile, lu, lt) in tiles:
            a = 16*tile
            for i in range(4): A(f"v_pk_mul_f32 {vr(TT+2*i,2)}, {vr(a+2*i,2)}, {vr(a+2*i,2)}")
            for i in range(4): A(f"v_pk_fma_f32 {vr(TT+2*i,2)}, {vr(TT+2*i,2)}, {vr(C3,2)}, {vr(C1,2)}")
            for i in range(4): A(f"v_pk_mul_f32 {vr(TT+2*i,2)}, {vr(TT+2*i,2)}, {vr(a+2*i,2)}")
            for i in range(8): A(f"v_exp_f32 v{TT+i}, v{TT+i}")
            for i in range(4): A(f"v_pk_mul_f32 {vr(a+2*i,2)}, {vr(a+2*i,2)}, {vr(a+8+2*i,2)}")
            for i in range(4): A(f"v_pk_add_f32 {vr(TT+2*i,2)}, {vr(TT+2*i,2)}, {vr(ONE,2)}")
            for i in range(8): A(f"v_rcp_f32 v{TT+i}, v{TT+i}")
            A("s_nop 0")
            for i in range(4): A(f"v_pk_mul_f32 {vr(a+2*i,2)}, {vr(a+2*i,2)}, {vr(TT+2*i,2)}")
            for i in range(4): A(f"v_cvt_pk_bf16_f32 v{dst(tile)+i}, v{a+2*i}, v{a+2*i+1}")
        stamp(A, 4)

VX = 212; DW = 240; S1 = 216; S2 = 220; RR = 224; MR = 228; TL = 232
xreg = lambda c, i: (i*8 + c)*4
def xload_(A, i):
    A(f"s_add_u32 s{85+i}, s80, {i}")
    A(f"s_and_b32 s{85+i}, s{85+i}, 3")
    A(f"s_lshl_b32 s89, s{85+i}, 13")
    A("s_add_u32 s89, s89, s61")
    for c in range(8):
        A(f"buffer_load_dwordx4 {vr(xreg(c,i),4)}, v{VX}, {sr(S_X,4)}, s89 offen offset:{c*128}")
def loader_first(A):
    T = TL
    A("s_sub_u32 s60, s22, 4")
    A("s_lshl_b32 s61, s20, 17")
    A("s_lshl_b32 s62, s60, 15")
    A("s_add_u32 s61, s61, s62")
    A("s_lshr_b32 s80, s2, 5")
    A("s_waitcnt lgkmcnt(0)")
    srd(A, S_X, 4, 2048*512*2)
    xload_(A, 0); xload_(A, 1)

def gen_loader(A):
    ROLE[0] = "L"
    T = TL
    xload = lambda i: xload_(A, i)
    gen_wsetup(A)
    xload(2)
    A("s_cmp_lt_u32 s21, 2")
    A(f"s_cselect_b32 s69, {f2u(0.25*LOG2E):#x}, 1.0")
    A("s_lshr_b32 s64, s21, 1")
    A("s_cmp_eq_u32 s64, 2")
    A(f"s_cselect_b32 s69, {f2u(2.0**VSH):#x}, s69")
    for r in range(S1, S2+4): A(f"v_mov_b32 v{r}, 0")
    A("s_mov_b32 s78, 0x3f803f80")
    A("v_mov_b32 v249, 0")
    A(f"v_lshlrev_b32 v244, 1, v{L}")
    A("s_cmp_ge_u32 s21, 6")
    A("s_cselect_b32 s79, s60, 0")
    def norm(c, i):
        x = xreg(c, i); r = []
        for d in range(4):
            r.append(f"v_lshlrev_b32 v{T+2*d}, 16, v{x+d}")
            r.append(f"v_and_b32 v{T+2*d+1}, 0xffff0000, v{x+d}")
        for d in range(8): r.append(f"v_fma_f32 v{T+d}, v{T+d}, v{RR+i}, -v{MR+i}")
        for d in range(4): r.append(f"v_cvt_pk_bf16_f32 v{x+d}, v{T+2*d}, v{T+2*d+1}")
        if OPT["w64"]:
            r.insert(-2, f"ds_write_b64 v{DW+i}, {vr(x,2)} offset:{(c&1)*16384}")
            r.append(f"ds_write_b64 v{DW+i}, {vr(x+2,2)} offset:{(c&1)*16384+8}")
        else: r.append(f"ds_write_b128 v{DW+i}, {vr(x,4)} offset:{(c&1)*16384}")
        return r
    def dots(i):
        r = []
        for k in range(32):
            r.append(f"v_dot2c_f32_bf16 v{S2+i}, v{xreg(0,i)+k}, v{xreg(0,i)+k}")
            r.append(f"v_dot2c_f32_bf16 v{S1+i}, s78, v{xreg(0,i)+k}")
        return r
    A("s_waitcnt vmcnt(16)"); stamp(A, 16)
    xload(3)
    A.many(dots(0))
    A(f"v_lshrrev_b32 v{T+2}, 4, v{L}")
    A(f"v_xor_b32 v{T+2}, v{T+2}, v{T+1}")
    A(f"v_lshlrev_b32 v{T+3}, 7, v{T}")
    A("s_lshl_b32 s64, s60, 12")
    A(f"v_add_u32 v{T+3}, s64, v{T+3}")
    A(f"v_lshl_add_u32 v{T+3}, v{T+2}, 4, v{T+3}")
    for i in range(4):
        A(f"s_and_b32 s64, s{85+i}, 1")
        A("s_lshl_b32 s64, s64, 6")
        A(f"s_lshl_b32 s65, s{85+i}, 10")
        A("s_or_b32 s64, s64, s65")
        A(f"v_xor_b32 v{DW+i}, s64, v{T+3}")
    def vmw(base, tag):
        A(f"s_waitcnt vmcnt({base+9})")
        A("s_cmp_ge_u32 s21, 6")
        A(f"s_cbranch_scc1 {tag}")
        A(f"s_waitcnt vmcnt({base+8})")
        A.lab(tag)
    A("s_waitcnt vmcnt(16)"); stamp(A, 17)
    if OPT["wearly"]:
        mix(A, dots(1), dma_groups(0), 7)
        vmw(8, "LL_G2"); stamp(A, 18)
        A.many(dots(2))
    else:
        A.many(dots(1))
        A("s_waitcnt vmcnt(8)"); stamp(A, 18)
        mix(A, dots(2), dma_groups(0), 7)
    vmw(0, "LL_G3")
    stamp(A, 19)
    A.many(dots(3))
    A("s_nop 2")
    for ctl in ("quad_perm:[1,0,3,2]", "quad_perm:[2,3,0,1]", "row_half_mirror"):
        for r in range(S1, S2+4):
            A(f"v_add_f32_dpp v{r}, v{r}, v{r} {ctl} row_mask:0xf bank_mask:0xf")
    seq = [
        lambda i: f"v_mul_f32 v{S1+i}, {f2u(1/512):#x}, v{S1+i}",
        lambda i: f"v_mul_f32 v{S2+i}, {f2u(1/512):#x}, v{S2+i}",
        lambda i: f"v_fma_f32 v{S2+i}, -v{S1+i}, v{S1+i}, v{S2+i}",
        lambda i: f"v_max_f32 v{S2+i}, 0, v{S2+i}",
        lambda i: f"v_cvt_pk_bf16_f32 v{S2+i}, v{S1+i}, v{S2+i}",
        lambda i: f"v_lshlrev_b32 v{S1+i}, 16, v{S2+i}",
        lambda i: f"v_and_b32 v{S2+i}, 0xffff0000, v{S2+i}",
        lambda i: f"v_add_f32 v{S2+i}, {f2u(1e-5):#x}, v{S2+i}",
        lambda i: f"v_cvt_pk_bf16_f32 v{S2+i}, v{S2+i}, v{S2+i}",
        lambda i: f"v_and_b32 v{S2+i}, 0xffff0000, v{S2+i}",
        lambda i: f"v_sqrt_f32 v{S2+i}, v{S2+i}",
        lambda i: f"v_cvt_pk_bf16_f32 v{S2+i}, v{S2+i}, v{S2+i}",
        lambda i: f"v_and_b32 v{S2+i}, 0xffff0000, v{S2+i}",
        lambda i: f"v_rcp_f32 v{RR+i}, v{S2+i}",
        lambda i: f"v_mul_f32 v{RR+i}, s69, v{RR+i}",
        lambda i: f"v_mul_f32 v{MR+i}, v{S1+i}, v{RR+i}",
    ]
    for f in seq:
        for i in range(4): A(f(i))
    stamp(A, 1)
    mix(A, sum((norm(0, i) for i in range(4)), []), dma_groups(0), OPT["dmaevery"])
    if -1 in OPT["wpf"]: A.many(W_PREFETCH)
    stamp(A, 2)
    dbg_load = [f"buffer_load_dword v97, v96, {sr(S_DBG,4)}, 0 offen sc1"]
    for m in range(8):
        if m == 4: stamp(A, 29)
        A(f"s_waitcnt vmcnt({8 if m < 7 else 0}) lgkmcnt(0)")
        if m == 4: stamp(A, 30)
        if m == 5:
            A.many(ALL1(97))
            A("s_cbranch_scc1 LL_POLL0_OK")
            spin(A, "LL_POLL0", dbg_load, ALL1(97))
        A("s_barrier")
        if m == 3: stamp(A, 28)
        if m == 4: stamp(A, 31)
        if m == 7: break
        work = sum((norm(m+1, i) for i in range(4)), [])
        isw = lambda w: w.startswith("ds_")
        if OPT["exp"] == "wlast": work = [w for w in work if not isw(w)] + [w for w in work if isw(w)]
        if OPT["exp"] == "wfirst":
            if m == 0: A.many(work)
            else: A.many([w for w in work if isw(w)])
            work = [w for w in sum((norm(m+2, i) for i in range(4)), []) if not isw(w)] if m < 6 else []
        if OPT["exp"].startswith("grp"):
            dg = dma_groups(0) if m < 6 else []
            split = {"grp": [3,2,2,2,0], "grp2": [0,3,3,3,0], "grp3": [2,3,2,2,0], "grp4": [4,3,2,0,0]}[OPT["exp"]]
            for _ in range(split[0]):
                if dg: A.many(dg.pop(0))
            for i in range(4):
                nn = norm(m+1, i)
                A.many(nn[:-1])
                for _ in range(split[i+1]):
                    if dg: A.many(dg.pop(0))
                A(nn[-1])
            work = None
        if OPT["exp"] == "nonorm": work = []
        if OPT["exp"] == "nowrite": work = [w for w in work if not w.startswith("ds_")]
        if OPT["exp"] == "dmalast":
            A.many(work); work = []
        if OPT["exp"] == "dmafirst":
            mix(A, [], dma_groups(0) if m < 6 else [], 1); A.many(work); continue
        if work is not None: mix(A, work, dma_groups(0) if m < 6 else [], OPT["dmaevery"])
        if m in OPT["wpf"]: A.many(W_PREFETCH)
        if m == 3:
            A(f"v_min_u32 v96, {NZ-1}, v{L}")
            A("v_lshlrev_b32 v96, 2, v96")
            A.many(dbg_load)
    A("s_mov_b32 s23, s79")
    side_setup(A)
    A("s_call_b64 s[76:77], L_ATTINIT")
    late_init(A)
    A("s_barrier")
    stamp(A, 3)
    A("s_cmp_eq_u32 s23, 0")
    A("s_cbranch_scc1 LL_S7")
    side_loads(A, 0)
    side_loads(A, 1)
    A.lab("LL_S7")
    A("s_cmp_lg_u32 s60, 0")
    A("s_cbranch_scc1 LL_WAITGO")
    A("v_mov_b32 v96, 0")
    A("s_bfe_u32 s64, s2, 0x10004")
    A("s_lshl_b32 s64, s64, 5")
    A("s_and_b32 s65, s2, 15")
    A("s_add_u32 s64, s64, s65")
    A("s_bfe_u32 s65, s2, 0x10005")
    A("s_lshl_b32 s65, s65, 4")
    A("s_add_u32 s64, s64, s65")
    A("s_lshl_b32 s64, s64, 7")
    A(f"s_add_u32 s64, s64, {QCNT:#x}")
    spin3(A, "LL_POLL", [0, 1, 2], 96, "s64", 48)
    A(f"v_mov_b32 v96, {SW}")
    A("v_mov_b32 v97, 1")
    A("ds_write_b32 v96, v97 offset:4")
    A("s_branch LL_GO")
    A.lab("LL_WAITGO")
    A(f"v_mov_b32 v96, {SW}")
    A(f"s_mov_b32 s70, {SPIN_MAX*16}")
    A.lab("LL_WG1")
    A("ds_read_b32 v97, v96 offset:4")
    A("s_waitcnt lgkmcnt(0)")
    A("v_readfirstlane_b32 s65, v97")
    A("s_cmp_lg_u32 s65, 0")
    A("s_cbranch_scc1 LL_GO")
    A("s_sleep 1")
    A("s_sub_u32 s70, s70, 1")
    A("s_cmp_lg_u32 s70, 0")
    A("s_cbranch_scc1 LL_WG1")
    A.lab("LL_GO")
    stamp(A, 4)
    A("s_and_b32 s64, s2, 31")
    A("s_lshl_b32 s64, s64, 16")
    A("s_lshl_b32 s65, s60, 11")
    A("s_add_u32 s64, s64, s65")
    A("s_lshr_b32 s66, s2, 5")
    A("s_lshl_b32 s66, s66, 13")
    A("s_add_u32 s66, s66, s64")
    A(f"s_add_u32 m0, s65, {QOFF}")
    A(f"s_add_u32 s67, s64, {KF:#x}")
    A(f"buffer_load_dwordx4 v95, {sr(S_WS,4)}, s66 offen sc1 lds")
    A(f"buffer_load_dwordx4 v95, {sr(S_WS,4)}, s66 offen offset:1024 sc1 lds")
    A(f"s_add_u32 s68, s64, {VF:#x}")
    for c in range(2):
        A(f"s_add_u32 m0, s65, {c*8192}")
        A("s_nop 0")
        A(f"buffer_load_dwordx4 v95, {sr(S_WS,4)}, s67 offen sc1 lds")
        A(f"buffer_load_dwordx4 v95, {sr(S_WS,4)}, s67 offen offset:1024 sc1 lds")
        A(f"s_add_u32 m0, s65, {65536 + c*8192}")
        A("s_add_u32 s67, s67, 8192")
        A(f"buffer_load_dwordx4 v95, {sr(S_WS,4)}, s68 offen sc1 lds")
        A(f"buffer_load_dwordx4 v95, {sr(S_WS,4)}, s68 offen offset:1024 sc1 lds")
        A("s_add_u32 s68, s68, 8192")
    A("s_cmp_eq_u32 s23, 0")
    A("s_cbranch_scc1 L_P0")
    A("s_waitcnt vmcnt(10)")
    side_combine(A)


WSC = lambda: "" if OPT["wl1"] else " sc1"
def down_loads(A, slot):
    A(f"buffer_load_dwordx4 {vr(DH[slot],4)}, v{L16}, {sr(S_T1,4)}, s84 offen sc1")
    A(f"buffer_load_dwordx4 {vr(DW_[slot],4)}, v{L16}, {sr(S_T2,4)}, s85 offen{WSC()}")
    A(f"buffer_load_dwordx4 {vr(DW_[slot]+4,4)}, v{L16}, {sr(S_T2,4)}, s85 offen offset:1024{WSC()}")
    A("s_add_u32 s84, s84, 1024")
    A("s_add_u32 s85, s85, 2048")

def kv_piece(k):
    if k & 1: return ["s_add_u32 m0, s95, 65536", "s_add_u32 s94, s94, 8192",
                      f"buffer_load_dwordx4 v{L16}, {sr(S_WS,4)}, s60 offen sc1 lds", "s_add_u32 s95, s95, 8192"]
    return ["s_mov_b32 m0, s95", f"s_add_u32 s60, s94, {VF-KF:#x}", f"buffer_load_dwordx4 v{L16}, {sr(S_WS,4)}, s94 offen sc1 lds"]
HPOLL = lambda: apoll(101, 100, "s75", 15)

def attn_body(A, mode):
    hs = 0
    for t in range(8):
        p = t & 1
        down = mode in "BC" or (mode == "2" and t >= 4)
        cur, prv = S_[p], S_[1-p]
        ex = lambda a, b: [A(f"v_exp_f32 v{cur+i}, v{cur+i}") for i in range(a, b)]
        if p == 0: A(f"s_setprio {3 - (t >> 1)}")
        A("s_waitcnt lgkmcnt(3)")
        ex(0, 2)
        if not (mode == "0" and t == 0):
            A(f"v_smfmac_f32_32x32x32_bf16 {vr(O_,16)}, {vr(V1[1-p],4)}, {vr(prv+8,8)}, v{IDX}")
        if mode == "0" and t < 6: A.many(kv_piece(2*t))
        ex(2, 6 if down else 7)
        A(f"v_mfma_f32_32x32x16_bf16 {vr(prv,16)}, {vr(KB[1-p],4)}, {vr(Q_,4)}, {vr(C_,16)}")
        A(f"ds_read_b128 {vr(KB[1-p],4)}, v{KA} offset:{(t+3)*1024}")
        if mode == "0" and t < 6: A.many(kv_piece(2*t+1))
        ex(6 if down else 7, 10 if down else 12)
        A(f"v_smfmac_f32_32x32x32_bf16 {vr(O_,16)}, {vr(V0[p],4)}, {vr(cur,8)}, v{IDX}")
        A("s_mov_b64 exec, s[80:81]")
        A(f"ds_read_b128 {vr(V0[p],4)}, v{VA} offset:{(t+2)*1024}")
        A(f"ds_read_b128 {vr(V1[1-p],4)}, v{VA} offset:{(t+1)*1024+512}")
        A("s_mov_b64 exec, -1")
        if mode == "0":
            for _ in range(OPT["hplan"][t]):
                A(f"buffer_store_dwordx4 {vr(HREG+4*hs,4)}, v249, {sr(S_WS,4)}, s{HOFF[hs]} offen sc1"); hs += 1
        if mode == "2" and t < 4: down_loads(A, (t + 2) & 3)
        if mode == "C":
            if t == 0: A(f"buffer_load_dwordx4 {vr(XV,4)}, v252, {sr(S_X,4)}, s88 offen")
            for i in range(2):
                A(f"buffer_load_dwordx4 {vr(WO+8*t+4*i,4)}, v{L16}, {sr(S_WS,4)}, s90 offen offset:{(2*p+i)*1024}{WSC()}")
            if p: A("s_add_u32 s90, s90, 4096")
        if down:
            ex(10, 14)
            sl = t >> 1
            if p == 0: A(f"s_waitcnt vmcnt({12 + sl if mode == 'C' else 9})")
            cc = "0" if (mode == "2" and t < 6) else vr(DACC+16*p,16)
            A(f"v_mfma_f32_32x32x16_bf16 {vr(DACC+16*p,16)}, {vr(DW_[sl]+4*p,4)}, {vr(DH[sl],4)}, {cc}")
            if mode != "C" and p == 1: down_loads(A, sl)
            ex(14, 16)
        else:
            ex(12, 16)
        if mode == "1" and t == OPT["sigt"]:
            A("s_waitcnt vmcnt(0)")
            A("s_barrier")
            A("s_cmp_lg_u32 s14, 0")
            A("s_cbranch_scc1 L_NOSIG")
            A("s_mov_b64 exec, 0xff")
            A("v_mov_b32 v97, 1")
            A(f"v_lshlrev_b32 v96, 10, v{L}")
            A(f"buffer_atomic_add v97, v96, {sr(S_WS,4)}, s91 offen")
            A("s_mov_b64 exec, -1")
            A.lab("L_NOSIG")
        if mode == "1" and t == 6:
            A("s_cmp_lg_u32 s22, 0")
            A("s_cbranch_scc1 L_NOPQ")
            A(f"v_lshlrev_b32 v100, 7, v{L}")
            A.many(HPOLL())
            A.lab("L_NOPQ")
        if mode == "1" and t == 7:
            stamp(A, 8)
            A("s_cmp_lg_u32 s22, 0")
            A("s_cbranch_scc1 L_HPOLL_OK")
            spin(A, "L_HPOLL2", HPOLL(), acmp(101, 40, 15), first_loaded=True)
            if OPT["wl1"] == 2:
                A("buffer_inv sc1")
                A("s_waitcnt vmcnt(0)")
            A.lab("L_HPOLL_OK")
            A("s_barrier")
            stamp(A, 9)
    if mode == "0": assert hs == 9
    if mode != "C":
        A(f"v_add_u32 v{KA}, 8192, v{KA}")
        A(f"v_add_u32 v{VA}, 8192, v{VA}")
        A("s_add_u32 s83, s83, 1")

def late_init(A):
    A(f"v_lshlrev_b32 v{L16}, 4, v{L}")
    A(f"v_mov_b32 v{IDX}, 0xdddd")
    A(f"v_and_b32 v98, 15, v{L}")
    A("v_lshlrev_b32 v98, 4, v98")
    A(f"v_lshrrev_b32 v99, 5, v{L}")
    A("v_lshl_or_b32 v98, v99, 8, v98")
    A("v_add_u32 v98, 65536, v98")
    A(f"v_add_u32 v99, s15, v{L16}")
    A(f"v_add_u32 v102, s16, v{L16}")
    A(f"v_add_u32 v103, s17, v{L16}")
    A(f"v_mov_b32 v{KA}, v{L16}")
    A(f"v_mov_b32 v{VA}, v98")
    A("v_mov_b32 v100, 0xff800000")
    A("v_mov_b32 v101, 0xff800000")

def gen_attinit(A):
    A.lab("L_ATTINIT")
    for r in range(O_, O_+32): A(f"v_mov_b32 v{r}, 0")
    A("s_mov_b32 s80, 0x00110000")
    A("s_mov_b32 s81, 0x00110000")
    A("s_mov_b64 exec, s[80:81]")
    for r in range(V0[0], V0[0]+16): A(f"v_mov_b32 v{r}, 0x3f803f80")
    A("s_mov_b64 exec, -1")
    A("s_mov_b32 s80, 0xffff")
    A("s_mov_b32 s81, 0xffff")
    A("s_mov_b32 s78, 1")
    A(f"s_mov_b32 s79, {f2u(-OPT['bias']):#x}")
    A("s_mov_b32 s82, 1")
    A(f"v_lshrrev_b32 v251, 5, v{L}")
    A(f"v_and_b32 v252, 31, v{L}")
    A("v_lshlrev_b32 v252, 10, v252")
    A("v_lshl_add_u32 v252, v251, 4, v252")
    A("s_lshl_b32 s15, s22, 10")
    A(f"s_add_u32 s15, s15, {QOFF}")
    A("s_and_b32 s91, s20, 3")
    A("s_lshl_b32 s91, s91, 7")
    A(f"s_add_u32 s91, s91, {QFLAG+4*128:#x}")
    A("s_cmp_lt_u32 s21, 6")
    A("s_cselect_b32 s14, 1, s22")
    A("s_and_b32 s75, s2, 7")
    A("s_lshl_b32 s75, s75, 10")
    A(f"s_add_u32 s75, s75, {QFLAG+4*128:#x}")
    A("s_lshr_b32 s61, s2, 5")
    A("s_lshl_b32 s61, s61, 3")
    A("s_add_u32 s61, s61, s22")
    A("s_lshl_b32 s61, s61, 5")
    A("s_and_b32 s62, s2, 31")
    A("s_add_u32 s61, s61, s62")
    A("s_lshr_b32 s12, s61, 3")
    A("s_lshl_b32 s12, s12, 7")
    A(f"s_add_u32 s12, s12, {OFLAG:#x}")
    A("s_lshl_b32 s11, s61, 10")
    A(f"s_add_u32 s11, s11, {OF:#x}")
    A("s_and_b32 s94, s2, 31")
    A("s_lshl_b32 s94, s94, 16")
    A("s_lshl_b32 s95, s22, 10")
    A("s_add_u32 s95, s95, 16384")
    A("s_add_u32 s94, s94, s95")
    A(f"s_add_u32 s94, s94, {KF:#x}")
    A("s_and_b32 s67, s2, 7")
    A("s_bfe_u32 s61, s2, 0x20003")
    A("s_lshl_b32 s67, s67, 2")
    A("s_add_u32 s67, s67, s61")
    A("s_lshr_b32 s61, s2, 5")
    A("s_and_b32 s62, s22, 1")
    A("s_lshl_b32 s67, s67, 1")
    A("s_add_u32 s67, s67, s62")
    A("s_lshr_b32 s62, s22, 1")
    A("s_mul_i32 s63, s62, 22")
    A("s_cmp_eq_u32 s62, 3")
    A("s_cselect_b32 s63, 65, s63")
    A("s_cmp_lt_u32 s62, 2")
    A("s_cselect_b32 s64, 22, 21")
    A(f"s_mul_i32 s65, s67, {NFU}")
    A("s_add_u32 s65, s65, s63")
    A("s_lshl_b32 s65, s65, 10")
    A(f"s_add_u32 s65, s65, {HF:#x}")
    A(f"s_add_u32 s{S_T1}, s18, s65")
    A(f"s_addc_u32 s{S_T1+1}, s19, 0")
    A(f"s_lshl_b32 s{S_T1+2}, s64, 10")
    A(f"s_mov_b32 s{S_T1+3}, 0x00020000")
    A(f"s_mul_i32 s65, s61, {NFU}")
    A("s_add_u32 s65, s65, s63")
    A("s_lshl_b32 s65, s65, 11")
    A(f"s_add_u32 s65, s65, {WDF:#x}")
    A(f"s_add_u32 s{S_T2}, s18, s65")
    A(f"s_addc_u32 s{S_T2+1}, s19, 0")
    A(f"s_lshl_b32 s{S_T2+2}, s64, 11")
    A(f"s_mov_b32 s{S_T2+3}, 0x00020000")
    A("s_mov_b32 s84, 0")
    A("s_mov_b32 s85, 0")
    A("s_lshl_b32 s90, s61, 16")
    A("s_lshl_b32 s66, s62, 14")
    A("s_add_u32 s90, s90, s66")
    A(f"s_add_u32 s90, s90, {WOF:#x}")
    A("s_lshl_b32 s87, s67, 15")
    A("s_lshl_b32 s66, s62, 13")
    A("s_add_u32 s87, s87, s66")
    A(f"s_add_u32 s87, s87, {OF:#x}")
    A("s_lshl_b32 s88, s67, 15")
    A("s_lshl_b32 s66, s61, 7")
    A("s_add_u32 s88, s88, s66")
    A("s_lshl_b32 s66, s62, 5")
    A("s_add_u32 s88, s88, s66")
    A(f"s_sub_u32 s13, s87, {OF:#x}")
    A("s_lshr_b32 s13, s13, 6")
    A(f"s_add_u32 s13, s13, {OFLAG:#x}")
    red_addr(A)
    A("s_setpc_b64 s[76:77]")

def gen_attn(A):
    A("s_waitcnt lgkmcnt(0)")
    late_init(A)
    A.lab("L_P0")
    stamp(A, 5)
    A("s_waitcnt vmcnt(0)")
    A("s_barrier")
    stamp(A, 6)
    A(f"ds_read_b128 {vr(Q_,4)}, v99")
    A.lab("L_MAXLOOP")
    A(f"ds_read_b128 {vr(KB[0],4)}, v{KA}")
    A(f"ds_read_b128 {vr(KB[1],4)}, v{KA} offset:1024")
    A("s_mov_b64 exec, s[80:81]")
    A(f"ds_read_b128 {vr(V0[0],4)}, v{VA}")
    A("s_mov_b64 exec, -1")
    A("s_waitcnt lgkmcnt(2)")
    A(f"v_mfma_f32_32x32x16_bf16 {vr(S_[0],16)}, {vr(KB[0],4)}, {vr(Q_,4)}, 0")
    A("s_waitcnt lgkmcnt(1)")
    A(f"v_mfma_f32_32x32x16_bf16 {vr(C_,16)}, {vr(KB[1],4)}, {vr(Q_,4)}, 0")
    A(f"v_subrev_u32 v{KA}, 2048, v{KA}")
    A("s_nop 9")
    for i in range(8): A(f"v_max3_f32 v100, v{2*i}, v{2*i+1}, v100")
    for i in range(8): A(f"v_max3_f32 v101, v{C_+2*i}, v{C_+2*i+1}, v101")
    A("s_sub_u32 s78, s78, 1")
    A("s_cmp_lg_u32 s78, 0")
    A("s_cbranch_scc1 L_MAXLOOP")
    A("v_max_f32 v100, v100, v101")
    A(f"v_mov_b32 v{KA}, v{L16}")
    A("v_mov_b32 v101, v100")
    A("s_nop 1")
    A("v_permlane32_swap_b32 v100, v101")
    A("s_nop 1")
    A("v_max_f32 v100, v100, v101")
    for r in range(16): A(f"v_sub_f32 v{C_+r}, s79, v100")
    A("s_nop 1")
    A(f"v_mfma_f32_32x32x16_bf16 {vr(S_[0],16)}, {vr(KB[0],4)}, {vr(Q_,4)}, {vr(C_,16)}")
    A(f"ds_read_b128 {vr(KB[0],4)}, v{KA} offset:2048")
    A("s_mov_b64 exec, s[80:81]")
    A(f"ds_read_b128 {vr(V0[1],4)}, v{VA} offset:1024")
    A(f"ds_read_b128 {vr(V1[0],4)}, v{VA} offset:512")
    A("s_mov_b64 exec, -1")
    A("s_mov_b32 s83, 0")
    stamp(A, 7)
    A("s_nop 4")
    A("s_cmp_eq_u32 s82, 0")
    A("s_cbranch_scc1 L_LOOPP")
    attn_body(A, "0")
    attn_body(A, "1")
    attn_body(A, "2")
    A.lab("L_LOOPB")
    attn_body(A, "B")
    if OPT["prof"] and OPT["bstamp"]:
        A("s_memtime s[96:97]")
        A("s_memrealtime s[98:99]")
        A("s_add_u32 m0, s83, 17")
        A("s_waitcnt lgkmcnt(0)")
        A("v_writelane_b32 v255, s96, m0")
        A("s_add_u32 m0, s83, 49")
        A("s_nop 0")
        A("v_writelane_b32 v255, s98, m0")
    A("s_cmp_lt_u32 s83, 7")
    A("s_cbranch_scc1 L_LOOPB")
    attn_body(A, "C")
    A.lab("L_ATT_DONE")
    A("s_waitcnt lgkmcnt(0)")
    stamp(A, 10)
    A(f"v_smfmac_f32_32x32x32_bf16 {vr(O_,16)}, {vr(V1[1],4)}, {vr(S_[1]+8,8)}, v{IDX}")
    A("s_setprio 3")
    A(f"v_mov_b32 v96, {f2u(2.0**90):#x}")
    A(f"v_mov_b32 v97, {f2u(2.0**120):#x}")
    A(f"v_mov_b32 v99, {f2u(2.0**-100):#x}")
    A("s_nop 7")
    A(f"v_rcp_f32 v101, v{O_+8}")
    A("s_nop 0")
    A(f"v_mul_f32 v101, {f2u(2.0**-VSH):#x}, v101")
    for r in range(8): A(f"v_mul_f32 v{r}, v{O_+r}, v101")
    for i in range(4): A(f"v_cvt_pk_bf16_f32 v{8+i}, v{2*i}, v{2*i+1}")
    A(f"buffer_store_dwordx4 {vr(8,4)}, v{L16}, {sr(S_WS,4)}, s11 offen sc1")
    A("s_cmp_eq_u32 s82, 0")
    A("s_cbranch_scc1 L_FIN")
    A(f"v_add_f32 v100, abs(v{O_}), abs(v{O_+1})")
    for r in range(2, 8): A(f"v_add_f32 v100, v100, abs(v{O_+r})")
    A(f"v_cmp_nlt_f32 s[62:63], v{O_+8}, v96")
    A("v_cmp_nlt_f32 s[64:65], v100, v97")
    A("v_cmp_lt_f32 vcc, v100, v99")
    A("s_or_b64 s[62:63], s[62:63], s[64:65]")
    A("s_or_b64 s[62:63], s[62:63], vcc")
    A("s_cmp_eq_u64 s[62:63], 0")
    if not OPT["force_fallback"]: A("s_cbranch_scc1 L_FIN")
    A("s_mov_b32 s78, 32")
    A("s_mov_b32 s79, 0")
    A("s_mov_b32 s82, 0")
    A(f"v_mov_b32 v{VA}, v98")
    A("v_mov_b32 v100, 0xff800000")
    A("v_mov_b32 v101, 0xff800000")
    for r in range(16): A(f"v_mov_b32 v{O_+r}, 0")
    for r in range(8, 16): A(f"v_mov_b32 v{S_[1]+r}, 0")
    A(f"v_add_u32 v{KA}, {62*1024}, v{L16}")
    A("s_waitcnt vmcnt(0)")
    A("s_branch L_MAXLOOP")
    A.lab("L_FIN")

def red_addr(A):
    A("s_and_b32 s62, s22, 1")
    A("s_lshr_b32 s63, s22, 1")
    A("s_lshl_b32 s62, s62, 15")
    A("s_lshl_b32 s64, s63, 11")
    A("s_add_u32 s64, s64, s62")
    A("s_mov_b32 s16, s64")
    A("s_lshl_b32 s64, s63, 13")
    A("s_add_u32 s64, s64, s62")
    A("s_mov_b32 s17, s64")
def red_write(A, acc):
    for q in range(4):
        for hf in range(2):
            A(f"ds_write_b128 v102, {vr(acc+8*q+4*hf,4)} offset:{q*8192 + hf*1024}")
def red_read(A, dst):
    for s in range(4):
        for hf in range(2):
            A(f"ds_read_b128 {vr(dst+8*s+4*hf,4)}, v103 offset:{s*2048 + hf*1024}")
def red_sum(A, dst):
    for r in range(8):
        A(f"v_add_f32 v{dst+r}, v{dst+r}, v{dst+8+r}")
        A(f"v_add_f32 v{dst+16+r}, v{dst+16+r}, v{dst+24+r}")
    for r in range(8): A(f"v_add_f32 v{dst+r}, v{dst+r}, v{dst+16+r}")
def round_bf16(A, regs, tmp):
    for i in range(4): A(f"v_cvt_pk_bf16_f32 v{tmp+i}, v{regs+2*i}, v{regs+2*i+1}")
    for i in range(4):
        A(f"v_lshlrev_b32 v{regs+2*i}, 16, v{tmp+i}")
        A(f"v_and_b32 v{regs+2*i+1}, 0xffff0000, v{tmp+i}")

def gen_final(A):
    A("v_mov_b32 v96, 1")
    A("v_mov_b32 v97, 0")
    A("s_waitcnt vmcnt(0)")
    A("s_mov_b64 exec, 1")
    A(f"buffer_atomic_add v96, v97, {sr(S_WS,4)}, s12 offen")
    A("s_mov_b64 exec, -1")
    stamp(A, 11)
    A.many(apoll(32, 97, "s13", 1))
    A("s_barrier")
    red_write(A, DACC)
    A("s_waitcnt lgkmcnt(0)")
    A("s_barrier")
    G = DACC; T = 136
    red_read(A, G)
    spin3(A, "L_OPOLL", [32, 33, 34], 97, "s13", 8, primed=1)
    stamp(A, 12)
    for s in range(8):
        A(f"buffer_load_dwordx4 {vr(4*s,4)}, v{L16}, {sr(S_WS,4)}, s87 offen offset:{(s&3)*1024} sc1")
        if s == 3: A("s_add_u32 s87, s87, 4096")
    A("v_add_u32 v102, 65536, v102")
    A("v_add_u32 v103, 65536, v103")
    for i in range(4):
        A(f"v_lshlrev_b32 v{144+2*i}, 16, v{XV+i}")
        A(f"v_and_b32 v{145+2*i}, 0xffff0000, v{XV+i}")
    A("s_waitcnt lgkmcnt(0)")
    B = Asm()
    red_sum(B, G)
    round_bf16(B, G, T)
    for r in range(8): B(f"v_mul_f32 v{T+r}, {f2u(-LOG2E):#x}, v{G+r}")
    for r in range(8): B(f"v_exp_f32 v{T+r}, v{T+r}")
    for r in range(8): B(f"v_add_f32 v{T+r}, 1.0, v{T+r}")
    for r in range(8): B(f"v_rcp_f32 v{T+r}, v{T+r}")
    for r in range(8): B(f"v_mul_f32 v{G+r}, v{G+r}, v{T+r}")
    round_bf16(B, G, T)
    gw = [x.strip() for x in B.l]
    A.many(gw[:OPT["gpre"]]); gw = gw[OPT["gpre"]:]
    ACC = 104
    for s in range(8):
        A(f"s_waitcnt vmcnt({7-s})")
        for nt in range(2):
            c = "0" if s == 0 else vr(ACC+16*nt,16)
            A(f"v_mfma_f32_32x32x16_bf16 {vr(ACC+16*nt,16)}, {vr(WO+8*s+4*nt,4)}, {vr(4*s,4)}, {c}")
            A.many(gw[:4]); gw = gw[4:]
    A.many(gw)
    stamp(A, 13)
    A("s_nop 11")
    red_write(A, ACC)
    A("s_waitcnt lgkmcnt(0)")
    A("s_barrier")
    red_read(A, 0)
    A("s_waitcnt lgkmcnt(0)")
    red_sum(A, 0)
    round_bf16(A, 0, T)
    for r in range(8): A(f"v_mul_f32 v{r}, v{r}, v{G+r}")
    for i in range(4): A(f"v_cvt_pk_bf16_f32 v{T+i}, v{2*i}, v{2*i+1}")
    A("s_nop 1")
    A(f"v_permlane32_swap_b32 v{T}, v{T+2}")
    A(f"v_permlane32_swap_b32 v{T+1}, v{T+3}")
    A("s_nop 1")
    for i in range(4):
        A(f"v_lshlrev_b32 v{2*i}, 16, v{T+i}")
        A(f"v_and_b32 v{2*i+1}, 0xffff0000, v{T+i}")
    for r in range(8): A(f"v_add_f32 v{r}, v{r}, v{144+r}")
    for i in range(4): A(f"v_cvt_pk_bf16_f32 v{T+i}, v{2*i}, v{2*i+1}")
    A(f"buffer_store_dwordx4 {vr(T,4)}, v252, {sr(S_OUT,4)}, s88 offen")
    if OPT["fixdur"]:
        A.lab("L_FIXDUR")
        A("s_memrealtime s[96:97]")
        A("s_waitcnt lgkmcnt(0)")
        A("s_sub_u32 s96, s96, s100")
        A(f"s_cmp_lt_u32 s96, {OPT['fixdur']}")
        A("s_cbranch_scc1 L_FIXDUR")
    if OPT["prof"]:
        stamp(A, 14)
        A(f"s_add_u32 s{S_T1}, s18, {PROF_OFF:#x}")
        A(f"s_addc_u32 s{S_T1+1}, s19, 0")
        A(f"s_mov_b32 s{S_T1+2}, 0x100000")
        A(f"s_mov_b32 s{S_T1+3}, 0x00020000")
        A("s_lshl_b32 s60, s2, 3")
        A("s_add_u32 s60, s60, s22")
        A("s_lshl_b32 s60, s60, 8")
        A(f"v_lshlrev_b32 v0, 2, v{L}")
        A(f"buffer_store_dword v255, v0, {sr(S_T1,4)}, s60 offen")
        if OPT["dbgout"]:
            A("s_cmp_lg_u32 s2, 200")
            A("s_cbranch_scc1 L_END")
            A("s_cmp_lg_u32 s22, 0")
            A("s_cbranch_scc1 L_END")
            A("v_readlane_b32 s61, v255, 32")
            A("v_readlane_b32 s63, v255, 0")
            A("v_mov_b32 v1, 0")
            A("s_mov_b64 exec, 1")
            for n, i in enumerate((2, 3, 4, 6, 9, 10, 12, 14)):
                A(f"v_readlane_b32 s62, v255, {32+i}")
                A("s_sub_u32 s62, s62, s61")
                A("v_mov_b32 v2, s62")
                A(f"buffer_store_dword v2, v1, {sr(S_DBG,4)}, 0 offen offset:{32+4*n}")
                A("s_nop 1")
            A("v_readlane_b32 s62, v255, 14")
            A("s_sub_u32 s62, s62, s63")
            A("v_mov_b32 v2, s62")
            A(f"buffer_store_dword v2, v1, {sr(S_DBG,4)}, 0 offen offset:28")

def gen_hooks(A):
    gen_attinit(A)
    A.lab("L_LOOPP")
    attn_body(A, "P")
    A("s_cmp_lt_u32 s83, 8")
    A("s_cbranch_scc1 L_LOOPP")
    A("s_branch L_ATT_DONE")
    A.lab("L_CODE_END")

def main(out):
    hdr = open(f"cdna_kernels/{NAME}.s.ref").read().split("\n")
    head = [l for l in hdr if l.startswith(";") and "@launch" not in l]
    head += [f"; @launch grid=(256,1,1) block=(512,1,1) lds={LDS_BYTES}"]
    A = Asm()
    d = gen(A)
    open(out, "w").write("\n".join(head) + '\n.amdgcn_target "amdgcn-amd-amdhsa--gfx950"\n' + A.text() + d)

if __name__ == "__main__":
    for a in sys.argv[2:]:
        k, _, v = a.partition("=")
        OPT[k] = eval(v) if v else True
    main(sys.argv[1] if len(sys.argv) > 1 else f"cdna_kernels/{NAME}.s")
```

```python
import sys, struct

NAME = "recurrent_scan__softmax_full_mha__glu_gated_geglu__prompt"
MB = 1 << 20
QF, KF, VF, OF, WOF, WDF, HF, FLAGS = 0, 2*MB, 4*MB, 6*MB, 8*MB, 9*MB, 11*MB, 17*MB
WS_BYTES = 18*MB
NFU = 86
LOG2E = 1.4426950408889634
def f2u(x): return struct.unpack("<I", struct.pack("<f", x))[0]

OPT = dict(prof=False, bias=98.0, force_fallback=False, sleep=2, barpos=1, itstamp=False, hplan=[1,1,1,1,1,1,2,1], sigt=1, psleep=3, gpre=24, wearly=False, peel=True, wl1=0, nodown='', halfkv=False, b8prio=True, spf=False, prefetch=False, dmaevery=12, dbgout=False, fixdur=0, codepf=True, noload=False, bstamp=False, pace=None, wpf=[], exp='', w64=False, lprio=0, enc=-1, encrole='', cmap=True, prio='ramp2')
PROF_OFF = 24*MB
SPIN_MAX = 20000
VSH = 32

class Asm:
    def __init__(self): self.l = []
    def __call__(self, s): self.l.append(s if s.endswith(":") else "    " + s)
    def many(self, ss):
        for s in ss: self(s)
    def lab(self, s): self.l.append(s + ":")
    def raw(self, s): self.l.append(s)
    def text(self): return "\n".join(self.l) + "\n"
def vr(a, n): return f"v[{a}:{a+n-1}]"
def sr(a, n): return f"s[{a}:{a+n-1}]"
def srd(A, d, base, nbytes):
    A(f"s_mov_b32 s{d}, s{base}")
    A(f"s_mov_b32 s{d+1}, s{base+1}")
    A(f"s_mov_b32 s{d+2}, {nbytes:#x}")
    A(f"s_mov_b32 s{d+3}, 0x00020000")
def csel(A, d, a, b):
    A(f"s_mov_b32 s{d}, {b:#x}")
    A(f"s_cselect_b32 s{d}, {a:#x}, s{d}")
ROLE = [""]
def stamp(A, i):
    if OPT["enc"] == i and (not OPT["encrole"] or ROLE[0] in OPT["encrole"]):
        A("s_memrealtime s[100:101]")
        A("s_waitcnt lgkmcnt(0)")
    if not OPT["prof"]: return
    A("s_memtime s[96:97]")
    A("s_memrealtime s[98:99]")
    A("s_waitcnt lgkmcnt(0)")
    A(f"v_writelane_b32 v255, s96, {i}")
    A(f"v_writelane_b32 v255, s98, {32+i}")

WR = 32768
WSL = 18560
UPOFF = 9344
QOFF = 135168
SCRATCH = 147456
SW = 163584
LDS_BYTES = 163840
OFLAG = FLAGS
QFLAG = OFLAG + 256*128
QCNT = QFLAG + 64*128
NZ = 6
S_X, S_W, S_WS, S_DBG, S_OUT, S_T1, S_T2 = 24, 28, 32, 36, 40, 44, 48
L = 254
S_ = [0, 16]; C_ = 32; DACC = 48; Q_ = 80; KB = [84, 88]; O_ = 144; V0 = [160, 164]; V1 = [168, 172]
IDX, KA, VA, L16 = 92, 93, 94, 95
DH = [104, 116, 128, 140]; DW_ = [108, 120, 132, 176]
WO = 184; XV = 248

def spin(A, tag, loads, cmp_lines, first_loaded=False):
    A(f"s_mov_b32 s70, {SPIN_MAX}")
    if not first_loaded: A.many(loads)
    A.lab(tag)
    A("s_waitcnt vmcnt(0)")
    A.many(cmp_lines)
    A(f"s_cbranch_scc1 {tag}_OK")
    A(f"s_sleep {OPT['sleep']}")
    A.many(loads)
    A("s_sub_u32 s70, s70, 1")
    A("s_cmp_lg_u32 s70, 0")
    A(f"s_cbranch_scc1 {tag}")
    A.lab(tag + "_OK")
def spin3(A, tag, regs, voff, soff, n, primed=0):
    A(f"s_mov_b32 s70, {SPIN_MAX}")
    for r in regs[primed:2]:
        A.many(apoll(r, voff, soff, 1))
        A(f"s_sleep {OPT['psleep']}")
    A.lab(tag)
    for k in range(3):
        A.many(apoll(regs[(k+2) % 3], voff, soff, 1))
        A("s_waitcnt vmcnt(2)")
        A.many(acmp(regs[k], n, 1))
        A(f"s_cbranch_scc1 {tag}_OK")
        A(f"s_sleep {OPT['psleep']}")
    A("s_sub_u32 s70, s70, 1")
    A("s_cmp_lg_u32 s70, 0")
    A(f"s_cbranch_scc1 {tag}")
    A.lab(tag + "_OK")
def apoll(dst, voff, soff, mask):
    return [f"v_mov_b32 v{dst}, 0", f"s_mov_b64 exec, {mask}",
            f"buffer_atomic_add v{dst}, v{voff}, {sr(S_WS,4)}, {soff} offen sc0", "s_mov_b64 exec, -1"]
def acmp(v, n, mask):
    return [f"v_cmp_eq_u32 vcc, {n}, v{v}", f"s_cmp_eq_u64 vcc, {mask}"]
ALL1 = lambda v: [f"v_cmp_ne_u32 vcc, 1, v{v}", "s_cmp_eq_u64 vcc, 0"]

def last_wave_signals(A, tag, off, last):
    A(f"v_mov_b32 v96, {SW}")
    A("v_mov_b32 v97, 1")
    A("s_mov_b64 exec, 1")
    A(f"ds_add_rtn_u32 v100, v96, v97 offset:{off}")
    A("s_waitcnt lgkmcnt(0)")
    A("s_mov_b64 exec, -1")
    A("v_readfirstlane_b32 s60, v100")
    A(f"s_cmp_lg_u32 s60, {last}")
    A(f"s_cbranch_scc1 {tag}")
    A("s_mov_b32 exec_hi, 0")
    A(f"v_lshlrev_b32 v96, 7, v{L}")
    A(f"buffer_atomic_add v97, v96, {sr(S_WS,4)}, s91 offen")
    A("s_mov_b64 exec, -1")
    A.lab(tag)

def gen(A):
    name = NAME + "_kernel"
    A.raw(".text"); A.raw(f".globl {name}"); A.raw(".p2align 8"); A.raw(f".type {name},@function")
    A.lab(name)
    A("s_cmp_ge_u32 s2, 256")
    A("s_cbranch_scc1 L_END")
    if OPT["fixdur"]: A("s_memrealtime s[100:101]")
    A("s_load_dwordx4 s[4:7], s[0:1], 0")
    A("s_load_dwordx2 s[8:9], s[0:1], 16")
    A("s_load_dwordx4 s[12:15], s[0:1], 32")
    A("s_load_dwordx4 s[52:55], s[0:1], 48")
    A("s_load_dwordx4 s[56:59], s[0:1], 64")
    if OPT["prof"]: A("v_mov_b32 v255, 0")
    stamp(A, 0)
    A("s_getpc_b64 s[60:61]")
    A.lab("L_PC")
    A("s_lshr_b32 s23, s2, 3")
    A("s_lshl_b32 s62, s23, 11")
    A("v_lshl_add_u32 v250, v0, 7, s62")
    A("v_cmp_gt_u32 s[62:63], 16, v0")
    A("v_cmp_gt_u32 vcc, L_CODE_END-L_PC-4, v250")
    A("v_lshrrev_b32 v252, 6, v0")
    A(f"v_and_b32 v{L}, 63, v0")
    A("s_and_b64 exec, vcc, s[62:63]")
    A("s_cbranch_execz L_NOPF")
    A("v_mov_b32 v251, s61")
    A("v_add_co_u32 v250, vcc, s60, v250")
    A("v_addc_co_u32 v251, vcc, 0, v251, vcc")
    A("global_load_dword v253, v[250:251], off")
    A.lab("L_NOPF")
    A("s_mov_b64 exec, -1")
    A("v_readfirstlane_b32 s22, v252")
    T = TL
    A(f"v_lshrrev_b32 v{T}, 3, v{L}")
    A(f"v_and_b32 v{T+1}, 7, v{L}")
    A(f"v_lshlrev_b32 v{VX}, 10, v{T}")
    A(f"v_lshl_add_u32 v{VX}, v{T+1}, 4, v{VX}")
    A("s_bfe_u32 s20, s2, 0x20001")
    A("s_lshl_b32 s20, s20, 2")
    A("s_and_b32 s60, s23, 3")
    A("s_add_u32 s20, s20, s60")
    A("s_cmp_lt_u32 s22, 4")
    A("s_cbranch_scc1 L_COMMON")
    loader_first(A)
    A.lab("L_COMMON")
    A("s_lshr_b32 s62, s23, 2")
    A("s_and_b32 s63, s2, 1")
    A("s_lshl_b32 s21, s62, 1")
    A("s_add_u32 s21, s21, s63")
    A("s_mul_i32 s63, s63, 5")
    A("s_add_u32 s63, s63, s62")
    A("s_add_u32 s63, s63, 3")
    A("s_cmp_ge_u32 s62, 3")
    A("s_cselect_b32 s21, s63, s21")
    A("s_waitcnt lgkmcnt(0)")
    srd(A, S_X, 4, 2048*512*2)
    A("s_mov_b64 s[16:17], s[52:53]")
    A("s_mov_b64 s[18:19], s[58:59]")
    srd(A, S_WS, 58, WS_BYTES)
    srd(A, S_DBG, 56, 256)
    srd(A, S_OUT, 54, 2048*512*2)
    srd(A, S_T1, 58, 0)
    srd(A, S_T2, 58, 0)
    for r in HOFF: A(f"s_mov_b32 s{r}, 0x7fff0000")
    A("s_cmp_lt_u32 s22, 4")
    A("s_cbranch_scc1 L_COMPUTE")
    gen_loader(A)
    A("s_branch L_P0")
    A.lab("L_COMPUTE")
    gen_init(A)
    A("s_cmp_ge_u32 s21, 6")
    A("s_cbranch_scc1 L_F")
    A("s_cmp_ge_u32 s21, 4")
    A("s_cbranch_scc1 L_V")
    gen_compute(A, "QK")
    A.lab("L_V")
    gen_compute(A, "V")
    A.lab("L_SIGNAL")
    A("s_and_b32 s91, s21, 1")
    A("s_lshl_b32 s91, s91, 12")
    A(f"s_add_u32 s91, s91, {QCNT:#x}")
    A("s_waitcnt vmcnt(0)")
    last_wave_signals(A, "L_SIG2", 0, 3)
    stamp(A, 15)
    A("s_branch L_P2")
    A.lab("L_F")
    gen_compute(A, "F")
    A.lab("L_P2")
    gen_attn(A)
    gen_final(A)
    A.lab("L_END")
    A("s_endpgm")
    gen_hooks(A)
    return f""".section .rodata,"a"
.p2align 6
.amdhsa_kernel {name}
  .amdhsa_next_free_vgpr 256
  .amdhsa_next_free_sgpr 102
  .amdhsa_accum_offset 256
  .amdhsa_group_segment_fixed_size 0
  .amdhsa_kernarg_size 80
  .amdhsa_user_sgpr_count 2
  .amdhsa_user_sgpr_kernarg_segment_ptr 1
  .amdhsa_system_sgpr_workgroup_id_x 1
.end_amdhsa_kernel
"""

def gen_init(A):
    R = 160
    A("s_cmp_lg_u32 s22, 0")
    A("s_cbranch_scc1 L_INIT1")
    for r in range(R, R+4): A(f"v_mov_b32 v{r}, 0")
    A(f"v_mov_b32 v{R+4}, {SW}")
    A(f"ds_write_b128 v{R+4}, {vr(R,4)}")
    A("s_sub_u32 s61, s2, 128")
    A(f"s_cmp_ge_u32 s61, {NZ}")
    A("s_cbranch_scc1 L_INIT1")
    A(f"v_lshlrev_b32 v{R+4}, 7, v{L}")
    A("s_lshl_b32 s60, s61, 13")
    A(f"s_add_u32 s60, s60, {FLAGS:#x}")
    A(f"buffer_store_dword v{R}, v{R+4}, {sr(S_WS,4)}, s60 offen sc1")
    A("s_nop 1")
    A.lab("L_INIT1")
    for r in range(144): A(f"v_mov_b32 v{r}, 0")
    A("s_call_b64 s[76:77], L_ATTINIT")
    A("s_lshr_b32 s60, s22, 1")
    A("s_and_b32 s61, s22, 1")

VW = 144
def gen_wsetup(A):
    T = 158
    A("s_bfe_u32 s62, s22, 0x10001")
    A("s_and_b32 s63, s22, 1")
    A("s_cmp_lt_u32 s21, 6")
    A("s_cbranch_scc1 LL_Q")
    A("s_cmp_eq_u32 s63, 0")
    A(f"s_cselect_b32 s{S_W}, s12, s14")
    A(f"s_cselect_b32 s{S_W+1}, s13, s15")
    A(f"s_mov_b32 s{S_W+2}, {512*1376*2:#x}")
    A("s_sub_u32 s64, s21, 6")
    A(f"s_mul_i32 s64, s64, {9*32}")
    A(f"s_mov_b32 s65, {2752-288}")
    A(f"v_mul_u32_u24 v{T+2}, 3641, v{L}")
    A(f"v_lshl_add_u32 v{T+3}, v{L}, 4, s64")
    for i in range(9):
        A(f"v_add_u32 v{T+4}, {64*i*3641}, v{T+2}")
        A(f"v_lshrrev_b32 v{T+4}, 16, v{T+4}")
        A(f"v_add_u32 v{T+5}, {1024*i}, v{T+3}")
        A(f"v_mad_u32_u24 v{VW+i}, v{T+4}, s65, v{T+5}")
    A(f"v_and_b32 v{T+2}, 3, v{L}")
    A(f"v_min_u32 v{T+2}, 2, v{T+2}")
    A("s_mov_b32 s65, 2752")
    A(f"s_mov_b32 s68, {32*2752}")
    A("s_branch LL_C")
    A.lab("LL_Q")
    A(f"s_mov_b32 s{S_W}, s6")
    A(f"s_mov_b32 s{S_W+1}, s7")
    A(f"s_mov_b32 s{S_W+2}, {512*1536*2:#x}")
    A(f"v_lshrrev_b32 v{T+3}, 4, v{L}")
    A(f"v_mul_u32_u24 v{T+2}, 3072, v{T+3}")
    A(f"v_bfe_u32 v{T+4}, v{L}, 2, 2")
    A(f"v_xor_b32 v{T+4}, v{T+4}, v{T+3}")
    A(f"v_lshl_add_u32 v{T+2}, v{T+4}, 6, v{T+2}")
    A(f"v_and_b32 v{T+3}, 3, v{L}")
    A(f"v_lshl_add_u32 v{T+2}, v{T+3}, 4, v{T+2}")
    A("s_lshl_b32 s64, s21, 9")
    A("s_lshl_b32 s65, s63, 8")
    A("s_add_u32 s64, s64, s65")
    A(f"v_add_u32 v{VW}, s64, v{T+2}")
    for i in range(1, 9): A(f"v_add_u32 v{VW+i}, {i*4*3072}, v{VW}")
    A(f"v_and_b32 v{T+2}, 1, v{L}")
    A("s_mov_b32 s65, 3072")
    A(f"s_mov_b32 s68, {32*3072}")
    A.lab("LL_C")
    A("s_and_b32 s66, s20, 3")
    A("s_lshl_b32 s66, s66, 3")
    A(f"v_lshrrev_b32 v{T+3}, 2, v{L}")
    A(f"v_add_u32 v{T+3}, s66, v{T+3}")
    A(f"v_mul_u32_u24 v{T+3}, s65, v{T+3}")
    A(f"v_lshl_add_u32 v{T+3}, v{T+2}, 7, v{T+3}")
    A(f"v_add_u32 v{VW+9}, s64, v{T+3}")
    A(f"s_mov_b32 s{S_W+3}, 0x00020000")
    A(f"s_mul_i32 s71, s62, {WSL}")
    A(f"s_mul_i32 s66, s63, {UPOFF}")
    A("s_add_u32 s71, s71, s66")
    A(f"s_add_u32 s71, s71, {WR}")
    A("s_mov_b32 s72, s71")
    A(f"s_add_u32 s73, s71, {6*WSL}")
    A("s_mul_i32 s74, s62, s68")
    A("s_lshl_b32 s68, s68, 1")

W_PREFETCH = ["s_add_u32 s67, s74, s68", "s_mov_b32 exec_hi, 0",
              f"buffer_load_dword v253, v{VW+9}, {sr(S_W,4)}, s67 offen", "s_mov_b64 exec, -1"]
_dma_n = [0]
def dma_piece(i): return [f"s_add_u32 m0, s72, {i*1024}", "s_nop 0", f"buffer_load_dwordx4 v{VW+i}, {sr(S_W,4)}, s74 offen lds"]
DMA_TAIL = ["s_add_u32 s74, s74, s68", f"s_add_u32 s72, s72, {2*WSL}", "s_cmp_eq_u32 s72, s73", "s_cselect_b32 s72, s71, s72"]
def dma_groups(first):
    g = [dma_piece(i) for i in range(first, 9)]
    _dma_n[0] += 1
    lab = f"LL_D{_dma_n[0]}"
    g[-1] = ["s_cmp_lt_u32 s21, 6", f"s_cbranch_scc1 {lab}"] + g[-1] + [lab + ":"] + DMA_TAIL
    return g
def mix(A, work, groups, every):
    groups = list(groups)
    for n, w in enumerate(work):
        if isinstance(every, (list, tuple)):
            for _ in range(every.count(n)):
                if groups: A.many(groups.pop(0))
        elif groups and n % every == 0: A.many(groups.pop(0))
        A(w)
    for g in groups: A.many(g)

HREG = 184
HOFF = [52, 53, 54, 55, 56, 57, 58, 59, 10]
def h_offsets(A):
    tiles = [(lu*2+lt, lu, lt) for lu in range(4) for lt in range(2)] + [(8, 4, 0)]
    for (tile, lu, lt) in tiles:
        A("s_add_u32 s66, s64, 8" if lu == 4 else f"s_add_u32 s66, s65, {lu}")
        A("s_lshl_b32 s67, s66, 10")
        A(f"s_add_u32 s67, s67, s{62+lt}")
        A(f"s_cmp_lt_u32 s66, {NFU}")
        A(f"s_cselect_b32 s{HOFF[tile]}, s67, 0x7fff0000")

SJ = 184
def side_setup(A):
    A("s_mul_i32 s75, s20, 10")
    A("s_add_u32 s75, s75, s21")
    A("s_sub_u32 s75, s75, 6")
    A("s_mul_i32 s75, s75, 3")
    A("s_add_u32 s75, s75, s60")
    A("s_sub_u32 s75, s75, 1")
    A(f"v_lshrrev_b32 v245, 5, v{L}")
    A("v_lshlrev_b32 v245, 10, v245")
    A(f"v_and_b32 v246, 31, v{L}")
    A("v_lshl_add_u32 v245, v246, 4, v245")
    for jb in range(2):
        S = 4 if jb else S_W
        A(f"s_add_u32 s90, s75, {480*jb}")
        A("s_cmp_lt_u32 s90, 256")
        A(f"s_cselect_b32 s{S}, s8, s16")
        A(f"s_cselect_b32 s{S+1}, s9, s17")
        csel(A, S+2, 512*512*2, 1376*512*2)
        A(f"s_mov_b32 s{S+3}, 0x00020000")
        csel(A, 91, WOF, WDF)
        csel(A, 67, 32*2048, NFU*2048)
        A("s_cselect_b32 s70, 0, 256")
        A("s_sub_u32 s70, s90, s70")
        A("s_lshr_b32 s94, s70, 3")
        A("s_and_b32 s70, s70, 7")
        A(f"s_lshl_b32 s{72+jb}, s94, 14")
        A("s_lshl_b32 s95, s70, 7")
        A(f"s_add_u32 s{72+jb}, s{72+jb}, s95")
        A("s_mul_i32 s70, s70, s67")
        A("s_lshl_b32 s94, s94, 11")
        A("s_add_u32 s70, s70, s94")
        A("s_add_u32 s70, s70, s91")
        A(f"s_cmp_lt_u32 s90, {256+8*NFU}")
        A(f"s_cselect_b32 s{92+jb}, s70, 0x7fff0000")
def side_prefetch(A):
    A("s_mov_b64 exec, 0xffff")
    A(f"buffer_load_dword v253, v245, {sr(S_T1,4)}, s81 offen")
    A(f"buffer_load_dword v253, v245, {sr(S_T2,4)}, s82 offen")
    A("s_mov_b64 exec, -1")
def side_loads(A, jb):
    S = 4 if jb else S_W
    for rho in range(16):
        hh = (rho >> 2) & 1; j = (rho & 3) + 4*(rho >> 3)
        d = SJ + 16*jb + 8*(j & 1) + 4*hh + (j >> 1)
        A(f"buffer_load_ushort v{d}, v244, {sr(S,4)}, s{72+jb} offen offset:{(rho&3)*1024}")
        if (rho & 3) == 3: A(f"s_add_u32 s{72+jb}, s{72+jb}, 4096")
def side_combine(A):
    for jb in range(2):
        d = SJ + 16*jb
        for i in range(8): A(f"v_lshl_or_b32 v{d+i}, v{d+8+i}, 16, v{d+i}")
        A(f"s_mov_b32 s{HOFF[4*jb]}, s{92+jb}")
        A(f"s_add_u32 s{HOFF[4*jb+1]}, s{92+jb}, 512")
    A("v_mov_b32 v249, v245")

def gen_compute(A, kind):
    F = kind == "F"
    ROLE[0] = kind[0]
    NW = 5 if F else 4
    ND = 9 if F else 8
    XS = [176, 184]; WSET = [192, 212]
    XA = 232; XB = 236; WA = 240; T0 = 244
    KQ = 1152 if F else 1024
    US = 32
    P = "L1" + kind
    t, h, sw = T0, T0+1, T0+2
    A(f"v_and_b32 v{t}, 31, v{L}")
    A(f"v_lshrrev_b32 v{h}, 5, v{L}")
    A(f"v_bfe_u32 v{sw}, v{t}, 1, 3")
    A(f"v_xor_b32 v{sw}, v{sw}, v{h}")
    A(f"v_lshlrev_b32 v{T0+3}, 7, v{t}")
    A("s_lshl_b32 s62, s22, 12")
    for s in range(4):
        A(f"v_xor_b32 v{T0+4}, {2*s}, v{sw}")
        A(f"v_lshl_add_u32 v{T0+4}, v{T0+4}, 4, v{T0+3}")
        A(f"v_add_u32 v{XA+s}, s62, v{T0+4}")
        A(f"v_xor_b32 v{XB+s}, 0x1000, v{XA+s}")
    if F:
        A(f"v_bfe_u32 v{T0+5}, v{L}, 2, 2")
        A(f"v_mul_u32_u24 v{T0+5}, 288, v{T0+5}")
        A(f"v_and_b32 v{T0+3}, 3, v{L}")
        A(f"v_lshl_add_u32 v{T0+3}, v{T0+3}, 3, v{T0+5}")
        A(f"v_bfe_u32 v{T0+4}, v{L}, 4, 1")
        A(f"v_mul_u32_u24 v{T0+4}, {UPOFF}, v{T0+4}")
        A(f"v_add_u32 v{T0+3}, v{T0+3}, v{T0+4}")
    else:
        A(f"v_bfe_u32 v{T0+5}, v{L}, 2, 2")
        A(f"v_and_b32 v{T0+3}, 3, v{L}")
        A(f"v_lshlrev_b32 v{T0+3}, 3, v{T0+3}")
        A(f"v_lshl_add_u32 v{T0+3}, v{T0+5}, 8, v{T0+3}")
        A(f"v_bfe_u32 v{T0+4}, v{L}, 4, 1")
        A(f"v_lshl_add_u32 v{T0+3}, v{T0+4}, 5, v{T0+3}")
    A(f"v_mul_u32_u24 v{T0+4}, {2*KQ}, v{h}")
    A(f"v_add_u32 v{T0+3}, v{T0+3}, v{T0+4}")
    A(f"v_add_u32 v{T0+3}, {WR}, v{T0+3}")
    if F:
        A(f"s_mul_i32 s62, s61, {4*US}")
        A(f"v_add_u32 v{WA}, s62, v{T0+3}")
        A(f"v_add_u32 v{WA+1}, {8*US}, v{T0+3}")
    else:
        A(f"s_mul_i32 s62, s61, {UPOFF}")
        A(f"v_add_u32 v{T0+3}, s62, v{T0+3}")
        for lu in range(4):
            A(f"v_xor_b32 v{T0+4}, {lu}, v{T0+5}")
            A(f"v_lshl_add_u32 v{WA+lu}, v{T0+4}, 6, v{T0+3}")
    VO = 249
    if kind == "QK":
        A(f"v_and_b32 v{T0+6}, 0x33, v{L}")
        A(f"v_bfe_u32 v{T0+7}, v{L}, 2, 1")
        A(f"v_lshl_or_b32 v{T0+6}, v{T0+7}, 3, v{T0+6}")
        A(f"v_bfe_u32 v{T0+7}, v{L}, 3, 1")
        A(f"v_lshl_or_b32 v{T0+6}, v{T0+7}, 2, v{T0+6}")
        A("s_cmp_lt_u32 s21, 2")
        A("s_cselect_b64 vcc, -1, 0")
        A(f"v_cndmask_b32 v{VO}, v{T0+6}, v{L}, vcc")
        A(f"v_lshlrev_b32 v{VO}, 4, v{VO}")
    elif kind == "V":
        A(f"v_and_b32 v{VO}, 15, v{L}")
        A(f"v_lshlrev_b32 v{VO}, 4, v{VO}")
        A(f"v_lshl_or_b32 v{VO}, v{h}, 8, v{VO}")
        A(f"v_bfe_u32 v{T0+6}, v{L}, 4, 1")
        A(f"v_lshl_or_b32 v{VO}, v{T0+6}, 16, v{VO}")
    else:
        A(f"v_lshlrev_b32 v{VO}, 4, v{L}")
    A("s_lshl_b32 s68, s20, 2")
    A("s_add_u32 s68, s68, s22")
    A("s_xor_b32 s69, s68, 1")
    if not F:
        A("s_lshl_b32 s70, s21, 20")
        A("s_lshl_b32 s71, s61, 19")
        A("s_add_u32 s70, s70, s71")
        A("s_lshl_b32 s68, s68, 10")
        A("s_lshl_b32 s69, s69, 10")
        A("s_add_u32 s68, s68, s70")
        A("s_add_u32 s69, s69, s70")
    A("s_mov_b32 s64, 0")
    A("s_mov_b32 s65, 0")

    def reads(st, s):
        r = []
        hs, sp = s >> 1, s & 1
        def wread(lu):
            a = WA + ((1 if lu == 4 else 0) if F else lu)
            base = hs*WSL + 4*sp*KQ + (lu*US if F and lu < 4 else 0)
            d = WSET[st] + 4*lu
            return [f"ds_read_b64_tr_b16 {vr(d,2)}, v{a} offset:{base}",
                    f"ds_read_b64_tr_b16 {vr(d+2,2)}, v{a} offset:{base+KQ}"]
        r.append(f"ds_read_b128 {vr(XS[st],4)}, v{XA+s}")
        r += wread(0)
        r.append(f"ds_read_b128 {vr(XS[st]+4,4)}, v{XB+s}")
        for lu in range(1, NW): r += wread(lu)
        return r
    def mfma(tile, w, x):
        a, b = (x, w) if kind == "V" else (w, x)
        return f"v_mfma_f32_32x32x16_bf16 {vr(16*tile,16)}, {vr(a,4)}, {vr(b,4)}, {vr(16*tile,16)}"
    def mfmas(st):
        m = [mfma(lu*2+lt, WSET[st]+4*lu, XS[st]+4*lt) for lu in range(4) for lt in range(2)]
        if F: m.append(mfma(8, WSET[st]+16, XS[st]))
        return m
    stamp(A, 1)
    A("s_waitcnt vmcnt(0) lgkmcnt(0)" if F else "s_waitcnt lgkmcnt(0)")
    A("s_barrier")
    stamp(A, 2)
    A.many(reads(0, 0))
    if F:
        A("s_sub_u32 s66, s2, 128")
        A("s_lshl_b32 s67, s22, 8")
        A("s_add_u32 s66, s66, s67")
        A(f"s_cmp_ge_u32 s66, {NZ}")
        A(f"s_cbranch_scc1 {P}_LOOP")
        A("s_lshl_b32 s66, s66, 2")
        A("s_mov_b64 exec, 1")
        A("v_mov_b32 v250, 1")
        A("v_mov_b32 v251, 0")
        A(f"buffer_store_dword v250, v251, {sr(S_DBG,4)}, s66 offen sc1")
        A("s_mov_b64 exec, -1")
    A.raw(".p2align 6")
    A.lab(P + "_LOOP")
    NR = 2*NW + 2
    PEEL = OPT["peel"] and not F
    NIT = 7 if PEEL else 8
    need = [3, 4, 6, 6, 8, 8, 10, 10, 12]
    for s in range(4):
        st = s & 1; nx = (s+1) & 3
        ms = mfmas(st); rd = reads(1-st, nx)
        n = len(ms)
        gaps = [[] for _ in ms]
        g0 = OPT["barpos"] if s == 3 else 0
        for i, r in enumerate(rd): gaps[g0 + i//2].append(r)
        xu = lambda k: [f"v_xor_b32 v{XA+k}, 0x4000, v{XA+k}", f"v_xor_b32 v{XB+k}, 0x4000, v{XB+k}"]
        if s < 3:
            gaps[n-2] += xu(nx)
        if s == 0: gaps[n-3] += xu(0)
        if s == 1:
            gaps[n-3] += ["s_cmp_eq_u32 s65, 2", f"s_mov_b32 s66, {2*WSL:#x}", f"s_cselect_b32 s66, {(-4*WSL) & 0xffffffff:#x}, s66"]
            gaps[n-1] += ["s_cselect_b32 s65, -1, s65", "s_add_u32 s65, s65, 1"]
        if s == 2:
            gaps[n-1] += [f"v_add_u32 v{WA+i}, s66, v{WA+i}" for i in range(2 if F else 4)]
        if s == 3:
            gaps[n-1] += ["s_add_u32 s64, s64, 1", f"s_cmp_lt_u32 s64, {NIT}"]
        issued = 0; done = 0
        for i, (m, g) in enumerate(zip(ms, gaps)):
            if need[i] > done:
                A(f"s_waitcnt lgkmcnt({min(15, NR - need[i] + issued)})"); done = need[i]
            A(m)
            if s == 3 and i == g0:
                A("s_waitcnt lgkmcnt(0)"); done = NR
                A("s_barrier")
            for x in g:
                A(x)
                if x.startswith("ds_"): issued += 1
    if OPT["prof"] and OPT["itstamp"]:
        A("s_memtime s[96:97]")
        A("s_memrealtime s[98:99]")
        A("s_add_u32 m0, s64, 19")
        A("s_waitcnt lgkmcnt(0)")
        A("v_writelane_b32 v255, s96, m0")
        A("s_add_u32 m0, s64, 51")
        A("s_nop 0")
        A("v_writelane_b32 v255, s98, m0")
        A(f"s_cmp_lt_u32 s64, {NIT}")
    A(f"s_cbranch_scc1 {P}_LOOP")
    stamp(A, 3)
    tiles = [(lu*2+lt, lu, lt) for lu in range(4) for lt in range(2)] + ([(8, 4, 0)] if F else [])
    if not F:
        def fin(tile, lu, lt):
            a = 16*tile
            g = [[f"v_cvt_pk_bf16_f32 v{a+i}, v{a+2*i}, v{a+2*i+1}" for i in range(4)],
                 [f"s_add_u32 s65, s{68+lt}, {lu*131072}", f"buffer_store_dwordx4 {vr(a,4)}, v{VO}, {sr(S_WS,4)}, s65 offen sc1"],
                 [f"v_cvt_pk_bf16_f32 v{a+8+i}, v{a+8+2*i}, v{a+9+2*i}" for i in range(4)]]
            if kind == "QK": g.append(["s_add_u32 s65, s65, 65536", f"buffer_store_dwordx4 {vr(a+8,4)}, v{VO}, {sr(S_WS,4)}, s65 offen sc1"])
            else: g.append([f"buffer_store_dwordx4 {vr(a+8,4)}, v{VO}, {sr(S_WS,4)}, s65 offen offset:512 sc1"])
            return g
        rest = tiles
        if PEEL:
            XR = {1: XS[1], 2: 128, 3: 136}
            WG = [[212, 216, 220], [224, 228, 208]]
            def wrd(lu):
                r = []
                for s in (1, 2, 3):
                    base = (s >> 1)*WSL + 4*(s & 1)*KQ; d = WG[lu & 1][s-1]
                    r += [f"ds_read_b64_tr_b16 {vr(d,2)}, v{WA+lu} offset:{base}", f"ds_read_b64_tr_b16 {vr(d+2,2)}, v{WA+lu} offset:{base+KQ}"]
                return r
            w0 = wrd(0); rd = []
            for s in (1, 2, 3):
                rd += [f"ds_read_b128 {vr(XR[s],4)}, v{XA+s}", f"ds_read_b128 {vr(XR[s]+4,4)}, v{XB+s}"] + w0[2*s-2:2*s]
            issued = 0; done = 0
            for i, m in enumerate(mfmas(0)):
                if need[i] > done:
                    A(f"s_waitcnt lgkmcnt({min(15, NR - need[i] + issued)})"); done = need[i]
                A(m)
                A.many(rd[2*i:2*i+2]); issued += len(rd[2*i:2*i+2])
            pend = []
            for lu in range(4):
                A("s_waitcnt lgkmcnt(0)")
                if lu == 3: A("s_barrier")
                nxt = wrd(lu+1) if lu < 3 else []
                for i, (s, lt) in enumerate((s, lt) for s in (1, 2, 3) for lt in range(2)):
                    A(mfma(lu*2+lt, WG[lu & 1][s-1], XR[s]+4*lt))
                    A.many(nxt[2*i:2*i+2])
                    if i == 2 and lu > 0:
                        A("s_nop 3")
                        for tl in tiles[2*(lu-1):2*lu]: pend += fin(*tl)
                    for _ in range(2 if i >= 3 else 1):
                        if pend: A.many(pend.pop(0))
            for g in pend: A.many(g)
            A("s_nop 7")
            rest = tiles[6:]
        for tl in rest:
            for g in fin(*tl): A.many(g)
        stamp(A, 4)
        if kind == "QK": A("s_branch L_SIGNAL")
    else:
        A(f"s_mul_i32 s62, s68, {NFU*1024}")
        A(f"s_mul_i32 s63, s69, {NFU*1024}")
        A(f"s_add_u32 s62, s62, {HF:#x}")
        A(f"s_add_u32 s63, s63, {HF:#x}")
        A("s_sub_u32 s64, s21, 6")
        A("s_mul_i32 s64, s64, 9")
        A("s_lshl_b32 s65, s61, 2")
        A("s_add_u32 s65, s65, s64")
        C1, C3, ONE, TT = 220, 222, 224, 176
        c1 = -2*0.7978845608028654*LOG2E
        A("s_waitcnt lgkmcnt(0)")
        for r, v in ((C1, c1), (C3, c1*0.044715), (ONE, 1.0)):
            A(f"v_mov_b32 v{r}, {f2u(v):#x}")
            A(f"v_mov_b32 v{r+1}, {f2u(v):#x}")
        dst = lambda tile: HREG + 4*tile
        h_offsets(A)
        for (tile, lu, lt) in tiles:
            a = 16*tile
            for i in range(4): A(f"v_pk_mul_f32 {vr(TT+2*i,2)}, {vr(a+2*i,2)}, {vr(a+2*i,2)}")
            for i in range(4): A(f"v_pk_fma_f32 {vr(TT+2*i,2)}, {vr(TT+2*i,2)}, {vr(C3,2)}, {vr(C1,2)}")
            for i in range(4): A(f"v_pk_mul_f32 {vr(TT+2*i,2)}, {vr(TT+2*i,2)}, {vr(a+2*i,2)}")
            for i in range(8): A(f"v_exp_f32 v{TT+i}, v{TT+i}")
            for i in range(4): A(f"v_pk_mul_f32 {vr(a+2*i,2)}, {vr(a+2*i,2)}, {vr(a+8+2*i,2)}")
            for i in range(4): A(f"v_pk_add_f32 {vr(TT+2*i,2)}, {vr(TT+2*i,2)}, {vr(ONE,2)}")
            for i in range(8): A(f"v_rcp_f32 v{TT+i}, v{TT+i}")
            A("s_nop 0")
            for i in range(4): A(f"v_pk_mul_f32 {vr(a+2*i,2)}, {vr(a+2*i,2)}, {vr(TT+2*i,2)}")
            for i in range(4): A(f"v_cvt_pk_bf16_f32 v{dst(tile)+i}, v{a+2*i}, v{a+2*i+1}")
        stamp(A, 4)

VX = 212; DW = 240; S1 = 216; S2 = 220; RR = 224; MR = 228; TL = 232
xreg = lambda c, i: (i*8 + c)*4
def xload_(A, i):
    A(f"s_add_u32 s{85+i}, s80, {i}")
    A(f"s_and_b32 s{85+i}, s{85+i}, 3")
    A(f"s_lshl_b32 s89, s{85+i}, 13")
    A("s_add_u32 s89, s89, s61")
    for c in range(8):
        A(f"buffer_load_dwordx4 {vr(xreg(c,i),4)}, v{VX}, {sr(S_X,4)}, s89 offen offset:{c*128}")
def loader_first(A):
    T = TL
    A("s_sub_u32 s60, s22, 4")
    A("s_lshl_b32 s61, s20, 17")
    A("s_lshl_b32 s62, s60, 15")
    A("s_add_u32 s61, s61, s62")
    A("s_lshr_b32 s80, s2, 5")
    A("s_waitcnt lgkmcnt(0)")
    srd(A, S_X, 4, 2048*512*2)
    xload_(A, 0); xload_(A, 1)

def gen_loader(A):
    ROLE[0] = "L"
    T = TL
    xload = lambda i: xload_(A, i)
    gen_wsetup(A)
    xload(2)
    A("s_cmp_lt_u32 s21, 2")
    A(f"s_cselect_b32 s69, {f2u(0.25*LOG2E):#x}, 1.0")
    A("s_lshr_b32 s64, s21, 1")
    A("s_cmp_eq_u32 s64, 2")
    A(f"s_cselect_b32 s69, {f2u(2.0**VSH):#x}, s69")
    for r in range(S1, S2+4): A(f"v_mov_b32 v{r}, 0")
    A("s_mov_b32 s78, 0x3f803f80")
    A("v_mov_b32 v249, 0")
    A(f"v_lshlrev_b32 v244, 1, v{L}")
    A("s_cmp_ge_u32 s21, 6")
    A("s_cselect_b32 s79, s60, 0")
    def norm(c, i):
        x = xreg(c, i); r = []
        for d in range(4):
            r.append(f"v_lshlrev_b32 v{T+2*d}, 16, v{x+d}")
            r.append(f"v_and_b32 v{T+2*d+1}, 0xffff0000, v{x+d}")
        for d in range(8): r.append(f"v_fma_f32 v{T+d}, v{T+d}, v{RR+i}, -v{MR+i}")
        for d in range(4): r.append(f"v_cvt_pk_bf16_f32 v{x+d}, v{T+2*d}, v{T+2*d+1}")
        if OPT["w64"]:
            r.insert(-2, f"ds_write_b64 v{DW+i}, {vr(x,2)} offset:{(c&1)*16384}")
            r.append(f"ds_write_b64 v{DW+i}, {vr(x+2,2)} offset:{(c&1)*16384+8}")
        else: r.append(f"ds_write_b128 v{DW+i}, {vr(x,4)} offset:{(c&1)*16384}")
        return r
    def dots(i):
        r = []
        for k in range(32):
            r.append(f"v_dot2c_f32_bf16 v{S2+i}, v{xreg(0,i)+k}, v{xreg(0,i)+k}")
            r.append(f"v_dot2c_f32_bf16 v{S1+i}, s78, v{xreg(0,i)+k}")
        return r
    A("s_waitcnt vmcnt(16)"); stamp(A, 16)
    xload(3)
    A.many(dots(0))
    A(f"v_lshrrev_b32 v{T+2}, 4, v{L}")
    A(f"v_xor_b32 v{T+2}, v{T+2}, v{T+1}")
    A(f"v_lshlrev_b32 v{T+3}, 7, v{T}")
    A("s_lshl_b32 s64, s60, 12")
    A(f"v_add_u32 v{T+3}, s64, v{T+3}")
    A(f"v_lshl_add_u32 v{T+3}, v{T+2}, 4, v{T+3}")
    for i in range(4):
        A(f"s_and_b32 s64, s{85+i}, 1")
        A("s_lshl_b32 s64, s64, 6")
        A(f"s_lshl_b32 s65, s{85+i}, 10")
        A("s_or_b32 s64, s64, s65")
        A(f"v_xor_b32 v{DW+i}, s64, v{T+3}")
    def vmw(base, tag):
        A(f"s_waitcnt vmcnt({base+9})")
        A("s_cmp_ge_u32 s21, 6")
        A(f"s_cbranch_scc1 {tag}")
        A(f"s_waitcnt vmcnt({base+8})")
        A.lab(tag)
    A("s_waitcnt vmcnt(16)"); stamp(A, 17)
    if OPT["wearly"]:
        mix(A, dots(1), dma_groups(0), 7)
        vmw(8, "LL_G2"); stamp(A, 18)
        A.many(dots(2))
    else:
        A.many(dots(1))
        A("s_waitcnt vmcnt(8)"); stamp(A, 18)
        mix(A, dots(2), dma_groups(0), 7)
    vmw(0, "LL_G3")
    stamp(A, 19)
    A.many(dots(3))
    A("s_nop 2")
    for ctl in ("quad_perm:[1,0,3,2]", "quad_perm:[2,3,0,1]", "row_half_mirror"):
        for r in range(S1, S2+4):
            A(f"v_add_f32_dpp v{r}, v{r}, v{r} {ctl} row_mask:0xf bank_mask:0xf")
    seq = [
        lambda i: f"v_mul_f32 v{S1+i}, {f2u(1/512):#x}, v{S1+i}",
        lambda i: f"v_mul_f32 v{S2+i}, {f2u(1/512):#x}, v{S2+i}",
        lambda i: f"v_fma_f32 v{S2+i}, -v{S1+i}, v{S1+i}, v{S2+i}",
        lambda i: f"v_max_f32 v{S2+i}, 0, v{S2+i}",
        lambda i: f"v_cvt_pk_bf16_f32 v{S2+i}, v{S1+i}, v{S2+i}",
        lambda i: f"v_lshlrev_b32 v{S1+i}, 16, v{S2+i}",
        lambda i: f"v_and_b32 v{S2+i}, 0xffff0000, v{S2+i}",
        lambda i: f"v_add_f32 v{S2+i}, {f2u(1e-5):#x}, v{S2+i}",
        lambda i: f"v_cvt_pk_bf16_f32 v{S2+i}, v{S2+i}, v{S2+i}",
        lambda i: f"v_and_b32 v{S2+i}, 0xffff0000, v{S2+i}",
        lambda i: f"v_sqrt_f32 v{S2+i}, v{S2+i}",
        lambda i: f"v_cvt_pk_bf16_f32 v{S2+i}, v{S2+i}, v{S2+i}",
        lambda i: f"v_and_b32 v{S2+i}, 0xffff0000, v{S2+i}",
        lambda i: f"v_rcp_f32 v{RR+i}, v{S2+i}",
        lambda i: f"v_mul_f32 v{RR+i}, s69, v{RR+i}",
        lambda i: f"v_mul_f32 v{MR+i}, v{S1+i}, v{RR+i}",
    ]
    for f in seq:
        for i in range(4): A(f(i))
    stamp(A, 1)
    mix(A, sum((norm(0, i) for i in range(4)), []), dma_groups(0), OPT["dmaevery"])
    if -1 in OPT["wpf"]: A.many(W_PREFETCH)
    stamp(A, 2)
    dbg_load = [f"buffer_load_dword v97, v96, {sr(S_DBG,4)}, 0 offen sc1"]
    for m in range(8):
        if m == 4: stamp(A, 29)
        A(f"s_waitcnt vmcnt({8 if m < 7 else 0}) lgkmcnt(0)")
        if m == 4: stamp(A, 30)
        if m == 5:
            A.many(ALL1(97))
            A("s_cbranch_scc1 LL_POLL0_OK")
            spin(A, "LL_POLL0", dbg_load, ALL1(97))
        A("s_barrier")
        if m == 3: stamp(A, 28)
        if m == 4: stamp(A, 31)
        if m == 7: break
        work = sum((norm(m+1, i) for i in range(4)), [])
        isw = lambda w: w.startswith("ds_")
        if OPT["exp"] == "wlast": work = [w for w in work if not isw(w)] + [w for w in work if isw(w)]
        if OPT["exp"] == "wfirst":
            if m == 0: A.many(work)
            else: A.many([w for w in work if isw(w)])
            work = [w for w in sum((norm(m+2, i) for i in range(4)), []) if not isw(w)] if m < 6 else []
        if OPT["exp"].startswith("grp"):
            dg = dma_groups(0) if m < 6 else []
            split = {"grp": [3,2,2,2,0], "grp2": [0,3,3,3,0], "grp3": [2,3,2,2,0], "grp4": [4,3,2,0,0]}[OPT["exp"]]
            for _ in range(split[0]):
                if dg: A.many(dg.pop(0))
            for i in range(4):
                nn = norm(m+1, i)
                A.many(nn[:-1])
                for _ in range(split[i+1]):
                    if dg: A.many(dg.pop(0))
                A(nn[-1])
            work = None
        if OPT["exp"] == "nonorm": work = []
        if OPT["exp"] == "nowrite": work = [w for w in work if not w.startswith("ds_")]
        if OPT["exp"] == "dmalast":
            A.many(work); work = []
        if OPT["exp"] == "dmafirst":
            mix(A, [], dma_groups(0) if m < 6 else [], 1); A.many(work); continue
        if work is not None: mix(A, work, dma_groups(0) if m < 6 else [], OPT["dmaevery"])
        if m in OPT["wpf"]: A.many(W_PREFETCH)
        if m == 3:
            A(f"v_min_u32 v96, {NZ-1}, v{L}")
            A("v_lshlrev_b32 v96, 2, v96")
            A.many(dbg_load)
    A("s_mov_b32 s23, s79")
    side_setup(A)
    A("s_call_b64 s[76:77], L_ATTINIT")
    late_init(A)
    A("s_barrier")
    if OPT["b8prio"]: A("s_setprio 3")
    stamp(A, 3)
    A("s_cmp_eq_u32 s23, 0")
    A("s_cbranch_scc1 LL_S7")
    side_loads(A, 0)
    side_loads(A, 1)
    A.lab("LL_S7")
    A("s_cmp_lg_u32 s60, 0")
    A("s_cbranch_scc1 LL_WAITGO")
    A("v_mov_b32 v96, 0")
    A("s_bfe_u32 s64, s2, 0x10004")
    A("s_lshl_b32 s64, s64, 5")
    A("s_and_b32 s65, s2, 15")
    A("s_add_u32 s64, s64, s65")
    A("s_bfe_u32 s65, s2, 0x10005")
    A("s_lshl_b32 s65, s65, 4")
    A("s_add_u32 s64, s64, s65")
    A("s_lshl_b32 s64, s64, 7")
    A(f"s_add_u32 s64, s64, {QCNT:#x}")
    spin3(A, "LL_POLL", [0, 1, 2], 96, "s64", 48)
    A(f"v_mov_b32 v96, {SW}")
    A("v_mov_b32 v97, 1")
    A("ds_write_b32 v96, v97 offset:4")
    A("s_branch LL_GO")
    A.lab("LL_WAITGO")
    A(f"v_mov_b32 v96, {SW}")
    A(f"s_mov_b32 s70, {SPIN_MAX*16}")
    A.lab("LL_WG1")
    A("ds_read_b32 v97, v96 offset:4")
    A("s_waitcnt lgkmcnt(0)")
    A("v_readfirstlane_b32 s65, v97")
    A("s_cmp_lg_u32 s65, 0")
    A("s_cbranch_scc1 LL_GO")
    A("s_sleep 1")
    A("s_sub_u32 s70, s70, 1")
    A("s_cmp_lg_u32 s70, 0")
    A("s_cbranch_scc1 LL_WG1")
    A.lab("LL_GO")
    stamp(A, 4)
    A("s_and_b32 s64, s2, 31")
    A("s_lshl_b32 s64, s64, 16")
    A("s_lshl_b32 s65, s60, 11")
    A("s_add_u32 s64, s64, s65")
    A("s_lshr_b32 s66, s2, 5")
    A("s_lshl_b32 s66, s66, 13")
    A("s_add_u32 s66, s66, s64")
    A(f"s_add_u32 m0, s65, {QOFF}")
    A(f"s_add_u32 s67, s64, {KF:#x}")
    A(f"buffer_load_dwordx4 v95, {sr(S_WS,4)}, s66 offen sc1 lds")
    A(f"buffer_load_dwordx4 v95, {sr(S_WS,4)}, s66 offen offset:1024 sc1 lds")
    A(f"s_add_u32 s68, s64, {VF:#x}")
    for c in range(2):
        A(f"s_add_u32 m0, s65, {c*8192}")
        A("s_nop 0")
        A(f"buffer_load_dwordx4 v95, {sr(S_WS,4)}, s67 offen sc1 lds")
        A(f"buffer_load_dwordx4 v95, {sr(S_WS,4)}, s67 offen offset:1024 sc1 lds")
        A(f"s_add_u32 m0, s65, {65536 + c*8192}")
        A("s_add_u32 s67, s67, 8192")
        A(f"buffer_load_dwordx4 v95, {sr(S_WS,4)}, s68 offen sc1 lds")
        A(f"buffer_load_dwordx4 v95, {sr(S_WS,4)}, s68 offen offset:1024 sc1 lds")
        A("s_add_u32 s68, s68, 8192")
    A("s_cmp_eq_u32 s23, 0")
    A("s_cbranch_scc1 L_P0")
    A("s_waitcnt vmcnt(10)")
    side_combine(A)


WSC = lambda: "" if OPT["wl1"] else " sc1"
def down_loads(A, slot):
    A(f"buffer_load_dwordx4 {vr(DH[slot],4)}, v{L16}, {sr(S_T1,4)}, s84 offen sc1")
    A(f"buffer_load_dwordx4 {vr(DW_[slot],4)}, v{L16}, {sr(S_T2,4)}, s85 offen{WSC()}")
    A(f"buffer_load_dwordx4 {vr(DW_[slot]+4,4)}, v{L16}, {sr(S_T2,4)}, s85 offen offset:1024{WSC()}")
    A("s_add_u32 s84, s84, 1024")
    A("s_add_u32 s85, s85, 2048")

def kv_piece(k):
    if k & 1: return ["s_add_u32 m0, s95, 65536", "s_add_u32 s94, s94, 8192",
                      f"buffer_load_dwordx4 v{L16}, {sr(S_WS,4)}, s60 offen sc1 lds", "s_add_u32 s95, s95, 8192"]
    return ["s_mov_b32 m0, s95", f"s_add_u32 s60, s94, {VF-KF:#x}", f"buffer_load_dwordx4 v{L16}, {sr(S_WS,4)}, s94 offen sc1 lds"]
HPOLL = lambda: apoll(101, 100, "s75", 15)

def attn_body(A, mode):
    hs = 0
    for t in range(8):
        p = t & 1
        down = mode in "BC" or (mode == "2" and t >= 4)
        cur, prv = S_[p], S_[1-p]
        ex = lambda a, b: [A(f"v_exp_f32 v{cur+i}, v{cur+i}") for i in range(a, b)]
        if p == 0: A(f"s_setprio {3 - (t >> 1)}")
        A("s_waitcnt lgkmcnt(3)")
        ex(0, 2)
        if not (mode == "0" and t == 0):
            A(f"v_smfmac_f32_32x32x32_bf16 {vr(O_,16)}, {vr(V1[1-p],4)}, {vr(prv+8,8)}, v{IDX}")
        if mode == "0" and t < 6: A.many(kv_piece(2*t))
        ex(2, 6 if down else 7)
        A(f"v_mfma_f32_32x32x16_bf16 {vr(prv,16)}, {vr(KB[1-p],4)}, {vr(Q_,4)}, {vr(C_,16)}")
        skip = OPT["halfkv"] and (t & 2) and mode == "B"
        if not skip: A(f"ds_read_b128 {vr(KB[1-p],4)}, v{KA} offset:{(t+3)*1024}")
        if mode == "0" and t < 6: A.many(kv_piece(2*t+1))
        ex(6 if down else 7, 10 if down else 12)
        A(f"v_smfmac_f32_32x32x32_bf16 {vr(O_,16)}, {vr(V0[p],4)}, {vr(cur,8)}, v{IDX}")
        if not skip:
            A("s_mov_b64 exec, s[80:81]")
            A(f"ds_read_b128 {vr(V0[p],4)}, v{VA} offset:{(t+2)*1024}")
            A(f"ds_read_b128 {vr(V1[1-p],4)}, v{VA} offset:{(t+1)*1024+512}")
            A("s_mov_b64 exec, -1")
        if mode == "0":
            for _ in range(OPT["hplan"][t]):
                A(f"buffer_store_dwordx4 {vr(HREG+4*hs,4)}, v249, {sr(S_WS,4)}, s{HOFF[hs]} offen sc1"); hs += 1
        if mode == "2" and t < 4: down_loads(A, (t + 2) & 3)
        if mode == "C":
            if t == 0: A(f"buffer_load_dwordx4 {vr(XV,4)}, v252, {sr(S_X,4)}, s88 offen")
            for i in range(2):
                A(f"buffer_load_dwordx4 {vr(WO+8*t+4*i,4)}, v{L16}, {sr(S_WS,4)}, s90 offen offset:{(2*p+i)*1024}{WSC()}")
            if p: A("s_add_u32 s90, s90, 4096")
        if down:
            ex(10, 14)
            sl = t >> 1
            if p == 0: A(f"s_waitcnt vmcnt({12 + sl if mode == 'C' else 9})")
            cc = "0" if (mode == "2" and t < 6) else vr(DACC+16*p,16)
            if "m" not in OPT["nodown"]: A(f"v_mfma_f32_32x32x16_bf16 {vr(DACC+16*p,16)}, {vr(DW_[sl]+4*p,4)}, {vr(DH[sl],4)}, {cc}")
            if mode != "C" and p == 1 and "l" not in OPT["nodown"]: down_loads(A, sl)
            ex(14, 16)
        else:
            ex(12, 16)
        if mode == "1" and t == OPT["sigt"]:
            A("s_waitcnt vmcnt(0)")
            A("s_barrier")
            A("s_cmp_lg_u32 s14, 0")
            A("s_cbranch_scc1 L_NOSIG")
            A("s_mov_b64 exec, 0xff")
            A("v_mov_b32 v97, 1")
            A(f"v_lshlrev_b32 v96, 10, v{L}")
            A(f"buffer_atomic_add v97, v96, {sr(S_WS,4)}, s91 offen")
            A("s_mov_b64 exec, -1")
            A.lab("L_NOSIG")
        if mode == "1" and t == 6:
            A("s_cmp_lg_u32 s22, 0")
            A("s_cbranch_scc1 L_NOPQ")
            A(f"v_lshlrev_b32 v100, 7, v{L}")
            A.many(HPOLL())
            A.lab("L_NOPQ")
        if mode == "1" and t == 7:
            stamp(A, 8)
            A("s_cmp_lg_u32 s22, 0")
            A("s_cbranch_scc1 L_HPOLL_OK")
            spin(A, "L_HPOLL2", HPOLL(), acmp(101, 40, 15), first_loaded=True)
            if OPT["wl1"] == 2:
                A("buffer_inv sc1")
                A("s_waitcnt vmcnt(0)")
            A.lab("L_HPOLL_OK")
            A("s_barrier")
            stamp(A, 9)
    if mode == "0": assert hs == 9
    if mode != "C":
        A(f"v_add_u32 v{KA}, 8192, v{KA}")
        A(f"v_add_u32 v{VA}, 8192, v{VA}")
        A("s_add_u32 s83, s83, 1")

def late_init(A):
    A(f"v_lshlrev_b32 v{L16}, 4, v{L}")
    A(f"v_mov_b32 v{IDX}, 0xdddd")
    A(f"v_and_b32 v98, 15, v{L}")
    A("v_lshlrev_b32 v98, 4, v98")
    A(f"v_lshrrev_b32 v99, 5, v{L}")
    A("v_lshl_or_b32 v98, v99, 8, v98")
    A("v_add_u32 v98, 65536, v98")
    A(f"v_add_u32 v99, s15, v{L16}")
    A(f"v_add_u32 v102, s16, v{L16}")
    A(f"v_add_u32 v103, s17, v{L16}")
    A(f"v_mov_b32 v{KA}, v{L16}")
    A(f"v_mov_b32 v{VA}, v98")
    A("v_mov_b32 v100, 0xff800000")
    A("v_mov_b32 v101, 0xff800000")

def gen_attinit(A):
    A.lab("L_ATTINIT")
    for r in range(O_, O_+32): A(f"v_mov_b32 v{r}, 0")
    A("s_mov_b32 s80, 0x00110000")
    A("s_mov_b32 s81, 0x00110000")
    A("s_mov_b64 exec, s[80:81]")
    for r in range(V0[0], V0[0]+16): A(f"v_mov_b32 v{r}, 0x3f803f80")
    A("s_mov_b64 exec, -1")
    A("s_mov_b32 s80, 0xffff")
    A("s_mov_b32 s81, 0xffff")
    A("s_mov_b32 s78, 1")
    A(f"s_mov_b32 s79, {f2u(-OPT['bias']):#x}")
    A("s_mov_b32 s82, 1")
    A(f"v_lshrrev_b32 v251, 5, v{L}")
    A(f"v_and_b32 v252, 31, v{L}")
    A("v_lshlrev_b32 v252, 10, v252")
    A("v_lshl_add_u32 v252, v251, 4, v252")
    A("s_lshl_b32 s15, s22, 10")
    A(f"s_add_u32 s15, s15, {QOFF}")
    A("s_and_b32 s91, s20, 3")
    A("s_lshl_b32 s91, s91, 7")
    A(f"s_add_u32 s91, s91, {QFLAG+4*128:#x}")
    A("s_cmp_lt_u32 s21, 6")
    A("s_cselect_b32 s14, 1, s22")
    A("s_and_b32 s75, s2, 7")
    A("s_lshl_b32 s75, s75, 10")
    A(f"s_add_u32 s75, s75, {QFLAG+4*128:#x}")
    A("s_lshr_b32 s61, s2, 5")
    A("s_lshl_b32 s61, s61, 3")
    A("s_add_u32 s61, s61, s22")
    A("s_lshl_b32 s61, s61, 5")
    A("s_and_b32 s62, s2, 31")
    A("s_add_u32 s61, s61, s62")
    A("s_lshr_b32 s12, s61, 3")
    A("s_lshl_b32 s12, s12, 7")
    A(f"s_add_u32 s12, s12, {OFLAG:#x}")
    A("s_lshl_b32 s11, s61, 10")
    A(f"s_add_u32 s11, s11, {OF:#x}")
    A("s_and_b32 s94, s2, 31")
    A("s_lshl_b32 s94, s94, 16")
    A("s_lshl_b32 s95, s22, 10")
    A("s_add_u32 s95, s95, 16384")
    A("s_add_u32 s94, s94, s95")
    A(f"s_add_u32 s94, s94, {KF:#x}")
    A("s_and_b32 s67, s2, 7")
    A("s_bfe_u32 s61, s2, 0x20003")
    A("s_lshl_b32 s67, s67, 2")
    A("s_add_u32 s67, s67, s61")
    A("s_lshr_b32 s61, s2, 5")
    A("s_and_b32 s62, s22, 1")
    A("s_lshl_b32 s67, s67, 1")
    A("s_add_u32 s67, s67, s62")
    A("s_lshr_b32 s62, s22, 1")
    A("s_mul_i32 s63, s62, 22")
    A("s_cmp_eq_u32 s62, 3")
    A("s_cselect_b32 s63, 65, s63")
    A("s_cmp_lt_u32 s62, 2")
    A("s_cselect_b32 s64, 22, 21")
    A(f"s_mul_i32 s65, s67, {NFU}")
    A("s_add_u32 s65, s65, s63")
    A("s_lshl_b32 s65, s65, 10")
    A(f"s_add_u32 s65, s65, {HF:#x}")
    A(f"s_add_u32 s{S_T1}, s18, s65")
    A(f"s_addc_u32 s{S_T1+1}, s19, 0")
    A(f"s_lshl_b32 s{S_T1+2}, s64, 10")
    A(f"s_mov_b32 s{S_T1+3}, 0x00020000")
    A(f"s_mul_i32 s65, s61, {NFU}")
    A("s_add_u32 s65, s65, s63")
    A("s_lshl_b32 s65, s65, 11")
    A(f"s_add_u32 s65, s65, {WDF:#x}")
    A(f"s_add_u32 s{S_T2}, s18, s65")
    A(f"s_addc_u32 s{S_T2+1}, s19, 0")
    A(f"s_lshl_b32 s{S_T2+2}, s64, 11")
    A(f"s_mov_b32 s{S_T2+3}, 0x00020000")
    A("s_mov_b32 s84, 0")
    A("s_mov_b32 s85, 0")
    A("s_lshl_b32 s90, s61, 16")
    A("s_lshl_b32 s66, s62, 14")
    A("s_add_u32 s90, s90, s66")
    A(f"s_add_u32 s90, s90, {WOF:#x}")
    A("s_lshl_b32 s87, s67, 15")
    A("s_lshl_b32 s66, s62, 13")
    A("s_add_u32 s87, s87, s66")
    A(f"s_add_u32 s87, s87, {OF:#x}")
    A("s_lshl_b32 s88, s67, 15")
    A("s_lshl_b32 s66, s61, 7")
    A("s_add_u32 s88, s88, s66")
    A("s_lshl_b32 s66, s62, 5")
    A("s_add_u32 s88, s88, s66")
    A(f"s_sub_u32 s13, s87, {OF:#x}")
    A("s_lshr_b32 s13, s13, 6")
    A(f"s_add_u32 s13, s13, {OFLAG:#x}")
    red_addr(A)
    A("s_setpc_b64 s[76:77]")

def gen_attn(A):
    A("s_waitcnt lgkmcnt(0)")
    late_init(A)
    A.lab("L_P0")
    stamp(A, 5)
    A("s_waitcnt vmcnt(0)")
    A("s_barrier")
    stamp(A, 6)
    A(f"ds_read_b128 {vr(Q_,4)}, v99")
    A.lab("L_MAXLOOP")
    A(f"ds_read_b128 {vr(KB[0],4)}, v{KA}")
    A(f"ds_read_b128 {vr(KB[1],4)}, v{KA} offset:1024")
    A("s_mov_b64 exec, s[80:81]")
    A(f"ds_read_b128 {vr(V0[0],4)}, v{VA}")
    A("s_mov_b64 exec, -1")
    A("s_waitcnt lgkmcnt(2)")
    A(f"v_mfma_f32_32x32x16_bf16 {vr(S_[0],16)}, {vr(KB[0],4)}, {vr(Q_,4)}, 0")
    A("s_waitcnt lgkmcnt(1)")
    A(f"v_mfma_f32_32x32x16_bf16 {vr(C_,16)}, {vr(KB[1],4)}, {vr(Q_,4)}, 0")
    A(f"v_subrev_u32 v{KA}, 2048, v{KA}")
    A("s_nop 9")
    for i in range(8): A(f"v_max3_f32 v100, v{2*i}, v{2*i+1}, v100")
    for i in range(8): A(f"v_max3_f32 v101, v{C_+2*i}, v{C_+2*i+1}, v101")
    A("s_sub_u32 s78, s78, 1")
    A("s_cmp_lg_u32 s78, 0")
    A("s_cbranch_scc1 L_MAXLOOP")
    A("v_max_f32 v100, v100, v101")
    A(f"v_mov_b32 v{KA}, v{L16}")
    A("v_mov_b32 v101, v100")
    A("s_nop 1")
    A("v_permlane32_swap_b32 v100, v101")
    A("s_nop 1")
    A("v_max_f32 v100, v100, v101")
    for r in range(16): A(f"v_sub_f32 v{C_+r}, s79, v100")
    A("s_nop 1")
    A(f"v_mfma_f32_32x32x16_bf16 {vr(S_[0],16)}, {vr(KB[0],4)}, {vr(Q_,4)}, {vr(C_,16)}")
    A(f"ds_read_b128 {vr(KB[0],4)}, v{KA} offset:2048")
    A("s_mov_b64 exec, s[80:81]")
    A(f"ds_read_b128 {vr(V0[1],4)}, v{VA} offset:1024")
    A(f"ds_read_b128 {vr(V1[0],4)}, v{VA} offset:512")
    A("s_mov_b64 exec, -1")
    A("s_mov_b32 s83, 0")
    stamp(A, 7)
    A("s_nop 4")
    A("s_cmp_eq_u32 s82, 0")
    A("s_cbranch_scc1 L_LOOPP")
    attn_body(A, "0")
    attn_body(A, "1")
    attn_body(A, "2")
    A.lab("L_LOOPB")
    attn_body(A, "B")
    if OPT["prof"] and OPT["bstamp"]:
        A("s_memtime s[96:97]")
        A("s_memrealtime s[98:99]")
        A("s_add_u32 m0, s83, 17")
        A("s_waitcnt lgkmcnt(0)")
        A("v_writelane_b32 v255, s96, m0")
        A("s_add_u32 m0, s83, 49")
        A("s_nop 0")
        A("v_writelane_b32 v255, s98, m0")
    A("s_cmp_lt_u32 s83, 7")
    A("s_cbranch_scc1 L_LOOPB")
    attn_body(A, "C")
    A.lab("L_ATT_DONE")
    A("s_waitcnt lgkmcnt(0)")
    stamp(A, 10)
    A(f"v_smfmac_f32_32x32x32_bf16 {vr(O_,16)}, {vr(V1[1],4)}, {vr(S_[1]+8,8)}, v{IDX}")
    A("s_setprio 3")
    A(f"v_mov_b32 v96, {f2u(2.0**90):#x}")
    A(f"v_mov_b32 v97, {f2u(2.0**120):#x}")
    A(f"v_mov_b32 v99, {f2u(2.0**-100):#x}")
    A("s_nop 7")
    A(f"v_rcp_f32 v101, v{O_+8}")
    A("s_nop 0")
    A(f"v_mul_f32 v101, {f2u(2.0**-VSH):#x}, v101")
    for r in range(8): A(f"v_mul_f32 v{r}, v{O_+r}, v101")
    for i in range(4): A(f"v_cvt_pk_bf16_f32 v{8+i}, v{2*i}, v{2*i+1}")
    A(f"buffer_store_dwordx4 {vr(8,4)}, v{L16}, {sr(S_WS,4)}, s11 offen sc1")
    A("s_cmp_eq_u32 s82, 0")
    A("s_cbranch_scc1 L_FIN")
    A(f"v_add_f32 v100, abs(v{O_}), abs(v{O_+1})")
    for r in range(2, 8): A(f"v_add_f32 v100, v100, abs(v{O_+r})")
    A(f"v_cmp_nlt_f32 s[62:63], v{O_+8}, v96")
    A("v_cmp_nlt_f32 s[64:65], v100, v97")
    A("v_cmp_lt_f32 vcc, v100, v99")
    A("s_or_b64 s[62:63], s[62:63], s[64:65]")
    A("s_or_b64 s[62:63], s[62:63], vcc")
    A("s_cmp_eq_u64 s[62:63], 0")
    if not OPT["force_fallback"]: A("s_cbranch_scc1 L_FIN")
    A("s_mov_b32 s78, 32")
    A("s_mov_b32 s79, 0")
    A("s_mov_b32 s82, 0")
    A(f"v_mov_b32 v{VA}, v98")
    A("v_mov_b32 v100, 0xff800000")
    A("v_mov_b32 v101, 0xff800000")
    for r in range(16): A(f"v_mov_b32 v{O_+r}, 0")
    for r in range(8, 16): A(f"v_mov_b32 v{S_[1]+r}, 0")
    A(f"v_add_u32 v{KA}, {62*1024}, v{L16}")
    A("s_waitcnt vmcnt(0)")
    A("s_branch L_MAXLOOP")
    A.lab("L_FIN")

def red_addr(A):
    A("s_and_b32 s62, s22, 1")
    A("s_lshr_b32 s63, s22, 1")
    A("s_lshl_b32 s62, s62, 15")
    A("s_lshl_b32 s64, s63, 11")
    A("s_add_u32 s64, s64, s62")
    A("s_mov_b32 s16, s64")
    A("s_lshl_b32 s64, s63, 13")
    A("s_add_u32 s64, s64, s62")
    A("s_mov_b32 s17, s64")
def red_write(A, acc):
    for q in range(4):
        for hf in range(2):
            A(f"ds_write_b128 v102, {vr(acc+8*q+4*hf,4)} offset:{q*8192 + hf*1024}")
def red_read(A, dst):
    for s in range(4):
        for hf in range(2):
            A(f"ds_read_b128 {vr(dst+8*s+4*hf,4)}, v103 offset:{s*2048 + hf*1024}")
def red_sum(A, dst):
    for r in range(8):
        A(f"v_add_f32 v{dst+r}, v{dst+r}, v{dst+8+r}")
        A(f"v_add_f32 v{dst+16+r}, v{dst+16+r}, v{dst+24+r}")
    for r in range(8): A(f"v_add_f32 v{dst+r}, v{dst+r}, v{dst+16+r}")
def round_bf16(A, regs, tmp):
    for i in range(4): A(f"v_cvt_pk_bf16_f32 v{tmp+i}, v{regs+2*i}, v{regs+2*i+1}")
    for i in range(4):
        A(f"v_lshlrev_b32 v{regs+2*i}, 16, v{tmp+i}")
        A(f"v_and_b32 v{regs+2*i+1}, 0xffff0000, v{tmp+i}")

def gen_final(A):
    A("v_mov_b32 v96, 1")
    A("v_mov_b32 v97, 0")
    A("s_waitcnt vmcnt(0)")
    A("s_mov_b64 exec, 1")
    A(f"buffer_atomic_add v96, v97, {sr(S_WS,4)}, s12 offen")
    A("s_mov_b64 exec, -1")
    stamp(A, 11)
    A.many(apoll(32, 97, "s13", 1))
    A("s_barrier")
    red_write(A, DACC)
    A("s_waitcnt lgkmcnt(0)")
    A("s_barrier")
    G = DACC; T = 136
    red_read(A, G)
    spin3(A, "L_OPOLL", [32, 33, 34], 97, "s13", 8, primed=1)
    stamp(A, 12)
    for s in range(8):
        A(f"buffer_load_dwordx4 {vr(4*s,4)}, v{L16}, {sr(S_WS,4)}, s87 offen offset:{(s&3)*1024} sc1")
        if s == 3: A("s_add_u32 s87, s87, 4096")
    A("v_add_u32 v102, 65536, v102")
    A("v_add_u32 v103, 65536, v103")
    for i in range(4):
        A(f"v_lshlrev_b32 v{144+2*i}, 16, v{XV+i}")
        A(f"v_and_b32 v{145+2*i}, 0xffff0000, v{XV+i}")
    A("s_waitcnt lgkmcnt(0)")
    B = Asm()
    red_sum(B, G)
    round_bf16(B, G, T)
    for r in range(8): B(f"v_mul_f32 v{T+r}, {f2u(-LOG2E):#x}, v{G+r}")
    for r in range(8): B(f"v_exp_f32 v{T+r}, v{T+r}")
    for r in range(8): B(f"v_add_f32 v{T+r}, 1.0, v{T+r}")
    for r in range(8): B(f"v_rcp_f32 v{T+r}, v{T+r}")
    for r in range(8): B(f"v_mul_f32 v{G+r}, v{G+r}, v{T+r}")
    round_bf16(B, G, T)
    gw = [x.strip() for x in B.l]
    A.many(gw[:OPT["gpre"]]); gw = gw[OPT["gpre"]:]
    ACC = 104
    for s in range(8):
        A(f"s_waitcnt vmcnt({7-s})")
        for nt in range(2):
            c = "0" if s == 0 else vr(ACC+16*nt,16)
            A(f"v_mfma_f32_32x32x16_bf16 {vr(ACC+16*nt,16)}, {vr(WO+8*s+4*nt,4)}, {vr(4*s,4)}, {c}")
            A.many(gw[:4]); gw = gw[4:]
    A.many(gw)
    stamp(A, 13)
    A("s_nop 11")
    red_write(A, ACC)
    A("s_waitcnt lgkmcnt(0)")
    A("s_barrier")
    red_read(A, 0)
    A("s_waitcnt lgkmcnt(0)")
    red_sum(A, 0)
    round_bf16(A, 0, T)
    for r in range(8): A(f"v_mul_f32 v{r}, v{r}, v{G+r}")
    for i in range(4): A(f"v_cvt_pk_bf16_f32 v{T+i}, v{2*i}, v{2*i+1}")
    A("s_nop 1")
    A(f"v_permlane32_swap_b32 v{T}, v{T+2}")
    A(f"v_permlane32_swap_b32 v{T+1}, v{T+3}")
    A("s_nop 1")
    for i in range(4):
        A(f"v_lshlrev_b32 v{2*i}, 16, v{T+i}")
        A(f"v_and_b32 v{2*i+1}, 0xffff0000, v{T+i}")
    for r in range(8): A(f"v_add_f32 v{r}, v{r}, v{144+r}")
    for i in range(4): A(f"v_cvt_pk_bf16_f32 v{T+i}, v{2*i}, v{2*i+1}")
    A(f"buffer_store_dwordx4 {vr(T,4)}, v252, {sr(S_OUT,4)}, s88 offen")
    if OPT["fixdur"]:
        A.lab("L_FIXDUR")
        A("s_memrealtime s[96:97]")
        A("s_waitcnt lgkmcnt(0)")
        A("s_sub_u32 s96, s96, s100")
        A(f"s_cmp_lt_u32 s96, {OPT['fixdur']}")
        A("s_cbranch_scc1 L_FIXDUR")
    if OPT["prof"]:
        stamp(A, 14)
        A(f"s_add_u32 s{S_T1}, s18, {PROF_OFF:#x}")
        A(f"s_addc_u32 s{S_T1+1}, s19, 0")
        A(f"s_mov_b32 s{S_T1+2}, 0x100000")
        A(f"s_mov_b32 s{S_T1+3}, 0x00020000")
        A("s_lshl_b32 s60, s2, 3")
        A("s_add_u32 s60, s60, s22")
        A("s_lshl_b32 s60, s60, 8")
        A(f"v_lshlrev_b32 v0, 2, v{L}")
        A(f"buffer_store_dword v255, v0, {sr(S_T1,4)}, s60 offen")
        if OPT["dbgout"]:
            A("s_cmp_lg_u32 s2, 200")
            A("s_cbranch_scc1 L_END")
            A("s_cmp_lg_u32 s22, 0")
            A("s_cbranch_scc1 L_END")
            A("v_readlane_b32 s61, v255, 32")
            A("v_readlane_b32 s63, v255, 0")
            A("v_mov_b32 v1, 0")
            A("s_mov_b64 exec, 1")
            for n, i in enumerate((2, 3, 4, 6, 9, 10, 12, 14)):
                A(f"v_readlane_b32 s62, v255, {32+i}")
                A("s_sub_u32 s62, s62, s61")
                A("v_mov_b32 v2, s62")
                A(f"buffer_store_dword v2, v1, {sr(S_DBG,4)}, 0 offen offset:{32+4*n}")
                A("s_nop 1")
            A("v_readlane_b32 s62, v255, 14")
            A("s_sub_u32 s62, s62, s63")
            A("v_mov_b32 v2, s62")
            A(f"buffer_store_dword v2, v1, {sr(S_DBG,4)}, 0 offen offset:28")

def gen_hooks(A):
    gen_attinit(A)
    A.lab("L_LOOPP")
    attn_body(A, "P")
    A("s_cmp_lt_u32 s83, 8")
    A("s_cbranch_scc1 L_LOOPP")
    A("s_branch L_ATT_DONE")
    A.lab("L_CODE_END")

def main(out):
    hdr = open(f"cdna_kernels/{NAME}.s.ref").read().split("\n")
    head = [l for l in hdr if l.startswith(";") and "@launch" not in l]
    head += [f"; @launch grid=(256,1,1) block=(512,1,1) lds={LDS_BYTES}"]
    A = Asm()
    d = gen(A)
    open(out, "w").write("\n".join(head) + '\n.amdgcn_target "amdgcn-amd-amdhsa--gfx950"\n' + A.text() + d)

if __name__ == "__main__":
    for a in sys.argv[2:]:
        k, _, v = a.partition("=")
        OPT[k] = eval(v) if v else True
    main(sys.argv[1] if len(sys.argv) > 1 else f"cdna_kernels/{NAME}.s")
```

```python
import sys, struct

NAME = "recurrent_scan__softmax_full_mha__glu_gated_geglu__prompt"
MB = 1 << 20
QF, KF, VF, OF, WOF, WDF, HF, FLAGS = 0, 2*MB, 4*MB, 6*MB, 8*MB, 9*MB, 11*MB, 17*MB
WS_BYTES = 18*MB
NFU = 86
LOG2E = 1.4426950408889634
def f2u(x): return struct.unpack("<I", struct.pack("<f", x))[0]

OPT = dict(prof=False, bias=98.0, force_fallback=False, sleep=2, barpos=1, itstamp=False, hplan=[1,1,1,1,1,1,2,1], sigt=1, psleep=3, gpre=24, wearly=False, peel=True, wl1=0, nodown='', halfkv=False, b8prio=True, qsch='D', outfl='', spf=False, prefetch=False, dmaevery=12, dbgout=False, fixdur=0, codepf=True, noload=False, bstamp=False, pace=None, wpf=[], exp='', w64=False, lprio=0, enc=-1, encrole='', cmap=True, prio='ramp2')
PROF_OFF = 24*MB
SPIN_MAX = 20000
VSH = 32

class Asm:
    def __init__(self): self.l = []
    def __call__(self, s): self.l.append(s if s.endswith(":") else "    " + s)
    def many(self, ss):
        for s in ss: self(s)
    def lab(self, s): self.l.append(s + ":")
    def raw(self, s): self.l.append(s)
    def text(self): return "\n".join(self.l) + "\n"
def vr(a, n): return f"v[{a}:{a+n-1}]"
def sr(a, n): return f"s[{a}:{a+n-1}]"
def srd(A, d, base, nbytes):
    A(f"s_mov_b32 s{d}, s{base}")
    A(f"s_mov_b32 s{d+1}, s{base+1}")
    A(f"s_mov_b32 s{d+2}, {nbytes:#x}")
    A(f"s_mov_b32 s{d+3}, 0x00020000")
def csel(A, d, a, b):
    A(f"s_mov_b32 s{d}, {b:#x}")
    A(f"s_cselect_b32 s{d}, {a:#x}, s{d}")
ROLE = [""]
def stamp(A, i):
    if OPT["enc"] == i and (not OPT["encrole"] or ROLE[0] in OPT["encrole"]):
        A("s_memrealtime s[100:101]")
        A("s_waitcnt lgkmcnt(0)")
    if not OPT["prof"]: return
    A("s_memtime s[96:97]")
    A("s_memrealtime s[98:99]")
    A("s_waitcnt lgkmcnt(0)")
    A(f"v_writelane_b32 v255, s96, {i}")
    A(f"v_writelane_b32 v255, s98, {32+i}")

WR = 32768
WSL = 18560
UPOFF = 9344
QOFF = 135168
SCRATCH = 147456
SW = 163584
LDS_BYTES = 163840
OFLAG = FLAGS
QFLAG = OFLAG + 256*128
QCNT = QFLAG + 64*128
NZ = 6
S_X, S_W, S_WS, S_DBG, S_OUT, S_T1, S_T2 = 24, 28, 32, 36, 40, 44, 48
L = 254
S_ = [0, 16]; C_ = 32; DACC = 48; Q_ = 80; KB = [84, 88]; O_ = 144; V0 = [160, 164]; V1 = [168, 172]
IDX, KA, VA, L16 = 92, 93, 94, 95
DH = [104, 116, 128, 140]; DW_ = [108, 120, 132, 176]
WO = 184; XV = 248

def spin(A, tag, loads, cmp_lines, first_loaded=False):
    A(f"s_mov_b32 s70, {SPIN_MAX}")
    if not first_loaded: A.many(loads)
    A.lab(tag)
    A("s_waitcnt vmcnt(0)")
    A.many(cmp_lines)
    A(f"s_cbranch_scc1 {tag}_OK")
    A(f"s_sleep {OPT['sleep']}")
    A.many(loads)
    A("s_sub_u32 s70, s70, 1")
    A("s_cmp_lg_u32 s70, 0")
    A(f"s_cbranch_scc1 {tag}")
    A.lab(tag + "_OK")
def spin3(A, tag, regs, voff, soff, n, primed=0):
    A(f"s_mov_b32 s70, {SPIN_MAX}")
    for r in regs[primed:2]:
        A.many(apoll(r, voff, soff, 1))
        A(f"s_sleep {OPT['psleep']}")
    A.lab(tag)
    for k in range(3):
        A.many(apoll(regs[(k+2) % 3], voff, soff, 1))
        A("s_waitcnt vmcnt(2)")
        A.many(acmp(regs[k], n, 1))
        A(f"s_cbranch_scc1 {tag}_OK")
        A(f"s_sleep {OPT['psleep']}")
    A("s_sub_u32 s70, s70, 1")
    A("s_cmp_lg_u32 s70, 0")
    A(f"s_cbranch_scc1 {tag}")
    A.lab(tag + "_OK")
def apoll(dst, voff, soff, mask):
    return [f"v_mov_b32 v{dst}, 0", f"s_mov_b64 exec, {mask}",
            f"buffer_atomic_add v{dst}, v{voff}, {sr(S_WS,4)}, {soff} offen sc0", "s_mov_b64 exec, -1"]
def acmp(v, n, mask):
    return [f"v_cmp_eq_u32 vcc, {n}, v{v}", f"s_cmp_eq_u64 vcc, {mask}"]
ALL1 = lambda v: [f"v_cmp_ne_u32 vcc, 1, v{v}", "s_cmp_eq_u64 vcc, 0"]

def last_wave_signals(A, tag, off, last):
    A(f"v_mov_b32 v96, {SW}")
    A("v_mov_b32 v97, 1")
    A("s_mov_b64 exec, 1")
    A(f"ds_add_rtn_u32 v100, v96, v97 offset:{off}")
    A("s_waitcnt lgkmcnt(0)")
    A("s_mov_b64 exec, -1")
    A("v_readfirstlane_b32 s60, v100")
    A(f"s_cmp_lg_u32 s60, {last}")
    A(f"s_cbranch_scc1 {tag}")
    A(f"v_lshlrev_b32 v96, 7, v{L}")
    if OPT["qsch"] == "E":
        A("s_mov_b64 exec, 1")
        A("v_mov_b32 v100, 1")
        A(f"buffer_atomic_add v100, v96, {sr(S_WS,4)}, s91 offen offset:{31*128} sc0")
        A("s_waitcnt vmcnt(0)")
        A("s_mov_b64 exec, -1")
        A("v_readfirstlane_b32 s60, v100")
        A("s_cmp_lg_u32 s60, 47")
        A(f"s_cbranch_scc1 {tag}")
        A("s_mov_b64 exec, 0xff")
        A(f"buffer_store_dword v97, v96, {sr(S_WS,4)}, s91 offen sc1")
    else:
        A("s_mov_b32 exec_hi, 0")
        A(f"buffer_atomic_add v97, v96, {sr(S_WS,4)}, s91 offen")
    A("s_mov_b64 exec, -1")
    A.lab(tag)

def gen(A):
    name = NAME + "_kernel"
    A.raw(".text"); A.raw(f".globl {name}"); A.raw(".p2align 8"); A.raw(f".type {name},@function")
    A.lab(name)
    A("s_cmp_ge_u32 s2, 256")
    A("s_cbranch_scc1 L_END")
    if OPT["fixdur"]: A("s_memrealtime s[100:101]")
    A("s_load_dwordx4 s[4:7], s[0:1], 0")
    A("s_load_dwordx2 s[8:9], s[0:1], 16")
    A("s_load_dwordx4 s[12:15], s[0:1], 32")
    A("s_load_dwordx4 s[52:55], s[0:1], 48")
    A("s_load_dwordx4 s[56:59], s[0:1], 64")
    if OPT["prof"]: A("v_mov_b32 v255, 0")
    stamp(A, 0)
    A("s_getpc_b64 s[60:61]")
    A.lab("L_PC")
    A("s_lshr_b32 s23, s2, 3")
    A("s_lshl_b32 s62, s23, 11")
    A("v_lshl_add_u32 v250, v0, 7, s62")
    A("v_cmp_gt_u32 s[62:63], 16, v0")
    A("v_cmp_gt_u32 vcc, L_CODE_END-L_PC-4, v250")
    A("v_lshrrev_b32 v252, 6, v0")
    A(f"v_and_b32 v{L}, 63, v0")
    A("s_and_b64 exec, vcc, s[62:63]")
    A("s_cbranch_execz L_NOPF")
    A("v_mov_b32 v251, s61")
    A("v_add_co_u32 v250, vcc, s60, v250")
    A("v_addc_co_u32 v251, vcc, 0, v251, vcc")
    A("global_load_dword v253, v[250:251], off")
    A.lab("L_NOPF")
    A("s_mov_b64 exec, -1")
    A("v_readfirstlane_b32 s22, v252")
    T = TL
    A(f"v_lshrrev_b32 v{T}, 3, v{L}")
    A(f"v_and_b32 v{T+1}, 7, v{L}")
    A(f"v_lshlrev_b32 v{VX}, 10, v{T}")
    A(f"v_lshl_add_u32 v{VX}, v{T+1}, 4, v{VX}")
    A("s_bfe_u32 s20, s2, 0x20001")
    A("s_lshl_b32 s20, s20, 2")
    A("s_and_b32 s60, s23, 3")
    A("s_add_u32 s20, s20, s60")
    A("s_cmp_lt_u32 s22, 4")
    A("s_cbranch_scc1 L_COMMON")
    loader_first(A)
    A.lab("L_COMMON")
    A("s_lshr_b32 s62, s23, 2")
    A("s_and_b32 s63, s2, 1")
    A("s_lshl_b32 s21, s62, 1")
    A("s_add_u32 s21, s21, s63")
    A("s_mul_i32 s63, s63, 5")
    A("s_add_u32 s63, s63, s62")
    A("s_add_u32 s63, s63, 3")
    A("s_cmp_ge_u32 s62, 3")
    A("s_cselect_b32 s21, s63, s21")
    A("s_waitcnt lgkmcnt(0)")
    srd(A, S_X, 4, 2048*512*2)
    A("s_mov_b64 s[16:17], s[52:53]")
    A("s_mov_b64 s[18:19], s[58:59]")
    srd(A, S_WS, 58, WS_BYTES)
    srd(A, S_DBG, 56, 256)
    srd(A, S_OUT, 54, 2048*512*2)
    srd(A, S_T1, 58, 0)
    srd(A, S_T2, 58, 0)
    for r in HOFF: A(f"s_mov_b32 s{r}, 0x7fff0000")
    A("s_cmp_lt_u32 s22, 4")
    A("s_cbranch_scc1 L_COMPUTE")
    gen_loader(A)
    A("s_branch L_P0")
    A.lab("L_COMPUTE")
    gen_init(A)
    A("s_cmp_ge_u32 s21, 6")
    A("s_cbranch_scc1 L_F")
    A("s_cmp_ge_u32 s21, 4")
    A("s_cbranch_scc1 L_V")
    gen_compute(A, "QK")
    A.lab("L_V")
    gen_compute(A, "V")
    A.lab("L_SIGNAL")
    A("s_and_b32 s91, s21, 1")
    A("s_lshl_b32 s91, s91, 12")
    A(f"s_add_u32 s91, s91, {QCNT:#x}")
    A("s_waitcnt vmcnt(0)")
    last_wave_signals(A, "L_SIG2", 0, 3)
    stamp(A, 15)
    A("s_branch L_P2")
    A.lab("L_F")
    gen_compute(A, "F")
    A.lab("L_P2")
    gen_attn(A)
    gen_final(A)
    A.lab("L_END")
    A("s_endpgm")
    gen_hooks(A)
    return f""".section .rodata,"a"
.p2align 6
.amdhsa_kernel {name}
  .amdhsa_next_free_vgpr 256
  .amdhsa_next_free_sgpr 102
  .amdhsa_accum_offset 256
  .amdhsa_group_segment_fixed_size 0
  .amdhsa_kernarg_size 80
  .amdhsa_user_sgpr_count 2
  .amdhsa_user_sgpr_kernarg_segment_ptr 1
  .amdhsa_system_sgpr_workgroup_id_x 1
.end_amdhsa_kernel
"""

def gen_init(A):
    R = 160
    A("s_cmp_lg_u32 s22, 0")
    A("s_cbranch_scc1 L_INIT1")
    for r in range(R, R+4): A(f"v_mov_b32 v{r}, 0")
    A(f"v_mov_b32 v{R+4}, {SW}")
    A(f"ds_write_b128 v{R+4}, {vr(R,4)}")
    A("s_sub_u32 s61, s2, 128")
    A(f"s_cmp_ge_u32 s61, {NZ}")
    A("s_cbranch_scc1 L_INIT1")
    A(f"v_lshlrev_b32 v{R+4}, 7, v{L}")
    A("s_lshl_b32 s60, s61, 13")
    A(f"s_add_u32 s60, s60, {FLAGS:#x}")
    A(f"buffer_store_dword v{R}, v{R+4}, {sr(S_WS,4)}, s60 offen sc1")
    A("s_nop 1")
    A.lab("L_INIT1")
    for r in range(144): A(f"v_mov_b32 v{r}, 0")
    A("s_call_b64 s[76:77], L_ATTINIT")
    A("s_lshr_b32 s60, s22, 1")
    A("s_and_b32 s61, s22, 1")

VW = 144
def gen_wsetup(A):
    T = 158
    A("s_bfe_u32 s62, s22, 0x10001")
    A("s_and_b32 s63, s22, 1")
    A("s_cmp_lt_u32 s21, 6")
    A("s_cbranch_scc1 LL_Q")
    A("s_cmp_eq_u32 s63, 0")
    A(f"s_cselect_b32 s{S_W}, s12, s14")
    A(f"s_cselect_b32 s{S_W+1}, s13, s15")
    A(f"s_mov_b32 s{S_W+2}, {512*1376*2:#x}")
    A("s_sub_u32 s64, s21, 6")
    A(f"s_mul_i32 s64, s64, {9*32}")
    A(f"s_mov_b32 s65, {2752-288}")
    A(f"v_mul_u32_u24 v{T+2}, 3641, v{L}")
    A(f"v_lshl_add_u32 v{T+3}, v{L}, 4, s64")
    for i in range(9):
        A(f"v_add_u32 v{T+4}, {64*i*3641}, v{T+2}")
        A(f"v_lshrrev_b32 v{T+4}, 16, v{T+4}")
        A(f"v_add_u32 v{T+5}, {1024*i}, v{T+3}")
        A(f"v_mad_u32_u24 v{VW+i}, v{T+4}, s65, v{T+5}")
    A(f"v_and_b32 v{T+2}, 3, v{L}")
    A(f"v_min_u32 v{T+2}, 2, v{T+2}")
    A("s_mov_b32 s65, 2752")
    A(f"s_mov_b32 s68, {32*2752}")
    A("s_branch LL_C")
    A.lab("LL_Q")
    A(f"s_mov_b32 s{S_W}, s6")
    A(f"s_mov_b32 s{S_W+1}, s7")
    A(f"s_mov_b32 s{S_W+2}, {512*1536*2:#x}")
    A(f"v_lshrrev_b32 v{T+3}, 4, v{L}")
    A(f"v_mul_u32_u24 v{T+2}, 3072, v{T+3}")
    A(f"v_bfe_u32 v{T+4}, v{L}, 2, 2")
    A(f"v_xor_b32 v{T+4}, v{T+4}, v{T+3}")
    A(f"v_lshl_add_u32 v{T+2}, v{T+4}, 6, v{T+2}")
    A(f"v_and_b32 v{T+3}, 3, v{L}")
    A(f"v_lshl_add_u32 v{T+2}, v{T+3}, 4, v{T+2}")
    A("s_lshl_b32 s64, s21, 9")
    A("s_lshl_b32 s65, s63, 8")
    A("s_add_u32 s64, s64, s65")
    A(f"v_add_u32 v{VW}, s64, v{T+2}")
    for i in range(1, 9): A(f"v_add_u32 v{VW+i}, {i*4*3072}, v{VW}")
    A(f"v_and_b32 v{T+2}, 1, v{L}")
    A("s_mov_b32 s65, 3072")
    A(f"s_mov_b32 s68, {32*3072}")
    A.lab("LL_C")
    A("s_and_b32 s66, s20, 3")
    A("s_lshl_b32 s66, s66, 3")
    A(f"v_lshrrev_b32 v{T+3}, 2, v{L}")
    A(f"v_add_u32 v{T+3}, s66, v{T+3}")
    A(f"v_mul_u32_u24 v{T+3}, s65, v{T+3}")
    A(f"v_lshl_add_u32 v{T+3}, v{T+2}, 7, v{T+3}")
    A(f"v_add_u32 v{VW+9}, s64, v{T+3}")
    A(f"s_mov_b32 s{S_W+3}, 0x00020000")
    A(f"s_mul_i32 s71, s62, {WSL}")
    A(f"s_mul_i32 s66, s63, {UPOFF}")
    A("s_add_u32 s71, s71, s66")
    A(f"s_add_u32 s71, s71, {WR}")
    A("s_mov_b32 s72, s71")
    A(f"s_add_u32 s73, s71, {6*WSL}")
    A("s_mul_i32 s74, s62, s68")
    A("s_lshl_b32 s68, s68, 1")

W_PREFETCH = ["s_add_u32 s67, s74, s68", "s_mov_b32 exec_hi, 0",
              f"buffer_load_dword v253, v{VW+9}, {sr(S_W,4)}, s67 offen", "s_mov_b64 exec, -1"]
_dma_n = [0]
def dma_piece(i): return [f"s_add_u32 m0, s72, {i*1024}", "s_nop 0", f"buffer_load_dwordx4 v{VW+i}, {sr(S_W,4)}, s74 offen lds"]
DMA_TAIL = ["s_add_u32 s74, s74, s68", f"s_add_u32 s72, s72, {2*WSL}", "s_cmp_eq_u32 s72, s73", "s_cselect_b32 s72, s71, s72"]
def dma_groups(first):
    g = [dma_piece(i) for i in range(first, 9)]
    _dma_n[0] += 1
    lab = f"LL_D{_dma_n[0]}"
    g[-1] = ["s_cmp_lt_u32 s21, 6", f"s_cbranch_scc1 {lab}"] + g[-1] + [lab + ":"] + DMA_TAIL
    return g
def mix(A, work, groups, every):
    groups = list(groups)
    for n, w in enumerate(work):
        if isinstance(every, (list, tuple)):
            for _ in range(every.count(n)):
                if groups: A.many(groups.pop(0))
        elif groups and n % every == 0: A.many(groups.pop(0))
        A(w)
    for g in groups: A.many(g)

HREG = 184
HOFF = [52, 53, 54, 55, 56, 57, 58, 59, 10]
def h_offsets(A):
    tiles = [(lu*2+lt, lu, lt) for lu in range(4) for lt in range(2)] + [(8, 4, 0)]
    for (tile, lu, lt) in tiles:
        A("s_add_u32 s66, s64, 8" if lu == 4 else f"s_add_u32 s66, s65, {lu}")
        A("s_lshl_b32 s67, s66, 10")
        A(f"s_add_u32 s67, s67, s{62+lt}")
        A(f"s_cmp_lt_u32 s66, {NFU}")
        A(f"s_cselect_b32 s{HOFF[tile]}, s67, 0x7fff0000")

SJ = 184
def side_setup(A):
    A("s_mul_i32 s75, s20, 10")
    A("s_add_u32 s75, s75, s21")
    A("s_sub_u32 s75, s75, 6")
    A("s_mul_i32 s75, s75, 3")
    A("s_add_u32 s75, s75, s60")
    A("s_sub_u32 s75, s75, 1")
    A(f"v_lshrrev_b32 v245, 5, v{L}")
    A("v_lshlrev_b32 v245, 10, v245")
    A(f"v_and_b32 v246, 31, v{L}")
    A("v_lshl_add_u32 v245, v246, 4, v245")
    for jb in range(2):
        S = 4 if jb else S_W
        A(f"s_add_u32 s90, s75, {480*jb}")
        A("s_cmp_lt_u32 s90, 256")
        A(f"s_cselect_b32 s{S}, s8, s16")
        A(f"s_cselect_b32 s{S+1}, s9, s17")
        csel(A, S+2, 512*512*2, 1376*512*2)
        A(f"s_mov_b32 s{S+3}, 0x00020000")
        csel(A, 91, WOF, WDF)
        csel(A, 67, 32*2048, NFU*2048)
        A("s_cselect_b32 s70, 0, 256")
        A("s_sub_u32 s70, s90, s70")
        A("s_lshr_b32 s94, s70, 3")
        A("s_and_b32 s70, s70, 7")
        A(f"s_lshl_b32 s{72+jb}, s94, 14")
        A("s_lshl_b32 s95, s70, 7")
        A(f"s_add_u32 s{72+jb}, s{72+jb}, s95")
        A("s_mul_i32 s70, s70, s67")
        A("s_lshl_b32 s94, s94, 11")
        A("s_add_u32 s70, s70, s94")
        A("s_add_u32 s70, s70, s91")
        A(f"s_cmp_lt_u32 s90, {256+8*NFU}")
        A(f"s_cselect_b32 s{92+jb}, s70, 0x7fff0000")
def side_prefetch(A):
    A("s_mov_b64 exec, 0xffff")
    A(f"buffer_load_dword v253, v245, {sr(S_T1,4)}, s81 offen")
    A(f"buffer_load_dword v253, v245, {sr(S_T2,4)}, s82 offen")
    A("s_mov_b64 exec, -1")
def side_loads(A, jb):
    S = 4 if jb else S_W
    for rho in range(16):
        hh = (rho >> 2) & 1; j = (rho & 3) + 4*(rho >> 3)
        d = SJ + 16*jb + 8*(j & 1) + 4*hh + (j >> 1)
        A(f"buffer_load_ushort v{d}, v244, {sr(S,4)}, s{72+jb} offen offset:{(rho&3)*1024}")
        if (rho & 3) == 3: A(f"s_add_u32 s{72+jb}, s{72+jb}, 4096")
def side_combine(A):
    for jb in range(2):
        d = SJ + 16*jb
        for i in range(8): A(f"v_lshl_or_b32 v{d+i}, v{d+8+i}, 16, v{d+i}")
        A(f"s_mov_b32 s{HOFF[4*jb]}, s{92+jb}")
        A(f"s_add_u32 s{HOFF[4*jb+1]}, s{92+jb}, 512")
    A("v_mov_b32 v249, v245")

def gen_compute(A, kind):
    F = kind == "F"
    ROLE[0] = kind[0]
    NW = 5 if F else 4
    ND = 9 if F else 8
    XS = [176, 184]; WSET = [192, 212]
    XA = 232; XB = 236; WA = 240; T0 = 244
    KQ = 1152 if F else 1024
    US = 32
    P = "L1" + kind
    t, h, sw = T0, T0+1, T0+2
    A(f"v_and_b32 v{t}, 31, v{L}")
    A(f"v_lshrrev_b32 v{h}, 5, v{L}")
    A(f"v_bfe_u32 v{sw}, v{t}, 1, 3")
    A(f"v_xor_b32 v{sw}, v{sw}, v{h}")
    A(f"v_lshlrev_b32 v{T0+3}, 7, v{t}")
    A("s_lshl_b32 s62, s22, 12")
    for s in range(4):
        A(f"v_xor_b32 v{T0+4}, {2*s}, v{sw}")
        A(f"v_lshl_add_u32 v{T0+4}, v{T0+4}, 4, v{T0+3}")
        A(f"v_add_u32 v{XA+s}, s62, v{T0+4}")
        A(f"v_xor_b32 v{XB+s}, 0x1000, v{XA+s}")
    if F:
        A(f"v_bfe_u32 v{T0+5}, v{L}, 2, 2")
        A(f"v_mul_u32_u24 v{T0+5}, 288, v{T0+5}")
        A(f"v_and_b32 v{T0+3}, 3, v{L}")
        A(f"v_lshl_add_u32 v{T0+3}, v{T0+3}, 3, v{T0+5}")
        A(f"v_bfe_u32 v{T0+4}, v{L}, 4, 1")
        A(f"v_mul_u32_u24 v{T0+4}, {UPOFF}, v{T0+4}")
        A(f"v_add_u32 v{T0+3}, v{T0+3}, v{T0+4}")
    else:
        A(f"v_bfe_u32 v{T0+5}, v{L}, 2, 2")
        A(f"v_and_b32 v{T0+3}, 3, v{L}")
        A(f"v_lshlrev_b32 v{T0+3}, 3, v{T0+3}")
        A(f"v_lshl_add_u32 v{T0+3}, v{T0+5}, 8, v{T0+3}")
        A(f"v_bfe_u32 v{T0+4}, v{L}, 4, 1")
        A(f"v_lshl_add_u32 v{T0+3}, v{T0+4}, 5, v{T0+3}")
    A(f"v_mul_u32_u24 v{T0+4}, {2*KQ}, v{h}")
    A(f"v_add_u32 v{T0+3}, v{T0+3}, v{T0+4}")
    A(f"v_add_u32 v{T0+3}, {WR}, v{T0+3}")
    if F:
        A(f"s_mul_i32 s62, s61, {4*US}")
        A(f"v_add_u32 v{WA}, s62, v{T0+3}")
        A(f"v_add_u32 v{WA+1}, {8*US}, v{T0+3}")
    else:
        A(f"s_mul_i32 s62, s61, {UPOFF}")
        A(f"v_add_u32 v{T0+3}, s62, v{T0+3}")
        for lu in range(4):
            A(f"v_xor_b32 v{T0+4}, {lu}, v{T0+5}")
            A(f"v_lshl_add_u32 v{WA+lu}, v{T0+4}, 6, v{T0+3}")
    VO = 249
    if kind == "QK":
        A(f"v_and_b32 v{T0+6}, 0x33, v{L}")
        A(f"v_bfe_u32 v{T0+7}, v{L}, 2, 1")
        A(f"v_lshl_or_b32 v{T0+6}, v{T0+7}, 3, v{T0+6}")
        A(f"v_bfe_u32 v{T0+7}, v{L}, 3, 1")
        A(f"v_lshl_or_b32 v{T0+6}, v{T0+7}, 2, v{T0+6}")
        A("s_cmp_lt_u32 s21, 2")
        A("s_cselect_b64 vcc, -1, 0")
        A(f"v_cndmask_b32 v{VO}, v{T0+6}, v{L}, vcc")
        A(f"v_lshlrev_b32 v{VO}, 4, v{VO}")
    elif kind == "V":
        A(f"v_and_b32 v{VO}, 15, v{L}")
        A(f"v_lshlrev_b32 v{VO}, 4, v{VO}")
        A(f"v_lshl_or_b32 v{VO}, v{h}, 8, v{VO}")
        A(f"v_bfe_u32 v{T0+6}, v{L}, 4, 1")
        A(f"v_lshl_or_b32 v{VO}, v{T0+6}, 16, v{VO}")
    else:
        A(f"v_lshlrev_b32 v{VO}, 4, v{L}")
    A("s_lshl_b32 s68, s20, 2")
    A("s_add_u32 s68, s68, s22")
    A("s_xor_b32 s69, s68, 1")
    if not F:
        A("s_lshl_b32 s70, s21, 20")
        A("s_lshl_b32 s71, s61, 19")
        A("s_add_u32 s70, s70, s71")
        A("s_lshl_b32 s68, s68, 10")
        A("s_lshl_b32 s69, s69, 10")
        A("s_add_u32 s68, s68, s70")
        A("s_add_u32 s69, s69, s70")
    A("s_mov_b32 s64, 0")
    A("s_mov_b32 s65, 0")

    def reads(st, s):
        r = []
        hs, sp = s >> 1, s & 1
        def wread(lu):
            a = WA + ((1 if lu == 4 else 0) if F else lu)
            base = hs*WSL + 4*sp*KQ + (lu*US if F and lu < 4 else 0)
            d = WSET[st] + 4*lu
            return [f"ds_read_b64_tr_b16 {vr(d,2)}, v{a} offset:{base}",
                    f"ds_read_b64_tr_b16 {vr(d+2,2)}, v{a} offset:{base+KQ}"]
        r.append(f"ds_read_b128 {vr(XS[st],4)}, v{XA+s}")
        r += wread(0)
        r.append(f"ds_read_b128 {vr(XS[st]+4,4)}, v{XB+s}")
        for lu in range(1, NW): r += wread(lu)
        return r
    def mfma(tile, w, x):
        a, b = (x, w) if kind == "V" else (w, x)
        return f"v_mfma_f32_32x32x16_bf16 {vr(16*tile,16)}, {vr(a,4)}, {vr(b,4)}, {vr(16*tile,16)}"
    def mfmas(st):
        m = [mfma(lu*2+lt, WSET[st]+4*lu, XS[st]+4*lt) for lu in range(4) for lt in range(2)]
        if F: m.append(mfma(8, WSET[st]+16, XS[st]))
        return m
    stamp(A, 1)
    A("s_waitcnt vmcnt(0) lgkmcnt(0)" if F else "s_waitcnt lgkmcnt(0)")
    A("s_barrier")
    stamp(A, 2)
    A.many(reads(0, 0))
    if F:
        A("s_sub_u32 s66, s2, 128")
        A("s_lshl_b32 s67, s22, 8")
        A("s_add_u32 s66, s66, s67")
        A(f"s_cmp_ge_u32 s66, {NZ}")
        A(f"s_cbranch_scc1 {P}_LOOP")
        A("s_lshl_b32 s66, s66, 2")
        A("s_mov_b64 exec, 1")
        A("v_mov_b32 v250, 1")
        A("v_mov_b32 v251, 0")
        A(f"buffer_store_dword v250, v251, {sr(S_DBG,4)}, s66 offen sc1")
        A("s_mov_b64 exec, -1")
    A.raw(".p2align 6")
    A.lab(P + "_LOOP")
    NR = 2*NW + 2
    PEEL = OPT["peel"] and not F
    NIT = 7 if PEEL else 8
    need = [3, 4, 6, 6, 8, 8, 10, 10, 12]
    for s in range(4):
        st = s & 1; nx = (s+1) & 3
        ms = mfmas(st); rd = reads(1-st, nx)
        n = len(ms)
        gaps = [[] for _ in ms]
        g0 = OPT["barpos"] if s == 3 else 0
        for i, r in enumerate(rd): gaps[g0 + i//2].append(r)
        xu = lambda k: [f"v_xor_b32 v{XA+k}, 0x4000, v{XA+k}", f"v_xor_b32 v{XB+k}, 0x4000, v{XB+k}"]
        if s < 3:
            gaps[n-2] += xu(nx)
        if s == 0: gaps[n-3] += xu(0)
        if s == 1:
            gaps[n-3] += ["s_cmp_eq_u32 s65, 2", f"s_mov_b32 s66, {2*WSL:#x}", f"s_cselect_b32 s66, {(-4*WSL) & 0xffffffff:#x}, s66"]
            gaps[n-1] += ["s_cselect_b32 s65, -1, s65", "s_add_u32 s65, s65, 1"]
        if s == 2:
            gaps[n-1] += [f"v_add_u32 v{WA+i}, s66, v{WA+i}" for i in range(2 if F else 4)]
        if s == 3:
            gaps[n-1] += ["s_add_u32 s64, s64, 1", f"s_cmp_lt_u32 s64, {NIT}"]
        issued = 0; done = 0
        for i, (m, g) in enumerate(zip(ms, gaps)):
            if need[i] > done:
                A(f"s_waitcnt lgkmcnt({min(15, NR - need[i] + issued)})"); done = need[i]
            A(m)
            if s == 3 and i == g0:
                A("s_waitcnt lgkmcnt(0)"); done = NR
                A("s_barrier")
            for x in g:
                A(x)
                if x.startswith("ds_"): issued += 1
    if OPT["prof"] and OPT["itstamp"]:
        A("s_memtime s[96:97]")
        A("s_memrealtime s[98:99]")
        A("s_add_u32 m0, s64, 19")
        A("s_waitcnt lgkmcnt(0)")
        A("v_writelane_b32 v255, s96, m0")
        A("s_add_u32 m0, s64, 51")
        A("s_nop 0")
        A("v_writelane_b32 v255, s98, m0")
        A(f"s_cmp_lt_u32 s64, {NIT}")
    A(f"s_cbranch_scc1 {P}_LOOP")
    stamp(A, 3)
    tiles = [(lu*2+lt, lu, lt) for lu in range(4) for lt in range(2)] + ([(8, 4, 0)] if F else [])
    if not F:
        def fin(tile, lu, lt):
            a = 16*tile
            g = [[f"v_cvt_pk_bf16_f32 v{a+i}, v{a+2*i}, v{a+2*i+1}" for i in range(4)],
                 [f"s_add_u32 s65, s{68+lt}, {lu*131072}", f"buffer_store_dwordx4 {vr(a,4)}, v{VO}, {sr(S_WS,4)}, s65 offen sc1"],
                 [f"v_cvt_pk_bf16_f32 v{a+8+i}, v{a+8+2*i}, v{a+9+2*i}" for i in range(4)]]
            if kind == "QK": g.append(["s_add_u32 s65, s65, 65536", f"buffer_store_dwordx4 {vr(a+8,4)}, v{VO}, {sr(S_WS,4)}, s65 offen sc1"])
            else: g.append([f"buffer_store_dwordx4 {vr(a+8,4)}, v{VO}, {sr(S_WS,4)}, s65 offen offset:512 sc1"])
            return g
        rest = tiles
        if PEEL:
            XR = {1: XS[1], 2: 128, 3: 136}
            WG = [[212, 216, 220], [224, 228, 208]]
            def wrd(lu):
                r = []
                for s in (1, 2, 3):
                    base = (s >> 1)*WSL + 4*(s & 1)*KQ; d = WG[lu & 1][s-1]
                    r += [f"ds_read_b64_tr_b16 {vr(d,2)}, v{WA+lu} offset:{base}", f"ds_read_b64_tr_b16 {vr(d+2,2)}, v{WA+lu} offset:{base+KQ}"]
                return r
            w0 = wrd(0); rd = []
            for s in (1, 2, 3):
                rd += [f"ds_read_b128 {vr(XR[s],4)}, v{XA+s}", f"ds_read_b128 {vr(XR[s]+4,4)}, v{XB+s}"] + w0[2*s-2:2*s]
            issued = 0; done = 0
            for i, m in enumerate(mfmas(0)):
                if need[i] > done:
                    A(f"s_waitcnt lgkmcnt({min(15, NR - need[i] + issued)})"); done = need[i]
                A(m)
                A.many(rd[2*i:2*i+2]); issued += len(rd[2*i:2*i+2])
            pend = []
            for lu in range(4):
                A("s_waitcnt lgkmcnt(0)")
                if lu == 3: A("s_barrier")
                nxt = wrd(lu+1) if lu < 3 else []
                for i, (s, lt) in enumerate((s, lt) for s in (1, 2, 3) for lt in range(2)):
                    A(mfma(lu*2+lt, WG[lu & 1][s-1], XR[s]+4*lt))
                    A.many(nxt[2*i:2*i+2])
                    if i == 2 and lu > 0:
                        A("s_nop 3")
                        for tl in tiles[2*(lu-1):2*lu]: pend += fin(*tl)
                    for _ in range(2 if i >= 3 else 1):
                        if pend: A.many(pend.pop(0))
            for g in pend: A.many(g)
            A("s_nop 7")
            rest = tiles[6:]
        for tl in rest:
            for g in fin(*tl): A.many(g)
        stamp(A, 4)
        if kind == "QK": A("s_branch L_SIGNAL")
    else:
        A(f"s_mul_i32 s62, s68, {NFU*1024}")
        A(f"s_mul_i32 s63, s69, {NFU*1024}")
        A(f"s_add_u32 s62, s62, {HF:#x}")
        A(f"s_add_u32 s63, s63, {HF:#x}")
        A("s_sub_u32 s64, s21, 6")
        A("s_mul_i32 s64, s64, 9")
        A("s_lshl_b32 s65, s61, 2")
        A("s_add_u32 s65, s65, s64")
        C1, C3, ONE, TT = 220, 222, 224, 176
        c1 = -2*0.7978845608028654*LOG2E
        A("s_waitcnt lgkmcnt(0)")
        for r, v in ((C1, c1), (C3, c1*0.044715), (ONE, 1.0)):
            A(f"v_mov_b32 v{r}, {f2u(v):#x}")
            A(f"v_mov_b32 v{r+1}, {f2u(v):#x}")
        dst = lambda tile: HREG + 4*tile
        h_offsets(A)
        for (tile, lu, lt) in tiles:
            a = 16*tile
            for i in range(4): A(f"v_pk_mul_f32 {vr(TT+2*i,2)}, {vr(a+2*i,2)}, {vr(a+2*i,2)}")
            for i in range(4): A(f"v_pk_fma_f32 {vr(TT+2*i,2)}, {vr(TT+2*i,2)}, {vr(C3,2)}, {vr(C1,2)}")
            for i in range(4): A(f"v_pk_mul_f32 {vr(TT+2*i,2)}, {vr(TT+2*i,2)}, {vr(a+2*i,2)}")
            for i in range(8): A(f"v_exp_f32 v{TT+i}, v{TT+i}")
            for i in range(4): A(f"v_pk_mul_f32 {vr(a+2*i,2)}, {vr(a+2*i,2)}, {vr(a+8+2*i,2)}")
            for i in range(4): A(f"v_pk_add_f32 {vr(TT+2*i,2)}, {vr(TT+2*i,2)}, {vr(ONE,2)}")
            for i in range(8): A(f"v_rcp_f32 v{TT+i}, v{TT+i}")
            A("s_nop 0")
            for i in range(4): A(f"v_pk_mul_f32 {vr(a+2*i,2)}, {vr(a+2*i,2)}, {vr(TT+2*i,2)}")
            for i in range(4): A(f"v_cvt_pk_bf16_f32 v{dst(tile)+i}, v{a+2*i}, v{a+2*i+1}")
        stamp(A, 4)

VX = 212; DW = 240; S1 = 216; S2 = 220; RR = 224; MR = 228; TL = 232
xreg = lambda c, i: (i*8 + c)*4
def xload_(A, i):
    A(f"s_add_u32 s{85+i}, s80, {i}")
    A(f"s_and_b32 s{85+i}, s{85+i}, 3")
    A(f"s_lshl_b32 s89, s{85+i}, 13")
    A("s_add_u32 s89, s89, s61")
    for c in range(8):
        A(f"buffer_load_dwordx4 {vr(xreg(c,i),4)}, v{VX}, {sr(S_X,4)}, s89 offen offset:{c*128}")
def loader_first(A):
    T = TL
    A("s_sub_u32 s60, s22, 4")
    A("s_lshl_b32 s61, s20, 17")
    A("s_lshl_b32 s62, s60, 15")
    A("s_add_u32 s61, s61, s62")
    A("s_lshr_b32 s80, s2, 5")
    A("s_waitcnt lgkmcnt(0)")
    srd(A, S_X, 4, 2048*512*2)
    xload_(A, 0); xload_(A, 1)

def gen_loader(A):
    ROLE[0] = "L"
    T = TL
    xload = lambda i: xload_(A, i)
    gen_wsetup(A)
    xload(2)
    A("s_cmp_lt_u32 s21, 2")
    A(f"s_cselect_b32 s69, {f2u(0.25*LOG2E):#x}, 1.0")
    A("s_lshr_b32 s64, s21, 1")
    A("s_cmp_eq_u32 s64, 2")
    A(f"s_cselect_b32 s69, {f2u(2.0**VSH):#x}, s69")
    for r in range(S1, S2+4): A(f"v_mov_b32 v{r}, 0")
    A("s_mov_b32 s78, 0x3f803f80")
    A("v_mov_b32 v249, 0")
    A(f"v_lshlrev_b32 v244, 1, v{L}")
    A("s_cmp_ge_u32 s21, 6")
    A("s_cselect_b32 s79, s60, 0")
    def norm(c, i):
        x = xreg(c, i); r = []
        for d in range(4):
            r.append(f"v_lshlrev_b32 v{T+2*d}, 16, v{x+d}")
            r.append(f"v_and_b32 v{T+2*d+1}, 0xffff0000, v{x+d}")
        for d in range(8): r.append(f"v_fma_f32 v{T+d}, v{T+d}, v{RR+i}, -v{MR+i}")
        for d in range(4): r.append(f"v_cvt_pk_bf16_f32 v{x+d}, v{T+2*d}, v{T+2*d+1}")
        if OPT["w64"]:
            r.insert(-2, f"ds_write_b64 v{DW+i}, {vr(x,2)} offset:{(c&1)*16384}")
            r.append(f"ds_write_b64 v{DW+i}, {vr(x+2,2)} offset:{(c&1)*16384+8}")
        else: r.append(f"ds_write_b128 v{DW+i}, {vr(x,4)} offset:{(c&1)*16384}")
        return r
    def dots(i):
        r = []
        for k in range(32):
            r.append(f"v_dot2c_f32_bf16 v{S2+i}, v{xreg(0,i)+k}, v{xreg(0,i)+k}")
            r.append(f"v_dot2c_f32_bf16 v{S1+i}, s78, v{xreg(0,i)+k}")
        return r
    A("s_waitcnt vmcnt(16)"); stamp(A, 16)
    xload(3)
    A.many(dots(0))
    A(f"v_lshrrev_b32 v{T+2}, 4, v{L}")
    A(f"v_xor_b32 v{T+2}, v{T+2}, v{T+1}")
    A(f"v_lshlrev_b32 v{T+3}, 7, v{T}")
    A("s_lshl_b32 s64, s60, 12")
    A(f"v_add_u32 v{T+3}, s64, v{T+3}")
    A(f"v_lshl_add_u32 v{T+3}, v{T+2}, 4, v{T+3}")
    for i in range(4):
        A(f"s_and_b32 s64, s{85+i}, 1")
        A("s_lshl_b32 s64, s64, 6")
        A(f"s_lshl_b32 s65, s{85+i}, 10")
        A("s_or_b32 s64, s64, s65")
        A(f"v_xor_b32 v{DW+i}, s64, v{T+3}")
    def vmw(base, tag):
        A(f"s_waitcnt vmcnt({base+9})")
        A("s_cmp_ge_u32 s21, 6")
        A(f"s_cbranch_scc1 {tag}")
        A(f"s_waitcnt vmcnt({base+8})")
        A.lab(tag)
    A("s_waitcnt vmcnt(16)"); stamp(A, 17)
    if OPT["wearly"]:
        mix(A, dots(1), dma_groups(0), 7)
        vmw(8, "LL_G2"); stamp(A, 18)
        A.many(dots(2))
    else:
        A.many(dots(1))
        A("s_waitcnt vmcnt(8)"); stamp(A, 18)
        mix(A, dots(2), dma_groups(0), 7)
    vmw(0, "LL_G3")
    stamp(A, 19)
    A.many(dots(3))
    A("s_nop 2")
    for ctl in ("quad_perm:[1,0,3,2]", "quad_perm:[2,3,0,1]", "row_half_mirror"):
        for r in range(S1, S2+4):
            A(f"v_add_f32_dpp v{r}, v{r}, v{r} {ctl} row_mask:0xf bank_mask:0xf")
    seq = [
        lambda i: f"v_mul_f32 v{S1+i}, {f2u(1/512):#x}, v{S1+i}",
        lambda i: f"v_mul_f32 v{S2+i}, {f2u(1/512):#x}, v{S2+i}",
        lambda i: f"v_fma_f32 v{S2+i}, -v{S1+i}, v{S1+i}, v{S2+i}",
        lambda i: f"v_max_f32 v{S2+i}, 0, v{S2+i}",
        lambda i: f"v_cvt_pk_bf16_f32 v{S2+i}, v{S1+i}, v{S2+i}",
        lambda i: f"v_lshlrev_b32 v{S1+i}, 16, v{S2+i}",
        lambda i: f"v_and_b32 v{S2+i}, 0xffff0000, v{S2+i}",
        lambda i: f"v_add_f32 v{S2+i}, {f2u(1e-5):#x}, v{S2+i}",
        lambda i: f"v_cvt_pk_bf16_f32 v{S2+i}, v{S2+i}, v{S2+i}",
        lambda i: f"v_and_b32 v{S2+i}, 0xffff0000, v{S2+i}",
        lambda i: f"v_sqrt_f32 v{S2+i}, v{S2+i}",
        lambda i: f"v_cvt_pk_bf16_f32 v{S2+i}, v{S2+i}, v{S2+i}",
        lambda i: f"v_and_b32 v{S2+i}, 0xffff0000, v{S2+i}",
        lambda i: f"v_rcp_f32 v{RR+i}, v{S2+i}",
        lambda i: f"v_mul_f32 v{RR+i}, s69, v{RR+i}",
        lambda i: f"v_mul_f32 v{MR+i}, v{S1+i}, v{RR+i}",
    ]
    for f in seq:
        for i in range(4): A(f(i))
    stamp(A, 1)
    mix(A, sum((norm(0, i) for i in range(4)), []), dma_groups(0), OPT["dmaevery"])
    if -1 in OPT["wpf"]: A.many(W_PREFETCH)
    stamp(A, 2)
    dbg_load = [f"buffer_load_dword v97, v96, {sr(S_DBG,4)}, 0 offen sc1"]
    for m in range(8):
        if m == 4: stamp(A, 29)
        A(f"s_waitcnt vmcnt({8 if m < 7 else 0}) lgkmcnt(0)")
        if m == 4: stamp(A, 30)
        if m == 5:
            A.many(ALL1(97))
            A("s_cbranch_scc1 LL_POLL0_OK")
            spin(A, "LL_POLL0", dbg_load, ALL1(97))
        A("s_barrier")
        if m == 3: stamp(A, 28)
        if m == 4: stamp(A, 31)
        if m == 7: break
        work = sum((norm(m+1, i) for i in range(4)), [])
        isw = lambda w: w.startswith("ds_")
        if OPT["exp"] == "wlast": work = [w for w in work if not isw(w)] + [w for w in work if isw(w)]
        if OPT["exp"] == "wfirst":
            if m == 0: A.many(work)
            else: A.many([w for w in work if isw(w)])
            work = [w for w in sum((norm(m+2, i) for i in range(4)), []) if not isw(w)] if m < 6 else []
        if OPT["exp"].startswith("grp"):
            dg = dma_groups(0) if m < 6 else []
            split = {"grp": [3,2,2,2,0], "grp2": [0,3,3,3,0], "grp3": [2,3,2,2,0], "grp4": [4,3,2,0,0]}[OPT["exp"]]
            for _ in range(split[0]):
                if dg: A.many(dg.pop(0))
            for i in range(4):
                nn = norm(m+1, i)
                A.many(nn[:-1])
                for _ in range(split[i+1]):
                    if dg: A.many(dg.pop(0))
                A(nn[-1])
            work = None
        if OPT["exp"] == "nonorm": work = []
        if OPT["exp"] == "nowrite": work = [w for w in work if not w.startswith("ds_")]
        if OPT["exp"] == "dmalast":
            A.many(work); work = []
        if OPT["exp"] == "dmafirst":
            mix(A, [], dma_groups(0) if m < 6 else [], 1); A.many(work); continue
        if work is not None: mix(A, work, dma_groups(0) if m < 6 else [], OPT["dmaevery"])
        if m in OPT["wpf"]: A.many(W_PREFETCH)
        if m == 3:
            A(f"v_min_u32 v96, {NZ-1}, v{L}")
            A("v_lshlrev_b32 v96, 2, v96")
            A.many(dbg_load)
    A("s_mov_b32 s23, s79")
    side_setup(A)
    A("s_call_b64 s[76:77], L_ATTINIT")
    late_init(A)
    A("s_barrier")
    if OPT["b8prio"]: A("s_setprio 3")
    stamp(A, 3)
    A("s_cmp_eq_u32 s23, 0")
    A("s_cbranch_scc1 LL_S7")
    side_loads(A, 0)
    side_loads(A, 1)
    A.lab("LL_S7")
    A("s_cmp_lg_u32 s60, 0")
    A("s_cbranch_scc1 LL_WAITGO")
    A("v_mov_b32 v96, 0")
    A("s_bfe_u32 s64, s2, 0x10004")
    A("s_lshl_b32 s64, s64, 5")
    A("s_and_b32 s65, s2, 15")
    A("s_add_u32 s64, s64, s65")
    A("s_bfe_u32 s65, s2, 0x10005")
    A("s_lshl_b32 s65, s65, 4")
    A("s_add_u32 s64, s64, s65")
    A("s_lshl_b32 s64, s64, 7")
    A(f"s_add_u32 s64, s64, {QCNT:#x}")
    if OPT["qsch"] == "E":
        A(f"s_and_b32 s64, s64, {(~(24*128)) & 0xffffffff:#x}")
        spin(A, "LL_POLL", [f"buffer_load_dword v97, v96, {sr(S_WS,4)}, s64 offen sc1"], ALL1(97))
    else: spin3(A, "LL_POLL", [0, 1, 2], 96, "s64", 48)
    A(f"v_mov_b32 v96, {SW}")
    A("v_mov_b32 v97, 1")
    A("ds_write_b32 v96, v97 offset:4")
    A("s_branch LL_GO")
    A.lab("LL_WAITGO")
    A(f"v_mov_b32 v96, {SW}")
    A(f"s_mov_b32 s70, {SPIN_MAX*16}")
    A.lab("LL_WG1")
    A("ds_read_b32 v97, v96 offset:4")
    A("s_waitcnt lgkmcnt(0)")
    A("v_readfirstlane_b32 s65, v97")
    A("s_cmp_lg_u32 s65, 0")
    A("s_cbranch_scc1 LL_GO")
    A("s_sleep 1")
    A("s_sub_u32 s70, s70, 1")
    A("s_cmp_lg_u32 s70, 0")
    A("s_cbranch_scc1 LL_WG1")
    A.lab("LL_GO")
    stamp(A, 4)
    A("s_and_b32 s64, s2, 31")
    A("s_lshl_b32 s64, s64, 16")
    A("s_lshl_b32 s65, s60, 11")
    A("s_add_u32 s64, s64, s65")
    A("s_lshr_b32 s66, s2, 5")
    A("s_lshl_b32 s66, s66, 13")
    A("s_add_u32 s66, s66, s64")
    A(f"s_add_u32 m0, s65, {QOFF}")
    A(f"s_add_u32 s67, s64, {KF:#x}")
    A(f"buffer_load_dwordx4 v95, {sr(S_WS,4)}, s66 offen sc1 lds")
    A(f"buffer_load_dwordx4 v95, {sr(S_WS,4)}, s66 offen offset:1024 sc1 lds")
    A(f"s_add_u32 s68, s64, {VF:#x}")
    for c in range(2):
        A(f"s_add_u32 m0, s65, {c*8192}")
        A("s_nop 0")
        A(f"buffer_load_dwordx4 v95, {sr(S_WS,4)}, s67 offen sc1 lds")
        A(f"buffer_load_dwordx4 v95, {sr(S_WS,4)}, s67 offen offset:1024 sc1 lds")
        A(f"s_add_u32 m0, s65, {65536 + c*8192}")
        A("s_add_u32 s67, s67, 8192")
        A(f"buffer_load_dwordx4 v95, {sr(S_WS,4)}, s68 offen sc1 lds")
        A(f"buffer_load_dwordx4 v95, {sr(S_WS,4)}, s68 offen offset:1024 sc1 lds")
        A("s_add_u32 s68, s68, 8192")
    A("s_cmp_eq_u32 s23, 0")
    A("s_cbranch_scc1 L_P0")
    A("s_waitcnt vmcnt(10)")
    side_combine(A)


WSC = lambda: "" if OPT["wl1"] else " sc1"
def down_loads(A, slot):
    A(f"buffer_load_dwordx4 {vr(DH[slot],4)}, v{L16}, {sr(S_T1,4)}, s84 offen sc1")
    A(f"buffer_load_dwordx4 {vr(DW_[slot],4)}, v{L16}, {sr(S_T2,4)}, s85 offen{WSC()}")
    A(f"buffer_load_dwordx4 {vr(DW_[slot]+4,4)}, v{L16}, {sr(S_T2,4)}, s85 offen offset:1024{WSC()}")
    A("s_add_u32 s84, s84, 1024")
    A("s_add_u32 s85, s85, 2048")

def kv_piece(k):
    if k & 1: return ["s_add_u32 m0, s95, 65536", "s_add_u32 s94, s94, 8192",
                      f"buffer_load_dwordx4 v{L16}, {sr(S_WS,4)}, s60 offen sc1 lds", "s_add_u32 s95, s95, 8192"]
    return ["s_mov_b32 m0, s95", f"s_add_u32 s60, s94, {VF-KF:#x}", f"buffer_load_dwordx4 v{L16}, {sr(S_WS,4)}, s94 offen sc1 lds"]
HPOLL = lambda: apoll(101, 100, "s75", 15)

def attn_body(A, mode):
    hs = 0
    for t in range(8):
        p = t & 1
        down = mode in "BC" or (mode == "2" and t >= 4)
        cur, prv = S_[p], S_[1-p]
        ex = lambda a, b: [A(f"v_exp_f32 v{cur+i}, v{cur+i}") for i in range(a, b)]
        if p == 0: A(f"s_setprio {3 - (t >> 1)}")
        A("s_waitcnt lgkmcnt(3)")
        ex(0, 2)
        if not (mode == "0" and t == 0):
            A(f"v_smfmac_f32_32x32x32_bf16 {vr(O_,16)}, {vr(V1[1-p],4)}, {vr(prv+8,8)}, v{IDX}")
        if mode == "0" and t < 6: A.many(kv_piece(2*t))
        ex(2, 6 if down else 7)
        A(f"v_mfma_f32_32x32x16_bf16 {vr(prv,16)}, {vr(KB[1-p],4)}, {vr(Q_,4)}, {vr(C_,16)}")
        skip = OPT["halfkv"] and (t & 2) and mode == "B"
        if not skip: A(f"ds_read_b128 {vr(KB[1-p],4)}, v{KA} offset:{(t+3)*1024}")
        if mode == "0" and t < 6: A.many(kv_piece(2*t+1))
        ex(6 if down else 7, 10 if down else 12)
        A(f"v_smfmac_f32_32x32x32_bf16 {vr(O_,16)}, {vr(V0[p],4)}, {vr(cur,8)}, v{IDX}")
        if not skip:
            A("s_mov_b64 exec, s[80:81]")
            A(f"ds_read_b128 {vr(V0[p],4)}, v{VA} offset:{(t+2)*1024}")
            A(f"ds_read_b128 {vr(V1[1-p],4)}, v{VA} offset:{(t+1)*1024+512}")
            A("s_mov_b64 exec, -1")
        if mode == "0":
            for _ in range(OPT["hplan"][t]):
                A(f"buffer_store_dwordx4 {vr(HREG+4*hs,4)}, v249, {sr(S_WS,4)}, s{HOFF[hs]} offen sc1"); hs += 1
        if mode == "2" and t < 4: down_loads(A, (t + 2) & 3)
        if mode == "C":
            if t == 0: A(f"buffer_load_dwordx4 {vr(XV,4)}, v252, {sr(S_X,4)}, s88 offen")
            for i in range(2):
                A(f"buffer_load_dwordx4 {vr(WO+8*t+4*i,4)}, v{L16}, {sr(S_WS,4)}, s90 offen offset:{(2*p+i)*1024}{WSC()}")
            if p: A("s_add_u32 s90, s90, 4096")
        if down:
            ex(10, 14)
            sl = t >> 1
            if p == 0: A(f"s_waitcnt vmcnt({12 + sl if mode == 'C' else 9})")
            cc = "0" if (mode == "2" and t < 6) else vr(DACC+16*p,16)
            if "m" not in OPT["nodown"]: A(f"v_mfma_f32_32x32x16_bf16 {vr(DACC+16*p,16)}, {vr(DW_[sl]+4*p,4)}, {vr(DH[sl],4)}, {cc}")
            if mode != "C" and p == 1 and "l" not in OPT["nodown"]: down_loads(A, sl)
            ex(14, 16)
        else:
            ex(12, 16)
        if mode == "1" and t == OPT["sigt"]:
            A("s_waitcnt vmcnt(0)")
            A("s_barrier")
            A("s_cmp_lg_u32 s14, 0")
            A("s_cbranch_scc1 L_NOSIG")
            A("s_mov_b64 exec, 0xff")
            A("v_mov_b32 v97, 1")
            A(f"v_lshlrev_b32 v96, 10, v{L}")
            A(f"buffer_atomic_add v97, v96, {sr(S_WS,4)}, s91 offen")
            A("s_mov_b64 exec, -1")
            A.lab("L_NOSIG")
        if mode == "1" and t == 6:
            A("s_cmp_lg_u32 s22, 0")
            A("s_cbranch_scc1 L_NOPQ")
            A(f"v_lshlrev_b32 v100, 7, v{L}")
            A.many(HPOLL())
            A.lab("L_NOPQ")
        if mode == "1" and t == 7:
            stamp(A, 8)
            A("s_cmp_lg_u32 s22, 0")
            A("s_cbranch_scc1 L_HPOLL_OK")
            spin(A, "L_HPOLL2", HPOLL(), acmp(101, 40, 15), first_loaded=True)
            if OPT["wl1"] == 2:
                A("buffer_inv sc1")
                A("s_waitcnt vmcnt(0)")
            A.lab("L_HPOLL_OK")
            A("s_barrier")
            stamp(A, 9)
    if mode == "0": assert hs == 9
    if mode != "C":
        A(f"v_add_u32 v{KA}, 8192, v{KA}")
        A(f"v_add_u32 v{VA}, 8192, v{VA}")
        A("s_add_u32 s83, s83, 1")

def late_init(A):
    A(f"v_lshlrev_b32 v{L16}, 4, v{L}")
    A(f"v_mov_b32 v{IDX}, 0xdddd")
    A(f"v_and_b32 v98, 15, v{L}")
    A("v_lshlrev_b32 v98, 4, v98")
    A(f"v_lshrrev_b32 v99, 5, v{L}")
    A("v_lshl_or_b32 v98, v99, 8, v98")
    A("v_add_u32 v98, 65536, v98")
    A(f"v_add_u32 v99, s15, v{L16}")
    A(f"v_add_u32 v102, s16, v{L16}")
    A(f"v_add_u32 v103, s17, v{L16}")
    A(f"v_mov_b32 v{KA}, v{L16}")
    A(f"v_mov_b32 v{VA}, v98")
    A("v_mov_b32 v100, 0xff800000")
    A("v_mov_b32 v101, 0xff800000")

def gen_attinit(A):
    A.lab("L_ATTINIT")
    for r in range(O_, O_+32): A(f"v_mov_b32 v{r}, 0")
    A("s_mov_b32 s80, 0x00110000")
    A("s_mov_b32 s81, 0x00110000")
    A("s_mov_b64 exec, s[80:81]")
    for r in range(V0[0], V0[0]+16): A(f"v_mov_b32 v{r}, 0x3f803f80")
    A("s_mov_b64 exec, -1")
    A("s_mov_b32 s80, 0xffff")
    A("s_mov_b32 s81, 0xffff")
    A("s_mov_b32 s78, 1")
    A(f"s_mov_b32 s79, {f2u(-OPT['bias']):#x}")
    A("s_mov_b32 s82, 1")
    A(f"v_lshrrev_b32 v251, 5, v{L}")
    A(f"v_and_b32 v252, 31, v{L}")
    A("v_lshlrev_b32 v252, 10, v252")
    A("v_lshl_add_u32 v252, v251, 4, v252")
    A("s_lshl_b32 s15, s22, 10")
    A(f"s_add_u32 s15, s15, {QOFF}")
    A("s_and_b32 s91, s20, 3")
    A("s_lshl_b32 s91, s91, 7")
    A(f"s_add_u32 s91, s91, {QFLAG+4*128:#x}")
    A("s_cmp_lt_u32 s21, 6")
    A("s_cselect_b32 s14, 1, s22")
    A("s_and_b32 s75, s2, 7")
    A("s_lshl_b32 s75, s75, 10")
    A(f"s_add_u32 s75, s75, {QFLAG+4*128:#x}")
    A("s_lshr_b32 s61, s2, 5")
    A("s_lshl_b32 s61, s61, 3")
    A("s_add_u32 s61, s61, s22")
    A("s_lshl_b32 s61, s61, 5")
    A("s_and_b32 s62, s2, 31")
    A("s_add_u32 s61, s61, s62")
    A("s_lshr_b32 s12, s61, 3")
    A("s_lshl_b32 s12, s12, 7")
    A(f"s_add_u32 s12, s12, {OFLAG:#x}")
    A("s_lshl_b32 s11, s61, 10")
    A(f"s_add_u32 s11, s11, {OF:#x}")
    A("s_and_b32 s94, s2, 31")
    A("s_lshl_b32 s94, s94, 16")
    A("s_lshl_b32 s95, s22, 10")
    A("s_add_u32 s95, s95, 16384")
    A("s_add_u32 s94, s94, s95")
    A(f"s_add_u32 s94, s94, {KF:#x}")
    A("s_and_b32 s67, s2, 7")
    A("s_bfe_u32 s61, s2, 0x20003")
    A("s_lshl_b32 s67, s67, 2")
    A("s_add_u32 s67, s67, s61")
    A("s_lshr_b32 s61, s2, 5")
    A("s_and_b32 s62, s22, 1")
    A("s_lshl_b32 s67, s67, 1")
    A("s_add_u32 s67, s67, s62")
    A("s_lshr_b32 s62, s22, 1")
    A("s_mul_i32 s63, s62, 22")
    A("s_cmp_eq_u32 s62, 3")
    A("s_cselect_b32 s63, 65, s63")
    A("s_cmp_lt_u32 s62, 2")
    A("s_cselect_b32 s64, 22, 21")
    A(f"s_mul_i32 s65, s67, {NFU}")
    A("s_add_u32 s65, s65, s63")
    A("s_lshl_b32 s65, s65, 10")
    A(f"s_add_u32 s65, s65, {HF:#x}")
    A(f"s_add_u32 s{S_T1}, s18, s65")
    A(f"s_addc_u32 s{S_T1+1}, s19, 0")
    A(f"s_lshl_b32 s{S_T1+2}, s64, 10")
    A(f"s_mov_b32 s{S_T1+3}, 0x00020000")
    A(f"s_mul_i32 s65, s61, {NFU}")
    A("s_add_u32 s65, s65, s63")
    A("s_lshl_b32 s65, s65, 11")
    A(f"s_add_u32 s65, s65, {WDF:#x}")
    A(f"s_add_u32 s{S_T2}, s18, s65")
    A(f"s_addc_u32 s{S_T2+1}, s19, 0")
    A(f"s_lshl_b32 s{S_T2+2}, s64, 11")
    A(f"s_mov_b32 s{S_T2+3}, 0x00020000")
    A("s_mov_b32 s84, 0")
    A("s_mov_b32 s85, 0")
    A("s_lshl_b32 s90, s61, 16")
    A("s_lshl_b32 s66, s62, 14")
    A("s_add_u32 s90, s90, s66")
    A(f"s_add_u32 s90, s90, {WOF:#x}")
    A("s_lshl_b32 s87, s67, 15")
    A("s_lshl_b32 s66, s62, 13")
    A("s_add_u32 s87, s87, s66")
    A(f"s_add_u32 s87, s87, {OF:#x}")
    A("s_lshl_b32 s88, s67, 15")
    A("s_lshl_b32 s66, s61, 7")
    A("s_add_u32 s88, s88, s66")
    A("s_lshl_b32 s66, s62, 5")
    A("s_add_u32 s88, s88, s66")
    A(f"s_sub_u32 s13, s87, {OF:#x}")
    A("s_lshr_b32 s13, s13, 6")
    A(f"s_add_u32 s13, s13, {OFLAG:#x}")
    red_addr(A)
    A("s_setpc_b64 s[76:77]")

def gen_attn(A):
    A("s_waitcnt lgkmcnt(0)")
    late_init(A)
    A.lab("L_P0")
    stamp(A, 5)
    A("s_waitcnt vmcnt(0)")
    A("s_barrier")
    stamp(A, 6)
    A(f"ds_read_b128 {vr(Q_,4)}, v99")
    A.lab("L_MAXLOOP")
    A(f"ds_read_b128 {vr(KB[0],4)}, v{KA}")
    A(f"ds_read_b128 {vr(KB[1],4)}, v{KA} offset:1024")
    A("s_mov_b64 exec, s[80:81]")
    A(f"ds_read_b128 {vr(V0[0],4)}, v{VA}")
    A("s_mov_b64 exec, -1")
    A("s_waitcnt lgkmcnt(2)")
    A(f"v_mfma_f32_32x32x16_bf16 {vr(S_[0],16)}, {vr(KB[0],4)}, {vr(Q_,4)}, 0")
    A("s_waitcnt lgkmcnt(1)")
    A(f"v_mfma_f32_32x32x16_bf16 {vr(C_,16)}, {vr(KB[1],4)}, {vr(Q_,4)}, 0")
    A(f"v_subrev_u32 v{KA}, 2048, v{KA}")
    A("s_nop 9")
    for i in range(8): A(f"v_max3_f32 v100, v{2*i}, v{2*i+1}, v100")
    for i in range(8): A(f"v_max3_f32 v101, v{C_+2*i}, v{C_+2*i+1}, v101")
    A("s_sub_u32 s78, s78, 1")
    A("s_cmp_lg_u32 s78, 0")
    A("s_cbranch_scc1 L_MAXLOOP")
    A("v_max_f32 v100, v100, v101")
    A(f"v_mov_b32 v{KA}, v{L16}")
    A("v_mov_b32 v101, v100")
    A("s_nop 1")
    A("v_permlane32_swap_b32 v100, v101")
    A("s_nop 1")
    A("v_max_f32 v100, v100, v101")
    for r in range(16): A(f"v_sub_f32 v{C_+r}, s79, v100")
    A("s_nop 1")
    A(f"v_mfma_f32_32x32x16_bf16 {vr(S_[0],16)}, {vr(KB[0],4)}, {vr(Q_,4)}, {vr(C_,16)}")
    A(f"ds_read_b128 {vr(KB[0],4)}, v{KA} offset:2048")
    A("s_mov_b64 exec, s[80:81]")
    A(f"ds_read_b128 {vr(V0[1],4)}, v{VA} offset:1024")
    A(f"ds_read_b128 {vr(V1[0],4)}, v{VA} offset:512")
    A("s_mov_b64 exec, -1")
    A("s_mov_b32 s83, 0")
    stamp(A, 7)
    A("s_nop 4")
    A("s_cmp_eq_u32 s82, 0")
    A("s_cbranch_scc1 L_LOOPP")
    attn_body(A, "0")
    attn_body(A, "1")
    attn_body(A, "2")
    A.lab("L_LOOPB")
    attn_body(A, "B")
    if OPT["prof"] and OPT["bstamp"]:
        A("s_memtime s[96:97]")
        A("s_memrealtime s[98:99]")
        A("s_add_u32 m0, s83, 17")
        A("s_waitcnt lgkmcnt(0)")
        A("v_writelane_b32 v255, s96, m0")
        A("s_add_u32 m0, s83, 49")
        A("s_nop 0")
        A("v_writelane_b32 v255, s98, m0")
    A("s_cmp_lt_u32 s83, 7")
    A("s_cbranch_scc1 L_LOOPB")
    attn_body(A, "C")
    A.lab("L_ATT_DONE")
    A("s_waitcnt lgkmcnt(0)")
    stamp(A, 10)
    A(f"v_smfmac_f32_32x32x32_bf16 {vr(O_,16)}, {vr(V1[1],4)}, {vr(S_[1]+8,8)}, v{IDX}")
    A("s_setprio 3")
    A(f"v_mov_b32 v96, {f2u(2.0**90):#x}")
    A(f"v_mov_b32 v97, {f2u(2.0**120):#x}")
    A(f"v_mov_b32 v99, {f2u(2.0**-100):#x}")
    A("s_nop 7")
    A(f"v_rcp_f32 v101, v{O_+8}")
    A("s_nop 0")
    A(f"v_mul_f32 v101, {f2u(2.0**-VSH):#x}, v101")
    for r in range(8): A(f"v_mul_f32 v{r}, v{O_+r}, v101")
    for i in range(4): A(f"v_cvt_pk_bf16_f32 v{8+i}, v{2*i}, v{2*i+1}")
    A(f"buffer_store_dwordx4 {vr(8,4)}, v{L16}, {sr(S_WS,4)}, s11 offen sc1")
    A("s_cmp_eq_u32 s82, 0")
    A("s_cbranch_scc1 L_FIN")
    A(f"v_add_f32 v100, abs(v{O_}), abs(v{O_+1})")
    for r in range(2, 8): A(f"v_add_f32 v100, v100, abs(v{O_+r})")
    A(f"v_cmp_nlt_f32 s[62:63], v{O_+8}, v96")
    A("v_cmp_nlt_f32 s[64:65], v100, v97")
    A("v_cmp_lt_f32 vcc, v100, v99")
    A("s_or_b64 s[62:63], s[62:63], s[64:65]")
    A("s_or_b64 s[62:63], s[62:63], vcc")
    A("s_cmp_eq_u64 s[62:63], 0")
    if not OPT["force_fallback"]: A("s_cbranch_scc1 L_FIN")
    A("s_mov_b32 s78, 32")
    A("s_mov_b32 s79, 0")
    A("s_mov_b32 s82, 0")
    A(f"v_mov_b32 v{VA}, v98")
    A("v_mov_b32 v100, 0xff800000")
    A("v_mov_b32 v101, 0xff800000")
    for r in range(16): A(f"v_mov_b32 v{O_+r}, 0")
    for r in range(8, 16): A(f"v_mov_b32 v{S_[1]+r}, 0")
    A(f"v_add_u32 v{KA}, {62*1024}, v{L16}")
    A("s_waitcnt vmcnt(0)")
    A("s_branch L_MAXLOOP")
    A.lab("L_FIN")

def red_addr(A):
    A("s_and_b32 s62, s22, 1")
    A("s_lshr_b32 s63, s22, 1")
    A("s_lshl_b32 s62, s62, 15")
    A("s_lshl_b32 s64, s63, 11")
    A("s_add_u32 s64, s64, s62")
    A("s_mov_b32 s16, s64")
    A("s_lshl_b32 s64, s63, 13")
    A("s_add_u32 s64, s64, s62")
    A("s_mov_b32 s17, s64")
def red_write(A, acc):
    for q in range(4):
        for hf in range(2):
            A(f"ds_write_b128 v102, {vr(acc+8*q+4*hf,4)} offset:{q*8192 + hf*1024}")
def red_read(A, dst):
    for s in range(4):
        for hf in range(2):
            A(f"ds_read_b128 {vr(dst+8*s+4*hf,4)}, v103 offset:{s*2048 + hf*1024}")
def red_sum(A, dst):
    for r in range(8):
        A(f"v_add_f32 v{dst+r}, v{dst+r}, v{dst+8+r}")
        A(f"v_add_f32 v{dst+16+r}, v{dst+16+r}, v{dst+24+r}")
    for r in range(8): A(f"v_add_f32 v{dst+r}, v{dst+r}, v{dst+16+r}")
def round_bf16(A, regs, tmp):
    for i in range(4): A(f"v_cvt_pk_bf16_f32 v{tmp+i}, v{regs+2*i}, v{regs+2*i+1}")
    for i in range(4):
        A(f"v_lshlrev_b32 v{regs+2*i}, 16, v{tmp+i}")
        A(f"v_and_b32 v{regs+2*i+1}, 0xffff0000, v{tmp+i}")

def gen_final(A):
    A("v_mov_b32 v96, 1")
    A("v_mov_b32 v97, 0")
    A("s_waitcnt vmcnt(0)")
    A("s_mov_b64 exec, 1")
    A(f"buffer_atomic_add v96, v97, {sr(S_WS,4)}, s12 offen")
    A("s_mov_b64 exec, -1")
    stamp(A, 11)
    A.many(apoll(32, 97, "s13", 1))
    A("s_barrier")
    red_write(A, DACC)
    A("s_waitcnt lgkmcnt(0)")
    A("s_barrier")
    G = DACC; T = 136
    red_read(A, G)
    spin3(A, "L_OPOLL", [32, 33, 34], 97, "s13", 8, primed=1)
    stamp(A, 12)
    for s in range(8):
        A(f"buffer_load_dwordx4 {vr(4*s,4)}, v{L16}, {sr(S_WS,4)}, s87 offen offset:{(s&3)*1024} sc1")
        if s == 3: A("s_add_u32 s87, s87, 4096")
    A("v_add_u32 v102, 65536, v102")
    A("v_add_u32 v103, 65536, v103")
    for i in range(4):
        A(f"v_lshlrev_b32 v{144+2*i}, 16, v{XV+i}")
        A(f"v_and_b32 v{145+2*i}, 0xffff0000, v{XV+i}")
    A("s_waitcnt lgkmcnt(0)")
    B = Asm()
    red_sum(B, G)
    round_bf16(B, G, T)
    for r in range(8): B(f"v_mul_f32 v{T+r}, {f2u(-LOG2E):#x}, v{G+r}")
    for r in range(8): B(f"v_exp_f32 v{T+r}, v{T+r}")
    for r in range(8): B(f"v_add_f32 v{T+r}, 1.0, v{T+r}")
    for r in range(8): B(f"v_rcp_f32 v{T+r}, v{T+r}")
    for r in range(8): B(f"v_mul_f32 v{G+r}, v{G+r}, v{T+r}")
    round_bf16(B, G, T)
    gw = [x.strip() for x in B.l]
    A.many(gw[:OPT["gpre"]]); gw = gw[OPT["gpre"]:]
    ACC = 104
    for s in range(8):
        A(f"s_waitcnt vmcnt({7-s})")
        for nt in range(2):
            c = "0" if s == 0 else vr(ACC+16*nt,16)
            A(f"v_mfma_f32_32x32x16_bf16 {vr(ACC+16*nt,16)}, {vr(WO+8*s+4*nt,4)}, {vr(4*s,4)}, {c}")
            A.many(gw[:4]); gw = gw[4:]
    A.many(gw)
    stamp(A, 13)
    A("s_nop 11")
    red_write(A, ACC)
    A("s_waitcnt lgkmcnt(0)")
    A("s_barrier")
    red_read(A, 0)
    A("s_waitcnt lgkmcnt(0)")
    red_sum(A, 0)
    round_bf16(A, 0, T)
    for r in range(8): A(f"v_mul_f32 v{r}, v{r}, v{G+r}")
    for i in range(4): A(f"v_cvt_pk_bf16_f32 v{T+i}, v{2*i}, v{2*i+1}")
    A("s_nop 1")
    A(f"v_permlane32_swap_b32 v{T}, v{T+2}")
    A(f"v_permlane32_swap_b32 v{T+1}, v{T+3}")
    A("s_nop 1")
    for i in range(4):
        A(f"v_lshlrev_b32 v{2*i}, 16, v{T+i}")
        A(f"v_and_b32 v{2*i+1}, 0xffff0000, v{T+i}")
    for r in range(8): A(f"v_add_f32 v{r}, v{r}, v{144+r}")
    for i in range(4): A(f"v_cvt_pk_bf16_f32 v{T+i}, v{2*i}, v{2*i+1}")
    A(f"buffer_store_dwordx4 {vr(T,4)}, v252, {sr(S_OUT,4)}, s88 offen{OPT['outfl']}")
    if OPT["fixdur"]:
        A.lab("L_FIXDUR")
        A("s_memrealtime s[96:97]")
        A("s_waitcnt lgkmcnt(0)")
        A("s_sub_u32 s96, s96, s100")
        A(f"s_cmp_lt_u32 s96, {OPT['fixdur']}")
        A("s_cbranch_scc1 L_FIXDUR")
    if OPT["prof"]:
        stamp(A, 14)
        A(f"s_add_u32 s{S_T1}, s18, {PROF_OFF:#x}")
        A(f"s_addc_u32 s{S_T1+1}, s19, 0")
        A(f"s_mov_b32 s{S_T1+2}, 0x100000")
        A(f"s_mov_b32 s{S_T1+3}, 0x00020000")
        A("s_lshl_b32 s60, s2, 3")
        A("s_add_u32 s60, s60, s22")
        A("s_lshl_b32 s60, s60, 8")
        A(f"v_lshlrev_b32 v0, 2, v{L}")
        A(f"buffer_store_dword v255, v0, {sr(S_T1,4)}, s60 offen")
        if OPT["dbgout"]:
            A("s_cmp_lg_u32 s2, 200")
            A("s_cbranch_scc1 L_END")
            A("s_cmp_lg_u32 s22, 0")
            A("s_cbranch_scc1 L_END")
            A("v_readlane_b32 s61, v255, 32")
            A("v_readlane_b32 s63, v255, 0")
            A("v_mov_b32 v1, 0")
            A("s_mov_b64 exec, 1")
            for n, i in enumerate((2, 3, 4, 6, 9, 10, 12, 14)):
                A(f"v_readlane_b32 s62, v255, {32+i}")
                A("s_sub_u32 s62, s62, s61")
                A("v_mov_b32 v2, s62")
                A(f"buffer_store_dword v2, v1, {sr(S_DBG,4)}, 0 offen offset:{32+4*n}")
                A("s_nop 1")
            A("v_readlane_b32 s62, v255, 14")
            A("s_sub_u32 s62, s62, s63")
            A("v_mov_b32 v2, s62")
            A(f"buffer_store_dword v2, v1, {sr(S_DBG,4)}, 0 offen offset:28")

def gen_hooks(A):
    gen_attinit(A)
    A.lab("L_LOOPP")
    attn_body(A, "P")
    A("s_cmp_lt_u32 s83, 8")
    A("s_cbranch_scc1 L_LOOPP")
    A("s_branch L_ATT_DONE")
    A.lab("L_CODE_END")

def main(out):
    hdr = open(f"cdna_kernels/{NAME}.s.ref").read().split("\n")
    head = [l for l in hdr if l.startswith(";") and "@launch" not in l]
    head += [f"; @launch grid=(256,1,1) block=(512,1,1) lds={LDS_BYTES}"]
    A = Asm()
    d = gen(A)
    open(out, "w").write("\n".join(head) + '\n.amdgcn_target "amdgcn-amd-amdhsa--gfx950"\n' + A.text() + d)

if __name__ == "__main__":
    for a in sys.argv[2:]:
        k, _, v = a.partition("=")
        OPT[k] = eval(v) if v else True
    main(sys.argv[1] if len(sys.argv) > 1 else f"cdna_kernels/{NAME}.s")
```

```python
import sys, struct

NAME = "recurrent_scan__softmax_full_mha__glu_gated_geglu__prompt"
MB = 1 << 20
QF, KF, VF, OF, WOF, WDF, HF, FLAGS = 0, 2*MB, 4*MB, 6*MB, 8*MB, 9*MB, 11*MB, 17*MB
WS_BYTES = 18*MB
NFU = 86
LOG2E = 1.4426950408889634
def f2u(x): return struct.unpack("<I", struct.pack("<f", x))[0]

OPT = dict(prof=False, bias=98.0, force_fallback=False, sleep=2, barpos=1, itstamp=False, hplan=[1,1,1,1,1,1,2,1], sigt=1, psleep=3, gpre=24, wearly=False, peel=True, wl1=0, nodown='', halfkv=False, b8prio=True, qsch='D', outfl=' nt', spf=False, prefetch=False, dmaevery=12, dbgout=False, fixdur=0, codepf=True, noload=False, bstamp=False, pace=None, wpf=[], exp='', w64=False, lprio=0, enc=-1, encrole='', cmap=True, prio='ramp2')
PROF_OFF = 24*MB
SPIN_MAX = 20000
VSH = 32

class Asm:
    def __init__(self): self.l = []
    def __call__(self, s): self.l.append(s if s.endswith(":") else "    " + s)
    def many(self, ss):
        for s in ss: self(s)
    def lab(self, s): self.l.append(s + ":")
    def raw(self, s): self.l.append(s)
    def text(self): return "\n".join(self.l) + "\n"
def vr(a, n): return f"v[{a}:{a+n-1}]"
def sr(a, n): return f"s[{a}:{a+n-1}]"
def srd(A, d, base, nbytes):
    A(f"s_mov_b32 s{d}, s{base}")
    A(f"s_mov_b32 s{d+1}, s{base+1}")
    A(f"s_mov_b32 s{d+2}, {nbytes:#x}")
    A(f"s_mov_b32 s{d+3}, 0x00020000")
def csel(A, d, a, b):
    A(f"s_mov_b32 s{d}, {b:#x}")
    A(f"s_cselect_b32 s{d}, {a:#x}, s{d}")
ROLE = [""]
def stamp(A, i):
    if OPT["enc"] == i and (not OPT["encrole"] or ROLE[0] in OPT["encrole"]):
        A("s_memrealtime s[100:101]")
        A("s_waitcnt lgkmcnt(0)")
    if not OPT["prof"]: return
    A("s_memtime s[96:97]")
    A("s_memrealtime s[98:99]")
    A("s_waitcnt lgkmcnt(0)")
    A(f"v_writelane_b32 v255, s96, {i}")
    A(f"v_writelane_b32 v255, s98, {32+i}")

WR = 32768
WSL = 18560
UPOFF = 9344
QOFF = 135168
SCRATCH = 147456
SW = 163584
LDS_BYTES = 163840
OFLAG = FLAGS
QFLAG = OFLAG + 256*128
QCNT = QFLAG + 64*128
NZ = 6
S_X, S_W, S_WS, S_DBG, S_OUT, S_T1, S_T2 = 24, 28, 32, 36, 40, 44, 48
L = 254
S_ = [0, 16]; C_ = 32; DACC = 48; Q_ = 80; KB = [84, 88]; O_ = 144; V0 = [160, 164]; V1 = [168, 172]
IDX, KA, VA, L16 = 92, 93, 94, 95
DH = [104, 116, 128, 140]; DW_ = [108, 120, 132, 176]
WO = 184; XV = 248

def spin(A, tag, loads, cmp_lines, first_loaded=False):
    A(f"s_mov_b32 s70, {SPIN_MAX}")
    if not first_loaded: A.many(loads)
    A.lab(tag)
    A("s_waitcnt vmcnt(0)")
    A.many(cmp_lines)
    A(f"s_cbranch_scc1 {tag}_OK")
    A(f"s_sleep {OPT['sleep']}")
    A.many(loads)
    A("s_sub_u32 s70, s70, 1")
    A("s_cmp_lg_u32 s70, 0")
    A(f"s_cbranch_scc1 {tag}")
    A.lab(tag + "_OK")
def spin3(A, tag, regs, voff, soff, n, primed=0):
    A(f"s_mov_b32 s70, {SPIN_MAX}")
    for r in regs[primed:2]:
        A.many(apoll(r, voff, soff, 1))
        A(f"s_sleep {OPT['psleep']}")
    A.lab(tag)
    for k in range(3):
        A.many(apoll(regs[(k+2) % 3], voff, soff, 1))
        A("s_waitcnt vmcnt(2)")
        A.many(acmp(regs[k], n, 1))
        A(f"s_cbranch_scc1 {tag}_OK")
        A(f"s_sleep {OPT['psleep']}")
    A("s_sub_u32 s70, s70, 1")
    A("s_cmp_lg_u32 s70, 0")
    A(f"s_cbranch_scc1 {tag}")
    A.lab(tag + "_OK")
def apoll(dst, voff, soff, mask):
    return [f"v_mov_b32 v{dst}, 0", f"s_mov_b64 exec, {mask}",
            f"buffer_atomic_add v{dst}, v{voff}, {sr(S_WS,4)}, {soff} offen sc0", "s_mov_b64 exec, -1"]
def acmp(v, n, mask):
    return [f"v_cmp_eq_u32 vcc, {n}, v{v}", f"s_cmp_eq_u64 vcc, {mask}"]
ALL1 = lambda v: [f"v_cmp_ne_u32 vcc, 1, v{v}", "s_cmp_eq_u64 vcc, 0"]

def last_wave_signals(A, tag, off, last):
    A(f"v_mov_b32 v96, {SW}")
    A("v_mov_b32 v97, 1")
    A("s_mov_b64 exec, 1")
    A(f"ds_add_rtn_u32 v100, v96, v97 offset:{off}")
    A("s_waitcnt lgkmcnt(0)")
    A("s_mov_b64 exec, -1")
    A("v_readfirstlane_b32 s60, v100")
    A(f"s_cmp_lg_u32 s60, {last}")
    A(f"s_cbranch_scc1 {tag}")
    A(f"v_lshlrev_b32 v96, 7, v{L}")
    if OPT["qsch"] == "E":
        A("s_mov_b64 exec, 1")
        A("v_mov_b32 v100, 1")
        A(f"buffer_atomic_add v100, v96, {sr(S_WS,4)}, s91 offen offset:{31*128} sc0")
        A("s_waitcnt vmcnt(0)")
        A("s_mov_b64 exec, -1")
        A("v_readfirstlane_b32 s60, v100")
        A("s_cmp_lg_u32 s60, 47")
        A(f"s_cbranch_scc1 {tag}")
        A("s_mov_b64 exec, 0xff")
        A(f"buffer_store_dword v97, v96, {sr(S_WS,4)}, s91 offen sc1")
    else:
        A("s_mov_b32 exec_hi, 0")
        A(f"buffer_atomic_add v97, v96, {sr(S_WS,4)}, s91 offen")
    A("s_mov_b64 exec, -1")
    A.lab(tag)

def gen(A):
    name = NAME + "_kernel"
    A.raw(".text"); A.raw(f".globl {name}"); A.raw(".p2align 8"); A.raw(f".type {name},@function")
    A.lab(name)
    A("s_cmp_ge_u32 s2, 256")
    A("s_cbranch_scc1 L_END")
    if OPT["fixdur"]: A("s_memrealtime s[100:101]")
    A("s_load_dwordx4 s[4:7], s[0:1], 0")
    A("s_load_dwordx2 s[8:9], s[0:1], 16")
    A("s_load_dwordx4 s[12:15], s[0:1], 32")
    A("s_load_dwordx4 s[52:55], s[0:1], 48")
    A("s_load_dwordx4 s[56:59], s[0:1], 64")
    if OPT["prof"]: A("v_mov_b32 v255, 0")
    stamp(A, 0)
    A("s_getpc_b64 s[60:61]")
    A.lab("L_PC")
    A("s_lshr_b32 s23, s2, 3")
    A("s_lshl_b32 s62, s23, 11")
    A("v_lshl_add_u32 v250, v0, 7, s62")
    A("v_cmp_gt_u32 s[62:63], 16, v0")
    A("v_cmp_gt_u32 vcc, L_CODE_END-L_PC-4, v250")
    A("v_lshrrev_b32 v252, 6, v0")
    A(f"v_and_b32 v{L}, 63, v0")
    A("s_and_b64 exec, vcc, s[62:63]")
    A("s_cbranch_execz L_NOPF")
    A("v_mov_b32 v251, s61")
    A("v_add_co_u32 v250, vcc, s60, v250")
    A("v_addc_co_u32 v251, vcc, 0, v251, vcc")
    A("global_load_dword v253, v[250:251], off")
    A.lab("L_NOPF")
    A("s_mov_b64 exec, -1")
    A("v_readfirstlane_b32 s22, v252")
    T = TL
    A(f"v_lshrrev_b32 v{T}, 3, v{L}")
    A(f"v_and_b32 v{T+1}, 7, v{L}")
    A(f"v_lshlrev_b32 v{VX}, 10, v{T}")
    A(f"v_lshl_add_u32 v{VX}, v{T+1}, 4, v{VX}")
    A("s_bfe_u32 s20, s2, 0x20001")
    A("s_lshl_b32 s20, s20, 2")
    A("s_and_b32 s60, s23, 3")
    A("s_add_u32 s20, s20, s60")
    A("s_cmp_lt_u32 s22, 4")
    A("s_cbranch_scc1 L_COMMON")
    loader_first(A)
    A.lab("L_COMMON")
    A("s_lshr_b32 s62, s23, 2")
    A("s_and_b32 s63, s2, 1")
    A("s_lshl_b32 s21, s62, 1")
    A("s_add_u32 s21, s21, s63")
    A("s_mul_i32 s63, s63, 5")
    A("s_add_u32 s63, s63, s62")
    A("s_add_u32 s63, s63, 3")
    A("s_cmp_ge_u32 s62, 3")
    A("s_cselect_b32 s21, s63, s21")
    A("s_waitcnt lgkmcnt(0)")
    srd(A, S_X, 4, 2048*512*2)
    A("s_mov_b64 s[16:17], s[52:53]")
    A("s_mov_b64 s[18:19], s[58:59]")
    srd(A, S_WS, 58, WS_BYTES)
    srd(A, S_DBG, 56, 256)
    srd(A, S_OUT, 54, 2048*512*2)
    srd(A, S_T1, 58, 0)
    srd(A, S_T2, 58, 0)
    for r in HOFF: A(f"s_mov_b32 s{r}, 0x7fff0000")
    A("s_cmp_lt_u32 s22, 4")
    A("s_cbranch_scc1 L_COMPUTE")
    gen_loader(A)
    A("s_branch L_P0")
    A.lab("L_COMPUTE")
    gen_init(A)
    A("s_cmp_ge_u32 s21, 6")
    A("s_cbranch_scc1 L_F")
    A("s_cmp_ge_u32 s21, 4")
    A("s_cbranch_scc1 L_V")
    gen_compute(A, "QK")
    A.lab("L_V")
    gen_compute(A, "V")
    A.lab("L_SIGNAL")
    A("s_and_b32 s91, s21, 1")
    A("s_lshl_b32 s91, s91, 12")
    A(f"s_add_u32 s91, s91, {QCNT:#x}")
    A("s_waitcnt vmcnt(0)")
    last_wave_signals(A, "L_SIG2", 0, 3)
    stamp(A, 15)
    A("s_branch L_P2")
    A.lab("L_F")
    gen_compute(A, "F")
    A.lab("L_P2")
    gen_attn(A)
    gen_final(A)
    A.lab("L_END")
    A("s_endpgm")
    gen_hooks(A)
    return f""".section .rodata,"a"
.p2align 6
.amdhsa_kernel {name}
  .amdhsa_next_free_vgpr 256
  .amdhsa_next_free_sgpr 102
  .amdhsa_accum_offset 256
  .amdhsa_group_segment_fixed_size 0
  .amdhsa_kernarg_size 80
  .amdhsa_user_sgpr_count 2
  .amdhsa_user_sgpr_kernarg_segment_ptr 1
  .amdhsa_system_sgpr_workgroup_id_x 1
.end_amdhsa_kernel
"""

def gen_init(A):
    R = 160
    A("s_cmp_lg_u32 s22, 0")
    A("s_cbranch_scc1 L_INIT1")
    for r in range(R, R+4): A(f"v_mov_b32 v{r}, 0")
    A(f"v_mov_b32 v{R+4}, {SW}")
    A(f"ds_write_b128 v{R+4}, {vr(R,4)}")
    A("s_sub_u32 s61, s2, 128")
    A(f"s_cmp_ge_u32 s61, {NZ}")
    A("s_cbranch_scc1 L_INIT1")
    A(f"v_lshlrev_b32 v{R+4}, 7, v{L}")
    A("s_lshl_b32 s60, s61, 13")
    A(f"s_add_u32 s60, s60, {FLAGS:#x}")
    A(f"buffer_store_dword v{R}, v{R+4}, {sr(S_WS,4)}, s60 offen sc1")
    A("s_nop 1")
    A.lab("L_INIT1")
    for r in range(144): A(f"v_mov_b32 v{r}, 0")
    A("s_call_b64 s[76:77], L_ATTINIT")
    A("s_lshr_b32 s60, s22, 1")
    A("s_and_b32 s61, s22, 1")

VW = 144
def gen_wsetup(A):
    T = 158
    A("s_bfe_u32 s62, s22, 0x10001")
    A("s_and_b32 s63, s22, 1")
    A("s_cmp_lt_u32 s21, 6")
    A("s_cbranch_scc1 LL_Q")
    A("s_cmp_eq_u32 s63, 0")
    A(f"s_cselect_b32 s{S_W}, s12, s14")
    A(f"s_cselect_b32 s{S_W+1}, s13, s15")
    A(f"s_mov_b32 s{S_W+2}, {512*1376*2:#x}")
    A("s_sub_u32 s64, s21, 6")
    A(f"s_mul_i32 s64, s64, {9*32}")
    A(f"s_mov_b32 s65, {2752-288}")
    A(f"v_mul_u32_u24 v{T+2}, 3641, v{L}")
    A(f"v_lshl_add_u32 v{T+3}, v{L}, 4, s64")
    for i in range(9):
        A(f"v_add_u32 v{T+4}, {64*i*3641}, v{T+2}")
        A(f"v_lshrrev_b32 v{T+4}, 16, v{T+4}")
        A(f"v_add_u32 v{T+5}, {1024*i}, v{T+3}")
        A(f"v_mad_u32_u24 v{VW+i}, v{T+4}, s65, v{T+5}")
    A(f"v_and_b32 v{T+2}, 3, v{L}")
    A(f"v_min_u32 v{T+2}, 2, v{T+2}")
    A("s_mov_b32 s65, 2752")
    A(f"s_mov_b32 s68, {32*2752}")
    A("s_branch LL_C")
    A.lab("LL_Q")
    A(f"s_mov_b32 s{S_W}, s6")
    A(f"s_mov_b32 s{S_W+1}, s7")
    A(f"s_mov_b32 s{S_W+2}, {512*1536*2:#x}")
    A(f"v_lshrrev_b32 v{T+3}, 4, v{L}")
    A(f"v_mul_u32_u24 v{T+2}, 3072, v{T+3}")
    A(f"v_bfe_u32 v{T+4}, v{L}, 2, 2")
    A(f"v_xor_b32 v{T+4}, v{T+4}, v{T+3}")
    A(f"v_lshl_add_u32 v{T+2}, v{T+4}, 6, v{T+2}")
    A(f"v_and_b32 v{T+3}, 3, v{L}")
    A(f"v_lshl_add_u32 v{T+2}, v{T+3}, 4, v{T+2}")
    A("s_lshl_b32 s64, s21, 9")
    A("s_lshl_b32 s65, s63, 8")
    A("s_add_u32 s64, s64, s65")
    A(f"v_add_u32 v{VW}, s64, v{T+2}")
    for i in range(1, 9): A(f"v_add_u32 v{VW+i}, {i*4*3072}, v{VW}")
    A(f"v_and_b32 v{T+2}, 1, v{L}")
    A("s_mov_b32 s65, 3072")
    A(f"s_mov_b32 s68, {32*3072}")
    A.lab("LL_C")
    A("s_and_b32 s66, s20, 3")
    A("s_lshl_b32 s66, s66, 3")
    A(f"v_lshrrev_b32 v{T+3}, 2, v{L}")
    A(f"v_add_u32 v{T+3}, s66, v{T+3}")
    A(f"v_mul_u32_u24 v{T+3}, s65, v{T+3}")
    A(f"v_lshl_add_u32 v{T+3}, v{T+2}, 7, v{T+3}")
    A(f"v_add_u32 v{VW+9}, s64, v{T+3}")
    A(f"s_mov_b32 s{S_W+3}, 0x00020000")
    A(f"s_mul_i32 s71, s62, {WSL}")
    A(f"s_mul_i32 s66, s63, {UPOFF}")
    A("s_add_u32 s71, s71, s66")
    A(f"s_add_u32 s71, s71, {WR}")
    A("s_mov_b32 s72, s71")
    A(f"s_add_u32 s73, s71, {6*WSL}")
    A("s_mul_i32 s74, s62, s68")
    A("s_lshl_b32 s68, s68, 1")

W_PREFETCH = ["s_add_u32 s67, s74, s68", "s_mov_b32 exec_hi, 0",
              f"buffer_load_dword v253, v{VW+9}, {sr(S_W,4)}, s67 offen", "s_mov_b64 exec, -1"]
_dma_n = [0]
def dma_piece(i): return [f"s_add_u32 m0, s72, {i*1024}", "s_nop 0", f"buffer_load_dwordx4 v{VW+i}, {sr(S_W,4)}, s74 offen lds"]
DMA_TAIL = ["s_add_u32 s74, s74, s68", f"s_add_u32 s72, s72, {2*WSL}", "s_cmp_eq_u32 s72, s73", "s_cselect_b32 s72, s71, s72"]
def dma_groups(first):
    g = [dma_piece(i) for i in range(first, 9)]
    _dma_n[0] += 1
    lab = f"LL_D{_dma_n[0]}"
    g[-1] = ["s_cmp_lt_u32 s21, 6", f"s_cbranch_scc1 {lab}"] + g[-1] + [lab + ":"] + DMA_TAIL
    return g
def mix(A, work, groups, every):
    groups = list(groups)
    for n, w in enumerate(work):
        if isinstance(every, (list, tuple)):
            for _ in range(every.count(n)):
                if groups: A.many(groups.pop(0))
        elif groups and n % every == 0: A.many(groups.pop(0))
        A(w)
    for g in groups: A.many(g)

HREG = 184
HOFF = [52, 53, 54, 55, 56, 57, 58, 59, 10]
def h_offsets(A):
    tiles = [(lu*2+lt, lu, lt) for lu in range(4) for lt in range(2)] + [(8, 4, 0)]
    for (tile, lu, lt) in tiles:
        A("s_add_u32 s66, s64, 8" if lu == 4 else f"s_add_u32 s66, s65, {lu}")
        A("s_lshl_b32 s67, s66, 10")
        A(f"s_add_u32 s67, s67, s{62+lt}")
        A(f"s_cmp_lt_u32 s66, {NFU}")
        A(f"s_cselect_b32 s{HOFF[tile]}, s67, 0x7fff0000")

SJ = 184
def side_setup(A):
    A("s_mul_i32 s75, s20, 10")
    A("s_add_u32 s75, s75, s21")
    A("s_sub_u32 s75, s75, 6")
    A("s_mul_i32 s75, s75, 3")
    A("s_add_u32 s75, s75, s60")
    A("s_sub_u32 s75, s75, 1")
    A(f"v_lshrrev_b32 v245, 5, v{L}")
    A("v_lshlrev_b32 v245, 10, v245")
    A(f"v_and_b32 v246, 31, v{L}")
    A("v_lshl_add_u32 v245, v246, 4, v245")
    for jb in range(2):
        S = 4 if jb else S_W
        A(f"s_add_u32 s90, s75, {480*jb}")
        A("s_cmp_lt_u32 s90, 256")
        A(f"s_cselect_b32 s{S}, s8, s16")
        A(f"s_cselect_b32 s{S+1}, s9, s17")
        csel(A, S+2, 512*512*2, 1376*512*2)
        A(f"s_mov_b32 s{S+3}, 0x00020000")
        csel(A, 91, WOF, WDF)
        csel(A, 67, 32*2048, NFU*2048)
        A("s_cselect_b32 s70, 0, 256")
        A("s_sub_u32 s70, s90, s70")
        A("s_lshr_b32 s94, s70, 3")
        A("s_and_b32 s70, s70, 7")
        A(f"s_lshl_b32 s{72+jb}, s94, 14")
        A("s_lshl_b32 s95, s70, 7")
        A(f"s_add_u32 s{72+jb}, s{72+jb}, s95")
        A("s_mul_i32 s70, s70, s67")
        A("s_lshl_b32 s94, s94, 11")
        A("s_add_u32 s70, s70, s94")
        A("s_add_u32 s70, s70, s91")
        A(f"s_cmp_lt_u32 s90, {256+8*NFU}")
        A(f"s_cselect_b32 s{92+jb}, s70, 0x7fff0000")
def side_prefetch(A):
    A("s_mov_b64 exec, 0xffff")
    A(f"buffer_load_dword v253, v245, {sr(S_T1,4)}, s81 offen")
    A(f"buffer_load_dword v253, v245, {sr(S_T2,4)}, s82 offen")
    A("s_mov_b64 exec, -1")
def side_loads(A, jb):
    S = 4 if jb else S_W
    for rho in range(16):
        hh = (rho >> 2) & 1; j = (rho & 3) + 4*(rho >> 3)
        d = SJ + 16*jb + 8*(j & 1) + 4*hh + (j >> 1)
        A(f"buffer_load_ushort v{d}, v244, {sr(S,4)}, s{72+jb} offen offset:{(rho&3)*1024}")
        if (rho & 3) == 3: A(f"s_add_u32 s{72+jb}, s{72+jb}, 4096")
def side_combine(A):
    for jb in range(2):
        d = SJ + 16*jb
        for i in range(8): A(f"v_lshl_or_b32 v{d+i}, v{d+8+i}, 16, v{d+i}")
        A(f"s_mov_b32 s{HOFF[4*jb]}, s{92+jb}")
        A(f"s_add_u32 s{HOFF[4*jb+1]}, s{92+jb}, 512")
    A("v_mov_b32 v249, v245")

def gen_compute(A, kind):
    F = kind == "F"
    ROLE[0] = kind[0]
    NW = 5 if F else 4
    ND = 9 if F else 8
    XS = [176, 184]; WSET = [192, 212]
    XA = 232; XB = 236; WA = 240; T0 = 244
    KQ = 1152 if F else 1024
    US = 32
    P = "L1" + kind
    t, h, sw = T0, T0+1, T0+2
    A(f"v_and_b32 v{t}, 31, v{L}")
    A(f"v_lshrrev_b32 v{h}, 5, v{L}")
    A(f"v_bfe_u32 v{sw}, v{t}, 1, 3")
    A(f"v_xor_b32 v{sw}, v{sw}, v{h}")
    A(f"v_lshlrev_b32 v{T0+3}, 7, v{t}")
    A("s_lshl_b32 s62, s22, 12")
    for s in range(4):
        A(f"v_xor_b32 v{T0+4}, {2*s}, v{sw}")
        A(f"v_lshl_add_u32 v{T0+4}, v{T0+4}, 4, v{T0+3}")
        A(f"v_add_u32 v{XA+s}, s62, v{T0+4}")
        A(f"v_xor_b32 v{XB+s}, 0x1000, v{XA+s}")
    if F:
        A(f"v_bfe_u32 v{T0+5}, v{L}, 2, 2")
        A(f"v_mul_u32_u24 v{T0+5}, 288, v{T0+5}")
        A(f"v_and_b32 v{T0+3}, 3, v{L}")
        A(f"v_lshl_add_u32 v{T0+3}, v{T0+3}, 3, v{T0+5}")
        A(f"v_bfe_u32 v{T0+4}, v{L}, 4, 1")
        A(f"v_mul_u32_u24 v{T0+4}, {UPOFF}, v{T0+4}")
        A(f"v_add_u32 v{T0+3}, v{T0+3}, v{T0+4}")
    else:
        A(f"v_bfe_u32 v{T0+5}, v{L}, 2, 2")
        A(f"v_and_b32 v{T0+3}, 3, v{L}")
        A(f"v_lshlrev_b32 v{T0+3}, 3, v{T0+3}")
        A(f"v_lshl_add_u32 v{T0+3}, v{T0+5}, 8, v{T0+3}")
        A(f"v_bfe_u32 v{T0+4}, v{L}, 4, 1")
        A(f"v_lshl_add_u32 v{T0+3}, v{T0+4}, 5, v{T0+3}")
    A(f"v_mul_u32_u24 v{T0+4}, {2*KQ}, v{h}")
    A(f"v_add_u32 v{T0+3}, v{T0+3}, v{T0+4}")
    A(f"v_add_u32 v{T0+3}, {WR}, v{T0+3}")
    if F:
        A(f"s_mul_i32 s62, s61, {4*US}")
        A(f"v_add_u32 v{WA}, s62, v{T0+3}")
        A(f"v_add_u32 v{WA+1}, {8*US}, v{T0+3}")
    else:
        A(f"s_mul_i32 s62, s61, {UPOFF}")
        A(f"v_add_u32 v{T0+3}, s62, v{T0+3}")
        for lu in range(4):
            A(f"v_xor_b32 v{T0+4}, {lu}, v{T0+5}")
            A(f"v_lshl_add_u32 v{WA+lu}, v{T0+4}, 6, v{T0+3}")
    VO = 249
    if kind == "QK":
        A(f"v_and_b32 v{T0+6}, 0x33, v{L}")
        A(f"v_bfe_u32 v{T0+7}, v{L}, 2, 1")
        A(f"v_lshl_or_b32 v{T0+6}, v{T0+7}, 3, v{T0+6}")
        A(f"v_bfe_u32 v{T0+7}, v{L}, 3, 1")
        A(f"v_lshl_or_b32 v{T0+6}, v{T0+7}, 2, v{T0+6}")
        A("s_cmp_lt_u32 s21, 2")
        A("s_cselect_b64 vcc, -1, 0")
        A(f"v_cndmask_b32 v{VO}, v{T0+6}, v{L}, vcc")
        A(f"v_lshlrev_b32 v{VO}, 4, v{VO}")
    elif kind == "V":
        A(f"v_and_b32 v{VO}, 15, v{L}")
        A(f"v_lshlrev_b32 v{VO}, 4, v{VO}")
        A(f"v_lshl_or_b32 v{VO}, v{h}, 8, v{VO}")
        A(f"v_bfe_u32 v{T0+6}, v{L}, 4, 1")
        A(f"v_lshl_or_b32 v{VO}, v{T0+6}, 16, v{VO}")
    else:
        A(f"v_lshlrev_b32 v{VO}, 4, v{L}")
    A("s_lshl_b32 s68, s20, 2")
    A("s_add_u32 s68, s68, s22")
    A("s_xor_b32 s69, s68, 1")
    if not F:
        A("s_lshl_b32 s70, s21, 20")
        A("s_lshl_b32 s71, s61, 19")
        A("s_add_u32 s70, s70, s71")
        A("s_lshl_b32 s68, s68, 10")
        A("s_lshl_b32 s69, s69, 10")
        A("s_add_u32 s68, s68, s70")
        A("s_add_u32 s69, s69, s70")
    A("s_mov_b32 s64, 0")
    A("s_mov_b32 s65, 0")

    def reads(st, s):
        r = []
        hs, sp = s >> 1, s & 1
        def wread(lu):
            a = WA + ((1 if lu == 4 else 0) if F else lu)
            base = hs*WSL + 4*sp*KQ + (lu*US if F and lu < 4 else 0)
            d = WSET[st] + 4*lu
            return [f"ds_read_b64_tr_b16 {vr(d,2)}, v{a} offset:{base}",
                    f"ds_read_b64_tr_b16 {vr(d+2,2)}, v{a} offset:{base+KQ}"]
        r.append(f"ds_read_b128 {vr(XS[st],4)}, v{XA+s}")
        r += wread(0)
        r.append(f"ds_read_b128 {vr(XS[st]+4,4)}, v{XB+s}")
        for lu in range(1, NW): r += wread(lu)
        return r
    def mfma(tile, w, x):
        a, b = (x, w) if kind == "V" else (w, x)
        return f"v_mfma_f32_32x32x16_bf16 {vr(16*tile,16)}, {vr(a,4)}, {vr(b,4)}, {vr(16*tile,16)}"
    def mfmas(st):
        m = [mfma(lu*2+lt, WSET[st]+4*lu, XS[st]+4*lt) for lu in range(4) for lt in range(2)]
        if F: m.append(mfma(8, WSET[st]+16, XS[st]))
        return m
    stamp(A, 1)
    A("s_waitcnt vmcnt(0) lgkmcnt(0)" if F else "s_waitcnt lgkmcnt(0)")
    A("s_barrier")
    stamp(A, 2)
    A.many(reads(0, 0))
    if F:
        A("s_sub_u32 s66, s2, 128")
        A("s_lshl_b32 s67, s22, 8")
        A("s_add_u32 s66, s66, s67")
        A(f"s_cmp_ge_u32 s66, {NZ}")
        A(f"s_cbranch_scc1 {P}_LOOP")
        A("s_lshl_b32 s66, s66, 2")
        A("s_mov_b64 exec, 1")
        A("v_mov_b32 v250, 1")
        A("v_mov_b32 v251, 0")
        A(f"buffer_store_dword v250, v251, {sr(S_DBG,4)}, s66 offen sc1")
        A("s_mov_b64 exec, -1")
    A.raw(".p2align 6")
    A.lab(P + "_LOOP")
    NR = 2*NW + 2
    PEEL = OPT["peel"] and not F
    NIT = 7 if PEEL else 8
    need = [3, 4, 6, 6, 8, 8, 10, 10, 12]
    for s in range(4):
        st = s & 1; nx = (s+1) & 3
        ms = mfmas(st); rd = reads(1-st, nx)
        n = len(ms)
        gaps = [[] for _ in ms]
        g0 = OPT["barpos"] if s == 3 else 0
        for i, r in enumerate(rd): gaps[g0 + i//2].append(r)
        xu = lambda k: [f"v_xor_b32 v{XA+k}, 0x4000, v{XA+k}", f"v_xor_b32 v{XB+k}, 0x4000, v{XB+k}"]
        if s < 3:
            gaps[n-2] += xu(nx)
        if s == 0: gaps[n-3] += xu(0)
        if s == 1:
            gaps[n-3] += ["s_cmp_eq_u32 s65, 2", f"s_mov_b32 s66, {2*WSL:#x}", f"s_cselect_b32 s66, {(-4*WSL) & 0xffffffff:#x}, s66"]
            gaps[n-1] += ["s_cselect_b32 s65, -1, s65", "s_add_u32 s65, s65, 1"]
        if s == 2:
            gaps[n-1] += [f"v_add_u32 v{WA+i}, s66, v{WA+i}" for i in range(2 if F else 4)]
        if s == 3:
            gaps[n-1] += ["s_add_u32 s64, s64, 1", f"s_cmp_lt_u32 s64, {NIT}"]
        issued = 0; done = 0
        for i, (m, g) in enumerate(zip(ms, gaps)):
            if need[i] > done:
                A(f"s_waitcnt lgkmcnt({min(15, NR - need[i] + issued)})"); done = need[i]
            A(m)
            if s == 3 and i == g0:
                A("s_waitcnt lgkmcnt(0)"); done = NR
                A("s_barrier")
            for x in g:
                A(x)
                if x.startswith("ds_"): issued += 1
    if OPT["prof"] and OPT["itstamp"]:
        A("s_memtime s[96:97]")
        A("s_memrealtime s[98:99]")
        A("s_add_u32 m0, s64, 19")
        A("s_waitcnt lgkmcnt(0)")
        A("v_writelane_b32 v255, s96, m0")
        A("s_add_u32 m0, s64, 51")
        A("s_nop 0")
        A("v_writelane_b32 v255, s98, m0")
        A(f"s_cmp_lt_u32 s64, {NIT}")
    A(f"s_cbranch_scc1 {P}_LOOP")
    stamp(A, 3)
    tiles = [(lu*2+lt, lu, lt) for lu in range(4) for lt in range(2)] + ([(8, 4, 0)] if F else [])
    if not F:
        def fin(tile, lu, lt):
            a = 16*tile
            g = [[f"v_cvt_pk_bf16_f32 v{a+i}, v{a+2*i}, v{a+2*i+1}" for i in range(4)],
                 [f"s_add_u32 s65, s{68+lt}, {lu*131072}", f"buffer_store_dwordx4 {vr(a,4)}, v{VO}, {sr(S_WS,4)}, s65 offen sc1"],
                 [f"v_cvt_pk_bf16_f32 v{a+8+i}, v{a+8+2*i}, v{a+9+2*i}" for i in range(4)]]
            if kind == "QK": g.append(["s_add_u32 s65, s65, 65536", f"buffer_store_dwordx4 {vr(a+8,4)}, v{VO}, {sr(S_WS,4)}, s65 offen sc1"])
            else: g.append([f"buffer_store_dwordx4 {vr(a+8,4)}, v{VO}, {sr(S_WS,4)}, s65 offen offset:512 sc1"])
            return g
        rest = tiles
        if PEEL:
            XR = {1: XS[1], 2: 128, 3: 136}
            WG = [[212, 216, 220], [224, 228, 208]]
            def wrd(lu):
                r = []
                for s in (1, 2, 3):
                    base = (s >> 1)*WSL + 4*(s & 1)*KQ; d = WG[lu & 1][s-1]
                    r += [f"ds_read_b64_tr_b16 {vr(d,2)}, v{WA+lu} offset:{base}", f"ds_read_b64_tr_b16 {vr(d+2,2)}, v{WA+lu} offset:{base+KQ}"]
                return r
            w0 = wrd(0); rd = []
            for s in (1, 2, 3):
                rd += [f"ds_read_b128 {vr(XR[s],4)}, v{XA+s}", f"ds_read_b128 {vr(XR[s]+4,4)}, v{XB+s}"] + w0[2*s-2:2*s]
            issued = 0; done = 0
            for i, m in enumerate(mfmas(0)):
                if need[i] > done:
                    A(f"s_waitcnt lgkmcnt({min(15, NR - need[i] + issued)})"); done = need[i]
                A(m)
                A.many(rd[2*i:2*i+2]); issued += len(rd[2*i:2*i+2])
            pend = []
            for lu in range(4):
                A("s_waitcnt lgkmcnt(0)")
                if lu == 3: A("s_barrier")
                nxt = wrd(lu+1) if lu < 3 else []
                for i, (s, lt) in enumerate((s, lt) for s in (1, 2, 3) for lt in range(2)):
                    A(mfma(lu*2+lt, WG[lu & 1][s-1], XR[s]+4*lt))
                    A.many(nxt[2*i:2*i+2])
                    if i == 2 and lu > 0:
                        A("s_nop 3")
                        for tl in tiles[2*(lu-1):2*lu]: pend += fin(*tl)
                    for _ in range(2 if i >= 3 else 1):
                        if pend: A.many(pend.pop(0))
            for g in pend: A.many(g)
            A("s_nop 7")
            rest = tiles[6:]
        for tl in rest:
            for g in fin(*tl): A.many(g)
        stamp(A, 4)
        if kind == "QK": A("s_branch L_SIGNAL")
    else:
        A(f"s_mul_i32 s62, s68, {NFU*1024}")
        A(f"s_mul_i32 s63, s69, {NFU*1024}")
        A(f"s_add_u32 s62, s62, {HF:#x}")
        A(f"s_add_u32 s63, s63, {HF:#x}")
        A("s_sub_u32 s64, s21, 6")
        A("s_mul_i32 s64, s64, 9")
        A("s_lshl_b32 s65, s61, 2")
        A("s_add_u32 s65, s65, s64")
        C1, C3, ONE, TT = 220, 222, 224, 176
        c1 = -2*0.7978845608028654*LOG2E
        A("s_waitcnt lgkmcnt(0)")
        for r, v in ((C1, c1), (C3, c1*0.044715), (ONE, 1.0)):
            A(f"v_mov_b32 v{r}, {f2u(v):#x}")
            A(f"v_mov_b32 v{r+1}, {f2u(v):#x}")
        dst = lambda tile: HREG + 4*tile
        h_offsets(A)
        for (tile, lu, lt) in tiles:
            a = 16*tile
            for i in range(4): A(f"v_pk_mul_f32 {vr(TT+2*i,2)}, {vr(a+2*i,2)}, {vr(a+2*i,2)}")
            for i in range(4): A(f"v_pk_fma_f32 {vr(TT+2*i,2)}, {vr(TT+2*i,2)}, {vr(C3,2)}, {vr(C1,2)}")
            for i in range(4): A(f"v_pk_mul_f32 {vr(TT+2*i,2)}, {vr(TT+2*i,2)}, {vr(a+2*i,2)}")
            for i in range(8): A(f"v_exp_f32 v{TT+i}, v{TT+i}")
            for i in range(4): A(f"v_pk_mul_f32 {vr(a+2*i,2)}, {vr(a+2*i,2)}, {vr(a+8+2*i,2)}")
            for i in range(4): A(f"v_pk_add_f32 {vr(TT+2*i,2)}, {vr(TT+2*i,2)}, {vr(ONE,2)}")
            for i in range(8): A(f"v_rcp_f32 v{TT+i}, v{TT+i}")
            A("s_nop 0")
            for i in range(4): A(f"v_pk_mul_f32 {vr(a+2*i,2)}, {vr(a+2*i,2)}, {vr(TT+2*i,2)}")
            for i in range(4): A(f"v_cvt_pk_bf16_f32 v{dst(tile)+i}, v{a+2*i}, v{a+2*i+1}")
        stamp(A, 4)

VX = 212; DW = 240; S1 = 216; S2 = 220; RR = 224; MR = 228; TL = 232
xreg = lambda c, i: (i*8 + c)*4
def xload_(A, i):
    A(f"s_add_u32 s{85+i}, s80, {i}")
    A(f"s_and_b32 s{85+i}, s{85+i}, 3")
    A(f"s_lshl_b32 s89, s{85+i}, 13")
    A("s_add_u32 s89, s89, s61")
    for c in range(8):
        A(f"buffer_load_dwordx4 {vr(xreg(c,i),4)}, v{VX}, {sr(S_X,4)}, s89 offen offset:{c*128}")
def loader_first(A):
    T = TL
    A("s_sub_u32 s60, s22, 4")
    A("s_lshl_b32 s61, s20, 17")
    A("s_lshl_b32 s62, s60, 15")
    A("s_add_u32 s61, s61, s62")
    A("s_lshr_b32 s80, s2, 5")
    A("s_waitcnt lgkmcnt(0)")
    srd(A, S_X, 4, 2048*512*2)
    xload_(A, 0); xload_(A, 1)

def gen_loader(A):
    ROLE[0] = "L"
    T = TL
    xload = lambda i: xload_(A, i)
    gen_wsetup(A)
    xload(2)
    A("s_cmp_lt_u32 s21, 2")
    A(f"s_cselect_b32 s69, {f2u(0.25*LOG2E):#x}, 1.0")
    A("s_lshr_b32 s64, s21, 1")
    A("s_cmp_eq_u32 s64, 2")
    A(f"s_cselect_b32 s69, {f2u(2.0**VSH):#x}, s69")
    for r in range(S1, S2+4): A(f"v_mov_b32 v{r}, 0")
    A("s_mov_b32 s78, 0x3f803f80")
    A("v_mov_b32 v249, 0")
    A(f"v_lshlrev_b32 v244, 1, v{L}")
    A("s_cmp_ge_u32 s21, 6")
    A("s_cselect_b32 s79, s60, 0")
    def norm(c, i):
        x = xreg(c, i); r = []
        for d in range(4):
            r.append(f"v_lshlrev_b32 v{T+2*d}, 16, v{x+d}")
            r.append(f"v_and_b32 v{T+2*d+1}, 0xffff0000, v{x+d}")
        for d in range(8): r.append(f"v_fma_f32 v{T+d}, v{T+d}, v{RR+i}, -v{MR+i}")
        for d in range(4): r.append(f"v_cvt_pk_bf16_f32 v{x+d}, v{T+2*d}, v{T+2*d+1}")
        if OPT["w64"]:
            r.insert(-2, f"ds_write_b64 v{DW+i}, {vr(x,2)} offset:{(c&1)*16384}")
            r.append(f"ds_write_b64 v{DW+i}, {vr(x+2,2)} offset:{(c&1)*16384+8}")
        else: r.append(f"ds_write_b128 v{DW+i}, {vr(x,4)} offset:{(c&1)*16384}")
        return r
    def dots(i):
        r = []
        for k in range(32):
            r.append(f"v_dot2c_f32_bf16 v{S2+i}, v{xreg(0,i)+k}, v{xreg(0,i)+k}")
            r.append(f"v_dot2c_f32_bf16 v{S1+i}, s78, v{xreg(0,i)+k}")
        return r
    A("s_waitcnt vmcnt(16)"); stamp(A, 16)
    xload(3)
    A.many(dots(0))
    A(f"v_lshrrev_b32 v{T+2}, 4, v{L}")
    A(f"v_xor_b32 v{T+2}, v{T+2}, v{T+1}")
    A(f"v_lshlrev_b32 v{T+3}, 7, v{T}")
    A("s_lshl_b32 s64, s60, 12")
    A(f"v_add_u32 v{T+3}, s64, v{T+3}")
    A(f"v_lshl_add_u32 v{T+3}, v{T+2}, 4, v{T+3}")
    for i in range(4):
        A(f"s_and_b32 s64, s{85+i}, 1")
        A("s_lshl_b32 s64, s64, 6")
        A(f"s_lshl_b32 s65, s{85+i}, 10")
        A("s_or_b32 s64, s64, s65")
        A(f"v_xor_b32 v{DW+i}, s64, v{T+3}")
    def vmw(base, tag):
        A(f"s_waitcnt vmcnt({base+9})")
        A("s_cmp_ge_u32 s21, 6")
        A(f"s_cbranch_scc1 {tag}")
        A(f"s_waitcnt vmcnt({base+8})")
        A.lab(tag)
    A("s_waitcnt vmcnt(16)"); stamp(A, 17)
    if OPT["wearly"]:
        mix(A, dots(1), dma_groups(0), 7)
        vmw(8, "LL_G2"); stamp(A, 18)
        A.many(dots(2))
    else:
        A.many(dots(1))
        A("s_waitcnt vmcnt(8)"); stamp(A, 18)
        mix(A, dots(2), dma_groups(0), 7)
    vmw(0, "LL_G3")
    stamp(A, 19)
    A.many(dots(3))
    A("s_nop 2")
    for ctl in ("quad_perm:[1,0,3,2]", "quad_perm:[2,3,0,1]", "row_half_mirror"):
        for r in range(S1, S2+4):
            A(f"v_add_f32_dpp v{r}, v{r}, v{r} {ctl} row_mask:0xf bank_mask:0xf")
    seq = [
        lambda i: f"v_mul_f32 v{S1+i}, {f2u(1/512):#x}, v{S1+i}",
        lambda i: f"v_mul_f32 v{S2+i}, {f2u(1/512):#x}, v{S2+i}",
        lambda i: f"v_fma_f32 v{S2+i}, -v{S1+i}, v{S1+i}, v{S2+i}",
        lambda i: f"v_max_f32 v{S2+i}, 0, v{S2+i}",
        lambda i: f"v_cvt_pk_bf16_f32 v{S2+i}, v{S1+i}, v{S2+i}",
        lambda i: f"v_lshlrev_b32 v{S1+i}, 16, v{S2+i}",
        lambda i: f"v_and_b32 v{S2+i}, 0xffff0000, v{S2+i}",
        lambda i: f"v_add_f32 v{S2+i}, {f2u(1e-5):#x}, v{S2+i}",
        lambda i: f"v_cvt_pk_bf16_f32 v{S2+i}, v{S2+i}, v{S2+i}",
        lambda i: f"v_and_b32 v{S2+i}, 0xffff0000, v{S2+i}",
        lambda i: f"v_sqrt_f32 v{S2+i}, v{S2+i}",
        lambda i: f"v_cvt_pk_bf16_f32 v{S2+i}, v{S2+i}, v{S2+i}",
        lambda i: f"v_and_b32 v{S2+i}, 0xffff0000, v{S2+i}",
        lambda i: f"v_rcp_f32 v{RR+i}, v{S2+i}",
        lambda i: f"v_mul_f32 v{RR+i}, s69, v{RR+i}",
        lambda i: f"v_mul_f32 v{MR+i}, v{S1+i}, v{RR+i}",
    ]
    for f in seq:
        for i in range(4): A(f(i))
    stamp(A, 1)
    mix(A, sum((norm(0, i) for i in range(4)), []), dma_groups(0), OPT["dmaevery"])
    if -1 in OPT["wpf"]: A.many(W_PREFETCH)
    stamp(A, 2)
    dbg_load = [f"buffer_load_dword v97, v96, {sr(S_DBG,4)}, 0 offen sc1"]
    for m in range(8):
        if m == 4: stamp(A, 29)
        A(f"s_waitcnt vmcnt({8 if m < 7 else 0}) lgkmcnt(0)")
        if m == 4: stamp(A, 30)
        if m == 5:
            A.many(ALL1(97))
            A("s_cbranch_scc1 LL_POLL0_OK")
            spin(A, "LL_POLL0", dbg_load, ALL1(97))
        A("s_barrier")
        if m == 3: stamp(A, 28)
        if m == 4: stamp(A, 31)
        if m == 7: break
        work = sum((norm(m+1, i) for i in range(4)), [])
        isw = lambda w: w.startswith("ds_")
        if OPT["exp"] == "wlast": work = [w for w in work if not isw(w)] + [w for w in work if isw(w)]
        if OPT["exp"] == "wfirst":
            if m == 0: A.many(work)
            else: A.many([w for w in work if isw(w)])
            work = [w for w in sum((norm(m+2, i) for i in range(4)), []) if not isw(w)] if m < 6 else []
        if OPT["exp"].startswith("grp"):
            dg = dma_groups(0) if m < 6 else []
            split = {"grp": [3,2,2,2,0], "grp2": [0,3,3,3,0], "grp3": [2,3,2,2,0], "grp4": [4,3,2,0,0]}[OPT["exp"]]
            for _ in range(split[0]):
                if dg: A.many(dg.pop(0))
            for i in range(4):
                nn = norm(m+1, i)
                A.many(nn[:-1])
                for _ in range(split[i+1]):
                    if dg: A.many(dg.pop(0))
                A(nn[-1])
            work = None
        if OPT["exp"] == "nonorm": work = []
        if OPT["exp"] == "nowrite": work = [w for w in work if not w.startswith("ds_")]
        if OPT["exp"] == "dmalast":
            A.many(work); work = []
        if OPT["exp"] == "dmafirst":
            mix(A, [], dma_groups(0) if m < 6 else [], 1); A.many(work); continue
        if work is not None: mix(A, work, dma_groups(0) if m < 6 else [], OPT["dmaevery"])
        if m in OPT["wpf"]: A.many(W_PREFETCH)
        if m == 3:
            A(f"v_min_u32 v96, {NZ-1}, v{L}")
            A("v_lshlrev_b32 v96, 2, v96")
            A.many(dbg_load)
    A("s_mov_b32 s23, s79")
    side_setup(A)
    A("s_call_b64 s[76:77], L_ATTINIT")
    late_init(A)
    A("s_barrier")
    if OPT["b8prio"]: A("s_setprio 3")
    stamp(A, 3)
    A("s_cmp_eq_u32 s23, 0")
    A("s_cbranch_scc1 LL_S7")
    side_loads(A, 0)
    side_loads(A, 1)
    A.lab("LL_S7")
    A("s_cmp_lg_u32 s60, 0")
    A("s_cbranch_scc1 LL_WAITGO")
    A("v_mov_b32 v96, 0")
    A("s_bfe_u32 s64, s2, 0x10004")
    A("s_lshl_b32 s64, s64, 5")
    A("s_and_b32 s65, s2, 15")
    A("s_add_u32 s64, s64, s65")
    A("s_bfe_u32 s65, s2, 0x10005")
    A("s_lshl_b32 s65, s65, 4")
    A("s_add_u32 s64, s64, s65")
    A("s_lshl_b32 s64, s64, 7")
    A(f"s_add_u32 s64, s64, {QCNT:#x}")
    if OPT["qsch"] == "E":
        A(f"s_and_b32 s64, s64, {(~(24*128)) & 0xffffffff:#x}")
        spin(A, "LL_POLL", [f"buffer_load_dword v97, v96, {sr(S_WS,4)}, s64 offen sc1"], ALL1(97))
    else: spin3(A, "LL_POLL", [0, 1, 2], 96, "s64", 48)
    A(f"v_mov_b32 v96, {SW}")
    A("v_mov_b32 v97, 1")
    A("ds_write_b32 v96, v97 offset:4")
    A("s_branch LL_GO")
    A.lab("LL_WAITGO")
    A(f"v_mov_b32 v96, {SW}")
    A(f"s_mov_b32 s70, {SPIN_MAX*16}")
    A.lab("LL_WG1")
    A("ds_read_b32 v97, v96 offset:4")
    A("s_waitcnt lgkmcnt(0)")
    A("v_readfirstlane_b32 s65, v97")
    A("s_cmp_lg_u32 s65, 0")
    A("s_cbranch_scc1 LL_GO")
    A("s_sleep 1")
    A("s_sub_u32 s70, s70, 1")
    A("s_cmp_lg_u32 s70, 0")
    A("s_cbranch_scc1 LL_WG1")
    A.lab("LL_GO")
    stamp(A, 4)
    A("s_and_b32 s64, s2, 31")
    A("s_lshl_b32 s64, s64, 16")
    A("s_lshl_b32 s65, s60, 11")
    A("s_add_u32 s64, s64, s65")
    A("s_lshr_b32 s66, s2, 5")
    A("s_lshl_b32 s66, s66, 13")
    A("s_add_u32 s66, s66, s64")
    A(f"s_add_u32 m0, s65, {QOFF}")
    A(f"s_add_u32 s67, s64, {KF:#x}")
    A(f"buffer_load_dwordx4 v95, {sr(S_WS,4)}, s66 offen sc1 lds")
    A(f"buffer_load_dwordx4 v95, {sr(S_WS,4)}, s66 offen offset:1024 sc1 lds")
    A(f"s_add_u32 s68, s64, {VF:#x}")
    for c in range(2):
        A(f"s_add_u32 m0, s65, {c*8192}")
        A("s_nop 0")
        A(f"buffer_load_dwordx4 v95, {sr(S_WS,4)}, s67 offen sc1 lds")
        A(f"buffer_load_dwordx4 v95, {sr(S_WS,4)}, s67 offen offset:1024 sc1 lds")
        A(f"s_add_u32 m0, s65, {65536 + c*8192}")
        A("s_add_u32 s67, s67, 8192")
        A(f"buffer_load_dwordx4 v95, {sr(S_WS,4)}, s68 offen sc1 lds")
        A(f"buffer_load_dwordx4 v95, {sr(S_WS,4)}, s68 offen offset:1024 sc1 lds")
        A("s_add_u32 s68, s68, 8192")
    A("s_cmp_eq_u32 s23, 0")
    A("s_cbranch_scc1 L_P0")
    A("s_waitcnt vmcnt(10)")
    side_combine(A)


WSC = lambda: "" if OPT["wl1"] else " sc1"
def down_loads(A, slot):
    A(f"buffer_load_dwordx4 {vr(DH[slot],4)}, v{L16}, {sr(S_T1,4)}, s84 offen sc1")
    A(f"buffer_load_dwordx4 {vr(DW_[slot],4)}, v{L16}, {sr(S_T2,4)}, s85 offen{WSC()}")
    A(f"buffer_load_dwordx4 {vr(DW_[slot]+4,4)}, v{L16}, {sr(S_T2,4)}, s85 offen offset:1024{WSC()}")
    A("s_add_u32 s84, s84, 1024")
    A("s_add_u32 s85, s85, 2048")

def kv_piece(k):
    if k & 1: return ["s_add_u32 m0, s95, 65536", "s_add_u32 s94, s94, 8192",
                      f"buffer_load_dwordx4 v{L16}, {sr(S_WS,4)}, s60 offen sc1 lds", "s_add_u32 s95, s95, 8192"]
    return ["s_mov_b32 m0, s95", f"s_add_u32 s60, s94, {VF-KF:#x}", f"buffer_load_dwordx4 v{L16}, {sr(S_WS,4)}, s94 offen sc1 lds"]
HPOLL = lambda: apoll(101, 100, "s75", 15)

def attn_body(A, mode):
    hs = 0
    for t in range(8):
        p = t & 1
        down = mode in "BC" or (mode == "2" and t >= 4)
        cur, prv = S_[p], S_[1-p]
        ex = lambda a, b: [A(f"v_exp_f32 v{cur+i}, v{cur+i}") for i in range(a, b)]
        if p == 0: A(f"s_setprio {3 - (t >> 1)}")
        A("s_waitcnt lgkmcnt(3)")
        ex(0, 2)
        if not (mode == "0" and t == 0):
            A(f"v_smfmac_f32_32x32x32_bf16 {vr(O_,16)}, {vr(V1[1-p],4)}, {vr(prv+8,8)}, v{IDX}")
        if mode == "0" and t < 6: A.many(kv_piece(2*t))
        ex(2, 6 if down else 7)
        A(f"v_mfma_f32_32x32x16_bf16 {vr(prv,16)}, {vr(KB[1-p],4)}, {vr(Q_,4)}, {vr(C_,16)}")
        skip = OPT["halfkv"] and (t & 2) and mode == "B"
        if not skip: A(f"ds_read_b128 {vr(KB[1-p],4)}, v{KA} offset:{(t+3)*1024}")
        if mode == "0" and t < 6: A.many(kv_piece(2*t+1))
        ex(6 if down else 7, 10 if down else 12)
        A(f"v_smfmac_f32_32x32x32_bf16 {vr(O_,16)}, {vr(V0[p],4)}, {vr(cur,8)}, v{IDX}")
        if not skip:
            A("s_mov_b64 exec, s[80:81]")
            A(f"ds_read_b128 {vr(V0[p],4)}, v{VA} offset:{(t+2)*1024}")
            A(f"ds_read_b128 {vr(V1[1-p],4)}, v{VA} offset:{(t+1)*1024+512}")
            A("s_mov_b64 exec, -1")
        if mode == "0":
            for _ in range(OPT["hplan"][t]):
                A(f"buffer_store_dwordx4 {vr(HREG+4*hs,4)}, v249, {sr(S_WS,4)}, s{HOFF[hs]} offen sc1"); hs += 1
        if mode == "2" and t < 4: down_loads(A, (t + 2) & 3)
        if mode == "C":
            if t == 0: A(f"buffer_load_dwordx4 {vr(XV,4)}, v252, {sr(S_X,4)}, s88 offen")
            for i in range(2):
                A(f"buffer_load_dwordx4 {vr(WO+8*t+4*i,4)}, v{L16}, {sr(S_WS,4)}, s90 offen offset:{(2*p+i)*1024}{WSC()}")
            if p: A("s_add_u32 s90, s90, 4096")
        if down:
            ex(10, 14)
            sl = t >> 1
            if p == 0: A(f"s_waitcnt vmcnt({12 + sl if mode == 'C' else 9})")
            cc = "0" if (mode == "2" and t < 6) else vr(DACC+16*p,16)
            if "m" not in OPT["nodown"]: A(f"v_mfma_f32_32x32x16_bf16 {vr(DACC+16*p,16)}, {vr(DW_[sl]+4*p,4)}, {vr(DH[sl],4)}, {cc}")
            if mode != "C" and p == 1 and "l" not in OPT["nodown"]: down_loads(A, sl)
            ex(14, 16)
        else:
            ex(12, 16)
        if mode == "1" and t == OPT["sigt"]:
            A("s_waitcnt vmcnt(0)")
            A("s_barrier")
            A("s_cmp_lg_u32 s14, 0")
            A("s_cbranch_scc1 L_NOSIG")
            A("s_mov_b64 exec, 0xff")
            A("v_mov_b32 v97, 1")
            A(f"v_lshlrev_b32 v96, 10, v{L}")
            A(f"buffer_atomic_add v97, v96, {sr(S_WS,4)}, s91 offen")
            A("s_mov_b64 exec, -1")
            A.lab("L_NOSIG")
        if mode == "1" and t == 6:
            A("s_cmp_lg_u32 s22, 0")
            A("s_cbranch_scc1 L_NOPQ")
            A(f"v_lshlrev_b32 v100, 7, v{L}")
            A.many(HPOLL())
            A.lab("L_NOPQ")
        if mode == "1" and t == 7:
            stamp(A, 8)
            A("s_cmp_lg_u32 s22, 0")
            A("s_cbranch_scc1 L_HPOLL_OK")
            spin(A, "L_HPOLL2", HPOLL(), acmp(101, 40, 15), first_loaded=True)
            if OPT["wl1"] == 2:
                A("buffer_inv sc1")
                A("s_waitcnt vmcnt(0)")
            A.lab("L_HPOLL_OK")
            A("s_barrier")
            stamp(A, 9)
    if mode == "0": assert hs == 9
    if mode != "C":
        A(f"v_add_u32 v{KA}, 8192, v{KA}")
        A(f"v_add_u32 v{VA}, 8192, v{VA}")
        A("s_add_u32 s83, s83, 1")

def late_init(A):
    A(f"v_lshlrev_b32 v{L16}, 4, v{L}")
    A(f"v_mov_b32 v{IDX}, 0xdddd")
    A(f"v_and_b32 v98, 15, v{L}")
    A("v_lshlrev_b32 v98, 4, v98")
    A(f"v_lshrrev_b32 v99, 5, v{L}")
    A("v_lshl_or_b32 v98, v99, 8, v98")
    A("v_add_u32 v98, 65536, v98")
    A(f"v_add_u32 v99, s15, v{L16}")
    A(f"v_add_u32 v102, s16, v{L16}")
    A(f"v_and_b32 v103, 7, v{L}")
    A(f"v_mul_u32_u24 v103, {RP}, v103")
    A(f"v_lshrrev_b32 v100, 3, v{L}")
    A("v_lshl_add_u32 v103, v100, 4, v103")
    A("v_add_u32 v103, s17, v103")
    A(f"v_mov_b32 v{KA}, v{L16}")
    A(f"v_mov_b32 v{VA}, v98")
    A("v_mov_b32 v100, 0xff800000")
    A("v_mov_b32 v101, 0xff800000")

def gen_attinit(A):
    A.lab("L_ATTINIT")
    for r in range(O_, O_+32): A(f"v_mov_b32 v{r}, 0")
    A("s_mov_b32 s80, 0x00110000")
    A("s_mov_b32 s81, 0x00110000")
    A("s_mov_b64 exec, s[80:81]")
    for r in range(V0[0], V0[0]+16): A(f"v_mov_b32 v{r}, 0x3f803f80")
    A("s_mov_b64 exec, -1")
    A("s_mov_b32 s80, 0xffff")
    A("s_mov_b32 s81, 0xffff")
    A("s_mov_b32 s78, 1")
    A(f"s_mov_b32 s79, {f2u(-OPT['bias']):#x}")
    A("s_mov_b32 s82, 1")
    A(f"v_and_b32 v251, 7, v{L}")
    A(f"v_lshrrev_b32 v252, 3, v{L}")
    A("v_lshlrev_b32 v252, 10, v252")
    A("v_lshl_add_u32 v252, v251, 4, v252")
    A("s_lshl_b32 s15, s22, 10")
    A(f"s_add_u32 s15, s15, {QOFF}")
    A("s_and_b32 s91, s20, 3")
    A("s_lshl_b32 s91, s91, 7")
    A(f"s_add_u32 s91, s91, {QFLAG+4*128:#x}")
    A("s_cmp_lt_u32 s21, 6")
    A("s_cselect_b32 s14, 1, s22")
    A("s_and_b32 s75, s2, 7")
    A("s_lshl_b32 s75, s75, 10")
    A(f"s_add_u32 s75, s75, {QFLAG+4*128:#x}")
    A("s_lshr_b32 s61, s2, 5")
    A("s_lshl_b32 s61, s61, 3")
    A("s_add_u32 s61, s61, s22")
    A("s_lshl_b32 s61, s61, 5")
    A("s_and_b32 s62, s2, 31")
    A("s_add_u32 s61, s61, s62")
    A("s_lshr_b32 s12, s61, 3")
    A("s_lshl_b32 s12, s12, 7")
    A(f"s_add_u32 s12, s12, {OFLAG:#x}")
    A("s_lshl_b32 s11, s61, 10")
    A(f"s_add_u32 s11, s11, {OF:#x}")
    A("s_and_b32 s94, s2, 31")
    A("s_lshl_b32 s94, s94, 16")
    A("s_lshl_b32 s95, s22, 10")
    A("s_add_u32 s95, s95, 16384")
    A("s_add_u32 s94, s94, s95")
    A(f"s_add_u32 s94, s94, {KF:#x}")
    A("s_and_b32 s67, s2, 7")
    A("s_bfe_u32 s61, s2, 0x20003")
    A("s_lshl_b32 s67, s67, 2")
    A("s_add_u32 s67, s67, s61")
    A("s_lshr_b32 s61, s2, 5")
    A("s_and_b32 s62, s22, 1")
    A("s_lshl_b32 s67, s67, 1")
    A("s_add_u32 s67, s67, s62")
    A("s_lshr_b32 s62, s22, 1")
    A("s_mul_i32 s63, s62, 22")
    A("s_cmp_eq_u32 s62, 3")
    A("s_cselect_b32 s63, 65, s63")
    A("s_cmp_lt_u32 s62, 2")
    A("s_cselect_b32 s64, 22, 21")
    A(f"s_mul_i32 s65, s67, {NFU}")
    A("s_add_u32 s65, s65, s63")
    A("s_lshl_b32 s65, s65, 10")
    A(f"s_add_u32 s65, s65, {HF:#x}")
    A(f"s_add_u32 s{S_T1}, s18, s65")
    A(f"s_addc_u32 s{S_T1+1}, s19, 0")
    A(f"s_lshl_b32 s{S_T1+2}, s64, 10")
    A(f"s_mov_b32 s{S_T1+3}, 0x00020000")
    A(f"s_mul_i32 s65, s61, {NFU}")
    A("s_add_u32 s65, s65, s63")
    A("s_lshl_b32 s65, s65, 11")
    A(f"s_add_u32 s65, s65, {WDF:#x}")
    A(f"s_add_u32 s{S_T2}, s18, s65")
    A(f"s_addc_u32 s{S_T2+1}, s19, 0")
    A(f"s_lshl_b32 s{S_T2+2}, s64, 11")
    A(f"s_mov_b32 s{S_T2+3}, 0x00020000")
    A("s_mov_b32 s84, 0")
    A("s_mov_b32 s85, 0")
    A("s_lshl_b32 s90, s61, 16")
    A("s_lshl_b32 s66, s62, 14")
    A("s_add_u32 s90, s90, s66")
    A(f"s_add_u32 s90, s90, {WOF:#x}")
    A("s_lshl_b32 s87, s67, 15")
    A("s_lshl_b32 s66, s62, 13")
    A("s_add_u32 s87, s87, s66")
    A(f"s_add_u32 s87, s87, {OF:#x}")
    A("s_lshl_b32 s88, s67, 15")
    A("s_lshl_b32 s66, s61, 7")
    A("s_add_u32 s88, s88, s66")
    A("s_lshl_b32 s66, s62, 13")
    A("s_add_u32 s88, s88, s66")
    A(f"s_sub_u32 s13, s87, {OF:#x}")
    A("s_lshr_b32 s13, s13, 6")
    A(f"s_add_u32 s13, s13, {OFLAG:#x}")
    red_addr(A)
    A("s_setpc_b64 s[76:77]")

def gen_attn(A):
    A("s_waitcnt lgkmcnt(0)")
    late_init(A)
    A.lab("L_P0")
    stamp(A, 5)
    A("s_waitcnt vmcnt(0)")
    A("s_barrier")
    stamp(A, 6)
    A(f"ds_read_b128 {vr(Q_,4)}, v99")
    A.lab("L_MAXLOOP")
    A(f"ds_read_b128 {vr(KB[0],4)}, v{KA}")
    A(f"ds_read_b128 {vr(KB[1],4)}, v{KA} offset:1024")
    A("s_mov_b64 exec, s[80:81]")
    A(f"ds_read_b128 {vr(V0[0],4)}, v{VA}")
    A("s_mov_b64 exec, -1")
    A("s_waitcnt lgkmcnt(2)")
    A(f"v_mfma_f32_32x32x16_bf16 {vr(S_[0],16)}, {vr(KB[0],4)}, {vr(Q_,4)}, 0")
    A("s_waitcnt lgkmcnt(1)")
    A(f"v_mfma_f32_32x32x16_bf16 {vr(C_,16)}, {vr(KB[1],4)}, {vr(Q_,4)}, 0")
    A(f"v_subrev_u32 v{KA}, 2048, v{KA}")
    A("s_nop 9")
    for i in range(8): A(f"v_max3_f32 v100, v{2*i}, v{2*i+1}, v100")
    for i in range(8): A(f"v_max3_f32 v101, v{C_+2*i}, v{C_+2*i+1}, v101")
    A("s_sub_u32 s78, s78, 1")
    A("s_cmp_lg_u32 s78, 0")
    A("s_cbranch_scc1 L_MAXLOOP")
    A("v_max_f32 v100, v100, v101")
    A(f"v_mov_b32 v{KA}, v{L16}")
    A("v_mov_b32 v101, v100")
    A("s_nop 1")
    A("v_permlane32_swap_b32 v100, v101")
    A("s_nop 1")
    A("v_max_f32 v100, v100, v101")
    for r in range(16): A(f"v_sub_f32 v{C_+r}, s79, v100")
    A("s_nop 1")
    A(f"v_mfma_f32_32x32x16_bf16 {vr(S_[0],16)}, {vr(KB[0],4)}, {vr(Q_,4)}, {vr(C_,16)}")
    A(f"ds_read_b128 {vr(KB[0],4)}, v{KA} offset:2048")
    A("s_mov_b64 exec, s[80:81]")
    A(f"ds_read_b128 {vr(V0[1],4)}, v{VA} offset:1024")
    A(f"ds_read_b128 {vr(V1[0],4)}, v{VA} offset:512")
    A("s_mov_b64 exec, -1")
    A("s_mov_b32 s83, 0")
    stamp(A, 7)
    A("s_nop 4")
    A("s_cmp_eq_u32 s82, 0")
    A("s_cbranch_scc1 L_LOOPP")
    attn_body(A, "0")
    attn_body(A, "1")
    attn_body(A, "2")
    A.lab("L_LOOPB")
    attn_body(A, "B")
    if OPT["prof"] and OPT["bstamp"]:
        A("s_memtime s[96:97]")
        A("s_memrealtime s[98:99]")
        A("s_add_u32 m0, s83, 17")
        A("s_waitcnt lgkmcnt(0)")
        A("v_writelane_b32 v255, s96, m0")
        A("s_add_u32 m0, s83, 49")
        A("s_nop 0")
        A("v_writelane_b32 v255, s98, m0")
    A("s_cmp_lt_u32 s83, 7")
    A("s_cbranch_scc1 L_LOOPB")
    attn_body(A, "C")
    A.lab("L_ATT_DONE")
    A("s_waitcnt lgkmcnt(0)")
    stamp(A, 10)
    A(f"v_smfmac_f32_32x32x32_bf16 {vr(O_,16)}, {vr(V1[1],4)}, {vr(S_[1]+8,8)}, v{IDX}")
    A("s_setprio 3")
    A(f"v_mov_b32 v96, {f2u(2.0**90):#x}")
    A(f"v_mov_b32 v97, {f2u(2.0**120):#x}")
    A(f"v_mov_b32 v99, {f2u(2.0**-100):#x}")
    A("s_nop 7")
    A(f"v_rcp_f32 v101, v{O_+8}")
    A("s_nop 0")
    A(f"v_mul_f32 v101, {f2u(2.0**-VSH):#x}, v101")
    for r in range(8): A(f"v_mul_f32 v{r}, v{O_+r}, v101")
    for i in range(4): A(f"v_cvt_pk_bf16_f32 v{8+i}, v{2*i}, v{2*i+1}")
    A(f"buffer_store_dwordx4 {vr(8,4)}, v{L16}, {sr(S_WS,4)}, s11 offen sc1")
    A("s_cmp_eq_u32 s82, 0")
    A("s_cbranch_scc1 L_FIN")
    A(f"v_add_f32 v100, abs(v{O_}), abs(v{O_+1})")
    for r in range(2, 8): A(f"v_add_f32 v100, v100, abs(v{O_+r})")
    A(f"v_cmp_nlt_f32 s[62:63], v{O_+8}, v96")
    A("v_cmp_nlt_f32 s[64:65], v100, v97")
    A("v_cmp_lt_f32 vcc, v100, v99")
    A("s_or_b64 s[62:63], s[62:63], s[64:65]")
    A("s_or_b64 s[62:63], s[62:63], vcc")
    A("s_cmp_eq_u64 s[62:63], 0")
    if not OPT["force_fallback"]: A("s_cbranch_scc1 L_FIN")
    A("s_mov_b32 s78, 32")
    A("s_mov_b32 s79, 0")
    A("s_mov_b32 s82, 0")
    A(f"v_mov_b32 v{VA}, v98")
    A("v_mov_b32 v100, 0xff800000")
    A("v_mov_b32 v101, 0xff800000")
    for r in range(16): A(f"v_mov_b32 v{O_+r}, 0")
    for r in range(8, 16): A(f"v_mov_b32 v{S_[1]+r}, 0")
    A(f"v_add_u32 v{KA}, {62*1024}, v{L16}")
    A("s_waitcnt vmcnt(0)")
    A("s_branch L_MAXLOOP")
    A.lab("L_FIN")

RP = 1056
RS = 8*RP
def red_addr(A):
    A("s_and_b32 s62, s22, 1")
    A("s_lshr_b32 s63, s22, 1")
    A(f"s_mul_i32 s62, s62, {4*RS}")
    A(f"s_mul_i32 s64, s63, {RS}")
    A("s_add_u32 s16, s64, s62")
    A("s_lshl_b32 s64, s63, 7")
    A("s_add_u32 s17, s64, s62")
def red_write(A, acc):
    for p in range(8): A(f"ds_write_b128 v102, {vr(acc+4*p,4)} offset:{p*RP}")
def red_read(A, dst):
    for s in range(4):
        for h in range(2):
            A(f"ds_read_b128 {vr(dst+8*s+4*h,4)}, v103 offset:{s*RS + h*512}")
def red_sum(A, dst):
    for r in range(8):
        A(f"v_add_f32 v{dst+r}, v{dst+r}, v{dst+8+r}")
        A(f"v_add_f32 v{dst+16+r}, v{dst+16+r}, v{dst+24+r}")
    for r in range(8): A(f"v_add_f32 v{dst+r}, v{dst+r}, v{dst+16+r}")
def round_bf16(A, regs, tmp):
    for i in range(4): A(f"v_cvt_pk_bf16_f32 v{tmp+i}, v{regs+2*i}, v{regs+2*i+1}")
    for i in range(4):
        A(f"v_lshlrev_b32 v{regs+2*i}, 16, v{tmp+i}")
        A(f"v_and_b32 v{regs+2*i+1}, 0xffff0000, v{tmp+i}")

def gen_final(A):
    A("v_mov_b32 v96, 1")
    A("v_mov_b32 v97, 0")
    A("s_waitcnt vmcnt(0)")
    A("s_mov_b64 exec, 1")
    A(f"buffer_atomic_add v96, v97, {sr(S_WS,4)}, s12 offen")
    A("s_mov_b64 exec, -1")
    stamp(A, 11)
    A.many(apoll(32, 97, "s13", 1))
    A("s_barrier")
    red_write(A, DACC)
    A("s_waitcnt lgkmcnt(0)")
    A("s_barrier")
    G = DACC; T = 136
    red_read(A, G)
    spin3(A, "L_OPOLL", [32, 33, 34], 97, "s13", 8, primed=1)
    stamp(A, 12)
    for s in range(8):
        A(f"buffer_load_dwordx4 {vr(4*s,4)}, v{L16}, {sr(S_WS,4)}, s87 offen offset:{(s&3)*1024} sc1")
        if s == 3: A("s_add_u32 s87, s87, 4096")
    A(f"v_add_u32 v102, {8*RS}, v102")
    A(f"v_add_u32 v103, {8*RS}, v103")
    for i in range(4):
        A(f"v_lshlrev_b32 v{144+2*i}, 16, v{XV+i}")
        A(f"v_and_b32 v{145+2*i}, 0xffff0000, v{XV+i}")
    A("s_waitcnt lgkmcnt(0)")
    B = Asm()
    red_sum(B, G)
    round_bf16(B, G, T)
    for r in range(8): B(f"v_mul_f32 v{T+r}, {f2u(-LOG2E):#x}, v{G+r}")
    for r in range(8): B(f"v_exp_f32 v{T+r}, v{T+r}")
    for r in range(8): B(f"v_add_f32 v{T+r}, 1.0, v{T+r}")
    for r in range(8): B(f"v_rcp_f32 v{T+r}, v{T+r}")
    for r in range(8): B(f"v_mul_f32 v{G+r}, v{G+r}, v{T+r}")
    round_bf16(B, G, T)
    gw = [x.strip() for x in B.l]
    A.many(gw[:OPT["gpre"]]); gw = gw[OPT["gpre"]:]
    ACC = 104
    for s in range(8):
        A(f"s_waitcnt vmcnt({7-s})")
        for nt in range(2):
            c = "0" if s == 0 else vr(ACC+16*nt,16)
            A(f"v_mfma_f32_32x32x16_bf16 {vr(ACC+16*nt,16)}, {vr(WO+8*s+4*nt,4)}, {vr(4*s,4)}, {c}")
            A.many(gw[:4]); gw = gw[4:]
    A.many(gw)
    stamp(A, 13)
    A("s_nop 11")
    red_write(A, ACC)
    A("s_waitcnt lgkmcnt(0)")
    A("s_barrier")
    red_read(A, 0)
    A("s_waitcnt lgkmcnt(0)")
    red_sum(A, 0)
    round_bf16(A, 0, T)
    for r in range(8): A(f"v_mul_f32 v{r}, v{r}, v{G+r}")
    round_bf16(A, 0, T)
    for r in range(8): A(f"v_add_f32 v{r}, v{r}, v{144+r}")
    for i in range(4): A(f"v_cvt_pk_bf16_f32 v{T+i}, v{2*i}, v{2*i+1}")
    A(f"buffer_store_dwordx4 {vr(T,4)}, v252, {sr(S_OUT,4)}, s88 offen{OPT['outfl']}")
    if OPT["fixdur"]:
        A.lab("L_FIXDUR")
        A("s_memrealtime s[96:97]")
        A("s_waitcnt lgkmcnt(0)")
        A("s_sub_u32 s96, s96, s100")
        A(f"s_cmp_lt_u32 s96, {OPT['fixdur']}")
        A("s_cbranch_scc1 L_FIXDUR")
    if OPT["prof"]:
        stamp(A, 14)
        A(f"s_add_u32 s{S_T1}, s18, {PROF_OFF:#x}")
        A(f"s_addc_u32 s{S_T1+1}, s19, 0")
        A(f"s_mov_b32 s{S_T1+2}, 0x100000")
        A(f"s_mov_b32 s{S_T1+3}, 0x00020000")
        A("s_lshl_b32 s60, s2, 3")
        A("s_add_u32 s60, s60, s22")
        A("s_lshl_b32 s60, s60, 8")
        A(f"v_lshlrev_b32 v0, 2, v{L}")
        A(f"buffer_store_dword v255, v0, {sr(S_T1,4)}, s60 offen")
        if OPT["dbgout"]:
            A("s_cmp_lg_u32 s2, 200")
            A("s_cbranch_scc1 L_END")
            A("s_cmp_lg_u32 s22, 0")
            A("s_cbranch_scc1 L_END")
            A("v_readlane_b32 s61, v255, 32")
            A("v_readlane_b32 s63, v255, 0")
            A("v_mov_b32 v1, 0")
            A("s_mov_b64 exec, 1")
            for n, i in enumerate((2, 3, 4, 6, 9, 10, 12, 14)):
                A(f"v_readlane_b32 s62, v255, {32+i}")
                A("s_sub_u32 s62, s62, s61")
                A("v_mov_b32 v2, s62")
                A(f"buffer_store_dword v2, v1, {sr(S_DBG,4)}, 0 offen offset:{32+4*n}")
                A("s_nop 1")
            A("v_readlane_b32 s62, v255, 14")
            A("s_sub_u32 s62, s62, s63")
            A("v_mov_b32 v2, s62")
            A(f"buffer_store_dword v2, v1, {sr(S_DBG,4)}, 0 offen offset:28")

def gen_hooks(A):
    gen_attinit(A)
    A.lab("L_LOOPP")
    attn_body(A, "P")
    A("s_cmp_lt_u32 s83, 8")
    A("s_cbranch_scc1 L_LOOPP")
    A("s_branch L_ATT_DONE")
    A.lab("L_CODE_END")

def main(out):
    hdr = open(f"cdna_kernels/{NAME}.s.ref").read().split("\n")
    head = [l for l in hdr if l.startswith(";") and "@launch" not in l]
    head += [f"; @launch grid=(256,1,1) block=(512,1,1) lds={LDS_BYTES}"]
    A = Asm()
    d = gen(A)
    open(out, "w").write("\n".join(head) + '\n.amdgcn_target "amdgcn-amd-amdhsa--gfx950"\n' + A.text() + d)

if __name__ == "__main__":
    for a in sys.argv[2:]:
        k, _, v = a.partition("=")
        OPT[k] = eval(v) if v else True
    main(sys.argv[1] if len(sys.argv) > 1 else f"cdna_kernels/{NAME}.s")
```

```python
import sys, struct

NAME = "recurrent_scan__softmax_full_mha__glu_gated_geglu__prompt"
MB = 1 << 20
QF, KF, VF, OF, WOF, WDF, HF, FLAGS = 0, 2*MB, 4*MB, 6*MB, 8*MB, 9*MB, 11*MB, 17*MB
WS_BYTES = 18*MB
NFU = 86
LOG2E = 1.4426950408889634
def f2u(x): return struct.unpack("<I", struct.pack("<f", x))[0]

OPT = dict(prof=False, bias=98.0, force_fallback=False, sleep=2, barpos=1, itstamp=False, hplan=[1,1,1,1,1,1,2,1], sigt=1, psleep=3, gpre=24, wearly=False, peel=True, wl1=0, nodown='', halfkv=False, b8prio=True, qsch='D', outfl=' nt', oearly=False, osleep=2, spf=False, prefetch=False, dmaevery=12, dbgout=False, fixdur=0, codepf=True, noload=False, bstamp=False, pace=None, wpf=[], exp='', w64=False, lprio=0, enc=-1, encrole='', cmap=True, prio='ramp2')
PROF_OFF = 24*MB
SPIN_MAX = 20000
VSH = 32

class Asm:
    def __init__(self): self.l = []
    def __call__(self, s): self.l.append(s if s.endswith(":") else "    " + s)
    def many(self, ss):
        for s in ss: self(s)
    def lab(self, s): self.l.append(s + ":")
    def raw(self, s): self.l.append(s)
    def text(self): return "\n".join(self.l) + "\n"
def vr(a, n): return f"v[{a}:{a+n-1}]"
def sr(a, n): return f"s[{a}:{a+n-1}]"
def srd(A, d, base, nbytes):
    A(f"s_mov_b32 s{d}, s{base}")
    A(f"s_mov_b32 s{d+1}, s{base+1}")
    A(f"s_mov_b32 s{d+2}, {nbytes:#x}")
    A(f"s_mov_b32 s{d+3}, 0x00020000")
def csel(A, d, a, b):
    A(f"s_mov_b32 s{d}, {b:#x}")
    A(f"s_cselect_b32 s{d}, {a:#x}, s{d}")
ROLE = [""]
def stamp(A, i):
    if OPT["enc"] == i and (not OPT["encrole"] or ROLE[0] in OPT["encrole"]):
        A("s_memrealtime s[100:101]")
        A("s_waitcnt lgkmcnt(0)")
    if not OPT["prof"]: return
    A("s_memtime s[96:97]")
    A("s_memrealtime s[98:99]")
    A("s_waitcnt lgkmcnt(0)")
    A(f"v_writelane_b32 v255, s96, {i}")
    A(f"v_writelane_b32 v255, s98, {32+i}")

WR = 32768
WSL = 18560
UPOFF = 9344
QOFF = 135168
SCRATCH = 147456
SW = 163584
LDS_BYTES = 163840
QFLAG = FLAGS
QCNT = QFLAG + 64*128
NZ = 2
S_X, S_W, S_WS, S_DBG, S_OUT, S_T1, S_T2 = 24, 28, 32, 36, 40, 44, 48
L = 254
S_ = [0, 16]; C_ = 32; DACC = 48; Q_ = 80; KB = [84, 88]; O_ = 144; V0 = [160, 164]; V1 = [168, 172]
IDX, KA, VA, L16 = 92, 93, 94, 95
DH = [104, 116, 128, 140]; DW_ = [108, 120, 132, 176]
WO = 184; XV = 248

def spin(A, tag, loads, cmp_lines, first_loaded=False):
    A(f"s_mov_b32 s70, {SPIN_MAX}")
    if not first_loaded: A.many(loads)
    A.lab(tag)
    A("s_waitcnt vmcnt(0)")
    A.many(cmp_lines)
    A(f"s_cbranch_scc1 {tag}_OK")
    A(f"s_sleep {OPT['sleep']}")
    A.many(loads)
    A("s_sub_u32 s70, s70, 1")
    A("s_cmp_lg_u32 s70, 0")
    A(f"s_cbranch_scc1 {tag}")
    A.lab(tag + "_OK")
def spin3(A, tag, regs, voff, soff, n, primed=0):
    A(f"s_mov_b32 s70, {SPIN_MAX}")
    for r in regs[primed:2]:
        A.many(apoll(r, voff, soff, 1))
        A(f"s_sleep {OPT['psleep']}")
    A.lab(tag)
    for k in range(3):
        A.many(apoll(regs[(k+2) % 3], voff, soff, 1))
        A("s_waitcnt vmcnt(2)")
        A.many(acmp(regs[k], n, 1))
        A(f"s_cbranch_scc1 {tag}_OK")
        A(f"s_sleep {OPT['psleep']}")
    A("s_sub_u32 s70, s70, 1")
    A("s_cmp_lg_u32 s70, 0")
    A(f"s_cbranch_scc1 {tag}")
    A.lab(tag + "_OK")
def apoll(dst, voff, soff, mask):
    return [f"v_mov_b32 v{dst}, 0", f"s_mov_b64 exec, {mask}",
            f"buffer_atomic_add v{dst}, v{voff}, {sr(S_WS,4)}, {soff} offen sc0", "s_mov_b64 exec, -1"]
def acmp(v, n, mask):
    return [f"v_cmp_eq_u32 vcc, {n}, v{v}", f"s_cmp_eq_u64 vcc, {mask}"]
ALL1 = lambda v: [f"v_cmp_ne_u32 vcc, 1, v{v}", "s_cmp_eq_u64 vcc, 0"]

def last_wave_signals(A, tag, off, last):
    A(f"v_mov_b32 v96, {SW}")
    A("v_mov_b32 v97, 1")
    A("s_mov_b64 exec, 1")
    A(f"ds_add_rtn_u32 v100, v96, v97 offset:{off}")
    A("s_waitcnt lgkmcnt(0)")
    A("s_mov_b64 exec, -1")
    A("v_readfirstlane_b32 s60, v100")
    A(f"s_cmp_lg_u32 s60, {last}")
    A(f"s_cbranch_scc1 {tag}")
    A(f"v_lshlrev_b32 v96, 7, v{L}")
    if OPT["qsch"] == "E":
        A("s_mov_b64 exec, 1")
        A("v_mov_b32 v100, 1")
        A(f"buffer_atomic_add v100, v96, {sr(S_WS,4)}, s14 offen offset:{31*128} sc0")
        A("s_waitcnt vmcnt(0)")
        A("s_mov_b64 exec, -1")
        A("v_readfirstlane_b32 s60, v100")
        A("s_cmp_lg_u32 s60, 47")
        A(f"s_cbranch_scc1 {tag}")
        A("s_mov_b64 exec, 0xff")
        A(f"buffer_store_dword v97, v96, {sr(S_WS,4)}, s14 offen sc1")
    else:
        A("s_mov_b32 exec_hi, 0")
        A(f"buffer_atomic_add v97, v96, {sr(S_WS,4)}, s14 offen")
    A("s_mov_b64 exec, -1")
    A.lab(tag)

def gen(A):
    name = NAME + "_kernel"
    A.raw(".text"); A.raw(f".globl {name}"); A.raw(".p2align 8"); A.raw(f".type {name},@function")
    A.lab(name)
    A("s_cmp_ge_u32 s2, 256")
    A("s_cbranch_scc1 L_END")
    if OPT["fixdur"]: A("s_memrealtime s[100:101]")
    A("s_load_dwordx4 s[4:7], s[0:1], 0")
    A("s_load_dwordx2 s[8:9], s[0:1], 16")
    A("s_load_dwordx4 s[12:15], s[0:1], 32")
    A("s_load_dwordx4 s[52:55], s[0:1], 48")
    A("s_load_dwordx4 s[56:59], s[0:1], 64")
    if OPT["prof"]: A("v_mov_b32 v255, 0")
    stamp(A, 0)
    A("s_getpc_b64 s[60:61]")
    A.lab("L_PC")
    A("s_lshr_b32 s23, s2, 3")
    A("s_lshl_b32 s62, s23, 11")
    A("v_lshl_add_u32 v250, v0, 7, s62")
    A("v_cmp_gt_u32 s[62:63], 16, v0")
    A("v_cmp_gt_u32 vcc, L_CODE_END-L_PC-4, v250")
    A("v_lshrrev_b32 v252, 6, v0")
    A(f"v_and_b32 v{L}, 63, v0")
    A("s_and_b64 exec, vcc, s[62:63]")
    A("s_cbranch_execz L_NOPF")
    A("v_mov_b32 v251, s61")
    A("v_add_co_u32 v250, vcc, s60, v250")
    A("v_addc_co_u32 v251, vcc, 0, v251, vcc")
    A("global_load_dword v253, v[250:251], off")
    A.lab("L_NOPF")
    A("s_mov_b64 exec, -1")
    A("v_readfirstlane_b32 s22, v252")
    T = TL
    A(f"v_lshrrev_b32 v{T}, 3, v{L}")
    A(f"v_and_b32 v{T+1}, 7, v{L}")
    A(f"v_lshlrev_b32 v{VX}, 10, v{T}")
    A(f"v_lshl_add_u32 v{VX}, v{T+1}, 4, v{VX}")
    A("s_bfe_u32 s20, s2, 0x20001")
    A("s_lshl_b32 s20, s20, 2")
    A("s_and_b32 s60, s23, 3")
    A("s_add_u32 s20, s20, s60")
    A("s_cmp_lt_u32 s22, 4")
    A("s_cbranch_scc1 L_COMMON")
    loader_first(A)
    A.lab("L_COMMON")
    A("s_lshr_b32 s62, s23, 2")
    A("s_and_b32 s63, s2, 1")
    A("s_lshl_b32 s21, s62, 1")
    A("s_add_u32 s21, s21, s63")
    A("s_mul_i32 s63, s63, 5")
    A("s_add_u32 s63, s63, s62")
    A("s_add_u32 s63, s63, 3")
    A("s_cmp_ge_u32 s62, 3")
    A("s_cselect_b32 s21, s63, s21")
    A("s_waitcnt lgkmcnt(0)")
    srd(A, S_X, 4, 2048*512*2)
    A("s_mov_b64 s[16:17], s[52:53]")
    A("s_mov_b64 s[18:19], s[58:59]")
    srd(A, S_WS, 58, WS_BYTES)
    srd(A, S_DBG, 56, 256)
    srd(A, S_OUT, 54, 2048*512*2)
    srd(A, S_T1, 58, 0)
    srd(A, S_T2, 58, 0)
    for r in HOFF: A(f"s_mov_b32 s{r}, 0x7fff0000")
    A("s_cmp_lt_u32 s22, 4")
    A("s_cbranch_scc1 L_COMPUTE")
    gen_loader(A)
    A("s_branch L_P0")
    A.lab("L_COMPUTE")
    gen_init(A)
    A("s_cmp_ge_u32 s21, 6")
    A("s_cbranch_scc1 L_F")
    A("s_cmp_ge_u32 s21, 4")
    A("s_cbranch_scc1 L_V")
    gen_compute(A, "QK")
    A.lab("L_V")
    gen_compute(A, "V")
    A.lab("L_SIGNAL")
    A("s_and_b32 s14, s21, 1")
    A("s_lshl_b32 s14, s14, 12")
    A(f"s_add_u32 s14, s14, {QCNT:#x}")
    A("s_waitcnt vmcnt(0)")
    last_wave_signals(A, "L_SIG2", 0, 3)
    stamp(A, 15)
    A("s_branch L_P2")
    A.lab("L_F")
    gen_compute(A, "F")
    A.lab("L_P2")
    gen_attn(A)
    gen_final(A)
    A.lab("L_END")
    A("s_endpgm")
    gen_hooks(A)
    return f""".section .rodata,"a"
.p2align 6
.amdhsa_kernel {name}
  .amdhsa_next_free_vgpr 256
  .amdhsa_next_free_sgpr 102
  .amdhsa_accum_offset 256
  .amdhsa_group_segment_fixed_size 0
  .amdhsa_kernarg_size 80
  .amdhsa_user_sgpr_count 2
  .amdhsa_user_sgpr_kernarg_segment_ptr 1
  .amdhsa_system_sgpr_workgroup_id_x 1
.end_amdhsa_kernel
"""

def gen_init(A):
    R = 160
    A("s_cmp_lg_u32 s22, 0")
    A("s_cbranch_scc1 L_INIT1")
    for r in range(R, R+4): A(f"v_mov_b32 v{r}, 0")
    A(f"v_mov_b32 v{R+4}, {SW}")
    A(f"ds_write_b128 v{R+4}, {vr(R,4)}")
    A("s_sub_u32 s61, s2, 128")
    A(f"s_cmp_ge_u32 s61, {NZ}")
    A("s_cbranch_scc1 L_INIT1")
    A(f"v_lshlrev_b32 v{R+4}, 7, v{L}")
    A("s_lshl_b32 s60, s61, 13")
    A(f"s_add_u32 s60, s60, {FLAGS:#x}")
    A(f"buffer_store_dword v{R}, v{R+4}, {sr(S_WS,4)}, s60 offen sc1")
    A("s_nop 1")
    A.lab("L_INIT1")
    for r in range(144): A(f"v_mov_b32 v{r}, 0")
    A("s_call_b64 s[76:77], L_ATTINIT")
    A("s_lshr_b32 s60, s22, 1")
    A("s_and_b32 s61, s22, 1")

VW = 144
def gen_wsetup(A):
    T = 158
    A("s_bfe_u32 s62, s22, 0x10001")
    A("s_and_b32 s63, s22, 1")
    A("s_cmp_lt_u32 s21, 6")
    A("s_cbranch_scc1 LL_Q")
    A("s_cmp_eq_u32 s63, 0")
    A(f"s_cselect_b32 s{S_W}, s12, s14")
    A(f"s_cselect_b32 s{S_W+1}, s13, s15")
    A(f"s_mov_b32 s{S_W+2}, {512*1376*2:#x}")
    A("s_sub_u32 s64, s21, 6")
    A(f"s_mul_i32 s64, s64, {9*32}")
    A(f"s_mov_b32 s65, {2752-288}")
    A(f"v_mul_u32_u24 v{T+2}, 3641, v{L}")
    A(f"v_lshl_add_u32 v{T+3}, v{L}, 4, s64")
    for i in range(9):
        A(f"v_add_u32 v{T+4}, {64*i*3641}, v{T+2}")
        A(f"v_lshrrev_b32 v{T+4}, 16, v{T+4}")
        A(f"v_add_u32 v{T+5}, {1024*i}, v{T+3}")
        A(f"v_mad_u32_u24 v{VW+i}, v{T+4}, s65, v{T+5}")
    A(f"v_and_b32 v{T+2}, 3, v{L}")
    A(f"v_min_u32 v{T+2}, 2, v{T+2}")
    A("s_mov_b32 s65, 2752")
    A(f"s_mov_b32 s68, {32*2752}")
    A("s_branch LL_C")
    A.lab("LL_Q")
    A(f"s_mov_b32 s{S_W}, s6")
    A(f"s_mov_b32 s{S_W+1}, s7")
    A(f"s_mov_b32 s{S_W+2}, {512*1536*2:#x}")
    A(f"v_lshrrev_b32 v{T+3}, 4, v{L}")
    A(f"v_mul_u32_u24 v{T+2}, 3072, v{T+3}")
    A(f"v_bfe_u32 v{T+4}, v{L}, 2, 2")
    A(f"v_xor_b32 v{T+4}, v{T+4}, v{T+3}")
    A(f"v_lshl_add_u32 v{T+2}, v{T+4}, 6, v{T+2}")
    A(f"v_and_b32 v{T+3}, 3, v{L}")
    A(f"v_lshl_add_u32 v{T+2}, v{T+3}, 4, v{T+2}")
    A("s_lshl_b32 s64, s21, 9")
    A("s_lshl_b32 s65, s63, 8")
    A("s_add_u32 s64, s64, s65")
    A(f"v_add_u32 v{VW}, s64, v{T+2}")
    for i in range(1, 9): A(f"v_add_u32 v{VW+i}, {i*4*3072}, v{VW}")
    A(f"v_and_b32 v{T+2}, 1, v{L}")
    A("s_mov_b32 s65, 3072")
    A(f"s_mov_b32 s68, {32*3072}")
    A.lab("LL_C")
    A("s_and_b32 s66, s20, 3")
    A("s_lshl_b32 s66, s66, 3")
    A(f"v_lshrrev_b32 v{T+3}, 2, v{L}")
    A(f"v_add_u32 v{T+3}, s66, v{T+3}")
    A(f"v_mul_u32_u24 v{T+3}, s65, v{T+3}")
    A(f"v_lshl_add_u32 v{T+3}, v{T+2}, 7, v{T+3}")
    A(f"v_add_u32 v{VW+9}, s64, v{T+3}")
    A(f"s_mov_b32 s{S_W+3}, 0x00020000")
    A(f"s_mul_i32 s71, s62, {WSL}")
    A(f"s_mul_i32 s66, s63, {UPOFF}")
    A("s_add_u32 s71, s71, s66")
    A(f"s_add_u32 s71, s71, {WR}")
    A("s_mov_b32 s72, s71")
    A(f"s_add_u32 s73, s71, {6*WSL}")
    A("s_mul_i32 s74, s62, s68")
    A("s_lshl_b32 s68, s68, 1")

W_PREFETCH = ["s_add_u32 s67, s74, s68", "s_mov_b32 exec_hi, 0",
              f"buffer_load_dword v253, v{VW+9}, {sr(S_W,4)}, s67 offen", "s_mov_b64 exec, -1"]
_dma_n = [0]
def dma_piece(i): return [f"s_add_u32 m0, s72, {i*1024}", "s_nop 0", f"buffer_load_dwordx4 v{VW+i}, {sr(S_W,4)}, s74 offen lds"]
DMA_TAIL = ["s_add_u32 s74, s74, s68", f"s_add_u32 s72, s72, {2*WSL}", "s_cmp_eq_u32 s72, s73", "s_cselect_b32 s72, s71, s72"]
def dma_groups(first):
    g = [dma_piece(i) for i in range(first, 9)]
    _dma_n[0] += 1
    lab = f"LL_D{_dma_n[0]}"
    g[-1] = ["s_cmp_lt_u32 s21, 6", f"s_cbranch_scc1 {lab}"] + g[-1] + [lab + ":"] + DMA_TAIL
    return g
def mix(A, work, groups, every):
    groups = list(groups)
    for n, w in enumerate(work):
        if isinstance(every, (list, tuple)):
            for _ in range(every.count(n)):
                if groups: A.many(groups.pop(0))
        elif groups and n % every == 0: A.many(groups.pop(0))
        A(w)
    for g in groups: A.many(g)

HREG = 184
HOFF = [52, 53, 54, 55, 56, 57, 58, 59, 10]
def h_offsets(A):
    tiles = [(lu*2+lt, lu, lt) for lu in range(4) for lt in range(2)] + [(8, 4, 0)]
    for (tile, lu, lt) in tiles:
        A("s_add_u32 s66, s64, 8" if lu == 4 else f"s_add_u32 s66, s65, {lu}")
        A("s_lshl_b32 s67, s66, 10")
        A(f"s_add_u32 s67, s67, s{62+lt}")
        A(f"s_cmp_lt_u32 s66, {NFU}")
        A(f"s_cselect_b32 s{HOFF[tile]}, s67, 0x7fff0000")

SJ = 184
def side_setup(A):
    A("s_mul_i32 s75, s20, 10")
    A("s_add_u32 s75, s75, s21")
    A("s_sub_u32 s75, s75, 6")
    A("s_mul_i32 s75, s75, 3")
    A("s_add_u32 s75, s75, s60")
    A("s_sub_u32 s75, s75, 1")
    A(f"v_lshrrev_b32 v245, 5, v{L}")
    A("v_lshlrev_b32 v245, 10, v245")
    A(f"v_and_b32 v246, 31, v{L}")
    A("v_lshl_add_u32 v245, v246, 4, v245")
    for jb in range(2):
        S = 4 if jb else S_W
        A(f"s_add_u32 s90, s75, {480*jb}")
        A("s_cmp_lt_u32 s90, 256")
        A(f"s_cselect_b32 s{S}, s8, s16")
        A(f"s_cselect_b32 s{S+1}, s9, s17")
        csel(A, S+2, 512*512*2, 1376*512*2)
        A(f"s_mov_b32 s{S+3}, 0x00020000")
        csel(A, 91, WOF, WDF)
        csel(A, 67, 32*2048, NFU*2048)
        A("s_cselect_b32 s70, 0, 256")
        A("s_sub_u32 s70, s90, s70")
        A("s_lshr_b32 s94, s70, 3")
        A("s_and_b32 s70, s70, 7")
        A(f"s_lshl_b32 s{72+jb}, s94, 14")
        A("s_lshl_b32 s95, s70, 7")
        A(f"s_add_u32 s{72+jb}, s{72+jb}, s95")
        A("s_mul_i32 s70, s70, s67")
        A("s_lshl_b32 s94, s94, 11")
        A("s_add_u32 s70, s70, s94")
        A("s_add_u32 s70, s70, s91")
        A(f"s_cmp_lt_u32 s90, {256+8*NFU}")
        A(f"s_cselect_b32 s{92+jb}, s70, 0x7fff0000")
def side_prefetch(A):
    A("s_mov_b64 exec, 0xffff")
    A(f"buffer_load_dword v253, v245, {sr(S_T1,4)}, s81 offen")
    A(f"buffer_load_dword v253, v245, {sr(S_T2,4)}, s82 offen")
    A("s_mov_b64 exec, -1")
def side_loads(A, jb):
    S = 4 if jb else S_W
    for rho in range(16):
        hh = (rho >> 2) & 1; j = (rho & 3) + 4*(rho >> 3)
        d = SJ + 16*jb + 8*(j & 1) + 4*hh + (j >> 1)
        A(f"buffer_load_ushort v{d}, v244, {sr(S,4)}, s{72+jb} offen offset:{(rho&3)*1024}")
        if (rho & 3) == 3: A(f"s_add_u32 s{72+jb}, s{72+jb}, 4096")
def side_combine(A):
    for jb in range(2):
        d = SJ + 16*jb
        for i in range(8): A(f"v_lshl_or_b32 v{d+i}, v{d+8+i}, 16, v{d+i}")
        A(f"s_mov_b32 s{HOFF[4*jb]}, s{92+jb}")
        A(f"s_add_u32 s{HOFF[4*jb+1]}, s{92+jb}, 512")
    A("v_mov_b32 v249, v245")

def gen_compute(A, kind):
    F = kind == "F"
    ROLE[0] = kind[0]
    NW = 5 if F else 4
    ND = 9 if F else 8
    XS = [176, 184]; WSET = [192, 212]
    XA = 232; XB = 236; WA = 240; T0 = 244
    KQ = 1152 if F else 1024
    US = 32
    P = "L1" + kind
    t, h, sw = T0, T0+1, T0+2
    A(f"v_and_b32 v{t}, 31, v{L}")
    A(f"v_lshrrev_b32 v{h}, 5, v{L}")
    A(f"v_bfe_u32 v{sw}, v{t}, 1, 3")
    A(f"v_xor_b32 v{sw}, v{sw}, v{h}")
    A(f"v_lshlrev_b32 v{T0+3}, 7, v{t}")
    A("s_lshl_b32 s62, s22, 12")
    for s in range(4):
        A(f"v_xor_b32 v{T0+4}, {2*s}, v{sw}")
        A(f"v_lshl_add_u32 v{T0+4}, v{T0+4}, 4, v{T0+3}")
        A(f"v_add_u32 v{XA+s}, s62, v{T0+4}")
        A(f"v_xor_b32 v{XB+s}, 0x1000, v{XA+s}")
    if F:
        A(f"v_bfe_u32 v{T0+5}, v{L}, 2, 2")
        A(f"v_mul_u32_u24 v{T0+5}, 288, v{T0+5}")
        A(f"v_and_b32 v{T0+3}, 3, v{L}")
        A(f"v_lshl_add_u32 v{T0+3}, v{T0+3}, 3, v{T0+5}")
        A(f"v_bfe_u32 v{T0+4}, v{L}, 4, 1")
        A(f"v_mul_u32_u24 v{T0+4}, {UPOFF}, v{T0+4}")
        A(f"v_add_u32 v{T0+3}, v{T0+3}, v{T0+4}")
    else:
        A(f"v_bfe_u32 v{T0+5}, v{L}, 2, 2")
        A(f"v_and_b32 v{T0+3}, 3, v{L}")
        A(f"v_lshlrev_b32 v{T0+3}, 3, v{T0+3}")
        A(f"v_lshl_add_u32 v{T0+3}, v{T0+5}, 8, v{T0+3}")
        A(f"v_bfe_u32 v{T0+4}, v{L}, 4, 1")
        A(f"v_lshl_add_u32 v{T0+3}, v{T0+4}, 5, v{T0+3}")
    A(f"v_mul_u32_u24 v{T0+4}, {2*KQ}, v{h}")
    A(f"v_add_u32 v{T0+3}, v{T0+3}, v{T0+4}")
    A(f"v_add_u32 v{T0+3}, {WR}, v{T0+3}")
    if F:
        A(f"s_mul_i32 s62, s61, {4*US}")
        A(f"v_add_u32 v{WA}, s62, v{T0+3}")
        A(f"v_add_u32 v{WA+1}, {8*US}, v{T0+3}")
    else:
        A(f"s_mul_i32 s62, s61, {UPOFF}")
        A(f"v_add_u32 v{T0+3}, s62, v{T0+3}")
        for lu in range(4):
            A(f"v_xor_b32 v{T0+4}, {lu}, v{T0+5}")
            A(f"v_lshl_add_u32 v{WA+lu}, v{T0+4}, 6, v{T0+3}")
    VO = 249
    if kind == "QK":
        A(f"v_and_b32 v{T0+6}, 0x33, v{L}")
        A(f"v_bfe_u32 v{T0+7}, v{L}, 2, 1")
        A(f"v_lshl_or_b32 v{T0+6}, v{T0+7}, 3, v{T0+6}")
        A(f"v_bfe_u32 v{T0+7}, v{L}, 3, 1")
        A(f"v_lshl_or_b32 v{T0+6}, v{T0+7}, 2, v{T0+6}")
        A("s_cmp_lt_u32 s21, 2")
        A("s_cselect_b64 vcc, -1, 0")
        A(f"v_cndmask_b32 v{VO}, v{T0+6}, v{L}, vcc")
        A(f"v_lshlrev_b32 v{VO}, 4, v{VO}")
    elif kind == "V":
        A(f"v_and_b32 v{VO}, 15, v{L}")
        A(f"v_lshlrev_b32 v{VO}, 4, v{VO}")
        A(f"v_lshl_or_b32 v{VO}, v{h}, 8, v{VO}")
        A(f"v_bfe_u32 v{T0+6}, v{L}, 4, 1")
        A(f"v_lshl_or_b32 v{VO}, v{T0+6}, 16, v{VO}")
    else:
        A(f"v_lshlrev_b32 v{VO}, 4, v{L}")
    A("s_lshl_b32 s68, s20, 2")
    A("s_add_u32 s68, s68, s22")
    A("s_xor_b32 s69, s68, 1")
    if not F:
        A("s_lshl_b32 s70, s21, 20")
        A("s_lshl_b32 s71, s61, 19")
        A("s_add_u32 s70, s70, s71")
        A("s_lshl_b32 s68, s68, 10")
        A("s_lshl_b32 s69, s69, 10")
        A("s_add_u32 s68, s68, s70")
        A("s_add_u32 s69, s69, s70")
    A("s_mov_b32 s64, 0")
    A("s_mov_b32 s65, 0")

    def reads(st, s):
        r = []
        hs, sp = s >> 1, s & 1
        def wread(lu):
            a = WA + ((1 if lu == 4 else 0) if F else lu)
            base = hs*WSL + 4*sp*KQ + (lu*US if F and lu < 4 else 0)
            d = WSET[st] + 4*lu
            return [f"ds_read_b64_tr_b16 {vr(d,2)}, v{a} offset:{base}",
                    f"ds_read_b64_tr_b16 {vr(d+2,2)}, v{a} offset:{base+KQ}"]
        r.append(f"ds_read_b128 {vr(XS[st],4)}, v{XA+s}")
        r += wread(0)
        r.append(f"ds_read_b128 {vr(XS[st]+4,4)}, v{XB+s}")
        for lu in range(1, NW): r += wread(lu)
        return r
    def mfma(tile, w, x):
        a, b = (x, w) if kind == "V" else (w, x)
        return f"v_mfma_f32_32x32x16_bf16 {vr(16*tile,16)}, {vr(a,4)}, {vr(b,4)}, {vr(16*tile,16)}"
    def mfmas(st):
        m = [mfma(lu*2+lt, WSET[st]+4*lu, XS[st]+4*lt) for lu in range(4) for lt in range(2)]
        if F: m.append(mfma(8, WSET[st]+16, XS[st]))
        return m
    stamp(A, 1)
    A("s_waitcnt vmcnt(0) lgkmcnt(0)" if F else "s_waitcnt lgkmcnt(0)")
    A("s_barrier")
    stamp(A, 2)
    A.many(reads(0, 0))
    if F:
        A("s_sub_u32 s66, s2, 128")
        A("s_lshl_b32 s67, s22, 8")
        A("s_add_u32 s66, s66, s67")
        A(f"s_cmp_ge_u32 s66, {NZ}")
        A(f"s_cbranch_scc1 {P}_LOOP")
        A("s_lshl_b32 s66, s66, 2")
        A("s_mov_b64 exec, 1")
        A("v_mov_b32 v250, 1")
        A("v_mov_b32 v251, 0")
        A(f"buffer_store_dword v250, v251, {sr(S_DBG,4)}, s66 offen sc1")
        A("s_mov_b64 exec, -1")
    A.raw(".p2align 6")
    A.lab(P + "_LOOP")
    NR = 2*NW + 2
    PEEL = OPT["peel"] and not F
    NIT = 7 if PEEL else 8
    need = [3, 4, 6, 6, 8, 8, 10, 10, 12]
    for s in range(4):
        st = s & 1; nx = (s+1) & 3
        ms = mfmas(st); rd = reads(1-st, nx)
        n = len(ms)
        gaps = [[] for _ in ms]
        g0 = OPT["barpos"] if s == 3 else 0
        for i, r in enumerate(rd): gaps[g0 + i//2].append(r)
        xu = lambda k: [f"v_xor_b32 v{XA+k}, 0x4000, v{XA+k}", f"v_xor_b32 v{XB+k}, 0x4000, v{XB+k}"]
        if s < 3:
            gaps[n-2] += xu(nx)
        if s == 0: gaps[n-3] += xu(0)
        if s == 1:
            gaps[n-3] += ["s_cmp_eq_u32 s65, 2", f"s_mov_b32 s66, {2*WSL:#x}", f"s_cselect_b32 s66, {(-4*WSL) & 0xffffffff:#x}, s66"]
            gaps[n-1] += ["s_cselect_b32 s65, -1, s65", "s_add_u32 s65, s65, 1"]
        if s == 2:
            gaps[n-1] += [f"v_add_u32 v{WA+i}, s66, v{WA+i}" for i in range(2 if F else 4)]
        if s == 3:
            gaps[n-1] += ["s_add_u32 s64, s64, 1", f"s_cmp_lt_u32 s64, {NIT}"]
        issued = 0; done = 0
        for i, (m, g) in enumerate(zip(ms, gaps)):
            if need[i] > done:
                A(f"s_waitcnt lgkmcnt({min(15, NR - need[i] + issued)})"); done = need[i]
            A(m)
            if s == 3 and i == g0:
                A("s_waitcnt lgkmcnt(0)"); done = NR
                A("s_barrier")
            for x in g:
                A(x)
                if x.startswith("ds_"): issued += 1
    if OPT["prof"] and OPT["itstamp"]:
        A("s_memtime s[96:97]")
        A("s_memrealtime s[98:99]")
        A("s_add_u32 m0, s64, 19")
        A("s_waitcnt lgkmcnt(0)")
        A("v_writelane_b32 v255, s96, m0")
        A("s_add_u32 m0, s64, 51")
        A("s_nop 0")
        A("v_writelane_b32 v255, s98, m0")
        A(f"s_cmp_lt_u32 s64, {NIT}")
    A(f"s_cbranch_scc1 {P}_LOOP")
    stamp(A, 3)
    tiles = [(lu*2+lt, lu, lt) for lu in range(4) for lt in range(2)] + ([(8, 4, 0)] if F else [])
    if not F:
        def fin(tile, lu, lt):
            a = 16*tile
            g = [[f"v_cvt_pk_bf16_f32 v{a+i}, v{a+2*i}, v{a+2*i+1}" for i in range(4)],
                 [f"s_add_u32 s65, s{68+lt}, {lu*131072}", f"buffer_store_dwordx4 {vr(a,4)}, v{VO}, {sr(S_WS,4)}, s65 offen sc1"],
                 [f"v_cvt_pk_bf16_f32 v{a+8+i}, v{a+8+2*i}, v{a+9+2*i}" for i in range(4)]]
            if kind == "QK": g.append(["s_add_u32 s65, s65, 65536", f"buffer_store_dwordx4 {vr(a+8,4)}, v{VO}, {sr(S_WS,4)}, s65 offen sc1"])
            else: g.append([f"buffer_store_dwordx4 {vr(a+8,4)}, v{VO}, {sr(S_WS,4)}, s65 offen offset:512 sc1"])
            return g
        rest = tiles
        if PEEL:
            XR = {1: XS[1], 2: 128, 3: 136}
            WG = [[212, 216, 220], [224, 228, 208]]
            def wrd(lu):
                r = []
                for s in (1, 2, 3):
                    base = (s >> 1)*WSL + 4*(s & 1)*KQ; d = WG[lu & 1][s-1]
                    r += [f"ds_read_b64_tr_b16 {vr(d,2)}, v{WA+lu} offset:{base}", f"ds_read_b64_tr_b16 {vr(d+2,2)}, v{WA+lu} offset:{base+KQ}"]
                return r
            w0 = wrd(0); rd = []
            for s in (1, 2, 3):
                rd += [f"ds_read_b128 {vr(XR[s],4)}, v{XA+s}", f"ds_read_b128 {vr(XR[s]+4,4)}, v{XB+s}"] + w0[2*s-2:2*s]
            issued = 0; done = 0
            for i, m in enumerate(mfmas(0)):
                if need[i] > done:
                    A(f"s_waitcnt lgkmcnt({min(15, NR - need[i] + issued)})"); done = need[i]
                A(m)
                A.many(rd[2*i:2*i+2]); issued += len(rd[2*i:2*i+2])
            pend = []
            for lu in range(4):
                A("s_waitcnt lgkmcnt(0)")
                if lu == 3: A("s_barrier")
                nxt = wrd(lu+1) if lu < 3 else []
                for i, (s, lt) in enumerate((s, lt) for s in (1, 2, 3) for lt in range(2)):
                    A(mfma(lu*2+lt, WG[lu & 1][s-1], XR[s]+4*lt))
                    A.many(nxt[2*i:2*i+2])
                    if i == 2 and lu > 0:
                        A("s_nop 3")
                        for tl in tiles[2*(lu-1):2*lu]: pend += fin(*tl)
                    for _ in range(2 if i >= 3 else 1):
                        if pend: A.many(pend.pop(0))
            for g in pend: A.many(g)
            A("s_nop 7")
            rest = tiles[6:]
        for tl in rest:
            for g in fin(*tl): A.many(g)
        stamp(A, 4)
        if kind == "QK": A("s_branch L_SIGNAL")
    else:
        A(f"s_mul_i32 s62, s68, {NFU*1024}")
        A(f"s_mul_i32 s63, s69, {NFU*1024}")
        A(f"s_add_u32 s62, s62, {HF:#x}")
        A(f"s_add_u32 s63, s63, {HF:#x}")
        A("s_sub_u32 s64, s21, 6")
        A("s_mul_i32 s64, s64, 9")
        A("s_lshl_b32 s65, s61, 2")
        A("s_add_u32 s65, s65, s64")
        C1, C3, ONE, TT = 220, 222, 224, 176
        c1 = -2*0.7978845608028654*LOG2E
        A("s_waitcnt lgkmcnt(0)")
        for r, v in ((C1, c1), (C3, c1*0.044715), (ONE, 1.0)):
            A(f"v_mov_b32 v{r}, {f2u(v):#x}")
            A(f"v_mov_b32 v{r+1}, {f2u(v):#x}")
        dst = lambda tile: HREG + 4*tile
        h_offsets(A)
        for (tile, lu, lt) in tiles:
            a = 16*tile
            for i in range(4): A(f"v_pk_mul_f32 {vr(TT+2*i,2)}, {vr(a+2*i,2)}, {vr(a+2*i,2)}")
            for i in range(4): A(f"v_pk_fma_f32 {vr(TT+2*i,2)}, {vr(TT+2*i,2)}, {vr(C3,2)}, {vr(C1,2)}")
            for i in range(4): A(f"v_pk_mul_f32 {vr(TT+2*i,2)}, {vr(TT+2*i,2)}, {vr(a+2*i,2)}")
            for i in range(8): A(f"v_exp_f32 v{TT+i}, v{TT+i}")
            for i in range(4): A(f"v_pk_mul_f32 {vr(a+2*i,2)}, {vr(a+2*i,2)}, {vr(a+8+2*i,2)}")
            for i in range(4): A(f"v_pk_add_f32 {vr(TT+2*i,2)}, {vr(TT+2*i,2)}, {vr(ONE,2)}")
            for i in range(8): A(f"v_rcp_f32 v{TT+i}, v{TT+i}")
            A("s_nop 0")
            for i in range(4): A(f"v_pk_mul_f32 {vr(a+2*i,2)}, {vr(a+2*i,2)}, {vr(TT+2*i,2)}")
            for i in range(4): A(f"v_cvt_pk_bf16_f32 v{dst(tile)+i}, v{a+2*i}, v{a+2*i+1}")
        stamp(A, 4)

VX = 212; DW = 240; S1 = 216; S2 = 220; RR = 224; MR = 228; TL = 232
xreg = lambda c, i: (i*8 + c)*4
def xload_(A, i):
    A(f"s_add_u32 s{85+i}, s80, {i}")
    A(f"s_and_b32 s{85+i}, s{85+i}, 3")
    A(f"s_lshl_b32 s89, s{85+i}, 13")
    A("s_add_u32 s89, s89, s61")
    for c in range(8):
        A(f"buffer_load_dwordx4 {vr(xreg(c,i),4)}, v{VX}, {sr(S_X,4)}, s89 offen offset:{c*128}")
def loader_first(A):
    T = TL
    A("s_sub_u32 s60, s22, 4")
    A("s_lshl_b32 s61, s20, 17")
    A("s_lshl_b32 s62, s60, 15")
    A("s_add_u32 s61, s61, s62")
    A("s_lshr_b32 s80, s2, 5")
    A("s_waitcnt lgkmcnt(0)")
    srd(A, S_X, 4, 2048*512*2)
    xload_(A, 0); xload_(A, 1)

def gen_loader(A):
    ROLE[0] = "L"
    T = TL
    xload = lambda i: xload_(A, i)
    gen_wsetup(A)
    xload(2)
    A("s_cmp_lt_u32 s21, 2")
    A(f"s_cselect_b32 s69, {f2u(0.25*LOG2E):#x}, 1.0")
    A("s_lshr_b32 s64, s21, 1")
    A("s_cmp_eq_u32 s64, 2")
    A(f"s_cselect_b32 s69, {f2u(2.0**VSH):#x}, s69")
    for r in range(S1, S2+4): A(f"v_mov_b32 v{r}, 0")
    A("s_mov_b32 s78, 0x3f803f80")
    A("v_mov_b32 v249, 0")
    A(f"v_lshlrev_b32 v244, 1, v{L}")
    A("s_cmp_ge_u32 s21, 6")
    A("s_cselect_b32 s79, s60, 0")
    def norm(c, i):
        x = xreg(c, i); r = []
        for d in range(4):
            r.append(f"v_lshlrev_b32 v{T+2*d}, 16, v{x+d}")
            r.append(f"v_and_b32 v{T+2*d+1}, 0xffff0000, v{x+d}")
        for d in range(8): r.append(f"v_fma_f32 v{T+d}, v{T+d}, v{RR+i}, -v{MR+i}")
        for d in range(4): r.append(f"v_cvt_pk_bf16_f32 v{x+d}, v{T+2*d}, v{T+2*d+1}")
        if OPT["w64"]:
            r.insert(-2, f"ds_write_b64 v{DW+i}, {vr(x,2)} offset:{(c&1)*16384}")
            r.append(f"ds_write_b64 v{DW+i}, {vr(x+2,2)} offset:{(c&1)*16384+8}")
        else: r.append(f"ds_write_b128 v{DW+i}, {vr(x,4)} offset:{(c&1)*16384}")
        return r
    def dots(i):
        r = []
        for k in range(32):
            r.append(f"v_dot2c_f32_bf16 v{S2+i}, v{xreg(0,i)+k}, v{xreg(0,i)+k}")
            r.append(f"v_dot2c_f32_bf16 v{S1+i}, s78, v{xreg(0,i)+k}")
        return r
    A("s_waitcnt vmcnt(16)"); stamp(A, 16)
    xload(3)
    A.many(dots(0))
    A(f"v_lshrrev_b32 v{T+2}, 4, v{L}")
    A(f"v_xor_b32 v{T+2}, v{T+2}, v{T+1}")
    A(f"v_lshlrev_b32 v{T+3}, 7, v{T}")
    A("s_lshl_b32 s64, s60, 12")
    A(f"v_add_u32 v{T+3}, s64, v{T+3}")
    A(f"v_lshl_add_u32 v{T+3}, v{T+2}, 4, v{T+3}")
    for i in range(4):
        A(f"s_and_b32 s64, s{85+i}, 1")
        A("s_lshl_b32 s64, s64, 6")
        A(f"s_lshl_b32 s65, s{85+i}, 10")
        A("s_or_b32 s64, s64, s65")
        A(f"v_xor_b32 v{DW+i}, s64, v{T+3}")
    def vmw(base, tag):
        A(f"s_waitcnt vmcnt({base+9})")
        A("s_cmp_ge_u32 s21, 6")
        A(f"s_cbranch_scc1 {tag}")
        A(f"s_waitcnt vmcnt({base+8})")
        A.lab(tag)
    A("s_waitcnt vmcnt(16)"); stamp(A, 17)
    if OPT["wearly"]:
        mix(A, dots(1), dma_groups(0), 7)
        vmw(8, "LL_G2"); stamp(A, 18)
        A.many(dots(2))
    else:
        A.many(dots(1))
        A("s_waitcnt vmcnt(8)"); stamp(A, 18)
        mix(A, dots(2), dma_groups(0), 7)
    vmw(0, "LL_G3")
    stamp(A, 19)
    A.many(dots(3))
    A("s_nop 2")
    for ctl in ("quad_perm:[1,0,3,2]", "quad_perm:[2,3,0,1]", "row_half_mirror"):
        for r in range(S1, S2+4):
            A(f"v_add_f32_dpp v{r}, v{r}, v{r} {ctl} row_mask:0xf bank_mask:0xf")
    seq = [
        lambda i: f"v_mul_f32 v{S1+i}, {f2u(1/512):#x}, v{S1+i}",
        lambda i: f"v_mul_f32 v{S2+i}, {f2u(1/512):#x}, v{S2+i}",
        lambda i: f"v_fma_f32 v{S2+i}, -v{S1+i}, v{S1+i}, v{S2+i}",
        lambda i: f"v_max_f32 v{S2+i}, 0, v{S2+i}",
        lambda i: f"v_cvt_pk_bf16_f32 v{S2+i}, v{S1+i}, v{S2+i}",
        lambda i: f"v_lshlrev_b32 v{S1+i}, 16, v{S2+i}",
        lambda i: f"v_and_b32 v{S2+i}, 0xffff0000, v{S2+i}",
        lambda i: f"v_add_f32 v{S2+i}, {f2u(1e-5):#x}, v{S2+i}",
        lambda i: f"v_cvt_pk_bf16_f32 v{S2+i}, v{S2+i}, v{S2+i}",
        lambda i: f"v_and_b32 v{S2+i}, 0xffff0000, v{S2+i}",
        lambda i: f"v_sqrt_f32 v{S2+i}, v{S2+i}",
        lambda i: f"v_cvt_pk_bf16_f32 v{S2+i}, v{S2+i}, v{S2+i}",
        lambda i: f"v_and_b32 v{S2+i}, 0xffff0000, v{S2+i}",
        lambda i: f"v_rcp_f32 v{RR+i}, v{S2+i}",
        lambda i: f"v_mul_f32 v{RR+i}, s69, v{RR+i}",
        lambda i: f"v_mul_f32 v{MR+i}, v{S1+i}, v{RR+i}",
    ]
    for f in seq:
        for i in range(4): A(f(i))
    stamp(A, 1)
    mix(A, sum((norm(0, i) for i in range(4)), []), dma_groups(0), OPT["dmaevery"])
    if -1 in OPT["wpf"]: A.many(W_PREFETCH)
    stamp(A, 2)
    dbg_load = [f"buffer_load_dword v97, v96, {sr(S_DBG,4)}, 0 offen sc1"]
    for m in range(8):
        if m == 4: stamp(A, 29)
        A(f"s_waitcnt vmcnt({8 if m < 7 else 0}) lgkmcnt(0)")
        if m == 4: stamp(A, 30)
        if m == 5:
            A.many(ALL1(97))
            A("s_cbranch_scc1 LL_POLL0_OK")
            spin(A, "LL_POLL0", dbg_load, ALL1(97))
        A("s_barrier")
        if m == 3: stamp(A, 28)
        if m == 4: stamp(A, 31)
        if m == 7: break
        work = sum((norm(m+1, i) for i in range(4)), [])
        isw = lambda w: w.startswith("ds_")
        if OPT["exp"] == "wlast": work = [w for w in work if not isw(w)] + [w for w in work if isw(w)]
        if OPT["exp"] == "wfirst":
            if m == 0: A.many(work)
            else: A.many([w for w in work if isw(w)])
            work = [w for w in sum((norm(m+2, i) for i in range(4)), []) if not isw(w)] if m < 6 else []
        if OPT["exp"].startswith("grp"):
            dg = dma_groups(0) if m < 6 else []
            split = {"grp": [3,2,2,2,0], "grp2": [0,3,3,3,0], "grp3": [2,3,2,2,0], "grp4": [4,3,2,0,0]}[OPT["exp"]]
            for _ in range(split[0]):
                if dg: A.many(dg.pop(0))
            for i in range(4):
                nn = norm(m+1, i)
                A.many(nn[:-1])
                for _ in range(split[i+1]):
                    if dg: A.many(dg.pop(0))
                A(nn[-1])
            work = None
        if OPT["exp"] == "nonorm": work = []
        if OPT["exp"] == "nowrite": work = [w for w in work if not w.startswith("ds_")]
        if OPT["exp"] == "dmalast":
            A.many(work); work = []
        if OPT["exp"] == "dmafirst":
            mix(A, [], dma_groups(0) if m < 6 else [], 1); A.many(work); continue
        if work is not None: mix(A, work, dma_groups(0) if m < 6 else [], OPT["dmaevery"])
        if m in OPT["wpf"]: A.many(W_PREFETCH)
        if m == 3:
            A(f"v_min_u32 v96, {NZ-1}, v{L}")
            A("v_lshlrev_b32 v96, 2, v96")
            A.many(dbg_load)
    A("s_mov_b32 s23, s79")
    side_setup(A)
    A("s_call_b64 s[76:77], L_ATTINIT")
    late_init(A)
    A("s_barrier")
    if OPT["b8prio"]: A("s_setprio 3")
    stamp(A, 3)
    A("s_cmp_eq_u32 s23, 0")
    A("s_cbranch_scc1 LL_S7")
    side_loads(A, 0)
    side_loads(A, 1)
    A.lab("LL_S7")
    A("s_cmp_lg_u32 s60, 0")
    A("s_cbranch_scc1 LL_WAITGO")
    A("v_mov_b32 v96, 0")
    A("s_bfe_u32 s64, s2, 0x10004")
    A("s_lshl_b32 s64, s64, 5")
    A("s_and_b32 s65, s2, 15")
    A("s_add_u32 s64, s64, s65")
    A("s_bfe_u32 s65, s2, 0x10005")
    A("s_lshl_b32 s65, s65, 4")
    A("s_add_u32 s64, s64, s65")
    A("s_lshl_b32 s64, s64, 7")
    A(f"s_add_u32 s64, s64, {QCNT:#x}")
    if OPT["qsch"] == "E":
        A(f"s_and_b32 s64, s64, {(~(24*128)) & 0xffffffff:#x}")
        spin(A, "LL_POLL", [f"buffer_load_dword v97, v96, {sr(S_WS,4)}, s64 offen sc1"], ALL1(97))
    else: spin3(A, "LL_POLL", [0, 1, 2], 96, "s64", 48)
    A(f"v_mov_b32 v96, {SW}")
    A("v_mov_b32 v97, 1")
    A("ds_write_b32 v96, v97 offset:4")
    A("s_branch LL_GO")
    A.lab("LL_WAITGO")
    A(f"v_mov_b32 v96, {SW}")
    A(f"s_mov_b32 s70, {SPIN_MAX*16}")
    A.lab("LL_WG1")
    A("ds_read_b32 v97, v96 offset:4")
    A("s_waitcnt lgkmcnt(0)")
    A("v_readfirstlane_b32 s65, v97")
    A("s_cmp_lg_u32 s65, 0")
    A("s_cbranch_scc1 LL_GO")
    A("s_sleep 1")
    A("s_sub_u32 s70, s70, 1")
    A("s_cmp_lg_u32 s70, 0")
    A("s_cbranch_scc1 LL_WG1")
    A.lab("LL_GO")
    stamp(A, 4)
    A("s_and_b32 s64, s2, 31")
    A("s_lshl_b32 s64, s64, 16")
    A("s_lshl_b32 s65, s60, 11")
    A("s_add_u32 s64, s64, s65")
    A("s_lshr_b32 s66, s2, 5")
    A("s_lshl_b32 s66, s66, 13")
    A("s_add_u32 s66, s66, s64")
    A(f"s_add_u32 m0, s65, {QOFF}")
    A(f"s_add_u32 s67, s64, {KF:#x}")
    A(f"buffer_load_dwordx4 v95, {sr(S_WS,4)}, s66 offen sc1 lds")
    A(f"buffer_load_dwordx4 v95, {sr(S_WS,4)}, s66 offen offset:1024 sc1 lds")
    A(f"s_add_u32 s68, s64, {VF:#x}")
    for c in range(2):
        A(f"s_add_u32 m0, s65, {c*8192}")
        A("s_nop 0")
        A(f"buffer_load_dwordx4 v95, {sr(S_WS,4)}, s67 offen sc1 lds")
        A(f"buffer_load_dwordx4 v95, {sr(S_WS,4)}, s67 offen offset:1024 sc1 lds")
        A(f"s_add_u32 m0, s65, {65536 + c*8192}")
        A("s_add_u32 s67, s67, 8192")
        A(f"buffer_load_dwordx4 v95, {sr(S_WS,4)}, s68 offen sc1 lds")
        A(f"buffer_load_dwordx4 v95, {sr(S_WS,4)}, s68 offen offset:1024 sc1 lds")
        A("s_add_u32 s68, s68, 8192")
    A("s_cmp_eq_u32 s23, 0")
    A("s_cbranch_scc1 L_P0")
    A("s_waitcnt vmcnt(10)")
    side_combine(A)


WSC = lambda: "" if OPT["wl1"] else " sc1"
def down_loads(A, slot):
    A(f"buffer_load_dwordx4 {vr(DH[slot],4)}, v{L16}, {sr(S_T1,4)}, s84 offen sc1")
    A(f"buffer_load_dwordx4 {vr(DW_[slot],4)}, v{L16}, {sr(S_T2,4)}, s85 offen{WSC()}")
    A(f"buffer_load_dwordx4 {vr(DW_[slot]+4,4)}, v{L16}, {sr(S_T2,4)}, s85 offen offset:1024{WSC()}")
    A("s_add_u32 s84, s84, 1024")
    A("s_add_u32 s85, s85, 2048")

def kv_piece(k):
    if k & 1: return ["s_add_u32 m0, s95, 65536", "s_add_u32 s94, s94, 8192",
                      f"buffer_load_dwordx4 v{L16}, {sr(S_WS,4)}, s60 offen sc1 lds", "s_add_u32 s95, s95, 8192"]
    return ["s_mov_b32 m0, s95", f"s_add_u32 s60, s94, {VF-KF:#x}", f"buffer_load_dwordx4 v{L16}, {sr(S_WS,4)}, s94 offen sc1 lds"]
HPOLL = lambda: apoll(101, 100, "s75", 15)

def attn_body(A, mode):
    hs = 0
    for t in range(8):
        p = t & 1
        down = mode in "BC" or (mode == "2" and t >= 4)
        cur, prv = S_[p], S_[1-p]
        ex = lambda a, b: [A(f"v_exp_f32 v{cur+i}, v{cur+i}") for i in range(a, b)]
        if p == 0: A(f"s_setprio {3 - (t >> 1)}")
        A("s_waitcnt lgkmcnt(3)")
        ex(0, 2)
        if not (mode == "0" and t == 0):
            A(f"v_smfmac_f32_32x32x32_bf16 {vr(O_,16)}, {vr(V1[1-p],4)}, {vr(prv+8,8)}, v{IDX}")
        if mode == "0" and t < 6: A.many(kv_piece(2*t))
        ex(2, 6 if down else 7)
        A(f"v_mfma_f32_32x32x16_bf16 {vr(prv,16)}, {vr(KB[1-p],4)}, {vr(Q_,4)}, {vr(C_,16)}")
        skip = OPT["halfkv"] and (t & 2) and mode == "B"
        if not skip: A(f"ds_read_b128 {vr(KB[1-p],4)}, v{KA} offset:{(t+3)*1024}")
        if mode == "0" and t < 6: A.many(kv_piece(2*t+1))
        ex(6 if down else 7, 10 if down else 12)
        A(f"v_smfmac_f32_32x32x32_bf16 {vr(O_,16)}, {vr(V0[p],4)}, {vr(cur,8)}, v{IDX}")
        if not skip:
            A("s_mov_b64 exec, s[80:81]")
            A(f"ds_read_b128 {vr(V0[p],4)}, v{VA} offset:{(t+2)*1024}")
            A(f"ds_read_b128 {vr(V1[1-p],4)}, v{VA} offset:{(t+1)*1024+512}")
            A("s_mov_b64 exec, -1")
        if mode == "0":
            if t == 7:
                A(f"buffer_store_dwordx4 {vr(DH[0],4)}, v{L16}, {sr(S_WS,4)}, s11 offen sc1")
            for _ in range(OPT["hplan"][t]):
                A(f"buffer_store_dwordx4 {vr(HREG+4*hs,4)}, v249, {sr(S_WS,4)}, s{HOFF[hs]} offen sc1"); hs += 1
        if mode == "2" and t < 4: down_loads(A, (t + 2) & 3)
        if mode == "C":
            if t == 0: A(f"buffer_load_dwordx4 {vr(XV,4)}, v252, {sr(S_X,4)}, s88 offen")
            for i in range(2):
                A(f"buffer_load_dwordx4 {vr(WO+8*t+4*i,4)}, v{L16}, {sr(S_WS,4)}, s90 offen offset:{(2*p+i)*1024}{WSC()}")
            if p: A("s_add_u32 s90, s90, 4096")
        if down:
            ex(10, 14)
            sl = t >> 1
            if p == 0: A(f"s_waitcnt vmcnt({12 + sl if mode == 'C' else 9})")
            cc = "0" if (mode == "2" and t < 6) else vr(DACC+16*p,16)
            if "m" not in OPT["nodown"]: A(f"v_mfma_f32_32x32x16_bf16 {vr(DACC+16*p,16)}, {vr(DW_[sl]+4*p,4)}, {vr(DH[sl],4)}, {cc}")
            if mode != "C" and p == 1 and "l" not in OPT["nodown"]: down_loads(A, sl)
            ex(14, 16)
        else:
            ex(12, 16)
        if mode == "1" and t == OPT["sigt"]:
            A("s_waitcnt vmcnt(0)")
            A("s_barrier")
            A("s_cmp_lg_u32 s22, 0")
            A("s_cbranch_scc1 L_NOSIG")
            A("s_mov_b64 exec, 0xff")
            A("v_mov_b32 v97, 1")
            A(f"v_lshlrev_b32 v96, 10, v{L}")
            A(f"buffer_atomic_add v97, v96, {sr(S_WS,4)}, s91 offen")
            A("s_mov_b64 exec, -1")
            A.lab("L_NOSIG")
        if mode == "1" and t == 6:
            A("s_cmp_lg_u32 s22, 0")
            A("s_cbranch_scc1 L_NOPQ")
            A(f"v_lshlrev_b32 v100, 7, v{L}")
            A.many(HPOLL())
            A.lab("L_NOPQ")
        if mode == "1" and t == 7:
            stamp(A, 8)
            A("s_cmp_lg_u32 s22, 0")
            A("s_cbranch_scc1 L_HPOLL_OK")
            spin(A, "L_HPOLL2", HPOLL(), acmp(101, 64, 15), first_loaded=True)
            if OPT["wl1"] == 2:
                A("buffer_inv sc1")
                A("s_waitcnt vmcnt(0)")
            A.lab("L_HPOLL_OK")
            A("s_barrier")
            stamp(A, 9)
    if mode == "0": assert hs == 9
    if mode != "C":
        A(f"v_add_u32 v{KA}, 8192, v{KA}")
        A(f"v_add_u32 v{VA}, 8192, v{VA}")
        A("s_add_u32 s83, s83, 1")

def late_init(A):
    A(f"v_lshlrev_b32 v{L16}, 4, v{L}")
    A(f"v_mov_b32 v{IDX}, 0xdddd")
    A(f"v_and_b32 v98, 15, v{L}")
    A("v_lshlrev_b32 v98, 4, v98")
    A(f"v_lshrrev_b32 v99, 5, v{L}")
    A("v_lshl_or_b32 v98, v99, 8, v98")
    A("v_add_u32 v98, 65536, v98")
    A(f"v_add_u32 v99, s15, v{L16}")
    A(f"v_add_u32 v102, s16, v{L16}")
    A(f"v_and_b32 v103, 7, v{L}")
    A(f"v_mul_u32_u24 v103, {RP}, v103")
    A(f"v_lshrrev_b32 v100, 3, v{L}")
    A("v_lshl_add_u32 v103, v100, 4, v103")
    A("v_add_u32 v103, s17, v103")
    A(f"v_mov_b32 v{KA}, v{L16}")
    A(f"v_mov_b32 v{VA}, v98")
    A("v_mov_b32 v100, 0xff800000")
    A("v_mov_b32 v101, 0xff800000")
    for r in range(4): A(f"v_mov_b32 v{DH[0]+r}, -1")

def gen_attinit(A):
    A.lab("L_ATTINIT")
    for r in range(O_, O_+32): A(f"v_mov_b32 v{r}, 0")
    A("s_mov_b32 s80, 0x00110000")
    A("s_mov_b32 s81, 0x00110000")
    A("s_mov_b64 exec, s[80:81]")
    for r in range(V0[0], V0[0]+16): A(f"v_mov_b32 v{r}, 0x3f803f80")
    A("s_mov_b64 exec, -1")
    A("s_mov_b32 s80, 0xffff")
    A("s_mov_b32 s81, 0xffff")
    A("s_mov_b32 s78, 1")
    A(f"s_mov_b32 s79, {f2u(-OPT['bias']):#x}")
    A("s_mov_b32 s82, 1")
    A(f"v_and_b32 v251, 7, v{L}")
    A(f"v_lshrrev_b32 v252, 3, v{L}")
    A("v_lshlrev_b32 v252, 10, v252")
    A("v_lshl_add_u32 v252, v251, 4, v252")
    A("s_lshl_b32 s15, s22, 10")
    A(f"s_add_u32 s15, s15, {QOFF}")
    A("s_and_b32 s91, s20, 3")
    A("s_lshl_b32 s91, s91, 7")
    A(f"s_add_u32 s91, s91, {QFLAG+4*128:#x}")
    A("s_and_b32 s75, s2, 7")
    A("s_lshl_b32 s75, s75, 10")
    A(f"s_add_u32 s75, s75, {QFLAG+4*128:#x}")
    A("s_lshr_b32 s61, s2, 5")
    A("s_lshl_b32 s61, s61, 3")
    A("s_add_u32 s61, s61, s22")
    A("s_lshl_b32 s61, s61, 5")
    A("s_and_b32 s62, s2, 31")
    A("s_add_u32 s61, s61, s62")
    A("s_lshl_b32 s11, s61, 10")
    A(f"s_add_u32 s11, s11, {OF:#x}")
    A("s_and_b32 s94, s2, 31")
    A("s_lshl_b32 s94, s94, 16")
    A("s_lshl_b32 s95, s22, 10")
    A("s_add_u32 s95, s95, 16384")
    A("s_add_u32 s94, s94, s95")
    A(f"s_add_u32 s94, s94, {KF:#x}")
    A("s_and_b32 s67, s2, 7")
    A("s_bfe_u32 s61, s2, 0x20003")
    A("s_lshl_b32 s67, s67, 2")
    A("s_add_u32 s67, s67, s61")
    A("s_lshr_b32 s61, s2, 5")
    A("s_and_b32 s62, s22, 1")
    A("s_lshl_b32 s67, s67, 1")
    A("s_add_u32 s67, s67, s62")
    A("s_lshr_b32 s62, s22, 1")
    A("s_mul_i32 s63, s62, 22")
    A("s_cmp_eq_u32 s62, 3")
    A("s_cselect_b32 s63, 65, s63")
    A("s_cmp_lt_u32 s62, 2")
    A("s_cselect_b32 s64, 22, 21")
    A(f"s_mul_i32 s65, s67, {NFU}")
    A("s_add_u32 s65, s65, s63")
    A("s_lshl_b32 s65, s65, 10")
    A(f"s_add_u32 s65, s65, {HF:#x}")
    A(f"s_add_u32 s{S_T1}, s18, s65")
    A(f"s_addc_u32 s{S_T1+1}, s19, 0")
    A(f"s_lshl_b32 s{S_T1+2}, s64, 10")
    A(f"s_mov_b32 s{S_T1+3}, 0x00020000")
    A(f"s_mul_i32 s65, s61, {NFU}")
    A("s_add_u32 s65, s65, s63")
    A("s_lshl_b32 s65, s65, 11")
    A(f"s_add_u32 s65, s65, {WDF:#x}")
    A(f"s_add_u32 s{S_T2}, s18, s65")
    A(f"s_addc_u32 s{S_T2+1}, s19, 0")
    A(f"s_lshl_b32 s{S_T2+2}, s64, 11")
    A(f"s_mov_b32 s{S_T2+3}, 0x00020000")
    A("s_mov_b32 s84, 0")
    A("s_mov_b32 s85, 0")
    A("s_lshl_b32 s90, s61, 16")
    A("s_lshl_b32 s66, s62, 14")
    A("s_add_u32 s90, s90, s66")
    A(f"s_add_u32 s90, s90, {WOF:#x}")
    A("s_lshl_b32 s87, s67, 15")
    A("s_lshl_b32 s66, s62, 13")
    A("s_add_u32 s87, s87, s66")
    A(f"s_add_u32 s87, s87, {OF:#x}")
    A("s_lshl_b32 s88, s67, 15")
    A("s_lshl_b32 s66, s61, 7")
    A("s_add_u32 s88, s88, s66")
    A("s_lshl_b32 s66, s62, 13")
    A("s_add_u32 s88, s88, s66")
    A("s_add_u32 s13, s87, 4096")
    red_addr(A)
    A("s_setpc_b64 s[76:77]")

def gen_attn(A):
    A("s_waitcnt lgkmcnt(0)")
    late_init(A)
    A.lab("L_P0")
    stamp(A, 5)
    A("s_waitcnt vmcnt(0)")
    A("s_barrier")
    stamp(A, 6)
    A(f"ds_read_b128 {vr(Q_,4)}, v99")
    A.lab("L_MAXLOOP")
    A(f"ds_read_b128 {vr(KB[0],4)}, v{KA}")
    A(f"ds_read_b128 {vr(KB[1],4)}, v{KA} offset:1024")
    A("s_mov_b64 exec, s[80:81]")
    A(f"ds_read_b128 {vr(V0[0],4)}, v{VA}")
    A("s_mov_b64 exec, -1")
    A("s_waitcnt lgkmcnt(2)")
    A(f"v_mfma_f32_32x32x16_bf16 {vr(S_[0],16)}, {vr(KB[0],4)}, {vr(Q_,4)}, 0")
    A("s_waitcnt lgkmcnt(1)")
    A(f"v_mfma_f32_32x32x16_bf16 {vr(C_,16)}, {vr(KB[1],4)}, {vr(Q_,4)}, 0")
    A(f"v_subrev_u32 v{KA}, 2048, v{KA}")
    A("s_nop 9")
    for i in range(8): A(f"v_max3_f32 v100, v{2*i}, v{2*i+1}, v100")
    for i in range(8): A(f"v_max3_f32 v101, v{C_+2*i}, v{C_+2*i+1}, v101")
    A("s_sub_u32 s78, s78, 1")
    A("s_cmp_lg_u32 s78, 0")
    A("s_cbranch_scc1 L_MAXLOOP")
    A("v_max_f32 v100, v100, v101")
    A(f"v_mov_b32 v{KA}, v{L16}")
    A("v_mov_b32 v101, v100")
    A("s_nop 1")
    A("v_permlane32_swap_b32 v100, v101")
    A("s_nop 1")
    A("v_max_f32 v100, v100, v101")
    for r in range(16): A(f"v_sub_f32 v{C_+r}, s79, v100")
    A("s_nop 1")
    A(f"v_mfma_f32_32x32x16_bf16 {vr(S_[0],16)}, {vr(KB[0],4)}, {vr(Q_,4)}, {vr(C_,16)}")
    A(f"ds_read_b128 {vr(KB[0],4)}, v{KA} offset:2048")
    A("s_mov_b64 exec, s[80:81]")
    A(f"ds_read_b128 {vr(V0[1],4)}, v{VA} offset:1024")
    A(f"ds_read_b128 {vr(V1[0],4)}, v{VA} offset:512")
    A("s_mov_b64 exec, -1")
    A("s_mov_b32 s83, 0")
    stamp(A, 7)
    A("s_nop 4")
    A("s_cmp_eq_u32 s82, 0")
    A("s_cbranch_scc1 L_LOOPP")
    attn_body(A, "0")
    attn_body(A, "1")
    attn_body(A, "2")
    A.lab("L_LOOPB")
    attn_body(A, "B")
    if OPT["prof"] and OPT["bstamp"]:
        A("s_memtime s[96:97]")
        A("s_memrealtime s[98:99]")
        A("s_add_u32 m0, s83, 17")
        A("s_waitcnt lgkmcnt(0)")
        A("v_writelane_b32 v255, s96, m0")
        A("s_add_u32 m0, s83, 49")
        A("s_nop 0")
        A("v_writelane_b32 v255, s98, m0")
    A("s_cmp_lt_u32 s83, 7")
    A("s_cbranch_scc1 L_LOOPB")
    attn_body(A, "C")
    A.lab("L_ATT_DONE")
    A("s_waitcnt lgkmcnt(0)")
    stamp(A, 10)
    A(f"v_smfmac_f32_32x32x32_bf16 {vr(O_,16)}, {vr(V1[1],4)}, {vr(S_[1]+8,8)}, v{IDX}")
    A("s_setprio 3")
    A(f"v_mov_b32 v96, {f2u(2.0**90):#x}")
    A(f"v_mov_b32 v97, {f2u(2.0**120):#x}")
    A(f"v_mov_b32 v99, {f2u(2.0**-100):#x}")
    A("s_nop 7")
    A(f"v_rcp_f32 v101, v{O_+8}")
    A("s_nop 0")
    A(f"v_mul_f32 v101, {f2u(2.0**-VSH):#x}, v101")
    for r in range(8): A(f"v_mul_f32 v{r}, v{O_+r}, v101")
    for i in range(4): A(f"v_cvt_pk_bf16_f32 v{8+i}, v{2*i}, v{2*i+1}")
    A("s_cmp_eq_u32 s82, 0")
    A("s_cbranch_scc1 L_FIN")
    A(f"v_add_f32 v100, abs(v{O_}), abs(v{O_+1})")
    for r in range(2, 8): A(f"v_add_f32 v100, v100, abs(v{O_+r})")
    A(f"v_cmp_nlt_f32 s[62:63], v{O_+8}, v96")
    A("v_cmp_nlt_f32 s[64:65], v100, v97")
    A("v_cmp_lt_f32 vcc, v100, v99")
    A("s_or_b64 s[62:63], s[62:63], s[64:65]")
    A("s_or_b64 s[62:63], s[62:63], vcc")
    A("s_cmp_eq_u64 s[62:63], 0")
    if not OPT["force_fallback"]: A("s_cbranch_scc1 L_FIN")
    A("s_mov_b32 s78, 32")
    A("s_mov_b32 s79, 0")
    A("s_mov_b32 s82, 0")
    A(f"v_mov_b32 v{VA}, v98")
    A("v_mov_b32 v100, 0xff800000")
    A("v_mov_b32 v101, 0xff800000")
    for r in range(16): A(f"v_mov_b32 v{O_+r}, 0")
    for r in range(8, 16): A(f"v_mov_b32 v{S_[1]+r}, 0")
    A(f"v_add_u32 v{KA}, {62*1024}, v{L16}")
    A("s_branch L_MAXLOOP")
    A.lab("L_FIN")
    A(f"buffer_store_dwordx4 {vr(8,4)}, v{L16}, {sr(S_WS,4)}, s11 offen sc1")

RP = 1056
RS = 8*RP
def red_addr(A):
    A("s_and_b32 s62, s22, 1")
    A("s_lshr_b32 s63, s22, 1")
    A(f"s_mul_i32 s62, s62, {4*RS}")
    A(f"s_mul_i32 s64, s63, {RS}")
    A("s_add_u32 s16, s64, s62")
    A("s_lshl_b32 s64, s63, 7")
    A("s_add_u32 s17, s64, s62")
def red_write(A, acc):
    for p in range(8): A(f"ds_write_b128 v102, {vr(acc+4*p,4)} offset:{p*RP}")
def red_read(A, dst):
    for s in range(4):
        for h in range(2):
            A(f"ds_read_b128 {vr(dst+8*s+4*h,4)}, v103 offset:{s*RS + h*512}")
def red_sum(A, dst):
    for r in range(8):
        A(f"v_add_f32 v{dst+r}, v{dst+r}, v{dst+8+r}")
        A(f"v_add_f32 v{dst+16+r}, v{dst+16+r}, v{dst+24+r}")
    for r in range(8): A(f"v_add_f32 v{dst+r}, v{dst+r}, v{dst+16+r}")
def round_bf16(A, regs, tmp):
    for i in range(4): A(f"v_cvt_pk_bf16_f32 v{tmp+i}, v{regs+2*i}, v{regs+2*i+1}")
    for i in range(4):
        A(f"v_lshlrev_b32 v{regs+2*i}, 16, v{tmp+i}")
        A(f"v_and_b32 v{regs+2*i+1}, 0xffff0000, v{tmp+i}")

OB = 16
def o_load(A, s):
    A(f"buffer_load_dwordx4 {vr(OB+4*s,4)}, v{L16}, {sr(S_WS,4)}, s{87 if s < 4 else 13} offen offset:{(s&3)*1024} sc1")
def gen_final(A):
    stamp(A, 11)
    if OPT["oearly"]:
        for s in range(8): o_load(A, s)
    A("s_barrier")
    red_write(A, DACC)
    if not OPT["oearly"]:
        for s in range(8): o_load(A, s)
    A("s_waitcnt lgkmcnt(0)")
    A("s_barrier")
    G = DACC; T = 136
    red_read(A, G)
    A("s_waitcnt vmcnt(9)")
    A(f"v_add_u32 v102, {8*RS}, v102")
    A(f"v_add_u32 v103, {8*RS}, v103")
    for i in range(4):
        A(f"v_lshlrev_b32 v{144+2*i}, 16, v{XV+i}")
        A(f"v_and_b32 v{145+2*i}, 0xffff0000, v{XV+i}")
    A("s_waitcnt lgkmcnt(0)")
    B = Asm()
    red_sum(B, G)
    round_bf16(B, G, T)
    for r in range(8): B(f"v_mul_f32 v{T+r}, {f2u(-LOG2E):#x}, v{G+r}")
    for r in range(8): B(f"v_exp_f32 v{T+r}, v{T+r}")
    for r in range(8): B(f"v_add_f32 v{T+r}, 1.0, v{T+r}")
    for r in range(8): B(f"v_rcp_f32 v{T+r}, v{T+r}")
    for r in range(8): B(f"v_mul_f32 v{G+r}, v{G+r}, v{T+r}")
    round_bf16(B, G, T)
    gw = [x.strip() for x in B.l]
    A.many(gw)
    stamp(A, 12)
    ACC = 104
    A(f"s_mov_b32 s70, {SPIN_MAX}")
    for s in range(8):
        o = OB + 4*s
        A.lab(f"L_OW{s}")
        A(f"s_waitcnt vmcnt({7-s})")
        A(f"v_max3_u32 v96, v{o}, v{o+1}, v{o+2}")
        A(f"v_max_u32 v96, v96, v{o+3}")
        A("v_cmp_eq_u32 vcc, -1, v96")
        A("s_cmp_lg_u64 vcc, 0")
        A(f"s_cbranch_scc1 L_OR{s}")
        A.lab(f"L_OK{s}")
        for nt in range(2):
            c = "0" if s == 0 else vr(ACC+16*nt,16)
            A(f"v_mfma_f32_32x32x16_bf16 {vr(ACC+16*nt,16)}, {vr(WO+8*s+4*nt,4)}, {vr(o,4)}, {c}")
    stamp(A, 13)
    A("s_nop 11")
    red_write(A, ACC)
    A("s_waitcnt lgkmcnt(0)")
    A("s_barrier")
    red_read(A, 0)
    A("s_waitcnt lgkmcnt(0)")
    red_sum(A, 0)
    round_bf16(A, 0, T)
    for r in range(8): A(f"v_mul_f32 v{r}, v{r}, v{G+r}")
    round_bf16(A, 0, T)
    for r in range(8): A(f"v_add_f32 v{r}, v{r}, v{144+r}")
    for i in range(4): A(f"v_cvt_pk_bf16_f32 v{T+i}, v{2*i}, v{2*i+1}")
    A(f"buffer_store_dwordx4 {vr(T,4)}, v252, {sr(S_OUT,4)}, s88 offen{OPT['outfl']}")
    if OPT["fixdur"]:
        A.lab("L_FIXDUR")
        A("s_memrealtime s[96:97]")
        A("s_waitcnt lgkmcnt(0)")
        A("s_sub_u32 s96, s96, s100")
        A(f"s_cmp_lt_u32 s96, {OPT['fixdur']}")
        A("s_cbranch_scc1 L_FIXDUR")
    if OPT["prof"]:
        stamp(A, 14)
        A(f"s_add_u32 s{S_T1}, s18, {PROF_OFF:#x}")
        A(f"s_addc_u32 s{S_T1+1}, s19, 0")
        A(f"s_mov_b32 s{S_T1+2}, 0x100000")
        A(f"s_mov_b32 s{S_T1+3}, 0x00020000")
        A("s_lshl_b32 s60, s2, 3")
        A("s_add_u32 s60, s60, s22")
        A("s_lshl_b32 s60, s60, 8")
        A(f"v_lshlrev_b32 v0, 2, v{L}")
        A(f"buffer_store_dword v255, v0, {sr(S_T1,4)}, s60 offen")
        if OPT["dbgout"]:
            A("s_cmp_lg_u32 s2, 200")
            A("s_cbranch_scc1 L_END")
            A("s_cmp_lg_u32 s22, 0")
            A("s_cbranch_scc1 L_END")
            A("v_readlane_b32 s61, v255, 32")
            A("v_readlane_b32 s63, v255, 0")
            A("v_mov_b32 v1, 0")
            A("s_mov_b64 exec, 1")
            for n, i in enumerate((2, 3, 4, 6, 9, 10, 12, 14)):
                A(f"v_readlane_b32 s62, v255, {32+i}")
                A("s_sub_u32 s62, s62, s61")
                A("v_mov_b32 v2, s62")
                A(f"buffer_store_dword v2, v1, {sr(S_DBG,4)}, 0 offen offset:{32+4*n}")
                A("s_nop 1")
            A("v_readlane_b32 s62, v255, 14")
            A("s_sub_u32 s62, s62, s63")
            A("v_mov_b32 v2, s62")
            A(f"buffer_store_dword v2, v1, {sr(S_DBG,4)}, 0 offen offset:28")

def gen_hooks(A):
    gen_attinit(A)
    for s in range(8):
        A.lab(f"L_OR{s}")
        A("s_sub_u32 s70, s70, 1")
        A("s_cmp_lt_i32 s70, 0")
        A(f"s_cbranch_scc1 L_OK{s}")
        A("s_waitcnt vmcnt(0)")
        A(f"s_sleep {OPT['osleep']}")
        for k in range(s, 8): o_load(A, k)
        A(f"s_branch L_OW{s}")
    A.lab("L_LOOPP")
    attn_body(A, "P")
    A("s_cmp_lt_u32 s83, 8")
    A("s_cbranch_scc1 L_LOOPP")
    A("s_branch L_ATT_DONE")
    A.lab("L_CODE_END")

def main(out):
    hdr = open(f"cdna_kernels/{NAME}.s.ref").read().split("\n")
    head = [l for l in hdr if l.startswith(";") and "@launch" not in l]
    head += [f"; @launch grid=(256,1,1) block=(512,1,1) lds={LDS_BYTES}"]
    A = Asm()
    d = gen(A)
    open(out, "w").write("\n".join(head) + '\n.amdgcn_target "amdgcn-amd-amdhsa--gfx950"\n' + A.text() + d)

if __name__ == "__main__":
    for a in sys.argv[2:]:
        k, _, v = a.partition("=")
        OPT[k] = eval(v) if v else True
    main(sys.argv[1] if len(sys.argv) > 1 else f"cdna_kernels/{NAME}.s")
```

```python
import sys, struct

NAME = "recurrent_scan__softmax_full_mha__glu_gated_geglu__prompt"
MB = 1 << 20
QF, KF, VF, OF, WOF, WDF, HF, FLAGS = 0, 2*MB, 4*MB, 6*MB, 8*MB, 9*MB, 11*MB, 17*MB
WS_BYTES = 18*MB
NFU = 86
LOG2E = 1.4426950408889634
def f2u(x): return struct.unpack("<I", struct.pack("<f", x))[0]

OPT = dict(prof=False, bias=98.0, force_fallback=False, sleep=2, barpos=1, itstamp=False, hplan=[1,1,1,1,1,1,2,1], sigt=1, kvplan=[[1,4],[2,3,4,5]], psleep=3, gpre=100, gper=5, wearly=False, peel=True, wl1=0, nodown='', halfkv=False, b8prio=True, qsch='D', outfl=' nt', oearly=0, mimic=False, gpre0=64, woplan=[2,2,2,2,2,2,2,2], rwplan=[0,0,0,0,2,2,2,2], osleep=2, spf=False, prefetch=False, dmaevery=12, dbgout=False, fixdur=0, codepf=True, noload=False, bstamp=False, pace=None, wpf=[], exp='', w64=False, lprio=0, enc=-1, encrole='', cmap=True, prio='ramp2')
PROF_OFF = 24*MB
SPIN_MAX = 20000
VSH = 32

class Asm:
    def __init__(self): self.l = []
    def __call__(self, s): self.l.append(s if s.endswith(":") else "    " + s)
    def many(self, ss):
        for s in ss: self(s)
    def lab(self, s): self.l.append(s + ":")
    def raw(self, s): self.l.append(s)
    def text(self): return "\n".join(self.l) + "\n"
def vr(a, n): return f"v[{a}:{a+n-1}]"
def sr(a, n): return f"s[{a}:{a+n-1}]"
def srd(A, d, base, nbytes):
    A(f"s_mov_b32 s{d}, s{base}")
    A(f"s_mov_b32 s{d+1}, s{base+1}")
    A(f"s_mov_b32 s{d+2}, {nbytes:#x}")
    A(f"s_mov_b32 s{d+3}, 0x00020000")
def csel(A, d, a, b):
    A(f"s_mov_b32 s{d}, {b:#x}")
    A(f"s_cselect_b32 s{d}, {a:#x}, s{d}")
ROLE = [""]
def stamp(A, i):
    if OPT["enc"] == i and (not OPT["encrole"] or ROLE[0] in OPT["encrole"]):
        A("s_memrealtime s[100:101]")
        A("s_waitcnt lgkmcnt(0)")
    if not OPT["prof"]: return
    A("s_memtime s[96:97]")
    A("s_memrealtime s[98:99]")
    A("s_waitcnt lgkmcnt(0)")
    A(f"v_writelane_b32 v255, s96, {i}")
    A(f"v_writelane_b32 v255, s98, {32+i}")

WR = 32768
WSL = 18560
UPOFF = 9344
QOFF = 135168
SCRATCH = 147456
SW = 163584
LDS_BYTES = 163840
QFLAG = FLAGS
QCNT = QFLAG + 64*128
NZ = 2
S_X, S_W, S_WS, S_DBG, S_OUT, S_T1, S_T2 = 24, 28, 32, 36, 40, 44, 48
L = 254
S_ = [0, 16]; C_ = 32; DACC = 48; Q_ = 80; KB = [84, 88]; O_ = 144; V0 = [160, 164]; V1 = [168, 172]
IDX, KA, VA, L16 = 92, 93, 94, 95
DH = [104, 116, 128, 140]; DW_ = [108, 120, 132, 176]
WO = 184; XV = 248

def spin(A, tag, loads, cmp_lines, first_loaded=False):
    A(f"s_mov_b32 s70, {SPIN_MAX}")
    if not first_loaded: A.many(loads)
    A.lab(tag)
    A("s_waitcnt vmcnt(0)")
    A.many(cmp_lines)
    A(f"s_cbranch_scc1 {tag}_OK")
    A(f"s_sleep {OPT['sleep']}")
    A.many(loads)
    A("s_sub_u32 s70, s70, 1")
    A("s_cmp_lg_u32 s70, 0")
    A(f"s_cbranch_scc1 {tag}")
    A.lab(tag + "_OK")
def spin3(A, tag, regs, voff, soff, n, primed=0):
    A(f"s_mov_b32 s70, {SPIN_MAX}")
    for r in regs[primed:2]:
        A.many(apoll(r, voff, soff, 1))
        A(f"s_sleep {OPT['psleep']}")
    A.lab(tag)
    for k in range(3):
        A.many(apoll(regs[(k+2) % 3], voff, soff, 1))
        A("s_waitcnt vmcnt(2)")
        A.many(acmp(regs[k], n, 1))
        A(f"s_cbranch_scc1 {tag}_OK")
        A(f"s_sleep {OPT['psleep']}")
    A("s_sub_u32 s70, s70, 1")
    A("s_cmp_lg_u32 s70, 0")
    A(f"s_cbranch_scc1 {tag}")
    A.lab(tag + "_OK")
def apoll(dst, voff, soff, mask):
    return [f"v_mov_b32 v{dst}, 0", f"s_mov_b64 exec, {mask}",
            f"buffer_atomic_add v{dst}, v{voff}, {sr(S_WS,4)}, {soff} offen sc0", "s_mov_b64 exec, -1"]
def acmp(v, n, mask):
    return [f"v_cmp_eq_u32 vcc, {n}, v{v}", f"s_cmp_eq_u64 vcc, {mask}"]
ALL1 = lambda v: [f"v_cmp_ne_u32 vcc, 1, v{v}", "s_cmp_eq_u64 vcc, 0"]

def last_wave_signals(A, tag, off, last):
    A(f"v_mov_b32 v96, {SW}")
    A("v_mov_b32 v97, 1")
    A("s_mov_b64 exec, 1")
    A(f"ds_add_rtn_u32 v100, v96, v97 offset:{off}")
    A("s_waitcnt lgkmcnt(0)")
    A("s_mov_b64 exec, -1")
    A("v_readfirstlane_b32 s60, v100")
    A(f"s_cmp_lg_u32 s60, {last}")
    A(f"s_cbranch_scc1 {tag}")
    A(f"v_lshlrev_b32 v96, 7, v{L}")
    if OPT["qsch"] == "E":
        A("s_mov_b64 exec, 1")
        A("v_mov_b32 v100, 1")
        A(f"buffer_atomic_add v100, v96, {sr(S_WS,4)}, s14 offen offset:{31*128} sc0")
        A("s_waitcnt vmcnt(0)")
        A("s_mov_b64 exec, -1")
        A("v_readfirstlane_b32 s60, v100")
        A("s_cmp_lg_u32 s60, 47")
        A(f"s_cbranch_scc1 {tag}")
        A("s_mov_b64 exec, 0xff")
        A(f"buffer_store_dword v97, v96, {sr(S_WS,4)}, s14 offen sc1")
    else:
        A("s_mov_b32 exec_hi, 0")
        A(f"buffer_atomic_add v97, v96, {sr(S_WS,4)}, s14 offen")
    A("s_mov_b64 exec, -1")
    A.lab(tag)

def gen(A):
    name = NAME + "_kernel"
    A.raw(".text"); A.raw(f".globl {name}"); A.raw(".p2align 8"); A.raw(f".type {name},@function")
    A.lab(name)
    A("s_cmp_ge_u32 s2, 256")
    A("s_cbranch_scc1 L_END")
    if OPT["fixdur"]: A("s_memrealtime s[100:101]")
    A("s_load_dwordx4 s[4:7], s[0:1], 0")
    A("s_load_dwordx2 s[8:9], s[0:1], 16")
    A("s_load_dwordx4 s[12:15], s[0:1], 32")
    A("s_load_dwordx4 s[52:55], s[0:1], 48")
    A("s_load_dwordx4 s[56:59], s[0:1], 64")
    if OPT["prof"]: A("v_mov_b32 v255, 0")
    stamp(A, 0)
    A("s_getpc_b64 s[60:61]")
    A.lab("L_PC")
    A("s_lshr_b32 s23, s2, 3")
    A("s_lshl_b32 s62, s23, 11")
    A("v_lshl_add_u32 v250, v0, 7, s62")
    A("v_cmp_gt_u32 s[62:63], 16, v0")
    A("v_cmp_gt_u32 vcc, L_CODE_END-L_PC-4, v250")
    A("v_lshrrev_b32 v252, 6, v0")
    A(f"v_and_b32 v{L}, 63, v0")
    A("s_and_b64 exec, vcc, s[62:63]")
    A("s_cbranch_execz L_NOPF")
    A("v_mov_b32 v251, s61")
    A("v_add_co_u32 v250, vcc, s60, v250")
    A("v_addc_co_u32 v251, vcc, 0, v251, vcc")
    A("global_load_dword v253, v[250:251], off")
    A.lab("L_NOPF")
    A("s_mov_b64 exec, -1")
    A("v_readfirstlane_b32 s22, v252")
    T = TL
    A(f"v_lshrrev_b32 v{T}, 3, v{L}")
    A(f"v_and_b32 v{T+1}, 7, v{L}")
    A(f"v_lshlrev_b32 v{VX}, 10, v{T}")
    A(f"v_lshl_add_u32 v{VX}, v{T+1}, 4, v{VX}")
    A("s_bfe_u32 s20, s2, 0x20001")
    A("s_lshl_b32 s20, s20, 2")
    A("s_and_b32 s60, s23, 3")
    A("s_add_u32 s20, s20, s60")
    A("s_cmp_lt_u32 s22, 4")
    A("s_cbranch_scc1 L_COMMON")
    loader_first(A)
    A.lab("L_COMMON")
    A("s_lshr_b32 s62, s23, 2")
    A("s_and_b32 s63, s2, 1")
    A("s_lshl_b32 s21, s62, 1")
    A("s_add_u32 s21, s21, s63")
    A("s_mul_i32 s63, s63, 5")
    A("s_add_u32 s63, s63, s62")
    A("s_add_u32 s63, s63, 3")
    A("s_cmp_ge_u32 s62, 3")
    A("s_cselect_b32 s21, s63, s21")
    A("s_waitcnt lgkmcnt(0)")
    srd(A, S_X, 4, 2048*512*2)
    A("s_mov_b64 s[16:17], s[52:53]")
    A("s_mov_b64 s[18:19], s[58:59]")
    srd(A, S_WS, 58, WS_BYTES)
    srd(A, S_DBG, 56, 256)
    srd(A, S_OUT, 54, 2048*512*2)
    srd(A, S_T1, 58, 0)
    srd(A, S_T2, 58, 0)
    for r in HOFF: A(f"s_mov_b32 s{r}, 0x7fff0000")
    A("s_cmp_lt_u32 s22, 4")
    A("s_cbranch_scc1 L_COMPUTE")
    gen_loader(A)
    A("s_branch L_P0")
    A.lab("L_COMPUTE")
    gen_init(A)
    A("s_cmp_ge_u32 s21, 6")
    A("s_cbranch_scc1 L_F")
    A("s_cmp_ge_u32 s21, 4")
    A("s_cbranch_scc1 L_V")
    gen_compute(A, "QK")
    A.lab("L_V")
    gen_compute(A, "V")
    A.lab("L_SIGNAL")
    A("s_and_b32 s14, s21, 1")
    A("s_lshl_b32 s14, s14, 12")
    A(f"s_add_u32 s14, s14, {QCNT:#x}")
    A("s_waitcnt vmcnt(0)")
    last_wave_signals(A, "L_SIG2", 0, 3)
    stamp(A, 15)
    A("s_branch L_P2")
    A.lab("L_F")
    gen_compute(A, "F")
    A.lab("L_P2")
    gen_attn(A)
    gen_final(A)
    A.lab("L_END")
    A("s_endpgm")
    gen_hooks(A)
    return f""".section .rodata,"a"
.p2align 6
.amdhsa_kernel {name}
  .amdhsa_next_free_vgpr 256
  .amdhsa_next_free_sgpr 102
  .amdhsa_accum_offset 256
  .amdhsa_group_segment_fixed_size 0
  .amdhsa_kernarg_size 80
  .amdhsa_user_sgpr_count 2
  .amdhsa_user_sgpr_kernarg_segment_ptr 1
  .amdhsa_system_sgpr_workgroup_id_x 1
.end_amdhsa_kernel
"""

def gen_init(A):
    R = 160
    A("s_cmp_lg_u32 s22, 0")
    A("s_cbranch_scc1 L_INIT1")
    for r in range(R, R+4): A(f"v_mov_b32 v{r}, 0")
    A(f"v_mov_b32 v{R+4}, {SW}")
    A(f"ds_write_b128 v{R+4}, {vr(R,4)}")
    A("s_sub_u32 s61, s2, 128")
    A(f"s_cmp_ge_u32 s61, {NZ}")
    A("s_cbranch_scc1 L_INIT1")
    A(f"v_lshlrev_b32 v{R+4}, 7, v{L}")
    A("s_lshl_b32 s60, s61, 13")
    A(f"s_add_u32 s60, s60, {FLAGS:#x}")
    A(f"buffer_store_dword v{R}, v{R+4}, {sr(S_WS,4)}, s60 offen sc1")
    A("s_nop 1")
    A.lab("L_INIT1")
    for r in range(144): A(f"v_mov_b32 v{r}, 0")
    A("s_call_b64 s[76:77], L_ATTINIT")
    A("s_lshr_b32 s60, s22, 1")
    A("s_and_b32 s61, s22, 1")

VW = 144
def gen_wsetup(A):
    T = 158
    A("s_bfe_u32 s62, s22, 0x10001")
    A("s_and_b32 s63, s22, 1")
    A("s_cmp_lt_u32 s21, 6")
    A("s_cbranch_scc1 LL_Q")
    A("s_cmp_eq_u32 s63, 0")
    A(f"s_cselect_b32 s{S_W}, s12, s14")
    A(f"s_cselect_b32 s{S_W+1}, s13, s15")
    A(f"s_mov_b32 s{S_W+2}, {512*1376*2:#x}")
    A("s_sub_u32 s64, s21, 6")
    A(f"s_mul_i32 s64, s64, {9*32}")
    A(f"s_mov_b32 s65, {2752-288}")
    A(f"v_mul_u32_u24 v{T+2}, 3641, v{L}")
    A(f"v_lshl_add_u32 v{T+3}, v{L}, 4, s64")
    for i in range(9):
        A(f"v_add_u32 v{T+4}, {64*i*3641}, v{T+2}")
        A(f"v_lshrrev_b32 v{T+4}, 16, v{T+4}")
        A(f"v_add_u32 v{T+5}, {1024*i}, v{T+3}")
        A(f"v_mad_u32_u24 v{VW+i}, v{T+4}, s65, v{T+5}")
    A(f"v_and_b32 v{T+2}, 3, v{L}")
    A(f"v_min_u32 v{T+2}, 2, v{T+2}")
    A("s_mov_b32 s65, 2752")
    A(f"s_mov_b32 s68, {32*2752}")
    A("s_branch LL_C")
    A.lab("LL_Q")
    A(f"s_mov_b32 s{S_W}, s6")
    A(f"s_mov_b32 s{S_W+1}, s7")
    A(f"s_mov_b32 s{S_W+2}, {512*1536*2:#x}")
    A(f"v_lshrrev_b32 v{T+3}, 4, v{L}")
    A(f"v_mul_u32_u24 v{T+2}, 3072, v{T+3}")
    A(f"v_bfe_u32 v{T+4}, v{L}, 2, 2")
    A(f"v_xor_b32 v{T+4}, v{T+4}, v{T+3}")
    A(f"v_lshl_add_u32 v{T+2}, v{T+4}, 6, v{T+2}")
    A(f"v_and_b32 v{T+3}, 3, v{L}")
    A(f"v_lshl_add_u32 v{T+2}, v{T+3}, 4, v{T+2}")
    A("s_lshl_b32 s64, s21, 9")
    A("s_lshl_b32 s65, s63, 8")
    A("s_add_u32 s64, s64, s65")
    A(f"v_add_u32 v{VW}, s64, v{T+2}")
    for i in range(1, 9): A(f"v_add_u32 v{VW+i}, {i*4*3072}, v{VW}")
    A(f"v_and_b32 v{T+2}, 1, v{L}")
    A("s_mov_b32 s65, 3072")
    A(f"s_mov_b32 s68, {32*3072}")
    A.lab("LL_C")
    A("s_and_b32 s66, s20, 3")
    A("s_lshl_b32 s66, s66, 3")
    A(f"v_lshrrev_b32 v{T+3}, 2, v{L}")
    A(f"v_add_u32 v{T+3}, s66, v{T+3}")
    A(f"v_mul_u32_u24 v{T+3}, s65, v{T+3}")
    A(f"v_lshl_add_u32 v{T+3}, v{T+2}, 7, v{T+3}")
    A(f"v_add_u32 v{VW+9}, s64, v{T+3}")
    A(f"s_mov_b32 s{S_W+3}, 0x00020000")
    A(f"s_mul_i32 s71, s62, {WSL}")
    A(f"s_mul_i32 s66, s63, {UPOFF}")
    A("s_add_u32 s71, s71, s66")
    A(f"s_add_u32 s71, s71, {WR}")
    A("s_mov_b32 s72, s71")
    A(f"s_add_u32 s73, s71, {6*WSL}")
    A("s_mul_i32 s74, s62, s68")
    A("s_lshl_b32 s68, s68, 1")

W_PREFETCH = ["s_add_u32 s67, s74, s68", "s_mov_b32 exec_hi, 0",
              f"buffer_load_dword v253, v{VW+9}, {sr(S_W,4)}, s67 offen", "s_mov_b64 exec, -1"]
_dma_n = [0]
def dma_piece(i): return [f"s_add_u32 m0, s72, {i*1024}", "s_nop 0", f"buffer_load_dwordx4 v{VW+i}, {sr(S_W,4)}, s74 offen lds"]
DMA_TAIL = ["s_add_u32 s74, s74, s68", f"s_add_u32 s72, s72, {2*WSL}", "s_cmp_eq_u32 s72, s73", "s_cselect_b32 s72, s71, s72"]
def dma_groups(first):
    g = [dma_piece(i) for i in range(first, 9)]
    _dma_n[0] += 1
    lab = f"LL_D{_dma_n[0]}"
    g[-1] = ["s_cmp_lt_u32 s21, 6", f"s_cbranch_scc1 {lab}"] + g[-1] + [lab + ":"] + DMA_TAIL
    return g
def mix(A, work, groups, every):
    groups = list(groups)
    for n, w in enumerate(work):
        if isinstance(every, (list, tuple)):
            for _ in range(every.count(n)):
                if groups: A.many(groups.pop(0))
        elif groups and n % every == 0: A.many(groups.pop(0))
        A(w)
    for g in groups: A.many(g)

HREG = 184
HOFF = [52, 53, 54, 55, 56, 57, 58, 59, 10]
def h_offsets(A):
    tiles = [(lu*2+lt, lu, lt) for lu in range(4) for lt in range(2)] + [(8, 4, 0)]
    for (tile, lu, lt) in tiles:
        A("s_add_u32 s66, s64, 8" if lu == 4 else f"s_add_u32 s66, s65, {lu}")
        A("s_lshl_b32 s67, s66, 10")
        A(f"s_add_u32 s67, s67, s{62+lt}")
        A(f"s_cmp_lt_u32 s66, {NFU}")
        A(f"s_cselect_b32 s{HOFF[tile]}, s67, 0x7fff0000")

SJ = 184
def side_setup(A):
    A("s_mul_i32 s75, s20, 10")
    A("s_add_u32 s75, s75, s21")
    A("s_sub_u32 s75, s75, 6")
    A("s_mul_i32 s75, s75, 3")
    A("s_add_u32 s75, s75, s60")
    A("s_sub_u32 s75, s75, 1")
    A(f"v_lshrrev_b32 v245, 5, v{L}")
    A("v_lshlrev_b32 v245, 10, v245")
    A(f"v_and_b32 v246, 31, v{L}")
    A("v_lshl_add_u32 v245, v246, 4, v245")
    for jb in range(2):
        S = 4 if jb else S_W
        A(f"s_add_u32 s90, s75, {480*jb}")
        A("s_cmp_lt_u32 s90, 256")
        A(f"s_cselect_b32 s{S}, s8, s16")
        A(f"s_cselect_b32 s{S+1}, s9, s17")
        csel(A, S+2, 512*512*2, 1376*512*2)
        A(f"s_mov_b32 s{S+3}, 0x00020000")
        csel(A, 91, WOF, WDF)
        csel(A, 67, 32*2048, NFU*2048)
        A("s_cselect_b32 s70, 0, 256")
        A("s_sub_u32 s70, s90, s70")
        A("s_lshr_b32 s94, s70, 3")
        A("s_and_b32 s70, s70, 7")
        A(f"s_lshl_b32 s{72+jb}, s94, 14")
        A("s_lshl_b32 s95, s70, 7")
        A(f"s_add_u32 s{72+jb}, s{72+jb}, s95")
        A("s_mul_i32 s70, s70, s67")
        A("s_lshl_b32 s94, s94, 11")
        A("s_add_u32 s70, s70, s94")
        A("s_add_u32 s70, s70, s91")
        A(f"s_cmp_lt_u32 s90, {256+8*NFU}")
        A(f"s_cselect_b32 s{92+jb}, s70, 0x7fff0000")
def side_prefetch(A):
    A("s_mov_b64 exec, 0xffff")
    A(f"buffer_load_dword v253, v245, {sr(S_T1,4)}, s81 offen")
    A(f"buffer_load_dword v253, v245, {sr(S_T2,4)}, s82 offen")
    A("s_mov_b64 exec, -1")
def side_loads(A, jb):
    S = 4 if jb else S_W
    for rho in range(16):
        hh = (rho >> 2) & 1; j = (rho & 3) + 4*(rho >> 3)
        d = SJ + 16*jb + 8*(j & 1) + 4*hh + (j >> 1)
        A(f"buffer_load_ushort v{d}, v244, {sr(S,4)}, s{72+jb} offen offset:{(rho&3)*1024}")
        if (rho & 3) == 3: A(f"s_add_u32 s{72+jb}, s{72+jb}, 4096")
def side_combine(A):
    for jb in range(2):
        d = SJ + 16*jb
        for i in range(8): A(f"v_lshl_or_b32 v{d+i}, v{d+8+i}, 16, v{d+i}")
        A(f"s_mov_b32 s{HOFF[4*jb]}, s{92+jb}")
        A(f"s_add_u32 s{HOFF[4*jb+1]}, s{92+jb}, 512")
    A("v_mov_b32 v249, v245")

def gen_compute(A, kind):
    F = kind == "F"
    ROLE[0] = kind[0]
    NW = 5 if F else 4
    ND = 9 if F else 8
    XS = [176, 184]; WSET = [192, 212]
    XA = 232; XB = 236; WA = 240; T0 = 244
    KQ = 1152 if F else 1024
    US = 32
    P = "L1" + kind
    t, h, sw = T0, T0+1, T0+2
    A(f"v_and_b32 v{t}, 31, v{L}")
    A(f"v_lshrrev_b32 v{h}, 5, v{L}")
    A(f"v_bfe_u32 v{sw}, v{t}, 1, 3")
    A(f"v_xor_b32 v{sw}, v{sw}, v{h}")
    A(f"v_lshlrev_b32 v{T0+3}, 7, v{t}")
    A("s_lshl_b32 s62, s22, 12")
    for s in range(4):
        A(f"v_xor_b32 v{T0+4}, {2*s}, v{sw}")
        A(f"v_lshl_add_u32 v{T0+4}, v{T0+4}, 4, v{T0+3}")
        A(f"v_add_u32 v{XA+s}, s62, v{T0+4}")
        A(f"v_xor_b32 v{XB+s}, 0x1000, v{XA+s}")
    if F:
        A(f"v_bfe_u32 v{T0+5}, v{L}, 2, 2")
        A(f"v_mul_u32_u24 v{T0+5}, 288, v{T0+5}")
        A(f"v_and_b32 v{T0+3}, 3, v{L}")
        A(f"v_lshl_add_u32 v{T0+3}, v{T0+3}, 3, v{T0+5}")
        A(f"v_bfe_u32 v{T0+4}, v{L}, 4, 1")
        A(f"v_mul_u32_u24 v{T0+4}, {UPOFF}, v{T0+4}")
        A(f"v_add_u32 v{T0+3}, v{T0+3}, v{T0+4}")
    else:
        A(f"v_bfe_u32 v{T0+5}, v{L}, 2, 2")
        A(f"v_and_b32 v{T0+3}, 3, v{L}")
        A(f"v_lshlrev_b32 v{T0+3}, 3, v{T0+3}")
        A(f"v_lshl_add_u32 v{T0+3}, v{T0+5}, 8, v{T0+3}")
        A(f"v_bfe_u32 v{T0+4}, v{L}, 4, 1")
        A(f"v_lshl_add_u32 v{T0+3}, v{T0+4}, 5, v{T0+3}")
    A(f"v_mul_u32_u24 v{T0+4}, {2*KQ}, v{h}")
    A(f"v_add_u32 v{T0+3}, v{T0+3}, v{T0+4}")
    A(f"v_add_u32 v{T0+3}, {WR}, v{T0+3}")
    if F:
        A(f"s_mul_i32 s62, s61, {4*US}")
        A(f"v_add_u32 v{WA}, s62, v{T0+3}")
        A(f"v_add_u32 v{WA+1}, {8*US}, v{T0+3}")
    else:
        A(f"s_mul_i32 s62, s61, {UPOFF}")
        A(f"v_add_u32 v{T0+3}, s62, v{T0+3}")
        for lu in range(4):
            A(f"v_xor_b32 v{T0+4}, {lu}, v{T0+5}")
            A(f"v_lshl_add_u32 v{WA+lu}, v{T0+4}, 6, v{T0+3}")
    VO = 249
    if kind == "QK":
        A(f"v_and_b32 v{T0+6}, 0x33, v{L}")
        A(f"v_bfe_u32 v{T0+7}, v{L}, 2, 1")
        A(f"v_lshl_or_b32 v{T0+6}, v{T0+7}, 3, v{T0+6}")
        A(f"v_bfe_u32 v{T0+7}, v{L}, 3, 1")
        A(f"v_lshl_or_b32 v{T0+6}, v{T0+7}, 2, v{T0+6}")
        A("s_cmp_lt_u32 s21, 2")
        A("s_cselect_b64 vcc, -1, 0")
        A(f"v_cndmask_b32 v{VO}, v{T0+6}, v{L}, vcc")
        A(f"v_lshlrev_b32 v{VO}, 4, v{VO}")
    elif kind == "V":
        A(f"v_and_b32 v{VO}, 15, v{L}")
        A(f"v_lshlrev_b32 v{VO}, 4, v{VO}")
        A(f"v_lshl_or_b32 v{VO}, v{h}, 8, v{VO}")
        A(f"v_bfe_u32 v{T0+6}, v{L}, 4, 1")
        A(f"v_lshl_or_b32 v{VO}, v{T0+6}, 16, v{VO}")
    else:
        A(f"v_lshlrev_b32 v{VO}, 4, v{L}")
    A("s_lshl_b32 s68, s20, 2")
    A("s_add_u32 s68, s68, s22")
    A("s_xor_b32 s69, s68, 1")
    if not F:
        A("s_lshl_b32 s70, s21, 20")
        A("s_lshl_b32 s71, s61, 19")
        A("s_add_u32 s70, s70, s71")
        A("s_lshl_b32 s68, s68, 10")
        A("s_lshl_b32 s69, s69, 10")
        A("s_add_u32 s68, s68, s70")
        A("s_add_u32 s69, s69, s70")
    A("s_mov_b32 s64, 0")
    A("s_mov_b32 s65, 0")

    def reads(st, s):
        r = []
        hs, sp = s >> 1, s & 1
        def wread(lu):
            a = WA + ((1 if lu == 4 else 0) if F else lu)
            base = hs*WSL + 4*sp*KQ + (lu*US if F and lu < 4 else 0)
            d = WSET[st] + 4*lu
            return [f"ds_read_b64_tr_b16 {vr(d,2)}, v{a} offset:{base}",
                    f"ds_read_b64_tr_b16 {vr(d+2,2)}, v{a} offset:{base+KQ}"]
        r.append(f"ds_read_b128 {vr(XS[st],4)}, v{XA+s}")
        r += wread(0)
        r.append(f"ds_read_b128 {vr(XS[st]+4,4)}, v{XB+s}")
        for lu in range(1, NW): r += wread(lu)
        return r
    def mfma(tile, w, x):
        a, b = (x, w) if kind == "V" else (w, x)
        return f"v_mfma_f32_32x32x16_bf16 {vr(16*tile,16)}, {vr(a,4)}, {vr(b,4)}, {vr(16*tile,16)}"
    def mfmas(st):
        m = [mfma(lu*2+lt, WSET[st]+4*lu, XS[st]+4*lt) for lu in range(4) for lt in range(2)]
        if F: m.append(mfma(8, WSET[st]+16, XS[st]))
        return m
    stamp(A, 1)
    A("s_waitcnt vmcnt(0) lgkmcnt(0)" if F else "s_waitcnt lgkmcnt(0)")
    A("s_barrier")
    stamp(A, 2)
    A.many(reads(0, 0))
    if F:
        A("s_sub_u32 s66, s2, 128")
        A("s_lshl_b32 s67, s22, 8")
        A("s_add_u32 s66, s66, s67")
        A(f"s_cmp_ge_u32 s66, {NZ}")
        A(f"s_cbranch_scc1 {P}_LOOP")
        A("s_lshl_b32 s66, s66, 2")
        A("s_mov_b64 exec, 1")
        A("v_mov_b32 v250, 1")
        A("v_mov_b32 v251, 0")
        A(f"buffer_store_dword v250, v251, {sr(S_DBG,4)}, s66 offen sc1")
        A("s_mov_b64 exec, -1")
    A.raw(".p2align 6")
    A.lab(P + "_LOOP")
    NR = 2*NW + 2
    PEEL = OPT["peel"] and not F
    NIT = 7 if PEEL else 8
    need = [3, 4, 6, 6, 8, 8, 10, 10, 12]
    for s in range(4):
        st = s & 1; nx = (s+1) & 3
        ms = mfmas(st); rd = reads(1-st, nx)
        n = len(ms)
        gaps = [[] for _ in ms]
        g0 = OPT["barpos"] if s == 3 else 0
        for i, r in enumerate(rd): gaps[g0 + i//2].append(r)
        xu = lambda k: [f"v_xor_b32 v{XA+k}, 0x4000, v{XA+k}", f"v_xor_b32 v{XB+k}, 0x4000, v{XB+k}"]
        if s < 3:
            gaps[n-2] += xu(nx)
        if s == 0: gaps[n-3] += xu(0)
        if s == 1:
            gaps[n-3] += ["s_cmp_eq_u32 s65, 2", f"s_mov_b32 s66, {2*WSL:#x}", f"s_cselect_b32 s66, {(-4*WSL) & 0xffffffff:#x}, s66"]
            gaps[n-1] += ["s_cselect_b32 s65, -1, s65", "s_add_u32 s65, s65, 1"]
        if s == 2:
            gaps[n-1] += [f"v_add_u32 v{WA+i}, s66, v{WA+i}" for i in range(2 if F else 4)]
        if s == 3:
            gaps[n-1] += ["s_add_u32 s64, s64, 1", f"s_cmp_lt_u32 s64, {NIT}"]
        issued = 0; done = 0
        for i, (m, g) in enumerate(zip(ms, gaps)):
            if need[i] > done:
                A(f"s_waitcnt lgkmcnt({min(15, NR - need[i] + issued)})"); done = need[i]
            A(m)
            if s == 3 and i == g0:
                A("s_waitcnt lgkmcnt(0)"); done = NR
                A("s_barrier")
            for x in g:
                A(x)
                if x.startswith("ds_"): issued += 1
    if OPT["prof"] and OPT["itstamp"]:
        A("s_memtime s[96:97]")
        A("s_memrealtime s[98:99]")
        A("s_add_u32 m0, s64, 19")
        A("s_waitcnt lgkmcnt(0)")
        A("v_writelane_b32 v255, s96, m0")
        A("s_add_u32 m0, s64, 51")
        A("s_nop 0")
        A("v_writelane_b32 v255, s98, m0")
        A(f"s_cmp_lt_u32 s64, {NIT}")
    A(f"s_cbranch_scc1 {P}_LOOP")
    stamp(A, 3)
    tiles = [(lu*2+lt, lu, lt) for lu in range(4) for lt in range(2)] + ([(8, 4, 0)] if F else [])
    if not F:
        def fin(tile, lu, lt):
            a = 16*tile
            g = [[f"v_cvt_pk_bf16_f32 v{a+i}, v{a+2*i}, v{a+2*i+1}" for i in range(4)],
                 [f"s_add_u32 s65, s{68+lt}, {lu*131072}", f"buffer_store_dwordx4 {vr(a,4)}, v{VO}, {sr(S_WS,4)}, s65 offen sc1"],
                 [f"v_cvt_pk_bf16_f32 v{a+8+i}, v{a+8+2*i}, v{a+9+2*i}" for i in range(4)]]
            if kind == "QK": g.append(["s_add_u32 s65, s65, 65536", f"buffer_store_dwordx4 {vr(a+8,4)}, v{VO}, {sr(S_WS,4)}, s65 offen sc1"])
            else: g.append([f"buffer_store_dwordx4 {vr(a+8,4)}, v{VO}, {sr(S_WS,4)}, s65 offen offset:512 sc1"])
            return g
        rest = tiles
        if PEEL:
            XR = {1: XS[1], 2: 128, 3: 136}
            WG = [[212, 216, 220], [224, 228, 208]]
            def wrd(lu):
                r = []
                for s in (1, 2, 3):
                    base = (s >> 1)*WSL + 4*(s & 1)*KQ; d = WG[lu & 1][s-1]
                    r += [f"ds_read_b64_tr_b16 {vr(d,2)}, v{WA+lu} offset:{base}", f"ds_read_b64_tr_b16 {vr(d+2,2)}, v{WA+lu} offset:{base+KQ}"]
                return r
            w0 = wrd(0); rd = []
            for s in (1, 2, 3):
                rd += [f"ds_read_b128 {vr(XR[s],4)}, v{XA+s}", f"ds_read_b128 {vr(XR[s]+4,4)}, v{XB+s}"] + w0[2*s-2:2*s]
            issued = 0; done = 0
            for i, m in enumerate(mfmas(0)):
                if need[i] > done:
                    A(f"s_waitcnt lgkmcnt({min(15, NR - need[i] + issued)})"); done = need[i]
                A(m)
                A.many(rd[2*i:2*i+2]); issued += len(rd[2*i:2*i+2])
            pend = []
            for lu in range(4):
                A("s_waitcnt lgkmcnt(0)")
                if lu == 3: A("s_barrier")
                nxt = wrd(lu+1) if lu < 3 else []
                for i, (s, lt) in enumerate((s, lt) for s in (1, 2, 3) for lt in range(2)):
                    A(mfma(lu*2+lt, WG[lu & 1][s-1], XR[s]+4*lt))
                    A.many(nxt[2*i:2*i+2])
                    if i == 2 and lu > 0:
                        A("s_nop 3")
                        for tl in tiles[2*(lu-1):2*lu]: pend += fin(*tl)
                    for _ in range(2 if i >= 3 else 1):
                        if pend: A.many(pend.pop(0))
            for g in pend: A.many(g)
            A("s_nop 7")
            rest = tiles[6:]
        for tl in rest:
            for g in fin(*tl): A.many(g)
        stamp(A, 4)
        if kind == "QK": A("s_branch L_SIGNAL")
    else:
        A(f"s_mul_i32 s62, s68, {NFU*1024}")
        A(f"s_mul_i32 s63, s69, {NFU*1024}")
        A(f"s_add_u32 s62, s62, {HF:#x}")
        A(f"s_add_u32 s63, s63, {HF:#x}")
        A("s_sub_u32 s64, s21, 6")
        A("s_mul_i32 s64, s64, 9")
        A("s_lshl_b32 s65, s61, 2")
        A("s_add_u32 s65, s65, s64")
        C1, C3, ONE, TT = 220, 222, 224, 176
        c1 = -2*0.7978845608028654*LOG2E
        A("s_waitcnt lgkmcnt(0)")
        for r, v in ((C1, c1), (C3, c1*0.044715), (ONE, 1.0)):
            A(f"v_mov_b32 v{r}, {f2u(v):#x}")
            A(f"v_mov_b32 v{r+1}, {f2u(v):#x}")
        dst = lambda tile: HREG + 4*tile
        h_offsets(A)
        for (tile, lu, lt) in tiles:
            a = 16*tile
            for i in range(4): A(f"v_pk_mul_f32 {vr(TT+2*i,2)}, {vr(a+2*i,2)}, {vr(a+2*i,2)}")
            for i in range(4): A(f"v_pk_fma_f32 {vr(TT+2*i,2)}, {vr(TT+2*i,2)}, {vr(C3,2)}, {vr(C1,2)}")
            for i in range(4): A(f"v_pk_mul_f32 {vr(TT+2*i,2)}, {vr(TT+2*i,2)}, {vr(a+2*i,2)}")
            for i in range(8): A(f"v_exp_f32 v{TT+i}, v{TT+i}")
            for i in range(4): A(f"v_pk_mul_f32 {vr(a+2*i,2)}, {vr(a+2*i,2)}, {vr(a+8+2*i,2)}")
            for i in range(4): A(f"v_pk_add_f32 {vr(TT+2*i,2)}, {vr(TT+2*i,2)}, {vr(ONE,2)}")
            for i in range(8): A(f"v_rcp_f32 v{TT+i}, v{TT+i}")
            A("s_nop 0")
            for i in range(4): A(f"v_pk_mul_f32 {vr(a+2*i,2)}, {vr(a+2*i,2)}, {vr(TT+2*i,2)}")
            for i in range(4): A(f"v_cvt_pk_bf16_f32 v{dst(tile)+i}, v{a+2*i}, v{a+2*i+1}")
        stamp(A, 4)

VX = 212; DW = 240; S1 = 216; S2 = 220; RR = 224; MR = 228; TL = 232
xreg = lambda c, i: (i*8 + c)*4
def xload_(A, i):
    A(f"s_add_u32 s{85+i}, s80, {i}")
    A(f"s_and_b32 s{85+i}, s{85+i}, 3")
    A(f"s_lshl_b32 s89, s{85+i}, 13")
    A("s_add_u32 s89, s89, s61")
    for c in range(8):
        A(f"buffer_load_dwordx4 {vr(xreg(c,i),4)}, v{VX}, {sr(S_X,4)}, s89 offen offset:{c*128}")
def loader_first(A):
    T = TL
    A("s_sub_u32 s60, s22, 4")
    A("s_lshl_b32 s61, s20, 17")
    A("s_lshl_b32 s62, s60, 15")
    A("s_add_u32 s61, s61, s62")
    A("s_lshr_b32 s80, s2, 5")
    A("s_waitcnt lgkmcnt(0)")
    srd(A, S_X, 4, 2048*512*2)
    xload_(A, 0); xload_(A, 1)

def gen_loader(A):
    ROLE[0] = "L"
    T = TL
    xload = lambda i: xload_(A, i)
    gen_wsetup(A)
    xload(2)
    A("s_cmp_lt_u32 s21, 2")
    A(f"s_cselect_b32 s69, {f2u(0.25*LOG2E):#x}, 1.0")
    A("s_lshr_b32 s64, s21, 1")
    A("s_cmp_eq_u32 s64, 2")
    A(f"s_cselect_b32 s69, {f2u(2.0**VSH):#x}, s69")
    for r in range(S1, S2+4): A(f"v_mov_b32 v{r}, 0")
    A("s_mov_b32 s78, 0x3f803f80")
    A("v_mov_b32 v249, 0")
    A(f"v_lshlrev_b32 v244, 1, v{L}")
    A("s_cmp_ge_u32 s21, 6")
    A("s_cselect_b32 s79, s60, 0")
    def norm(c, i):
        x = xreg(c, i); r = []
        for d in range(4):
            r.append(f"v_lshlrev_b32 v{T+2*d}, 16, v{x+d}")
            r.append(f"v_and_b32 v{T+2*d+1}, 0xffff0000, v{x+d}")
        for d in range(8): r.append(f"v_fma_f32 v{T+d}, v{T+d}, v{RR+i}, -v{MR+i}")
        for d in range(4): r.append(f"v_cvt_pk_bf16_f32 v{x+d}, v{T+2*d}, v{T+2*d+1}")
        if OPT["w64"]:
            r.insert(-2, f"ds_write_b64 v{DW+i}, {vr(x,2)} offset:{(c&1)*16384}")
            r.append(f"ds_write_b64 v{DW+i}, {vr(x+2,2)} offset:{(c&1)*16384+8}")
        else: r.append(f"ds_write_b128 v{DW+i}, {vr(x,4)} offset:{(c&1)*16384}")
        return r
    def dots(i):
        r = []
        for k in range(32):
            r.append(f"v_dot2c_f32_bf16 v{S2+i}, v{xreg(0,i)+k}, v{xreg(0,i)+k}")
            r.append(f"v_dot2c_f32_bf16 v{S1+i}, s78, v{xreg(0,i)+k}")
        return r
    A("s_waitcnt vmcnt(16)"); stamp(A, 16)
    xload(3)
    A.many(dots(0))
    A(f"v_lshrrev_b32 v{T+2}, 4, v{L}")
    A(f"v_xor_b32 v{T+2}, v{T+2}, v{T+1}")
    A(f"v_lshlrev_b32 v{T+3}, 7, v{T}")
    A("s_lshl_b32 s64, s60, 12")
    A(f"v_add_u32 v{T+3}, s64, v{T+3}")
    A(f"v_lshl_add_u32 v{T+3}, v{T+2}, 4, v{T+3}")
    for i in range(4):
        A(f"s_and_b32 s64, s{85+i}, 1")
        A("s_lshl_b32 s64, s64, 6")
        A(f"s_lshl_b32 s65, s{85+i}, 10")
        A("s_or_b32 s64, s64, s65")
        A(f"v_xor_b32 v{DW+i}, s64, v{T+3}")
    def vmw(base, tag):
        A(f"s_waitcnt vmcnt({base+9})")
        A("s_cmp_ge_u32 s21, 6")
        A(f"s_cbranch_scc1 {tag}")
        A(f"s_waitcnt vmcnt({base+8})")
        A.lab(tag)
    A("s_waitcnt vmcnt(16)"); stamp(A, 17)
    if OPT["wearly"]:
        mix(A, dots(1), dma_groups(0), 7)
        vmw(8, "LL_G2"); stamp(A, 18)
        A.many(dots(2))
    else:
        A.many(dots(1))
        A("s_waitcnt vmcnt(8)"); stamp(A, 18)
        mix(A, dots(2), dma_groups(0), 7)
    vmw(0, "LL_G3")
    stamp(A, 19)
    A.many(dots(3))
    A("s_nop 2")
    for ctl in ("quad_perm:[1,0,3,2]", "quad_perm:[2,3,0,1]", "row_half_mirror"):
        for r in range(S1, S2+4):
            A(f"v_add_f32_dpp v{r}, v{r}, v{r} {ctl} row_mask:0xf bank_mask:0xf")
    seq = [
        lambda i: f"v_mul_f32 v{S1+i}, {f2u(1/512):#x}, v{S1+i}",
        lambda i: f"v_mul_f32 v{S2+i}, {f2u(1/512):#x}, v{S2+i}",
        lambda i: f"v_fma_f32 v{S2+i}, -v{S1+i}, v{S1+i}, v{S2+i}",
        lambda i: f"v_max_f32 v{S2+i}, 0, v{S2+i}",
        lambda i: f"v_cvt_pk_bf16_f32 v{S2+i}, v{S1+i}, v{S2+i}",
        lambda i: f"v_lshlrev_b32 v{S1+i}, 16, v{S2+i}",
        lambda i: f"v_and_b32 v{S2+i}, 0xffff0000, v{S2+i}",
        lambda i: f"v_add_f32 v{S2+i}, {f2u(1e-5):#x}, v{S2+i}",
        lambda i: f"v_cvt_pk_bf16_f32 v{S2+i}, v{S2+i}, v{S2+i}",
        lambda i: f"v_and_b32 v{S2+i}, 0xffff0000, v{S2+i}",
        lambda i: f"v_sqrt_f32 v{S2+i}, v{S2+i}",
        lambda i: f"v_cvt_pk_bf16_f32 v{S2+i}, v{S2+i}, v{S2+i}",
        lambda i: f"v_and_b32 v{S2+i}, 0xffff0000, v{S2+i}",
        lambda i: f"v_rcp_f32 v{RR+i}, v{S2+i}",
        lambda i: f"v_mul_f32 v{RR+i}, s69, v{RR+i}",
        lambda i: f"v_mul_f32 v{MR+i}, v{S1+i}, v{RR+i}",
    ]
    for f in seq:
        for i in range(4): A(f(i))
    stamp(A, 1)
    mix(A, sum((norm(0, i) for i in range(4)), []), dma_groups(0), OPT["dmaevery"])
    if -1 in OPT["wpf"]: A.many(W_PREFETCH)
    stamp(A, 2)
    dbg_load = [f"buffer_load_dword v97, v96, {sr(S_DBG,4)}, 0 offen sc1"]
    for m in range(8):
        if m == 4: stamp(A, 29)
        A(f"s_waitcnt vmcnt({8 if m < 7 else 0}) lgkmcnt(0)")
        if m == 4: stamp(A, 30)
        if m == 5:
            A.many(ALL1(97))
            A("s_cbranch_scc1 LL_POLL0_OK")
            spin(A, "LL_POLL0", dbg_load, ALL1(97))
        A("s_barrier")
        if m == 3: stamp(A, 28)
        if m == 4: stamp(A, 31)
        if m == 7: break
        work = sum((norm(m+1, i) for i in range(4)), [])
        isw = lambda w: w.startswith("ds_")
        if OPT["exp"] == "wlast": work = [w for w in work if not isw(w)] + [w for w in work if isw(w)]
        if OPT["exp"] == "wfirst":
            if m == 0: A.many(work)
            else: A.many([w for w in work if isw(w)])
            work = [w for w in sum((norm(m+2, i) for i in range(4)), []) if not isw(w)] if m < 6 else []
        if OPT["exp"].startswith("grp"):
            dg = dma_groups(0) if m < 6 else []
            split = {"grp": [3,2,2,2,0], "grp2": [0,3,3,3,0], "grp3": [2,3,2,2,0], "grp4": [4,3,2,0,0]}[OPT["exp"]]
            for _ in range(split[0]):
                if dg: A.many(dg.pop(0))
            for i in range(4):
                nn = norm(m+1, i)
                A.many(nn[:-1])
                for _ in range(split[i+1]):
                    if dg: A.many(dg.pop(0))
                A(nn[-1])
            work = None
        if OPT["exp"] == "nonorm": work = []
        if OPT["exp"] == "nowrite": work = [w for w in work if not w.startswith("ds_")]
        if OPT["exp"] == "dmalast":
            A.many(work); work = []
        if OPT["exp"] == "dmafirst":
            mix(A, [], dma_groups(0) if m < 6 else [], 1); A.many(work); continue
        if work is not None: mix(A, work, dma_groups(0) if m < 6 else [], OPT["dmaevery"])
        if m in OPT["wpf"]: A.many(W_PREFETCH)
        if m == 3:
            A(f"v_min_u32 v96, {NZ-1}, v{L}")
            A("v_lshlrev_b32 v96, 2, v96")
            A.many(dbg_load)
    A("s_mov_b32 s23, s79")
    side_setup(A)
    A("s_call_b64 s[76:77], L_ATTINIT")
    late_init(A)
    A("s_barrier")
    if OPT["b8prio"]: A("s_setprio 3")
    stamp(A, 3)
    A("s_cmp_eq_u32 s23, 0")
    A("s_cbranch_scc1 LL_S7")
    side_loads(A, 0)
    side_loads(A, 1)
    A.lab("LL_S7")
    A("s_cmp_lg_u32 s60, 0")
    A("s_cbranch_scc1 LL_WAITGO")
    A("v_mov_b32 v96, 0")
    A("s_bfe_u32 s64, s2, 0x10004")
    A("s_lshl_b32 s64, s64, 5")
    A("s_and_b32 s65, s2, 15")
    A("s_add_u32 s64, s64, s65")
    A("s_bfe_u32 s65, s2, 0x10005")
    A("s_lshl_b32 s65, s65, 4")
    A("s_add_u32 s64, s64, s65")
    A("s_lshl_b32 s64, s64, 7")
    A(f"s_add_u32 s64, s64, {QCNT:#x}")
    if OPT["qsch"] == "E":
        A(f"s_and_b32 s64, s64, {(~(24*128)) & 0xffffffff:#x}")
        spin(A, "LL_POLL", [f"buffer_load_dword v97, v96, {sr(S_WS,4)}, s64 offen sc1"], ALL1(97))
    else: spin3(A, "LL_POLL", [0, 1, 2], 96, "s64", 48)
    A(f"v_mov_b32 v96, {SW}")
    A("v_mov_b32 v97, 1")
    A("ds_write_b32 v96, v97 offset:4")
    A("s_branch LL_GO")
    A.lab("LL_WAITGO")
    A(f"v_mov_b32 v96, {SW}")
    A(f"s_mov_b32 s70, {SPIN_MAX*16}")
    A.lab("LL_WG1")
    A("ds_read_b32 v97, v96 offset:4")
    A("s_waitcnt lgkmcnt(0)")
    A("v_readfirstlane_b32 s65, v97")
    A("s_cmp_lg_u32 s65, 0")
    A("s_cbranch_scc1 LL_GO")
    A("s_sleep 1")
    A("s_sub_u32 s70, s70, 1")
    A("s_cmp_lg_u32 s70, 0")
    A("s_cbranch_scc1 LL_WG1")
    A.lab("LL_GO")
    stamp(A, 4)
    A("s_and_b32 s64, s2, 31")
    A("s_lshl_b32 s64, s64, 16")
    A("s_lshl_b32 s65, s60, 11")
    A("s_add_u32 s64, s64, s65")
    A("s_lshr_b32 s66, s2, 5")
    A("s_lshl_b32 s66, s66, 13")
    A("s_add_u32 s66, s66, s64")
    A(f"s_add_u32 m0, s65, {QOFF}")
    A(f"s_add_u32 s67, s64, {KF:#x}")
    A(f"buffer_load_dwordx4 v95, {sr(S_WS,4)}, s66 offen sc1 lds")
    A(f"buffer_load_dwordx4 v95, {sr(S_WS,4)}, s66 offen offset:1024 sc1 lds")
    A(f"s_add_u32 s68, s64, {VF:#x}")
    for c in range(2):
        A(f"s_add_u32 m0, s65, {c*8192}")
        A("s_nop 0")
        A(f"buffer_load_dwordx4 v95, {sr(S_WS,4)}, s67 offen sc1 lds")
        A(f"buffer_load_dwordx4 v95, {sr(S_WS,4)}, s67 offen offset:1024 sc1 lds")
        A(f"s_add_u32 m0, s65, {65536 + c*8192}")
        A("s_add_u32 s67, s67, 8192")
        A(f"buffer_load_dwordx4 v95, {sr(S_WS,4)}, s68 offen sc1 lds")
        A(f"buffer_load_dwordx4 v95, {sr(S_WS,4)}, s68 offen offset:1024 sc1 lds")
        A("s_add_u32 s68, s68, 8192")
    A("s_cmp_eq_u32 s23, 0")
    A("s_cbranch_scc1 L_P0")
    A("s_waitcnt vmcnt(10)")
    side_combine(A)


WSC = lambda: "" if OPT["wl1"] else " sc1"
def down_loads(A, slot):
    A(f"buffer_load_dwordx4 {vr(DH[slot],4)}, v{L16}, {sr(S_T1,4)}, s84 offen sc1")
    A(f"buffer_load_dwordx4 {vr(DW_[slot],4)}, v{L16}, {sr(S_T2,4)}, s85 offen{WSC()}")
    A(f"buffer_load_dwordx4 {vr(DW_[slot]+4,4)}, v{L16}, {sr(S_T2,4)}, s85 offen offset:1024{WSC()}")
    A("s_add_u32 s84, s84, 1024")
    A("s_add_u32 s85, s85, 2048")

def kv_piece(k):
    if k & 1: return ["s_add_u32 m0, s95, 65536", "s_add_u32 s94, s94, 8192",
                      f"buffer_load_dwordx4 v{L16}, {sr(S_WS,4)}, s60 offen sc1 lds", "s_add_u32 s95, s95, 8192"]
    return ["s_mov_b32 m0, s95", f"s_add_u32 s60, s94, {VF-KF:#x}", f"buffer_load_dwordx4 v{L16}, {sr(S_WS,4)}, s94 offen sc1 lds"]
HPOLL = lambda: apoll(101, 100, "s75", 15)

def attn_body(A, mode):
    hs = 0; wo = 0; cl = 0; rw = 0
    for t in range(2 if mode == "P" else 8):
        p = t & 1
        down = mode == "B" or (mode == "2" and t >= 4) or (mode == "C" and t < 4)
        cur, prv = S_[p], S_[1-p]
        ex = lambda a, b: [A(f"v_exp_f32 v{cur+i}, v{cur+i}") for i in range(a, b)]
        if p == 0: A(f"s_setprio {3 - (t >> 1)}")
        if mode == "P": A("s_waitcnt vmcnt(3)")
        else: A(f"s_waitcnt lgkmcnt({3 + (OPT['rwplan'][t-1] if mode == 'C' and t else 0)})")
        ex(0, 2)
        if not (mode == "0" and t == 0):
            A(f"v_smfmac_f32_32x32x32_bf16 {vr(O_,16)}, {vr(V1[1-p],4)}, {vr(prv+8,8)}, v{IDX}")
        kv = mode in "01" and t in OPT["kvplan"][int(mode)]
        if kv: A.many(kv_piece(0))
        ex(2, 6 if down else 7)
        A(f"v_mfma_f32_32x32x16_bf16 {vr(prv,16)}, {vr(KB[1-p],4)}, {vr(Q_,4)}, {vr(C_,16)}")
        if mode == "P": A(f"buffer_load_dwordx4 {vr(KB[1-p],4)}, v{L16}, {sr(S_WS,4)}, s94 offen offset:3072 sc1")
        else: A(f"ds_read_b128 {vr(KB[1-p],4)}, v{KA} offset:{(t+3)*1024}")
        if kv: A.many(kv_piece(1))
        ex(6 if down else 7, 10 if down else 12)
        A(f"v_smfmac_f32_32x32x32_bf16 {vr(O_,16)}, {vr(V0[p],4)}, {vr(cur,8)}, v{IDX}")
        A("s_mov_b64 exec, s[80:81]")
        if mode == "P":
            A(f"buffer_load_dwordx4 {vr(V0[p],4)}, v{VA}, {sr(S_WS,4)}, s94 offen offset:2048 sc1")
            A(f"buffer_load_dwordx4 {vr(V1[1-p],4)}, v{VA}, {sr(S_WS,4)}, s94 offen offset:1536 sc1")
            A("s_add_u32 s94, s94, 1024")
        else:
            A(f"ds_read_b128 {vr(V0[p],4)}, v{VA} offset:{(t+2)*1024}")
            A(f"ds_read_b128 {vr(V1[1-p],4)}, v{VA} offset:{(t+1)*1024+512}")
        A("s_mov_b64 exec, -1")
        if mode == "0":
            if t == 7:
                A(f"buffer_store_dwordx4 {vr(DH[0],4)}, v{L16}, {sr(S_WS,4)}, s11 offen sc1")
            for _ in range(OPT["hplan"][t]):
                A(f"buffer_store_dwordx4 {vr(HREG+4*hs,4)}, v249, {sr(S_WS,4)}, s{HOFF[hs]} offen sc1"); hs += 1
        if mode == "2" and t < 4: down_loads(A, (t + 2) & 3)
        if mode == "C":
            if t == 0: A(f"buffer_load_dwordx4 {vr(XV,4)}, v252, {sr(S_X,4)}, s88 offen"); cl += 1
            for _ in range(OPT["woplan"][t]):
                A(f"buffer_load_dwordx4 {vr(WO+4*wo,4)}, v{L16}, {sr(S_WS,4)}, s90 offen offset:{(wo&3)*1024} sc1")
                wo += 1; cl += 1
                if wo & 3 == 0: A("s_add_u32 s90, s90, 4096")
            for _ in range(OPT["rwplan"][t]):
                A(f"ds_write_b128 v102, {vr(DACC+4*rw,4)} offset:{rw*RP}"); rw += 1
        if down and mode == "C":
            ex(10, 12)
            A(f"s_waitcnt vmcnt({3*(3-t) + cl})")
            A(f"v_mfma_f32_32x32x16_bf16 {vr(DACC,16)}, {vr(DW_[t],4)}, {vr(DH[t],4)}, {vr(DACC,16)}")
            ex(12, 16)
            A(f"v_mfma_f32_32x32x16_bf16 {vr(DACC+16,16)}, {vr(DW_[t]+4,4)}, {vr(DH[t],4)}, {vr(DACC+16,16)}")
            if t == 1: A("s_barrier")
        elif down:
            ex(10, 14)
            sl = t >> 1
            if p == 0: A("s_waitcnt vmcnt(9)")
            cc = "0" if (mode == "2" and t < 6) else vr(DACC+16*p,16)
            A(f"v_mfma_f32_32x32x16_bf16 {vr(DACC+16*p,16)}, {vr(DW_[sl]+4*p,4)}, {vr(DH[sl],4)}, {cc}")
            if p == 1: down_loads(A, sl)
            ex(14, 16)
        else:
            ex(12, 16)
        if mode == "1" and t == OPT["sigt"]:
            stamp(A, 25)
            A("s_waitcnt vmcnt(0)")
            stamp(A, 26)
            A("s_barrier")
            stamp(A, 27)
            A("s_cmp_lg_u32 s22, 0")
            A("s_cbranch_scc1 L_NOSIG")
            A("s_mov_b64 exec, 0xff")
            A("v_mov_b32 v97, 1")
            A(f"v_lshlrev_b32 v96, 10, v{L}")
            A(f"buffer_atomic_add v97, v96, {sr(S_WS,4)}, s91 offen")
            A("s_mov_b64 exec, -1")
            A.lab("L_NOSIG")
        if mode == "1" and t == 6:
            A("s_cmp_lg_u32 s22, 0")
            A("s_cbranch_scc1 L_NOPQ")
            A(f"v_lshlrev_b32 v100, 7, v{L}")
            A.many(HPOLL())
            A.lab("L_NOPQ")
        if mode == "1" and t == 7:
            stamp(A, 8)
            A("s_cmp_lg_u32 s22, 0")
            A("s_cbranch_scc1 L_HPOLL_OK")
            spin(A, "L_HPOLL2", HPOLL(), acmp(101, 64, 15), first_loaded=True)
            if OPT["wl1"] == 2:
                A("buffer_inv sc1")
                A("s_waitcnt vmcnt(0)")
            A.lab("L_HPOLL_OK")
            A("s_waitcnt vmcnt(0)")
            A("s_barrier")
            stamp(A, 9)
    if mode == "0": assert hs == 9
    if mode == "C": assert wo == 16 and rw == 8
    if mode == "P": A("s_add_u32 s83, s83, 1")
    elif mode != "C":
        A(f"v_add_u32 v{KA}, 8192, v{KA}")
        A(f"v_add_u32 v{VA}, 8192, v{VA}")
        A("s_add_u32 s83, s83, 1")

def late_init(A):
    A(f"v_lshlrev_b32 v{L16}, 4, v{L}")
    A(f"v_mov_b32 v{IDX}, 0xdddd")
    A(f"v_and_b32 v98, 15, v{L}")
    A("v_lshlrev_b32 v98, 4, v98")
    A(f"v_lshrrev_b32 v99, 5, v{L}")
    A("v_lshl_or_b32 v98, v99, 8, v98")
    A("v_add_u32 v98, 65536, v98")
    A(f"v_add_u32 v99, s15, v{L16}")
    A(f"v_add_u32 v102, s16, v{L16}")
    A(f"v_and_b32 v103, 7, v{L}")
    A(f"v_mul_u32_u24 v103, {RP}, v103")
    A(f"v_lshrrev_b32 v100, 3, v{L}")
    A("v_lshl_add_u32 v103, v100, 4, v103")
    A("v_add_u32 v103, s17, v103")
    A(f"v_mov_b32 v{KA}, v{L16}")
    A(f"v_mov_b32 v{VA}, v98")
    A("v_mov_b32 v100, 0xff800000")
    A("v_mov_b32 v101, 0xff800000")
    for r in range(4): A(f"v_mov_b32 v{DH[0]+r}, -1")

def gen_attinit(A):
    A.lab("L_ATTINIT")
    for r in range(O_, O_+32): A(f"v_mov_b32 v{r}, 0")
    A("s_mov_b32 s80, 0x00110000")
    A("s_mov_b32 s81, 0x00110000")
    A("s_mov_b64 exec, s[80:81]")
    for r in range(V0[0], V0[0]+16): A(f"v_mov_b32 v{r}, 0x3f803f80")
    A("s_mov_b64 exec, -1")
    A("s_mov_b32 s80, 0xffff")
    A("s_mov_b32 s81, 0xffff")
    A(f"s_mov_b32 s79, {f2u(-OPT['bias']):#x}")
    A("s_mov_b32 s82, 1")
    A(f"v_and_b32 v251, 7, v{L}")
    A(f"v_lshrrev_b32 v252, 3, v{L}")
    A("v_lshlrev_b32 v252, 10, v252")
    A("v_lshl_add_u32 v252, v251, 4, v252")
    A("s_lshl_b32 s15, s22, 10")
    A(f"s_add_u32 s15, s15, {QOFF}")
    A("s_and_b32 s91, s20, 3")
    A("s_lshl_b32 s91, s91, 7")
    A(f"s_add_u32 s91, s91, {QFLAG+4*128:#x}")
    A("s_and_b32 s75, s2, 7")
    A("s_lshl_b32 s75, s75, 10")
    A(f"s_add_u32 s75, s75, {QFLAG+4*128:#x}")
    A("s_lshr_b32 s61, s2, 5")
    A("s_lshl_b32 s61, s61, 3")
    A("s_add_u32 s61, s61, s22")
    A("s_lshl_b32 s61, s61, 5")
    A("s_and_b32 s62, s2, 31")
    A("s_add_u32 s61, s61, s62")
    A("s_lshl_b32 s11, s61, 10")
    A(f"s_add_u32 s11, s11, {OF:#x}")
    A("s_and_b32 s94, s2, 31")
    A("s_lshl_b32 s94, s94, 16")
    A("s_lshl_b32 s95, s22, 10")
    A("s_add_u32 s95, s95, 16384")
    A("s_add_u32 s94, s94, s95")
    A(f"s_add_u32 s94, s94, {KF:#x}")
    A("s_and_b32 s67, s2, 7")
    A("s_bfe_u32 s61, s2, 0x20003")
    A("s_lshl_b32 s67, s67, 2")
    A("s_add_u32 s67, s67, s61")
    A("s_lshr_b32 s61, s2, 5")
    A("s_and_b32 s62, s22, 1")
    A("s_lshl_b32 s67, s67, 1")
    A("s_add_u32 s67, s67, s62")
    A("s_lshr_b32 s62, s22, 1")
    A("s_mul_i32 s63, s62, 22")
    A("s_cmp_eq_u32 s62, 3")
    A("s_cselect_b32 s63, 65, s63")
    A("s_cmp_lt_u32 s62, 2")
    A("s_cselect_b32 s64, 22, 21")
    A(f"s_mul_i32 s65, s67, {NFU}")
    A("s_add_u32 s65, s65, s63")
    A("s_lshl_b32 s65, s65, 10")
    A(f"s_add_u32 s65, s65, {HF:#x}")
    A(f"s_add_u32 s{S_T1}, s18, s65")
    A(f"s_addc_u32 s{S_T1+1}, s19, 0")
    A(f"s_lshl_b32 s{S_T1+2}, s64, 10")
    A(f"s_mov_b32 s{S_T1+3}, 0x00020000")
    A(f"s_mul_i32 s65, s61, {NFU}")
    A("s_add_u32 s65, s65, s63")
    A("s_lshl_b32 s65, s65, 11")
    A(f"s_add_u32 s65, s65, {WDF:#x}")
    A(f"s_add_u32 s{S_T2}, s18, s65")
    A(f"s_addc_u32 s{S_T2+1}, s19, 0")
    A(f"s_lshl_b32 s{S_T2+2}, s64, 11")
    A(f"s_mov_b32 s{S_T2+3}, 0x00020000")
    A("s_mov_b32 s84, 0")
    A("s_mov_b32 s85, 0")
    A("s_lshl_b32 s90, s61, 16")
    A("s_lshl_b32 s66, s62, 14")
    A("s_add_u32 s90, s90, s66")
    A(f"s_add_u32 s90, s90, {WOF:#x}")
    A("s_lshl_b32 s87, s67, 15")
    A("s_lshl_b32 s66, s62, 13")
    A("s_add_u32 s87, s87, s66")
    A(f"s_add_u32 s87, s87, {OF:#x}")
    A("s_lshl_b32 s88, s67, 15")
    A("s_lshl_b32 s66, s61, 7")
    A("s_add_u32 s88, s88, s66")
    A("s_lshl_b32 s66, s62, 13")
    A("s_add_u32 s88, s88, s66")
    A("s_add_u32 s13, s87, 4096")
    red_addr(A)
    A("s_setpc_b64 s[76:77]")

def gen_attn(A):
    A("s_waitcnt lgkmcnt(0)")
    late_init(A)
    A.lab("L_P0")
    stamp(A, 5)
    A("s_waitcnt vmcnt(0)")
    A("s_barrier")
    stamp(A, 6)
    A(f"ds_read_b128 {vr(Q_,4)}, v99")
    A(f"ds_read_b128 {vr(KB[0],4)}, v{KA}")
    A(f"ds_read_b128 {vr(KB[1],4)}, v{KA} offset:1024")
    A("s_mov_b64 exec, s[80:81]")
    A(f"ds_read_b128 {vr(V0[0],4)}, v{VA}")
    A("s_mov_b64 exec, -1")
    A("s_waitcnt lgkmcnt(2)")
    A(f"v_mfma_f32_32x32x16_bf16 {vr(S_[0],16)}, {vr(KB[0],4)}, {vr(Q_,4)}, 0")
    A("s_waitcnt lgkmcnt(1)")
    A(f"v_mfma_f32_32x32x16_bf16 {vr(C_,16)}, {vr(KB[1],4)}, {vr(Q_,4)}, 0")
    A("s_nop 10")
    for i in range(8): A(f"v_max3_f32 v100, v{2*i}, v{2*i+1}, v100")
    for i in range(8): A(f"v_max3_f32 v101, v{C_+2*i}, v{C_+2*i+1}, v101")
    A("v_max_f32 v100, v100, v101")
    A("v_mov_b32 v101, v100")
    A("s_nop 1")
    A("v_permlane32_swap_b32 v100, v101")
    A("s_nop 1")
    A("v_max_f32 v100, v100, v101")
    for r in range(16): A(f"v_sub_f32 v{C_+r}, s79, v100")
    A("s_nop 1")
    A(f"v_mfma_f32_32x32x16_bf16 {vr(S_[0],16)}, {vr(KB[0],4)}, {vr(Q_,4)}, {vr(C_,16)}")
    A(f"ds_read_b128 {vr(KB[0],4)}, v{KA} offset:2048")
    A("s_mov_b64 exec, s[80:81]")
    A(f"ds_read_b128 {vr(V0[1],4)}, v{VA} offset:1024")
    A(f"ds_read_b128 {vr(V1[0],4)}, v{VA} offset:512")
    A("s_mov_b64 exec, -1")
    A("s_mov_b32 s83, 0")
    stamp(A, 7)
    A("s_nop 4")
    attn_body(A, "0")
    stamp(A, 24)
    attn_body(A, "1")
    attn_body(A, "2")
    A.lab("L_LOOPB")
    attn_body(A, "B")
    if OPT["prof"] and OPT["bstamp"]:
        A("s_memtime s[96:97]")
        A("s_memrealtime s[98:99]")
        A("s_add_u32 m0, s83, 17")
        A("s_waitcnt lgkmcnt(0)")
        A("v_writelane_b32 v255, s96, m0")
        A("s_add_u32 m0, s83, 49")
        A("s_nop 0")
        A("v_writelane_b32 v255, s98, m0")
    A("s_cmp_lt_u32 s83, 7")
    A("s_cbranch_scc1 L_LOOPB")
    attn_body(A, "C")
    A.lab("L_ATT_DONE")
    A("s_waitcnt lgkmcnt(0)")
    stamp(A, 10)
    A(f"v_smfmac_f32_32x32x32_bf16 {vr(O_,16)}, {vr(V1[1],4)}, {vr(S_[1]+8,8)}, v{IDX}")
    A("s_setprio 3")
    A(f"v_mov_b32 v96, {f2u(2.0**90):#x}")
    A(f"v_mov_b32 v97, {f2u(2.0**120):#x}")
    A(f"v_mov_b32 v99, {f2u(2.0**-100):#x}")
    A("s_nop 7")
    A(f"v_rcp_f32 v101, v{O_+8}")
    A("s_nop 0")
    A(f"v_mul_f32 v101, {f2u(2.0**-VSH):#x}, v101")
    for r in range(8): A(f"v_mul_f32 v{r}, v{O_+r}, v101")
    for i in range(4): A(f"v_cvt_pk_bf16_f32 v{8+i}, v{2*i}, v{2*i+1}")
    A("s_cmp_eq_u32 s82, 0")
    A("s_cbranch_scc1 L_FIN")
    A(f"v_add_f32 v100, abs(v{O_}), abs(v{O_+1})")
    for r in range(2, 8): A(f"v_add_f32 v100, v100, abs(v{O_+r})")
    A(f"v_cmp_nlt_f32 s[62:63], v{O_+8}, v96")
    A("v_cmp_nlt_f32 s[64:65], v100, v97")
    A("v_cmp_lt_f32 vcc, v100, v99")
    A("s_or_b64 s[62:63], s[62:63], s[64:65]")
    A("s_or_b64 s[62:63], s[62:63], vcc")
    A("s_cmp_eq_u64 s[62:63], 0")
    A("s_branch L_EXACT" if OPT["force_fallback"] else "s_cbranch_scc0 L_EXACT")
    A.lab("L_FIN")
    A(f"buffer_store_dwordx4 {vr(8,4)}, v{L16}, {sr(S_WS,4)}, s11 offen sc1")

RP = 1056
RS = 8*RP
def red_addr(A):
    A("s_and_b32 s62, s22, 1")
    A("s_lshr_b32 s63, s22, 1")
    A("s_mul_i32 s62, s62, 69632")
    A(f"s_mul_i32 s64, s63, {RS}")
    A("s_add_u32 s16, s64, s62")
    A("s_lshl_b32 s64, s63, 7")
    A("s_add_u32 s17, s64, s62")
def red_write(A, acc):
    for p in range(8): A(f"ds_write_b128 v102, {vr(acc+4*p,4)} offset:{p*RP}")
def red_read(A, dst):
    for s in range(4):
        for h in range(2):
            A(f"ds_read_b128 {vr(dst+8*s+4*h,4)}, v103 offset:{s*RS + h*512}")
def red_sum(A, dst):
    for r in range(8):
        A(f"v_add_f32 v{dst+r}, v{dst+r}, v{dst+8+r}")
        A(f"v_add_f32 v{dst+16+r}, v{dst+16+r}, v{dst+24+r}")
    for r in range(8): A(f"v_add_f32 v{dst+r}, v{dst+r}, v{dst+16+r}")
def round_bf16(A, regs, tmp):
    for i in range(4): A(f"v_cvt_pk_bf16_f32 v{tmp+i}, v{regs+2*i}, v{regs+2*i+1}")
    for i in range(4):
        A(f"v_lshlrev_b32 v{regs+2*i}, 16, v{tmp+i}")
        A(f"v_and_b32 v{regs+2*i+1}, 0xffff0000, v{tmp+i}")

OB = 16
def o_load(A, s):
    A(f"buffer_load_dwordx4 {vr(OB+4*s,4)}, v{L16}, {sr(S_WS,4)}, s{87 if s < 4 else 13} offen offset:{(s&3)*1024} sc1")
def gen_final(A):
    stamp(A, 11)
    A("s_barrier")
    stamp(A, 20)
    G = DACC; T = 136
    red_read(A, G)
    if OPT["oearly"]:
        for s in range(8): o_load(A, s)
    A(f"s_waitcnt vmcnt({9 if OPT['oearly'] else 1})")
    A(f"v_add_u32 v102, {4*RS}, v102")
    A(f"v_add_u32 v103, {4*RS}, v103")
    for i in range(4):
        A(f"v_lshlrev_b32 v{144+2*i}, 16, v{XV+i}")
        A(f"v_and_b32 v{145+2*i}, 0xffff0000, v{XV+i}")
    A("s_waitcnt lgkmcnt(0)")
    B = Asm()
    red_sum(B, G)
    if OPT["mimic"]: round_bf16(B, G, T)
    for r in range(8): B(f"v_mul_f32 v{T+r}, {f2u(-LOG2E):#x}, v{G+r}")
    for r in range(8): B(f"v_exp_f32 v{T+r}, v{T+r}")
    for r in range(8): B(f"v_add_f32 v{T+r}, 1.0, v{T+r}")
    for r in range(8): B(f"v_rcp_f32 v{T+r}, v{T+r}")
    for r in range(8): B(f"v_mul_f32 v{G+r}, v{G+r}, v{T+r}")
    if OPT["mimic"]: round_bf16(B, G, T)
    gw = [x.strip() for x in B.l]
    if not OPT["oearly"]:
        A.many(gw[:OPT["gpre0"]]); gw = gw[OPT["gpre0"]:]
        for s in range(8): o_load(A, s)
    A.many(gw[:OPT["gpre"]]); gw = gw[OPT["gpre"]:]
    stamp(A, 12)
    ACC = 104
    A(f"s_mov_b32 s70, {SPIN_MAX}")
    for s in range(8):
        o = OB + 4*s
        A.lab(f"L_OW{s}")
        A(f"s_waitcnt vmcnt({7-s})")
        A(f"v_max3_u32 v96, v{o}, v{o+1}, v{o+2}")
        A(f"v_max_u32 v96, v96, v{o+3}")
        A("v_cmp_eq_u32 vcc, -1, v96")
        A("s_cmp_lg_u64 vcc, 0")
        A(f"s_cbranch_scc1 L_OR{s}")
        A.lab(f"L_OK{s}")
        for nt in range(2):
            c = "0" if s == 0 else vr(ACC+16*nt,16)
            A(f"v_mfma_f32_32x32x16_bf16 {vr(ACC+16*nt,16)}, {vr(WO+8*s+4*nt,4)}, {vr(o,4)}, {c}")
            A.many(gw[:OPT["gper"]]); gw = gw[OPT["gper"]:]
    A.many(gw)
    stamp(A, 13)
    A("s_nop 11")
    red_write(A, ACC)
    A("s_waitcnt lgkmcnt(0)")
    A("s_barrier")
    red_read(A, 0)
    A("s_waitcnt lgkmcnt(0)")
    red_sum(A, 0)
    if OPT["mimic"]:
        round_bf16(A, 0, T)
        for r in range(8): A(f"v_mul_f32 v{r}, v{r}, v{G+r}")
        round_bf16(A, 0, T)
        for r in range(8): A(f"v_add_f32 v{r}, v{r}, v{144+r}")
    else:
        for r in range(8): A(f"v_fma_f32 v{r}, v{r}, v{G+r}, v{144+r}")
    for i in range(4): A(f"v_cvt_pk_bf16_f32 v{T+i}, v{2*i}, v{2*i+1}")
    A(f"buffer_store_dwordx4 {vr(T,4)}, v252, {sr(S_OUT,4)}, s88 offen{OPT['outfl']}")
    if OPT["fixdur"]:
        A.lab("L_FIXDUR")
        A("s_memrealtime s[96:97]")
        A("s_waitcnt lgkmcnt(0)")
        A("s_sub_u32 s96, s96, s100")
        A(f"s_cmp_lt_u32 s96, {OPT['fixdur']}")
        A("s_cbranch_scc1 L_FIXDUR")
    if OPT["prof"]:
        stamp(A, 14)
        A(f"s_add_u32 s{S_T1}, s18, {PROF_OFF:#x}")
        A(f"s_addc_u32 s{S_T1+1}, s19, 0")
        A(f"s_mov_b32 s{S_T1+2}, 0x100000")
        A(f"s_mov_b32 s{S_T1+3}, 0x00020000")
        A("s_lshl_b32 s60, s2, 3")
        A("s_add_u32 s60, s60, s22")
        A("s_lshl_b32 s60, s60, 8")
        A(f"v_lshlrev_b32 v0, 2, v{L}")
        A(f"buffer_store_dword v255, v0, {sr(S_T1,4)}, s60 offen")
        if OPT["dbgout"]:
            A("s_cmp_lg_u32 s2, 200")
            A("s_cbranch_scc1 L_END")
            A("s_cmp_lg_u32 s22, 0")
            A("s_cbranch_scc1 L_END")
            A("v_readlane_b32 s61, v255, 32")
            A("v_readlane_b32 s63, v255, 0")
            A("v_mov_b32 v1, 0")
            A("s_mov_b64 exec, 1")
            for n, i in enumerate((2, 3, 4, 6, 9, 10, 12, 14)):
                A(f"v_readlane_b32 s62, v255, {32+i}")
                A("s_sub_u32 s62, s62, s61")
                A("v_mov_b32 v2, s62")
                A(f"buffer_store_dword v2, v1, {sr(S_DBG,4)}, 0 offen offset:{32+4*n}")
                A("s_nop 1")
            A("v_readlane_b32 s62, v255, 14")
            A("s_sub_u32 s62, s62, s63")
            A("v_mov_b32 v2, s62")
            A(f"buffer_store_dword v2, v1, {sr(S_DBG,4)}, 0 offen offset:28")

def gen_hooks(A):
    gen_attinit(A)
    for s in range(8):
        A.lab(f"L_OR{s}")
        A("s_sub_u32 s70, s70, 1")
        A("s_cmp_lt_i32 s70, 0")
        A(f"s_cbranch_scc1 L_OK{s}")
        A("s_waitcnt vmcnt(0)")
        A(f"s_sleep {OPT['osleep']}")
        for k in range(s, 8): o_load(A, k)
        A(f"s_branch L_OW{s}")
    A.lab("L_EXACT")
    A("s_mov_b32 s82, 0")
    A("s_and_b32 s95, s2, 31")
    A("s_lshl_b32 s95, s95, 16")
    A(f"s_add_u32 s95, s95, {KF:#x}")
    A(f"s_add_u32 s94, s95, {62*1024}")
    A(f"v_add_u32 v{VA}, {VF-KF-65536}, v98")
    A("v_mov_b32 v100, 0xff800000")
    for r in range(16): A(f"v_mov_b32 v{O_+r}, 0")
    for r in range(8, 16): A(f"v_mov_b32 v{S_[1]+r}, 0")
    A.lab("L_MAXLOOP")
    A(f"buffer_load_dwordx4 {vr(KB[0],4)}, v{L16}, {sr(S_WS,4)}, s94 offen sc1")
    A(f"buffer_load_dwordx4 {vr(KB[1],4)}, v{L16}, {sr(S_WS,4)}, s94 offen offset:1024 sc1")
    A("s_waitcnt vmcnt(0)")
    A(f"v_mfma_f32_32x32x16_bf16 {vr(S_[0],16)}, {vr(KB[0],4)}, {vr(Q_,4)}, 0")
    A(f"v_mfma_f32_32x32x16_bf16 {vr(C_,16)}, {vr(KB[1],4)}, {vr(Q_,4)}, 0")
    A("s_nop 11")
    for i in range(8): A(f"v_max3_f32 v100, v{2*i}, v{2*i+1}, v100")
    for i in range(8): A(f"v_max3_f32 v100, v{C_+2*i}, v{C_+2*i+1}, v100")
    A("s_cmp_eq_u32 s94, s95")
    A("s_cbranch_scc1 L_MAXDONE")
    A("s_sub_u32 s94, s94, 2048")
    A("s_branch L_MAXLOOP")
    A.lab("L_MAXDONE")
    A("v_mov_b32 v101, v100")
    A("s_nop 1")
    A("v_permlane32_swap_b32 v100, v101")
    A("s_nop 1")
    A("v_max_f32 v100, v100, v101")
    for r in range(16): A(f"v_sub_f32 v{C_+r}, 0, v100")
    A("s_nop 1")
    A(f"v_mfma_f32_32x32x16_bf16 {vr(S_[0],16)}, {vr(KB[0],4)}, {vr(Q_,4)}, {vr(C_,16)}")
    A("s_mov_b64 exec, s[80:81]")
    A(f"buffer_load_dwordx4 {vr(V0[0],4)}, v{VA}, {sr(S_WS,4)}, s94 offen sc1")
    A("s_mov_b64 exec, -1")
    A(f"buffer_load_dwordx4 {vr(KB[0],4)}, v{L16}, {sr(S_WS,4)}, s94 offen offset:2048 sc1")
    A("s_mov_b64 exec, s[80:81]")
    A(f"buffer_load_dwordx4 {vr(V0[1],4)}, v{VA}, {sr(S_WS,4)}, s94 offen offset:1024 sc1")
    A(f"buffer_load_dwordx4 {vr(V1[0],4)}, v{VA}, {sr(S_WS,4)}, s94 offen offset:512 sc1")
    A("s_mov_b64 exec, -1")
    A("s_mov_b32 s83, 0")
    A("s_nop 4")
    A.lab("L_LOOPP")
    attn_body(A, "P")
    A("s_cmp_lt_u32 s83, 32")
    A("s_cbranch_scc1 L_LOOPP")
    A("s_waitcnt vmcnt(0)")
    A("s_branch L_ATT_DONE")
    A.lab("L_CODE_END")

def main(out):
    hdr = open(f"cdna_kernels/{NAME}.s.ref").read().split("\n")
    head = [l for l in hdr if l.startswith(";") and "@launch" not in l]
    head += [f"; @launch grid=(256,1,1) block=(512,1,1) lds={LDS_BYTES}"]
    A = Asm()
    d = gen(A)
    open(out, "w").write("\n".join(head) + '\n.amdgcn_target "amdgcn-amd-amdhsa--gfx950"\n' + A.text() + d)

if __name__ == "__main__":
    for a in sys.argv[2:]:
        k, _, v = a.partition("=")
        OPT[k] = eval(v) if v else True
    main(sys.argv[1] if len(sys.argv) > 1 else f"cdna_kernels/{NAME}.s")
```

```python
import sys, struct

NAME = "recurrent_scan__softmax_full_mha__glu_gated_geglu__prompt"
MB = 1 << 20
QF, KF, VF, OF, WOF, WDF, HF, FLAGS = 0, 2*MB, 4*MB, 6*MB, 8*MB, 9*MB, 11*MB, 17*MB
WS_BYTES = 18*MB
NFU = 86
LOG2E = 1.4426950408889634
def f2u(x): return struct.unpack("<I", struct.pack("<f", x))[0]

OPT = dict(prof=False, bias=98.0, force_fallback=False, sleep=2, barpos=1, itstamp=False, hplan=[1,1,1,1,1,1,2,1], sigt=1, kvplan=[[1,4],[2,3,4,5]], psleep=3, gpre=100, gper=5, wearly=False, peel=True, wl1=0, nodown='', halfkv=False, b8prio=True, qsch='D', outfl=' nt', oearly=0, mimic=False, gpre0=64, woplan=[2,2,2,2,2,2,2,2], rwplan=[0,0,0,0,2,2,2,2], osleep=2, spf=False, prefetch=False, dmaevery=12, dbgout=False, fixdur=0, codepf=True, noload=False, bstamp=False, pace=None, wpf=[], dmalast=12, sidelate=False, sidepf=False, krot=None, two0=False, xmix=0, emap=False, wfl='', xfl='', exp='', w64=False, lprio=0, enc=-1, encrole='', cmap=True, prio='ramp2')
PROF_OFF = 24*MB
SPIN_MAX = 20000
VSH = 32

class Asm:
    def __init__(self): self.l = []
    def __call__(self, s): self.l.append(s if s.endswith(":") else "    " + s)
    def many(self, ss):
        for s in ss: self(s)
    def lab(self, s): self.l.append(s + ":")
    def raw(self, s): self.l.append(s)
    def text(self): return "\n".join(self.l) + "\n"
def vr(a, n): return f"v[{a}:{a+n-1}]"
def sr(a, n): return f"s[{a}:{a+n-1}]"
def srd(A, d, base, nbytes):
    A(f"s_mov_b32 s{d}, s{base}")
    A(f"s_mov_b32 s{d+1}, s{base+1}")
    A(f"s_mov_b32 s{d+2}, {nbytes:#x}")
    A(f"s_mov_b32 s{d+3}, 0x00020000")
def csel(A, d, a, b):
    A(f"s_mov_b32 s{d}, {b:#x}")
    A(f"s_cselect_b32 s{d}, {a:#x}, s{d}")
ROLE = [""]
def stamp(A, i):
    if OPT["enc"] == i and (not OPT["encrole"] or ROLE[0] in OPT["encrole"]):
        A("s_memrealtime s[100:101]")
        A("s_waitcnt lgkmcnt(0)")
    if not OPT["prof"]: return
    if OPT.get("profmin") and i not in (0, 7, 14): return
    A("s_memtime s[96:97]")
    A("s_memrealtime s[98:99]")
    A("s_waitcnt lgkmcnt(0)")
    A(f"v_writelane_b32 v255, s96, {i}")
    A(f"v_writelane_b32 v255, s98, {32+i}")

WR = 32768
WSL = 18560
UPOFF = 9344
QOFF = 135168
SCRATCH = 147456
SW = 163584
LDS_BYTES = 163840
QFLAG = FLAGS
QCNT = QFLAG + 64*128
NZ = 2
S_X, S_W, S_WS, S_DBG, S_OUT, S_T1, S_T2 = 24, 28, 32, 36, 40, 44, 48
L = 254
S_ = [0, 16]; C_ = 32; DACC = 48; Q_ = 80; KB = [84, 88]; O_ = 144; V0 = [160, 164]; V1 = [168, 172]
IDX, KA, VA, L16 = 92, 93, 94, 95
DH = [104, 116, 128, 140]; DW_ = [108, 120, 132, 176]
WO = 184; XV = 248

def spin(A, tag, loads, cmp_lines, first_loaded=False):
    A(f"s_mov_b32 s70, {SPIN_MAX}")
    if not first_loaded: A.many(loads)
    A.lab(tag)
    A("s_waitcnt vmcnt(0)")
    A.many(cmp_lines)
    A(f"s_cbranch_scc1 {tag}_OK")
    A(f"s_sleep {OPT['sleep']}")
    A.many(loads)
    A("s_sub_u32 s70, s70, 1")
    A("s_cmp_lg_u32 s70, 0")
    A(f"s_cbranch_scc1 {tag}")
    A.lab(tag + "_OK")
def spin3(A, tag, regs, voff, soff, n, primed=0):
    A(f"s_mov_b32 s70, {SPIN_MAX}")
    for r in regs[primed:2]:
        A.many(apoll(r, voff, soff, 1))
        A(f"s_sleep {OPT['psleep']}")
    A.lab(tag)
    for k in range(3):
        A.many(apoll(regs[(k+2) % 3], voff, soff, 1))
        A("s_waitcnt vmcnt(2)")
        A.many(acmp(regs[k], n, 1))
        A(f"s_cbranch_scc1 {tag}_OK")
        A(f"s_sleep {OPT['psleep']}")
    A("s_sub_u32 s70, s70, 1")
    A("s_cmp_lg_u32 s70, 0")
    A(f"s_cbranch_scc1 {tag}")
    A.lab(tag + "_OK")
def apoll(dst, voff, soff, mask):
    return [f"v_mov_b32 v{dst}, 0", f"s_mov_b64 exec, {mask}",
            f"buffer_atomic_add v{dst}, v{voff}, {sr(S_WS,4)}, {soff} offen sc0", "s_mov_b64 exec, -1"]
def acmp(v, n, mask):
    return [f"v_cmp_eq_u32 vcc, {n}, v{v}", f"s_cmp_eq_u64 vcc, {mask}"]
ALL1 = lambda v: [f"v_cmp_ne_u32 vcc, 1, v{v}", "s_cmp_eq_u64 vcc, 0"]

def last_wave_signals(A, tag, off, last):
    A(f"v_mov_b32 v96, {SW}")
    A("v_mov_b32 v97, 1")
    A("s_mov_b64 exec, 1")
    A(f"ds_add_rtn_u32 v100, v96, v97 offset:{off}")
    A("s_waitcnt lgkmcnt(0)")
    A("s_mov_b64 exec, -1")
    A("v_readfirstlane_b32 s60, v100")
    A(f"s_cmp_lg_u32 s60, {last}")
    A(f"s_cbranch_scc1 {tag}")
    A(f"v_lshlrev_b32 v96, 7, v{L}")
    if OPT["qsch"] == "E":
        A("s_mov_b64 exec, 1")
        A("v_mov_b32 v100, 1")
        A(f"buffer_atomic_add v100, v96, {sr(S_WS,4)}, s14 offen offset:{31*128} sc0")
        A("s_waitcnt vmcnt(0)")
        A("s_mov_b64 exec, -1")
        A("v_readfirstlane_b32 s60, v100")
        A("s_cmp_lg_u32 s60, 47")
        A(f"s_cbranch_scc1 {tag}")
        A("s_mov_b64 exec, 0xff")
        A(f"buffer_store_dword v97, v96, {sr(S_WS,4)}, s14 offen sc1")
    else:
        A("s_mov_b32 exec_hi, 0")
        A(f"buffer_atomic_add v97, v96, {sr(S_WS,4)}, s14 offen")
    A("s_mov_b64 exec, -1")
    A.lab(tag)

def gen(A):
    name = NAME + "_kernel"
    A.raw(".text"); A.raw(f".globl {name}"); A.raw(".p2align 8"); A.raw(f".type {name},@function")
    A.lab(name)
    A("s_cmp_ge_u32 s2, 256")
    A("s_cbranch_scc1 L_END")
    if OPT["fixdur"]: A("s_memrealtime s[100:101]")
    A("s_load_dwordx4 s[4:7], s[0:1], 0")
    A("s_load_dwordx2 s[8:9], s[0:1], 16")
    A("s_load_dwordx4 s[12:15], s[0:1], 32")
    A("s_load_dwordx4 s[52:55], s[0:1], 48")
    A("s_load_dwordx4 s[56:59], s[0:1], 64")
    if OPT["prof"]: A("v_mov_b32 v255, 0")
    stamp(A, 0)
    A("s_getpc_b64 s[60:61]")
    A.lab("L_PC")
    A("s_lshr_b32 s23, s2, 3")
    A("s_lshl_b32 s62, s23, 11")
    A("v_lshl_add_u32 v250, v0, 7, s62")
    A("v_cmp_gt_u32 s[62:63], 16, v0")
    A("v_cmp_gt_u32 vcc, L_CODE_END-L_PC-4, v250")
    A("v_lshrrev_b32 v252, 6, v0")
    A(f"v_and_b32 v{L}, 63, v0")
    A("s_and_b64 exec, vcc, s[62:63]")
    A("s_cbranch_execz L_NOPF")
    A("v_mov_b32 v251, s61")
    A("v_add_co_u32 v250, vcc, s60, v250")
    A("v_addc_co_u32 v251, vcc, 0, v251, vcc")
    A("global_load_dword v253, v[250:251], off")
    A.lab("L_NOPF")
    A("s_mov_b64 exec, -1")
    A("v_readfirstlane_b32 s22, v252")
    T = TL
    A(f"v_lshrrev_b32 v{T}, 3, v{L}")
    A(f"v_and_b32 v{T+1}, 7, v{L}")
    A(f"v_lshlrev_b32 v{VX}, 10, v{T}")
    A(f"v_lshl_add_u32 v{VX}, v{T+1}, 4, v{VX}")
    A("s_and_b32 s20, s2, 3" if OPT["emap"] else "s_bfe_u32 s20, s2, 0x20001")
    A("s_lshl_b32 s20, s20, 2")
    A("s_and_b32 s60, s23, 3")
    A("s_add_u32 s20, s20, s60")
    if OPT["krot"]:
        A("s_and_b32 s3, s20, 3")
        A(f"s_mul_i32 s3, s3, {OPT['krot'][0]}")
        A("s_lshr_b32 s60, s20, 2")
        A(f"s_mul_i32 s60, s60, {OPT['krot'][1]}")
        A("s_add_u32 s3, s3, s60")
        A("s_and_b32 s3, s3, 7")
        A("s_cmp_lt_u32 s2, 96")
        A("s_cselect_b32 s3, 0, s3")
        A("s_lshl_b32 s60, s3, 7")
        for c in range(8):
            A(f"v_add_u32 v{128+c}, s60, v{VX}")
            A("s_add_u32 s60, s60, 128")
            A("s_and_b32 s60, s60, 1023")
    A("s_cmp_lt_u32 s22, 4")
    A("s_cbranch_scc1 L_COMMON")
    loader_first(A)
    A.lab("L_COMMON")
    A("s_lshr_b32 s62, s23, 2")
    A("s_and_b32 s63, s2, 1")
    A("s_lshl_b32 s21, s62, 1")
    A("s_add_u32 s21, s21, s63")
    A("s_mul_i32 s63, s63, 5")
    A("s_add_u32 s63, s63, s62")
    A("s_add_u32 s63, s63, 3")
    A("s_cmp_ge_u32 s62, 3")
    A("s_cselect_b32 s21, s63, s21")
    if OPT["emap"]:
        A("s_bfe_u32 s63, s2, 0x10002")
        A("s_lshl_b32 s63, s63, 3")
        A("s_add_u32 s21, s62, s63")
    A("s_waitcnt lgkmcnt(0)")
    srd(A, S_X, 4, 2048*512*2)
    A("s_mov_b64 s[16:17], s[52:53]")
    A("s_mov_b64 s[18:19], s[58:59]")
    srd(A, S_WS, 58, WS_BYTES)
    srd(A, S_DBG, 56, 256)
    srd(A, S_OUT, 54, 2048*512*2)
    srd(A, S_T1, 58, 0)
    srd(A, S_T2, 58, 0)
    for r in HOFF: A(f"s_mov_b32 s{r}, 0x7fff0000")
    A("s_cmp_lt_u32 s22, 4")
    A("s_cbranch_scc1 L_COMPUTE")
    gen_loader(A)
    A("s_branch L_P0")
    A.lab("L_COMPUTE")
    A("s_mov_b32 s23, 0")
    gen_init(A)
    A("s_cmp_ge_u32 s21, 6")
    A("s_cbranch_scc1 L_F")
    A("s_cmp_ge_u32 s21, 4")
    A("s_cbranch_scc1 L_V")
    gen_compute(A, "QK")
    A.lab("L_V")
    gen_compute(A, "V")
    A.lab("L_SIGNAL")
    A("s_and_b32 s14, s21, 1")
    A("s_lshl_b32 s14, s14, 12")
    A(f"s_add_u32 s14, s14, {QCNT:#x}")
    A("s_waitcnt vmcnt(0)")
    last_wave_signals(A, "L_SIG2", 0, 3)
    stamp(A, 15)
    A("s_branch L_P2")
    A.lab("L_F")
    gen_compute(A, "F")
    A.lab("L_P2")
    gen_attn(A)
    gen_final(A)
    A.lab("L_END")
    A("s_endpgm")
    gen_hooks(A)
    return f""".section .rodata,"a"
.p2align 6
.amdhsa_kernel {name}
  .amdhsa_next_free_vgpr 256
  .amdhsa_next_free_sgpr 102
  .amdhsa_accum_offset 256
  .amdhsa_group_segment_fixed_size 0
  .amdhsa_kernarg_size 80
  .amdhsa_user_sgpr_count 2
  .amdhsa_user_sgpr_kernarg_segment_ptr 1
  .amdhsa_system_sgpr_workgroup_id_x 1
.end_amdhsa_kernel
"""

def gen_init(A):
    R = 160
    A("s_cmp_lg_u32 s22, 0")
    A("s_cbranch_scc1 L_INIT1")
    for r in range(R, R+4): A(f"v_mov_b32 v{r}, 0")
    A(f"v_mov_b32 v{R+4}, {SW}")
    A(f"ds_write_b128 v{R+4}, {vr(R,4)}")
    A("s_sub_u32 s61, s2, 132")
    A(f"s_cmp_ge_u32 s61, {NZ}")
    A("s_cbranch_scc1 L_INIT1")
    A(f"v_lshlrev_b32 v{R+4}, 7, v{L}")
    A("s_lshl_b32 s60, s61, 13")
    A(f"s_add_u32 s60, s60, {FLAGS:#x}")
    A(f"buffer_store_dword v{R}, v{R+4}, {sr(S_WS,4)}, s60 offen sc1")
    A("s_nop 1")
    A.lab("L_INIT1")
    for r in range(144): A(f"v_mov_b32 v{r}, 0")
    if OPT["sidepf"]:
        A("s_mov_b32 s60, s22")
        side_setup(A)
    A("s_call_b64 s[76:77], L_ATTINIT")
    A("s_lshr_b32 s60, s22, 1")
    A("s_and_b32 s61, s22, 1")

VW = 144
def gen_wsetup(A):
    T = 158
    A("s_bfe_u32 s62, s22, 0x10001")
    A("s_and_b32 s63, s22, 1")
    A("s_cmp_lt_u32 s21, 6")
    A("s_cbranch_scc1 LL_Q")
    A("s_cmp_eq_u32 s63, 0")
    A(f"s_cselect_b32 s{S_W}, s12, s14")
    A(f"s_cselect_b32 s{S_W+1}, s13, s15")
    A(f"s_mov_b32 s{S_W+2}, {512*1376*2:#x}")
    A("s_sub_u32 s64, s21, 6")
    A(f"s_mul_i32 s64, s64, {9*32}")
    A(f"s_mov_b32 s65, {2752-288}")
    A(f"v_mul_u32_u24 v{T+2}, 3641, v{L}")
    A(f"v_lshl_add_u32 v{T+3}, v{L}, 4, s64")
    for i in range(9):
        A(f"v_add_u32 v{T+4}, {64*i*3641}, v{T+2}")
        A(f"v_lshrrev_b32 v{T+4}, 16, v{T+4}")
        A(f"v_add_u32 v{T+5}, {1024*i}, v{T+3}")
        A(f"v_mad_u32_u24 v{VW+i}, v{T+4}, s65, v{T+5}")
    A(f"v_and_b32 v{T+2}, 3, v{L}")
    A(f"v_min_u32 v{T+2}, 2, v{T+2}")
    A("s_mov_b32 s65, 2752")
    A(f"s_mov_b32 s68, {32*2752}")
    A("s_branch LL_C")
    A.lab("LL_Q")
    A(f"s_mov_b32 s{S_W}, s6")
    A(f"s_mov_b32 s{S_W+1}, s7")
    A(f"s_mov_b32 s{S_W+2}, {512*1536*2:#x}")
    A(f"v_lshrrev_b32 v{T+3}, 4, v{L}")
    A(f"v_mul_u32_u24 v{T+2}, 3072, v{T+3}")
    A(f"v_bfe_u32 v{T+4}, v{L}, 2, 2")
    A(f"v_xor_b32 v{T+4}, v{T+4}, v{T+3}")
    A(f"v_lshl_add_u32 v{T+2}, v{T+4}, 6, v{T+2}")
    A(f"v_and_b32 v{T+3}, 3, v{L}")
    A(f"v_lshl_add_u32 v{T+2}, v{T+3}, 4, v{T+2}")
    A("s_lshl_b32 s64, s21, 9")
    A("s_lshl_b32 s65, s63, 8")
    A("s_add_u32 s64, s64, s65")
    A(f"v_add_u32 v{VW}, s64, v{T+2}")
    for i in range(1, 9): A(f"v_add_u32 v{VW+i}, {i*4*3072}, v{VW}")
    A(f"v_and_b32 v{T+2}, 1, v{L}")
    A("s_mov_b32 s65, 3072")
    A(f"s_mov_b32 s68, {32*3072}")
    A.lab("LL_C")
    A("s_and_b32 s66, s20, 3")
    A("s_lshl_b32 s66, s66, 3")
    A(f"v_lshrrev_b32 v{T+3}, 2, v{L}")
    A(f"v_add_u32 v{T+3}, s66, v{T+3}")
    A(f"v_mul_u32_u24 v{T+3}, s65, v{T+3}")
    A(f"v_lshl_add_u32 v{T+3}, v{T+2}, 7, v{T+3}")
    A(f"v_add_u32 v{VW+9}, s64, v{T+3}")
    A(f"s_mov_b32 s{S_W+3}, 0x00020000")
    A(f"s_mul_i32 s71, s62, {WSL}")
    A(f"s_mul_i32 s66, s63, {UPOFF}")
    A("s_add_u32 s71, s71, s66")
    A(f"s_add_u32 s71, s71, {WR}")
    A("s_mov_b32 s72, s71")
    A(f"s_add_u32 s73, s71, {6*WSL}")
    A("s_mul_i32 s74, s62, s68")
    A("s_lshl_b32 s68, s68, 1")
    if OPT["krot"]:
        A("s_mul_i32 s66, s3, s68")
        A("s_add_u32 s74, s74, s66")
        A("s_lshl_b32 s3, s68, 3")

W_PREFETCH = ["s_add_u32 s67, s74, s68", "s_mov_b32 exec_hi, 0",
              f"buffer_load_dword v253, v{VW+9}, {sr(S_W,4)}, s67 offen", "s_mov_b64 exec, -1"]
_dma_n = [0]
def dma_piece(i): return [f"s_add_u32 m0, s72, {i*1024}", "s_nop 0", f"buffer_load_dwordx4 v{VW+i}, {sr(S_W,4)}, s74 offen{OPT['wfl']} lds"]
DMA_TAIL = ["s_add_u32 s74, s74, s68", f"s_add_u32 s72, s72, {2*WSL}", "s_cmp_eq_u32 s72, s73", "s_cselect_b32 s72, s71, s72"]
def dma_groups(first):
    g = [dma_piece(i) for i in range(first, 9)]
    _dma_n[0] += 1
    lab = f"LL_D{_dma_n[0]}"
    wrap = ["s_cmp_ge_u32 s74, s3", "s_cselect_b32 s67, s3, 0", "s_sub_u32 s74, s74, s67"] if OPT["krot"] else []
    g[-1] = ["s_cmp_lt_u32 s21, 6", f"s_cbranch_scc1 {lab}"] + g[-1] + [lab + ":"] + DMA_TAIL + wrap
    return g
def mix(A, work, groups, every):
    groups = list(groups)
    for n, w in enumerate(work):
        if isinstance(every, (list, tuple)):
            for _ in range(every.count(n)):
                if groups: A.many(groups.pop(0))
        elif groups and n % every == 0: A.many(groups.pop(0))
        A(w)
    for g in groups: A.many(g)

HREG = 184
HOFF = [52, 53, 54, 55, 56, 57, 58, 59, 10]
def h_offsets(A):
    tiles = [(lu*2+lt, lu, lt) for lu in range(4) for lt in range(2)] + [(8, 4, 0)]
    for (tile, lu, lt) in tiles:
        A("s_add_u32 s66, s64, 8" if lu == 4 else f"s_add_u32 s66, s65, {lu}")
        A("s_lshl_b32 s67, s66, 10")
        A(f"s_add_u32 s67, s67, s{62+lt}")
        A(f"s_cmp_lt_u32 s66, {NFU}")
        A(f"s_cselect_b32 s{HOFF[tile]}, s67, 0x7fff0000")

SJ = 184
def side_setup(A):
    A("s_mul_i32 s75, s20, 10")
    A("s_add_u32 s75, s75, s21")
    A("s_sub_u32 s75, s75, 6")
    A("s_mul_i32 s75, s75, 3")
    A("s_add_u32 s75, s75, s60")
    A("s_sub_u32 s75, s75, 1")
    A(f"v_lshrrev_b32 v245, 5, v{L}")
    A("v_lshlrev_b32 v245, 10, v245")
    A(f"v_and_b32 v246, 31, v{L}")
    A("v_lshl_add_u32 v245, v246, 4, v245")
    for jb in range(2):
        S = 4 if jb else S_W
        A(f"s_add_u32 s90, s75, {480*jb}")
        A("s_cmp_lt_u32 s90, 256")
        A(f"s_cselect_b32 s{S}, s8, s16")
        A(f"s_cselect_b32 s{S+1}, s9, s17")
        csel(A, S+2, 512*512*2, 1376*512*2)
        A(f"s_mov_b32 s{S+3}, 0x00020000")
        csel(A, 91, WOF, WDF)
        csel(A, 67, 32*2048, NFU*2048)
        A("s_cselect_b32 s70, 0, 256")
        A("s_sub_u32 s70, s90, s70")
        A("s_lshr_b32 s94, s70, 3")
        A("s_and_b32 s70, s70, 7")
        A(f"s_lshl_b32 s{72+jb}, s94, 14")
        A("s_lshl_b32 s95, s70, 7")
        A(f"s_add_u32 s{72+jb}, s{72+jb}, s95")
        A("s_mul_i32 s70, s70, s67")
        A("s_lshl_b32 s94, s94, 11")
        A("s_add_u32 s70, s70, s94")
        A("s_add_u32 s70, s70, s91")
        A(f"s_cmp_lt_u32 s90, {256+8*NFU}")
        A(f"s_cselect_b32 s{92+jb}, s70, 0x7fff0000")
def side_prefetch(A):
    A("s_mov_b64 exec, 0xffff")
    A(f"buffer_load_dword v253, v245, {sr(S_T1,4)}, s81 offen")
    A(f"buffer_load_dword v253, v245, {sr(S_T2,4)}, s82 offen")
    A("s_mov_b64 exec, -1")
def side_loads(A, jb):
    S = 4 if jb else S_W
    for rho in range(16):
        hh = (rho >> 2) & 1; j = (rho & 3) + 4*(rho >> 3)
        d = 204 + 8*jb + 16*(j & 1) + 4*hh + (j >> 1)
        A(f"buffer_load_ushort v{d}, v244, {sr(S,4)}, s{72+jb} offen offset:{(rho&3)*1024}")
        if (rho & 3) == 3: A(f"s_add_u32 s{72+jb}, s{72+jb}, 4096")
def side_combine(A):
    for i in range(16): A(f"v_lshl_or_b32 v{204+i}, v{220+i}, 16, v{204+i}")
def side_offsets(A):
    for jb in range(2):
        A(f"s_mov_b32 s{HOFF[5+2*jb]}, s{92+jb}")
        A(f"s_add_u32 s{HOFF[6+2*jb]}, s{92+jb}, 512")
    A("v_mov_b32 v249, v245")

def gen_compute(A, kind):
    F = kind == "F"
    ROLE[0] = kind[0]
    NW = 5 if F else 4
    ND = 9 if F else 8
    XS = [176, 184]; WSET = [192, 212]
    XA = 232; XB = 236; WA = 240; T0 = 244
    KQ = 1152 if F else 1024
    US = 32
    P = "L1" + kind
    t, h, sw = T0, T0+1, T0+2
    A(f"v_and_b32 v{t}, 31, v{L}")
    A(f"v_lshrrev_b32 v{h}, 5, v{L}")
    A(f"v_bfe_u32 v{sw}, v{t}, 1, 3")
    A(f"v_xor_b32 v{sw}, v{sw}, v{h}")
    A(f"v_lshlrev_b32 v{T0+3}, 7, v{t}")
    A("s_lshl_b32 s62, s22, 12")
    for s in range(4):
        A(f"v_xor_b32 v{T0+4}, {2*s}, v{sw}")
        A(f"v_lshl_add_u32 v{T0+4}, v{T0+4}, 4, v{T0+3}")
        A(f"v_add_u32 v{XA+s}, s62, v{T0+4}")
        A(f"v_xor_b32 v{XB+s}, 0x1000, v{XA+s}")
    if F:
        A(f"v_bfe_u32 v{T0+5}, v{L}, 2, 2")
        A(f"v_mul_u32_u24 v{T0+5}, 288, v{T0+5}")
        A(f"v_and_b32 v{T0+3}, 3, v{L}")
        A(f"v_lshl_add_u32 v{T0+3}, v{T0+3}, 3, v{T0+5}")
        A(f"v_bfe_u32 v{T0+4}, v{L}, 4, 1")
        A(f"v_mul_u32_u24 v{T0+4}, {UPOFF}, v{T0+4}")
        A(f"v_add_u32 v{T0+3}, v{T0+3}, v{T0+4}")
    else:
        A(f"v_bfe_u32 v{T0+5}, v{L}, 2, 2")
        A(f"v_and_b32 v{T0+3}, 3, v{L}")
        A(f"v_lshlrev_b32 v{T0+3}, 3, v{T0+3}")
        A(f"v_lshl_add_u32 v{T0+3}, v{T0+5}, 8, v{T0+3}")
        A(f"v_bfe_u32 v{T0+4}, v{L}, 4, 1")
        A(f"v_lshl_add_u32 v{T0+3}, v{T0+4}, 5, v{T0+3}")
    A(f"v_mul_u32_u24 v{T0+4}, {2*KQ}, v{h}")
    A(f"v_add_u32 v{T0+3}, v{T0+3}, v{T0+4}")
    A(f"v_add_u32 v{T0+3}, {WR}, v{T0+3}")
    if F:
        A(f"s_mul_i32 s62, s61, {4*US}")
        A(f"v_add_u32 v{WA}, s62, v{T0+3}")
        A(f"v_add_u32 v{WA+1}, {8*US}, v{T0+3}")
    else:
        A(f"s_mul_i32 s62, s61, {UPOFF}")
        A(f"v_add_u32 v{T0+3}, s62, v{T0+3}")
        for lu in range(4):
            A(f"v_xor_b32 v{T0+4}, {lu}, v{T0+5}")
            A(f"v_lshl_add_u32 v{WA+lu}, v{T0+4}, 6, v{T0+3}")
    VO = 249
    if kind == "QK":
        A(f"v_and_b32 v{T0+6}, 0x33, v{L}")
        A(f"v_bfe_u32 v{T0+7}, v{L}, 2, 1")
        A(f"v_lshl_or_b32 v{T0+6}, v{T0+7}, 3, v{T0+6}")
        A(f"v_bfe_u32 v{T0+7}, v{L}, 3, 1")
        A(f"v_lshl_or_b32 v{T0+6}, v{T0+7}, 2, v{T0+6}")
        A("s_cmp_lt_u32 s21, 2")
        A("s_cselect_b64 vcc, -1, 0")
        A(f"v_cndmask_b32 v{VO}, v{T0+6}, v{L}, vcc")
        A(f"v_lshlrev_b32 v{VO}, 4, v{VO}")
    elif kind == "V":
        A(f"v_and_b32 v{VO}, 15, v{L}")
        A(f"v_lshlrev_b32 v{VO}, 4, v{VO}")
        A(f"v_lshl_or_b32 v{VO}, v{h}, 8, v{VO}")
        A(f"v_bfe_u32 v{T0+6}, v{L}, 4, 1")
        A(f"v_lshl_or_b32 v{VO}, v{T0+6}, 16, v{VO}")
    else:
        A(f"v_lshlrev_b32 v{VO}, 4, v{L}")
    A("s_lshl_b32 s68, s20, 2")
    A("s_add_u32 s68, s68, s22")
    A("s_xor_b32 s69, s68, 1")
    if not F:
        A("s_lshl_b32 s70, s21, 20")
        A("s_lshl_b32 s71, s61, 19")
        A("s_add_u32 s70, s70, s71")
        A("s_lshl_b32 s68, s68, 10")
        A("s_lshl_b32 s69, s69, 10")
        A("s_add_u32 s68, s68, s70")
        A("s_add_u32 s69, s69, s70")
    if F:
        A(f"s_mul_i32 s62, s68, {NFU*1024}")
        A(f"s_mul_i32 s63, s69, {NFU*1024}")
        A(f"s_add_u32 s62, s62, {HF:#x}")
        A(f"s_add_u32 s63, s63, {HF:#x}")
        A("s_sub_u32 s64, s21, 6")
        A("s_mul_i32 s64, s64, 9")
        A("s_lshl_b32 s65, s61, 2")
        A("s_add_u32 s65, s65, s64")
        h_offsets(A)
    A("s_mov_b32 s64, 0")
    A("s_mov_b32 s65, 0")

    def reads(st, s):
        r = []
        hs, sp = s >> 1, s & 1
        def wread(lu):
            a = WA + ((1 if lu == 4 else 0) if F else lu)
            base = hs*WSL + 4*sp*KQ + (lu*US if F and lu < 4 else 0)
            d = WSET[st] + 4*lu
            return [f"ds_read_b64_tr_b16 {vr(d,2)}, v{a} offset:{base}",
                    f"ds_read_b64_tr_b16 {vr(d+2,2)}, v{a} offset:{base+KQ}"]
        r.append(f"ds_read_b128 {vr(XS[st],4)}, v{XA+s}")
        r += wread(0)
        r.append(f"ds_read_b128 {vr(XS[st]+4,4)}, v{XB+s}")
        for lu in range(1, NW): r += wread(lu)
        return r
    def mfma(tile, w, x):
        a, b = (x, w) if kind == "V" else (w, x)
        return f"v_mfma_f32_32x32x16_bf16 {vr(16*tile,16)}, {vr(a,4)}, {vr(b,4)}, {vr(16*tile,16)}"
    def mfmas(st):
        m = [mfma(lu*2+lt, WSET[st]+4*lu, XS[st]+4*lt) for lu in range(4) for lt in range(2)]
        if F: m.append(mfma(8, WSET[st]+16, XS[st]))
        return m
    stamp(A, 1)
    A("s_waitcnt vmcnt(0) lgkmcnt(0)" if F else "s_waitcnt lgkmcnt(0)")
    A("s_barrier")
    stamp(A, 2)
    A.many(reads(0, 0))
    if F and OPT["sidepf"]:
        A("s_cmp_eq_u32 s22, 0")
        A("s_cbranch_scc1 L_NOSPF")
        A(f"v_lshlrev_b32 v250, 10, v{L}")
        A("s_mov_b64 exec, 0xffff")
        A(f"buffer_load_dword v253, v250, {sr(S_W,4)}, s72 offen")
        A(f"buffer_load_dword v253, v250, s[4:7], s73 offen")
        A("s_mov_b64 exec, -1")
        A.lab("L_NOSPF")
    if F:
        A("s_sub_u32 s66, s2, 132")
        A("s_lshl_b32 s67, s22, 8")
        A("s_add_u32 s66, s66, s67")
        A(f"s_cmp_ge_u32 s66, {NZ}")
        A(f"s_cbranch_scc1 {P}_LOOP")
        A("s_lshl_b32 s66, s66, 2")
        A("s_mov_b64 exec, 1")
        A("v_mov_b32 v250, 1")
        A("v_mov_b32 v251, 0")
        A(f"buffer_store_dword v250, v251, {sr(S_DBG,4)}, s66 offen sc1")
        A("s_mov_b64 exec, -1")
    A.raw(".p2align 6")
    A.lab(P + "_LOOP")
    NR = 2*NW + 2
    PEEL = OPT["peel"] and not F
    NIT = 7 if PEEL else 8
    need = [3, 4, 6, 6, 8, 8, 10, 10, 12]
    for s in range(4):
        st = s & 1; nx = (s+1) & 3
        ms = mfmas(st); rd = reads(1-st, nx)
        n = len(ms)
        gaps = [[] for _ in ms]
        g0 = OPT["barpos"] if s == 3 else 0
        for i, r in enumerate(rd): gaps[g0 + i//2].append(r)
        xu = lambda k: [f"v_xor_b32 v{XA+k}, 0x4000, v{XA+k}", f"v_xor_b32 v{XB+k}, 0x4000, v{XB+k}"]
        if s < 3:
            gaps[n-2] += xu(nx)
        if s == 0: gaps[n-3] += xu(0)
        if s == 1:
            gaps[n-3] += ["s_cmp_eq_u32 s65, 2", f"s_mov_b32 s66, {2*WSL:#x}", f"s_cselect_b32 s66, {(-4*WSL) & 0xffffffff:#x}, s66"]
            gaps[n-1] += ["s_cselect_b32 s65, -1, s65", "s_add_u32 s65, s65, 1"]
        if s == 2:
            gaps[n-1] += [f"v_add_u32 v{WA+i}, s66, v{WA+i}" for i in range(2 if F else 4)]
        if s == 3:
            gaps[n-1] += ["s_add_u32 s64, s64, 1", f"s_cmp_lt_u32 s64, {NIT}"]
        issued = 0; done = 0
        for i, (m, g) in enumerate(zip(ms, gaps)):
            if need[i] > done:
                A(f"s_waitcnt lgkmcnt({min(15, NR - need[i] + issued)})"); done = need[i]
            A(m)
            if s == 3 and i == g0:
                A("s_waitcnt lgkmcnt(0)"); done = NR
                A("s_barrier")
            for x in g:
                A(x)
                if x.startswith("ds_"): issued += 1
    if OPT["prof"] and OPT["itstamp"]:
        A("s_memtime s[96:97]")
        A("s_memrealtime s[98:99]")
        A("s_add_u32 m0, s64, 19")
        A("s_waitcnt lgkmcnt(0)")
        A("v_writelane_b32 v255, s96, m0")
        A("s_add_u32 m0, s64, 51")
        A("s_nop 0")
        A("v_writelane_b32 v255, s98, m0")
        A(f"s_cmp_lt_u32 s64, {NIT}")
    A(f"s_cbranch_scc1 {P}_LOOP")
    stamp(A, 3)
    tiles = [(lu*2+lt, lu, lt) for lu in range(4) for lt in range(2)] + ([(8, 4, 0)] if F else [])
    if not F:
        def fin(tile, lu, lt):
            a = 16*tile
            g = [[f"v_cvt_pk_bf16_f32 v{a+i}, v{a+2*i}, v{a+2*i+1}" for i in range(4)],
                 [f"s_add_u32 s65, s{68+lt}, {lu*131072}", f"buffer_store_dwordx4 {vr(a,4)}, v{VO}, {sr(S_WS,4)}, s65 offen sc1"],
                 [f"v_cvt_pk_bf16_f32 v{a+8+i}, v{a+8+2*i}, v{a+9+2*i}" for i in range(4)]]
            if kind == "QK": g.append(["s_add_u32 s65, s65, 65536", f"buffer_store_dwordx4 {vr(a+8,4)}, v{VO}, {sr(S_WS,4)}, s65 offen sc1"])
            else: g.append([f"buffer_store_dwordx4 {vr(a+8,4)}, v{VO}, {sr(S_WS,4)}, s65 offen offset:512 sc1"])
            if OPT["pace"] is not None:
                g[1].insert(0, f"s_waitcnt vmcnt({OPT['pace']})"); g[3].insert(0, f"s_waitcnt vmcnt({OPT['pace']})")
            return g
        rest = tiles
        if PEEL:
            XR = {1: XS[1], 2: 128, 3: 136}
            WG = [[212, 216, 220], [224, 228, 208]]
            def wrd(lu):
                r = []
                for s in (1, 2, 3):
                    base = (s >> 1)*WSL + 4*(s & 1)*KQ; d = WG[lu & 1][s-1]
                    r += [f"ds_read_b64_tr_b16 {vr(d,2)}, v{WA+lu} offset:{base}", f"ds_read_b64_tr_b16 {vr(d+2,2)}, v{WA+lu} offset:{base+KQ}"]
                return r
            w0 = wrd(0); rd = []
            for s in (1, 2, 3):
                rd += [f"ds_read_b128 {vr(XR[s],4)}, v{XA+s}", f"ds_read_b128 {vr(XR[s]+4,4)}, v{XB+s}"] + w0[2*s-2:2*s]
            issued = 0; done = 0
            for i, m in enumerate(mfmas(0)):
                if need[i] > done:
                    A(f"s_waitcnt lgkmcnt({min(15, NR - need[i] + issued)})"); done = need[i]
                A(m)
                A.many(rd[2*i:2*i+2]); issued += len(rd[2*i:2*i+2])
            pend = []
            for lu in range(4):
                A("s_waitcnt lgkmcnt(0)")
                if lu == 3: A("s_barrier")
                nxt = wrd(lu+1) if lu < 3 else []
                for i, (s, lt) in enumerate((s, lt) for s in (1, 2, 3) for lt in range(2)):
                    A(mfma(lu*2+lt, WG[lu & 1][s-1], XR[s]+4*lt))
                    A.many(nxt[2*i:2*i+2])
                    if i == 2 and lu > 0:
                        A("s_nop 3")
                        for tl in tiles[2*(lu-1):2*lu]: pend += fin(*tl)
                    for _ in range(2 if i >= 3 else 1):
                        if pend: A.many(pend.pop(0))
            for g in pend: A.many(g)
            A("s_nop 7")
            rest = tiles[6:]
        for tl in rest:
            for g in fin(*tl): A.many(g)
        stamp(A, 4)
        if kind == "QK": A("s_branch L_SIGNAL")
    else:
        C1, C3, ONE, TT = 220, 222, 224, 176
        c1 = -2*0.7978845608028654*LOG2E
        A("s_waitcnt lgkmcnt(0)")
        for r, v in ((C1, c1), (C3, c1*0.044715), (ONE, 1.0)):
            A(f"v_mov_b32 v{r}, {f2u(v):#x}")
            A(f"v_mov_b32 v{r+1}, {f2u(v):#x}")
        dst = lambda tile: HREG + 4*tile
        def stage(tile, k):
            a = 16*tile; T_ = TT if tile & 1 else 232
            pk = lambda op, d, *src: [f"{op} {vr(d+2*i,2)}, " + ", ".join(vr(x+2*i*st,2) for x, st in src) for i in range(4)]
            if k == 0: return (pk("v_pk_mul_f32", T_, (a,1), (a,1)) + pk("v_pk_fma_f32", T_, (T_,1), (C3,0), (C1,0))
                               + pk("v_pk_mul_f32", T_, (T_,1), (a,1)) + pk("v_pk_mul_f32", a, (a,1), (a+8,1)))
            if k == 1: return [f"v_exp_f32 v{T_+i}, v{T_+i}" for i in range(8)]
            if k == 2: return pk("v_pk_add_f32", T_, (T_,1), (ONE,0))
            if k == 3: return [f"v_rcp_f32 v{T_+i}, v{T_+i}" for i in range(8)]
            return pk("v_pk_mul_f32", a, (a,1), (T_,1)) + [f"v_cvt_pk_bf16_f32 v{dst(tile)+i}, v{a+2*i}, v{a+2*i+1}" for i in range(4)]
        A.many(stage(0, 0)); A.many(stage(0, 1))
        for tile in range(9):
            if tile < 8: A.many(stage(tile+1, 0))
            else: A("s_nop 0")
            A.many(stage(tile, 2)); A.many(stage(tile, 3))
            if tile < 8: A.many(stage(tile+1, 1))
            else: A("s_nop 0")
            A.many(stage(tile, 4))
        stamp(A, 4)

VX = 212; DW = 240; S1 = 216; S2 = 220; RR = 224; MR = 228; TL = 232
xreg = lambda c, i: (i*8 + c)*4
def xload_(A, i):
    A(f"s_add_u32 s{85+i}, s80, {i}")
    A(f"s_and_b32 s{85+i}, s{85+i}, 3")
    A(f"s_lshl_b32 s89, s{85+i}, 13")
    A("s_add_u32 s89, s89, s61")
    for c in range(8):
        if OPT["krot"]: A(f"buffer_load_dwordx4 {vr(xreg(c,i),4)}, v{128+c}, {sr(S_X,4)}, s89 offen")
        else: A(f"buffer_load_dwordx4 {vr(xreg(c,i),4)}, v{VX}, {sr(S_X,4)}, s89 offen offset:{c*128}{OPT['xfl']}")
def loader_first(A):
    T = TL
    A("s_sub_u32 s60, s22, 4")
    A("s_lshl_b32 s61, s20, 17")
    A("s_lshl_b32 s62, s60, 15")
    A("s_add_u32 s61, s61, s62")
    A("s_lshr_b32 s80, s2, 5")
    A("s_waitcnt lgkmcnt(0)")
    srd(A, S_X, 4, 2048*512*2)
    xload_(A, 0); xload_(A, 1)

def gen_loader(A):
    ROLE[0] = "L"
    T = TL
    xload = lambda i: xload_(A, i)
    gen_wsetup(A)
    if not OPT["xmix"]: xload(2)
    A("s_cmp_lt_u32 s21, 2")
    A(f"s_cselect_b32 s69, {f2u(0.25*LOG2E):#x}, 1.0")
    A("s_lshr_b32 s64, s21, 1")
    A("s_cmp_eq_u32 s64, 2")
    A(f"s_cselect_b32 s69, {f2u(2.0**VSH):#x}, s69")
    for r in range(S1, S2+4): A(f"v_mov_b32 v{r}, 0")
    A("s_mov_b32 s78, 0x3f803f80")
    A("v_mov_b32 v249, 0")
    A(f"v_lshlrev_b32 v244, 1, v{L}")
    A("s_cmp_ge_u32 s21, 6")
    A("s_cselect_b32 s79, s60, 0")
    def norm(c, i):
        x = xreg(c, i); r = []
        for d in range(4):
            r.append(f"v_lshlrev_b32 v{T+2*d}, 16, v{x+d}")
            r.append(f"v_and_b32 v{T+2*d+1}, 0xffff0000, v{x+d}")
        for d in range(8): r.append(f"v_fma_f32 v{T+d}, v{T+d}, v{RR+i}, -v{MR+i}")
        for d in range(4): r.append(f"v_cvt_pk_bf16_f32 v{x+d}, v{T+2*d}, v{T+2*d+1}")
        if OPT["w64"]:
            r.insert(-2, f"ds_write_b64 v{DW+i}, {vr(x,2)} offset:{(c&1)*16384}")
            r.append(f"ds_write_b64 v{DW+i}, {vr(x+2,2)} offset:{(c&1)*16384+8}")
        else: r.append(f"ds_write_b128 v{DW+i}, {vr(x,4)} offset:{(c&1)*16384}")
        return r
    def dots(i):
        r = []
        for k in range(32):
            r.append(f"v_dot2c_f32_bf16 v{S2+i}, v{xreg(0,i)+k}, v{xreg(0,i)+k}")
            r.append(f"v_dot2c_f32_bf16 v{S1+i}, s78, v{xreg(0,i)+k}")
        return r
    def xgroups(i):
        B = Asm(); xload_(B, i); l = [x.strip() for x in B.l]
        return [l[:5]] + [[x] for x in l[5:]]
    if OPT["xmix"]:
        for i in (2, 3):
            A(f"s_add_u32 s{85+i}, s80, {i}")
            A(f"s_and_b32 s{85+i}, s{85+i}, 3")
    else:
        A("s_waitcnt vmcnt(16)"); stamp(A, 16)
        xload(3)
        A.many(dots(0))
    A(f"v_lshrrev_b32 v{T+2}, 4, v{L}")
    A(f"v_xor_b32 v{T+2}, v{T+2}, v{T+1}")
    A(f"v_lshlrev_b32 v{T+3}, 7, v{T}")
    A("s_lshl_b32 s64, s60, 12")
    A(f"v_add_u32 v{T+3}, s64, v{T+3}")
    A(f"v_lshl_add_u32 v{T+3}, v{T+2}, 4, v{T+3}")
    for i in range(4):
        A(f"s_and_b32 s64, s{85+i}, 1")
        A("s_lshl_b32 s64, s64, 6")
        A(f"s_lshl_b32 s65, s{85+i}, 10")
        A("s_or_b32 s64, s64, s65")
        A(f"v_xor_b32 v{DW+i}, s64, v{T+3}")
    def vmw(base, tag):
        A(f"s_waitcnt vmcnt({base+9})")
        A("s_cmp_ge_u32 s21, 6")
        A(f"s_cbranch_scc1 {tag}")
        A(f"s_waitcnt vmcnt({base+8})")
        A.lab(tag)
    if OPT["xmix"]:
        e = OPT["xmix"]
        A("s_waitcnt vmcnt(8)"); stamp(A, 16)
        mix(A, dots(0), xgroups(2), e)
        A("s_waitcnt vmcnt(8)"); stamp(A, 17)
        mix(A, dots(1), xgroups(3), e)
        A("s_waitcnt vmcnt(8)"); stamp(A, 18)
        mix(A, dots(2), dma_groups(0), 7)
    elif A("s_waitcnt vmcnt(16)") or stamp(A, 17): pass
    elif OPT["wearly"]:
        mix(A, dots(1), dma_groups(0), 7)
        vmw(8, "LL_G2"); stamp(A, 18)
        A.many(dots(2))
    else:
        A.many(dots(1))
        A("s_waitcnt vmcnt(8)"); stamp(A, 18)
        mix(A, dots(2), dma_groups(0), 7)
    vmw(0, "LL_G3")
    stamp(A, 19)
    A.many(dots(3))
    A("s_nop 2")
    for ctl in ("quad_perm:[1,0,3,2]", "quad_perm:[2,3,0,1]", "row_half_mirror"):
        for r in range(S1, S2+4):
            A(f"v_add_f32_dpp v{r}, v{r}, v{r} {ctl} row_mask:0xf bank_mask:0xf")
    seq = [
        lambda i: f"v_mul_f32 v{S1+i}, {f2u(1/512):#x}, v{S1+i}",
        lambda i: f"v_mul_f32 v{S2+i}, {f2u(1/512):#x}, v{S2+i}",
        lambda i: f"v_fma_f32 v{S2+i}, -v{S1+i}, v{S1+i}, v{S2+i}",
        lambda i: f"v_max_f32 v{S2+i}, 0, v{S2+i}",
        lambda i: f"v_cvt_pk_bf16_f32 v{S2+i}, v{S1+i}, v{S2+i}",
        lambda i: f"v_lshlrev_b32 v{S1+i}, 16, v{S2+i}",
        lambda i: f"v_and_b32 v{S2+i}, 0xffff0000, v{S2+i}",
        lambda i: f"v_add_f32 v{S2+i}, {f2u(1e-5):#x}, v{S2+i}",
        lambda i: f"v_cvt_pk_bf16_f32 v{S2+i}, v{S2+i}, v{S2+i}",
        lambda i: f"v_and_b32 v{S2+i}, 0xffff0000, v{S2+i}",
        lambda i: f"v_sqrt_f32 v{S2+i}, v{S2+i}",
        lambda i: f"v_cvt_pk_bf16_f32 v{S2+i}, v{S2+i}, v{S2+i}",
        lambda i: f"v_and_b32 v{S2+i}, 0xffff0000, v{S2+i}",
        lambda i: f"v_rcp_f32 v{RR+i}, v{S2+i}",
        lambda i: f"v_mul_f32 v{RR+i}, s69, v{RR+i}",
        lambda i: f"v_mul_f32 v{MR+i}, v{S1+i}, v{RR+i}",
    ]
    for f in seq:
        for i in range(4): A(f(i))
    stamp(A, 1)
    mix(A, sum((norm(0, i) for i in range(4)), []), dma_groups(0), OPT["dmaevery"])
    if -1 in OPT["wpf"]: A.many(W_PREFETCH)
    stamp(A, 2)
    dbg_load = [f"buffer_load_dword v97, v96, {sr(S_DBG,4)}, 0 offen sc1"]
    for m in range(8):
        if m == 4: stamp(A, 29)
        A(f"s_waitcnt vmcnt({8 if m < 7 else 0}) lgkmcnt(0)")
        if m == 4: stamp(A, 30)
        if m == 5:
            A.many(ALL1(97))
            A("s_cbranch_scc1 LL_POLL0_OK")
            spin(A, "LL_POLL0", dbg_load, ALL1(97))
        A("s_barrier")
        if m == 3: stamp(A, 28)
        if m == 4: stamp(A, 31)
        if m == 7: break
        work = sum((norm(m+1, i) for i in range(4)), [])
        isw = lambda w: w.startswith("ds_")
        if OPT["exp"] == "wlast": work = [w for w in work if not isw(w)] + [w for w in work if isw(w)]
        if OPT["exp"] == "wfirst":
            if m == 0: A.many(work)
            else: A.many([w for w in work if isw(w)])
            work = [w for w in sum((norm(m+2, i) for i in range(4)), []) if not isw(w)] if m < 6 else []
        if OPT["exp"].startswith("grp"):
            dg = dma_groups(0) if m < 6 else []
            split = {"grp": [3,2,2,2,0], "grp2": [0,3,3,3,0], "grp3": [2,3,2,2,0], "grp4": [4,3,2,0,0]}[OPT["exp"]]
            for _ in range(split[0]):
                if dg: A.many(dg.pop(0))
            for i in range(4):
                nn = norm(m+1, i)
                A.many(nn[:-1])
                for _ in range(split[i+1]):
                    if dg: A.many(dg.pop(0))
                A(nn[-1])
            work = None
        if OPT["exp"] == "nonorm": work = []
        if OPT["exp"] == "nowrite": work = [w for w in work if not w.startswith("ds_")]
        if OPT["exp"] == "dmalast":
            A.many(work); work = []
        if OPT["exp"] == "dmafirst":
            mix(A, [], dma_groups(0) if m < 6 else [], 1); A.many(work); continue
        if work is not None: mix(A, work, dma_groups(0) if m < 6 else [], OPT["dmalast"] if m == 5 else OPT["dmaevery"])
        if m in OPT["wpf"]:
            A("s_cmp_lt_u32 s21, 6")
            A(f"s_cbranch_scc1 LL_PF{m}")
            A.many(W_PREFETCH)
            A.lab(f"LL_PF{m}")
        if m == 3:
            A(f"v_min_u32 v96, {NZ-1}, v{L}")
            A("v_lshlrev_b32 v96, 2, v96")
            A.many(dbg_load)
    A("s_mov_b32 s23, s79")
    side_setup(A)
    A("s_call_b64 s[76:77], L_ATTINIT")
    late_init(A)
    A("s_barrier")
    if OPT["b8prio"]: A("s_setprio 3")
    stamp(A, 3)
    if not OPT["sidelate"]:
        A("s_cmp_eq_u32 s23, 0")
        A("s_cbranch_scc1 LL_S7")
        side_loads(A, 0)
        side_loads(A, 1)
        A.lab("LL_S7")
    A("s_cmp_lg_u32 s60, 0")
    A("s_cbranch_scc1 LL_WAITGO")
    A("v_mov_b32 v96, 0")
    A("s_bfe_u32 s64, s2, 0x10004")
    A("s_lshl_b32 s64, s64, 5")
    A("s_and_b32 s65, s2, 15")
    A("s_add_u32 s64, s64, s65")
    A("s_bfe_u32 s65, s2, 0x10005")
    A("s_lshl_b32 s65, s65, 4")
    A("s_add_u32 s64, s64, s65")
    A("s_lshl_b32 s64, s64, 7")
    A(f"s_add_u32 s64, s64, {QCNT:#x}")
    if OPT["qsch"] == "E":
        A(f"s_and_b32 s64, s64, {(~(24*128)) & 0xffffffff:#x}")
        spin(A, "LL_POLL", [f"buffer_load_dword v97, v96, {sr(S_WS,4)}, s64 offen sc1"], ALL1(97))
    else: spin3(A, "LL_POLL", [0, 1, 2], 96, "s64", 48)
    A(f"v_mov_b32 v96, {SW}")
    A("v_mov_b32 v97, 1")
    A("ds_write_b32 v96, v97 offset:4")
    A("s_branch LL_GO")
    A.lab("LL_WAITGO")
    A(f"v_mov_b32 v96, {SW}")
    A(f"s_mov_b32 s70, {SPIN_MAX*16}")
    A.lab("LL_WG1")
    A("ds_read_b32 v97, v96 offset:4")
    A("s_waitcnt lgkmcnt(0)")
    A("v_readfirstlane_b32 s65, v97")
    A("s_cmp_lg_u32 s65, 0")
    A("s_cbranch_scc1 LL_GO")
    A("s_sleep 1")
    A("s_sub_u32 s70, s70, 1")
    A("s_cmp_lg_u32 s70, 0")
    A("s_cbranch_scc1 LL_WG1")
    A.lab("LL_GO")
    stamp(A, 4)
    A("s_and_b32 s64, s2, 31")
    A("s_lshl_b32 s64, s64, 16")
    A("s_lshl_b32 s65, s60, 11")
    A("s_add_u32 s64, s64, s65")
    A("s_lshr_b32 s66, s2, 5")
    A("s_lshl_b32 s66, s66, 13")
    A("s_add_u32 s66, s66, s64")
    A(f"s_add_u32 m0, s65, {QOFF}")
    A(f"s_add_u32 s67, s64, {KF:#x}")
    A(f"buffer_load_dwordx4 v95, {sr(S_WS,4)}, s66 offen sc1 lds")
    A(f"buffer_load_dwordx4 v95, {sr(S_WS,4)}, s66 offen offset:1024 sc1 lds")
    A(f"s_add_u32 s68, s64, {VF:#x}")
    for c in range(2):
        A(f"s_add_u32 m0, s65, {c*8192}")
        A("s_nop 0")
        A(f"buffer_load_dwordx4 v95, {sr(S_WS,4)}, s67 offen sc1 lds")
        A(f"buffer_load_dwordx4 v95, {sr(S_WS,4)}, s67 offen offset:1024 sc1 lds")
        A(f"s_add_u32 m0, s65, {65536 + c*8192}")
        A("s_add_u32 s67, s67, 8192")
        A(f"buffer_load_dwordx4 v95, {sr(S_WS,4)}, s68 offen sc1 lds")
        A(f"buffer_load_dwordx4 v95, {sr(S_WS,4)}, s68 offen offset:1024 sc1 lds")
        A("s_add_u32 s68, s68, 8192")
    A("s_cmp_eq_u32 s23, 0")
    A("s_cbranch_scc1 L_P0")
    side_offsets(A)
    if OPT["sidelate"]:
        side_loads(A, 0)
        side_loads(A, 1)
        A("s_waitcnt vmcnt(32)")
        A("s_branch L_P0B")
    else:
        A("s_waitcnt vmcnt(10)")
        side_combine(A)


WSC = lambda: "" if OPT["wl1"] else " sc1"
def down_loads(A, slot):
    A(f"buffer_load_dwordx4 {vr(DH[slot],4)}, v{L16}, {sr(S_T1,4)}, s84 offen sc1")
    A(f"buffer_load_dwordx4 {vr(DW_[slot],4)}, v{L16}, {sr(S_T2,4)}, s85 offen{WSC()}")
    A(f"buffer_load_dwordx4 {vr(DW_[slot]+4,4)}, v{L16}, {sr(S_T2,4)}, s85 offen offset:1024{WSC()}")
    A("s_add_u32 s84, s84, 1024")
    A("s_add_u32 s85, s85, 2048")

def kv_piece(k):
    if k & 1: return ["s_add_u32 m0, s95, 65536", "s_add_u32 s94, s94, 8192",
                      f"buffer_load_dwordx4 v{L16}, {sr(S_WS,4)}, s60 offen sc1 lds", "s_add_u32 s95, s95, 8192"]
    return ["s_mov_b32 m0, s95", f"s_add_u32 s60, s94, {VF-KF:#x}", f"buffer_load_dwordx4 v{L16}, {sr(S_WS,4)}, s94 offen sc1 lds"]
HPOLL = lambda: apoll(101, 100, "s75", 15)

def attn_body(A, mode, stores=True):
    hs = 0; wo = 0; cl = 0; rw = 0
    for t in range(2 if mode == "P" else 8):
        p = t & 1
        down = mode == "B" or (mode == "2" and t >= 4) or (mode == "C" and t < 4)
        cur, prv = S_[p], S_[1-p]
        ex = lambda a, b: [A(f"v_exp_f32 v{cur+i}, v{cur+i}") for i in range(a, b)]
        if p == 0: A(f"s_setprio {3 - (t >> 1)}")
        if mode == "P": A("s_waitcnt vmcnt(3)")
        else: A(f"s_waitcnt lgkmcnt({3 + (OPT['rwplan'][t-1] if mode == 'C' and t else 0)})")
        ex(0, 2)
        if not (mode == "0" and t == 0):
            A(f"v_smfmac_f32_32x32x32_bf16 {vr(O_,16)}, {vr(V1[1-p],4)}, {vr(prv+8,8)}, v{IDX}")
        kv = mode in "01" and t in OPT["kvplan"][int(mode)]
        if kv: A.many(kv_piece(0))
        ex(2, 6 if down else 7)
        A(f"v_mfma_f32_32x32x16_bf16 {vr(prv,16)}, {vr(KB[1-p],4)}, {vr(Q_,4)}, {vr(C_,16)}")
        if mode == "P": A(f"buffer_load_dwordx4 {vr(KB[1-p],4)}, v{L16}, {sr(S_WS,4)}, s94 offen offset:3072 sc1")
        else: A(f"ds_read_b128 {vr(KB[1-p],4)}, v{KA} offset:{(t+3)*1024}")
        if kv: A.many(kv_piece(1))
        ex(6 if down else 7, 10 if down else 12)
        A(f"v_smfmac_f32_32x32x32_bf16 {vr(O_,16)}, {vr(V0[p],4)}, {vr(cur,8)}, v{IDX}")
        A("s_mov_b64 exec, s[80:81]")
        if mode == "P":
            A(f"buffer_load_dwordx4 {vr(V0[p],4)}, v{VA}, {sr(S_WS,4)}, s94 offen offset:2048 sc1")
            A(f"buffer_load_dwordx4 {vr(V1[1-p],4)}, v{VA}, {sr(S_WS,4)}, s94 offen offset:1536 sc1")
            A("s_add_u32 s94, s94, 1024")
        else:
            A(f"ds_read_b128 {vr(V0[p],4)}, v{VA} offset:{(t+2)*1024}")
            A(f"ds_read_b128 {vr(V1[1-p],4)}, v{VA} offset:{(t+1)*1024+512}")
        A("s_mov_b64 exec, -1")
        if mode == "0":
            if t == 7:
                A(f"buffer_store_dwordx4 {vr(DH[0],4)}, v{L16}, {sr(S_WS,4)}, s11 offen sc1")
            for _ in range(OPT["hplan"][t]):
                if stores: A(f"buffer_store_dwordx4 {vr(HREG+4*hs,4)}, v249, {sr(S_WS,4)}, s{HOFF[hs]} offen sc1")
                hs += 1
        if mode == "2" and t < 4: down_loads(A, (t + 2) & 3)
        if mode == "C":
            if t == 0: A(f"buffer_load_dwordx4 {vr(XV,4)}, v252, {sr(S_X,4)}, s88 offen"); cl += 1
            for _ in range(OPT["woplan"][t]):
                A(f"buffer_load_dwordx4 {vr(WO+4*wo,4)}, v{L16}, {sr(S_WS,4)}, s90 offen offset:{(wo&3)*1024} sc1")
                wo += 1; cl += 1
                if wo & 3 == 0: A("s_add_u32 s90, s90, 4096")
            for _ in range(OPT["rwplan"][t]):
                A(f"ds_write_b128 v102, {vr(DACC+4*rw,4)} offset:{rw*RP}"); rw += 1
        if down and mode == "C":
            ex(10, 12)
            A(f"s_waitcnt vmcnt({3*(3-t) + cl})")
            A(f"v_mfma_f32_32x32x16_bf16 {vr(DACC,16)}, {vr(DW_[t],4)}, {vr(DH[t],4)}, {vr(DACC,16)}")
            ex(12, 16)
            A(f"v_mfma_f32_32x32x16_bf16 {vr(DACC+16,16)}, {vr(DW_[t]+4,4)}, {vr(DH[t],4)}, {vr(DACC+16,16)}")
            if t == 1: A("s_barrier")
        elif down:
            ex(10, 14)
            sl = t >> 1
            if p == 0: A("s_waitcnt vmcnt(9)")
            cc = "0" if (mode == "2" and t < 6) else vr(DACC+16*p,16)
            A(f"v_mfma_f32_32x32x16_bf16 {vr(DACC+16*p,16)}, {vr(DW_[sl]+4*p,4)}, {vr(DH[sl],4)}, {cc}")
            if p == 1: down_loads(A, sl)
            ex(14, 16)
        else:
            ex(12, 16)
        if mode == "0" and t == 4 and OPT["sidelate"]:
            assert sum(OPT["hplan"][:5]) <= 5
            A("s_cmp_eq_u32 s23, 0")
            A("s_cbranch_scc1 L_NOSC")
            A(f"s_waitcnt vmcnt({hs + 2*len([k for k in OPT['kvplan'][0] if k <= 4])})")
            side_combine(A)
            A.lab("L_NOSC")
        if mode == "1" and t == OPT["sigt"]:
            stamp(A, 25)
            A("s_waitcnt vmcnt(0)")
            stamp(A, 26)
            A("s_barrier")
            stamp(A, 27)
            A("s_cmp_lg_u32 s22, 0")
            A("s_cbranch_scc1 L_NOSIG")
            A("s_mov_b64 exec, 0xff")
            A("v_mov_b32 v97, 1")
            A(f"v_lshlrev_b32 v96, 10, v{L}")
            A(f"buffer_atomic_add v97, v96, {sr(S_WS,4)}, s91 offen")
            A("s_mov_b64 exec, -1")
            A.lab("L_NOSIG")
        if mode == "1" and t == 6:
            A("s_cmp_lg_u32 s22, 0")
            A("s_cbranch_scc1 L_NOPQ")
            A(f"v_lshlrev_b32 v100, 7, v{L}")
            A.many(HPOLL())
            A.lab("L_NOPQ")
        if mode == "1" and t == 7:
            stamp(A, 8)
            A("s_cmp_lg_u32 s22, 0")
            A("s_cbranch_scc1 L_HPOLL_OK")
            spin(A, "L_HPOLL2", HPOLL(), acmp(101, 64, 15), first_loaded=True)
            if OPT["wl1"] == 2:
                A("buffer_inv sc1")
                A("s_waitcnt vmcnt(0)")
            A.lab("L_HPOLL_OK")
            A("s_waitcnt vmcnt(0)")
            A("s_barrier")
            stamp(A, 9)
    if mode == "0": assert hs == 9
    if mode == "C": assert wo == 16 and rw == 8
    if mode == "P": A("s_add_u32 s83, s83, 1")
    elif mode != "C":
        A(f"v_add_u32 v{KA}, 8192, v{KA}")
        A(f"v_add_u32 v{VA}, 8192, v{VA}")
        A("s_add_u32 s83, s83, 1")

def late_init(A):
    A(f"v_lshlrev_b32 v{L16}, 4, v{L}")
    A(f"v_mov_b32 v{IDX}, 0xdddd")
    A(f"v_and_b32 v98, 15, v{L}")
    A("v_lshlrev_b32 v98, 4, v98")
    A(f"v_lshrrev_b32 v99, 5, v{L}")
    A("v_lshl_or_b32 v98, v99, 8, v98")
    A("v_add_u32 v98, 65536, v98")
    A(f"v_add_u32 v99, s15, v{L16}")
    A(f"v_add_u32 v102, s16, v{L16}")
    A(f"v_and_b32 v103, 7, v{L}")
    A(f"v_mul_u32_u24 v103, {RP}, v103")
    A(f"v_lshrrev_b32 v100, 3, v{L}")
    A("v_lshl_add_u32 v103, v100, 4, v103")
    A("v_add_u32 v103, s17, v103")
    A(f"v_mov_b32 v{KA}, v{L16}")
    A(f"v_mov_b32 v{VA}, v98")
    A("v_mov_b32 v100, 0xff800000")
    A("v_mov_b32 v101, 0xff800000")
    for r in range(4): A(f"v_mov_b32 v{DH[0]+r}, -1")

def gen_attinit(A):
    A.lab("L_ATTINIT")
    for r in range(O_, O_+32): A(f"v_mov_b32 v{r}, 0")
    A("s_mov_b32 s80, 0x00110000")
    A("s_mov_b32 s81, 0x00110000")
    A("s_mov_b64 exec, s[80:81]")
    for r in range(V0[0], V0[0]+16): A(f"v_mov_b32 v{r}, 0x3f803f80")
    A("s_mov_b64 exec, -1")
    A("s_mov_b32 s80, 0xffff")
    A("s_mov_b32 s81, 0xffff")
    A(f"s_mov_b32 s79, {f2u(-OPT['bias']):#x}")
    A("s_mov_b32 s82, 1")
    A(f"v_and_b32 v251, 7, v{L}")
    A(f"v_lshrrev_b32 v252, 3, v{L}")
    A("v_lshlrev_b32 v252, 10, v252")
    A("v_lshl_add_u32 v252, v251, 4, v252")
    A("s_lshl_b32 s15, s22, 10")
    A(f"s_add_u32 s15, s15, {QOFF}")
    A("s_and_b32 s91, s20, 3")
    A("s_lshl_b32 s91, s91, 7")
    A(f"s_add_u32 s91, s91, {QFLAG+4*128:#x}")
    A("s_and_b32 s75, s2, 7")
    A("s_lshl_b32 s75, s75, 10")
    A(f"s_add_u32 s75, s75, {QFLAG+4*128:#x}")
    A("s_lshr_b32 s61, s2, 5")
    A("s_lshl_b32 s61, s61, 3")
    A("s_add_u32 s61, s61, s22")
    A("s_lshl_b32 s61, s61, 5")
    A("s_and_b32 s62, s2, 31")
    A("s_add_u32 s61, s61, s62")
    A("s_lshl_b32 s11, s61, 10")
    A(f"s_add_u32 s11, s11, {OF:#x}")
    A("s_and_b32 s94, s2, 31")
    A("s_lshl_b32 s94, s94, 16")
    A("s_lshl_b32 s95, s22, 10")
    A("s_add_u32 s95, s95, 16384")
    A("s_add_u32 s94, s94, s95")
    A(f"s_add_u32 s94, s94, {KF:#x}")
    A("s_and_b32 s67, s2, 7")
    A("s_bfe_u32 s61, s2, 0x20003")
    A("s_lshl_b32 s67, s67, 2")
    A("s_add_u32 s67, s67, s61")
    A("s_lshr_b32 s61, s2, 5")
    A("s_and_b32 s62, s22, 1")
    A("s_lshl_b32 s67, s67, 1")
    A("s_add_u32 s67, s67, s62")
    A("s_lshr_b32 s62, s22, 1")
    A("s_mul_i32 s63, s62, 22")
    A("s_cmp_eq_u32 s62, 3")
    A("s_cselect_b32 s63, 65, s63")
    A("s_cmp_lt_u32 s62, 2")
    A("s_cselect_b32 s64, 22, 21")
    A(f"s_mul_i32 s65, s67, {NFU}")
    A("s_add_u32 s65, s65, s63")
    A("s_lshl_b32 s65, s65, 10")
    A(f"s_add_u32 s65, s65, {HF:#x}")
    A(f"s_add_u32 s{S_T1}, s18, s65")
    A(f"s_addc_u32 s{S_T1+1}, s19, 0")
    A(f"s_lshl_b32 s{S_T1+2}, s64, 10")
    A(f"s_mov_b32 s{S_T1+3}, 0x00020000")
    A(f"s_mul_i32 s65, s61, {NFU}")
    A("s_add_u32 s65, s65, s63")
    A("s_lshl_b32 s65, s65, 11")
    A(f"s_add_u32 s65, s65, {WDF:#x}")
    A(f"s_add_u32 s{S_T2}, s18, s65")
    A(f"s_addc_u32 s{S_T2+1}, s19, 0")
    A(f"s_lshl_b32 s{S_T2+2}, s64, 11")
    A(f"s_mov_b32 s{S_T2+3}, 0x00020000")
    A("s_mov_b32 s84, 0")
    A("s_mov_b32 s85, 0")
    A("s_lshl_b32 s90, s61, 16")
    A("s_lshl_b32 s66, s62, 14")
    A("s_add_u32 s90, s90, s66")
    A(f"s_add_u32 s90, s90, {WOF:#x}")
    A("s_lshl_b32 s87, s67, 15")
    A("s_lshl_b32 s66, s62, 13")
    A("s_add_u32 s87, s87, s66")
    A(f"s_add_u32 s87, s87, {OF:#x}")
    A("s_lshl_b32 s88, s67, 15")
    A("s_lshl_b32 s66, s61, 7")
    A("s_add_u32 s88, s88, s66")
    A("s_lshl_b32 s66, s62, 13")
    A("s_add_u32 s88, s88, s66")
    A("s_add_u32 s13, s87, 4096")
    red_addr(A)
    A("s_setpc_b64 s[76:77]")

def gen_attn(A):
    A("s_waitcnt lgkmcnt(0)")
    late_init(A)
    A.lab("L_P0")
    stamp(A, 5)
    A("s_waitcnt vmcnt(0)")
    A.lab("L_P0B")
    A("s_barrier")
    stamp(A, 6)
    A(f"ds_read_b128 {vr(Q_,4)}, v99")
    A(f"ds_read_b128 {vr(KB[0],4)}, v{KA}")
    A(f"ds_read_b128 {vr(KB[1],4)}, v{KA} offset:1024")
    A("s_mov_b64 exec, s[80:81]")
    A(f"ds_read_b128 {vr(V0[0],4)}, v{VA}")
    A("s_mov_b64 exec, -1")
    A("s_waitcnt lgkmcnt(2)")
    A(f"v_mfma_f32_32x32x16_bf16 {vr(S_[0],16)}, {vr(KB[0],4)}, {vr(Q_,4)}, 0")
    A("s_waitcnt lgkmcnt(1)")
    A(f"v_mfma_f32_32x32x16_bf16 {vr(C_,16)}, {vr(KB[1],4)}, {vr(Q_,4)}, 0")
    A("s_nop 10")
    for i in range(8): A(f"v_max3_f32 v100, v{2*i}, v{2*i+1}, v100")
    for i in range(8): A(f"v_max3_f32 v101, v{C_+2*i}, v{C_+2*i+1}, v101")
    A("v_max_f32 v100, v100, v101")
    A("v_mov_b32 v101, v100")
    A("s_nop 1")
    A("v_permlane32_swap_b32 v100, v101")
    A("s_nop 1")
    A("v_max_f32 v100, v100, v101")
    for r in range(16): A(f"v_sub_f32 v{C_+r}, s79, v100")
    A("s_nop 1")
    A(f"v_mfma_f32_32x32x16_bf16 {vr(S_[0],16)}, {vr(KB[0],4)}, {vr(Q_,4)}, {vr(C_,16)}")
    A(f"ds_read_b128 {vr(KB[0],4)}, v{KA} offset:2048")
    A("s_mov_b64 exec, s[80:81]")
    A(f"ds_read_b128 {vr(V0[1],4)}, v{VA} offset:1024")
    A(f"ds_read_b128 {vr(V1[0],4)}, v{VA} offset:512")
    A("s_mov_b64 exec, -1")
    A("s_mov_b32 s83, 0")
    stamp(A, 7)
    A("s_nop 4")
    if OPT["two0"]:
        A("s_cmp_lt_u32 s21, 6")
        A("s_cbranch_scc1 L_BODY0N")
        A("s_cmp_eq_u32 s22, 4")
        A("s_cbranch_scc1 L_BODY0N")
    attn_body(A, "0")
    A.lab("L_BODY1")
    stamp(A, 24)
    attn_body(A, "1")
    attn_body(A, "2")
    A.lab("L_LOOPB")
    attn_body(A, "B")
    if OPT["prof"] and OPT["bstamp"]:
        A("s_memtime s[96:97]")
        A("s_memrealtime s[98:99]")
        A("s_add_u32 m0, s83, 17")
        A("s_waitcnt lgkmcnt(0)")
        A("v_writelane_b32 v255, s96, m0")
        A("s_add_u32 m0, s83, 49")
        A("s_nop 0")
        A("v_writelane_b32 v255, s98, m0")
    A("s_cmp_lt_u32 s83, 7")
    A("s_cbranch_scc1 L_LOOPB")
    attn_body(A, "C")
    A.lab("L_ATT_DONE")
    A("s_setprio 3")
    A("s_waitcnt lgkmcnt(0)")
    stamp(A, 10)
    A(f"v_smfmac_f32_32x32x32_bf16 {vr(O_,16)}, {vr(V1[1],4)}, {vr(S_[1]+8,8)}, v{IDX}")
    A("s_nop 0")
    A(f"v_mov_b32 v96, {f2u(2.0**90):#x}")
    A(f"v_mov_b32 v97, {f2u(2.0**120):#x}")
    A(f"v_mov_b32 v99, {f2u(2.0**-100):#x}")
    A("s_nop 7")
    A(f"v_rcp_f32 v101, v{O_+8}")
    A("s_nop 0")
    A(f"v_mul_f32 v101, {f2u(2.0**-VSH):#x}, v101")
    for r in range(8): A(f"v_mul_f32 v{r}, v{O_+r}, v101")
    for i in range(4): A(f"v_cvt_pk_bf16_f32 v{8+i}, v{2*i}, v{2*i+1}")
    A("s_cmp_eq_u32 s82, 0")
    A("s_cbranch_scc1 L_FIN")
    A(f"v_add_f32 v100, abs(v{O_}), abs(v{O_+1})")
    for r in range(2, 8): A(f"v_add_f32 v100, v100, abs(v{O_+r})")
    A(f"v_cmp_nlt_f32 s[62:63], v{O_+8}, v96")
    A("v_cmp_nlt_f32 s[64:65], v100, v97")
    A("v_cmp_lt_f32 vcc, v100, v99")
    A("s_or_b64 s[62:63], s[62:63], s[64:65]")
    A("s_or_b64 s[62:63], s[62:63], vcc")
    A("s_cmp_eq_u64 s[62:63], 0")
    A("s_branch L_EXACT" if OPT["force_fallback"] else "s_cbranch_scc0 L_EXACT")
    A.lab("L_FIN")
    A(f"buffer_store_dwordx4 {vr(8,4)}, v{L16}, {sr(S_WS,4)}, s11 offen sc1")

RP = 1056
RS = 8*RP
def red_addr(A):
    A("s_and_b32 s62, s22, 1")
    A("s_lshr_b32 s63, s22, 1")
    A("s_mul_i32 s62, s62, 69632")
    A(f"s_mul_i32 s64, s63, {RS}")
    A("s_add_u32 s16, s64, s62")
    A("s_lshl_b32 s64, s63, 7")
    A("s_add_u32 s17, s64, s62")
def red_write(A, acc):
    for p in range(8): A(f"ds_write_b128 v102, {vr(acc+4*p,4)} offset:{p*RP}")
def red_read(A, dst):
    for s in range(4):
        for h in range(2):
            A(f"ds_read_b128 {vr(dst+8*s+4*h,4)}, v103 offset:{s*RS + h*512}")
def red_sum(A, dst):
    for r in range(8):
        A(f"v_add_f32 v{dst+r}, v{dst+r}, v{dst+8+r}")
        A(f"v_add_f32 v{dst+16+r}, v{dst+16+r}, v{dst+24+r}")
    for r in range(8): A(f"v_add_f32 v{dst+r}, v{dst+r}, v{dst+16+r}")
def round_bf16(A, regs, tmp):
    for i in range(4): A(f"v_cvt_pk_bf16_f32 v{tmp+i}, v{regs+2*i}, v{regs+2*i+1}")
    for i in range(4):
        A(f"v_lshlrev_b32 v{regs+2*i}, 16, v{tmp+i}")
        A(f"v_and_b32 v{regs+2*i+1}, 0xffff0000, v{tmp+i}")

OB = 16
def o_load(A, s):
    A(f"buffer_load_dwordx4 {vr(OB+4*s,4)}, v{L16}, {sr(S_WS,4)}, s{87 if s < 4 else 13} offen offset:{(s&3)*1024} sc1")
def gen_final(A):
    stamp(A, 11)
    A("s_barrier")
    stamp(A, 20)
    G = DACC; T = 136
    red_read(A, G)
    if OPT["oearly"]:
        for s in range(8): o_load(A, s)
    A(f"s_waitcnt vmcnt({9 if OPT['oearly'] else 1})")
    A(f"v_add_u32 v102, {4*RS}, v102")
    A(f"v_add_u32 v103, {4*RS}, v103")
    for i in range(4):
        A(f"v_lshlrev_b32 v{144+2*i}, 16, v{XV+i}")
        A(f"v_and_b32 v{145+2*i}, 0xffff0000, v{XV+i}")
    A("s_waitcnt lgkmcnt(0)")
    B = Asm()
    red_sum(B, G)
    if OPT["mimic"]: round_bf16(B, G, T)
    for r in range(8): B(f"v_mul_f32 v{T+r}, {f2u(-LOG2E):#x}, v{G+r}")
    for r in range(8): B(f"v_exp_f32 v{T+r}, v{T+r}")
    for r in range(8): B(f"v_add_f32 v{T+r}, 1.0, v{T+r}")
    for r in range(8): B(f"v_rcp_f32 v{T+r}, v{T+r}")
    for r in range(8): B(f"v_mul_f32 v{G+r}, v{G+r}, v{T+r}")
    if OPT["mimic"]: round_bf16(B, G, T)
    gw = [x.strip() for x in B.l]
    if not OPT["oearly"]:
        A.many(gw[:OPT["gpre0"]]); gw = gw[OPT["gpre0"]:]
        for s in range(8): o_load(A, s)
    A.many(gw[:OPT["gpre"]]); gw = gw[OPT["gpre"]:]
    stamp(A, 12)
    ACC = 104
    A(f"s_mov_b32 s70, {SPIN_MAX}")
    for s in range(8):
        o = OB + 4*s
        A.lab(f"L_OW{s}")
        A(f"s_waitcnt vmcnt({7-s})")
        A(f"v_max3_u32 v96, v{o}, v{o+1}, v{o+2}")
        A(f"v_max_u32 v96, v96, v{o+3}")
        A("v_cmp_eq_u32 vcc, -1, v96")
        A("s_cmp_lg_u64 vcc, 0")
        A(f"s_cbranch_scc1 L_OR{s}")
        A.lab(f"L_OK{s}")
        for nt in range(2):
            c = "0" if s == 0 else vr(ACC+16*nt,16)
            A(f"v_mfma_f32_32x32x16_bf16 {vr(ACC+16*nt,16)}, {vr(WO+8*s+4*nt,4)}, {vr(o,4)}, {c}")
            A.many(gw[:OPT["gper"]]); gw = gw[OPT["gper"]:]
    A.many(gw)
    stamp(A, 13)
    A("s_nop 11")
    red_write(A, ACC)
    A("s_waitcnt lgkmcnt(0)")
    A("s_barrier")
    red_read(A, 0)
    A("s_waitcnt lgkmcnt(0)")
    red_sum(A, 0)
    if OPT["mimic"]:
        round_bf16(A, 0, T)
        for r in range(8): A(f"v_mul_f32 v{r}, v{r}, v{G+r}")
        round_bf16(A, 0, T)
        for r in range(8): A(f"v_add_f32 v{r}, v{r}, v{144+r}")
    else:
        for r in range(8): A(f"v_fma_f32 v{r}, v{r}, v{G+r}, v{144+r}")
    for i in range(4): A(f"v_cvt_pk_bf16_f32 v{T+i}, v{2*i}, v{2*i+1}")
    A(f"buffer_store_dwordx4 {vr(T,4)}, v252, {sr(S_OUT,4)}, s88 offen{OPT['outfl']}")
    if OPT["fixdur"]:
        A.lab("L_FIXDUR")
        A("s_memrealtime s[96:97]")
        A("s_waitcnt lgkmcnt(0)")
        A("s_sub_u32 s96, s96, s100")
        A(f"s_cmp_lt_u32 s96, {OPT['fixdur']}")
        A("s_cbranch_scc1 L_FIXDUR")
    if OPT["prof"]:
        stamp(A, 14)
        A(f"s_add_u32 s{S_T1}, s18, {PROF_OFF:#x}")
        A(f"s_addc_u32 s{S_T1+1}, s19, 0")
        A(f"s_mov_b32 s{S_T1+2}, 0x100000")
        A(f"s_mov_b32 s{S_T1+3}, 0x00020000")
        A("s_lshl_b32 s60, s2, 3")
        A("s_add_u32 s60, s60, s22")
        A("s_lshl_b32 s60, s60, 8")
        A(f"v_lshlrev_b32 v0, 2, v{L}")
        A(f"buffer_store_dword v255, v0, {sr(S_T1,4)}, s60 offen")
        if OPT["dbgout"]:
            A("s_cmp_lg_u32 s2, 200")
            A("s_cbranch_scc1 L_END")
            A("s_cmp_lg_u32 s22, 0")
            A("s_cbranch_scc1 L_END")
            A("v_readlane_b32 s61, v255, 32")
            A("v_readlane_b32 s63, v255, 0")
            A("v_mov_b32 v1, 0")
            A("s_mov_b64 exec, 1")
            for n, i in enumerate((2, 3, 4, 6, 9, 10, 12, 14)):
                A(f"v_readlane_b32 s62, v255, {32+i}")
                A("s_sub_u32 s62, s62, s61")
                A("v_mov_b32 v2, s62")
                A(f"buffer_store_dword v2, v1, {sr(S_DBG,4)}, 0 offen offset:{32+4*n}")
                A("s_nop 1")
            A("v_readlane_b32 s62, v255, 14")
            A("s_sub_u32 s62, s62, s63")
            A("v_mov_b32 v2, s62")
            A(f"buffer_store_dword v2, v1, {sr(S_DBG,4)}, 0 offen offset:28")

def gen_hooks(A):
    gen_attinit(A)
    if OPT["two0"]:
        A.lab("L_BODY0N")
        attn_body(A, "0", False)
        A("s_branch L_BODY1")
    for s in range(8):
        A.lab(f"L_OR{s}")
        A("s_sub_u32 s70, s70, 1")
        A("s_cmp_lt_i32 s70, 0")
        A(f"s_cbranch_scc1 L_OK{s}")
        A("s_waitcnt vmcnt(0)")
        A(f"s_sleep {OPT['osleep']}")
        for k in range(s, 8): o_load(A, k)
        A(f"s_branch L_OW{s}")
    A.lab("L_EXACT")
    A("s_mov_b32 s82, 0")
    A("s_and_b32 s95, s2, 31")
    A("s_lshl_b32 s95, s95, 16")
    A(f"s_add_u32 s95, s95, {KF:#x}")
    A(f"s_add_u32 s94, s95, {62*1024}")
    A(f"v_add_u32 v{VA}, {VF-KF-65536}, v98")
    A("v_mov_b32 v100, 0xff800000")
    for r in range(16): A(f"v_mov_b32 v{O_+r}, 0")
    for r in range(8, 16): A(f"v_mov_b32 v{S_[1]+r}, 0")
    A.lab("L_MAXLOOP")
    A(f"buffer_load_dwordx4 {vr(KB[0],4)}, v{L16}, {sr(S_WS,4)}, s94 offen sc1")
    A(f"buffer_load_dwordx4 {vr(KB[1],4)}, v{L16}, {sr(S_WS,4)}, s94 offen offset:1024 sc1")
    A("s_waitcnt vmcnt(0)")
    A(f"v_mfma_f32_32x32x16_bf16 {vr(S_[0],16)}, {vr(KB[0],4)}, {vr(Q_,4)}, 0")
    A(f"v_mfma_f32_32x32x16_bf16 {vr(C_,16)}, {vr(KB[1],4)}, {vr(Q_,4)}, 0")
    A("s_nop 11")
    for i in range(8): A(f"v_max3_f32 v100, v{2*i}, v{2*i+1}, v100")
    for i in range(8): A(f"v_max3_f32 v100, v{C_+2*i}, v{C_+2*i+1}, v100")
    A("s_cmp_eq_u32 s94, s95")
    A("s_cbranch_scc1 L_MAXDONE")
    A("s_sub_u32 s94, s94, 2048")
    A("s_branch L_MAXLOOP")
    A.lab("L_MAXDONE")
    A("v_mov_b32 v101, v100")
    A("s_nop 1")
    A("v_permlane32_swap_b32 v100, v101")
    A("s_nop 1")
    A("v_max_f32 v100, v100, v101")
    for r in range(16): A(f"v_sub_f32 v{C_+r}, 0, v100")
    A("s_nop 1")
    A(f"v_mfma_f32_32x32x16_bf16 {vr(S_[0],16)}, {vr(KB[0],4)}, {vr(Q_,4)}, {vr(C_,16)}")
    A("s_mov_b64 exec, s[80:81]")
    A(f"buffer_load_dwordx4 {vr(V0[0],4)}, v{VA}, {sr(S_WS,4)}, s94 offen sc1")
    A("s_mov_b64 exec, -1")
    A(f"buffer_load_dwordx4 {vr(KB[0],4)}, v{L16}, {sr(S_WS,4)}, s94 offen offset:2048 sc1")
    A("s_mov_b64 exec, s[80:81]")
    A(f"buffer_load_dwordx4 {vr(V0[1],4)}, v{VA}, {sr(S_WS,4)}, s94 offen offset:1024 sc1")
    A(f"buffer_load_dwordx4 {vr(V1[0],4)}, v{VA}, {sr(S_WS,4)}, s94 offen offset:512 sc1")
    A("s_mov_b64 exec, -1")
    A("s_mov_b32 s83, 0")
    A("s_nop 4")
    A.lab("L_LOOPP")
    attn_body(A, "P")
    A("s_cmp_lt_u32 s83, 32")
    A("s_cbranch_scc1 L_LOOPP")
    A("s_waitcnt vmcnt(0)")
    A("s_branch L_ATT_DONE")
    A.lab("L_CODE_END")

def main(out):
    hdr = open(f"cdna_kernels/{NAME}.s.ref").read().split("\n")
    head = [l for l in hdr if l.startswith(";") and "@launch" not in l]
    head += [f"; @launch grid=(256,1,1) block=(512,1,1) lds={LDS_BYTES}"]
    A = Asm()
    d = gen(A)
    open(out, "w").write("\n".join(head) + '\n.amdgcn_target "amdgcn-amd-amdhsa--gfx950"\n' + A.text() + d)

if __name__ == "__main__":
    for a in sys.argv[2:]:
        k, _, v = a.partition("=")
        OPT[k] = eval(v) if v else True
    main(sys.argv[1] if len(sys.argv) > 1 else f"cdna_kernels/{NAME}.s")
```

```python
import sys, struct

NAME = "recurrent_scan__softmax_full_mha__glu_gated_geglu__prompt"
MB = 1 << 20
QF, KF, VF, OF, WOF, WDF, HF, FLAGS = 0, 2*MB, 4*MB, 6*MB, 8*MB, 9*MB, 11*MB, 17*MB
WS_BYTES = 18*MB
NFU = 86
LOG2E = 1.4426950408889634
def f2u(x): return struct.unpack("<I", struct.pack("<f", x))[0]

OPT = dict(prof=False, bias=98.0, force_fallback=False, sleep=2, barpos=1, itstamp=False, hplan=[1,1,1,1,1,1,2,1], sigt=1, kvplan=[[1,4],[2,3,4,5]], psleep=3, gpre=100, gper=5, wearly=False, peel=True, wl1=0, nodown='', halfkv=False, b8prio=True, qsch='D', outfl=' nt', oearly=0, mimic=False, gpre0=64, woplan=[2,2,2,2,2,2,2,2], rwplan=[0,0,0,0,2,2,2,2], osleep=2, spf=False, prefetch=False, dmaevery=12, dbgout=False, fixdur=0, codepf=True, noload=False, bstamp=False, pace=None, wpf=[], dmalast=12, s2late=False, sidepf=False, krot=None, two0=False, xmix=0, emap=False, wfl='', xfl='', exp='', w64=False, lprio=0, enc=-1, encrole='', cmap=True, prio='ramp2')
PROF_OFF = 24*MB
SPIN_MAX = 20000
VSH = 32

class Asm:
    def __init__(self): self.l = []
    def __call__(self, s): self.l.append(s if s.endswith(":") else "    " + s)
    def many(self, ss):
        for s in ss: self(s)
    def lab(self, s): self.l.append(s + ":")
    def raw(self, s): self.l.append(s)
    def text(self): return "\n".join(self.l) + "\n"
def vr(a, n): return f"v[{a}:{a+n-1}]"
def sr(a, n): return f"s[{a}:{a+n-1}]"
def srd(A, d, base, nbytes):
    A(f"s_mov_b32 s{d}, s{base}")
    A(f"s_mov_b32 s{d+1}, s{base+1}")
    A(f"s_mov_b32 s{d+2}, {nbytes:#x}")
    A(f"s_mov_b32 s{d+3}, 0x00020000")
def csel(A, d, a, b):
    A(f"s_mov_b32 s{d}, {b:#x}")
    A(f"s_cselect_b32 s{d}, {a:#x}, s{d}")
ROLE = [""]
def stamp(A, i):
    if OPT["enc"] == i and (not OPT["encrole"] or ROLE[0] in OPT["encrole"]):
        A("s_memrealtime s[100:101]")
        A("s_waitcnt lgkmcnt(0)")
    if not OPT["prof"]: return
    if OPT.get("profmin") and i not in (0, 7, 14): return
    A("s_memtime s[96:97]")
    A("s_memrealtime s[98:99]")
    A("s_waitcnt lgkmcnt(0)")
    A(f"v_writelane_b32 v255, s96, {i}")
    A(f"v_writelane_b32 v255, s98, {32+i}")

WR = 32768
WSL = 18560
UPOFF = 9344
QOFF = 135168
SCRATCH = 147456
SW = 163584
LDS_BYTES = 163840
QFLAG = FLAGS
QCNT = QFLAG + 64*128
NZ = 2
S_X, S_W, S_WS, S_DBG, S_OUT, S_T1, S_T2 = 24, 28, 32, 36, 40, 44, 48
L = 254
S_ = [0, 16]; C_ = 32; DACC = 48; Q_ = 80; KB = [84, 88]; O_ = 144; V0 = [160, 164]; V1 = [168, 172]
IDX, KA, VA, L16 = 92, 93, 94, 95
DH = [104, 116, 128, 140]; DW_ = [108, 120, 132, 176]
WO = 184; XV = 248

def spin(A, tag, loads, cmp_lines, first_loaded=False):
    A(f"s_mov_b32 s70, {SPIN_MAX}")
    if not first_loaded: A.many(loads)
    A.lab(tag)
    A("s_waitcnt vmcnt(0)")
    A.many(cmp_lines)
    A(f"s_cbranch_scc1 {tag}_OK")
    A(f"s_sleep {OPT['sleep']}")
    A.many(loads)
    A("s_sub_u32 s70, s70, 1")
    A("s_cmp_lg_u32 s70, 0")
    A(f"s_cbranch_scc1 {tag}")
    A.lab(tag + "_OK")
def spin3(A, tag, regs, voff, soff, n, primed=0):
    A(f"s_mov_b32 s70, {SPIN_MAX}")
    for r in regs[primed:2]:
        A.many(apoll(r, voff, soff, 1))
        A(f"s_sleep {OPT['psleep']}")
    A.lab(tag)
    for k in range(3):
        A.many(apoll(regs[(k+2) % 3], voff, soff, 1))
        A("s_waitcnt vmcnt(2)")
        A.many(acmp(regs[k], n, 1))
        A(f"s_cbranch_scc1 {tag}_OK")
        A(f"s_sleep {OPT['psleep']}")
    A("s_sub_u32 s70, s70, 1")
    A("s_cmp_lg_u32 s70, 0")
    A(f"s_cbranch_scc1 {tag}")
    A.lab(tag + "_OK")
def apoll(dst, voff, soff, mask):
    return [f"v_mov_b32 v{dst}, 0", f"s_mov_b64 exec, {mask}",
            f"buffer_atomic_add v{dst}, v{voff}, {sr(S_WS,4)}, {soff} offen sc0", "s_mov_b64 exec, -1"]
def acmp(v, n, mask):
    return [f"v_cmp_eq_u32 vcc, {n}, v{v}", f"s_cmp_eq_u64 vcc, {mask}"]
ALL1 = lambda v: [f"v_cmp_ne_u32 vcc, 1, v{v}", "s_cmp_eq_u64 vcc, 0"]

def last_wave_signals(A, tag, off, last):
    A(f"v_mov_b32 v96, {SW}")
    A("v_mov_b32 v97, 1")
    A("s_mov_b64 exec, 1")
    A(f"ds_add_rtn_u32 v100, v96, v97 offset:{off}")
    A("s_waitcnt lgkmcnt(0)")
    A("s_mov_b64 exec, -1")
    A("v_readfirstlane_b32 s60, v100")
    A(f"s_cmp_lg_u32 s60, {last}")
    A(f"s_cbranch_scc1 {tag}")
    A(f"v_lshlrev_b32 v96, 7, v{L}")
    if OPT["qsch"] == "E":
        A("s_mov_b64 exec, 1")
        A("v_mov_b32 v100, 1")
        A(f"buffer_atomic_add v100, v96, {sr(S_WS,4)}, s14 offen offset:{31*128} sc0")
        A("s_waitcnt vmcnt(0)")
        A("s_mov_b64 exec, -1")
        A("v_readfirstlane_b32 s60, v100")
        A("s_cmp_lg_u32 s60, 47")
        A(f"s_cbranch_scc1 {tag}")
        A("s_mov_b64 exec, 0xff")
        A(f"buffer_store_dword v97, v96, {sr(S_WS,4)}, s14 offen sc1")
    else:
        A("s_mov_b32 exec_hi, 0")
        A(f"buffer_atomic_add v97, v96, {sr(S_WS,4)}, s14 offen")
    A("s_mov_b64 exec, -1")
    A.lab(tag)

def gen(A):
    name = NAME + "_kernel"
    A.raw(".text"); A.raw(f".globl {name}"); A.raw(".p2align 8"); A.raw(f".type {name},@function")
    A.lab(name)
    A("s_cmp_ge_u32 s2, 256")
    A("s_cbranch_scc1 L_END")
    if OPT["fixdur"]: A("s_memrealtime s[100:101]")
    A("s_load_dwordx4 s[4:7], s[0:1], 0")
    A("s_load_dwordx2 s[8:9], s[0:1], 16")
    A("s_load_dwordx4 s[12:15], s[0:1], 32")
    A("s_load_dwordx4 s[52:55], s[0:1], 48")
    A("s_load_dwordx4 s[56:59], s[0:1], 64")
    if OPT["prof"]: A("v_mov_b32 v255, 0")
    stamp(A, 0)
    A("s_getpc_b64 s[60:61]")
    A.lab("L_PC")
    A("s_lshr_b32 s23, s2, 3")
    A("s_lshl_b32 s62, s23, 11")
    A("v_lshl_add_u32 v250, v0, 7, s62")
    A("v_cmp_gt_u32 s[62:63], 16, v0")
    A("v_cmp_gt_u32 vcc, L_CODE_END-L_PC-4, v250")
    A("v_lshrrev_b32 v252, 6, v0")
    A(f"v_and_b32 v{L}, 63, v0")
    A("s_and_b64 exec, vcc, s[62:63]")
    A("s_cbranch_execz L_NOPF")
    A("v_mov_b32 v251, s61")
    A("v_add_co_u32 v250, vcc, s60, v250")
    A("v_addc_co_u32 v251, vcc, 0, v251, vcc")
    A("global_load_dword v253, v[250:251], off")
    A.lab("L_NOPF")
    A("s_mov_b64 exec, -1")
    A("v_readfirstlane_b32 s22, v252")
    T = TL
    A(f"v_lshrrev_b32 v{T}, 3, v{L}")
    A(f"v_and_b32 v{T+1}, 7, v{L}")
    A(f"v_lshlrev_b32 v{VX}, 10, v{T}")
    A(f"v_lshl_add_u32 v{VX}, v{T+1}, 4, v{VX}")
    A("s_and_b32 s20, s2, 3" if OPT["emap"] else "s_bfe_u32 s20, s2, 0x20001")
    A("s_lshl_b32 s20, s20, 2")
    A("s_and_b32 s60, s23, 3")
    A("s_add_u32 s20, s20, s60")
    if OPT["krot"]:
        A("s_and_b32 s3, s20, 3")
        A(f"s_mul_i32 s3, s3, {OPT['krot'][0]}")
        A("s_lshr_b32 s60, s20, 2")
        A(f"s_mul_i32 s60, s60, {OPT['krot'][1]}")
        A("s_add_u32 s3, s3, s60")
        A("s_and_b32 s3, s3, 7")
        A("s_cmp_lt_u32 s2, 96")
        A("s_cselect_b32 s3, 0, s3")
        A("s_lshl_b32 s60, s3, 7")
        for c in range(8):
            A(f"v_add_u32 v{128+c}, s60, v{VX}")
            A("s_add_u32 s60, s60, 128")
            A("s_and_b32 s60, s60, 1023")
    A("s_cmp_lt_u32 s22, 4")
    A("s_cbranch_scc1 L_COMMON")
    loader_first(A)
    A.lab("L_COMMON")
    A("s_lshr_b32 s62, s23, 2")
    A("s_and_b32 s63, s2, 1")
    A("s_lshl_b32 s21, s62, 1")
    A("s_add_u32 s21, s21, s63")
    A("s_mul_i32 s63, s63, 5")
    A("s_add_u32 s63, s63, s62")
    A("s_add_u32 s63, s63, 3")
    A("s_cmp_ge_u32 s62, 3")
    A("s_cselect_b32 s21, s63, s21")
    if OPT["emap"]:
        A("s_bfe_u32 s63, s2, 0x10002")
        A("s_lshl_b32 s63, s63, 3")
        A("s_add_u32 s21, s62, s63")
    A("s_waitcnt lgkmcnt(0)")
    srd(A, S_X, 4, 2048*512*2)
    A("s_mov_b64 s[16:17], s[52:53]")
    A("s_mov_b64 s[18:19], s[58:59]")
    srd(A, S_WS, 58, WS_BYTES)
    srd(A, S_DBG, 56, 256)
    srd(A, S_OUT, 54, 2048*512*2)
    srd(A, S_T1, 58, 0)
    srd(A, S_T2, 58, 0)
    for r in HOFF: A(f"s_mov_b32 s{r}, 0x7fff0000")
    A("s_cmp_lt_u32 s22, 4")
    A("s_cbranch_scc1 L_COMPUTE")
    gen_loader(A)
    A("s_branch L_P0")
    A.lab("L_COMPUTE")
    A("s_mov_b32 s23, 0")
    gen_init(A)
    A("s_cmp_ge_u32 s21, 6")
    A("s_cbranch_scc1 L_F")
    A("s_cmp_ge_u32 s21, 4")
    A("s_cbranch_scc1 L_V")
    gen_compute(A, "QK")
    A.lab("L_V")
    gen_compute(A, "V")
    A.lab("L_SIGNAL")
    A("s_and_b32 s14, s21, 1")
    A("s_lshl_b32 s14, s14, 12")
    A(f"s_add_u32 s14, s14, {QCNT:#x}")
    A("s_waitcnt vmcnt(0)")
    last_wave_signals(A, "L_SIG2", 0, 3)
    stamp(A, 15)
    A("s_branch L_P2")
    A.lab("L_F")
    gen_compute(A, "F")
    A.lab("L_P2")
    gen_attn(A)
    gen_final(A)
    A.lab("L_END")
    A("s_endpgm")
    gen_hooks(A)
    return f""".section .rodata,"a"
.p2align 6
.amdhsa_kernel {name}
  .amdhsa_next_free_vgpr 256
  .amdhsa_next_free_sgpr 102
  .amdhsa_accum_offset 256
  .amdhsa_group_segment_fixed_size 0
  .amdhsa_kernarg_size 80
  .amdhsa_user_sgpr_count 2
  .amdhsa_user_sgpr_kernarg_segment_ptr 1
  .amdhsa_system_sgpr_workgroup_id_x 1
.end_amdhsa_kernel
"""

def gen_init(A):
    R = 160
    A("s_cmp_lg_u32 s22, 0")
    A("s_cbranch_scc1 L_INIT1")
    for r in range(R, R+4): A(f"v_mov_b32 v{r}, 0")
    A(f"v_mov_b32 v{R+4}, {SW}")
    A(f"ds_write_b128 v{R+4}, {vr(R,4)}")
    A("s_sub_u32 s61, s2, 132")
    A(f"s_cmp_ge_u32 s61, {NZ}")
    A("s_cbranch_scc1 L_INIT1")
    A(f"v_lshlrev_b32 v{R+4}, 7, v{L}")
    A("s_lshl_b32 s60, s61, 13")
    A(f"s_add_u32 s60, s60, {FLAGS:#x}")
    A(f"buffer_store_dword v{R}, v{R+4}, {sr(S_WS,4)}, s60 offen sc1")
    A("s_nop 1")
    A.lab("L_INIT1")
    for r in range(144): A(f"v_mov_b32 v{r}, 0")
    A("s_call_b64 s[76:77], L_ATTINIT")
    A("s_lshr_b32 s60, s22, 1")
    A("s_and_b32 s61, s22, 1")

VW = 144
def gen_wsetup(A):
    T = 158
    A("s_bfe_u32 s62, s22, 0x10001")
    A("s_and_b32 s63, s22, 1")
    A("s_cmp_lt_u32 s21, 6")
    A("s_cbranch_scc1 LL_Q")
    A("s_cmp_eq_u32 s63, 0")
    A(f"s_cselect_b32 s{S_W}, s12, s14")
    A(f"s_cselect_b32 s{S_W+1}, s13, s15")
    A(f"s_mov_b32 s{S_W+2}, {512*1376*2:#x}")
    A("s_sub_u32 s64, s21, 6")
    A(f"s_mul_i32 s64, s64, {9*32}")
    A(f"s_mov_b32 s65, {2752-288}")
    A(f"v_mul_u32_u24 v{T+2}, 3641, v{L}")
    A(f"v_lshl_add_u32 v{T+3}, v{L}, 4, s64")
    for i in range(9):
        A(f"v_add_u32 v{T+4}, {64*i*3641}, v{T+2}")
        A(f"v_lshrrev_b32 v{T+4}, 16, v{T+4}")
        A(f"v_add_u32 v{T+5}, {1024*i}, v{T+3}")
        A(f"v_mad_u32_u24 v{VW+i}, v{T+4}, s65, v{T+5}")
    A(f"v_and_b32 v{T+2}, 3, v{L}")
    A(f"v_min_u32 v{T+2}, 2, v{T+2}")
    A("s_mov_b32 s65, 2752")
    A(f"s_mov_b32 s68, {32*2752}")
    A("s_branch LL_C")
    A.lab("LL_Q")
    A(f"s_mov_b32 s{S_W}, s6")
    A(f"s_mov_b32 s{S_W+1}, s7")
    A(f"s_mov_b32 s{S_W+2}, {512*1536*2:#x}")
    A(f"v_lshrrev_b32 v{T+3}, 4, v{L}")
    A(f"v_mul_u32_u24 v{T+2}, 3072, v{T+3}")
    A(f"v_bfe_u32 v{T+4}, v{L}, 2, 2")
    A(f"v_xor_b32 v{T+4}, v{T+4}, v{T+3}")
    A(f"v_lshl_add_u32 v{T+2}, v{T+4}, 6, v{T+2}")
    A(f"v_and_b32 v{T+3}, 3, v{L}")
    A(f"v_lshl_add_u32 v{T+2}, v{T+3}, 4, v{T+2}")
    A("s_lshl_b32 s64, s21, 9")
    A("s_lshl_b32 s65, s63, 8")
    A("s_add_u32 s64, s64, s65")
    A(f"v_add_u32 v{VW}, s64, v{T+2}")
    for i in range(1, 9): A(f"v_add_u32 v{VW+i}, {i*4*3072}, v{VW}")
    A(f"v_and_b32 v{T+2}, 1, v{L}")
    A("s_mov_b32 s65, 3072")
    A(f"s_mov_b32 s68, {32*3072}")
    A.lab("LL_C")
    A("s_and_b32 s66, s20, 3")
    A("s_lshl_b32 s66, s66, 3")
    A(f"v_lshrrev_b32 v{T+3}, 2, v{L}")
    A(f"v_add_u32 v{T+3}, s66, v{T+3}")
    A(f"v_mul_u32_u24 v{T+3}, s65, v{T+3}")
    A(f"v_lshl_add_u32 v{T+3}, v{T+2}, 7, v{T+3}")
    A(f"v_add_u32 v{VW+9}, s64, v{T+3}")
    A(f"s_mov_b32 s{S_W+3}, 0x00020000")
    A(f"s_mul_i32 s71, s62, {WSL}")
    A(f"s_mul_i32 s66, s63, {UPOFF}")
    A("s_add_u32 s71, s71, s66")
    A(f"s_add_u32 s71, s71, {WR}")
    A("s_mov_b32 s72, s71")
    A(f"s_add_u32 s73, s71, {6*WSL}")
    A("s_mul_i32 s74, s62, s68")
    A("s_lshl_b32 s68, s68, 1")
    if OPT["krot"]:
        A("s_mul_i32 s66, s3, s68")
        A("s_add_u32 s74, s74, s66")
        A("s_lshl_b32 s3, s68, 3")

W_PREFETCH = ["s_add_u32 s67, s74, s68", "s_mov_b32 exec_hi, 0",
              f"buffer_load_dword v253, v{VW+9}, {sr(S_W,4)}, s67 offen", "s_mov_b64 exec, -1"]
_dma_n = [0]
def dma_piece(i): return [f"s_add_u32 m0, s72, {i*1024}", "s_nop 0", f"buffer_load_dwordx4 v{VW+i}, {sr(S_W,4)}, s74 offen{OPT['wfl']} lds"]
DMA_TAIL = ["s_add_u32 s74, s74, s68", f"s_add_u32 s72, s72, {2*WSL}", "s_cmp_eq_u32 s72, s73", "s_cselect_b32 s72, s71, s72"]
def dma_groups(first):
    g = [dma_piece(i) for i in range(first, 9)]
    _dma_n[0] += 1
    lab = f"LL_D{_dma_n[0]}"
    wrap = ["s_cmp_ge_u32 s74, s3", "s_cselect_b32 s67, s3, 0", "s_sub_u32 s74, s74, s67"] if OPT["krot"] else []
    g[-1] = ["s_cmp_lt_u32 s21, 6", f"s_cbranch_scc1 {lab}"] + g[-1] + [lab + ":"] + DMA_TAIL + wrap
    return g
def mix(A, work, groups, every):
    groups = list(groups)
    for n, w in enumerate(work):
        if isinstance(every, (list, tuple)):
            for _ in range(every.count(n)):
                if groups: A.many(groups.pop(0))
        elif groups and n % every == 0: A.many(groups.pop(0))
        A(w)
    for g in groups: A.many(g)

HREG = 184
HOFF = [52, 53, 54, 55, 56, 57, 58, 59, 10]
def h_offsets(A):
    tiles = [(lu*2+lt, lu, lt) for lu in range(4) for lt in range(2)] + [(8, 4, 0)]
    for (tile, lu, lt) in tiles:
        A("s_add_u32 s66, s64, 8" if lu == 4 else f"s_add_u32 s66, s65, {lu}")
        A("s_lshl_b32 s67, s66, 10")
        A(f"s_add_u32 s67, s67, s{62+lt}")
        A(f"s_cmp_lt_u32 s66, {NFU}")
        A(f"s_cselect_b32 s{HOFF[tile]}, s67, 0x7fff0000")

def side_setup(A):
    srd(A, 4, 16, 1376*512*2)
    A("s_cmp_ge_u32 s21, 6")
    A("s_cbranch_scc1 LL_NOSS")
    A("s_mul_i32 s75, s20, 6")
    A("s_add_u32 s75, s75, s21")
    A("s_lshl_b32 s75, s75, 2")
    A("s_add_u32 s75, s75, s60")
    A(f"v_lshrrev_b32 v249, 5, v{L}")
    A("v_lshlrev_b32 v249, 10, v249")
    A(f"v_and_b32 v246, 31, v{L}")
    A("v_lshl_add_u32 v249, v246, 4, v249")
    for jb in range(3):
        A(f"s_add_u32 s90, s75, {384*jb}")
        A("s_cmp_lt_u32 s90, 256")
        if jb == 0:
            A(f"s_cselect_b32 s{S_T1}, s8, s16")
            A(f"s_cselect_b32 s{S_T1+1}, s9, s17")
            csel(A, S_T1+2, 512*512*2, 1376*512*2)
        csel(A, 91, WOF, WDF)
        csel(A, 67, 32*2048, NFU*2048)
        A("s_cselect_b32 s70, 0, 256")
        A("s_sub_u32 s70, s90, s70")
        A("s_lshr_b32 s94, s70, 3")
        A("s_and_b32 s70, s70, 7")
        A(f"s_lshl_b32 s{SSRC[jb]}, s94, 14")
        A("s_lshl_b32 s95, s70, 7")
        A(f"s_add_u32 s{SSRC[jb]}, s{SSRC[jb]}, s95")
        A("s_mul_i32 s70, s70, s67")
        A("s_lshl_b32 s94, s94, 11")
        A("s_add_u32 s70, s70, s94")
        A("s_add_u32 s70, s70, s91")
        A(f"s_cmp_lt_u32 s90, {256+8*NFU}")
        A(f"s_cselect_b32 s{HOFF[2*jb]}, s70, 0x7fff0000")
        A(f"s_add_u32 s{HOFF[2*jb+1]}, s{HOFF[2*jb]}, 512")
    A.lab("LL_NOSS")
SSRC = [83, 92, 93]
def side_loads(A, jb):
    S = 4 if jb else S_T1
    for rho in range(16):
        hh = (rho >> 2) & 1; j = (rho & 3) + 4*(rho >> 3)
        d = HREG + 8*jb + 24*(j & 1) + 4*hh + (j >> 1)
        A(f"buffer_load_ushort v{d}, v244, {sr(S,4)}, s{SSRC[jb]} offen offset:{(rho&3)*1024}")
        if (rho & 3) == 3: A(f"s_add_u32 s{SSRC[jb]}, s{SSRC[jb]}, 4096")
def side_combine(A):
    for i in range(24): A(f"v_lshl_or_b32 v{HREG+i}, v{HREG+24+i}, 16, v{HREG+i}")

def gen_compute(A, kind):
    F = kind == "F"
    ROLE[0] = kind[0]
    NW = 5 if F else 4
    ND = 9 if F else 8
    XS = [176, 184]; WSET = [192, 212]
    XA = 232; XB = 236; WA = 240; T0 = 244
    KQ = 1152 if F else 1024
    US = 32
    P = "L1" + kind
    t, h, sw = T0, T0+1, T0+2
    A(f"v_and_b32 v{t}, 31, v{L}")
    A(f"v_lshrrev_b32 v{h}, 5, v{L}")
    A(f"v_bfe_u32 v{sw}, v{t}, 1, 3")
    A(f"v_xor_b32 v{sw}, v{sw}, v{h}")
    A(f"v_lshlrev_b32 v{T0+3}, 7, v{t}")
    A("s_lshl_b32 s62, s22, 12")
    for s in range(4):
        A(f"v_xor_b32 v{T0+4}, {2*s}, v{sw}")
        A(f"v_lshl_add_u32 v{T0+4}, v{T0+4}, 4, v{T0+3}")
        A(f"v_add_u32 v{XA+s}, s62, v{T0+4}")
        A(f"v_xor_b32 v{XB+s}, 0x1000, v{XA+s}")
    if F:
        A(f"v_bfe_u32 v{T0+5}, v{L}, 2, 2")
        A(f"v_mul_u32_u24 v{T0+5}, 288, v{T0+5}")
        A(f"v_and_b32 v{T0+3}, 3, v{L}")
        A(f"v_lshl_add_u32 v{T0+3}, v{T0+3}, 3, v{T0+5}")
        A(f"v_bfe_u32 v{T0+4}, v{L}, 4, 1")
        A(f"v_mul_u32_u24 v{T0+4}, {UPOFF}, v{T0+4}")
        A(f"v_add_u32 v{T0+3}, v{T0+3}, v{T0+4}")
    else:
        A(f"v_bfe_u32 v{T0+5}, v{L}, 2, 2")
        A(f"v_and_b32 v{T0+3}, 3, v{L}")
        A(f"v_lshlrev_b32 v{T0+3}, 3, v{T0+3}")
        A(f"v_lshl_add_u32 v{T0+3}, v{T0+5}, 8, v{T0+3}")
        A(f"v_bfe_u32 v{T0+4}, v{L}, 4, 1")
        A(f"v_lshl_add_u32 v{T0+3}, v{T0+4}, 5, v{T0+3}")
    A(f"v_mul_u32_u24 v{T0+4}, {2*KQ}, v{h}")
    A(f"v_add_u32 v{T0+3}, v{T0+3}, v{T0+4}")
    A(f"v_add_u32 v{T0+3}, {WR}, v{T0+3}")
    if F:
        A(f"s_mul_i32 s62, s61, {4*US}")
        A(f"v_add_u32 v{WA}, s62, v{T0+3}")
        A(f"v_add_u32 v{WA+1}, {8*US}, v{T0+3}")
    else:
        A(f"s_mul_i32 s62, s61, {UPOFF}")
        A(f"v_add_u32 v{T0+3}, s62, v{T0+3}")
        for lu in range(4):
            A(f"v_xor_b32 v{T0+4}, {lu}, v{T0+5}")
            A(f"v_lshl_add_u32 v{WA+lu}, v{T0+4}, 6, v{T0+3}")
    VO = 249
    if kind == "QK":
        A(f"v_and_b32 v{T0+6}, 0x33, v{L}")
        A(f"v_bfe_u32 v{T0+7}, v{L}, 2, 1")
        A(f"v_lshl_or_b32 v{T0+6}, v{T0+7}, 3, v{T0+6}")
        A(f"v_bfe_u32 v{T0+7}, v{L}, 3, 1")
        A(f"v_lshl_or_b32 v{T0+6}, v{T0+7}, 2, v{T0+6}")
        A("s_cmp_lt_u32 s21, 2")
        A("s_cselect_b64 vcc, -1, 0")
        A(f"v_cndmask_b32 v{VO}, v{T0+6}, v{L}, vcc")
        A(f"v_lshlrev_b32 v{VO}, 4, v{VO}")
    elif kind == "V":
        A(f"v_and_b32 v{VO}, 15, v{L}")
        A(f"v_lshlrev_b32 v{VO}, 4, v{VO}")
        A(f"v_lshl_or_b32 v{VO}, v{h}, 8, v{VO}")
        A(f"v_bfe_u32 v{T0+6}, v{L}, 4, 1")
        A(f"v_lshl_or_b32 v{VO}, v{T0+6}, 16, v{VO}")
    else:
        A(f"v_lshlrev_b32 v{VO}, 4, v{L}")
    A("s_lshl_b32 s68, s20, 2")
    A("s_add_u32 s68, s68, s22")
    A("s_xor_b32 s69, s68, 1")
    if not F:
        A("s_lshl_b32 s70, s21, 20")
        A("s_lshl_b32 s71, s61, 19")
        A("s_add_u32 s70, s70, s71")
        A("s_lshl_b32 s68, s68, 10")
        A("s_lshl_b32 s69, s69, 10")
        A("s_add_u32 s68, s68, s70")
        A("s_add_u32 s69, s69, s70")
    if F:
        A(f"s_mul_i32 s62, s68, {NFU*1024}")
        A(f"s_mul_i32 s63, s69, {NFU*1024}")
        A(f"s_add_u32 s62, s62, {HF:#x}")
        A(f"s_add_u32 s63, s63, {HF:#x}")
        A("s_sub_u32 s64, s21, 6")
        A("s_mul_i32 s64, s64, 9")
        A("s_lshl_b32 s65, s61, 2")
        A("s_add_u32 s65, s65, s64")
        h_offsets(A)
    A("s_mov_b32 s64, 0")
    A("s_mov_b32 s65, 0")

    def reads(st, s):
        r = []
        hs, sp = s >> 1, s & 1
        def wread(lu):
            a = WA + ((1 if lu == 4 else 0) if F else lu)
            base = hs*WSL + 4*sp*KQ + (lu*US if F and lu < 4 else 0)
            d = WSET[st] + 4*lu
            return [f"ds_read_b64_tr_b16 {vr(d,2)}, v{a} offset:{base}",
                    f"ds_read_b64_tr_b16 {vr(d+2,2)}, v{a} offset:{base+KQ}"]
        r.append(f"ds_read_b128 {vr(XS[st],4)}, v{XA+s}")
        r += wread(0)
        r.append(f"ds_read_b128 {vr(XS[st]+4,4)}, v{XB+s}")
        for lu in range(1, NW): r += wread(lu)
        return r
    def mfma(tile, w, x):
        a, b = (x, w) if kind == "V" else (w, x)
        return f"v_mfma_f32_32x32x16_bf16 {vr(16*tile,16)}, {vr(a,4)}, {vr(b,4)}, {vr(16*tile,16)}"
    def mfmas(st):
        m = [mfma(lu*2+lt, WSET[st]+4*lu, XS[st]+4*lt) for lu in range(4) for lt in range(2)]
        if F: m.append(mfma(8, WSET[st]+16, XS[st]))
        return m
    stamp(A, 1)
    A("s_waitcnt vmcnt(0) lgkmcnt(0)" if F else "s_waitcnt lgkmcnt(0)")
    A("s_barrier")
    stamp(A, 2)
    A.many(reads(0, 0))
    if F:
        A("s_sub_u32 s66, s2, 132")
        A("s_lshl_b32 s67, s22, 8")
        A("s_add_u32 s66, s66, s67")
        A(f"s_cmp_ge_u32 s66, {NZ}")
        A(f"s_cbranch_scc1 {P}_LOOP")
        A("s_lshl_b32 s66, s66, 2")
        A("s_mov_b64 exec, 1")
        A("v_mov_b32 v250, 1")
        A("v_mov_b32 v251, 0")
        A(f"buffer_store_dword v250, v251, {sr(S_DBG,4)}, s66 offen sc1")
        A("s_mov_b64 exec, -1")
    A.raw(".p2align 6")
    A.lab(P + "_LOOP")
    NR = 2*NW + 2
    PEEL = OPT["peel"] and not F
    NIT = 7 if PEEL else 8
    need = [3, 4, 6, 6, 8, 8, 10, 10, 12]
    for s in range(4):
        st = s & 1; nx = (s+1) & 3
        ms = mfmas(st); rd = reads(1-st, nx)
        n = len(ms)
        gaps = [[] for _ in ms]
        g0 = OPT["barpos"] if s == 3 else 0
        for i, r in enumerate(rd): gaps[g0 + i//2].append(r)
        xu = lambda k: [f"v_xor_b32 v{XA+k}, 0x4000, v{XA+k}", f"v_xor_b32 v{XB+k}, 0x4000, v{XB+k}"]
        if s < 3:
            gaps[n-2] += xu(nx)
        if s == 0: gaps[n-3] += xu(0)
        if s == 1:
            gaps[n-3] += ["s_cmp_eq_u32 s65, 2", f"s_mov_b32 s66, {2*WSL:#x}", f"s_cselect_b32 s66, {(-4*WSL) & 0xffffffff:#x}, s66"]
            gaps[n-1] += ["s_cselect_b32 s65, -1, s65", "s_add_u32 s65, s65, 1"]
        if s == 2:
            gaps[n-1] += [f"v_add_u32 v{WA+i}, s66, v{WA+i}" for i in range(2 if F else 4)]
        if s == 3:
            gaps[n-1] += ["s_add_u32 s64, s64, 1", f"s_cmp_lt_u32 s64, {NIT}"]
        issued = 0; done = 0
        for i, (m, g) in enumerate(zip(ms, gaps)):
            if need[i] > done:
                A(f"s_waitcnt lgkmcnt({min(15, NR - need[i] + issued)})"); done = need[i]
            A(m)
            if s == 3 and i == g0:
                A("s_waitcnt lgkmcnt(0)"); done = NR
                A("s_barrier")
            for x in g:
                A(x)
                if x.startswith("ds_"): issued += 1
    if OPT["prof"] and OPT["itstamp"]:
        A("s_memtime s[96:97]")
        A("s_memrealtime s[98:99]")
        A("s_add_u32 m0, s64, 19")
        A("s_waitcnt lgkmcnt(0)")
        A("v_writelane_b32 v255, s96, m0")
        A("s_add_u32 m0, s64, 51")
        A("s_nop 0")
        A("v_writelane_b32 v255, s98, m0")
        A(f"s_cmp_lt_u32 s64, {NIT}")
    A(f"s_cbranch_scc1 {P}_LOOP")
    stamp(A, 3)
    tiles = [(lu*2+lt, lu, lt) for lu in range(4) for lt in range(2)] + ([(8, 4, 0)] if F else [])
    if not F:
        def fin(tile, lu, lt):
            a = 16*tile
            g = [[f"v_cvt_pk_bf16_f32 v{a+i}, v{a+2*i}, v{a+2*i+1}" for i in range(4)],
                 [f"s_add_u32 s65, s{68+lt}, {lu*131072}", f"buffer_store_dwordx4 {vr(a,4)}, v{VO}, {sr(S_WS,4)}, s65 offen sc1"],
                 [f"v_cvt_pk_bf16_f32 v{a+8+i}, v{a+8+2*i}, v{a+9+2*i}" for i in range(4)]]
            if kind == "QK": g.append(["s_add_u32 s65, s65, 65536", f"buffer_store_dwordx4 {vr(a+8,4)}, v{VO}, {sr(S_WS,4)}, s65 offen sc1"])
            else: g.append([f"buffer_store_dwordx4 {vr(a+8,4)}, v{VO}, {sr(S_WS,4)}, s65 offen offset:512 sc1"])
            if OPT["pace"] is not None:
                g[1].insert(0, f"s_waitcnt vmcnt({OPT['pace']})"); g[3].insert(0, f"s_waitcnt vmcnt({OPT['pace']})")
            return g
        rest = tiles
        if PEEL:
            XR = {1: XS[1], 2: 128, 3: 136}
            WG = [[212, 216, 220], [224, 228, 208]]
            def wrd(lu):
                r = []
                for s in (1, 2, 3):
                    base = (s >> 1)*WSL + 4*(s & 1)*KQ; d = WG[lu & 1][s-1]
                    r += [f"ds_read_b64_tr_b16 {vr(d,2)}, v{WA+lu} offset:{base}", f"ds_read_b64_tr_b16 {vr(d+2,2)}, v{WA+lu} offset:{base+KQ}"]
                return r
            w0 = wrd(0); rd = []
            for s in (1, 2, 3):
                rd += [f"ds_read_b128 {vr(XR[s],4)}, v{XA+s}", f"ds_read_b128 {vr(XR[s]+4,4)}, v{XB+s}"] + w0[2*s-2:2*s]
            issued = 0; done = 0
            for i, m in enumerate(mfmas(0)):
                if need[i] > done:
                    A(f"s_waitcnt lgkmcnt({min(15, NR - need[i] + issued)})"); done = need[i]
                A(m)
                A.many(rd[2*i:2*i+2]); issued += len(rd[2*i:2*i+2])
            pend = []
            for lu in range(4):
                A("s_waitcnt lgkmcnt(0)")
                if lu == 3: A("s_barrier")
                nxt = wrd(lu+1) if lu < 3 else []
                for i, (s, lt) in enumerate((s, lt) for s in (1, 2, 3) for lt in range(2)):
                    A(mfma(lu*2+lt, WG[lu & 1][s-1], XR[s]+4*lt))
                    A.many(nxt[2*i:2*i+2])
                    if i == 2 and lu > 0:
                        A("s_nop 3")
                        for tl in tiles[2*(lu-1):2*lu]: pend += fin(*tl)
                    for _ in range(2 if i >= 3 else 1):
                        if pend: A.many(pend.pop(0))
            for g in pend: A.many(g)
            A("s_nop 7")
            rest = tiles[6:]
        for tl in rest:
            for g in fin(*tl): A.many(g)
        stamp(A, 4)
        if kind == "QK": A("s_branch L_SIGNAL")
    else:
        C1, C3, ONE, TT = 220, 222, 224, 176
        c1 = -2*0.7978845608028654*LOG2E
        A("s_waitcnt lgkmcnt(0)")
        for r, v in ((C1, c1), (C3, c1*0.044715), (ONE, 1.0)):
            A(f"v_mov_b32 v{r}, {f2u(v):#x}")
            A(f"v_mov_b32 v{r+1}, {f2u(v):#x}")
        dst = lambda tile: HREG + 4*tile
        def stage(tile, k):
            a = 16*tile; T_ = TT if tile & 1 else 232
            pk = lambda op, d, *src: [f"{op} {vr(d+2*i,2)}, " + ", ".join(vr(x+2*i*st,2) for x, st in src) for i in range(4)]
            if k == 0: return (pk("v_pk_mul_f32", T_, (a,1), (a,1)) + pk("v_pk_fma_f32", T_, (T_,1), (C3,0), (C1,0))
                               + pk("v_pk_mul_f32", T_, (T_,1), (a,1)) + pk("v_pk_mul_f32", a, (a,1), (a+8,1)))
            if k == 1: return [f"v_exp_f32 v{T_+i}, v{T_+i}" for i in range(8)]
            if k == 2: return pk("v_pk_add_f32", T_, (T_,1), (ONE,0))
            if k == 3: return [f"v_rcp_f32 v{T_+i}, v{T_+i}" for i in range(8)]
            return pk("v_pk_mul_f32", a, (a,1), (T_,1)) + [f"v_cvt_pk_bf16_f32 v{dst(tile)+i}, v{a+2*i}, v{a+2*i+1}" for i in range(4)]
        A.many(stage(0, 0)); A.many(stage(0, 1))
        for tile in range(9):
            if tile < 8: A.many(stage(tile+1, 0))
            else: A("s_nop 0")
            A.many(stage(tile, 2)); A.many(stage(tile, 3))
            if tile < 8: A.many(stage(tile+1, 1))
            else: A("s_nop 0")
            A.many(stage(tile, 4))
        stamp(A, 4)

VX = 212; DW = 240; S1 = 216; S2 = 220; RR = 224; MR = 228; TL = 232
xreg = lambda c, i: (i*8 + c)*4
def xload_(A, i):
    A(f"s_add_u32 s{85+i}, s80, {i}")
    A(f"s_and_b32 s{85+i}, s{85+i}, 3")
    A(f"s_lshl_b32 s89, s{85+i}, 13")
    A("s_add_u32 s89, s89, s61")
    for c in range(8):
        if OPT["krot"]: A(f"buffer_load_dwordx4 {vr(xreg(c,i),4)}, v{128+c}, {sr(S_X,4)}, s89 offen")
        else: A(f"buffer_load_dwordx4 {vr(xreg(c,i),4)}, v{VX}, {sr(S_X,4)}, s89 offen offset:{c*128}{OPT['xfl']}")
def loader_first(A):
    T = TL
    A("s_sub_u32 s60, s22, 4")
    A("s_lshl_b32 s61, s20, 17")
    A("s_lshl_b32 s62, s60, 15")
    A("s_add_u32 s61, s61, s62")
    A("s_lshr_b32 s80, s2, 5")
    A("s_waitcnt lgkmcnt(0)")
    srd(A, S_X, 4, 2048*512*2)
    xload_(A, 0); xload_(A, 1)

def gen_loader(A):
    ROLE[0] = "L"
    T = TL
    xload = lambda i: xload_(A, i)
    gen_wsetup(A)
    if not OPT["xmix"]: xload(2)
    A("s_cmp_lt_u32 s21, 2")
    A(f"s_cselect_b32 s69, {f2u(0.25*LOG2E):#x}, 1.0")
    A("s_lshr_b32 s64, s21, 1")
    A("s_cmp_eq_u32 s64, 2")
    A(f"s_cselect_b32 s69, {f2u(2.0**VSH):#x}, s69")
    for r in range(S1, S2+4): A(f"v_mov_b32 v{r}, 0")
    A("s_mov_b32 s78, 0x3f803f80")
    A("v_mov_b32 v249, 0")
    A(f"v_lshlrev_b32 v244, 1, v{L}")
    side_setup(A)
    def norm(c, i):
        x = xreg(c, i); r = []
        for d in range(4):
            r.append(f"v_lshlrev_b32 v{T+2*d}, 16, v{x+d}")
            r.append(f"v_and_b32 v{T+2*d+1}, 0xffff0000, v{x+d}")
        for d in range(8): r.append(f"v_fma_f32 v{T+d}, v{T+d}, v{RR+i}, -v{MR+i}")
        for d in range(4): r.append(f"v_cvt_pk_bf16_f32 v{x+d}, v{T+2*d}, v{T+2*d+1}")
        if OPT["w64"]:
            r.insert(-2, f"ds_write_b64 v{DW+i}, {vr(x,2)} offset:{(c&1)*16384}")
            r.append(f"ds_write_b64 v{DW+i}, {vr(x+2,2)} offset:{(c&1)*16384+8}")
        else: r.append(f"ds_write_b128 v{DW+i}, {vr(x,4)} offset:{(c&1)*16384}")
        return r
    def dots(i):
        r = []
        for k in range(32):
            r.append(f"v_dot2c_f32_bf16 v{S2+i}, v{xreg(0,i)+k}, v{xreg(0,i)+k}")
            r.append(f"v_dot2c_f32_bf16 v{S1+i}, s78, v{xreg(0,i)+k}")
        return r
    def xgroups(i):
        B = Asm(); xload_(B, i); l = [x.strip() for x in B.l]
        return [l[:5]] + [[x] for x in l[5:]]
    if OPT["xmix"]:
        for i in (2, 3):
            A(f"s_add_u32 s{85+i}, s80, {i}")
            A(f"s_and_b32 s{85+i}, s{85+i}, 3")
    else:
        A("s_waitcnt vmcnt(16)"); stamp(A, 16)
        xload(3)
        A.many(dots(0))
    A(f"v_lshrrev_b32 v{T+2}, 4, v{L}")
    A(f"v_xor_b32 v{T+2}, v{T+2}, v{T+1}")
    A(f"v_lshlrev_b32 v{T+3}, 7, v{T}")
    A("s_lshl_b32 s64, s60, 12")
    A(f"v_add_u32 v{T+3}, s64, v{T+3}")
    A(f"v_lshl_add_u32 v{T+3}, v{T+2}, 4, v{T+3}")
    for i in range(4):
        A(f"s_and_b32 s64, s{85+i}, 1")
        A("s_lshl_b32 s64, s64, 6")
        A(f"s_lshl_b32 s65, s{85+i}, 10")
        A("s_or_b32 s64, s64, s65")
        A(f"v_xor_b32 v{DW+i}, s64, v{T+3}")
    def vmw(base, tag):
        A(f"s_waitcnt vmcnt({base+9})")
        A("s_cmp_ge_u32 s21, 6")
        A(f"s_cbranch_scc1 {tag}")
        A(f"s_waitcnt vmcnt({base+8})")
        A.lab(tag)
    if OPT["xmix"]:
        e = OPT["xmix"]
        A("s_waitcnt vmcnt(8)"); stamp(A, 16)
        mix(A, dots(0), xgroups(2), e)
        A("s_waitcnt vmcnt(8)"); stamp(A, 17)
        mix(A, dots(1), xgroups(3), e)
        A("s_waitcnt vmcnt(8)"); stamp(A, 18)
        mix(A, dots(2), dma_groups(0), 7)
    elif A("s_waitcnt vmcnt(16)") or stamp(A, 17): pass
    elif OPT["wearly"]:
        mix(A, dots(1), dma_groups(0), 7)
        vmw(8, "LL_G2"); stamp(A, 18)
        A.many(dots(2))
    else:
        A.many(dots(1))
        A("s_waitcnt vmcnt(8)"); stamp(A, 18)
        mix(A, dots(2), dma_groups(0), 7)
    vmw(0, "LL_G3")
    stamp(A, 19)
    A.many(dots(3))
    A("s_nop 2")
    for ctl in ("quad_perm:[1,0,3,2]", "quad_perm:[2,3,0,1]", "row_half_mirror"):
        for r in range(S1, S2+4):
            A(f"v_add_f32_dpp v{r}, v{r}, v{r} {ctl} row_mask:0xf bank_mask:0xf")
    seq = [
        lambda i: f"v_mul_f32 v{S1+i}, {f2u(1/512):#x}, v{S1+i}",
        lambda i: f"v_mul_f32 v{S2+i}, {f2u(1/512):#x}, v{S2+i}",
        lambda i: f"v_fma_f32 v{S2+i}, -v{S1+i}, v{S1+i}, v{S2+i}",
        lambda i: f"v_max_f32 v{S2+i}, 0, v{S2+i}",
        lambda i: f"v_cvt_pk_bf16_f32 v{S2+i}, v{S1+i}, v{S2+i}",
        lambda i: f"v_lshlrev_b32 v{S1+i}, 16, v{S2+i}",
        lambda i: f"v_and_b32 v{S2+i}, 0xffff0000, v{S2+i}",
        lambda i: f"v_add_f32 v{S2+i}, {f2u(1e-5):#x}, v{S2+i}",
        lambda i: f"v_cvt_pk_bf16_f32 v{S2+i}, v{S2+i}, v{S2+i}",
        lambda i: f"v_and_b32 v{S2+i}, 0xffff0000, v{S2+i}",
        lambda i: f"v_sqrt_f32 v{S2+i}, v{S2+i}",
        lambda i: f"v_cvt_pk_bf16_f32 v{S2+i}, v{S2+i}, v{S2+i}",
        lambda i: f"v_and_b32 v{S2+i}, 0xffff0000, v{S2+i}",
        lambda i: f"v_rcp_f32 v{RR+i}, v{S2+i}",
        lambda i: f"v_mul_f32 v{RR+i}, s69, v{RR+i}",
        lambda i: f"v_mul_f32 v{MR+i}, v{S1+i}, v{RR+i}",
    ]
    for f in seq:
        for i in range(4): A(f(i))
    stamp(A, 1)
    mix(A, sum((norm(0, i) for i in range(4)), []), dma_groups(0), OPT["dmaevery"])
    if -1 in OPT["wpf"]: A.many(W_PREFETCH)
    stamp(A, 2)
    dbg_load = [f"buffer_load_dword v97, v96, {sr(S_DBG,4)}, 0 offen sc1"]
    for m in range(8):
        if m == 4: stamp(A, 29)
        if m == 7:
            A("s_cmp_ge_u32 s21, 6")
            A("s_cbranch_scc1 LL_S6")
            A("s_waitcnt vmcnt(0)")
            side_loads(A, 0)
            A("s_branch LL_S6B")
            A.lab("LL_S6")
            A("s_waitcnt vmcnt(0)")
            A.lab("LL_S6B")
            A("s_waitcnt lgkmcnt(0)")
        else: A("s_waitcnt vmcnt(8) lgkmcnt(0)")
        if m == 4: stamp(A, 30)
        if m == 5:
            A.many(ALL1(97))
            A("s_cbranch_scc1 LL_POLL0_OK")
            spin(A, "LL_POLL0", dbg_load, ALL1(97))
        A("s_barrier")
        if m == 3: stamp(A, 28)
        if m == 4: stamp(A, 31)
        if m == 7: break
        work = sum((norm(m+1, i) for i in range(4)), [])
        isw = lambda w: w.startswith("ds_")
        if OPT["exp"] == "wlast": work = [w for w in work if not isw(w)] + [w for w in work if isw(w)]
        if OPT["exp"] == "wfirst":
            if m == 0: A.many(work)
            else: A.many([w for w in work if isw(w)])
            work = [w for w in sum((norm(m+2, i) for i in range(4)), []) if not isw(w)] if m < 6 else []
        if OPT["exp"].startswith("grp"):
            dg = dma_groups(0) if m < 6 else []
            split = {"grp": [3,2,2,2,0], "grp2": [0,3,3,3,0], "grp3": [2,3,2,2,0], "grp4": [4,3,2,0,0]}[OPT["exp"]]
            for _ in range(split[0]):
                if dg: A.many(dg.pop(0))
            for i in range(4):
                nn = norm(m+1, i)
                A.many(nn[:-1])
                for _ in range(split[i+1]):
                    if dg: A.many(dg.pop(0))
                A(nn[-1])
            work = None
        if OPT["exp"] == "nonorm": work = []
        if OPT["exp"] == "nowrite": work = [w for w in work if not w.startswith("ds_")]
        if OPT["exp"] == "dmalast":
            A.many(work); work = []
        if OPT["exp"] == "dmafirst":
            mix(A, [], dma_groups(0) if m < 6 else [], 1); A.many(work); continue
        if work is not None: mix(A, work, dma_groups(0) if m < 6 else [], OPT["dmalast"] if m == 5 else OPT["dmaevery"])
        if m in OPT["wpf"]:
            A("s_cmp_lt_u32 s21, 6")
            A(f"s_cbranch_scc1 LL_PF{m}")
            A.many(W_PREFETCH)
            A.lab(f"LL_PF{m}")
        if m == 3:
            A(f"v_min_u32 v96, {NZ-1}, v{L}")
            A("v_lshlrev_b32 v96, 2, v96")
            A.many(dbg_load)
    A("s_cmp_ge_u32 s21, 6")
    A("s_cbranch_scc1 LL_S7")
    side_loads(A, 1)
    if not OPT["s2late"]: side_loads(A, 2)
    A.lab("LL_S7")
    A("s_call_b64 s[76:77], L_ATTINIT")
    late_init(A)
    A("s_barrier")
    if OPT["b8prio"]: A("s_setprio 3")
    stamp(A, 3)
    A("s_cmp_ge_u32 s21, 6")
    A("s_cbranch_scc1 LL_S8")
    if OPT["s2late"]: side_loads(A, 2)
    A("s_waitcnt vmcnt(0)")
    side_combine(A)
    A.lab("LL_S8")
    A("s_cmp_lg_u32 s60, 0")
    A("s_cbranch_scc1 LL_WAITGO")
    A("v_mov_b32 v96, 0")
    A("s_bfe_u32 s64, s2, 0x10004")
    A("s_lshl_b32 s64, s64, 5")
    A("s_and_b32 s65, s2, 15")
    A("s_add_u32 s64, s64, s65")
    A("s_bfe_u32 s65, s2, 0x10005")
    A("s_lshl_b32 s65, s65, 4")
    A("s_add_u32 s64, s64, s65")
    A("s_lshl_b32 s64, s64, 7")
    A(f"s_add_u32 s64, s64, {QCNT:#x}")
    if OPT["qsch"] == "E":
        A(f"s_and_b32 s64, s64, {(~(24*128)) & 0xffffffff:#x}")
        spin(A, "LL_POLL", [f"buffer_load_dword v97, v96, {sr(S_WS,4)}, s64 offen sc1"], ALL1(97))
    else: spin3(A, "LL_POLL", [0, 1, 2], 96, "s64", 48)
    A(f"v_mov_b32 v96, {SW}")
    A("v_mov_b32 v97, 1")
    A("ds_write_b32 v96, v97 offset:4")
    A("s_branch LL_GO")
    A.lab("LL_WAITGO")
    A(f"v_mov_b32 v96, {SW}")
    A(f"s_mov_b32 s70, {SPIN_MAX*16}")
    A.lab("LL_WG1")
    A("ds_read_b32 v97, v96 offset:4")
    A("s_waitcnt lgkmcnt(0)")
    A("v_readfirstlane_b32 s65, v97")
    A("s_cmp_lg_u32 s65, 0")
    A("s_cbranch_scc1 LL_GO")
    A("s_sleep 1")
    A("s_sub_u32 s70, s70, 1")
    A("s_cmp_lg_u32 s70, 0")
    A("s_cbranch_scc1 LL_WG1")
    A.lab("LL_GO")
    stamp(A, 4)
    A("s_and_b32 s64, s2, 31")
    A("s_lshl_b32 s64, s64, 16")
    A("s_lshl_b32 s65, s60, 11")
    A("s_add_u32 s64, s64, s65")
    A("s_lshr_b32 s66, s2, 5")
    A("s_lshl_b32 s66, s66, 13")
    A("s_add_u32 s66, s66, s64")
    A(f"s_add_u32 m0, s65, {QOFF}")
    A(f"s_add_u32 s67, s64, {KF:#x}")
    A(f"buffer_load_dwordx4 v95, {sr(S_WS,4)}, s66 offen sc1 lds")
    A(f"buffer_load_dwordx4 v95, {sr(S_WS,4)}, s66 offen offset:1024 sc1 lds")
    A(f"s_add_u32 s68, s64, {VF:#x}")
    for c in range(2):
        A(f"s_add_u32 m0, s65, {c*8192}")
        A("s_nop 0")
        A(f"buffer_load_dwordx4 v95, {sr(S_WS,4)}, s67 offen sc1 lds")
        A(f"buffer_load_dwordx4 v95, {sr(S_WS,4)}, s67 offen offset:1024 sc1 lds")
        A(f"s_add_u32 m0, s65, {65536 + c*8192}")
        A("s_add_u32 s67, s67, 8192")
        A(f"buffer_load_dwordx4 v95, {sr(S_WS,4)}, s68 offen sc1 lds")
        A(f"buffer_load_dwordx4 v95, {sr(S_WS,4)}, s68 offen offset:1024 sc1 lds")
        A("s_add_u32 s68, s68, 8192")


WSC = lambda: "" if OPT["wl1"] else " sc1"
def down_loads(A, slot):
    A(f"buffer_load_dwordx4 {vr(DH[slot],4)}, v{L16}, {sr(S_T1,4)}, s84 offen sc1")
    A(f"buffer_load_dwordx4 {vr(DW_[slot],4)}, v{L16}, {sr(S_T2,4)}, s85 offen{WSC()}")
    A(f"buffer_load_dwordx4 {vr(DW_[slot]+4,4)}, v{L16}, {sr(S_T2,4)}, s85 offen offset:1024{WSC()}")
    A("s_add_u32 s84, s84, 1024")
    A("s_add_u32 s85, s85, 2048")

def kv_piece(k):
    if k & 1: return ["s_add_u32 m0, s95, 65536", "s_add_u32 s94, s94, 8192",
                      f"buffer_load_dwordx4 v{L16}, {sr(S_WS,4)}, s60 offen sc1 lds", "s_add_u32 s95, s95, 8192"]
    return ["s_mov_b32 m0, s95", f"s_add_u32 s60, s94, {VF-KF:#x}", f"buffer_load_dwordx4 v{L16}, {sr(S_WS,4)}, s94 offen sc1 lds"]
HPOLL = lambda: apoll(101, 100, "s75", 15)

def attn_body(A, mode, stores=True):
    hs = 0; wo = 0; cl = 0; rw = 0
    for t in range(2 if mode == "P" else 8):
        p = t & 1
        down = mode == "B" or (mode == "2" and t >= 4) or (mode == "C" and t < 4)
        cur, prv = S_[p], S_[1-p]
        ex = lambda a, b: [A(f"v_exp_f32 v{cur+i}, v{cur+i}") for i in range(a, b)]
        if p == 0: A(f"s_setprio {3 - (t >> 1)}")
        if mode == "P": A("s_waitcnt vmcnt(3)")
        else: A(f"s_waitcnt lgkmcnt({3 + (OPT['rwplan'][t-1] if mode == 'C' and t else 0)})")
        ex(0, 2)
        if not (mode == "0" and t == 0):
            A(f"v_smfmac_f32_32x32x32_bf16 {vr(O_,16)}, {vr(V1[1-p],4)}, {vr(prv+8,8)}, v{IDX}")
        kv = mode in "01" and t in OPT["kvplan"][int(mode)]
        if kv: A.many(kv_piece(0))
        ex(2, 6 if down else 7)
        A(f"v_mfma_f32_32x32x16_bf16 {vr(prv,16)}, {vr(KB[1-p],4)}, {vr(Q_,4)}, {vr(C_,16)}")
        if mode == "P": A(f"buffer_load_dwordx4 {vr(KB[1-p],4)}, v{L16}, {sr(S_WS,4)}, s94 offen offset:3072 sc1")
        else: A(f"ds_read_b128 {vr(KB[1-p],4)}, v{KA} offset:{(t+3)*1024}")
        if kv: A.many(kv_piece(1))
        ex(6 if down else 7, 10 if down else 12)
        A(f"v_smfmac_f32_32x32x32_bf16 {vr(O_,16)}, {vr(V0[p],4)}, {vr(cur,8)}, v{IDX}")
        A("s_mov_b64 exec, s[80:81]")
        if mode == "P":
            A(f"buffer_load_dwordx4 {vr(V0[p],4)}, v{VA}, {sr(S_WS,4)}, s94 offen offset:2048 sc1")
            A(f"buffer_load_dwordx4 {vr(V1[1-p],4)}, v{VA}, {sr(S_WS,4)}, s94 offen offset:1536 sc1")
            A("s_add_u32 s94, s94, 1024")
        else:
            A(f"ds_read_b128 {vr(V0[p],4)}, v{VA} offset:{(t+2)*1024}")
            A(f"ds_read_b128 {vr(V1[1-p],4)}, v{VA} offset:{(t+1)*1024+512}")
        A("s_mov_b64 exec, -1")
        if mode == "0":
            if t == 7:
                A(f"buffer_store_dwordx4 {vr(DH[0],4)}, v{L16}, {sr(S_WS,4)}, s11 offen sc1")
            for _ in range(OPT["hplan"][t]):
                if stores: A(f"buffer_store_dwordx4 {vr(HREG+4*hs,4)}, v249, {sr(S_WS,4)}, s{HOFF[hs]} offen sc1")
                hs += 1
        if mode == "2" and t < 4: down_loads(A, (t + 2) & 3)
        if mode == "C":
            if t == 0: A(f"buffer_load_dwordx4 {vr(XV,4)}, v252, {sr(S_X,4)}, s88 offen"); cl += 1
            for _ in range(OPT["woplan"][t]):
                A(f"buffer_load_dwordx4 {vr(WO+4*wo,4)}, v{L16}, {sr(S_WS,4)}, s90 offen offset:{(wo&3)*1024} sc1")
                wo += 1; cl += 1
                if wo & 3 == 0: A("s_add_u32 s90, s90, 4096")
            for _ in range(OPT["rwplan"][t]):
                A(f"ds_write_b128 v102, {vr(DACC+4*rw,4)} offset:{rw*RP}"); rw += 1
        if down and mode == "C":
            ex(10, 12)
            A(f"s_waitcnt vmcnt({3*(3-t) + cl})")
            A(f"v_mfma_f32_32x32x16_bf16 {vr(DACC,16)}, {vr(DW_[t],4)}, {vr(DH[t],4)}, {vr(DACC,16)}")
            ex(12, 16)
            A(f"v_mfma_f32_32x32x16_bf16 {vr(DACC+16,16)}, {vr(DW_[t]+4,4)}, {vr(DH[t],4)}, {vr(DACC+16,16)}")
            if t == 1: A("s_barrier")
        elif down:
            ex(10, 14)
            sl = t >> 1
            if p == 0: A("s_waitcnt vmcnt(9)")
            cc = "0" if (mode == "2" and t < 6) else vr(DACC+16*p,16)
            A(f"v_mfma_f32_32x32x16_bf16 {vr(DACC+16*p,16)}, {vr(DW_[sl]+4*p,4)}, {vr(DH[sl],4)}, {cc}")
            if p == 1: down_loads(A, sl)
            ex(14, 16)
        else:
            ex(12, 16)
        if mode == "1" and t == OPT["sigt"]:
            stamp(A, 25)
            A("s_waitcnt vmcnt(0)")
            stamp(A, 26)
            A("s_barrier")
            stamp(A, 27)
            A("s_cmp_lg_u32 s22, 0")
            A("s_cbranch_scc1 L_NOSIG")
            A("s_mov_b64 exec, 0xff")
            A("v_mov_b32 v97, 1")
            A(f"v_lshlrev_b32 v96, 10, v{L}")
            A(f"buffer_atomic_add v97, v96, {sr(S_WS,4)}, s91 offen")
            A("s_mov_b64 exec, -1")
            A.lab("L_NOSIG")
        if mode == "1" and t == 6:
            A("s_cmp_lg_u32 s22, 0")
            A("s_cbranch_scc1 L_NOPQ")
            A(f"v_lshlrev_b32 v100, 7, v{L}")
            A.many(HPOLL())
            A.lab("L_NOPQ")
        if mode == "1" and t == 7:
            stamp(A, 8)
            A("s_cmp_lg_u32 s22, 0")
            A("s_cbranch_scc1 L_HPOLL_OK")
            spin(A, "L_HPOLL2", HPOLL(), acmp(101, 64, 15), first_loaded=True)
            if OPT["wl1"] == 2:
                A("buffer_inv sc1")
                A("s_waitcnt vmcnt(0)")
            A.lab("L_HPOLL_OK")
            A("s_waitcnt vmcnt(0)")
            A("s_barrier")
            stamp(A, 9)
    if mode == "0": assert hs == 9
    if mode == "C": assert wo == 16 and rw == 8
    if mode == "P": A("s_add_u32 s83, s83, 1")
    elif mode != "C":
        A(f"v_add_u32 v{KA}, 8192, v{KA}")
        A(f"v_add_u32 v{VA}, 8192, v{VA}")
        A("s_add_u32 s83, s83, 1")

def late_init(A):
    A(f"v_lshlrev_b32 v{L16}, 4, v{L}")
    A(f"v_mov_b32 v{IDX}, 0xdddd")
    A(f"v_and_b32 v98, 15, v{L}")
    A("v_lshlrev_b32 v98, 4, v98")
    A(f"v_lshrrev_b32 v99, 5, v{L}")
    A("v_lshl_or_b32 v98, v99, 8, v98")
    A("v_add_u32 v98, 65536, v98")
    A(f"v_add_u32 v99, s15, v{L16}")
    A(f"v_add_u32 v102, s16, v{L16}")
    A(f"v_and_b32 v103, 7, v{L}")
    A(f"v_mul_u32_u24 v103, {RP}, v103")
    A(f"v_lshrrev_b32 v100, 3, v{L}")
    A("v_lshl_add_u32 v103, v100, 4, v103")
    A("v_add_u32 v103, s17, v103")
    A(f"v_mov_b32 v{KA}, v{L16}")
    A(f"v_mov_b32 v{VA}, v98")
    A("v_mov_b32 v100, 0xff800000")
    A("v_mov_b32 v101, 0xff800000")
    for r in range(4): A(f"v_mov_b32 v{DH[0]+r}, -1")

def gen_attinit(A):
    A.lab("L_ATTINIT")
    for r in range(O_, O_+32): A(f"v_mov_b32 v{r}, 0")
    A("s_mov_b32 s80, 0x00110000")
    A("s_mov_b32 s81, 0x00110000")
    A("s_mov_b64 exec, s[80:81]")
    for r in range(V0[0], V0[0]+16): A(f"v_mov_b32 v{r}, 0x3f803f80")
    A("s_mov_b64 exec, -1")
    A("s_mov_b32 s80, 0xffff")
    A("s_mov_b32 s81, 0xffff")
    A(f"s_mov_b32 s79, {f2u(-OPT['bias']):#x}")
    A("s_mov_b32 s82, 1")
    A(f"v_and_b32 v251, 7, v{L}")
    A(f"v_lshrrev_b32 v252, 3, v{L}")
    A("v_lshlrev_b32 v252, 10, v252")
    A("v_lshl_add_u32 v252, v251, 4, v252")
    A("s_lshl_b32 s15, s22, 10")
    A(f"s_add_u32 s15, s15, {QOFF}")
    A("s_and_b32 s91, s20, 3")
    A("s_lshl_b32 s91, s91, 7")
    A(f"s_add_u32 s91, s91, {QFLAG+4*128:#x}")
    A("s_and_b32 s75, s2, 7")
    A("s_lshl_b32 s75, s75, 10")
    A(f"s_add_u32 s75, s75, {QFLAG+4*128:#x}")
    A("s_lshr_b32 s61, s2, 5")
    A("s_lshl_b32 s61, s61, 3")
    A("s_add_u32 s61, s61, s22")
    A("s_lshl_b32 s61, s61, 5")
    A("s_and_b32 s62, s2, 31")
    A("s_add_u32 s61, s61, s62")
    A("s_lshl_b32 s11, s61, 10")
    A(f"s_add_u32 s11, s11, {OF:#x}")
    A("s_and_b32 s94, s2, 31")
    A("s_lshl_b32 s94, s94, 16")
    A("s_lshl_b32 s95, s22, 10")
    A("s_add_u32 s95, s95, 16384")
    A("s_add_u32 s94, s94, s95")
    A(f"s_add_u32 s94, s94, {KF:#x}")
    A("s_and_b32 s67, s2, 7")
    A("s_bfe_u32 s61, s2, 0x20003")
    A("s_lshl_b32 s67, s67, 2")
    A("s_add_u32 s67, s67, s61")
    A("s_lshr_b32 s61, s2, 5")
    A("s_and_b32 s62, s22, 1")
    A("s_lshl_b32 s67, s67, 1")
    A("s_add_u32 s67, s67, s62")
    A("s_lshr_b32 s62, s22, 1")
    A("s_mul_i32 s63, s62, 22")
    A("s_cmp_eq_u32 s62, 3")
    A("s_cselect_b32 s63, 65, s63")
    A("s_cmp_lt_u32 s62, 2")
    A("s_cselect_b32 s64, 22, 21")
    A(f"s_mul_i32 s65, s67, {NFU}")
    A("s_add_u32 s65, s65, s63")
    A("s_lshl_b32 s65, s65, 10")
    A(f"s_add_u32 s65, s65, {HF:#x}")
    A(f"s_add_u32 s{S_T1}, s18, s65")
    A(f"s_addc_u32 s{S_T1+1}, s19, 0")
    A(f"s_lshl_b32 s{S_T1+2}, s64, 10")
    A(f"s_mov_b32 s{S_T1+3}, 0x00020000")
    A(f"s_mul_i32 s65, s61, {NFU}")
    A("s_add_u32 s65, s65, s63")
    A("s_lshl_b32 s65, s65, 11")
    A(f"s_add_u32 s65, s65, {WDF:#x}")
    A(f"s_add_u32 s{S_T2}, s18, s65")
    A(f"s_addc_u32 s{S_T2+1}, s19, 0")
    A(f"s_lshl_b32 s{S_T2+2}, s64, 11")
    A(f"s_mov_b32 s{S_T2+3}, 0x00020000")
    A("s_mov_b32 s84, 0")
    A("s_mov_b32 s85, 0")
    A("s_lshl_b32 s90, s61, 16")
    A("s_lshl_b32 s66, s62, 14")
    A("s_add_u32 s90, s90, s66")
    A(f"s_add_u32 s90, s90, {WOF:#x}")
    A("s_lshl_b32 s87, s67, 15")
    A("s_lshl_b32 s66, s62, 13")
    A("s_add_u32 s87, s87, s66")
    A(f"s_add_u32 s87, s87, {OF:#x}")
    A("s_lshl_b32 s88, s67, 15")
    A("s_lshl_b32 s66, s61, 7")
    A("s_add_u32 s88, s88, s66")
    A("s_lshl_b32 s66, s62, 13")
    A("s_add_u32 s88, s88, s66")
    A("s_add_u32 s13, s87, 4096")
    red_addr(A)
    A("s_setpc_b64 s[76:77]")

def gen_attn(A):
    A("s_waitcnt lgkmcnt(0)")
    late_init(A)
    A.lab("L_P0")
    stamp(A, 5)
    A("s_waitcnt vmcnt(0)")
    A.lab("L_P0B")
    A("s_barrier")
    stamp(A, 6)
    A(f"ds_read_b128 {vr(Q_,4)}, v99")
    A(f"ds_read_b128 {vr(KB[0],4)}, v{KA}")
    A(f"ds_read_b128 {vr(KB[1],4)}, v{KA} offset:1024")
    A("s_mov_b64 exec, s[80:81]")
    A(f"ds_read_b128 {vr(V0[0],4)}, v{VA}")
    A("s_mov_b64 exec, -1")
    A("s_waitcnt lgkmcnt(2)")
    A(f"v_mfma_f32_32x32x16_bf16 {vr(S_[0],16)}, {vr(KB[0],4)}, {vr(Q_,4)}, 0")
    A("s_waitcnt lgkmcnt(1)")
    A(f"v_mfma_f32_32x32x16_bf16 {vr(C_,16)}, {vr(KB[1],4)}, {vr(Q_,4)}, 0")
    A("s_nop 10")
    for i in range(8): A(f"v_max3_f32 v100, v{2*i}, v{2*i+1}, v100")
    for i in range(8): A(f"v_max3_f32 v101, v{C_+2*i}, v{C_+2*i+1}, v101")
    A("v_max_f32 v100, v100, v101")
    A("v_mov_b32 v101, v100")
    A("s_nop 1")
    A("v_permlane32_swap_b32 v100, v101")
    A("s_nop 1")
    A("v_max_f32 v100, v100, v101")
    for r in range(16): A(f"v_sub_f32 v{C_+r}, s79, v100")
    A("s_nop 1")
    A(f"v_mfma_f32_32x32x16_bf16 {vr(S_[0],16)}, {vr(KB[0],4)}, {vr(Q_,4)}, {vr(C_,16)}")
    A(f"ds_read_b128 {vr(KB[0],4)}, v{KA} offset:2048")
    A("s_mov_b64 exec, s[80:81]")
    A(f"ds_read_b128 {vr(V0[1],4)}, v{VA} offset:1024")
    A(f"ds_read_b128 {vr(V1[0],4)}, v{VA} offset:512")
    A("s_mov_b64 exec, -1")
    A("s_mov_b32 s83, 0")
    stamp(A, 7)
    A("s_nop 4")
    if OPT["two0"]:
        A("s_cmp_lt_u32 s21, 6")
        A("s_cbranch_scc1 L_BODY0N")
        A("s_cmp_eq_u32 s22, 4")
        A("s_cbranch_scc1 L_BODY0N")
    attn_body(A, "0")
    A.lab("L_BODY1")
    stamp(A, 24)
    attn_body(A, "1")
    attn_body(A, "2")
    A.lab("L_LOOPB")
    attn_body(A, "B")
    if OPT["prof"] and OPT["bstamp"]:
        A("s_memtime s[96:97]")
        A("s_memrealtime s[98:99]")
        A("s_add_u32 m0, s83, 17")
        A("s_waitcnt lgkmcnt(0)")
        A("v_writelane_b32 v255, s96, m0")
        A("s_add_u32 m0, s83, 49")
        A("s_nop 0")
        A("v_writelane_b32 v255, s98, m0")
    A("s_cmp_lt_u32 s83, 7")
    A("s_cbranch_scc1 L_LOOPB")
    attn_body(A, "C")
    A.lab("L_ATT_DONE")
    A("s_setprio 3")
    A("s_waitcnt lgkmcnt(0)")
    stamp(A, 10)
    A(f"v_smfmac_f32_32x32x32_bf16 {vr(O_,16)}, {vr(V1[1],4)}, {vr(S_[1]+8,8)}, v{IDX}")
    A("s_nop 0")
    A(f"v_mov_b32 v96, {f2u(2.0**90):#x}")
    A(f"v_mov_b32 v97, {f2u(2.0**120):#x}")
    A(f"v_mov_b32 v99, {f2u(2.0**-100):#x}")
    A("s_nop 7")
    A(f"v_rcp_f32 v101, v{O_+8}")
    A("s_nop 0")
    A(f"v_mul_f32 v101, {f2u(2.0**-VSH):#x}, v101")
    for r in range(8): A(f"v_mul_f32 v{r}, v{O_+r}, v101")
    for i in range(4): A(f"v_cvt_pk_bf16_f32 v{8+i}, v{2*i}, v{2*i+1}")
    A("s_cmp_eq_u32 s82, 0")
    A("s_cbranch_scc1 L_FIN")
    A(f"v_add_f32 v100, abs(v{O_}), abs(v{O_+1})")
    for r in range(2, 8): A(f"v_add_f32 v100, v100, abs(v{O_+r})")
    A(f"v_cmp_nlt_f32 s[62:63], v{O_+8}, v96")
    A("v_cmp_nlt_f32 s[64:65], v100, v97")
    A("v_cmp_lt_f32 vcc, v100, v99")
    A("s_or_b64 s[62:63], s[62:63], s[64:65]")
    A("s_or_b64 s[62:63], s[62:63], vcc")
    A("s_cmp_eq_u64 s[62:63], 0")
    A("s_branch L_EXACT" if OPT["force_fallback"] else "s_cbranch_scc0 L_EXACT")
    A.lab("L_FIN")
    A(f"buffer_store_dwordx4 {vr(8,4)}, v{L16}, {sr(S_WS,4)}, s11 offen sc1")

RP = 1056
RS = 8*RP
def red_addr(A):
    A("s_and_b32 s62, s22, 1")
    A("s_lshr_b32 s63, s22, 1")
    A("s_mul_i32 s62, s62, 69632")
    A(f"s_mul_i32 s64, s63, {RS}")
    A("s_add_u32 s16, s64, s62")
    A("s_lshl_b32 s64, s63, 7")
    A("s_add_u32 s17, s64, s62")
def red_write(A, acc):
    for p in range(8): A(f"ds_write_b128 v102, {vr(acc+4*p,4)} offset:{p*RP}")
def red_read(A, dst):
    for s in range(4):
        for h in range(2):
            A(f"ds_read_b128 {vr(dst+8*s+4*h,4)}, v103 offset:{s*RS + h*512}")
def red_sum(A, dst):
    for r in range(8):
        A(f"v_add_f32 v{dst+r}, v{dst+r}, v{dst+8+r}")
        A(f"v_add_f32 v{dst+16+r}, v{dst+16+r}, v{dst+24+r}")
    for r in range(8): A(f"v_add_f32 v{dst+r}, v{dst+r}, v{dst+16+r}")
def round_bf16(A, regs, tmp):
    for i in range(4): A(f"v_cvt_pk_bf16_f32 v{tmp+i}, v{regs+2*i}, v{regs+2*i+1}")
    for i in range(4):
        A(f"v_lshlrev_b32 v{regs+2*i}, 16, v{tmp+i}")
        A(f"v_and_b32 v{regs+2*i+1}, 0xffff0000, v{tmp+i}")

OB = 16
def o_load(A, s):
    A(f"buffer_load_dwordx4 {vr(OB+4*s,4)}, v{L16}, {sr(S_WS,4)}, s{87 if s < 4 else 13} offen offset:{(s&3)*1024} sc1")
def gen_final(A):
    stamp(A, 11)
    A("s_barrier")
    stamp(A, 20)
    G = DACC; T = 136
    red_read(A, G)
    if OPT["oearly"]:
        for s in range(8): o_load(A, s)
    A(f"s_waitcnt vmcnt({9 if OPT['oearly'] else 1})")
    A(f"v_add_u32 v102, {4*RS}, v102")
    A(f"v_add_u32 v103, {4*RS}, v103")
    for i in range(4):
        A(f"v_lshlrev_b32 v{144+2*i}, 16, v{XV+i}")
        A(f"v_and_b32 v{145+2*i}, 0xffff0000, v{XV+i}")
    A("s_waitcnt lgkmcnt(0)")
    B = Asm()
    red_sum(B, G)
    if OPT["mimic"]: round_bf16(B, G, T)
    for r in range(8): B(f"v_mul_f32 v{T+r}, {f2u(-LOG2E):#x}, v{G+r}")
    for r in range(8): B(f"v_exp_f32 v{T+r}, v{T+r}")
    for r in range(8): B(f"v_add_f32 v{T+r}, 1.0, v{T+r}")
    for r in range(8): B(f"v_rcp_f32 v{T+r}, v{T+r}")
    for r in range(8): B(f"v_mul_f32 v{G+r}, v{G+r}, v{T+r}")
    if OPT["mimic"]: round_bf16(B, G, T)
    gw = [x.strip() for x in B.l]
    if not OPT["oearly"]:
        A.many(gw[:OPT["gpre0"]]); gw = gw[OPT["gpre0"]:]
        for s in range(8): o_load(A, s)
    A.many(gw[:OPT["gpre"]]); gw = gw[OPT["gpre"]:]
    stamp(A, 12)
    ACC = 104
    A(f"s_mov_b32 s70, {SPIN_MAX}")
    for s in range(8):
        o = OB + 4*s
        A.lab(f"L_OW{s}")
        A(f"s_waitcnt vmcnt({7-s})")
        A(f"v_max3_u32 v96, v{o}, v{o+1}, v{o+2}")
        A(f"v_max_u32 v96, v96, v{o+3}")
        A("v_cmp_eq_u32 vcc, -1, v96")
        A("s_cmp_lg_u64 vcc, 0")
        A(f"s_cbranch_scc1 L_OR{s}")
        A.lab(f"L_OK{s}")
        for nt in range(2):
            c = "0" if s == 0 else vr(ACC+16*nt,16)
            A(f"v_mfma_f32_32x32x16_bf16 {vr(ACC+16*nt,16)}, {vr(WO+8*s+4*nt,4)}, {vr(o,4)}, {c}")
            A.many(gw[:OPT["gper"]]); gw = gw[OPT["gper"]:]
    A.many(gw)
    stamp(A, 13)
    A("s_nop 11")
    red_write(A, ACC)
    A("s_waitcnt lgkmcnt(0)")
    A("s_barrier")
    red_read(A, 0)
    A("s_waitcnt lgkmcnt(0)")
    red_sum(A, 0)
    if OPT["mimic"]:
        round_bf16(A, 0, T)
        for r in range(8): A(f"v_mul_f32 v{r}, v{r}, v{G+r}")
        round_bf16(A, 0, T)
        for r in range(8): A(f"v_add_f32 v{r}, v{r}, v{144+r}")
    else:
        for r in range(8): A(f"v_fma_f32 v{r}, v{r}, v{G+r}, v{144+r}")
    for i in range(4): A(f"v_cvt_pk_bf16_f32 v{T+i}, v{2*i}, v{2*i+1}")
    A(f"buffer_store_dwordx4 {vr(T,4)}, v252, {sr(S_OUT,4)}, s88 offen{OPT['outfl']}")
    if OPT["fixdur"]:
        A.lab("L_FIXDUR")
        A("s_memrealtime s[96:97]")
        A("s_waitcnt lgkmcnt(0)")
        A("s_sub_u32 s96, s96, s100")
        A(f"s_cmp_lt_u32 s96, {OPT['fixdur']}")
        A("s_cbranch_scc1 L_FIXDUR")
    if OPT["prof"]:
        stamp(A, 14)
        A(f"s_add_u32 s{S_T1}, s18, {PROF_OFF:#x}")
        A(f"s_addc_u32 s{S_T1+1}, s19, 0")
        A(f"s_mov_b32 s{S_T1+2}, 0x100000")
        A(f"s_mov_b32 s{S_T1+3}, 0x00020000")
        A("s_lshl_b32 s60, s2, 3")
        A("s_add_u32 s60, s60, s22")
        A("s_lshl_b32 s60, s60, 8")
        A(f"v_lshlrev_b32 v0, 2, v{L}")
        A(f"buffer_store_dword v255, v0, {sr(S_T1,4)}, s60 offen")
        if OPT["dbgout"]:
            A("s_cmp_lg_u32 s2, 200")
            A("s_cbranch_scc1 L_END")
            A("s_cmp_lg_u32 s22, 0")
            A("s_cbranch_scc1 L_END")
            A("v_readlane_b32 s61, v255, 32")
            A("v_readlane_b32 s63, v255, 0")
            A("v_mov_b32 v1, 0")
            A("s_mov_b64 exec, 1")
            for n, i in enumerate((2, 3, 4, 6, 9, 10, 12, 14)):
                A(f"v_readlane_b32 s62, v255, {32+i}")
                A("s_sub_u32 s62, s62, s61")
                A("v_mov_b32 v2, s62")
                A(f"buffer_store_dword v2, v1, {sr(S_DBG,4)}, 0 offen offset:{32+4*n}")
                A("s_nop 1")
            A("v_readlane_b32 s62, v255, 14")
            A("s_sub_u32 s62, s62, s63")
            A("v_mov_b32 v2, s62")
            A(f"buffer_store_dword v2, v1, {sr(S_DBG,4)}, 0 offen offset:28")

def gen_hooks(A):
    gen_attinit(A)
    if OPT["two0"]:
        A.lab("L_BODY0N")
        attn_body(A, "0", False)
        A("s_branch L_BODY1")
    for s in range(8):
        A.lab(f"L_OR{s}")
        A("s_sub_u32 s70, s70, 1")
        A("s_cmp_lt_i32 s70, 0")
        A(f"s_cbranch_scc1 L_OK{s}")
        A("s_waitcnt vmcnt(0)")
        A(f"s_sleep {OPT['osleep']}")
        for k in range(s, 8): o_load(A, k)
        A(f"s_branch L_OW{s}")
    A.lab("L_EXACT")
    A("s_mov_b32 s82, 0")
    A("s_and_b32 s95, s2, 31")
    A("s_lshl_b32 s95, s95, 16")
    A(f"s_add_u32 s95, s95, {KF:#x}")
    A(f"s_add_u32 s94, s95, {62*1024}")
    A(f"v_add_u32 v{VA}, {VF-KF-65536}, v98")
    A("v_mov_b32 v100, 0xff800000")
    for r in range(16): A(f"v_mov_b32 v{O_+r}, 0")
    for r in range(8, 16): A(f"v_mov_b32 v{S_[1]+r}, 0")
    A.lab("L_MAXLOOP")
    A(f"buffer_load_dwordx4 {vr(KB[0],4)}, v{L16}, {sr(S_WS,4)}, s94 offen sc1")
    A(f"buffer_load_dwordx4 {vr(KB[1],4)}, v{L16}, {sr(S_WS,4)}, s94 offen offset:1024 sc1")
    A("s_waitcnt vmcnt(0)")
    A(f"v_mfma_f32_32x32x16_bf16 {vr(S_[0],16)}, {vr(KB[0],4)}, {vr(Q_,4)}, 0")
    A(f"v_mfma_f32_32x32x16_bf16 {vr(C_,16)}, {vr(KB[1],4)}, {vr(Q_,4)}, 0")
    A("s_nop 11")
    for i in range(8): A(f"v_max3_f32 v100, v{2*i}, v{2*i+1}, v100")
    for i in range(8): A(f"v_max3_f32 v100, v{C_+2*i}, v{C_+2*i+1}, v100")
    A("s_cmp_eq_u32 s94, s95")
    A("s_cbranch_scc1 L_MAXDONE")
    A("s_sub_u32 s94, s94, 2048")
    A("s_branch L_MAXLOOP")
    A.lab("L_MAXDONE")
    A("v_mov_b32 v101, v100")
    A("s_nop 1")
    A("v_permlane32_swap_b32 v100, v101")
    A("s_nop 1")
    A("v_max_f32 v100, v100, v101")
    for r in range(16): A(f"v_sub_f32 v{C_+r}, 0, v100")
    A("s_nop 1")
    A(f"v_mfma_f32_32x32x16_bf16 {vr(S_[0],16)}, {vr(KB[0],4)}, {vr(Q_,4)}, {vr(C_,16)}")
    A("s_mov_b64 exec, s[80:81]")
    A(f"buffer_load_dwordx4 {vr(V0[0],4)}, v{VA}, {sr(S_WS,4)}, s94 offen sc1")
    A("s_mov_b64 exec, -1")
    A(f"buffer_load_dwordx4 {vr(KB[0],4)}, v{L16}, {sr(S_WS,4)}, s94 offen offset:2048 sc1")
    A("s_mov_b64 exec, s[80:81]")
    A(f"buffer_load_dwordx4 {vr(V0[1],4)}, v{VA}, {sr(S_WS,4)}, s94 offen offset:1024 sc1")
    A(f"buffer_load_dwordx4 {vr(V1[0],4)}, v{VA}, {sr(S_WS,4)}, s94 offen offset:512 sc1")
    A("s_mov_b64 exec, -1")
    A("s_mov_b32 s83, 0")
    A("s_nop 4")
    A.lab("L_LOOPP")
    attn_body(A, "P")
    A("s_cmp_lt_u32 s83, 32")
    A("s_cbranch_scc1 L_LOOPP")
    A("s_waitcnt vmcnt(0)")
    A("s_branch L_ATT_DONE")
    A.lab("L_CODE_END")

DOC = """; One persistent launch, 256 workgroups x 8 waves (one workgroup per CU), written by a generator script.
; phase 1  workgroup = 128 tokens x (256 QKV columns | 144 gate + 144 up columns).  Waves 4-7 load x, take the
;          MFMA loop (weights transposed by ds_read_b64_tr_b16) and leave Q / K / V^T / gelu(g)*u in d_ws in MFMA
;          P = exp2(S^T) stays fp32 in place and is multiplied with V^T (plus a row of ones for the row sum) by the
"""
def main(out):
    hdr = open(f"cdna_kernels/{NAME}.s.ref").read().split("\n")
    head = [l for l in hdr if l.startswith(";") and "@launch" not in l]
    head += [f"; @launch grid=(256,1,1) block=(512,1,1) lds={LDS_BYTES}"]
    A = Asm()
    d = gen(A)
    open(out, "w").write("\n".join(head) + '\n.amdgcn_target "amdgcn-amd-amdhsa--gfx950"\n' + DOC + A.text() + d)

if __name__ == "__main__":
    for a in sys.argv[2:]:
        k, _, v = a.partition("=")
        OPT[k] = eval(v) if v else True
    main(sys.argv[1] if len(sys.argv) > 1 else f"cdna_kernels/{NAME}.s")
```

```python
import sys, struct

NAME = "recurrent_scan__softmax_full_mha__glu_gated_geglu__prompt"
MB = 1 << 20
QF, KF, VF, OF, WOF, WDF, HF, FLAGS = 0, 2*MB, 4*MB, 6*MB, 8*MB, 9*MB, 11*MB, 17*MB
WS_BYTES = 18*MB
NFU = 86
LOG2E = 1.4426950408889634
def f2u(x): return struct.unpack("<I", struct.pack("<f", x))[0]

OPT = dict(prof=False, bias=98.0, force_fallback=False, sleep=2, barpos=1, itstamp=False, hplan=[1,1,1,1,1,1,2,1], sigt=1, kvplan=[[1,4],[2,3,4,5]], psleep=3, gpre=100, gper=5, wearly=False, peel=True, wl1=0, nodown='', halfkv=False, b8prio=True, qsch='D', outfl=' nt', oearly=0, mimic=False, gpre0=64, woplan=[2,2,2,2,2,2,2,2], rwplan=[0,0,0,0,2,2,2,2], osleep=2, spf=False, prefetch=False, dmaevery=12, dbgout=False, fixdur=0, codepf=True, noload=False, bstamp=False, pace=None, wpf=[], dmalast=12, sidelate=False, sidepf=False, krot=None, two0=False, xmix=0, emap=False, wfl='', xfl='', exp='', w64=False, lprio=0, enc=-1, encrole='', cmap=True, prio='ramp2')
PROF_OFF = 24*MB
SPIN_MAX = 20000
VSH = 32

class Asm:
    def __init__(self): self.l = []
    def __call__(self, s): self.l.append(s if s.endswith(":") else "    " + s)
    def many(self, ss):
        for s in ss: self(s)
    def lab(self, s): self.l.append(s + ":")
    def raw(self, s): self.l.append(s)
    def text(self): return "\n".join(self.l) + "\n"
def vr(a, n): return f"v[{a}:{a+n-1}]"
def sr(a, n): return f"s[{a}:{a+n-1}]"
def srd(A, d, base, nbytes):
    A(f"s_mov_b32 s{d}, s{base}")
    A(f"s_mov_b32 s{d+1}, s{base+1}")
    A(f"s_mov_b32 s{d+2}, {nbytes:#x}")
    A(f"s_mov_b32 s{d+3}, 0x00020000")
def csel(A, d, a, b):
    A(f"s_mov_b32 s{d}, {b:#x}")
    A(f"s_cselect_b32 s{d}, {a:#x}, s{d}")
ROLE = [""]
def stamp(A, i):
    if OPT["enc"] == i and (not OPT["encrole"] or ROLE[0] in OPT["encrole"]):
        A("s_memrealtime s[100:101]")
        A("s_waitcnt lgkmcnt(0)")
    if not OPT["prof"]: return
    if OPT.get("profmin") and i not in (0, 7, 14): return
    A("s_memtime s[96:97]")
    A("s_memrealtime s[98:99]")
    A("s_waitcnt lgkmcnt(0)")
    A(f"v_writelane_b32 v255, s96, {i}")
    A(f"v_writelane_b32 v255, s98, {32+i}")

WR = 32768
WSL = 18560
UPOFF = 9344
QOFF = 135168
SCRATCH = 147456
SW = 163584
LDS_BYTES = 163840
QFLAG = FLAGS
QCNT = QFLAG + 64*128
NZ = 2
S_X, S_W, S_WS, S_DBG, S_OUT, S_T1, S_T2 = 24, 28, 32, 36, 40, 44, 48
L = 254
S_ = [0, 16]; C_ = 32; DACC = 48; Q_ = 80; KB = [84, 88]; O_ = 144; V0 = [160, 164]; V1 = [168, 172]
IDX, KA, VA, L16 = 92, 93, 94, 95
DH = [104, 116, 128, 140]; DW_ = [108, 120, 132, 176]
WO = 184; XV = 248

def spin(A, tag, loads, cmp_lines, first_loaded=False):
    A(f"s_mov_b32 s70, {SPIN_MAX}")
    if not first_loaded: A.many(loads)
    A.lab(tag)
    A("s_waitcnt vmcnt(0)")
    A.many(cmp_lines)
    A(f"s_cbranch_scc1 {tag}_OK")
    A(f"s_sleep {OPT['sleep']}")
    A.many(loads)
    A("s_sub_u32 s70, s70, 1")
    A("s_cmp_lg_u32 s70, 0")
    A(f"s_cbranch_scc1 {tag}")
    A.lab(tag + "_OK")
def spin3(A, tag, regs, voff, soff, n, primed=0):
    A(f"s_mov_b32 s70, {SPIN_MAX}")
    for r in regs[primed:2]:
        A.many(apoll(r, voff, soff, 1))
        A(f"s_sleep {OPT['psleep']}")
    A.lab(tag)
    for k in range(3):
        A.many(apoll(regs[(k+2) % 3], voff, soff, 1))
        A("s_waitcnt vmcnt(2)")
        A.many(acmp(regs[k], n, 1))
        A(f"s_cbranch_scc1 {tag}_OK")
        A(f"s_sleep {OPT['psleep']}")
    A("s_sub_u32 s70, s70, 1")
    A("s_cmp_lg_u32 s70, 0")
    A(f"s_cbranch_scc1 {tag}")
    A.lab(tag + "_OK")
def apoll(dst, voff, soff, mask):
    return [f"v_mov_b32 v{dst}, 0", f"s_mov_b64 exec, {mask}",
            f"buffer_atomic_add v{dst}, v{voff}, {sr(S_WS,4)}, {soff} offen sc0", "s_mov_b64 exec, -1"]
def acmp(v, n, mask):
    return [f"v_cmp_eq_u32 vcc, {n}, v{v}", f"s_cmp_eq_u64 vcc, {mask}"]
ALL1 = lambda v: [f"v_cmp_ne_u32 vcc, 1, v{v}", "s_cmp_eq_u64 vcc, 0"]

def last_wave_signals(A, tag, off, last):
    A(f"v_mov_b32 v96, {SW}")
    A("v_mov_b32 v97, 1")
    A("s_mov_b64 exec, 1")
    A(f"ds_add_rtn_u32 v100, v96, v97 offset:{off}")
    A("s_waitcnt lgkmcnt(0)")
    A("s_mov_b64 exec, -1")
    A("v_readfirstlane_b32 s60, v100")
    A(f"s_cmp_lg_u32 s60, {last}")
    A(f"s_cbranch_scc1 {tag}")
    A(f"v_lshlrev_b32 v96, 7, v{L}")
    if OPT["qsch"] == "E":
        A("s_mov_b64 exec, 1")
        A("v_mov_b32 v100, 1")
        A(f"buffer_atomic_add v100, v96, {sr(S_WS,4)}, s14 offen offset:{31*128} sc0")
        A("s_waitcnt vmcnt(0)")
        A("s_mov_b64 exec, -1")
        A("v_readfirstlane_b32 s60, v100")
        A("s_cmp_lg_u32 s60, 47")
        A(f"s_cbranch_scc1 {tag}")
        A("s_mov_b64 exec, 0xff")
        A(f"buffer_store_dword v97, v96, {sr(S_WS,4)}, s14 offen sc1")
    else:
        A("s_mov_b32 exec_hi, 0")
        A(f"buffer_atomic_add v97, v96, {sr(S_WS,4)}, s14 offen")
    A("s_mov_b64 exec, -1")
    A.lab(tag)

def gen(A):
    name = NAME + "_kernel"
    A.raw(".text"); A.raw(f".globl {name}"); A.raw(".p2align 8"); A.raw(f".type {name},@function")
    A.lab(name)
    A("s_cmp_ge_u32 s2, 256")
    A("s_cbranch_scc1 L_END")
    if OPT["fixdur"]: A("s_memrealtime s[100:101]")
    A("s_load_dwordx4 s[4:7], s[0:1], 0")
    A("s_load_dwordx2 s[8:9], s[0:1], 16")
    A("s_load_dwordx4 s[12:15], s[0:1], 32")
    A("s_load_dwordx4 s[52:55], s[0:1], 48")
    A("s_load_dwordx4 s[56:59], s[0:1], 64")
    if OPT["prof"]: A("v_mov_b32 v255, 0")
    stamp(A, 0)
    A("s_getpc_b64 s[60:61]")
    A.lab("L_PC")
    A("s_lshr_b32 s23, s2, 3")
    A("s_lshl_b32 s62, s23, 11")
    A("v_lshl_add_u32 v250, v0, 7, s62")
    A("v_cmp_gt_u32 s[62:63], 16, v0")
    A("v_cmp_gt_u32 vcc, L_CODE_END-L_PC-4, v250")
    A("v_lshrrev_b32 v252, 6, v0")
    A(f"v_and_b32 v{L}, 63, v0")
    A("s_and_b64 exec, vcc, s[62:63]")
    A("s_cbranch_execz L_NOPF")
    A("v_mov_b32 v251, s61")
    A("v_add_co_u32 v250, vcc, s60, v250")
    A("v_addc_co_u32 v251, vcc, 0, v251, vcc")
    A("global_load_dword v253, v[250:251], off")
    A.lab("L_NOPF")
    A("s_mov_b64 exec, -1")
    A("v_readfirstlane_b32 s22, v252")
    T = TL
    A(f"v_lshrrev_b32 v{T}, 3, v{L}")
    A(f"v_and_b32 v{T+1}, 7, v{L}")
    A(f"v_lshlrev_b32 v{VX}, 10, v{T}")
    A(f"v_lshl_add_u32 v{VX}, v{T+1}, 4, v{VX}")
    A("s_and_b32 s20, s2, 3" if OPT["emap"] else "s_bfe_u32 s20, s2, 0x20001")
    A("s_lshl_b32 s20, s20, 2")
    A("s_and_b32 s60, s23, 3")
    A("s_add_u32 s20, s20, s60")
    if OPT["krot"]:
        A("s_and_b32 s3, s20, 3")
        A(f"s_mul_i32 s3, s3, {OPT['krot'][0]}")
        A("s_lshr_b32 s60, s20, 2")
        A(f"s_mul_i32 s60, s60, {OPT['krot'][1]}")
        A("s_add_u32 s3, s3, s60")
        A("s_and_b32 s3, s3, 7")
        A("s_cmp_lt_u32 s2, 96")
        A("s_cselect_b32 s3, 0, s3")
        A("s_lshl_b32 s60, s3, 7")
        for c in range(8):
            A(f"v_add_u32 v{128+c}, s60, v{VX}")
            A("s_add_u32 s60, s60, 128")
            A("s_and_b32 s60, s60, 1023")
    A("s_cmp_lt_u32 s22, 4")
    A("s_cbranch_scc1 L_COMMON")
    loader_first(A)
    A.lab("L_COMMON")
    A("s_lshr_b32 s62, s23, 2")
    A("s_and_b32 s63, s2, 1")
    A("s_lshl_b32 s21, s62, 1")
    A("s_add_u32 s21, s21, s63")
    A("s_mul_i32 s63, s63, 5")
    A("s_add_u32 s63, s63, s62")
    A("s_add_u32 s63, s63, 3")
    A("s_cmp_ge_u32 s62, 3")
    A("s_cselect_b32 s21, s63, s21")
    if OPT["emap"]:
        A("s_bfe_u32 s63, s2, 0x10002")
        A("s_lshl_b32 s63, s63, 3")
        A("s_add_u32 s21, s62, s63")
    A("s_waitcnt lgkmcnt(0)")
    srd(A, S_X, 4, 2048*512*2)
    A("s_mov_b64 s[16:17], s[52:53]")
    A("s_mov_b64 s[18:19], s[58:59]")
    srd(A, S_WS, 58, WS_BYTES)
    srd(A, S_DBG, 56, 256)
    srd(A, S_OUT, 54, 2048*512*2)
    srd(A, S_T1, 58, 0)
    srd(A, S_T2, 58, 0)
    for r in HOFF: A(f"s_mov_b32 s{r}, 0x7fff0000")
    A("s_cmp_lt_u32 s22, 4")
    A("s_cbranch_scc1 L_COMPUTE")
    gen_loader(A)
    A("s_branch L_P0")
    A.lab("L_COMPUTE")
    A("s_mov_b32 s23, 0")
    gen_init(A)
    A("s_cmp_ge_u32 s21, 6")
    A("s_cbranch_scc1 L_F")
    A("s_cmp_ge_u32 s21, 4")
    A("s_cbranch_scc1 L_V")
    gen_compute(A, "QK")
    A.lab("L_V")
    gen_compute(A, "V")
    A.lab("L_SIGNAL")
    A("s_and_b32 s14, s21, 1")
    A("s_lshl_b32 s14, s14, 12")
    A(f"s_add_u32 s14, s14, {QCNT:#x}")
    A("s_waitcnt vmcnt(0)")
    last_wave_signals(A, "L_SIG2", 0, 3)
    stamp(A, 15)
    A("s_branch L_P2")
    A.lab("L_F")
    gen_compute(A, "F")
    A.lab("L_P2")
    gen_attn(A)
    gen_final(A)
    A.lab("L_END")
    A("s_endpgm")
    gen_hooks(A)
    return f""".section .rodata,"a"
.p2align 6
.amdhsa_kernel {name}
  .amdhsa_next_free_vgpr 256
  .amdhsa_next_free_sgpr 102
  .amdhsa_accum_offset 256
  .amdhsa_group_segment_fixed_size 0
  .amdhsa_kernarg_size 80
  .amdhsa_user_sgpr_count 2
  .amdhsa_user_sgpr_kernarg_segment_ptr 1
  .amdhsa_system_sgpr_workgroup_id_x 1
.end_amdhsa_kernel
"""

def gen_init(A):
    R = 160
    A("s_cmp_lg_u32 s22, 0")
    A("s_cbranch_scc1 L_INIT1")
    for r in range(R, R+4): A(f"v_mov_b32 v{r}, 0")
    A(f"v_mov_b32 v{R+4}, {SW}")
    A(f"ds_write_b128 v{R+4}, {vr(R,4)}")
    A("s_sub_u32 s61, s2, 132")
    A(f"s_cmp_ge_u32 s61, {NZ}")
    A("s_cbranch_scc1 L_INIT1")
    A(f"v_lshlrev_b32 v{R+4}, 7, v{L}")
    A("s_lshl_b32 s60, s61, 13")
    A(f"s_add_u32 s60, s60, {FLAGS:#x}")
    A(f"buffer_store_dword v{R}, v{R+4}, {sr(S_WS,4)}, s60 offen sc1")
    A("s_nop 1")
    A.lab("L_INIT1")
    for r in range(144): A(f"v_mov_b32 v{r}, 0")
    if OPT["sidepf"]:
        A("s_mov_b32 s60, s22")
        side_setup(A)
    A("s_call_b64 s[76:77], L_ATTINIT")
    A("s_lshr_b32 s60, s22, 1")
    A("s_and_b32 s61, s22, 1")

VW = 144
def gen_wsetup(A):
    T = 158
    A("s_bfe_u32 s62, s22, 0x10001")
    A("s_and_b32 s63, s22, 1")
    A("s_cmp_lt_u32 s21, 6")
    A("s_cbranch_scc1 LL_Q")
    A("s_cmp_eq_u32 s63, 0")
    A(f"s_cselect_b32 s{S_W}, s12, s14")
    A(f"s_cselect_b32 s{S_W+1}, s13, s15")
    A(f"s_mov_b32 s{S_W+2}, {512*1376*2:#x}")
    A("s_sub_u32 s64, s21, 6")
    A(f"s_mul_i32 s64, s64, {9*32}")
    A(f"s_mov_b32 s65, {2752-288}")
    A(f"v_mul_u32_u24 v{T+2}, 3641, v{L}")
    A(f"v_lshl_add_u32 v{T+3}, v{L}, 4, s64")
    for i in range(9):
        A(f"v_add_u32 v{T+4}, {64*i*3641}, v{T+2}")
        A(f"v_lshrrev_b32 v{T+4}, 16, v{T+4}")
        A(f"v_add_u32 v{T+5}, {1024*i}, v{T+3}")
        A(f"v_mad_u32_u24 v{VW+i}, v{T+4}, s65, v{T+5}")
    A(f"v_and_b32 v{T+2}, 3, v{L}")
    A(f"v_min_u32 v{T+2}, 2, v{T+2}")
    A("s_mov_b32 s65, 2752")
    A(f"s_mov_b32 s68, {32*2752}")
    A("s_branch LL_C")
    A.lab("LL_Q")
    A(f"s_mov_b32 s{S_W}, s6")
    A(f"s_mov_b32 s{S_W+1}, s7")
    A(f"s_mov_b32 s{S_W+2}, {512*1536*2:#x}")
    A(f"v_lshrrev_b32 v{T+3}, 4, v{L}")
    A(f"v_mul_u32_u24 v{T+2}, 3072, v{T+3}")
    A(f"v_bfe_u32 v{T+4}, v{L}, 2, 2")
    A(f"v_xor_b32 v{T+4}, v{T+4}, v{T+3}")
    A(f"v_lshl_add_u32 v{T+2}, v{T+4}, 6, v{T+2}")
    A(f"v_and_b32 v{T+3}, 3, v{L}")
    A(f"v_lshl_add_u32 v{T+2}, v{T+3}, 4, v{T+2}")
    A("s_lshl_b32 s64, s21, 9")
    A("s_lshl_b32 s65, s63, 8")
    A("s_add_u32 s64, s64, s65")
    A(f"v_add_u32 v{VW}, s64, v{T+2}")
    for i in range(1, 9): A(f"v_add_u32 v{VW+i}, {i*4*3072}, v{VW}")
    A(f"v_and_b32 v{T+2}, 1, v{L}")
    A("s_mov_b32 s65, 3072")
    A(f"s_mov_b32 s68, {32*3072}")
    A.lab("LL_C")
    A("s_and_b32 s66, s20, 3")
    A("s_lshl_b32 s66, s66, 3")
    A(f"v_lshrrev_b32 v{T+3}, 2, v{L}")
    A(f"v_add_u32 v{T+3}, s66, v{T+3}")
    A(f"v_mul_u32_u24 v{T+3}, s65, v{T+3}")
    A(f"v_lshl_add_u32 v{T+3}, v{T+2}, 7, v{T+3}")
    A(f"v_add_u32 v{VW+9}, s64, v{T+3}")
    A(f"s_mov_b32 s{S_W+3}, 0x00020000")
    A(f"s_mul_i32 s71, s62, {WSL}")
    A(f"s_mul_i32 s66, s63, {UPOFF}")
    A("s_add_u32 s71, s71, s66")
    A(f"s_add_u32 s71, s71, {WR}")
    A("s_mov_b32 s72, s71")
    A(f"s_add_u32 s73, s71, {6*WSL}")
    A("s_mul_i32 s74, s62, s68")
    A("s_lshl_b32 s68, s68, 1")
    if OPT["krot"]:
        A("s_mul_i32 s66, s3, s68")
        A("s_add_u32 s74, s74, s66")
        A("s_lshl_b32 s3, s68, 3")

W_PREFETCH = ["s_add_u32 s67, s74, s68", "s_mov_b32 exec_hi, 0",
              f"buffer_load_dword v253, v{VW+9}, {sr(S_W,4)}, s67 offen", "s_mov_b64 exec, -1"]
_dma_n = [0]
def dma_piece(i): return [f"s_add_u32 m0, s72, {i*1024}", "s_nop 0", f"buffer_load_dwordx4 v{VW+i}, {sr(S_W,4)}, s74 offen{OPT['wfl']} lds"]
DMA_TAIL = ["s_add_u32 s74, s74, s68", f"s_add_u32 s72, s72, {2*WSL}", "s_cmp_eq_u32 s72, s73", "s_cselect_b32 s72, s71, s72"]
def dma_groups(first):
    g = [dma_piece(i) for i in range(first, 9)]
    _dma_n[0] += 1
    lab = f"LL_D{_dma_n[0]}"
    wrap = ["s_cmp_ge_u32 s74, s3", "s_cselect_b32 s67, s3, 0", "s_sub_u32 s74, s74, s67"] if OPT["krot"] else []
    g[-1] = ["s_cmp_lt_u32 s21, 6", f"s_cbranch_scc1 {lab}"] + g[-1] + [lab + ":"] + DMA_TAIL + wrap
    return g
def mix(A, work, groups, every):
    groups = list(groups)
    for n, w in enumerate(work):
        if isinstance(every, (list, tuple)):
            for _ in range(every.count(n)):
                if groups: A.many(groups.pop(0))
        elif groups and n % every == 0: A.many(groups.pop(0))
        A(w)
    for g in groups: A.many(g)

HREG = 184
HOFF = [52, 53, 54, 55, 56, 57, 58, 59, 10]
def h_offsets(A):
    tiles = [(lu*2+lt, lu, lt) for lu in range(4) for lt in range(2)] + [(8, 4, 0)]
    for (tile, lu, lt) in tiles:
        A("s_add_u32 s66, s64, 8" if lu == 4 else f"s_add_u32 s66, s65, {lu}")
        A("s_lshl_b32 s67, s66, 10")
        A(f"s_add_u32 s67, s67, s{62+lt}")
        A(f"s_cmp_lt_u32 s66, {NFU}")
        A(f"s_cselect_b32 s{HOFF[tile]}, s67, 0x7fff0000")

SJ = 184
def side_setup(A):
    A("s_mul_i32 s75, s20, 10")
    A("s_add_u32 s75, s75, s21")
    A("s_sub_u32 s75, s75, 6")
    A("s_mul_i32 s75, s75, 3")
    A("s_add_u32 s75, s75, s60")
    A("s_sub_u32 s75, s75, 1")
    A(f"v_lshrrev_b32 v245, 5, v{L}")
    A("v_lshlrev_b32 v245, 10, v245")
    A(f"v_and_b32 v246, 31, v{L}")
    A("v_lshl_add_u32 v245, v246, 4, v245")
    for jb in range(2):
        S = 4 if jb else S_W
        A(f"s_add_u32 s90, s75, {480*jb}")
        A("s_cmp_lt_u32 s90, 256")
        A(f"s_cselect_b32 s{S}, s8, s16")
        A(f"s_cselect_b32 s{S+1}, s9, s17")
        csel(A, S+2, 512*512*2, 1376*512*2)
        A(f"s_mov_b32 s{S+3}, 0x00020000")
        csel(A, 91, WOF, WDF)
        csel(A, 67, 32*2048, NFU*2048)
        A("s_cselect_b32 s70, 0, 256")
        A("s_sub_u32 s70, s90, s70")
        A("s_lshr_b32 s94, s70, 3")
        A("s_and_b32 s70, s70, 7")
        A(f"s_lshl_b32 s{72+jb}, s94, 14")
        A("s_lshl_b32 s95, s70, 7")
        A(f"s_add_u32 s{72+jb}, s{72+jb}, s95")
        A("s_mul_i32 s70, s70, s67")
        A("s_lshl_b32 s94, s94, 11")
        A("s_add_u32 s70, s70, s94")
        A("s_add_u32 s70, s70, s91")
        A(f"s_cmp_lt_u32 s90, {256+8*NFU}")
        A(f"s_cselect_b32 s{92+jb}, s70, 0x7fff0000")
def side_prefetch(A):
    A("s_mov_b64 exec, 0xffff")
    A(f"buffer_load_dword v253, v245, {sr(S_T1,4)}, s81 offen")
    A(f"buffer_load_dword v253, v245, {sr(S_T2,4)}, s82 offen")
    A("s_mov_b64 exec, -1")
def side_loads(A, jb):
    S = 4 if jb else S_W
    for rho in range(16):
        hh = (rho >> 2) & 1; j = (rho & 3) + 4*(rho >> 3)
        d = 204 + 8*jb + 16*(j & 1) + 4*hh + (j >> 1)
        A(f"buffer_load_ushort v{d}, v244, {sr(S,4)}, s{72+jb} offen offset:{(rho&3)*1024}")
        if (rho & 3) == 3: A(f"s_add_u32 s{72+jb}, s{72+jb}, 4096")
def side_combine(A):
    for i in range(16): A(f"v_lshl_or_b32 v{204+i}, v{220+i}, 16, v{204+i}")
def side_offsets(A):
    for jb in range(2):
        A(f"s_mov_b32 s{HOFF[5+2*jb]}, s{92+jb}")
        A(f"s_add_u32 s{HOFF[6+2*jb]}, s{92+jb}, 512")
    A("v_mov_b32 v249, v245")

def gen_compute(A, kind):
    F = kind == "F"
    ROLE[0] = kind[0]
    NW = 5 if F else 4
    ND = 9 if F else 8
    XS = [176, 184]; WSET = [192, 212]
    XA = 232; XB = 236; WA = 240; T0 = 244
    KQ = 1152 if F else 1024
    US = 32
    P = "L1" + kind
    t, h, sw = T0, T0+1, T0+2
    A(f"v_and_b32 v{t}, 31, v{L}")
    A(f"v_lshrrev_b32 v{h}, 5, v{L}")
    A(f"v_bfe_u32 v{sw}, v{t}, 1, 3")
    A(f"v_xor_b32 v{sw}, v{sw}, v{h}")
    A(f"v_lshlrev_b32 v{T0+3}, 7, v{t}")
    A("s_lshl_b32 s62, s22, 12")
    for s in range(4):
        A(f"v_xor_b32 v{T0+4}, {2*s}, v{sw}")
        A(f"v_lshl_add_u32 v{T0+4}, v{T0+4}, 4, v{T0+3}")
        A(f"v_add_u32 v{XA+s}, s62, v{T0+4}")
        A(f"v_xor_b32 v{XB+s}, 0x1000, v{XA+s}")
    if F:
        A(f"v_bfe_u32 v{T0+5}, v{L}, 2, 2")
        A(f"v_mul_u32_u24 v{T0+5}, 288, v{T0+5}")
        A(f"v_and_b32 v{T0+3}, 3, v{L}")
        A(f"v_lshl_add_u32 v{T0+3}, v{T0+3}, 3, v{T0+5}")
        A(f"v_bfe_u32 v{T0+4}, v{L}, 4, 1")
        A(f"v_mul_u32_u24 v{T0+4}, {UPOFF}, v{T0+4}")
        A(f"v_add_u32 v{T0+3}, v{T0+3}, v{T0+4}")
    else:
        A(f"v_bfe_u32 v{T0+5}, v{L}, 2, 2")
        A(f"v_and_b32 v{T0+3}, 3, v{L}")
        A(f"v_lshlrev_b32 v{T0+3}, 3, v{T0+3}")
        A(f"v_lshl_add_u32 v{T0+3}, v{T0+5}, 8, v{T0+3}")
        A(f"v_bfe_u32 v{T0+4}, v{L}, 4, 1")
        A(f"v_lshl_add_u32 v{T0+3}, v{T0+4}, 5, v{T0+3}")
    A(f"v_mul_u32_u24 v{T0+4}, {2*KQ}, v{h}")
    A(f"v_add_u32 v{T0+3}, v{T0+3}, v{T0+4}")
    A(f"v_add_u32 v{T0+3}, {WR}, v{T0+3}")
    if F:
        A(f"s_mul_i32 s62, s61, {4*US}")
        A(f"v_add_u32 v{WA}, s62, v{T0+3}")
        A(f"v_add_u32 v{WA+1}, {8*US}, v{T0+3}")
    else:
        A(f"s_mul_i32 s62, s61, {UPOFF}")
        A(f"v_add_u32 v{T0+3}, s62, v{T0+3}")
        for lu in range(4):
            A(f"v_xor_b32 v{T0+4}, {lu}, v{T0+5}")
            A(f"v_lshl_add_u32 v{WA+lu}, v{T0+4}, 6, v{T0+3}")
    VO = 249
    if kind == "QK":
        A(f"v_and_b32 v{T0+6}, 0x33, v{L}")
        A(f"v_bfe_u32 v{T0+7}, v{L}, 2, 1")
        A(f"v_lshl_or_b32 v{T0+6}, v{T0+7}, 3, v{T0+6}")
        A(f"v_bfe_u32 v{T0+7}, v{L}, 3, 1")
        A(f"v_lshl_or_b32 v{T0+6}, v{T0+7}, 2, v{T0+6}")
        A("s_cmp_lt_u32 s21, 2")
        A("s_cselect_b64 vcc, -1, 0")
        A(f"v_cndmask_b32 v{VO}, v{T0+6}, v{L}, vcc")
        A(f"v_lshlrev_b32 v{VO}, 4, v{VO}")
    elif kind == "V":
        A(f"v_and_b32 v{VO}, 15, v{L}")
        A(f"v_lshlrev_b32 v{VO}, 4, v{VO}")
        A(f"v_lshl_or_b32 v{VO}, v{h}, 8, v{VO}")
        A(f"v_bfe_u32 v{T0+6}, v{L}, 4, 1")
        A(f"v_lshl_or_b32 v{VO}, v{T0+6}, 16, v{VO}")
    else:
        A(f"v_lshlrev_b32 v{VO}, 4, v{L}")
    A("s_lshl_b32 s68, s20, 2")
    A("s_add_u32 s68, s68, s22")
    A("s_xor_b32 s69, s68, 1")
    if not F:
        A("s_lshl_b32 s70, s21, 20")
        A("s_lshl_b32 s71, s61, 19")
        A("s_add_u32 s70, s70, s71")
        A("s_lshl_b32 s68, s68, 10")
        A("s_lshl_b32 s69, s69, 10")
        A("s_add_u32 s68, s68, s70")
        A("s_add_u32 s69, s69, s70")
    if F:
        A(f"s_mul_i32 s62, s68, {NFU*1024}")
        A(f"s_mul_i32 s63, s69, {NFU*1024}")
        A(f"s_add_u32 s62, s62, {HF:#x}")
        A(f"s_add_u32 s63, s63, {HF:#x}")
        A("s_sub_u32 s64, s21, 6")
        A("s_mul_i32 s64, s64, 9")
        A("s_lshl_b32 s65, s61, 2")
        A("s_add_u32 s65, s65, s64")
        h_offsets(A)
    A("s_mov_b32 s64, 0")
    A("s_mov_b32 s65, 0")

    def reads(st, s):
        r = []
        hs, sp = s >> 1, s & 1
        def wread(lu):
            a = WA + ((1 if lu == 4 else 0) if F else lu)
            base = hs*WSL + 4*sp*KQ + (lu*US if F and lu < 4 else 0)
            d = WSET[st] + 4*lu
            return [f"ds_read_b64_tr_b16 {vr(d,2)}, v{a} offset:{base}",
                    f"ds_read_b64_tr_b16 {vr(d+2,2)}, v{a} offset:{base+KQ}"]
        r.append(f"ds_read_b128 {vr(XS[st],4)}, v{XA+s}")
        r += wread(0)
        r.append(f"ds_read_b128 {vr(XS[st]+4,4)}, v{XB+s}")
        for lu in range(1, NW): r += wread(lu)
        return r
    def mfma(tile, w, x):
        a, b = (x, w) if kind == "V" else (w, x)
        return f"v_mfma_f32_32x32x16_bf16 {vr(16*tile,16)}, {vr(a,4)}, {vr(b,4)}, {vr(16*tile,16)}"
    def mfmas(st):
        m = [mfma(lu*2+lt, WSET[st]+4*lu, XS[st]+4*lt) for lu in range(4) for lt in range(2)]
        if F: m.append(mfma(8, WSET[st]+16, XS[st]))
        return m
    stamp(A, 1)
    A("s_waitcnt vmcnt(0) lgkmcnt(0)" if F else "s_waitcnt lgkmcnt(0)")
    A("s_barrier")
    stamp(A, 2)
    A.many(reads(0, 0))
    if F and OPT["sidepf"]:
        A("s_cmp_eq_u32 s22, 0")
        A("s_cbranch_scc1 L_NOSPF")
        A(f"v_lshlrev_b32 v250, 10, v{L}")
        A("s_mov_b64 exec, 0xffff")
        A(f"buffer_load_dword v253, v250, {sr(S_W,4)}, s72 offen")
        A(f"buffer_load_dword v253, v250, s[4:7], s73 offen")
        A("s_mov_b64 exec, -1")
        A.lab("L_NOSPF")
    if F:
        A("s_sub_u32 s66, s2, 132")
        A("s_lshl_b32 s67, s22, 8")
        A("s_add_u32 s66, s66, s67")
        A(f"s_cmp_ge_u32 s66, {NZ}")
        A(f"s_cbranch_scc1 {P}_LOOP")
        A("s_lshl_b32 s66, s66, 2")
        A("s_mov_b64 exec, 1")
        A("v_mov_b32 v250, 1")
        A("v_mov_b32 v251, 0")
        A(f"buffer_store_dword v250, v251, {sr(S_DBG,4)}, s66 offen sc1")
        A("s_mov_b64 exec, -1")
    A.raw(".p2align 6")
    A.lab(P + "_LOOP")
    NR = 2*NW + 2
    PEEL = OPT["peel"] and not F
    NIT = 7 if PEEL else 8
    need = [3, 4, 6, 6, 8, 8, 10, 10, 12]
    for s in range(4):
        st = s & 1; nx = (s+1) & 3
        ms = mfmas(st); rd = reads(1-st, nx)
        n = len(ms)
        gaps = [[] for _ in ms]
        g0 = OPT["barpos"] if s == 3 else 0
        for i, r in enumerate(rd): gaps[g0 + i//2].append(r)
        xu = lambda k: [f"v_xor_b32 v{XA+k}, 0x4000, v{XA+k}", f"v_xor_b32 v{XB+k}, 0x4000, v{XB+k}"]
        if s < 3:
            gaps[n-2] += xu(nx)
        if s == 0: gaps[n-3] += xu(0)
        if s == 1:
            gaps[n-3] += ["s_cmp_eq_u32 s65, 2", f"s_mov_b32 s66, {2*WSL:#x}", f"s_cselect_b32 s66, {(-4*WSL) & 0xffffffff:#x}, s66"]
            gaps[n-1] += ["s_cselect_b32 s65, -1, s65", "s_add_u32 s65, s65, 1"]
        if s == 2:
            gaps[n-1] += [f"v_add_u32 v{WA+i}, s66, v{WA+i}" for i in range(2 if F else 4)]
        if s == 3:
            gaps[n-1] += ["s_add_u32 s64, s64, 1", f"s_cmp_lt_u32 s64, {NIT}"]
        issued = 0; done = 0
        for i, (m, g) in enumerate(zip(ms, gaps)):
            if need[i] > done:
                A(f"s_waitcnt lgkmcnt({min(15, NR - need[i] + issued)})"); done = need[i]
            A(m)
            if s == 3 and i == g0:
                A("s_waitcnt lgkmcnt(0)"); done = NR
                A("s_barrier")
            for x in g:
                A(x)
                if x.startswith("ds_"): issued += 1
    if OPT["prof"] and OPT["itstamp"]:
        A("s_memtime s[96:97]")
        A("s_memrealtime s[98:99]")
        A("s_add_u32 m0, s64, 19")
        A("s_waitcnt lgkmcnt(0)")
        A("v_writelane_b32 v255, s96, m0")
        A("s_add_u32 m0, s64, 51")
        A("s_nop 0")
        A("v_writelane_b32 v255, s98, m0")
        A(f"s_cmp_lt_u32 s64, {NIT}")
    A(f"s_cbranch_scc1 {P}_LOOP")
    stamp(A, 3)
    tiles = [(lu*2+lt, lu, lt) for lu in range(4) for lt in range(2)] + ([(8, 4, 0)] if F else [])
    if not F:
        def fin(tile, lu, lt):
            a = 16*tile
            g = [[f"v_cvt_pk_bf16_f32 v{a+i}, v{a+2*i}, v{a+2*i+1}" for i in range(4)],
                 [f"s_add_u32 s65, s{68+lt}, {lu*131072}", f"buffer_store_dwordx4 {vr(a,4)}, v{VO}, {sr(S_WS,4)}, s65 offen sc1"],
                 [f"v_cvt_pk_bf16_f32 v{a+8+i}, v{a+8+2*i}, v{a+9+2*i}" for i in range(4)]]
            if kind == "QK": g.append(["s_add_u32 s65, s65, 65536", f"buffer_store_dwordx4 {vr(a+8,4)}, v{VO}, {sr(S_WS,4)}, s65 offen sc1"])
            else: g.append([f"buffer_store_dwordx4 {vr(a+8,4)}, v{VO}, {sr(S_WS,4)}, s65 offen offset:512 sc1"])
            if OPT["pace"] is not None:
                g[1].insert(0, f"s_waitcnt vmcnt({OPT['pace']})"); g[3].insert(0, f"s_waitcnt vmcnt({OPT['pace']})")
            return g
        rest = tiles
        if PEEL:
            XR = {1: XS[1], 2: 128, 3: 136}
            WG = [[212, 216, 220], [224, 228, 208]]
            def wrd(lu):
                r = []
                for s in (1, 2, 3):
                    base = (s >> 1)*WSL + 4*(s & 1)*KQ; d = WG[lu & 1][s-1]
                    r += [f"ds_read_b64_tr_b16 {vr(d,2)}, v{WA+lu} offset:{base}", f"ds_read_b64_tr_b16 {vr(d+2,2)}, v{WA+lu} offset:{base+KQ}"]
                return r
            w0 = wrd(0); rd = []
            for s in (1, 2, 3):
                rd += [f"ds_read_b128 {vr(XR[s],4)}, v{XA+s}", f"ds_read_b128 {vr(XR[s]+4,4)}, v{XB+s}"] + w0[2*s-2:2*s]
            issued = 0; done = 0
            for i, m in enumerate(mfmas(0)):
                if need[i] > done:
                    A(f"s_waitcnt lgkmcnt({min(15, NR - need[i] + issued)})"); done = need[i]
                A(m)
                A.many(rd[2*i:2*i+2]); issued += len(rd[2*i:2*i+2])
            pend = []
            for lu in range(4):
                A("s_waitcnt lgkmcnt(0)")
                if lu == 3: A("s_barrier")
                nxt = wrd(lu+1) if lu < 3 else []
                for i, (s, lt) in enumerate((s, lt) for s in (1, 2, 3) for lt in range(2)):
                    A(mfma(lu*2+lt, WG[lu & 1][s-1], XR[s]+4*lt))
                    A.many(nxt[2*i:2*i+2])
                    if i == 2 and lu > 0:
                        A("s_nop 3")
                        for tl in tiles[2*(lu-1):2*lu]: pend += fin(*tl)
                    for _ in range(2 if i >= 3 else 1):
                        if pend: A.many(pend.pop(0))
            for g in pend: A.many(g)
            A("s_nop 7")
            rest = tiles[6:]
        for tl in rest:
            for g in fin(*tl): A.many(g)
        stamp(A, 4)
        if kind == "QK": A("s_branch L_SIGNAL")
    else:
        C1, C3, ONE, TT = 220, 222, 224, 176
        c1 = -2*0.7978845608028654*LOG2E
        A("s_waitcnt lgkmcnt(0)")
        for r, v in ((C1, c1), (C3, c1*0.044715), (ONE, 1.0)):
            A(f"v_mov_b32 v{r}, {f2u(v):#x}")
            A(f"v_mov_b32 v{r+1}, {f2u(v):#x}")
        dst = lambda tile: HREG + 4*tile
        def stage(tile, k):
            a = 16*tile; T_ = TT if tile & 1 else 232
            pk = lambda op, d, *src: [f"{op} {vr(d+2*i,2)}, " + ", ".join(vr(x+2*i*st,2) for x, st in src) for i in range(4)]
            if k == 0: return (pk("v_pk_mul_f32", T_, (a,1), (a,1)) + pk("v_pk_fma_f32", T_, (T_,1), (C3,0), (C1,0))
                               + pk("v_pk_mul_f32", T_, (T_,1), (a,1)) + pk("v_pk_mul_f32", a, (a,1), (a+8,1)))
            if k == 1: return [f"v_exp_f32 v{T_+i}, v{T_+i}" for i in range(8)]
            if k == 2: return pk("v_pk_add_f32", T_, (T_,1), (ONE,0))
            if k == 3: return [f"v_rcp_f32 v{T_+i}, v{T_+i}" for i in range(8)]
            return pk("v_pk_mul_f32", a, (a,1), (T_,1)) + [f"v_cvt_pk_bf16_f32 v{dst(tile)+i}, v{a+2*i}, v{a+2*i+1}" for i in range(4)]
        A.many(stage(0, 0)); A.many(stage(0, 1))
        for tile in range(9):
            if tile < 8: A.many(stage(tile+1, 0))
            else: A("s_nop 0")
            A.many(stage(tile, 2)); A.many(stage(tile, 3))
            if tile < 8: A.many(stage(tile+1, 1))
            else: A("s_nop 0")
            A.many(stage(tile, 4))
        stamp(A, 4)

VX = 212; DW = 240; S1 = 216; S2 = 220; RR = 224; MR = 228; TL = 232
xreg = lambda c, i: (i*8 + c)*4
def xload_(A, i):
    A(f"s_add_u32 s{85+i}, s80, {i}")
    A(f"s_and_b32 s{85+i}, s{85+i}, 3")
    A(f"s_lshl_b32 s89, s{85+i}, 13")
    A("s_add_u32 s89, s89, s61")
    for c in range(8):
        if OPT["krot"]: A(f"buffer_load_dwordx4 {vr(xreg(c,i),4)}, v{128+c}, {sr(S_X,4)}, s89 offen")
        else: A(f"buffer_load_dwordx4 {vr(xreg(c,i),4)}, v{VX}, {sr(S_X,4)}, s89 offen offset:{c*128}{OPT['xfl']}")
def loader_first(A):
    T = TL
    A("s_sub_u32 s60, s22, 4")
    A("s_lshl_b32 s61, s20, 17")
    A("s_lshl_b32 s62, s60, 15")
    A("s_add_u32 s61, s61, s62")
    A("s_lshr_b32 s80, s2, 5")
    A("s_waitcnt lgkmcnt(0)")
    srd(A, S_X, 4, 2048*512*2)
    xload_(A, 0); xload_(A, 1)

def gen_loader(A):
    ROLE[0] = "L"
    T = TL
    xload = lambda i: xload_(A, i)
    gen_wsetup(A)
    if not OPT["xmix"]: xload(2)
    A("s_cmp_lt_u32 s21, 2")
    A(f"s_cselect_b32 s69, {f2u(0.25*LOG2E):#x}, 1.0")
    A("s_lshr_b32 s64, s21, 1")
    A("s_cmp_eq_u32 s64, 2")
    A(f"s_cselect_b32 s69, {f2u(2.0**VSH):#x}, s69")
    for r in range(S1, S2+4): A(f"v_mov_b32 v{r}, 0")
    A("s_mov_b32 s78, 0x3f803f80")
    A("v_mov_b32 v249, 0")
    A(f"v_lshlrev_b32 v244, 1, v{L}")
    A("s_cmp_ge_u32 s21, 6")
    A("s_cselect_b32 s79, s60, 0")
    def norm(c, i):
        x = xreg(c, i); r = []
        for d in range(4):
            r.append(f"v_lshlrev_b32 v{T+2*d}, 16, v{x+d}")
            r.append(f"v_and_b32 v{T+2*d+1}, 0xffff0000, v{x+d}")
        for d in range(8): r.append(f"v_fma_f32 v{T+d}, v{T+d}, v{RR+i}, -v{MR+i}")
        for d in range(4): r.append(f"v_cvt_pk_bf16_f32 v{x+d}, v{T+2*d}, v{T+2*d+1}")
        if OPT["w64"]:
            r.insert(-2, f"ds_write_b64 v{DW+i}, {vr(x,2)} offset:{(c&1)*16384}")
            r.append(f"ds_write_b64 v{DW+i}, {vr(x+2,2)} offset:{(c&1)*16384+8}")
        else: r.append(f"ds_write_b128 v{DW+i}, {vr(x,4)} offset:{(c&1)*16384}")
        return r
    def dots(i):
        r = []
        for k in range(32):
            r.append(f"v_dot2c_f32_bf16 v{S2+i}, v{xreg(0,i)+k}, v{xreg(0,i)+k}")
            r.append(f"v_dot2c_f32_bf16 v{S1+i}, s78, v{xreg(0,i)+k}")
        return r
    def xgroups(i):
        B = Asm(); xload_(B, i); l = [x.strip() for x in B.l]
        return [l[:5]] + [[x] for x in l[5:]]
    if OPT["xmix"]:
        for i in (2, 3):
            A(f"s_add_u32 s{85+i}, s80, {i}")
            A(f"s_and_b32 s{85+i}, s{85+i}, 3")
    else:
        A("s_waitcnt vmcnt(16)"); stamp(A, 16)
        xload(3)
        A.many(dots(0))
    A(f"v_lshrrev_b32 v{T+2}, 4, v{L}")
    A(f"v_xor_b32 v{T+2}, v{T+2}, v{T+1}")
    A(f"v_lshlrev_b32 v{T+3}, 7, v{T}")
    A("s_lshl_b32 s64, s60, 12")
    A(f"v_add_u32 v{T+3}, s64, v{T+3}")
    A(f"v_lshl_add_u32 v{T+3}, v{T+2}, 4, v{T+3}")
    for i in range(4):
        A(f"s_and_b32 s64, s{85+i}, 1")
        A("s_lshl_b32 s64, s64, 6")
        A(f"s_lshl_b32 s65, s{85+i}, 10")
        A("s_or_b32 s64, s64, s65")
        A(f"v_xor_b32 v{DW+i}, s64, v{T+3}")
    def vmw(base, tag):
        A(f"s_waitcnt vmcnt({base+9})")
        A("s_cmp_ge_u32 s21, 6")
        A(f"s_cbranch_scc1 {tag}")
        A(f"s_waitcnt vmcnt({base+8})")
        A.lab(tag)
    if OPT["xmix"]:
        e = OPT["xmix"]
        A("s_waitcnt vmcnt(8)"); stamp(A, 16)
        mix(A, dots(0), xgroups(2), e)
        A("s_waitcnt vmcnt(8)"); stamp(A, 17)
        mix(A, dots(1), xgroups(3), e)
        A("s_waitcnt vmcnt(8)"); stamp(A, 18)
        mix(A, dots(2), dma_groups(0), 7)
    elif A("s_waitcnt vmcnt(16)") or stamp(A, 17): pass
    elif OPT["wearly"]:
        mix(A, dots(1), dma_groups(0), 7)
        vmw(8, "LL_G2"); stamp(A, 18)
        A.many(dots(2))
    else:
        A.many(dots(1))
        A("s_waitcnt vmcnt(8)"); stamp(A, 18)
        mix(A, dots(2), dma_groups(0), 7)
    vmw(0, "LL_G3")
    stamp(A, 19)
    A.many(dots(3))
    A("s_nop 2")
    for ctl in ("quad_perm:[1,0,3,2]", "quad_perm:[2,3,0,1]", "row_half_mirror"):
        for r in range(S1, S2+4):
            A(f"v_add_f32_dpp v{r}, v{r}, v{r} {ctl} row_mask:0xf bank_mask:0xf")
    seq = [
        lambda i: f"v_mul_f32 v{S1+i}, {f2u(1/512):#x}, v{S1+i}",
        lambda i: f"v_mul_f32 v{S2+i}, {f2u(1/512):#x}, v{S2+i}",
        lambda i: f"v_fma_f32 v{S2+i}, -v{S1+i}, v{S1+i}, v{S2+i}",
        lambda i: f"v_max_f32 v{S2+i}, 0, v{S2+i}",
        lambda i: f"v_cvt_pk_bf16_f32 v{S2+i}, v{S1+i}, v{S2+i}",
        lambda i: f"v_lshlrev_b32 v{S1+i}, 16, v{S2+i}",
        lambda i: f"v_and_b32 v{S2+i}, 0xffff0000, v{S2+i}",
        lambda i: f"v_add_f32 v{S2+i}, {f2u(1e-5):#x}, v{S2+i}",
        lambda i: f"v_cvt_pk_bf16_f32 v{S2+i}, v{S2+i}, v{S2+i}",
        lambda i: f"v_and_b32 v{S2+i}, 0xffff0000, v{S2+i}",
        lambda i: f"v_sqrt_f32 v{S2+i}, v{S2+i}",
        lambda i: f"v_cvt_pk_bf16_f32 v{S2+i}, v{S2+i}, v{S2+i}",
        lambda i: f"v_and_b32 v{S2+i}, 0xffff0000, v{S2+i}",
        lambda i: f"v_rcp_f32 v{RR+i}, v{S2+i}",
        lambda i: f"v_mul_f32 v{RR+i}, s69, v{RR+i}",
        lambda i: f"v_mul_f32 v{MR+i}, v{S1+i}, v{RR+i}",
    ]
    for f in seq:
        for i in range(4): A(f(i))
    stamp(A, 1)
    mix(A, sum((norm(0, i) for i in range(4)), []), dma_groups(0), OPT["dmaevery"])
    if -1 in OPT["wpf"]: A.many(W_PREFETCH)
    stamp(A, 2)
    dbg_load = [f"buffer_load_dword v97, v96, {sr(S_DBG,4)}, 0 offen sc1"]
    for m in range(8):
        if m == 4: stamp(A, 29)
        A(f"s_waitcnt vmcnt({8 if m < 7 else 0}) lgkmcnt(0)")
        if m == 4: stamp(A, 30)
        if m == 5:
            A.many(ALL1(97))
            A("s_cbranch_scc1 LL_POLL0_OK")
            spin(A, "LL_POLL0", dbg_load, ALL1(97))
        A("s_barrier")
        if m == 3: stamp(A, 28)
        if m == 4: stamp(A, 31)
        if m == 7: break
        work = sum((norm(m+1, i) for i in range(4)), [])
        isw = lambda w: w.startswith("ds_")
        if OPT["exp"] == "wlast": work = [w for w in work if not isw(w)] + [w for w in work if isw(w)]
        if OPT["exp"] == "wfirst":
            if m == 0: A.many(work)
            else: A.many([w for w in work if isw(w)])
            work = [w for w in sum((norm(m+2, i) for i in range(4)), []) if not isw(w)] if m < 6 else []
        if OPT["exp"].startswith("grp"):
            dg = dma_groups(0) if m < 6 else []
            split = {"grp": [3,2,2,2,0], "grp2": [0,3,3,3,0], "grp3": [2,3,2,2,0], "grp4": [4,3,2,0,0]}[OPT["exp"]]
            for _ in range(split[0]):
                if dg: A.many(dg.pop(0))
            for i in range(4):
                nn = norm(m+1, i)
                A.many(nn[:-1])
                for _ in range(split[i+1]):
                    if dg: A.many(dg.pop(0))
                A(nn[-1])
            work = None
        if OPT["exp"] == "nonorm": work = []
        if OPT["exp"] == "nowrite": work = [w for w in work if not w.startswith("ds_")]
        if OPT["exp"] == "dmalast":
            A.many(work); work = []
        if OPT["exp"] == "dmafirst":
            mix(A, [], dma_groups(0) if m < 6 else [], 1); A.many(work); continue
        if work is not None: mix(A, work, dma_groups(0) if m < 6 else [], OPT["dmalast"] if m == 5 else OPT["dmaevery"])
        if m in OPT["wpf"]:
            A("s_cmp_lt_u32 s21, 6")
            A(f"s_cbranch_scc1 LL_PF{m}")
            A.many(W_PREFETCH)
            A.lab(f"LL_PF{m}")
        if m == 3:
            A(f"v_min_u32 v96, {NZ-1}, v{L}")
            A("v_lshlrev_b32 v96, 2, v96")
            A.many(dbg_load)
    A("s_mov_b32 s23, s79")
    side_setup(A)
    A("s_call_b64 s[76:77], L_ATTINIT")
    late_init(A)
    A("s_barrier")
    if OPT["b8prio"]: A("s_setprio 3")
    stamp(A, 3)
    if not OPT["sidelate"]:
        A("s_cmp_eq_u32 s23, 0")
        A("s_cbranch_scc1 LL_S7")
        side_loads(A, 0)
        side_loads(A, 1)
        A.lab("LL_S7")
    A("s_cmp_lg_u32 s60, 0")
    A("s_cbranch_scc1 LL_WAITGO")
    A("v_mov_b32 v96, 0")
    A("s_bfe_u32 s64, s2, 0x10004")
    A("s_lshl_b32 s64, s64, 5")
    A("s_and_b32 s65, s2, 15")
    A("s_add_u32 s64, s64, s65")
    A("s_bfe_u32 s65, s2, 0x10005")
    A("s_lshl_b32 s65, s65, 4")
    A("s_add_u32 s64, s64, s65")
    A("s_lshl_b32 s64, s64, 7")
    A(f"s_add_u32 s64, s64, {QCNT:#x}")
    if OPT["qsch"] == "E":
        A(f"s_and_b32 s64, s64, {(~(24*128)) & 0xffffffff:#x}")
        spin(A, "LL_POLL", [f"buffer_load_dword v97, v96, {sr(S_WS,4)}, s64 offen sc1"], ALL1(97))
    else: spin3(A, "LL_POLL", [0, 1, 2], 96, "s64", 48)
    A(f"v_mov_b32 v96, {SW}")
    A("v_mov_b32 v97, 1")
    A("ds_write_b32 v96, v97 offset:4")
    A("s_branch LL_GO")
    A.lab("LL_WAITGO")
    A(f"v_mov_b32 v96, {SW}")
    A(f"s_mov_b32 s70, {SPIN_MAX*16}")
    A.lab("LL_WG1")
    A("ds_read_b32 v97, v96 offset:4")
    A("s_waitcnt lgkmcnt(0)")
    A("v_readfirstlane_b32 s65, v97")
    A("s_cmp_lg_u32 s65, 0")
    A("s_cbranch_scc1 LL_GO")
    A("s_sleep 1")
    A("s_sub_u32 s70, s70, 1")
    A("s_cmp_lg_u32 s70, 0")
    A("s_cbranch_scc1 LL_WG1")
    A.lab("LL_GO")
    stamp(A, 4)
    A("s_and_b32 s64, s2, 31")
    A("s_lshl_b32 s64, s64, 16")
    A("s_lshl_b32 s65, s60, 11")
    A("s_add_u32 s64, s64, s65")
    A("s_lshr_b32 s66, s2, 5")
    A("s_lshl_b32 s66, s66, 13")
    A("s_add_u32 s66, s66, s64")
    A(f"s_add_u32 m0, s65, {QOFF}")
    A(f"s_add_u32 s67, s64, {KF:#x}")
    A(f"buffer_load_dwordx4 v95, {sr(S_WS,4)}, s66 offen sc1 lds")
    A(f"buffer_load_dwordx4 v95, {sr(S_WS,4)}, s66 offen offset:1024 sc1 lds")
    A(f"s_add_u32 s68, s64, {VF:#x}")
    for c in range(2):
        A(f"s_add_u32 m0, s65, {c*8192}")
        A("s_nop 0")
        A(f"buffer_load_dwordx4 v95, {sr(S_WS,4)}, s67 offen sc1 lds")
        A(f"buffer_load_dwordx4 v95, {sr(S_WS,4)}, s67 offen offset:1024 sc1 lds")
        A(f"s_add_u32 m0, s65, {65536 + c*8192}")
        A("s_add_u32 s67, s67, 8192")
        A(f"buffer_load_dwordx4 v95, {sr(S_WS,4)}, s68 offen sc1 lds")
        A(f"buffer_load_dwordx4 v95, {sr(S_WS,4)}, s68 offen offset:1024 sc1 lds")
        A("s_add_u32 s68, s68, 8192")
    A("s_cmp_eq_u32 s23, 0")
    A("s_cbranch_scc1 L_P0")
    side_offsets(A)
    if OPT["sidelate"]:
        side_loads(A, 0)
        side_loads(A, 1)
        A("s_waitcnt vmcnt(32)")
        A("s_branch L_P0B")
    else:
        A("s_waitcnt vmcnt(10)")
        side_combine(A)


WSC = lambda: "" if OPT["wl1"] else " sc1"
def down_loads(A, slot):
    A(f"buffer_load_dwordx4 {vr(DH[slot],4)}, v{L16}, {sr(S_T1,4)}, s84 offen sc1")
    A(f"buffer_load_dwordx4 {vr(DW_[slot],4)}, v{L16}, {sr(S_T2,4)}, s85 offen{WSC()}")
    A(f"buffer_load_dwordx4 {vr(DW_[slot]+4,4)}, v{L16}, {sr(S_T2,4)}, s85 offen offset:1024{WSC()}")
    A("s_add_u32 s84, s84, 1024")
    A("s_add_u32 s85, s85, 2048")

def kv_piece(k):
    if k & 1: return ["s_add_u32 m0, s95, 65536", "s_add_u32 s94, s94, 8192",
                      f"buffer_load_dwordx4 v{L16}, {sr(S_WS,4)}, s60 offen sc1 lds", "s_add_u32 s95, s95, 8192"]
    return ["s_mov_b32 m0, s95", f"s_add_u32 s60, s94, {VF-KF:#x}", f"buffer_load_dwordx4 v{L16}, {sr(S_WS,4)}, s94 offen sc1 lds"]
HPOLL = lambda: apoll(101, 100, "s75", 15)

def attn_body(A, mode, stores=True):
    hs = 0; wo = 0; cl = 0; rw = 0
    for t in range(2 if mode == "P" else 8):
        p = t & 1
        down = mode == "B" or (mode == "2" and t >= 4) or (mode == "C" and t < 4)
        cur, prv = S_[p], S_[1-p]
        ex = lambda a, b: [A(f"v_exp_f32 v{cur+i}, v{cur+i}") for i in range(a, b)]
        if p == 0: A(f"s_setprio {3 - (t >> 1)}")
        if mode == "P": A("s_waitcnt vmcnt(3)")
        else: A(f"s_waitcnt lgkmcnt({3 + (OPT['rwplan'][t-1] if mode == 'C' and t else 0)})")
        ex(0, 2)
        if not (mode == "0" and t == 0):
            A(f"v_smfmac_f32_32x32x32_bf16 {vr(O_,16)}, {vr(V1[1-p],4)}, {vr(prv+8,8)}, v{IDX}")
        kv = mode in "01" and t in OPT["kvplan"][int(mode)]
        if kv: A.many(kv_piece(0))
        ex(2, 6 if down else 7)
        A(f"v_mfma_f32_32x32x16_bf16 {vr(prv,16)}, {vr(KB[1-p],4)}, {vr(Q_,4)}, {vr(C_,16)}")
        if mode == "P": A(f"buffer_load_dwordx4 {vr(KB[1-p],4)}, v{L16}, {sr(S_WS,4)}, s94 offen offset:3072 sc1")
        else: A(f"ds_read_b128 {vr(KB[1-p],4)}, v{KA} offset:{(t+3)*1024}")
        if kv: A.many(kv_piece(1))
        ex(6 if down else 7, 10 if down else 12)
        A(f"v_smfmac_f32_32x32x32_bf16 {vr(O_,16)}, {vr(V0[p],4)}, {vr(cur,8)}, v{IDX}")
        A("s_mov_b64 exec, s[80:81]")
        if mode == "P":
            A(f"buffer_load_dwordx4 {vr(V0[p],4)}, v{VA}, {sr(S_WS,4)}, s94 offen offset:2048 sc1")
            A(f"buffer_load_dwordx4 {vr(V1[1-p],4)}, v{VA}, {sr(S_WS,4)}, s94 offen offset:1536 sc1")
            A("s_add_u32 s94, s94, 1024")
        else:
            A(f"ds_read_b128 {vr(V0[p],4)}, v{VA} offset:{(t+2)*1024}")
            A(f"ds_read_b128 {vr(V1[1-p],4)}, v{VA} offset:{(t+1)*1024+512}")
        A("s_mov_b64 exec, -1")
        if mode == "0":
            if t == 7:
                A(f"buffer_store_dwordx4 {vr(DH[0],4)}, v{L16}, {sr(S_WS,4)}, s11 offen sc1")
            for _ in range(OPT["hplan"][t]):
                if stores: A(f"buffer_store_dwordx4 {vr(HREG+4*hs,4)}, v249, {sr(S_WS,4)}, s{HOFF[hs]} offen sc1")
                hs += 1
        if mode == "2" and t < 4: down_loads(A, (t + 2) & 3)
        if mode == "C":
            if t == 0: A(f"buffer_load_dwordx4 {vr(XV,4)}, v252, {sr(S_X,4)}, s88 offen"); cl += 1
            for _ in range(OPT["woplan"][t]):
                A(f"buffer_load_dwordx4 {vr(WO+4*wo,4)}, v{L16}, {sr(S_WS,4)}, s90 offen offset:{(wo&3)*1024} sc1")
                wo += 1; cl += 1
                if wo & 3 == 0: A("s_add_u32 s90, s90, 4096")
            for _ in range(OPT["rwplan"][t]):
                A(f"ds_write_b128 v102, {vr(DACC+4*rw,4)} offset:{rw*RP}"); rw += 1
        if down and mode == "C":
            ex(10, 12)
            A(f"s_waitcnt vmcnt({3*(3-t) + cl})")
            A(f"v_mfma_f32_32x32x16_bf16 {vr(DACC,16)}, {vr(DW_[t],4)}, {vr(DH[t],4)}, {vr(DACC,16)}")
            ex(12, 16)
            A(f"v_mfma_f32_32x32x16_bf16 {vr(DACC+16,16)}, {vr(DW_[t]+4,4)}, {vr(DH[t],4)}, {vr(DACC+16,16)}")
            if t == 1: A("s_barrier")
        elif down:
            ex(10, 14)
            sl = t >> 1
            if p == 0: A("s_waitcnt vmcnt(9)")
            cc = "0" if (mode == "2" and t < 6) else vr(DACC+16*p,16)
            A(f"v_mfma_f32_32x32x16_bf16 {vr(DACC+16*p,16)}, {vr(DW_[sl]+4*p,4)}, {vr(DH[sl],4)}, {cc}")
            if p == 1: down_loads(A, sl)
            ex(14, 16)
        else:
            ex(12, 16)
        if mode == "0" and t == 4 and OPT["sidelate"]:
            assert sum(OPT["hplan"][:5]) <= 5
            A("s_cmp_eq_u32 s23, 0")
            A("s_cbranch_scc1 L_NOSC")
            A(f"s_waitcnt vmcnt({hs + 2*len([k for k in OPT['kvplan'][0] if k <= 4])})")
            side_combine(A)
            A.lab("L_NOSC")
        if mode == "1" and t == OPT["sigt"]:
            stamp(A, 25)
            A("s_waitcnt vmcnt(0)")
            stamp(A, 26)
            A("s_barrier")
            stamp(A, 27)
            A("s_cmp_lg_u32 s22, 0")
            A("s_cbranch_scc1 L_NOSIG")
            A("s_mov_b64 exec, 0xff")
            A("v_mov_b32 v97, 1")
            A(f"v_lshlrev_b32 v96, 10, v{L}")
            A(f"buffer_atomic_add v97, v96, {sr(S_WS,4)}, s91 offen")
            A("s_mov_b64 exec, -1")
            A.lab("L_NOSIG")
        if mode == "1" and t == 6:
            A("s_cmp_lg_u32 s22, 0")
            A("s_cbranch_scc1 L_NOPQ")
            A(f"v_lshlrev_b32 v100, 7, v{L}")
            A.many(HPOLL())
            A.lab("L_NOPQ")
        if mode == "1" and t == 7:
            stamp(A, 8)
            A("s_cmp_lg_u32 s22, 0")
            A("s_cbranch_scc1 L_HPOLL_OK")
            spin(A, "L_HPOLL2", HPOLL(), acmp(101, 64, 15), first_loaded=True)
            if OPT["wl1"] == 2:
                A("buffer_inv sc1")
                A("s_waitcnt vmcnt(0)")
            A.lab("L_HPOLL_OK")
            A("s_waitcnt vmcnt(0)")
            A("s_barrier")
            stamp(A, 9)
    if mode == "0": assert hs == 9
    if mode == "C": assert wo == 16 and rw == 8
    if mode == "P": A("s_add_u32 s83, s83, 1")
    elif mode != "C":
        A(f"v_add_u32 v{KA}, 8192, v{KA}")
        A(f"v_add_u32 v{VA}, 8192, v{VA}")
        A("s_add_u32 s83, s83, 1")

def late_init(A):
    A(f"v_lshlrev_b32 v{L16}, 4, v{L}")
    A(f"v_mov_b32 v{IDX}, 0xdddd")
    A(f"v_and_b32 v98, 15, v{L}")
    A("v_lshlrev_b32 v98, 4, v98")
    A(f"v_lshrrev_b32 v99, 5, v{L}")
    A("v_lshl_or_b32 v98, v99, 8, v98")
    A("v_add_u32 v98, 65536, v98")
    A(f"v_add_u32 v99, s15, v{L16}")
    A(f"v_add_u32 v102, s16, v{L16}")
    A(f"v_and_b32 v103, 7, v{L}")
    A(f"v_mul_u32_u24 v103, {RP}, v103")
    A(f"v_lshrrev_b32 v100, 3, v{L}")
    A("v_lshl_add_u32 v103, v100, 4, v103")
    A("v_add_u32 v103, s17, v103")
    A(f"v_mov_b32 v{KA}, v{L16}")
    A(f"v_mov_b32 v{VA}, v98")
    A("v_mov_b32 v100, 0xff800000")
    A("v_mov_b32 v101, 0xff800000")
    for r in range(4): A(f"v_mov_b32 v{DH[0]+r}, -1")

def gen_attinit(A):
    A.lab("L_ATTINIT")
    for r in range(O_, O_+32): A(f"v_mov_b32 v{r}, 0")
    A("s_mov_b32 s80, 0x00110000")
    A("s_mov_b32 s81, 0x00110000")
    A("s_mov_b64 exec, s[80:81]")
    for r in range(V0[0], V0[0]+16): A(f"v_mov_b32 v{r}, 0x3f803f80")
    A("s_mov_b64 exec, -1")
    A("s_mov_b32 s80, 0xffff")
    A("s_mov_b32 s81, 0xffff")
    A(f"s_mov_b32 s79, {f2u(-OPT['bias']):#x}")
    A("s_mov_b32 s82, 1")
    A(f"v_and_b32 v251, 7, v{L}")
    A(f"v_lshrrev_b32 v252, 3, v{L}")
    A("v_lshlrev_b32 v252, 10, v252")
    A("v_lshl_add_u32 v252, v251, 4, v252")
    A("s_lshl_b32 s15, s22, 10")
    A(f"s_add_u32 s15, s15, {QOFF}")
    A("s_and_b32 s91, s20, 3")
    A("s_lshl_b32 s91, s91, 7")
    A(f"s_add_u32 s91, s91, {QFLAG+4*128:#x}")
    A("s_and_b32 s75, s2, 7")
    A("s_lshl_b32 s75, s75, 10")
    A(f"s_add_u32 s75, s75, {QFLAG+4*128:#x}")
    A("s_lshr_b32 s61, s2, 5")
    A("s_lshl_b32 s61, s61, 3")
    A("s_add_u32 s61, s61, s22")
    A("s_lshl_b32 s61, s61, 5")
    A("s_and_b32 s62, s2, 31")
    A("s_add_u32 s61, s61, s62")
    A("s_lshl_b32 s11, s61, 10")
    A(f"s_add_u32 s11, s11, {OF:#x}")
    A("s_and_b32 s94, s2, 31")
    A("s_lshl_b32 s94, s94, 16")
    A("s_lshl_b32 s95, s22, 10")
    A("s_add_u32 s95, s95, 16384")
    A("s_add_u32 s94, s94, s95")
    A(f"s_add_u32 s94, s94, {KF:#x}")
    A("s_and_b32 s67, s2, 7")
    A("s_bfe_u32 s61, s2, 0x20003")
    A("s_lshl_b32 s67, s67, 2")
    A("s_add_u32 s67, s67, s61")
    A("s_lshr_b32 s61, s2, 5")
    A("s_and_b32 s62, s22, 1")
    A("s_lshl_b32 s67, s67, 1")
    A("s_add_u32 s67, s67, s62")
    A("s_lshr_b32 s62, s22, 1")
    A("s_mul_i32 s63, s62, 22")
    A("s_cmp_eq_u32 s62, 3")
    A("s_cselect_b32 s63, 65, s63")
    A("s_cmp_lt_u32 s62, 2")
    A("s_cselect_b32 s64, 22, 21")
    A(f"s_mul_i32 s65, s67, {NFU}")
    A("s_add_u32 s65, s65, s63")
    A("s_lshl_b32 s65, s65, 10")
    A(f"s_add_u32 s65, s65, {HF:#x}")
    A(f"s_add_u32 s{S_T1}, s18, s65")
    A(f"s_addc_u32 s{S_T1+1}, s19, 0")
    A(f"s_lshl_b32 s{S_T1+2}, s64, 10")
    A(f"s_mov_b32 s{S_T1+3}, 0x00020000")
    A(f"s_mul_i32 s65, s61, {NFU}")
    A("s_add_u32 s65, s65, s63")
    A("s_lshl_b32 s65, s65, 11")
    A(f"s_add_u32 s65, s65, {WDF:#x}")
    A(f"s_add_u32 s{S_T2}, s18, s65")
    A(f"s_addc_u32 s{S_T2+1}, s19, 0")
    A(f"s_lshl_b32 s{S_T2+2}, s64, 11")
    A(f"s_mov_b32 s{S_T2+3}, 0x00020000")
    A("s_mov_b32 s84, 0")
    A("s_mov_b32 s85, 0")
    A("s_lshl_b32 s90, s61, 16")
    A("s_lshl_b32 s66, s62, 14")
    A("s_add_u32 s90, s90, s66")
    A(f"s_add_u32 s90, s90, {WOF:#x}")
    A("s_lshl_b32 s87, s67, 15")
    A("s_lshl_b32 s66, s62, 13")
    A("s_add_u32 s87, s87, s66")
    A(f"s_add_u32 s87, s87, {OF:#x}")
    A("s_lshl_b32 s88, s67, 15")
    A("s_lshl_b32 s66, s61, 7")
    A("s_add_u32 s88, s88, s66")
    A("s_lshl_b32 s66, s62, 13")
    A("s_add_u32 s88, s88, s66")
    A("s_add_u32 s13, s87, 4096")
    red_addr(A)
    A("s_setpc_b64 s[76:77]")

def gen_attn(A):
    A("s_waitcnt lgkmcnt(0)")
    late_init(A)
    A.lab("L_P0")
    stamp(A, 5)
    A("s_waitcnt vmcnt(0)")
    A.lab("L_P0B")
    A("s_barrier")
    stamp(A, 6)
    A(f"ds_read_b128 {vr(Q_,4)}, v99")
    A(f"ds_read_b128 {vr(KB[0],4)}, v{KA}")
    A(f"ds_read_b128 {vr(KB[1],4)}, v{KA} offset:1024")
    A("s_mov_b64 exec, s[80:81]")
    A(f"ds_read_b128 {vr(V0[0],4)}, v{VA}")
    A("s_mov_b64 exec, -1")
    A("s_waitcnt lgkmcnt(2)")
    A(f"v_mfma_f32_32x32x16_bf16 {vr(S_[0],16)}, {vr(KB[0],4)}, {vr(Q_,4)}, 0")
    A("s_waitcnt lgkmcnt(1)")
    A(f"v_mfma_f32_32x32x16_bf16 {vr(C_,16)}, {vr(KB[1],4)}, {vr(Q_,4)}, 0")
    A("s_nop 10")
    for i in range(8): A(f"v_max3_f32 v100, v{2*i}, v{2*i+1}, v100")
    for i in range(8): A(f"v_max3_f32 v101, v{C_+2*i}, v{C_+2*i+1}, v101")
    A("v_max_f32 v100, v100, v101")
    A("v_mov_b32 v101, v100")
    A("s_nop 1")
    A("v_permlane32_swap_b32 v100, v101")
    A("s_nop 1")
    A("v_max_f32 v100, v100, v101")
    for r in range(16): A(f"v_sub_f32 v{C_+r}, s79, v100")
    A("s_nop 1")
    A(f"v_mfma_f32_32x32x16_bf16 {vr(S_[0],16)}, {vr(KB[0],4)}, {vr(Q_,4)}, {vr(C_,16)}")
    A(f"ds_read_b128 {vr(KB[0],4)}, v{KA} offset:2048")
    A("s_mov_b64 exec, s[80:81]")
    A(f"ds_read_b128 {vr(V0[1],4)}, v{VA} offset:1024")
    A(f"ds_read_b128 {vr(V1[0],4)}, v{VA} offset:512")
    A("s_mov_b64 exec, -1")
    A("s_mov_b32 s83, 0")
    stamp(A, 7)
    A("s_nop 4")
    if OPT["two0"]:
        A("s_cmp_lt_u32 s21, 6")
        A("s_cbranch_scc1 L_BODY0N")
        A("s_cmp_eq_u32 s22, 4")
        A("s_cbranch_scc1 L_BODY0N")
    attn_body(A, "0")
    A.lab("L_BODY1")
    stamp(A, 24)
    attn_body(A, "1")
    attn_body(A, "2")
    A.lab("L_LOOPB")
    attn_body(A, "B")
    if OPT["prof"] and OPT["bstamp"]:
        A("s_memtime s[96:97]")
        A("s_memrealtime s[98:99]")
        A("s_add_u32 m0, s83, 17")
        A("s_waitcnt lgkmcnt(0)")
        A("v_writelane_b32 v255, s96, m0")
        A("s_add_u32 m0, s83, 49")
        A("s_nop 0")
        A("v_writelane_b32 v255, s98, m0")
    A("s_cmp_lt_u32 s83, 7")
    A("s_cbranch_scc1 L_LOOPB")
    attn_body(A, "C")
    A.lab("L_ATT_DONE")
    A("s_setprio 3")
    A("s_waitcnt lgkmcnt(0)")
    stamp(A, 10)
    A(f"v_smfmac_f32_32x32x32_bf16 {vr(O_,16)}, {vr(V1[1],4)}, {vr(S_[1]+8,8)}, v{IDX}")
    A("s_nop 0")
    A(f"v_mov_b32 v96, {f2u(2.0**90):#x}")
    A(f"v_mov_b32 v97, {f2u(2.0**120):#x}")
    A(f"v_mov_b32 v99, {f2u(2.0**-100):#x}")
    A("s_nop 7")
    A(f"v_rcp_f32 v101, v{O_+8}")
    A("s_nop 0")
    A(f"v_mul_f32 v101, {f2u(2.0**-VSH):#x}, v101")
    for r in range(8): A(f"v_mul_f32 v{r}, v{O_+r}, v101")
    for i in range(4): A(f"v_cvt_pk_bf16_f32 v{8+i}, v{2*i}, v{2*i+1}")
    A("s_cmp_eq_u32 s82, 0")
    A("s_cbranch_scc1 L_FIN")
    A(f"v_add_f32 v100, abs(v{O_}), abs(v{O_+1})")
    for r in range(2, 8): A(f"v_add_f32 v100, v100, abs(v{O_+r})")
    A(f"v_cmp_nlt_f32 s[62:63], v{O_+8}, v96")
    A("v_cmp_nlt_f32 s[64:65], v100, v97")
    A("v_cmp_lt_f32 vcc, v100, v99")
    A("s_or_b64 s[62:63], s[62:63], s[64:65]")
    A("s_or_b64 s[62:63], s[62:63], vcc")
    A("s_cmp_eq_u64 s[62:63], 0")
    A("s_branch L_EXACT" if OPT["force_fallback"] else "s_cbranch_scc0 L_EXACT")
    A.lab("L_FIN")
    A(f"buffer_store_dwordx4 {vr(8,4)}, v{L16}, {sr(S_WS,4)}, s11 offen sc1")

RP = 1056
RS = 8*RP
def red_addr(A):
    A("s_and_b32 s62, s22, 1")
    A("s_lshr_b32 s63, s22, 1")
    A("s_mul_i32 s62, s62, 69632")
    A(f"s_mul_i32 s64, s63, {RS}")
    A("s_add_u32 s16, s64, s62")
    A("s_lshl_b32 s64, s63, 7")
    A("s_add_u32 s17, s64, s62")
def red_write(A, acc):
    for p in range(8): A(f"ds_write_b128 v102, {vr(acc+4*p,4)} offset:{p*RP}")
def red_read(A, dst):
    for s in range(4):
        for h in range(2):
            A(f"ds_read_b128 {vr(dst+8*s+4*h,4)}, v103 offset:{s*RS + h*512}")
def red_sum(A, dst):
    for r in range(8):
        A(f"v_add_f32 v{dst+r}, v{dst+r}, v{dst+8+r}")
        A(f"v_add_f32 v{dst+16+r}, v{dst+16+r}, v{dst+24+r}")
    for r in range(8): A(f"v_add_f32 v{dst+r}, v{dst+r}, v{dst+16+r}")
def round_bf16(A, regs, tmp):
    for i in range(4): A(f"v_cvt_pk_bf16_f32 v{tmp+i}, v{regs+2*i}, v{regs+2*i+1}")
    for i in range(4):
        A(f"v_lshlrev_b32 v{regs+2*i}, 16, v{tmp+i}")
        A(f"v_and_b32 v{regs+2*i+1}, 0xffff0000, v{tmp+i}")

OB = 16
def o_load(A, s):
    A(f"buffer_load_dwordx4 {vr(OB+4*s,4)}, v{L16}, {sr(S_WS,4)}, s{87 if s < 4 else 13} offen offset:{(s&3)*1024} sc1")
def gen_final(A):
    stamp(A, 11)
    A("s_barrier")
    stamp(A, 20)
    G = DACC; T = 136
    red_read(A, G)
    if OPT["oearly"]:
        for s in range(8): o_load(A, s)
    A(f"s_waitcnt vmcnt({9 if OPT['oearly'] else 1})")
    A(f"v_add_u32 v102, {4*RS}, v102")
    A(f"v_add_u32 v103, {4*RS}, v103")
    for i in range(4):
        A(f"v_lshlrev_b32 v{144+2*i}, 16, v{XV+i}")
        A(f"v_and_b32 v{145+2*i}, 0xffff0000, v{XV+i}")
    A("s_waitcnt lgkmcnt(0)")
    B = Asm()
    red_sum(B, G)
    if OPT["mimic"]: round_bf16(B, G, T)
    for r in range(8): B(f"v_mul_f32 v{T+r}, {f2u(-LOG2E):#x}, v{G+r}")
    for r in range(8): B(f"v_exp_f32 v{T+r}, v{T+r}")
    for r in range(8): B(f"v_add_f32 v{T+r}, 1.0, v{T+r}")
    for r in range(8): B(f"v_rcp_f32 v{T+r}, v{T+r}")
    for r in range(8): B(f"v_mul_f32 v{G+r}, v{G+r}, v{T+r}")
    if OPT["mimic"]: round_bf16(B, G, T)
    gw = [x.strip() for x in B.l]
    if not OPT["oearly"]:
        A.many(gw[:OPT["gpre0"]]); gw = gw[OPT["gpre0"]:]
        for s in range(8): o_load(A, s)
    A.many(gw[:OPT["gpre"]]); gw = gw[OPT["gpre"]:]
    stamp(A, 12)
    ACC = 104
    A(f"s_mov_b32 s70, {SPIN_MAX}")
    for s in range(8):
        o = OB + 4*s
        A.lab(f"L_OW{s}")
        A(f"s_waitcnt vmcnt({7-s})")
        A(f"v_max3_u32 v96, v{o}, v{o+1}, v{o+2}")
        A(f"v_max_u32 v96, v96, v{o+3}")
        A("v_cmp_eq_u32 vcc, -1, v96")
        A("s_cmp_lg_u64 vcc, 0")
        A(f"s_cbranch_scc1 L_OR{s}")
        A.lab(f"L_OK{s}")
        for nt in range(2):
            c = "0" if s == 0 else vr(ACC+16*nt,16)
            A(f"v_mfma_f32_32x32x16_bf16 {vr(ACC+16*nt,16)}, {vr(WO+8*s+4*nt,4)}, {vr(o,4)}, {c}")
            A.many(gw[:OPT["gper"]]); gw = gw[OPT["gper"]:]
    A.many(gw)
    stamp(A, 13)
    A("s_nop 11")
    red_write(A, ACC)
    A("s_waitcnt lgkmcnt(0)")
    A("s_barrier")
    red_read(A, 0)
    A("s_waitcnt lgkmcnt(0)")
    red_sum(A, 0)
    if OPT["mimic"]:
        round_bf16(A, 0, T)
        for r in range(8): A(f"v_mul_f32 v{r}, v{r}, v{G+r}")
        round_bf16(A, 0, T)
        for r in range(8): A(f"v_add_f32 v{r}, v{r}, v{144+r}")
    else:
        for r in range(8): A(f"v_fma_f32 v{r}, v{r}, v{G+r}, v{144+r}")
    for i in range(4): A(f"v_cvt_pk_bf16_f32 v{T+i}, v{2*i}, v{2*i+1}")
    A(f"buffer_store_dwordx4 {vr(T,4)}, v252, {sr(S_OUT,4)}, s88 offen{OPT['outfl']}")
    if OPT["fixdur"]:
        A.lab("L_FIXDUR")
        A("s_memrealtime s[96:97]")
        A("s_waitcnt lgkmcnt(0)")
        A("s_sub_u32 s96, s96, s100")
        A(f"s_cmp_lt_u32 s96, {OPT['fixdur']}")
        A("s_cbranch_scc1 L_FIXDUR")
    if OPT["prof"]:
        stamp(A, 14)
        A(f"s_add_u32 s{S_T1}, s18, {PROF_OFF:#x}")
        A(f"s_addc_u32 s{S_T1+1}, s19, 0")
        A(f"s_mov_b32 s{S_T1+2}, 0x100000")
        A(f"s_mov_b32 s{S_T1+3}, 0x00020000")
        A("s_lshl_b32 s60, s2, 3")
        A("s_add_u32 s60, s60, s22")
        A("s_lshl_b32 s60, s60, 8")
        A(f"v_lshlrev_b32 v0, 2, v{L}")
        A(f"buffer_store_dword v255, v0, {sr(S_T1,4)}, s60 offen")
        if OPT["dbgout"]:
            A("s_cmp_lg_u32 s2, 200")
            A("s_cbranch_scc1 L_END")
            A("s_cmp_lg_u32 s22, 0")
            A("s_cbranch_scc1 L_END")
            A("v_readlane_b32 s61, v255, 32")
            A("v_readlane_b32 s63, v255, 0")
            A("v_mov_b32 v1, 0")
            A("s_mov_b64 exec, 1")
            for n, i in enumerate((2, 3, 4, 6, 9, 10, 12, 14)):
                A(f"v_readlane_b32 s62, v255, {32+i}")
                A("s_sub_u32 s62, s62, s61")
                A("v_mov_b32 v2, s62")
                A(f"buffer_store_dword v2, v1, {sr(S_DBG,4)}, 0 offen offset:{32+4*n}")
                A("s_nop 1")
            A("v_readlane_b32 s62, v255, 14")
            A("s_sub_u32 s62, s62, s63")
            A("v_mov_b32 v2, s62")
            A(f"buffer_store_dword v2, v1, {sr(S_DBG,4)}, 0 offen offset:28")

def gen_hooks(A):
    gen_attinit(A)
    if OPT["two0"]:
        A.lab("L_BODY0N")
        attn_body(A, "0", False)
        A("s_branch L_BODY1")
    for s in range(8):
        A.lab(f"L_OR{s}")
        A("s_sub_u32 s70, s70, 1")
        A("s_cmp_lt_i32 s70, 0")
        A(f"s_cbranch_scc1 L_OK{s}")
        A("s_waitcnt vmcnt(0)")
        A(f"s_sleep {OPT['osleep']}")
        for k in range(s, 8): o_load(A, k)
        A(f"s_branch L_OW{s}")
    A.lab("L_EXACT")
    A("s_mov_b32 s82, 0")
    A("s_and_b32 s95, s2, 31")
    A("s_lshl_b32 s95, s95, 16")
    A(f"s_add_u32 s95, s95, {KF:#x}")
    A(f"s_add_u32 s94, s95, {62*1024}")
    A(f"v_add_u32 v{VA}, {VF-KF-65536}, v98")
    A("v_mov_b32 v100, 0xff800000")
    for r in range(16): A(f"v_mov_b32 v{O_+r}, 0")
    for r in range(8, 16): A(f"v_mov_b32 v{S_[1]+r}, 0")
    A.lab("L_MAXLOOP")
    A(f"buffer_load_dwordx4 {vr(KB[0],4)}, v{L16}, {sr(S_WS,4)}, s94 offen sc1")
    A(f"buffer_load_dwordx4 {vr(KB[1],4)}, v{L16}, {sr(S_WS,4)}, s94 offen offset:1024 sc1")
    A("s_waitcnt vmcnt(0)")
    A(f"v_mfma_f32_32x32x16_bf16 {vr(S_[0],16)}, {vr(KB[0],4)}, {vr(Q_,4)}, 0")
    A(f"v_mfma_f32_32x32x16_bf16 {vr(C_,16)}, {vr(KB[1],4)}, {vr(Q_,4)}, 0")
    A("s_nop 11")
    for i in range(8): A(f"v_max3_f32 v100, v{2*i}, v{2*i+1}, v100")
    for i in range(8): A(f"v_max3_f32 v100, v{C_+2*i}, v{C_+2*i+1}, v100")
    A("s_cmp_eq_u32 s94, s95")
    A("s_cbranch_scc1 L_MAXDONE")
    A("s_sub_u32 s94, s94, 2048")
    A("s_branch L_MAXLOOP")
    A.lab("L_MAXDONE")
    A("v_mov_b32 v101, v100")
    A("s_nop 1")
    A("v_permlane32_swap_b32 v100, v101")
    A("s_nop 1")
    A("v_max_f32 v100, v100, v101")
    for r in range(16): A(f"v_sub_f32 v{C_+r}, 0, v100")
    A("s_nop 1")
    A(f"v_mfma_f32_32x32x16_bf16 {vr(S_[0],16)}, {vr(KB[0],4)}, {vr(Q_,4)}, {vr(C_,16)}")
    A("s_mov_b64 exec, s[80:81]")
    A(f"buffer_load_dwordx4 {vr(V0[0],4)}, v{VA}, {sr(S_WS,4)}, s94 offen sc1")
    A("s_mov_b64 exec, -1")
    A(f"buffer_load_dwordx4 {vr(KB[0],4)}, v{L16}, {sr(S_WS,4)}, s94 offen offset:2048 sc1")
    A("s_mov_b64 exec, s[80:81]")
    A(f"buffer_load_dwordx4 {vr(V0[1],4)}, v{VA}, {sr(S_WS,4)}, s94 offen offset:1024 sc1")
    A(f"buffer_load_dwordx4 {vr(V1[0],4)}, v{VA}, {sr(S_WS,4)}, s94 offen offset:512 sc1")
    A("s_mov_b64 exec, -1")
    A("s_mov_b32 s83, 0")
    A("s_nop 4")
    A.lab("L_LOOPP")
    attn_body(A, "P")
    A("s_cmp_lt_u32 s83, 32")
    A("s_cbranch_scc1 L_LOOPP")
    A("s_waitcnt vmcnt(0)")
    A("s_branch L_ATT_DONE")
    A.lab("L_CODE_END")

DOC = """; One persistent launch, 256 workgroups x 8 waves (one workgroup per CU), written by a generator script.
; phase 1  workgroup = 128 tokens x (256 QKV columns | 144 gate + 144 up columns).  Waves 4-7 load x, take the
;          MFMA loop (weights transposed by ds_read_b64_tr_b16) and leave Q / K / V^T / gelu(g)*u in d_ws in MFMA
;          P = exp2(S^T) stays fp32 in place and is multiplied with V^T (plus a row of ones for the row sum) by the
"""
def main(out):
    hdr = open(f"cdna_kernels/{NAME}.s.ref").read().split("\n")
    head = [l for l in hdr if l.startswith(";") and "@launch" not in l]
    head += [f"; @launch grid=(256,1,1) block=(512,1,1) lds={LDS_BYTES}"]
    A = Asm()
    d = gen(A)
    open(out, "w").write("\n".join(head) + '\n.amdgcn_target "amdgcn-amd-amdhsa--gfx950"\n' + DOC + A.text() + d)

if __name__ == "__main__":
    for a in sys.argv[2:]:
        k, _, v = a.partition("=")
        OPT[k] = eval(v) if v else True
    main(sys.argv[1] if len(sys.argv) > 1 else f"cdna_kernels/{NAME}.s")
```
